```python
import torch

def _softmax(x, axis=-1):
    return torch.softmax(x, dim=axis)
def _gelu(x):
    return torch.nn.functional.gelu(x, approximate="tanh")
def _silu(x):
    return torch.nn.functional.silu(x)
def _sigmoid(x):
    return torch.sigmoid(x)
def _layernorm(x, axis=-1, eps=1e-5):
    m = x.mean(dim=axis, keepdim=True)
    v = x.var(dim=axis, keepdim=True, unbiased=False)
    return (x - m) / torch.sqrt(v + eps)
def _scatter_add(tgt, idx, src, axis=0):
    return tgt.clone().index_add_(axis, idx, src)
def _segment_sum(src, seg, n):
    out = torch.zeros((n,) + src.shape[1:], dtype=src.dtype)
    return out.index_add_(0, seg, src)
def _pad(x, pw):
    flat = tuple(v for pair in reversed(pw) for v in pair)
    return torch.nn.functional.pad(x, flat)

kernel_name = 'concat_heads__gqa_block_cached__gqa_block_cached__near_ridge'

def setup_inputs():

    _w = (lambda a: (lambda t: t.to(torch.bfloat16) if t.is_floating_point() else t)(torch.as_tensor(a)))
    def _A_setup():
        B, Sq, D = 8, 160, 512
        Hq, Hkv, Sk, Dh = 32, 32, 1024, 128
        assert Hq % Hkv == 0, (Hq, Hkv)
        return {
            "x": _w((lambda *s: torch.randn(*s, dtype=torch.bfloat16) * 0.8)(B, Sq, D)),
            "k_cache": _w((lambda *s: torch.randn(*s, dtype=torch.bfloat16) * 0.8)(B, Hkv, Sk, Dh)),
            "v_cache": _w((lambda *s: torch.randn(*s, dtype=torch.bfloat16) * 0.05)(B, Hkv, Sk, Dh)),
            "wq": _w((lambda *s: torch.randn(*s, dtype=torch.bfloat16) * 0.8)(D, Hq * Dh) * (D ** -0.5)),
            "wo": _w((lambda *s: torch.randn(*s, dtype=torch.bfloat16) * 0.05)(Hq * Dh, D) * ((Hq * Dh) ** -0.5)),
        }
    _A_in = _A_setup()

    def _B_setup():
        B, Sq, D = 8, 160, 512
        Hq, Hkv, Sk, Dh = 32, 32, 1024, 128
        assert Hq % Hkv == 0, (Hq, Hkv)
        return {
            "x": _w((lambda *s: torch.randn(*s, dtype=torch.bfloat16) * 0.8)(B, Sq, D)),
            "k_cache": _w((lambda *s: torch.randn(*s, dtype=torch.bfloat16) * 0.8)(B, Hkv, Sk, Dh)),
            "v_cache": _w((lambda *s: torch.randn(*s, dtype=torch.bfloat16) * 0.05)(B, Hkv, Sk, Dh)),
            "wq": _w((lambda *s: torch.randn(*s, dtype=torch.bfloat16) * 0.8)(D, Hq * Dh) * (D ** -0.5)),
            "wo": _w((lambda *s: torch.randn(*s, dtype=torch.bfloat16) * 0.05)(Hq * Dh, D) * ((Hq * Dh) ** -0.5)),
        }
    _B_in = _B_setup()

    return {
        "A_x": _A_in["x"],
        "A_k_cache": _A_in["k_cache"],
        "A_v_cache": _A_in["v_cache"],
        "A_wq": _A_in["wq"],
        "A_wo": _A_in["wo"],
        "B_x": _B_in["x"],
        "B_k_cache": _B_in["k_cache"],
        "B_v_cache": _B_in["v_cache"],
        "B_wq": _B_in["wq"],
        "B_wo": _B_in["wo"],
    }

def reference(A_x, A_k_cache, A_v_cache, A_wq, A_wo, B_x, B_k_cache, B_v_cache, B_wq, B_wo):
    def _A_ref(x, k_cache, v_cache, wq, wo):
        B, Sq, D = x.shape
        Hq, Dh = 32, 128
        Hkv = k_cache.shape[1]
        rep = Hq // Hkv
        q = (lambda x, *d: x.permute(*d))((x @ wq).reshape(B, Sq, Hq, Dh), 0, 2, 1, 3)
        k = (lambda x, n, axis: torch.repeat_interleave(x, n, dim=axis))(k_cache, rep, axis=1)
        v = (lambda x, n, axis: torch.repeat_interleave(x, n, dim=axis))(v_cache, rep, axis=1)
        scores = torch.einsum("bhqd,bhkd->bhqk", q, k) * (Dh ** -0.5)
        p = _softmax(scores, axis=-1)
        o = torch.einsum("bhqk,bhkd->bhqd", p, v)
        return (lambda x, *d: x.permute(*d))(o, 0, 2, 1, 3).reshape(B, Sq, Hq * Dh) @ wo

    def _B_ref(x, k_cache, v_cache, wq, wo):
        B, Sq, D = x.shape
        Hq, Dh = 32, 128
        Hkv = k_cache.shape[1]
        rep = Hq // Hkv
        q = (lambda x, *d: x.permute(*d))((x @ wq).reshape(B, Sq, Hq, Dh), 0, 2, 1, 3)
        k = (lambda x, n, axis: torch.repeat_interleave(x, n, dim=axis))(k_cache, rep, axis=1)
        v = (lambda x, n, axis: torch.repeat_interleave(x, n, dim=axis))(v_cache, rep, axis=1)
        scores = torch.einsum("bhqd,bhkd->bhqk", q, k) * (Dh ** -0.5)
        p = _softmax(scores, axis=-1)
        o = torch.einsum("bhqk,bhkd->bhqd", p, v)
        return (lambda x, *d: x.permute(*d))(o, 0, 2, 1, 3).reshape(B, Sq, Hq * Dh) @ wo

    a = _A_ref(A_x, A_k_cache, A_v_cache, A_wq, A_wo)
    b = _B_ref(B_x, B_k_cache, B_v_cache, B_wq, B_wo)
    return torch.concatenate([a, b], axis=-1)
```

```python
import re

REG_RE = re.compile(r'^(-?)(?:abs\()?([vas])(?:\[(\d+):(\d+)\]|(\d+))\)?$')

def parse_reg(tok):
    tok = tok.strip()
    if tok in ('vcc', 'm0', 'exec', 'scc'):
        return [(tok, 0)]
    m = REG_RE.match(tok)
    if not m:
        return []
    k = m.group(2)
    if m.group(5) is not None:
        return [(k, int(m.group(5)))]
    return [(k, i) for i in range(int(m.group(3)), int(m.group(4)) + 1)]

TRANS = ('v_exp_f32', 'v_log_f32', 'v_rcp_f32', 'v_rsq_f32', 'v_sqrt_f32')

class I:
    def __init__(self, text, **ann):
        self.text = text.strip()
        self.ann = ann
        t = self.text.split(None, 1)
        self.mn = t[0]
        rest = t[1] if len(t) > 1 else ''
        ops = []
        for p in rest.split(','):
            p = p.strip()
            if not p: continue
            ops.append(p.split()[0])
        self.ops = ops
        mn = self.mn
        R = lambda i: parse_reg(ops[i]) if i < len(ops) else []
        rd, wr = [], []
        kind = 'other'
        if mn.startswith('v_mfma'):
            kind = 'mfma'; wr = R(0); rd = R(1) + R(2) + R(3)
            self.srcA, self.srcB, self.srcC = R(1), R(2), R(3)
        elif mn.startswith('v_permlane'):
            kind = 'perm'; wr = R(0) + R(1); rd = R(0) + R(1)
        elif mn.startswith('v_cmp'):
            kind = 'valu'; wr = R(0); rd = R(1) + R(2)
        elif mn.startswith('v_readfirstlane') or mn.startswith('v_readlane'):
            kind = 'rdlane'; wr = R(0); rd = R(1)
        elif mn.startswith('v_'):
            kind = 'trans' if mn in TRANS else 'valu'
            wr = R(0); rd = sum((R(i) for i in range(1, len(ops))), [])
            if mn.startswith('v_dot2c') or mn.startswith('v_fmac'): rd += R(0)
            if mn.startswith('v_cndmask') and len(ops) == 3: rd += [('vcc', 0)]
        elif mn.startswith('ds_read'):
            kind = 'dsr'; wr = R(0); rd = R(1)
        elif mn.startswith('ds_write'):
            kind = 'dsw'; rd = R(0) + R(1) + R(2)
        elif mn.startswith('buffer_load') and ' lds' in self.text:
            kind = 'dma'; rd = R(0) + R(1) + R(2) + [('m0', 0)]
        elif mn.startswith('buffer_load'):
            kind = 'vld'; wr = R(0); rd = R(1) + R(2) + R(3)
        elif mn.startswith('global_load'):
            kind = 'vld'; wr = R(0); rd = R(1) + R(2)
        elif mn.startswith('buffer_store'):
            kind = 'vst'; rd = R(0) + R(1) + R(2) + R(3); self.data = R(0)
        elif mn.startswith('buffer_atomic'):
            kind = 'vld' if ' sc0' in self.text else 'vst'
            rd = R(0) + R(1) + R(2) + R(3); self.data = R(0)
            if kind == 'vld': wr = R(0)
        elif mn in ('buffer_wbl2', 'buffer_inv'):
            kind = 'vst'; self.data = []
        elif mn == 's_waitcnt':
            kind = 'wait'
        elif mn == 's_barrier':
            kind = 'barrier'
        elif mn == 's_nop':
            kind = 'nop'
        elif mn.startswith('s_load') or mn.startswith('s_mem'):
            kind = 'smem'; wr = R(0); rd = R(1)
        elif mn.startswith('s_cbranch') or mn == 's_branch' or mn == 's_endpgm':
            kind = 'branch'
        elif mn.startswith('s_cmp'):
            kind = 'salu'; rd = R(0) + R(1)
        elif mn.startswith('s_'):
            kind = 'salu'; wr = R(0); rd = sum((R(i) for i in range(1, len(ops))), [])
        self.kind, self.rd, self.wr = kind, set(rd), set(wr)
    def states(self):
        if self.kind == 'nop': return int(self.ops[0], 0) + 1
        return 1

class Wait:
    kind = 'ph'
    def __init__(self, regs=(), tags=(), lgkm_all=False, vm_all=False):
        self.regs = set(regs); self.tags = set(tags); self.lgkm_all = lgkm_all; self.vm_all = vm_all
        self.lg = None; self.vm = None
    def text(self):
        p = []
        if self.vm is not None: p.append('vmcnt(%d)' % self.vm)
        if self.lg is not None: p.append('lgkmcnt(%d)' % self.lg)
        return 's_waitcnt ' + ' '.join(p) if p else None

class Label:
    kind = 'label'
    def __init__(self, n): self.name = n

def regs(k, lo, n): return [(k, lo + i) for i in range(n)]

class Seg:
    def __init__(self, name):
        self.name = name; self.items = []
    def __call__(self, text, **ann):
        for l in text.split('\n'):
            l = l.strip()
            if l: self.items.append(I(l, **ann))
        return self
    def add(self, it):
        if isinstance(it, (list, tuple)):
            for x in it: self.add(x)
        elif isinstance(it, str): self(it)
        else: self.items.append(it)
    def label(self, n): self.items.append(Label(n))
    def wait(self, **kw): self.items.append(Wait(**kw))
    def text(self):
        out = []
        for it in self.items:
            if it.kind == 'label': out.append(it.name + ':')
            elif it.kind == 'ph':
                t = it.text()
                if t: out.append('    ' + t)
            else: out.append('    ' + it.text)
        return '\n'.join(out) + '\n'

def flat(trace):
    for seg, ctx in trace:
        for it in seg.items:
            if it.kind != 'label': yield it, ctx, seg

def ev(x, ctx):
    return x(ctx) if callable(x) else x

def parse_wait(it):
    vm = re.search(r'vmcnt\((\d+)\)', it.text); lg = re.search(r'lgkmcnt\((\d+)\)', it.text)
    return (int(vm.group(1)) if vm else None, int(lg.group(1)) if lg else None)

def resolve(traces):
    for tr in traces:
        lq, vq = [], []
        for it, ctx, seg in flat(tr):
            k = it.kind
            if k == 'ph':
                lg = None
                if it.lgkm_all and lq: lg = 0
                else:
                    idx = [i for i, w in enumerate(lq) if w & it.regs]
                    if idx: lg = min(15, len(lq) - 1 - idx[-1])
                vm = None
                tags = set(ev(t, ctx) for t in it.tags)
                if it.vm_all and vq: vm = 0
                else:
                    idx = [i for i, (t, w) in enumerate(vq) if (t is not None and t in tags) or (w & it.regs)]
                    if idx: vm = min(63, len(vq) - 1 - idx[-1])
                if lg is not None:
                    it.lg = lg if it.lg is None else min(it.lg, lg); lq = lq[len(lq) - lg:] if lg else []
                if vm is not None:
                    it.vm = vm if it.vm is None else min(it.vm, vm); vq = vq[len(vq) - vm:] if vm else []
            elif k == 'wait':
                vm, lg = parse_wait(it)
                if lg is not None and len(lq) > lg: lq = lq[len(lq) - lg:] if lg else []
                if vm is not None and len(vq) > vm: vq = vq[len(vq) - vm:] if vm else []
            elif k in ('dsr', 'dsw', 'smem'): lq.append(it.wr)
            elif k in ('dma', 'vld', 'vst'): vq.append((ev(it.ann.get('tag'), ctx), it.wr))

def check(trace, name, verbose=False):
    errs = []
    lq, vq = [], []
    epoch = 0
    writes = []
    reads = []
    hist = []
    dma_epochs = []
    n = 0
    def err(it, seg, msg): errs.append('%s/%s #%d [%s]: %s' % (name, seg.name, n, it.text if hasattr(it, 'mn') else 'wait', msg))
    def dowait(vm, lg):
        nonlocal lq, vq
        if lg is not None and len(lq) > lg:
            done = lq[:len(lq) - lg]; lq = lq[len(lq) - lg:]
            if any(d[2] for d in done + lq) and lg != 0: errs.append('counted lgkm wait with smem in flight')
            for w, rec, _ in done:
                if rec is not None:
                    if 'status' in rec: rec['status'] = 'landed'
                    else: rec['done'] = epoch
        if vm is not None and len(vq) > vm:
            done = vq[:len(vq) - vm]; vq = vq[len(vq) - vm:]
            for w, rec in done:
                if rec is not None: rec['status'] = 'landed'
    for it, ctx, seg in flat(trace):
        n += 1
        k = it.kind
        if k == 'ph':
            if it.text() is None: continue
            dowait(it.vm, it.lg); hist.append((I('s_nop 0'), 1)); continue
        if k == 'wait':
            dowait(*parse_wait(it)); hist.append((it, 1)); continue
        if k == 'barrier':
            epoch += 1
            for w in writes:
                if w['status'] == 'landed': w['status'] = 'visible'
            hist.append((it, 1)); continue
        touch = it.rd | it.wr
        for w, rec, _ in lq:
            if w & touch: err(it, seg, 'touches pending LDS/SMEM result %s' % sorted(w & touch)[:2])
        for w, rec in vq:
            if w & touch and not it.ann.get('dummy'): err(it, seg, 'touches pending VMEM result %s' % sorted(w & touch)[:2])
        if len(vq) >= 63 and k in ('dma', 'vld', 'vst'): err(it, seg, 'vmcnt overflow')
        reg = it.ann.get('lds')
        rec = None
        if reg is not None:
            lo, hi, tag = ev(reg, ctx)
            if k == 'dsr':
                if tag is not None:
                    ov = [w for w in writes if w['lo'] < hi and lo < w['hi']]
                    if not ov: err(it, seg, 'LDS read of never-written region')
                    else:
                        newest = ov[-1]
                        if newest['tag'] != tag: err(it, seg, 'LDS read expects %s finds %s' % (tag, newest['tag']))
                        for w in ov:
                            if w['tag'] == tag and w['status'] != 'visible' and not it.ann.get('own'): err(it, seg, 'LDS read of %s not yet visible (%s)' % (tag, w['status']))
                            if w['tag'] == tag and it.ann.get('own') and w['status'] == 'inflight' and k != 'dsr': pass
                    rec = dict(lo=lo, hi=hi, done=None, tag=tag); reads.append(rec)
            else:
                for r in reads:
                    if r['lo'] < hi and lo < r['hi'] and (r['done'] is None or r['done'] >= epoch):
                        err(it, seg, 'LDS write %s over reads of %s not fenced by a barrier' % (tag, r['tag'])); break
                for w in writes:
                    if w['lo'] < hi and lo < w['hi'] and w['tag'] != tag and w['status'] == 'inflight':
                        err(it, seg, 'LDS write %s over in-flight write %s' % (tag, w['tag'])); break
                reads = [r for r in reads if not (r['lo'] < hi and lo < r['hi'] and r['done'] is not None and r['done'] < epoch)]
                writes = [w for w in writes if not (lo <= w['lo'] and w['hi'] <= hi and w['tag'] != tag)]
                rec = dict(lo=lo, hi=hi, tag=tag, status='inflight'); writes.append(rec)
                if k == 'dma': dma_epochs.append((tag, epoch))
        elif k in ('dsr', 'dsw', 'dma'):
            err(it, seg, 'LDS op without annotation')
        dist = 0
        for p, st in reversed(hist):
            if dist >= 20: break
            need = 0
            pk = p.kind
            isvalu_p = pk in ('valu', 'trans', 'perm', 'rdlane')
            vw = set(r for r in p.wr if r[0] in 'va')
            sw = set(r for r in p.wr if r[0] in ('s', 'vcc'))
            if pk == 'mfma':
                if k == 'mfma':
                    if p.wr & (set(it.srcA) | set(it.srcB)): need = 12
                    elif p.wr & set(it.srcC) and p.wr != set(it.srcC): need = 10
                    elif p.wr & it.wr and p.wr != set(it.srcC): need = 10
                else:
                    if p.wr & (it.rd | it.wr): need = 12
                    if k in ('valu', 'trans', 'perm') and set(p.srcC) & it.wr: need = max(need, 7)
            elif isvalu_p:
                if k == 'mfma' and vw & it.rd: need = 2
                if k == 'perm' and vw & it.rd: need = 2
                if k == 'rdlane' and vw & it.rd: need = 1
                if pk == 'trans' and k in ('valu', 'perm') and vw & it.rd: need = max(need, 1)
                if sw & it.rd:
                    if k in ('dma', 'vld', 'vst'): need = 5
                    elif k in ('valu', 'trans'): need = max(need, 2)
            elif pk == 'salu':
                if ('m0', 0) in p.wr and ('m0', 0) in it.rd and k == 'dma': need = 1
            elif pk == 'vst':
                if len(p.data) >= 3 and set(p.data) & it.wr: need = 2
            if need > dist: err(it, seg, 'hazard: needs %d wait states after [%s], has %d' % (need, p.text, dist))
            dist += st
        hist.append((it, it.states()))
        if len(hist) > 64: hist = hist[-40:]
        if k in ('dsr', 'dsw'): lq.append((it.wr, rec, False))
        elif k == 'smem': lq.append((it.wr, None, True))
        elif k in ('dma', 'vld', 'vst'): vq.append((it.wr, rec))
    return errs, epoch, dma_epochs
```

```python
import sys, struct, math
from fw import *

KN = "concat_heads__gqa_block_cached__gqa_block_cached__near_ridge_kernel"
WS_BYTES = 287834112
def f2u(x): return struct.unpack('<I', struct.pack('<f', x))[0]

class Opt:
    kv_pol = 'nt'
    w_pol = ''
    st_pol = 'sc0 sc1'
    rd_pol = ''
    stamps = 0
    codepf = 1
    force_redo = 0

K0, SP, V0 = 0, 65536, 98304
XA, XB, W0 = 0, 40960, 81920
FX, L4B, MB, Q4X = 49152, 57344, 65536, 65536
KS = lambda i: K0 + 16384 * (i % 4)
VS = lambda i: V0 + 16384 * (i % 4)
WS_ = lambda n: W0 + 16384 * (n % 5)

O, NM, NM4, X, Y, Z, PA, PB, P4 = 0, 64, 80, 96, 112, 128, 144, 152, 160
KAa, KAb, VAa, VAb, DK, DV, L, L4, LANE16 = 168, 176, 184, 188, 192, 196, 197, 198, 199
WA, WB, DWO, DX, DWQ, MW, MR, FW, FR, L4W, L4R = 200, 204, 208, 212, 213, 214, 215, 216, 217, 218, 219
PO, PP4 = 220, 224
T0 = 226
XO, X4 = 232, 240
DUM = 248
O4, QA, QA4, PK, PK4, KB, VB = 0, 64, 96, 128, 160, 192, 224
XF = 0
sW, sHD, sREDO, sCNT = 4, 5, 6, 7
SX, SWQ, SK, SV, SWO, SP_ = 8, 12, 16, 20, 24, 28
sOK, sOV, sMK, sMV = 32, 33, 34, 35
sT0 = 36
sWS = 40
sC, sTHR, sINF = 54, 56, 57
sA, sB = 58, 59
sW1K = 60
sST = 64

def vr(b, n=1): return 'v%d' % b if n == 1 else 'v[%d:%d]' % (b, b + n - 1)
def ar(b, n=1): return 'a%d' % b if n == 1 else 'a[%d:%d]' % (b, b + n - 1)
def sr(b, n=1): return 's%d' % b if n == 1 else 's[%d:%d]' % (b, b + n - 1)
def mfma(d, a, b, c): return I('v_mfma_f32_32x32x16_bf16 %s, %s, %s, %s' % (d, a, b, c))

def stamp(s, o, idx):
    if not o.stamps: return
    st = sST
    s('s_memrealtime s[%d:%d]' % (st + 4, st + 5))
    s('s_waitcnt lgkmcnt(0)')
    s('s_mov_b32 s%d, s%d' % (st, sWS)); s('s_mov_b32 s%d, s%d' % (st + 1, sWS + 1))
    s('s_mov_b32 s%d, 0x%x' % (st + 2, WS_BYTES)); s('s_mov_b32 s%d, 0x20000' % (st + 3))
    s('v_mov_b32 v252, s%d' % (st + 4)); s('v_mov_b32 v253, s%d' % (st + 5))
    s('s_mul_i32 s%d, s2, %d' % (st + 4, o.stamps * 8))
    if callable(idx): idx(s, st + 4)
    else: s('s_add_u32 s%d, s%d, 0x%x' % (st + 4, st + 4, WS_BYTES - 256 * o.stamps * 8 + idx * 8))
    s('v_mov_b32 v254, s%d' % (st + 4))
    s('s_nop 1')
    s('buffer_store_dwordx2 v[252:253], v254, s[%d:%d], 0 offen' % (st, st + 3))

def dma_x(o, kc, buf):
    out = []
    for j in range(10):
        out.append([I('s_add_u32 m0, s%d, 0x%x' % (sW1K, buf + 4096 * j)),
                    I('s_mov_b32 s%d, 0x%x' % (sA, 16384 * j + 256 * kc)),
                    I('buffer_load_dwordx4 v%d, s[%d:%d], s%d offen %s lds' % (DX, SX, SX + 3, sA, o.w_pol),
                      tag='x%d' % kc, lds=(buf, buf + 40960, 'x%d' % kc))])
    return out
def dma_wq(o, n):
    kc, hd = n >> 1, n & 1
    out = []
    for j in range(4):
        out.append([I('s_add_u32 m0, s%d, 0x%x' % (sW1K, WS_(n) + 4096 * j)),
                    I('s_mov_b32 s%d, 0x%x' % (sA, (64 * kc + 16 * j) * 8192 + 256 * hd)),
                    I('buffer_load_dwordx4 v%d, s[%d:%d], s%d offen %s lds' % (DWQ, SWQ, SWQ + 3, sA, o.w_pol),
                      tag='wq%d' % n, lds=(WS_(n), WS_(n) + 16384, 'wq%d' % n))])
    return out
def dma_k(o, slot, tagf):
    out = []
    for t in range(4):
        g = []
        if t == 0: g += [I('s_add_u32 m0, s%d, 0x%x' % (sMK, 16384 * slot)), I('s_nop 0')]
        g.append(I('buffer_load_dwordx4 v%d, s[%d:%d], s%d offen offset:%d %s lds' % (DK + t, SK, SK + 3, sOK, 1024 * t, o.kv_pol),
                   tag=tagf, lds=(lambda c, f=tagf: (KS(slot), KS(slot) + 16384, ev(f, c)))))
        if t == 3: g.append(I('s_add_u32 s%d, s%d, 0x4000' % (sOK, sOK)))
        out.append(g)
    return out
def dma_v(o, slot, tagf):
    out = []
    for t in range(4):
        g = []
        if t == 0: g += [I('s_add_u32 m0, s%d, 0x%x' % (sMV, 16384 * slot)), I('s_nop 0')]
        g.append(I('buffer_load_dwordx4 v%d, s[%d:%d], s%d offen offset:%d %s lds' % (DV, SV, SV + 3, sOV, 1024 * t, o.kv_pol),
                   tag=tagf, lds=(lambda c, f=tagf: (VS(slot), VS(slot) + 16384, ev(f, c)))))
        if t == 3: g.append(I('s_add_u32 s%d, s%d, 0x4000' % (sOV, sOV)))
        out.append(g)
    return out
OSLOT = [KS(0), KS(1), KS(2), VS(0), VS(1), VS(2), VS(3), KS(3)]
def dma_wo(o, u):
    c, r = u >> 2, u & 3
    base = OSLOT[u % 8]
    out = []
    for t in range(4):
        g = []
        if t == 0:
            g += [I('s_add_u32 m0, s%d, 0x%x' % (sMK, base)),
                  I('s_lshl_b32 s%d, s%d, 2' % (sB, sMK)),
                  I('s_add_u32 s%d, s%d, 0x%x' % (sB, sB, 64 * r * 1024 + 256 * c))]
        g.append(I('buffer_load_dwordx4 v%d, s[%d:%d], s%d offen offset:%d %s lds' % (DWO + t, SWO, SWO + 3, sB, 1024 * t, o.w_pol),
                   tag='wo%d' % u, lds=(base, base + 16384, 'wo%d' % u)))
        out.append(g)
    return out

def rd_k(abase, areg, slot, tagf):
    return [I('ds_read_b128 %s, v%d offset:%d' % (ar(abase + 4 * s, 4), areg + s, 16384 * slot),
              lds=(lambda c, f=tagf: (KS(slot), KS(slot) + 16384, ev(f, c)))) for s in range(8)]
def rd_v(areg, slot, tagf):
    out = []
    for u in range(2):
        for db in range(4):
            for e in range(2):
                out.append(I('ds_read_b64_tr_b16 %s, v%d offset:%d' % (ar(VB + 4 * (4 * u + db) + 2 * e, 2), areg + db, 16384 * slot + 4096 * u + 2048 * e),
                             lds=(lambda c, f=tagf: (VS(slot), VS(slot) + 16384, ev(f, c)))))
    return out
def rd_w(buf, areg, imm, kk, region):
    out = []
    for j in range(4):
        for e in range(2):
            out.append(I('ds_read_b64_tr_b16 %s, v%d offset:%d' % (ar(KB + 16 * buf + 4 * j + 2 * e, 2), areg + j, imm + 4096 * kk + 2048 * e), lds=region))
    return out

def spread(items, gaps):
    d = {g: [] for g in gaps}
    n, m = len(items), len(gaps)
    for i, it in enumerate(items):
        d[gaps[i * m // n]].append(it)
    return d

def gen_entry(o):
    s = Seg('entry')
    s('s_cmp_ge_u32 s2, 256')
    s('s_cbranch_scc1 L_done')
    s('''s_and_b32 s3, s2, 7
         s_lshr_b32 s36, s2, 3
         s_lshr_b32 s37, s3, 2
         s_and_b32 s38, s3, 3
         s_lshl_b32 s38, s38, 2
         s_and_b32 s39, s36, 3
         s_or_b32 s38, s38, s39
         s_lshr_b32 s39, s36, 2
         s_mul_i32 s3, s37, 40
         s_add_u32 s42, s0, s3
         s_addc_u32 s43, s1, 0
         s_load_dwordx8 s[44:51], s[42:43], 0
         s_load_dwordx2 s[52:53], s[42:43], 32
         s_load_dwordx2 s[40:41], s[0:1], 96''')
    t0, t1, t2, t3, t4, t5 = T0, T0 + 1, T0 + 2, T0 + 3, T0 + 4, T0 + 5
    s('v_lshrrev_b32 v%d, 6, v0' % t0)
    s('v_and_b32 v1, 63, v0')
    s('v_readfirstlane_b32 s%d, v%d' % (sW, t0))
    s('v_lshlrev_b32 v%d, 4, v1' % LANE16)
    s('v_lshrrev_b32 v2, 4, v1')
    s('v_and_b32 v3, 15, v1')
    s('s_lshl_b32 s%d, s%d, 10' % (sW1K, sW))
    s('s_lshl_b32 s%d, s%d, 12' % (sMK, sW))
    s('s_add_u32 s%d, s%d, 0x%x' % (sMV, sMK, V0))
    s('s_lshl_b32 s3, s%d, 2' % sW)
    s('v_add_u32 v4, s3, v2')
    s('v_xor_b32 v5, v4, v3')
    s('v_lshlrev_b32 v5, 4, v5')
    s('v_lshl_add_u32 v%d, v4, 10, v5' % DX)
    s('v_lshlrev_b32 v6, 2, v2')
    s('v_xor_b32 v6, v6, v3')
    s('v_lshlrev_b32 v6, 4, v6')
    s('''s_and_b32 s3, s%d, 1
         s_lshl_b32 s3, s3, 1
         s_lshr_b32 s36, s%d, 1
         s_or_b32 s3, s3, s36
         s_lshl_b32 s3, s3, 2''' % (sW, sW))
    s('v_add_u32 v4, s3, v2')
    s('v_lshl_add_u32 v%d, v4, 13, v6' % DWQ)
    s('s_waitcnt lgkmcnt(0)')
    s('s_mul_i32 s3, s39, 163840')
    s('s_add_u32 s%d, s44, s3' % SX); s('s_addc_u32 s%d, s45, 0' % (SX + 1))
    s('s_mov_b32 s%d, 163840' % (SX + 2)); s('s_mov_b32 s%d, 0x20000' % (SX + 3))
    s('s_lshl_b32 s3, s38, 9')
    s('s_add_u32 s%d, s50, s3' % SWQ); s('s_addc_u32 s%d, s51, 0' % (SWQ + 1))
    s('s_sub_u32 s%d, 0x400000, s3' % (SWQ + 2)); s('s_mov_b32 s%d, 0x20000' % (SWQ + 3))
    stamp(s, o, 0)
    for g in dma_x(o, 0, XA) + dma_wq(o, 0) + dma_wq(o, 1): s.add(g)
    if o.codepf:
        s('s_getpc_b64 s[62:63]')
        s.label('L_pc')
        s('v_lshlrev_b32 v7, 7, v0')
        s('v_min_u32 v8, L_code_end-L_pc-4, v7')
        s('global_load_dword v%d, v8, s[62:63]' % DUM, dummy=True)
        s('v_add_u32 v7, 0x8000, v7')
        s('v_min_u32 v8, L_code_end-L_pc-4, v7')
        s('global_load_dword v%d, v8, s[62:63]' % (DUM + 1), dummy=True)
    for g in dma_wq(o, 2) + dma_x(o, 1, XB) + dma_wq(o, 3) + dma_wq(o, 4): s.add(g)
    s('''s_lshl_b32 s3, s39, 4
         s_add_u32 s3, s3, s38
         s_lshl_b32 s3, s3, 19''')
    s('s_add_u32 s%d, s46, s3' % SK); s('s_addc_u32 s%d, s47, 0' % (SK + 1))
    s('s_mov_b32 s%d, 0x80000' % (SK + 2)); s('s_mov_b32 s%d, 0x20000' % (SK + 3))
    s('s_add_u32 s%d, s48, s3' % SV); s('s_addc_u32 s%d, s49, 0' % (SV + 1))
    s('s_mov_b32 s%d, 0x80000' % (SV + 2)); s('s_mov_b32 s%d, 0x20000' % (SV + 3))
    s('s_lshl_b32 s3, s38, 18')
    s('s_add_u32 s%d, s52, s3' % SWO); s('s_addc_u32 s%d, s53, 0' % (SWO + 1))
    s('s_mov_b32 s%d, 0x40000' % (SWO + 2)); s('s_mov_b32 s%d, 0x20000' % (SWO + 3))
    s('''s_lshl_b32 s3, s37, 3
         s_add_u32 s3, s3, s39
         s_lshl_b32 s3, s3, 4
         s_add_u32 s3, s3, s38
         s_mul_i32 s3, s3, 163840''')
    s('s_add_u32 s%d, s%d, s3' % (SP_, sWS)); s('s_addc_u32 s%d, s%d, 0' % (SP_ + 1, sWS + 1))
    s('s_mov_b32 s%d, 163840' % (SP_ + 2)); s('s_mov_b32 s%d, 0x20000' % (SP_ + 3))
    s('s_mov_b32 s%d, s%d' % (sOK, sMK)); s('s_mov_b32 s%d, s%d' % (sOV, sMK))
    c = math.log2(math.e) / math.sqrt(128.0)
    s('s_mov_b32 s%d, 0x%x' % (sC, f2u(c))); s('s_mov_b32 s%d, 0x%x' % (sC + 1, f2u(c)))
    s('s_mov_b32 s%d, 0x%x' % (sTHR, f2u(2.0 ** 24 if not o.force_redo else 1.0)))
    s('s_mov_b32 s%d, 0x7f800000' % sINF)
    s('s_mov_b32 s%d, 0' % sHD); s('s_mov_b32 s%d, 0' % sREDO)
    s('v_xor_b32 v4, v2, v3')
    s('v_lshlrev_b32 v4, 4, v4')
    s('v_lshl_add_u32 v%d, v2, 8, v4' % DK)
    for t in range(1, 4): s('v_xor_b32 v%d, %d, v%d' % (DK + t, 64 * t, DK))
    s('v_lshl_add_u32 v%d, v2, 8, v6' % DV)
    s('v_lshl_add_u32 v%d, v2, 10, v6' % DWO)
    for t in range(1, 4): s('v_add_u32 v%d, %d, v%d' % (DWO + t, 3072 * t, DWO))
    s('v_and_b32 v4, 31, v1')
    s('v_lshrrev_b32 v5, 5, v1')
    s('v_xor_b32 v9, v5, v3')
    s('v_lshlrev_b32 v9, 4, v9')
    s('v_lshl_add_u32 v9, v4, 8, v9')
    s('s_lshl_b32 s3, s%d, 13' % sW)
    s('v_add_u32 v%d, s3, v9' % XO)
    s('v_add_u32 v%d, 0x8000, v9' % X4)
    for k in range(1, 8):
        s('v_xor_b32 v%d, %d, v%d' % (XO + k, 32 * k, XO))
        s('v_xor_b32 v%d, %d, v%d' % (X4 + k, 32 * k, X4))
    s('''s_and_b32 s36, s%d, 1
         s_lshl_b32 s36, s36, 13
         s_lshl_b32 s3, s%d, 6
         s_or_b32 s3, s3, s36''' % (sW, sW))
    s('v_xor_b32 v%d, s3, v9' % KAa)
    for k in range(1, 8): s('v_xor_b32 v%d, %d, v%d' % (KAa + k, 32 * k, KAa))
    for k in range(8): s('v_xor_b32 v%d, 0x2000, v%d' % (KAb + k, KAa + k))
    s('v_bfe_u32 v10, v1, 2, 2')
    s('v_lshl_add_u32 v11, v5, 2, v10')
    s('v_lshlrev_b32 v11, 8, v11')
    s('v_lshl_add_u32 v11, v10, 6, v11')
    s('v_bfe_u32 v12, v1, 4, 1')
    s('v_lshl_add_u32 v11, v12, 5, v11')
    s('v_and_b32 v12, 3, v1')
    s('v_lshl_add_u32 v13, v12, 3, v11')
    s('s_add_u32 s36, s36, 0x%x' % V0)
    s('v_add_u32 v%d, s36, v13' % VAa)
    for k in range(1, 4): s('v_xor_b32 v%d, %d, v%d' % (VAa + k, 64 * k, VAa))
    for k in range(4): s('v_xor_b32 v%d, 0x2000, v%d' % (VAb + k, VAa + k))
    s('v_and_b32 v13, 1, v1')
    s('v_lshlrev_b32 v13, 1, v13')
    s('v_bfe_u32 v14, v1, 1, 1')
    s('v_or_b32 v13, v13, v14')
    s('v_lshl_add_u32 v13, v13, 3, v11')
    s('s_lshl_b32 s3, s%d, 6' % sW)
    s('v_xor_b32 v13, s3, v13')
    s('v_add_u32 v%d, 0x%x, v13' % (WA, W0))
    for k in range(1, 4): s('v_xor_b32 v%d, %d, v%d' % (WA + k, 64 * k, WA))
    for k in range(4): s('v_add_u32 v%d, 0x10000, v%d' % (WB + k, WA + k))
    s('s_lshl_b32 s3, s%d, 13' % sW);  s('s_add_u32 s3, s3, 0x%x' % MB); s('v_add_u32 v%d, s3, v%d' % (MW, LANE16))
    s('s_lshl_b32 s3, s%d, 11' % sW);  s('s_add_u32 s36, s3, 0x%x' % MB); s('v_add_u32 v%d, s36, v%d' % (MR, LANE16))
    s('s_add_u32 s36, s3, 0x20000');   s('v_add_u32 v%d, s36, v%d' % (PP4, LANE16))
    s('s_lshl_b32 s36, s%d, 15' % sW); s('s_add_u32 s36, s36, s3'); s('v_add_u32 v%d, s36, v%d' % (PO, LANE16))
    for k in range(1, 4): s('v_xor_b32 v%d, %d, v%d' % (PO + k, 2048 * k, PO))
    s('s_add_u32 s3, s%d, 0x%x' % (sW1K, FX)); s('v_add_u32 v%d, s3, v%d' % (FW, LANE16))
    s('v_add_u32 v%d, 0x%x, v%d' % (FR, FX, LANE16))
    s('v_lshlrev_b32 v4, 2, v1')
    s('v_add_u32 v%d, 0x%x, v4' % (L4R, L4B))
    s('s_lshl_b32 s3, s%d, 8' % sW); s('v_add_u32 v%d, s3, v%d' % (L4W, L4R))
    return s

def gemm_kstep(s, mf, needA, needB, reads, barrier, extra):
    if barrier is None: rd = spread(reads, [0, 1, 2, 3]) if reads else {}
    else: rd = spread(reads, [2, 3, 4]) if reads else {}
    for g in range(5):
        if g == 0: s.wait(regs=needA)
        if g == 2:
            if barrier is not None:
                s.wait(regs=needB, **barrier)
                s('s_barrier')
            else: s.wait(regs=needB)
        s.add(mf[g])
        s.add(rd.get(g, []))
        if extra and not (barrier is not None and g < 2 and getattr(extra[0], 'after_barrier', False)):
            s.add(extra.pop(0))

def gen_q(o):
    s = Seg('qphase')
    acc = lambda hd, j: 64 * hd + 16 * j
    acc4 = lambda hd: 128 + 16 * hd
    def reads_for(n, kk):
        buf = (4 * n + kk) & 1
        slot = n % 5
        areg, imm = (WA, 16384 * slot) if slot < 4 else (WB, 0)
        w = rd_w(buf, areg, imm, kk, (WS_(n), WS_(n) + 16384, 'wq%d' % n))
        if n & 1: return w
        xb = XA if ((n >> 2) & 1) == 0 else XB
        sx = 4 * ((n >> 1) & 1) + kk
        reg = (xb, xb + 40960, 'x%d' % (n >> 2))
        xo = I('ds_read_b128 %s, v%d offset:%d' % (ar(XF + 8 * kk, 4), XO + sx, xb), lds=reg)
        x4 = I('ds_read_b128 %s, v%d offset:%d' % (ar(XF + 8 * kk + 4, 4), X4 + sx, xb), lds=reg)
        return [xo] + w[:2] + [x4] + w[2:]
    s.wait(tags=['x0', 'wq0'])
    s('s_barrier')
    s.add(reads_for(0, 0))
    extra = []
    for n in range(16):
        hd = n & 1
        for kk in range(4):
            buf = (4 * n + kk) & 1
            wf = lambda j: ar(KB + 16 * buf + 4 * j, 4)
            first = (n < 2 and kk == 0)
            xo, x4 = ar(XF + 8 * kk, 4), ar(XF + 8 * kk + 4, 4)
            def mm(d, a, b): return mfma(vr(d, 16), a, b, '0' if first else vr(d, 16))
            mf = [mm(acc(hd, 0), wf(0), xo), mm(acc4(hd), wf(0), x4), mm(acc(hd, 1), wf(1), xo), mm(acc(hd, 2), wf(2), xo), mm(acc(hd, 3), wf(3), xo)]
            needA = regs('a', KB + 16 * buf, 4) + regs('a', XF + 8 * kk, 8)
            needB = regs('a', KB + 16 * buf + 4, 12)
            bar = None
            if kk == 3:
                assert not extra, (n, len(extra))
                m = n + 1
                tags = []
                if m < 16:
                    tags = ['wq%d' % m]
                    if m % 4 == 0: tags.append('x%d' % (m >> 2))
                bar = dict(tags=tags)
                rds = reads_for(m, 0) if m < 16 else []
            else:
                rds = reads_for(n, kk + 1)
            if m_last(n, kk): bar = None
            gemm_kstep(s, mf, needA, needB, rds, bar, extra)
            if kk == 3 and n < 15:
                m = n + 1
                if m + 4 < 16 and m >= 1: extra += dma_wq(o, m + 4)
                if m == 3: extra += dma_x(o, 2, XA)
                if m == 7: extra += dma_x(o, 3, XB)
                if m == 11: extra += dma_k(o, 0, 'K0') + dma_k(o, 1, 'K1')
                if m == 12: extra += dma_v(o, 0, 'V0')
                if m == 13: extra += dma_v(o, 1, 'V1')
                if m == 14: extra += dma_v(o, 2, 'V2')
                if m == 15: extra += dma_k(o, 2, 'K2')
    assert not extra
    return s
def m_last(n, kk): return n == 15 and kk == 3

def gen_qfin(o):
    s = Seg('qfin')
    c = sr(sC, 2)
    def conv(base, n, dst=None):
        for t in range(n // 2):
            s('v_pk_mul_f32 %s, %s, %s' % (vr(base + 2 * t, 2), vr(base + 2 * t, 2), c))
            if t > 0: fin(base, t - 1, dst)
        fin(base, n // 2 - 1, dst)
    def fin(base, t, dst):
        s('v_cvt_pk_bf16_f32 v%d, v%d, v%d' % (base + t, base + 2 * t, base + 2 * t + 1))
        if dst is not None: s('v_accvgpr_write_b32 a%d, v%d' % (dst + t, base + t))
    s('s_lshl_b32 s3, s%d, 11' % sW); s('s_add_u32 s3, s3, 0x%x' % Q4X)
    s('v_add_u32 v%d, s3, v%d' % (T0, LANE16))
    for k in range(8): s('v_xor_b32 v%d, %d, v%d' % (XO + k, 1024 * k, T0))
    conv(128, 16)
    reg = (Q4X, Q4X + 16384, 'q4')
    for u in range(2): s('ds_write_b128 v%d, %s offset:%d' % (T0, vr(128 + 4 * u, 4), 1024 * u), lds=reg)
    conv(0, 64, QA)
    conv(144, 16)
    for u in range(2): s('ds_write_b128 v%d, %s offset:%d' % (T0, vr(144 + 4 * u, 4), 8192 + 1024 * u), lds=reg)
    conv(64, 64, PK)
    s.wait(lgkm_all=True, tags=['K0', 'V0'])
    s('s_barrier')
    for hd in range(2):
        for k in range(8):
            s('ds_read_b128 %s, v%d offset:%d' % (ar((QA4, PK4)[hd] + 4 * k, 4), XO + k, 8192 * hd), lds=reg)
    for k in range(4):
        s('v_subrev_u32 v%d, 0x%x, v%d' % (WA + k, W0, WA + k))
        s('v_subrev_u32 v%d, 0x%x, v%d' % (WB + k, W0 + 65536 - V0, WB + k))
    stamp(s, o, 1)
    return s

Kt = lambda d: (lambda c: 'K%d' % (c['I'] + d))
Ktr = lambda d: (lambda c: None if c['I'] + d >= 32 else 'K%d' % (c['I'] + d))
Vt = lambda d: (lambda c: 'V%d' % (c['I'] + d))
Vt0 = lambda d: (lambda c: None if (c['I'] + d) % 16 == 15 and c.get('first') else 'V%d' % (c['I'] + d))

def zero_ops():
    return [I('v_mov_b32 v%d, 0' % (O + i)) for i in range(64)] + [I('v_accvgpr_write_b32 a%d, 0' % (O4 + i)) for i in range(64)]

def set_negm(s, m, tile, t):
    s('v_mov_b32 v%d, v%d' % (t, m))
    s('s_nop 1')
    s('v_permlane32_swap_b32 v%d, v%d' % (t, m))
    s('v_max_f32 v%d, v%d, v%d' % (m, m, t))
    s('v_sub_f32 v%d, 0, v%d' % (tile, m))
    for i in range(1, 16): s('v_mov_b32 v%d, v%d' % (tile + i, tile))

def max16(s, S, m, acc=False):
    if acc:
        s('v_max3_f32 v%d, v%d, v%d, v%d' % (m, m, S, S + 1))
        for i in range(1, 8): s('v_max3_f32 v%d, v%d, v%d, v%d' % (m, m, S + 2 * i, S + 2 * i + 1))
    else:
        s('v_max_f32 v%d, v%d, v%d' % (m, S, S + 1))
        for i in range(1, 8): s('v_max3_f32 v%d, v%d, v%d, v%d' % (m, m, S + 2 * i, S + 2 * i + 1))

def gen_headpro(o):
    s = Seg('headpro')
    s.label('L_head')
    for k in range(8): s('v_and_b32 v%d, 0xffffdfff, v%d' % (XO + k, KAa + k))
    s.add(rd_k(VB, XO, 0, Kt(0)))
    s.add(rd_k(KB, KAa, 0, Kt(0)))
    z = zero_ops()
    s.add(z[:32]); z = z[32:]
    s.wait(regs=regs('a', VB, 32) + regs('a', QA4, 32))
    for k in range(8):
        s.add(mfma(vr(X, 16), ar(VB + 4 * k, 4), ar(QA + 4 * k, 4), '0' if k == 0 else vr(X, 16)))
        s.add(z[:6]); z = z[6:]
    for k in range(8):
        s.add(mfma(vr(Z, 16), ar(VB + 4 * k, 4), ar(QA4 + 4 * k, 4), '0' if k == 0 else vr(Z, 16)))
        s.add(z[:6]); z = z[6:]
    assert not z
    max16(s, X, T0)
    set_negm(s, T0, NM, T0 + 1)
    max16(s, Z, T0 + 2)
    set_negm(s, T0 + 2, NM4, T0 + 3)
    s.label('L_enter')
    s('v_mov_b32 v%d, 0' % L); s('v_mov_b32 v%d, 0' % L4)
    s('s_mov_b32 s%d, 0' % sCNT)
    s.wait(lgkm_all=True)
    s('s_barrier')
    s('s_cmp_ge_u32 s%d, 2' % sW)
    s('s_cbranch_scc1 L_v1')
    return s

SM = [(11, X, PA, L), (27, Y, PB, L), (43, Z, P4, L4), (59, X, PA, L), (75, Y, PB, L)]
def sm_ops_g(S, P, l, g):
    pre, post = [], []
    if g >= 2 and g % 2 == 0: pre.append(I('v_cvt_pk_bf16_f32 v%d, v%d, v%d' % (P + g // 2 - 1, S + g - 2, S + g - 1)))
    e = [I('v_exp_f32 v%d, v%d' % (S + g, S + g))] if g < 16 else []
    if g >= 1: post.append(I('v_add_f32 v%d, v%d, v%d' % (l, l, S + g - 1)))
    return pre, e, post
def sm_gap(G):
    pre, e, post = [], [], []
    for st, S, P, l in SM:
        g = (G - st) % 80
        if g <= 16:
            a, b, c = sm_ops_g(S, P, l, g)
            pre += a; e += b; post += c
    return pre + e + post

def qk(D, C, Q): return [mfma(vr(D, 16), ar(KB + 4 * k, 4), ar(Q + 4 * k, 4), vr(C if k == 0 else D, 16)) for k in range(8)]
def pv(P, four):
    out = []
    for u in range(2):
        for db in range(4):
            d = ar(O4 + 16 * db, 16) if four else vr(O + 16 * db, 16)
            out.append(mfma(d, ar(VB + 4 * (4 * u + db), 4), vr(P + 4 * u, 4), d))
    return out

def slot(s, sig, mf, buf, rds, dmas=None, barrier=None):
    dm = spread(dmas, [1, 3, 5, 7]) if dmas else {}
    for g in range(8):
        if buf is not None and g in (0, 4): s.wait(regs=regs('a', buf + 4 * g, 16))
        s.add(mf[g])
        if g == 0 and barrier is not None:
            s.wait(tags=barrier)
            s('s_barrier')
        s.add(sm_gap(8 * sig + g))
        s.add(rds.get(g, []))
        s.add(dm.get(g, []))

def step(s, o, typ, i):
    allg = list(range(8))
    pi = (i - 1) % 4
    d = i
    if typ == 'A':
        slot(s, 0, qk(X, NM, QA), KB, spread(rd_v(VAb, pi, Vt0(d - 1)), allg))
        slot(s, 1, pv(PB, False), VB, spread(rd_k(KB, KAb, i, Kt(d)), allg), dmas=dma_k(o, pi, Kt(d + 3)))
        va = rd_v(VAa, i, Vt(d))
        slot(s, 2, qk(Y, NM, QA), KB, spread(va[:8], allg))
        slot(s, 3, qk(Z, NM4, QA4), None, spread(va[8:], allg))
        slot(s, 4, pv(PA, False), VB, spread(rd_k(KB, KAa, (i + 1) % 4, Ktr(d + 1)), allg), dmas=dma_v(o, pi, Vt(d + 3)), barrier=[Kt(d + 1), Vt(d + 1)])
    else:
        slot(s, 5, qk(X, NM, QA), KB, spread(rd_v(VAb, pi, Vt0(d - 1)), allg))
        kb = rd_k(KB, KAb, i, Kt(d))
        slot(s, 6, pv(PB, False), VB, spread(kb[:4], [0, 2, 4, 6]))
        slot(s, 7, pv(P4, True), None, spread(kb[4:], [0, 2, 4, 6]), dmas=dma_k(o, pi, Kt(d + 3)))
        slot(s, 8, qk(Y, NM, QA), KB, spread(rd_v(VAa, i, Vt(d)), allg))
        slot(s, 9, pv(PA, False), VB, spread(rd_k(KB, KAa, (i + 1) % 4, Ktr(d + 1)), allg), dmas=dma_v(o, pi, Vt(d + 3)), barrier=[Kt(d + 1), Vt(d + 1)])

def gen_variant(o, var):
    ent = Seg('v%d_entry' % var)
    if var == 1: ent.label('L_v1')
    ninf = '0xff800000'
    g0 = 5 if var == 0 else 13
    ent('v_mov_b32 v%d, 0' % (Y + g0 - 1))
    for i in range(g0, 16): ent('v_mov_b32 v%d, %s' % (Y + i, ninf))
    for t in range(g0 // 2): ent('v_mov_b32 v%d, 0' % (PB + t))
    if var == 1:
        for i in range(16): ent('v_mov_b32 v%d, %s' % (Z + i, ninf))
    body = Seg('v%d_body' % var)
    body.label('L_body%d' % var)
    for i in range(4):
        step(body, o, 'AB'[(i + var) & 1], i)
    body('s_add_u32 s%d, s%d, 1' % (sCNT, sCNT))
    body('s_cmp_lt_u32 s%d, 4' % sCNT)
    body('s_cbranch_scc1 L_body%d' % var)
    pre = Seg('v%d_wo' % var)
    pre('s_cmp_eq_u32 s%d, 0' % sHD)
    pre('s_cbranch_scc1 L_drain%d' % var)
    wo = Seg('v%d_wo2' % var)
    wo.wait(vm_all=True)
    for u in range(6):
        for g in dma_wo(o, u): wo.add(g)
    dr = Seg('v%d_drain' % var)
    dr.label('L_drain%d' % var)
    dr.add(rd_v(VAb, 3, Vt(-1)))
    for g in range(g0, 17):
        a, b, c = sm_ops_g(Y, PB, L, g)
        if g == 16: dr('s_nop 0')
        dr.add(a + b + c)
    dr.wait(regs=regs('a', VB, 32))
    mf = pv(PB, False)
    if var == 0:
        dr.add(mf)
    else:
        for j in range(8):
            dr.add(mf[j])
            for g in (2 * j, 2 * j + 1):
                a, b, c = sm_ops_g(Z, P4, L4, g)
                dr.add(b + a + c)
        a, b, c = sm_ops_g(Z, P4, L4, 16)
        dr.add(c + a)
        dr('s_nop 1')
        dr.add(pv(P4, True))
    if var == 0: dr('s_branch L_join')
    return ent, body, pre, wo, dr

def half_sum(s, l, t):
    s('v_mov_b32 v%d, v%d' % (t, l))
    s('s_nop 1')
    s('v_permlane32_swap_b32 v%d, v%d' % (t, l))
    s('v_add_f32 v%d, v%d, v%d' % (l, l, t))

def gen_epi(o):
    s = Seg('epi1')
    s.label('L_join')
    if o.stamps: stamp(s, o, lambda q, r: (q('s_lshl_b32 s3, s%d, 4' % sHD), q('s_add_u32 s%d, s%d, s3' % (r, r)), q('s_add_u32 s%d, s%d, 0x%x' % (r, r, WS_BYTES - 256 * o.stamps * 8 + 2 * 8))))
    half_sum(s, L, T0); half_sum(s, L4, T0 + 1)
    s('v_cmp_nge_f32 vcc, s%d, v%d' % (sTHR, L))
    s('v_rcp_f32 v%d, v%d' % (T0, L))
    s('v_mov_b32 v%d, s%d' % (T0 + 2, sINF))
    s('v_cndmask_b32 v%d, v%d, v%d, vcc' % (L4, L4, T0 + 2))
    hdtag = lambda n: (lambda c: '%s_%d_%d' % (n, c['I'], c.get('redo', 0)))
    R = lambda lo, hi, n: (lambda c: (lo, hi, ev(hdtag(n), c)))
    s('ds_write_b32 v%d, v%d' % (L4W, L4), lds=R(L4B, L4B + 1024, 'l4'))
    s('s_nop 4')
    for row in range(8): s('ds_write_b128 v%d, %s offset:%d' % (MW, ar(O4 + 4 * row, 4), 1024 * row), lds=R(MB, MB + 32768, 'm1'))
    s('v_mov_b32 v%d, v%d' % (T0 + 1, T0))
    def norm(lo, hi):
        for t in range(lo, hi):
            s('v_pk_mul_f32 %s, %s, %s' % (vr(O + 2 * t, 2), vr(O + 2 * t, 2), vr(T0, 2)))
            s('v_cvt_pk_bf16_f32 v%d, v%d, v%d' % (O + t, O + 2 * t, O + 2 * t + 1))
    norm(0, 16)
    s.wait(lgkm_all=True)
    s('s_barrier')
    for p in range(4): s('ds_read_b32 v%d, v%d offset:%d' % (136 + p, L4R, 256 * p), lds=R(L4B, L4B + 1024, 'l4'))
    def rdm(tag):
        for p in range(4):
            for r in range(2):
                s('ds_read_b128 %s, v%d offset:%d' % (vr(96 + 8 * p + 4 * r, 4), MR, 8192 * p + 1024 * r), lds=R(MB, MB + 32768, tag))
    rdm('m1')
    norm(16, 32)
    s.wait(regs=regs('v', 136, 4))
    s('v_add_f32 v136, v136, v137'); s('v_add_f32 v138, v138, v139'); s('v_add_f32 v136, v136, v138')
    s('v_mul_f32 v137, 0.25, v136' if False else 'v_ldexp_f32 v137, v136, -2')
    s('v_cmp_nge_f32 vcc, s%d, v137' % sTHR)
    s('v_rcp_f32 v%d, v136' % (T0 + 2))
    s('s_cmp_lg_u32 s%d, 0' % sREDO)
    s('s_cbranch_scc1 L_safe')
    s('s_cbranch_vccnz L_redo')
    s2 = Seg('epi2'); s = s2
    s.label('L_safe')
    s('s_mov_b32 s%d, 0' % sREDO)
    for t in range(32):
        s('v_accvgpr_mov_b32 a%d, a%d' % (QA + t, PK + t))
        s('v_accvgpr_write_b32 a%d, v%d' % (PK + t, O + t))
    s('v_mov_b32 v%d, v%d' % (T0 + 3, T0 + 2))
    def summ(dst):
        s.wait(regs=regs('v', 96, 32))
        for i in range(0, 8, 2):
            s('v_pk_add_f32 %s, %s, %s' % (vr(96 + i, 2), vr(96 + i, 2), vr(104 + i, 2)))
            s('v_pk_add_f32 %s, %s, %s' % (vr(112 + i, 2), vr(112 + i, 2), vr(120 + i, 2)))
        for i in range(0, 8, 2):
            s('v_pk_add_f32 %s, %s, %s' % (vr(96 + i, 2), vr(96 + i, 2), vr(112 + i, 2)))
        for i in range(0, 8, 2):
            s('v_pk_mul_f32 %s, %s, %s' % (vr(96 + i, 2), vr(96 + i, 2), vr(T0 + 2, 2)))
        for t in range(4): s('v_cvt_pk_bf16_f32 v%d, v%d, v%d' % (dst + t, 96 + 2 * t, 97 + 2 * t))
    summ(140)
    s('s_barrier')
    for row in range(8): s('ds_write_b128 v%d, %s offset:%d' % (MW, ar(O4 + 32 + 4 * row, 4), 1024 * row), lds=R(MB, MB + 32768, 'm2'))
    s('ds_write_b128 v%d, %s' % (FW, vr(140, 4)), lds=R(FX, FX + 8192, 'fx'))
    for t in range(32): s('v_accvgpr_mov_b32 a%d, a%d' % (QA4 + t, PK4 + t))
    s.wait(lgkm_all=True)
    s('s_barrier')
    rdm('m2')
    summ(140)
    s('ds_write_b128 v%d, %s offset:4096' % (FW, vr(140, 4)), lds=R(FX, FX + 8192, 'fx'))
    s.wait(lgkm_all=True)
    s('s_barrier')
    for k in range(8): s('ds_read_b128 %s, v%d offset:%d' % (ar(PK4 + 4 * k, 4), FR, 1024 * k), lds=R(FX, FX + 8192, 'fx'))
    if o.stamps: stamp(s, o, lambda q, r: (q('s_lshl_b32 s3, s%d, 4' % sHD), q('s_add_u32 s%d, s%d, s3' % (r, r)), q('s_add_u32 s%d, s%d, 0x%x' % (r, r, WS_BYTES - 256 * o.stamps * 8 + 3 * 8))))
    s('s_add_u32 s%d, s%d, 1' % (sHD, sHD))
    s('s_cmp_lt_u32 s%d, 2' % sHD)
    s('s_cbranch_scc1 L_head')
    return None, s2

def gen_redo(o):
    s = Seg('redo')
    s.label('L_redo')
    s('s_mov_b32 s%d, 1' % sREDO)
    s('s_waitcnt vmcnt(0) lgkmcnt(0)')
    s('s_barrier')
    s('v_lshrrev_b32 v%d, 4, v%d' % (T0, LANE16))
    s('v_and_b32 v%d, 31, v%d' % (T0 + 1, T0))
    s('v_lshrrev_b32 v%d, 5, v%d' % (T0, T0))
    s('v_lshlrev_b32 v%d, 4, v%d' % (T0, T0))
    s('v_lshl_add_u32 v%d, v%d, 8, v%d' % (T0, T0 + 1, T0))
    s('s_lshl_b32 s3, s%d, 6' % sW)
    s('v_xor_b32 v%d, s3, v%d' % (XO, T0))
    for k in range(1, 8): s('v_xor_b32 v%d, %d, v%d' % (XO + k, 32 * k, XO))
    s('v_mov_b32 v%d, 0xff800000' % X4); s('v_mov_b32 v%d, 0xff800000' % (X4 + 1))
    s('s_lshl_b32 s%d, s%d, 18' % (sA, sHD))
    s('s_mov_b32 s%d, 0' % sCNT)
    lp = Seg('redo_loop')
    lp.label('L_redo_loop')
    for k in range(8): lp('buffer_load_dwordx4 %s, v%d, s[%d:%d], s%d offen' % (ar(KB + 4 * k, 4), XO + k, SK, SK + 3, sA))
    lp('s_waitcnt vmcnt(0)')
    for k in range(8): lp.add(mfma(vr(X, 16), ar(KB + 4 * k, 4), ar(QA + 4 * k, 4), '0' if k == 0 else vr(X, 16)))
    for k in range(8): lp.add(mfma(vr(Z, 16), ar(KB + 4 * k, 4), ar(QA4 + 4 * k, 4), '0' if k == 0 else vr(Z, 16)))
    lp('s_nop 11')
    max16(lp, X, X4, acc=True); max16(lp, Z, X4 + 1, acc=True)
    lp('s_add_u32 s%d, s%d, 0x2000' % (sA, sA))
    lp('s_add_u32 s%d, s%d, 1' % (sCNT, sCNT))
    lp('s_cmp_lt_u32 s%d, 32' % sCNT)
    lp('s_cbranch_scc1 L_redo_loop')
    e = Seg('redo_end')
    set_negm(e, X4, NM, T0); set_negm(e, X4 + 1, NM4, T0)
    e('s_lshl_b32 s%d, s%d, 18' % (sA, sHD))
    e('s_add_u32 s%d, s%d, s%d' % (sOK, sMK, sA)); e('s_mov_b32 s%d, s%d' % (sOV, sOK))
    for i in range(3):
        for g in dma_k(o, i, Kt(i)) + dma_v(o, i, Vt(i)): e.add(g)
    e.add(zero_ops())
    e.wait(tags=[Kt(0), Vt(0)])
    e('s_barrier')
    e.add(rd_k(KB, KAa, 0, Kt(0)))
    e('s_branch L_enter')
    return s, lp, e

def gen_op(o):
    s = Seg('op')
    def reads_for(u, kk):
        base = OSLOT[u % 8]
        areg, imm = (WA, base) if base < V0 else (WB, base - V0)
        return rd_w((4 * u + kk) & 1, areg, imm, kk, (base, base + 16384, 'wo%d' % u))
    def st(data, areg, j1):
        return I('buffer_store_dwordx4 %s, v%d, s[%d:%d], s%d offen offset:%d %s' % (vr(data, 4), areg, SP_, SP_ + 3, sA, 1024 * j1, o.st_pol))
    def conv(c):
        E = 80 * (c & 1)
        out = [[I('s_mov_b32 s%d, 0x%x' % (sA, 8192 * c))]]
        for j in range(5):
            b = E + 16 * j
            areg = PO + j if j < 4 else PP4
            for t in range(8):
                out.append([I('v_cvt_pk_bf16_f32 v%d, v%d, v%d' % (b + t, b + 2 * t, b + 2 * t + 1))])
                if t == 4: out.append([st(b, areg, 0)])
            out.append([I('s_nop 0'), st(b + 4, areg, 1)])
        return out
    for g in dma_wo(o, 6): s.add(g)
    s.wait(lgkm_all=True, tags=['wo0'])
    s('s_barrier')
    s.add(reads_for(0, 0))
    extra = list(dma_wo(o, 7))
    for u in range(16):
        c, r = u >> 2, u & 3
        E = 80 * (c & 1)
        own, four = ((QA, QA4), (PK, PK4))[r >> 1]
        for kk in range(4):
            buf = (4 * u + kk) & 1
            wf = lambda j: ar(KB + 16 * buf + 4 * j, 4)
            first = (r == 0 and kk == 0)
            ks = 4 * (r & 1) + kk
            bo, b4 = ar(own + 4 * ks, 4), ar(four + 4 * ks, 4)
            def mm(d, a, b): return mfma(vr(d, 16), a, b, '0' if first else vr(d, 16))
            mf = [mm(E, wf(0), bo), mm(E + 64, wf(0), b4), mm(E + 16, wf(1), bo), mm(E + 32, wf(2), bo), mm(E + 48, wf(3), bo)]
            needA = regs('a', KB + 16 * buf, 4)
            needB = regs('a', KB + 16 * buf + 4, 12)
            bar = None
            if kk == 3:
                m = u + 1
                if m < 16: bar = dict(tags=['wo%d' % m])
                rds = reads_for(m, 0) if m < 16 else []
            else: rds = reads_for(u, kk + 1)
            if r == 0 and kk == 1 and c > 0: extra += conv(c - 1)
            gemm_kstep(s, mf, needA, needB, rds, bar, extra)
            if kk == 3 and u + 8 < 16: extra = dma_wo(o, u + 8) + extra
    assert not extra, len(extra)
    s('s_nop 7')
    for g in conv(3): s.add(g)
    if o.stamps:
        stamp(s, o, 6)
        s('s_waitcnt vmcnt(0)')
        stamp(s, o, 7)
    s.label('L_done')
    s('s_endpgm')
    return s

def gen_reduce(o):
    s = Seg('reduce')
    s('s_cmp_ge_u32 s2, 640')
    s('s_cbranch_scc1 L_rdone')
    s('s_load_dwordx2 s[4:5], s[0:1], 96')
    s('s_load_dwordx2 s[6:7], s[0:1], 80')
    s('s_mov_b32 s3, 0x%x' % ((2 ** 32 + 39) // 40))
    s('s_mul_hi_u32 s16, s2, s3')
    s('s_mul_i32 s3, s16, 40')
    s('s_sub_u32 s17, s2, s3')
    s('v_lshrrev_b32 v1, 6, v0')
    s('v_and_b32 v2, 63, v0')
    s('v_readfirstlane_b32 s18, v1')
    s('v_and_b32 v3, 7, v2')
    s('v_lshrrev_b32 v4, 3, v2')
    s('s_lshl_b32 s17, s17, 2')
    s('s_add_u32 s17, s17, s18')
    s('s_lshr_b32 s19, s17, 3')
    s('s_and_b32 s20, s17, 7')
    s('s_lshr_b32 s21, s19, 2'); s('s_lshl_b32 s21, s21, 15')
    s('s_lshl_b32 s22, s20, 12'); s('s_add_u32 s21, s21, s22')
    s('s_and_b32 s22, s19, 3'); s('s_lshl_b32 s22, s22, 7'); s('s_add_u32 s21, s21, s22')
    s('v_lshlrev_b32 v5, 9, v4')
    s('v_lshl_add_u32 v5, v3, 4, v5')
    s('v_add_u32 v5, s21, v5')
    s('s_and_b32 s22, s16, 7'); s('s_mul_i32 s22, s22, 160'); s('s_lshl_b32 s23, s19, 3'); s('s_add_u32 s22, s22, s23')
    s('s_lshl_b32 s22, s22, 11')
    s('s_lshr_b32 s23, s16, 3'); s('s_lshl_b32 s23, s23, 10'); s('s_add_u32 s22, s22, s23')
    s('s_lshl_b32 s23, s20, 7'); s('s_add_u32 s22, s22, s23')
    s('v_lshlrev_b32 v6, 11, v3')
    s('v_lshl_add_u32 v6, v4, 4, v6')
    s('v_add_u32 v6, s22, v6')
    s('s_mul_i32 s3, s16, %d' % (16 * 163840))
    s('s_waitcnt lgkmcnt(0)')
    s('s_add_u32 s8, s4, s3'); s('s_addc_u32 s9, s5, 0'); s('s_mov_b32 s10, %d' % (16 * 163840)); s('s_mov_b32 s11, 0x20000')
    s('s_mov_b32 s12, s6'); s('s_mov_b32 s13, s7'); s('s_mov_b32 s14, %d' % (8 * 160 * 2048)); s('s_mov_b32 s15, 0x20000')
    for p in range(16):
        s('s_mov_b32 s3, %d' % (163840 * p))
        s('buffer_load_dwordx4 %s, v5, s[8:11], s3 offen %s' % (vr(16 + 4 * p, 4), o.rd_pol))
    s('v_mov_b32 v7, 0xffff0000')
    for p in range(16):
        s.wait(regs=regs('v', 16 + 4 * p, 4))
        for d in range(4):
            x = 16 + 4 * p + d
            if p == 0:
                s('v_lshlrev_b32 v%d, 16, v%d' % (8 + 2 * d, x)); s('v_and_b32 v%d, v7, v%d' % (9 + 2 * d, x))
            else:
                s('v_lshlrev_b32 v80, 16, v%d' % x); s('v_and_b32 v81, v7, v%d' % x)
                s('v_pk_add_f32 %s, %s, v[80:81]' % (vr(8 + 2 * d, 2), vr(8 + 2 * d, 2)))
    for d in range(4): s('v_cvt_pk_bf16_f32 v%d, v%d, v%d' % (16 + d, 8 + 2 * d, 9 + 2 * d))
    s('buffer_store_dwordx4 v[16:19], v6, s[12:15], 0 offen')
    s.label('L_rdone')
    s('s_endpgm')
    return s

def desc(name, vgpr, accum, sgpr):
    return '''.amdhsa_kernel %s
  .amdhsa_next_free_vgpr %d
  .amdhsa_next_free_sgpr %d
  .amdhsa_accum_offset %d
  .amdhsa_group_segment_fixed_size 0
  .amdhsa_kernarg_size 104
  .amdhsa_user_sgpr_count 2
  .amdhsa_user_sgpr_kernarg_segment_ptr 1
  .amdhsa_system_sgpr_workgroup_id_x 1
  .amdhsa_float_denorm_mode_32 3
.end_amdhsa_kernel
''' % (name, vgpr, sgpr, accum)

def build(o, path):
    entry, q, qf, hp = gen_entry(o), gen_q(o), gen_qfin(o), gen_headpro(o)
    var = [gen_variant(o, 0), gen_variant(o, 1)]
    global _e1
    e1_holder = []
    import types
    segs = []
    orig = Seg.__init__
    def spy(self, name): orig(self, name); segs.append(self)
    Seg.__init__ = spy
    gen_epi(o)
    Seg.__init__ = orig
    e1, e2 = segs
    r0, r1, r2 = gen_redo(o)
    op = gen_op(o)
    red = gen_reduce(o)
    idx = [i for i, it in enumerate(hp.items) if it.kind == 'label' and it.name == 'L_enter'][0]
    hpa, hpb = Seg('headpro_a'), Seg('headpro_b')
    hpa.items, hpb.items = hp.items[:idx], hp.items[idx:]
    traces = []
    for v in range(2):
        for redo in (None, 0, 1):
            ent, body, pre, wo, dr = var[v]
            tr = [(entry, {}), (q, {}), (qf, {})]
            for hd in range(2):
                passes = [0, 1] if redo == hd else [0]
                for ps in passes:
                    b = 16 * hd
                    if ps == 0: tr += [(hpa, dict(I=b))]
                    else: tr += [(r0, {}), (r1, {}), (r1, {}), (r2, dict(I=b))]
                    tr += [(hpb, dict(I=b)), (ent, {})]
                    for it in range(4): tr.append((body, dict(I=b + 4 * it, first=(it == 0))))
                    tr.append((pre, {}))
                    if hd == 1: tr.append((wo, {}))
                    tr += [(dr, dict(I=b + 16)), (e1, dict(I=b, redo=ps))]
                tr.append((e2, dict(I=b, redo=passes[-1])))
            tr.append((op, {}))
            traces.append(('v%d_redo%s' % (v, redo), tr))
    traces.append(('reduce', [(red, {})]))
    resolve([t for _, t in traces])
    allerr = []
    info = {}
    for name, tr in traces:
        errs, ep, de = check(tr, name)
        allerr += errs; info[name] = (ep, de)
    for redo in (None, 0, 1):
        a, b = info['v0_redo%s' % redo], info['v1_redo%s' % redo]
        if a[0] != b[0]: allerr.append('barrier count differs')
        if sorted(a[1], key=str) != sorted(b[1], key=str): allerr.append('dma epochs differ')
    for e in allerr[:40]: print('ERR', e)
    if allerr: print(len(allerr), 'errors')
    hdr = open('concat_heads__gqa_block_cached__gqa_block_cached__near_ridge.s.ref').read().split('; Override')[0]
    txt = hdr
    txt += '; @launch kernel=%s grid=(256,1,1) block=(256,1,1) lds=163840\n' % KN
    txt += '; @launch kernel=reduce_kernel grid=(640,1,1) block=(256,1,1) lds=0\n'
    txt += '.amdgcn_target "amdgcn-amd-amdhsa--gfx950"\n.text\n.globl %s\n.p2align 8\n.type %s,@function\n%s:\n' % (KN, KN, KN)
    order = [entry, q, qf, hp, var[0][0], var[0][1], var[0][2], var[0][3], var[0][4], r0, r1, r2,
             var[1][0], var[1][1], var[1][2], var[1][3], var[1][4], e1, e2, op]
    for sg in order: txt += sg.text()
    txt += '.globl reduce_kernel\n.p2align 8\n.type reduce_kernel,@function\nreduce_kernel:\n' + red.text()
    txt += 'L_code_end:\n'
    txt += '.section .rodata,"a"\n.p2align 6\n' + desc(KN, 512, 256, 96) + '.p2align 6\n' + desc('reduce_kernel', 88, 88, 32)
    open(path, 'w').write(txt)
    return not allerr

if __name__ == '__main__':
    o = Opt()
    path = sys.argv[1]
    for kv in sys.argv[2:]:
        k, v = kv.split('=')
        cur = getattr(o, k)
        setattr(o, k, int(v) if isinstance(cur, int) else v.replace('+', ' '))
    ok = build(o, path)
    print('written', path, 'ok' if ok else 'WITH ERRORS')
```

```python
import sys, struct, math
from fw import *

KN = "concat_heads__gqa_block_cached__gqa_block_cached__near_ridge_kernel"
WS_BYTES = 287834112
def f2u(x): return struct.unpack('<I', struct.pack('<f', x))[0]

class Opt:
    kv_pol = 'nt'
    w_pol = ''
    st_pol = 'sc0 sc1'
    rd_pol = ''
    stamps = 0
    cyc = 0
    dbgst = 0
    codepf = 1
    force_redo = 0

K0, SP, V0 = 0, 65536, 98304
XA, XB, W0 = 0, 40960, 81920
FX, L4B, MB, Q4X = 49152, 57344, 65536, 65536
KS = lambda i: K0 + 16384 * (i % 4)
VS = lambda i: V0 + 16384 * (i % 4)
WS_ = lambda n: W0 + 16384 * (n % 5)

O, NM, NM4, X, Y, Z, PA, PB, P4 = 0, 64, 80, 96, 112, 128, 144, 152, 160
KAa, KAb, VAa, VAb, DK, DV, L, L4, LANE16 = 168, 176, 184, 188, 192, 196, 197, 198, 199
WA, WB, DWO, DX, DWQ, MW, MR, FW, FR, L4W, L4R = 200, 204, 208, 212, 213, 214, 215, 216, 217, 218, 219
PO, PP4 = 220, 224
T0 = 226
XO, X4 = 232, 240
DUM = 248
O4, QA, QA4, PK, PK4, KB, VB = 0, 64, 96, 128, 160, 192, 224
XF = 0
sW, sHD, sREDO, sCNT = 4, 5, 6, 7
SX, SWQ, SK, SV, SWO, SP_ = 8, 12, 16, 20, 24, 28
sOK, sOV, sMK, sMV = 32, 33, 34, 35
sT0 = 36
sWS = 40
sC, sTHR, sINF = 54, 56, 57
sA, sB = 58, 59
sW1K = 60
sST = 64

def vr(b, n=1): return 'v%d' % b if n == 1 else 'v[%d:%d]' % (b, b + n - 1)
def ar(b, n=1): return 'a%d' % b if n == 1 else 'a[%d:%d]' % (b, b + n - 1)
def sr(b, n=1): return 's%d' % b if n == 1 else 's[%d:%d]' % (b, b + n - 1)
def mfma(d, a, b, c): return I('v_mfma_f32_32x32x16_bf16 %s, %s, %s, %s' % (d, a, b, c))

def stamp(s, o, idx):
    if not o.stamps: return
    st = sST
    if o.dbgst:
        s('s_memrealtime s[%d:%d]' % (st + 4, st + 5))
        s('s_memtime s[%d:%d]' % (st + 6, st + 7))
        s('s_load_dwordx2 s[%d:%d], s[0:1], 88' % (st, st + 1))
        s('s_waitcnt lgkmcnt(0)')
        s('s_mov_b32 s%d, 64' % (st + 2)); s('s_mov_b32 s%d, 0x20000' % (st + 3))
        s('v_mov_b32 v252, s%d' % (st + 4)); s('v_mov_b32 v253, s%d' % (st + 6))
        s('s_sub_u32 s%d, s2, %d' % (st + 4, o.dbgst - 1))
        s('s_mul_i32 s%d, s%d, 64' % (st + 4, st + 4))
        if callable(idx):
            idx(s, st + 4); s('s_sub_u32 s%d, s%d, 0x%x' % (st + 4, st + 4, WS_BYTES - 256 * o.stamps * 8))
        else: s('s_add_u32 s%d, s%d, 0x%x' % (st + 4, st + 4, idx * 8))
        s('v_mov_b32 v254, s%d' % (st + 4))
        s('s_nop 1')
        s('buffer_store_dwordx2 v[252:253], v254, s[%d:%d], 0 offen' % (st, st + 3))
        return
    s('%s s[%d:%d]' % ('s_memtime' if o.cyc else 's_memrealtime', st + 4, st + 5))
    s('s_waitcnt lgkmcnt(0)')
    s('s_mov_b32 s%d, s%d' % (st, sWS)); s('s_mov_b32 s%d, s%d' % (st + 1, sWS + 1))
    s('s_mov_b32 s%d, 0x%x' % (st + 2, WS_BYTES)); s('s_mov_b32 s%d, 0x20000' % (st + 3))
    s('v_mov_b32 v252, s%d' % (st + 4)); s('v_mov_b32 v253, s%d' % (st + 5))
    s('s_mul_i32 s%d, s2, %d' % (st + 4, o.stamps * 8))
    if callable(idx): idx(s, st + 4)
    else: s('s_add_u32 s%d, s%d, 0x%x' % (st + 4, st + 4, WS_BYTES - 256 * o.stamps * 8 + idx * 8))
    s('v_mov_b32 v254, s%d' % (st + 4))
    s('s_nop 1')
    s('buffer_store_dwordx2 v[252:253], v254, s[%d:%d], 0 offen' % (st, st + 3))

def dma_x(o, kc, buf):
    out = []
    for j in range(10):
        out.append([I('s_add_u32 m0, s%d, 0x%x' % (sW1K, buf + 4096 * j)),
                    I('s_mov_b32 s%d, 0x%x' % (sA, 16384 * j + 256 * kc)),
                    I('buffer_load_dwordx4 v%d, s[%d:%d], s%d offen %s lds' % (DX, SX, SX + 3, sA, o.w_pol),
                      tag='x%d' % kc, lds=(buf, buf + 40960, 'x%d' % kc))])
    return out
def dma_wq(o, n):
    kc, hd = n >> 1, n & 1
    out = []
    for j in range(4):
        out.append([I('s_add_u32 m0, s%d, 0x%x' % (sW1K, WS_(n) + 4096 * j)),
                    I('s_mov_b32 s%d, 0x%x' % (sA, (64 * kc + 16 * j) * 8192 + 256 * hd)),
                    I('buffer_load_dwordx4 v%d, s[%d:%d], s%d offen %s lds' % (DWQ, SWQ, SWQ + 3, sA, o.w_pol),
                      tag='wq%d' % n, lds=(WS_(n), WS_(n) + 16384, 'wq%d' % n))])
    return out
def dma_k(o, slot, tagf):
    out = []
    for t in range(4):
        g = []
        if t == 0: g += [I('s_add_u32 m0, s%d, 0x%x' % (sMK, 16384 * slot)), I('s_nop 0')]
        g.append(I('buffer_load_dwordx4 v%d, s[%d:%d], s%d offen offset:%d %s lds' % (DK + t, SK, SK + 3, sOK, 1024 * t, o.kv_pol),
                   tag=tagf, lds=(lambda c, f=tagf: (KS(slot), KS(slot) + 16384, ev(f, c)))))
        if t == 3: g.append(I('s_add_u32 s%d, s%d, 0x4000' % (sOK, sOK)))
        out.append(g)
    return out
def dma_v(o, slot, tagf):
    out = []
    for t in range(4):
        g = []
        if t == 0: g += [I('s_add_u32 m0, s%d, 0x%x' % (sMV, 16384 * slot)), I('s_nop 0')]
        g.append(I('buffer_load_dwordx4 v%d, s[%d:%d], s%d offen offset:%d %s lds' % (DV, SV, SV + 3, sOV, 1024 * t, o.kv_pol),
                   tag=tagf, lds=(lambda c, f=tagf: (VS(slot), VS(slot) + 16384, ev(f, c)))))
        if t == 3: g.append(I('s_add_u32 s%d, s%d, 0x4000' % (sOV, sOV)))
        out.append(g)
    return out
OSLOT = [KS(0), KS(1), KS(2), VS(0), VS(1), VS(2), VS(3), KS(3)]
def dma_wo(o, u):
    c, r = u >> 2, u & 3
    base = OSLOT[u % 8]
    out = []
    for t in range(4):
        g = []
        if t == 0:
            g += [I('s_add_u32 m0, s%d, 0x%x' % (sMK, base)),
                  I('s_lshl_b32 s%d, s%d, 2' % (sB, sMK)),
                  I('s_add_u32 s%d, s%d, 0x%x' % (sB, sB, 64 * r * 1024 + 256 * c))]
        g.append(I('buffer_load_dwordx4 v%d, s[%d:%d], s%d offen offset:%d %s lds' % (DWO + t, SWO, SWO + 3, sB, 1024 * t, o.w_pol),
                   tag='wo%d' % u, lds=(base, base + 16384, 'wo%d' % u)))
        out.append(g)
    return out

def rd_k(abase, areg, slot, tagf):
    return [I('ds_read_b128 %s, v%d offset:%d' % (ar(abase + 4 * s, 4), areg + s, 16384 * slot),
              lds=(lambda c, f=tagf: (KS(slot), KS(slot) + 16384, ev(f, c)))) for s in range(8)]
def rd_v(areg, slot, tagf):
    out = []
    for u in range(2):
        for db in range(4):
            for e in range(2):
                out.append(I('ds_read_b64_tr_b16 %s, v%d offset:%d' % (ar(VB + 4 * (4 * u + db) + 2 * e, 2), areg + db, 16384 * slot + 4096 * u + 2048 * e),
                             lds=(lambda c, f=tagf: (VS(slot), VS(slot) + 16384, ev(f, c)))))
    return out
def rd_w(buf, areg, imm, kk, region):
    out = []
    for j in range(4):
        for e in range(2):
            out.append(I('ds_read_b64_tr_b16 %s, v%d offset:%d' % (ar(KB + 16 * buf + 4 * j + 2 * e, 2), areg + j, imm + 4096 * kk + 2048 * e), lds=region))
    return out

def spread(items, gaps):
    d = {g: [] for g in gaps}
    n, m = len(items), len(gaps)
    for i, it in enumerate(items):
        d[gaps[i * m // n]].append(it)
    return d

def gen_entry(o):
    s = Seg('entry')
    s('s_cmp_ge_u32 s2, 256')
    s('s_cbranch_scc1 L_done')
    s('''s_and_b32 s3, s2, 7
         s_lshr_b32 s36, s2, 3
         s_lshr_b32 s37, s3, 2
         s_and_b32 s38, s3, 3
         s_lshl_b32 s38, s38, 2
         s_and_b32 s39, s36, 3
         s_or_b32 s38, s38, s39
         s_lshr_b32 s39, s36, 2
         s_mul_i32 s3, s37, 40
         s_add_u32 s42, s0, s3
         s_addc_u32 s43, s1, 0
         s_load_dwordx8 s[44:51], s[42:43], 0
         s_load_dwordx2 s[52:53], s[42:43], 32
         s_load_dwordx2 s[40:41], s[0:1], 96''')
    t0, t1, t2, t3, t4, t5 = T0, T0 + 1, T0 + 2, T0 + 3, T0 + 4, T0 + 5
    s('v_lshrrev_b32 v%d, 6, v0' % t0)
    s('v_and_b32 v1, 63, v0')
    s('v_readfirstlane_b32 s%d, v%d' % (sW, t0))
    s('v_lshlrev_b32 v%d, 4, v1' % LANE16)
    s('v_lshrrev_b32 v2, 4, v1')
    s('v_and_b32 v3, 15, v1')
    s('s_lshl_b32 s%d, s%d, 10' % (sW1K, sW))
    s('s_lshl_b32 s%d, s%d, 12' % (sMK, sW))
    s('s_add_u32 s%d, s%d, 0x%x' % (sMV, sMK, V0))
    s('s_lshl_b32 s3, s%d, 2' % sW)
    s('v_add_u32 v4, s3, v2')
    s('v_xor_b32 v5, v4, v3')
    s('v_lshlrev_b32 v5, 4, v5')
    s('v_lshl_add_u32 v%d, v4, 10, v5' % DX)
    s('v_lshlrev_b32 v6, 2, v2')
    s('v_xor_b32 v6, v6, v3')
    s('v_lshlrev_b32 v6, 4, v6')
    s('''s_and_b32 s3, s%d, 1
         s_lshl_b32 s3, s3, 1
         s_lshr_b32 s36, s%d, 1
         s_or_b32 s3, s3, s36
         s_lshl_b32 s3, s3, 2''' % (sW, sW))
    s('v_add_u32 v4, s3, v2')
    s('v_lshl_add_u32 v%d, v4, 13, v6' % DWQ)
    s('s_waitcnt lgkmcnt(0)')
    s('s_mul_i32 s3, s39, 163840')
    s('s_add_u32 s%d, s44, s3' % SX); s('s_addc_u32 s%d, s45, 0' % (SX + 1))
    s('s_mov_b32 s%d, 163840' % (SX + 2)); s('s_mov_b32 s%d, 0x20000' % (SX + 3))
    s('s_lshl_b32 s3, s38, 9')
    s('s_add_u32 s%d, s50, s3' % SWQ); s('s_addc_u32 s%d, s51, 0' % (SWQ + 1))
    s('s_sub_u32 s%d, 0x400000, s3' % (SWQ + 2)); s('s_mov_b32 s%d, 0x20000' % (SWQ + 3))
    stamp(s, o, 0)
    for g in dma_x(o, 0, XA) + dma_wq(o, 0) + dma_wq(o, 1): s.add(g)
    if o.codepf:
        s('s_getpc_b64 s[62:63]')
        s.label('L_pc')
        s('v_lshlrev_b32 v7, 7, v0')
        s('v_min_u32 v8, L_code_end-L_pc-4, v7')
        s('global_load_dword v%d, v8, s[62:63]' % DUM, dummy=True)
        s('v_add_u32 v7, 0x8000, v7')
        s('v_min_u32 v8, L_code_end-L_pc-4, v7')
        s('global_load_dword v%d, v8, s[62:63]' % (DUM + 1), dummy=True)
    for g in dma_wq(o, 2) + dma_x(o, 1, XB) + dma_wq(o, 3) + dma_wq(o, 4): s.add(g)
    s('''s_lshl_b32 s3, s39, 4
         s_add_u32 s3, s3, s38
         s_lshl_b32 s3, s3, 19''')
    s('s_add_u32 s%d, s46, s3' % SK); s('s_addc_u32 s%d, s47, 0' % (SK + 1))
    s('s_mov_b32 s%d, 0x80000' % (SK + 2)); s('s_mov_b32 s%d, 0x20000' % (SK + 3))
    s('s_add_u32 s%d, s48, s3' % SV); s('s_addc_u32 s%d, s49, 0' % (SV + 1))
    s('s_mov_b32 s%d, 0x80000' % (SV + 2)); s('s_mov_b32 s%d, 0x20000' % (SV + 3))
    s('s_lshl_b32 s3, s38, 18')
    s('s_add_u32 s%d, s52, s3' % SWO); s('s_addc_u32 s%d, s53, 0' % (SWO + 1))
    s('s_mov_b32 s%d, 0x40000' % (SWO + 2)); s('s_mov_b32 s%d, 0x20000' % (SWO + 3))
    s('''s_lshl_b32 s3, s37, 3
         s_add_u32 s3, s3, s39
         s_lshl_b32 s3, s3, 4
         s_add_u32 s3, s3, s38
         s_mul_i32 s3, s3, 163840''')
    s('s_add_u32 s%d, s%d, s3' % (SP_, sWS)); s('s_addc_u32 s%d, s%d, 0' % (SP_ + 1, sWS + 1))
    s('s_mov_b32 s%d, 163840' % (SP_ + 2)); s('s_mov_b32 s%d, 0x20000' % (SP_ + 3))
    s('s_mov_b32 s%d, s%d' % (sOK, sMK)); s('s_mov_b32 s%d, s%d' % (sOV, sMK))
    c = math.log2(math.e) / math.sqrt(128.0)
    s('s_mov_b32 s%d, 0x%x' % (sC, f2u(c))); s('s_mov_b32 s%d, 0x%x' % (sC + 1, f2u(c)))
    s('s_mov_b32 s%d, 0x%x' % (sTHR, f2u(2.0 ** 24 if not o.force_redo else 1.0)))
    s('s_mov_b32 s%d, 0x7f800000' % sINF)
    s('s_mov_b32 s%d, 0' % sHD); s('s_mov_b32 s%d, 0' % sREDO)
    s('v_xor_b32 v4, v2, v3')
    s('v_lshlrev_b32 v4, 4, v4')
    s('v_lshl_add_u32 v%d, v2, 8, v4' % DK)
    for t in range(1, 4): s('v_xor_b32 v%d, %d, v%d' % (DK + t, 64 * t, DK))
    s('v_lshl_add_u32 v%d, v2, 8, v6' % DV)
    s('v_lshl_add_u32 v%d, v2, 10, v6' % DWO)
    for t in range(1, 4): s('v_add_u32 v%d, %d, v%d' % (DWO + t, 3072 * t, DWO))
    s('v_and_b32 v4, 31, v1')
    s('v_lshrrev_b32 v5, 5, v1')
    s('v_xor_b32 v9, v5, v3')
    s('v_lshlrev_b32 v9, 4, v9')
    s('v_lshl_add_u32 v9, v4, 8, v9')
    s('s_lshl_b32 s3, s%d, 13' % sW)
    s('v_add_u32 v%d, s3, v9' % XO)
    s('v_add_u32 v%d, 0x8000, v9' % X4)
    for k in range(1, 8):
        s('v_xor_b32 v%d, %d, v%d' % (XO + k, 32 * k, XO))
        s('v_xor_b32 v%d, %d, v%d' % (X4 + k, 32 * k, X4))
    s('''s_and_b32 s36, s%d, 1
         s_lshl_b32 s36, s36, 13
         s_lshl_b32 s3, s%d, 6
         s_or_b32 s3, s3, s36''' % (sW, sW))
    s('v_xor_b32 v%d, s3, v9' % KAa)
    for k in range(1, 8): s('v_xor_b32 v%d, %d, v%d' % (KAa + k, 32 * k, KAa))
    for k in range(8): s('v_xor_b32 v%d, 0x2000, v%d' % (KAb + k, KAa + k))
    s('v_bfe_u32 v10, v1, 2, 2')
    s('v_lshl_add_u32 v11, v5, 2, v10')
    s('v_lshlrev_b32 v11, 8, v11')
    s('v_lshl_add_u32 v11, v10, 6, v11')
    s('v_bfe_u32 v12, v1, 4, 1')
    s('v_lshl_add_u32 v11, v12, 5, v11')
    s('v_and_b32 v12, 3, v1')
    s('v_lshl_add_u32 v13, v12, 3, v11')
    s('s_add_u32 s36, s36, 0x%x' % V0)
    s('v_add_u32 v%d, s36, v13' % VAa)
    for k in range(1, 4): s('v_xor_b32 v%d, %d, v%d' % (VAa + k, 64 * k, VAa))
    for k in range(4): s('v_xor_b32 v%d, 0x2000, v%d' % (VAb + k, VAa + k))
    s('v_and_b32 v13, 1, v1')
    s('v_lshlrev_b32 v13, 1, v13')
    s('v_bfe_u32 v14, v1, 1, 1')
    s('v_or_b32 v13, v13, v14')
    s('v_lshl_add_u32 v13, v13, 3, v11')
    s('s_lshl_b32 s3, s%d, 6' % sW)
    s('v_xor_b32 v13, s3, v13')
    s('v_add_u32 v%d, 0x%x, v13' % (WA, W0))
    for k in range(1, 4): s('v_xor_b32 v%d, %d, v%d' % (WA + k, 64 * k, WA))
    for k in range(4): s('v_add_u32 v%d, 0x10000, v%d' % (WB + k, WA + k))
    s('s_lshl_b32 s3, s%d, 13' % sW);  s('s_add_u32 s3, s3, 0x%x' % MB); s('v_add_u32 v%d, s3, v%d' % (MW, LANE16))
    s('s_lshl_b32 s3, s%d, 11' % sW);  s('s_add_u32 s36, s3, 0x%x' % MB); s('v_add_u32 v%d, s36, v%d' % (MR, LANE16))
    s('s_add_u32 s36, s3, 0x20000');   s('v_add_u32 v%d, s36, v%d' % (PP4, LANE16))
    s('s_lshl_b32 s36, s%d, 15' % sW); s('s_add_u32 s36, s36, s3'); s('v_add_u32 v%d, s36, v%d' % (PO, LANE16))
    for k in range(1, 4): s('v_xor_b32 v%d, %d, v%d' % (PO + k, 2048 * k, PO))
    s('s_add_u32 s3, s%d, 0x%x' % (sW1K, FX)); s('v_add_u32 v%d, s3, v%d' % (FW, LANE16))
    s('v_add_u32 v%d, 0x%x, v%d' % (FR, FX, LANE16))
    s('v_lshlrev_b32 v4, 2, v1')
    s('v_add_u32 v%d, 0x%x, v4' % (L4R, L4B))
    s('s_lshl_b32 s3, s%d, 8' % sW); s('v_add_u32 v%d, s3, v%d' % (L4W, L4R))
    return s

def gemm_kstep(s, mf, needA, needB, reads, barrier, extra):
    if barrier is None: rd = spread(reads, [0, 1, 2, 3]) if reads else {}
    else: rd = spread(reads, [2, 3, 4]) if reads else {}
    for g in range(5):
        if g == 0: s.wait(regs=needA)
        if g == 2:
            if barrier is not None:
                s.wait(regs=needB, **barrier)
                s('s_barrier')
            else: s.wait(regs=needB)
        s.add(mf[g])
        s.add(rd.get(g, []))
        if extra and not (barrier is not None and g < 2 and getattr(extra[0], 'after_barrier', False)):
            s.add(extra.pop(0))

def gen_q(o):
    s = Seg('qphase')
    acc = lambda hd, j: 64 * hd + 16 * j
    acc4 = lambda hd: 128 + 16 * hd
    def reads_for(n, kk):
        buf = (4 * n + kk) & 1
        slot = n % 5
        areg, imm = (WA, 16384 * slot) if slot < 4 else (WB, 0)
        w = rd_w(buf, areg, imm, kk, (WS_(n), WS_(n) + 16384, 'wq%d' % n))
        if n & 1: return w
        xb = XA if ((n >> 2) & 1) == 0 else XB
        sx = 4 * ((n >> 1) & 1) + kk
        reg = (xb, xb + 40960, 'x%d' % (n >> 2))
        xo = I('ds_read_b128 %s, v%d offset:%d' % (ar(XF + 8 * kk, 4), XO + sx, xb), lds=reg)
        x4 = I('ds_read_b128 %s, v%d offset:%d' % (ar(XF + 8 * kk + 4, 4), X4 + sx, xb), lds=reg)
        return [xo] + w[:2] + [x4] + w[2:]
    s.wait(tags=['x0', 'wq0'])
    s('s_barrier')
    s.add(reads_for(0, 0))
    extra = []
    for n in range(16):
        hd = n & 1
        for kk in range(4):
            buf = (4 * n + kk) & 1
            wf = lambda j: ar(KB + 16 * buf + 4 * j, 4)
            first = (n < 2 and kk == 0)
            xo, x4 = ar(XF + 8 * kk, 4), ar(XF + 8 * kk + 4, 4)
            def mm(d, a, b): return mfma(vr(d, 16), a, b, '0' if first else vr(d, 16))
            mf = [mm(acc(hd, 0), wf(0), xo), mm(acc4(hd), wf(0), x4), mm(acc(hd, 1), wf(1), xo), mm(acc(hd, 2), wf(2), xo), mm(acc(hd, 3), wf(3), xo)]
            needA = regs('a', KB + 16 * buf, 4) + regs('a', XF + 8 * kk, 8)
            needB = regs('a', KB + 16 * buf + 4, 12)
            bar = None
            if kk == 3:
                assert not extra, (n, len(extra))
                m = n + 1
                tags = []
                if m < 16:
                    tags = ['wq%d' % m]
                    if m % 4 == 0: tags.append('x%d' % (m >> 2))
                bar = dict(tags=tags)
                rds = reads_for(m, 0) if m < 16 else []
            else:
                rds = reads_for(n, kk + 1)
            if m_last(n, kk): bar = None
            gemm_kstep(s, mf, needA, needB, rds, bar, extra)
            if kk == 3 and n < 15:
                m = n + 1
                if m + 4 < 16 and m >= 1: extra += dma_wq(o, m + 4)
                if m == 3: extra += dma_x(o, 2, XA)
                if m == 7: extra += dma_x(o, 3, XB)
                if m == 11: extra += dma_k(o, 0, 'K0') + dma_k(o, 1, 'K1')
                if m == 12: extra += dma_v(o, 0, 'V0')
                if m == 13: extra += dma_v(o, 1, 'V1')
                if m == 14: extra += dma_v(o, 2, 'V2')
                if m == 15: extra += dma_k(o, 2, 'K2')
    assert not extra
    return s
def m_last(n, kk): return n == 15 and kk == 3

def gen_qfin(o):
    s = Seg('qfin')
    c = sr(sC, 2)
    def conv(base, n, dst=None):
        for t in range(n // 2):
            s('v_pk_mul_f32 %s, %s, %s' % (vr(base + 2 * t, 2), vr(base + 2 * t, 2), c))
            if t > 0: fin(base, t - 1, dst)
        fin(base, n // 2 - 1, dst)
    def fin(base, t, dst):
        s('v_cvt_pk_bf16_f32 v%d, v%d, v%d' % (base + t, base + 2 * t, base + 2 * t + 1))
        if dst is not None: s('v_accvgpr_write_b32 a%d, v%d' % (dst + t, base + t))
    s('s_lshl_b32 s3, s%d, 11' % sW); s('s_add_u32 s3, s3, 0x%x' % Q4X)
    s('v_add_u32 v%d, s3, v%d' % (T0, LANE16))
    for k in range(8): s('v_xor_b32 v%d, %d, v%d' % (XO + k, 1024 * k, T0))
    conv(128, 16)
    reg = (Q4X, Q4X + 16384, 'q4')
    for u in range(2): s('ds_write_b128 v%d, %s offset:%d' % (T0, vr(128 + 4 * u, 4), 1024 * u), lds=reg)
    conv(0, 64, QA)
    conv(144, 16)
    for u in range(2): s('ds_write_b128 v%d, %s offset:%d' % (T0, vr(144 + 4 * u, 4), 8192 + 1024 * u), lds=reg)
    conv(64, 64, PK)
    s.wait(lgkm_all=True, tags=['K0', 'V0'])
    s('s_barrier')
    for hd in range(2):
        for k in range(8):
            s('ds_read_b128 %s, v%d offset:%d' % (ar((QA4, PK4)[hd] + 4 * k, 4), XO + k, 8192 * hd), lds=reg)
    for k in range(4):
        s('v_subrev_u32 v%d, 0x%x, v%d' % (WA + k, W0, WA + k))
        s('v_subrev_u32 v%d, 0x%x, v%d' % (WB + k, W0 + 65536 - V0, WB + k))
    stamp(s, o, 1)
    return s

Kt = lambda d: (lambda c: 'K%d' % (c['I'] + d))
Ktr = lambda d: (lambda c: None if c['I'] + d >= 32 else 'K%d' % (c['I'] + d))
Vt = lambda d: (lambda c: 'V%d' % (c['I'] + d))
Vt0 = lambda d: (lambda c: None if (c['I'] + d) % 16 == 15 and c.get('first') else 'V%d' % (c['I'] + d))

def zero_ops():
    return [I('v_mov_b32 v%d, 0' % (O + i)) for i in range(64)] + [I('v_accvgpr_write_b32 a%d, 0' % (O4 + i)) for i in range(64)]

def set_negm(s, m, tile, t):
    s('v_mov_b32 v%d, v%d' % (t, m))
    s('s_nop 1')
    s('v_permlane32_swap_b32 v%d, v%d' % (t, m))
    s('v_max_f32 v%d, v%d, v%d' % (m, m, t))
    s('v_sub_f32 v%d, 0, v%d' % (tile, m))
    for i in range(1, 16): s('v_mov_b32 v%d, v%d' % (tile + i, tile))

def max16(s, S, m, acc=False):
    if acc:
        s('v_max3_f32 v%d, v%d, v%d, v%d' % (m, m, S, S + 1))
        for i in range(1, 8): s('v_max3_f32 v%d, v%d, v%d, v%d' % (m, m, S + 2 * i, S + 2 * i + 1))
    else:
        s('v_max_f32 v%d, v%d, v%d' % (m, S, S + 1))
        for i in range(1, 8): s('v_max3_f32 v%d, v%d, v%d, v%d' % (m, m, S + 2 * i, S + 2 * i + 1))

def gen_headpro(o):
    s = Seg('headpro')
    s.label('L_head')
    for k in range(8): s('v_and_b32 v%d, 0xffffdfff, v%d' % (XO + k, KAa + k))
    s.add(rd_k(VB, XO, 0, Kt(0)))
    s.add(rd_k(KB, KAa, 0, Kt(0)))
    z = zero_ops()
    s.add(z[:32]); z = z[32:]
    s.wait(regs=regs('a', VB, 32) + regs('a', QA4, 32))
    for k in range(8):
        s.add(mfma(vr(X, 16), ar(VB + 4 * k, 4), ar(QA + 4 * k, 4), '0' if k == 0 else vr(X, 16)))
        s.add(z[:6]); z = z[6:]
    for k in range(8):
        s.add(mfma(vr(Z, 16), ar(VB + 4 * k, 4), ar(QA4 + 4 * k, 4), '0' if k == 0 else vr(Z, 16)))
        s.add(z[:6]); z = z[6:]
    assert not z
    max16(s, X, T0)
    set_negm(s, T0, NM, T0 + 1)
    max16(s, Z, T0 + 2)
    set_negm(s, T0 + 2, NM4, T0 + 3)
    s.label('L_enter')
    s('v_mov_b32 v%d, 0' % L); s('v_mov_b32 v%d, 0' % L4)
    s('s_mov_b32 s%d, 0' % sCNT)
    s.wait(lgkm_all=True)
    s('s_barrier')
    s('s_cmp_ge_u32 s%d, 2' % sW)
    s('s_cbranch_scc1 L_v1')
    return s

SM = [(11, X, PA, L), (27, Y, PB, L), (43, Z, P4, L4), (59, X, PA, L), (75, Y, PB, L)]
def sm_ops_g(S, P, l, g):
    pre, post = [], []
    if g >= 2 and g % 2 == 0: pre.append(I('v_cvt_pk_bf16_f32 v%d, v%d, v%d' % (P + g // 2 - 1, S + g - 2, S + g - 1)))
    e = [I('v_exp_f32 v%d, v%d' % (S + g, S + g))] if g < 16 else []
    if g >= 1: post.append(I('v_add_f32 v%d, v%d, v%d' % (l, l, S + g - 1)))
    return pre, e, post
def sm_gap(G):
    pre, e, post = [], [], []
    for st, S, P, l in SM:
        g = (G - st) % 80
        if g <= 16:
            a, b, c = sm_ops_g(S, P, l, g)
            pre += a; e += b; post += c
    return pre + e + post

def qk(D, C, Q): return [mfma(vr(D, 16), ar(KB + 4 * k, 4), ar(Q + 4 * k, 4), vr(C if k == 0 else D, 16)) for k in range(8)]
def pv(P, four):
    out = []
    for u in range(2):
        for db in range(4):
            d = ar(O4 + 16 * db, 16) if four else vr(O + 16 * db, 16)
            out.append(mfma(d, ar(VB + 4 * (4 * u + db), 4), vr(P + 4 * u, 4), d))
    return out

def slot(s, sig, mf, buf, rds, dmas=None, barrier=None):
    dm = spread(dmas, [1, 3, 5, 7]) if dmas else {}
    for g in range(8):
        if buf is not None and g in (0, 4): s.wait(regs=regs('a', buf + 4 * g, 16))
        s.add(mf[g])
        if g == 0 and barrier is not None:
            s.wait(tags=barrier)
            s('s_barrier')
        s.add(sm_gap(8 * sig + g))
        s.add(rds.get(g, []))
        s.add(dm.get(g, []))

def step(s, o, typ, i):
    allg = list(range(8))
    pi = (i - 1) % 4
    d = i
    if typ == 'A':
        slot(s, 0, qk(X, NM, QA), KB, spread(rd_v(VAb, pi, Vt0(d - 1)), allg))
        slot(s, 1, pv(PB, False), VB, spread(rd_k(KB, KAb, i, Kt(d)), allg), dmas=dma_k(o, pi, Kt(d + 3)))
        va = rd_v(VAa, i, Vt(d))
        slot(s, 2, qk(Y, NM, QA), KB, spread(va[:8], allg))
        slot(s, 3, qk(Z, NM4, QA4), None, spread(va[8:], allg))
        slot(s, 4, pv(PA, False), VB, spread(rd_k(KB, KAa, (i + 1) % 4, Ktr(d + 1)), allg), dmas=dma_v(o, pi, Vt(d + 3)), barrier=[Kt(d + 1), Vt(d + 1)])
    else:
        slot(s, 5, qk(X, NM, QA), KB, spread(rd_v(VAb, pi, Vt0(d - 1)), allg))
        kb = rd_k(KB, KAb, i, Kt(d))
        slot(s, 6, pv(PB, False), VB, spread(kb[:4], [0, 2, 4, 6]))
        slot(s, 7, pv(P4, True), None, spread(kb[4:], [0, 2, 4, 6]), dmas=dma_k(o, pi, Kt(d + 3)))
        slot(s, 8, qk(Y, NM, QA), KB, spread(rd_v(VAa, i, Vt(d)), allg))
        slot(s, 9, pv(PA, False), VB, spread(rd_k(KB, KAa, (i + 1) % 4, Ktr(d + 1)), allg), dmas=dma_v(o, pi, Vt(d + 3)), barrier=[Kt(d + 1), Vt(d + 1)])

def gen_variant(o, var):
    ent = Seg('v%d_entry' % var)
    if var == 1: ent.label('L_v1')
    ninf = '0xff800000'
    g0 = 5 if var == 0 else 13
    ent('v_mov_b32 v%d, 0' % (Y + g0 - 1))
    for i in range(g0, 16): ent('v_mov_b32 v%d, %s' % (Y + i, ninf))
    for t in range(g0 // 2): ent('v_mov_b32 v%d, 0' % (PB + t))
    if var == 1:
        for i in range(16): ent('v_mov_b32 v%d, %s' % (Z + i, ninf))
    body = Seg('v%d_body' % var)
    body.label('L_body%d' % var)
    for i in range(4):
        step(body, o, 'AB'[(i + var) & 1], i)
    body('s_add_u32 s%d, s%d, 1' % (sCNT, sCNT))
    body('s_cmp_lt_u32 s%d, 4' % sCNT)
    body('s_cbranch_scc1 L_body%d' % var)
    pre = Seg('v%d_wo' % var)
    pre('s_cmp_eq_u32 s%d, 0' % sHD)
    pre('s_cbranch_scc1 L_drain%d' % var)
    wo = Seg('v%d_wo2' % var)
    wo.wait(vm_all=True)
    for u in range(6):
        for g in dma_wo(o, u): wo.add(g)
    dr = Seg('v%d_drain' % var)
    dr.label('L_drain%d' % var)
    dr.add(rd_v(VAb, 3, Vt(-1)))
    for g in range(g0, 17):
        a, b, c = sm_ops_g(Y, PB, L, g)
        if g == 16: dr('s_nop 0')
        dr.add(a + b + c)
    dr.wait(regs=regs('a', VB, 32))
    mf = pv(PB, False)
    if var == 0:
        dr.add(mf)
    else:
        for j in range(8):
            dr.add(mf[j])
            for g in (2 * j, 2 * j + 1):
                a, b, c = sm_ops_g(Z, P4, L4, g)
                dr.add(b + a + c)
        a, b, c = sm_ops_g(Z, P4, L4, 16)
        dr.add(c + a)
        dr('s_nop 1')
        dr.add(pv(P4, True))
    if var == 0: dr('s_branch L_join')
    return ent, body, pre, wo, dr

def half_sum(s, l, t):
    s('v_mov_b32 v%d, v%d' % (t, l))
    s('s_nop 1')
    s('v_permlane32_swap_b32 v%d, v%d' % (t, l))
    s('v_add_f32 v%d, v%d, v%d' % (l, l, t))

def gen_epi(o):
    s = Seg('epi1')
    s.label('L_join')
    if o.stamps: stamp(s, o, lambda q, r: (q('s_lshl_b32 s3, s%d, 4' % sHD), q('s_add_u32 s%d, s%d, s3' % (r, r)), q('s_add_u32 s%d, s%d, 0x%x' % (r, r, WS_BYTES - 256 * o.stamps * 8 + 2 * 8))))
    half_sum(s, L, T0); half_sum(s, L4, T0 + 1)
    s('v_cmp_nge_f32 vcc, s%d, v%d' % (sTHR, L))
    s('v_rcp_f32 v%d, v%d' % (T0, L))
    s('v_mov_b32 v%d, s%d' % (T0 + 2, sINF))
    s('v_cndmask_b32 v%d, v%d, v%d, vcc' % (L4, L4, T0 + 2))
    hdtag = lambda n: (lambda c: '%s_%d_%d' % (n, c['I'], c.get('redo', 0)))
    R = lambda lo, hi, n: (lambda c: (lo, hi, ev(hdtag(n), c)))
    s('ds_write_b32 v%d, v%d' % (L4W, L4), lds=R(L4B, L4B + 1024, 'l4'))
    s('s_nop 4')
    for row in range(8): s('ds_write_b128 v%d, %s offset:%d' % (MW, ar(O4 + 4 * row, 4), 1024 * row), lds=R(MB, MB + 32768, 'm1'))
    s('v_mov_b32 v%d, v%d' % (T0 + 1, T0))
    def norm(lo, hi):
        for t in range(lo, hi):
            s('v_pk_mul_f32 %s, %s, %s' % (vr(O + 2 * t, 2), vr(O + 2 * t, 2), vr(T0, 2)))
            s('v_cvt_pk_bf16_f32 v%d, v%d, v%d' % (O + t, O + 2 * t, O + 2 * t + 1))
    norm(0, 16)
    s.wait(lgkm_all=True)
    s('s_barrier')
    for p in range(4): s('ds_read_b32 v%d, v%d offset:%d' % (136 + p, L4R, 256 * p), lds=R(L4B, L4B + 1024, 'l4'))
    def rdm(tag):
        for p in range(4):
            for r in range(2):
                s('ds_read_b128 %s, v%d offset:%d' % (vr(96 + 8 * p + 4 * r, 4), MR, 8192 * p + 1024 * r), lds=R(MB, MB + 32768, tag))
    rdm('m1')
    norm(16, 32)
    s.wait(regs=regs('v', 136, 4))
    s('v_add_f32 v136, v136, v137'); s('v_add_f32 v138, v138, v139'); s('v_add_f32 v136, v136, v138')
    s('v_mul_f32 v137, 0.25, v136' if False else 'v_ldexp_f32 v137, v136, -2')
    s('v_cmp_nge_f32 vcc, s%d, v137' % sTHR)
    s('v_rcp_f32 v%d, v136' % (T0 + 2))
    s('s_cmp_lg_u32 s%d, 0' % sREDO)
    s('s_cbranch_scc1 L_safe')
    s('s_cbranch_vccnz L_redo')
    s2 = Seg('epi2'); s = s2
    s.label('L_safe')
    s('s_mov_b32 s%d, 0' % sREDO)
    for t in range(32):
        s('v_accvgpr_mov_b32 a%d, a%d' % (QA + t, PK + t))
        s('v_accvgpr_write_b32 a%d, v%d' % (PK + t, O + t))
    s('v_mov_b32 v%d, v%d' % (T0 + 3, T0 + 2))
    def summ(dst):
        s.wait(regs=regs('v', 96, 32))
        for i in range(0, 8, 2):
            s('v_pk_add_f32 %s, %s, %s' % (vr(96 + i, 2), vr(96 + i, 2), vr(104 + i, 2)))
            s('v_pk_add_f32 %s, %s, %s' % (vr(112 + i, 2), vr(112 + i, 2), vr(120 + i, 2)))
        for i in range(0, 8, 2):
            s('v_pk_add_f32 %s, %s, %s' % (vr(96 + i, 2), vr(96 + i, 2), vr(112 + i, 2)))
        for i in range(0, 8, 2):
            s('v_pk_mul_f32 %s, %s, %s' % (vr(96 + i, 2), vr(96 + i, 2), vr(T0 + 2, 2)))
        for t in range(4): s('v_cvt_pk_bf16_f32 v%d, v%d, v%d' % (dst + t, 96 + 2 * t, 97 + 2 * t))
    summ(140)
    s('s_barrier')
    for row in range(8): s('ds_write_b128 v%d, %s offset:%d' % (MW, ar(O4 + 32 + 4 * row, 4), 1024 * row), lds=R(MB, MB + 32768, 'm2'))
    s('ds_write_b128 v%d, %s' % (FW, vr(140, 4)), lds=R(FX, FX + 8192, 'fx'))
    for t in range(32): s('v_accvgpr_mov_b32 a%d, a%d' % (QA4 + t, PK4 + t))
    s.wait(lgkm_all=True)
    s('s_barrier')
    rdm('m2')
    summ(140)
    s('ds_write_b128 v%d, %s offset:4096' % (FW, vr(140, 4)), lds=R(FX, FX + 8192, 'fx'))
    s.wait(lgkm_all=True)
    s('s_barrier')
    for k in range(8): s('ds_read_b128 %s, v%d offset:%d' % (ar(PK4 + 4 * k, 4), FR, 1024 * k), lds=R(FX, FX + 8192, 'fx'))
    if o.stamps: stamp(s, o, lambda q, r: (q('s_lshl_b32 s3, s%d, 4' % sHD), q('s_add_u32 s%d, s%d, s3' % (r, r)), q('s_add_u32 s%d, s%d, 0x%x' % (r, r, WS_BYTES - 256 * o.stamps * 8 + 3 * 8))))
    s('s_add_u32 s%d, s%d, 1' % (sHD, sHD))
    s('s_cmp_lt_u32 s%d, 2' % sHD)
    s('s_cbranch_scc1 L_head')
    return None, s2

def gen_redo(o):
    s = Seg('redo')
    s.label('L_redo')
    s('s_mov_b32 s%d, 1' % sREDO)
    s('s_waitcnt vmcnt(0) lgkmcnt(0)')
    s('s_barrier')
    s('v_lshrrev_b32 v%d, 4, v%d' % (T0, LANE16))
    s('v_and_b32 v%d, 31, v%d' % (T0 + 1, T0))
    s('v_lshrrev_b32 v%d, 5, v%d' % (T0, T0))
    s('v_lshlrev_b32 v%d, 4, v%d' % (T0, T0))
    s('v_lshl_add_u32 v%d, v%d, 8, v%d' % (T0, T0 + 1, T0))
    s('s_lshl_b32 s3, s%d, 6' % sW)
    s('v_xor_b32 v%d, s3, v%d' % (XO, T0))
    for k in range(1, 8): s('v_xor_b32 v%d, %d, v%d' % (XO + k, 32 * k, XO))
    s('v_mov_b32 v%d, 0xff800000' % X4); s('v_mov_b32 v%d, 0xff800000' % (X4 + 1))
    s('s_lshl_b32 s%d, s%d, 18' % (sA, sHD))
    s('s_mov_b32 s%d, 0' % sCNT)
    lp = Seg('redo_loop')
    lp.label('L_redo_loop')
    for k in range(8): lp('buffer_load_dwordx4 %s, v%d, s[%d:%d], s%d offen' % (ar(KB + 4 * k, 4), XO + k, SK, SK + 3, sA))
    lp('s_waitcnt vmcnt(0)')
    for k in range(8): lp.add(mfma(vr(X, 16), ar(KB + 4 * k, 4), ar(QA + 4 * k, 4), '0' if k == 0 else vr(X, 16)))
    for k in range(8): lp.add(mfma(vr(Z, 16), ar(KB + 4 * k, 4), ar(QA4 + 4 * k, 4), '0' if k == 0 else vr(Z, 16)))
    lp('s_nop 11')
    max16(lp, X, X4, acc=True); max16(lp, Z, X4 + 1, acc=True)
    lp('s_add_u32 s%d, s%d, 0x2000' % (sA, sA))
    lp('s_add_u32 s%d, s%d, 1' % (sCNT, sCNT))
    lp('s_cmp_lt_u32 s%d, 32' % sCNT)
    lp('s_cbranch_scc1 L_redo_loop')
    e = Seg('redo_end')
    set_negm(e, X4, NM, T0); set_negm(e, X4 + 1, NM4, T0)
    e('s_lshl_b32 s%d, s%d, 18' % (sA, sHD))
    e('s_add_u32 s%d, s%d, s%d' % (sOK, sMK, sA)); e('s_mov_b32 s%d, s%d' % (sOV, sOK))
    for i in range(3):
        for g in dma_k(o, i, Kt(i)) + dma_v(o, i, Vt(i)): e.add(g)
    e.add(zero_ops())
    e.wait(tags=[Kt(0), Vt(0)])
    e('s_barrier')
    e.add(rd_k(KB, KAa, 0, Kt(0)))
    e('s_branch L_enter')
    return s, lp, e

def gen_op(o):
    s = Seg('op')
    def reads_for(u, kk):
        base = OSLOT[u % 8]
        areg, imm = (WA, base) if base < V0 else (WB, base - V0)
        return rd_w((4 * u + kk) & 1, areg, imm, kk, (base, base + 16384, 'wo%d' % u))
    def st(data, areg, j1):
        return I('buffer_store_dwordx4 %s, v%d, s[%d:%d], s%d offen offset:%d %s' % (vr(data, 4), areg, SP_, SP_ + 3, sA, 1024 * j1, o.st_pol))
    def conv(c):
        E = 80 * (c & 1)
        out = [[I('s_mov_b32 s%d, 0x%x' % (sA, 8192 * c))]]
        for j in range(5):
            b = E + 16 * j
            areg = PO + j if j < 4 else PP4
            for t in range(8):
                out.append([I('v_cvt_pk_bf16_f32 v%d, v%d, v%d' % (b + t, b + 2 * t, b + 2 * t + 1))])
                if t == 4: out.append([st(b, areg, 0)])
            out.append([I('s_nop 0'), st(b + 4, areg, 1)])
        return out
    for g in dma_wo(o, 6): s.add(g)
    s.wait(lgkm_all=True, tags=['wo0'])
    s('s_barrier')
    s.add(reads_for(0, 0))
    extra = list(dma_wo(o, 7))
    for u in range(16):
        c, r = u >> 2, u & 3
        E = 80 * (c & 1)
        own, four = ((QA, QA4), (PK, PK4))[r >> 1]
        for kk in range(4):
            buf = (4 * u + kk) & 1
            wf = lambda j: ar(KB + 16 * buf + 4 * j, 4)
            first = (r == 0 and kk == 0)
            ks = 4 * (r & 1) + kk
            bo, b4 = ar(own + 4 * ks, 4), ar(four + 4 * ks, 4)
            def mm(d, a, b): return mfma(vr(d, 16), a, b, '0' if first else vr(d, 16))
            mf = [mm(E, wf(0), bo), mm(E + 64, wf(0), b4), mm(E + 16, wf(1), bo), mm(E + 32, wf(2), bo), mm(E + 48, wf(3), bo)]
            needA = regs('a', KB + 16 * buf, 4)
            needB = regs('a', KB + 16 * buf + 4, 12)
            bar = None
            if kk == 3:
                m = u + 1
                if m < 16: bar = dict(tags=['wo%d' % m])
                rds = reads_for(m, 0) if m < 16 else []
            else: rds = reads_for(u, kk + 1)
            if r == 0 and kk == 1 and c > 0: extra += conv(c - 1)
            gemm_kstep(s, mf, needA, needB, rds, bar, extra)
            if kk == 3 and u + 8 < 16: extra = dma_wo(o, u + 8) + extra
    assert not extra, len(extra)
    s('s_nop 7')
    for g in conv(3): s.add(g)
    if o.stamps:
        stamp(s, o, 6)
        s('s_waitcnt vmcnt(0)')
        stamp(s, o, 7)
    s.label('L_done')
    s('s_endpgm')
    return s

def gen_reduce(o):
    s = Seg('reduce')
    s('s_cmp_ge_u32 s2, 640')
    s('s_cbranch_scc1 L_rdone')
    s('s_load_dwordx2 s[4:5], s[0:1], 96')
    s('s_load_dwordx2 s[6:7], s[0:1], 80')
    s('s_mov_b32 s3, 0x%x' % ((2 ** 32 + 39) // 40))
    s('s_mul_hi_u32 s16, s2, s3')
    s('s_mul_i32 s3, s16, 40')
    s('s_sub_u32 s17, s2, s3')
    s('v_lshrrev_b32 v1, 6, v0')
    s('v_and_b32 v2, 63, v0')
    s('v_readfirstlane_b32 s18, v1')
    s('v_and_b32 v3, 7, v2')
    s('v_lshrrev_b32 v4, 3, v2')
    s('s_lshl_b32 s17, s17, 2')
    s('s_add_u32 s17, s17, s18')
    s('s_lshr_b32 s19, s17, 3')
    s('s_and_b32 s20, s17, 7')
    s('s_lshr_b32 s21, s19, 2'); s('s_lshl_b32 s21, s21, 15')
    s('s_lshl_b32 s22, s20, 12'); s('s_add_u32 s21, s21, s22')
    s('s_and_b32 s22, s19, 3'); s('s_lshl_b32 s22, s22, 7'); s('s_add_u32 s21, s21, s22')
    s('v_lshlrev_b32 v5, 9, v4')
    s('v_lshl_add_u32 v5, v3, 4, v5')
    s('v_add_u32 v5, s21, v5')
    s('s_and_b32 s22, s16, 7'); s('s_mul_i32 s22, s22, 160'); s('s_lshl_b32 s23, s19, 3'); s('s_add_u32 s22, s22, s23')
    s('s_lshl_b32 s22, s22, 11')
    s('s_lshr_b32 s23, s16, 3'); s('s_lshl_b32 s23, s23, 10'); s('s_add_u32 s22, s22, s23')
    s('s_lshl_b32 s23, s20, 7'); s('s_add_u32 s22, s22, s23')
    s('v_lshlrev_b32 v6, 11, v3')
    s('v_lshl_add_u32 v6, v4, 4, v6')
    s('v_add_u32 v6, s22, v6')
    s('s_mul_i32 s3, s16, %d' % (16 * 163840))
    s('s_waitcnt lgkmcnt(0)')
    s('s_add_u32 s8, s4, s3'); s('s_addc_u32 s9, s5, 0'); s('s_mov_b32 s10, %d' % (16 * 163840)); s('s_mov_b32 s11, 0x20000')
    s('s_mov_b32 s12, s6'); s('s_mov_b32 s13, s7'); s('s_mov_b32 s14, %d' % (8 * 160 * 2048)); s('s_mov_b32 s15, 0x20000')
    for p in range(16):
        s('s_mov_b32 s3, %d' % (163840 * p))
        s('buffer_load_dwordx4 %s, v5, s[8:11], s3 offen %s' % (vr(16 + 4 * p, 4), o.rd_pol))
    s('v_mov_b32 v7, 0xffff0000')
    for p in range(16):
        s.wait(regs=regs('v', 16 + 4 * p, 4))
        for d in range(4):
            x = 16 + 4 * p + d
            if p == 0:
                s('v_lshlrev_b32 v%d, 16, v%d' % (8 + 2 * d, x)); s('v_and_b32 v%d, v7, v%d' % (9 + 2 * d, x))
            else:
                s('v_lshlrev_b32 v80, 16, v%d' % x); s('v_and_b32 v81, v7, v%d' % x)
                s('v_pk_add_f32 %s, %s, v[80:81]' % (vr(8 + 2 * d, 2), vr(8 + 2 * d, 2)))
    for d in range(4): s('v_cvt_pk_bf16_f32 v%d, v%d, v%d' % (16 + d, 8 + 2 * d, 9 + 2 * d))
    s('buffer_store_dwordx4 v[16:19], v6, s[12:15], 0 offen')
    s.label('L_rdone')
    s('s_endpgm')
    return s

def desc(name, vgpr, accum, sgpr):
    return '''.amdhsa_kernel %s
  .amdhsa_next_free_vgpr %d
  .amdhsa_next_free_sgpr %d
  .amdhsa_accum_offset %d
  .amdhsa_group_segment_fixed_size 0
  .amdhsa_kernarg_size 104
  .amdhsa_user_sgpr_count 2
  .amdhsa_user_sgpr_kernarg_segment_ptr 1
  .amdhsa_system_sgpr_workgroup_id_x 1
  .amdhsa_float_denorm_mode_32 3
.end_amdhsa_kernel
''' % (name, vgpr, sgpr, accum)

def build(o, path):
    entry, q, qf, hp = gen_entry(o), gen_q(o), gen_qfin(o), gen_headpro(o)
    var = [gen_variant(o, 0), gen_variant(o, 1)]
    global _e1
    e1_holder = []
    import types
    segs = []
    orig = Seg.__init__
    def spy(self, name): orig(self, name); segs.append(self)
    Seg.__init__ = spy
    gen_epi(o)
    Seg.__init__ = orig
    e1, e2 = segs
    r0, r1, r2 = gen_redo(o)
    op = gen_op(o)
    red = gen_reduce(o)
    idx = [i for i, it in enumerate(hp.items) if it.kind == 'label' and it.name == 'L_enter'][0]
    hpa, hpb = Seg('headpro_a'), Seg('headpro_b')
    hpa.items, hpb.items = hp.items[:idx], hp.items[idx:]
    traces = []
    for v in range(2):
        for redo in (None, 0, 1):
            ent, body, pre, wo, dr = var[v]
            tr = [(entry, {}), (q, {}), (qf, {})]
            for hd in range(2):
                passes = [0, 1] if redo == hd else [0]
                for ps in passes:
                    b = 16 * hd
                    if ps == 0: tr += [(hpa, dict(I=b))]
                    else: tr += [(r0, {}), (r1, {}), (r1, {}), (r2, dict(I=b))]
                    tr += [(hpb, dict(I=b)), (ent, {})]
                    for it in range(4): tr.append((body, dict(I=b + 4 * it, first=(it == 0))))
                    tr.append((pre, {}))
                    if hd == 1: tr.append((wo, {}))
                    tr += [(dr, dict(I=b + 16)), (e1, dict(I=b, redo=ps))]
                tr.append((e2, dict(I=b, redo=passes[-1])))
            tr.append((op, {}))
            traces.append(('v%d_redo%s' % (v, redo), tr))
    traces.append(('reduce', [(red, {})]))
    resolve([t for _, t in traces])
    allerr = []
    info = {}
    for name, tr in traces:
        errs, ep, de = check(tr, name)
        allerr += errs; info[name] = (ep, de)
    for redo in (None, 0, 1):
        a, b = info['v0_redo%s' % redo], info['v1_redo%s' % redo]
        if a[0] != b[0]: allerr.append('barrier count differs')
        if sorted(a[1], key=str) != sorted(b[1], key=str): allerr.append('dma epochs differ')
    for e in allerr[:40]: print('ERR', e)
    if allerr: print(len(allerr), 'errors')
    hdr = open('concat_heads__gqa_block_cached__gqa_block_cached__near_ridge.s.ref').read().split('; Override')[0]
    txt = hdr
    txt += '; @launch kernel=%s grid=(256,1,1) block=(256,1,1) lds=163840\n' % KN
    txt += '; @launch kernel=reduce_kernel grid=(640,1,1) block=(256,1,1) lds=0\n'
    txt += '.amdgcn_target "amdgcn-amd-amdhsa--gfx950"\n.text\n.globl %s\n.p2align 8\n.type %s,@function\n%s:\n' % (KN, KN, KN)
    order = [entry, q, qf, hp, var[0][0], var[0][1], var[0][2], var[0][3], var[0][4], r0, r1, r2,
             var[1][0], var[1][1], var[1][2], var[1][3], var[1][4], e1, e2, op]
    for sg in order: txt += sg.text()
    txt += '.globl reduce_kernel\n.p2align 8\n.type reduce_kernel,@function\nreduce_kernel:\n' + red.text()
    txt += 'L_code_end:\n'
    txt += '.section .rodata,"a"\n.p2align 6\n' + desc(KN, 512, 256, 96) + '.p2align 6\n' + desc('reduce_kernel', 88, 88, 32)
    open(path, 'w').write(txt)
    return not allerr

if __name__ == '__main__':
    o = Opt()
    path = sys.argv[1]
    for kv in sys.argv[2:]:
        k, v = kv.split('=')
        cur = getattr(o, k)
        setattr(o, k, int(v) if isinstance(cur, int) else v.replace('+', ' '))
    ok = build(o, path)
    print('written', path, 'ok' if ok else 'WITH ERRORS')
```

```python
import re

REG_RE = re.compile(r'^(-?)(?:abs\()?([vas])(?:\[(\d+):(\d+)\]|(\d+))\)?$')

def parse_reg(tok):
    tok = tok.strip()
    if tok in ('vcc', 'm0', 'exec', 'scc'):
        return [(tok, 0)]
    m = REG_RE.match(tok)
    if not m:
        return []
    k = m.group(2)
    if m.group(5) is not None:
        return [(k, int(m.group(5)))]
    return [(k, i) for i in range(int(m.group(3)), int(m.group(4)) + 1)]

TRANS = ('v_exp_f32', 'v_log_f32', 'v_rcp_f32', 'v_rsq_f32', 'v_sqrt_f32')

class I:
    def __init__(self, text, **ann):
        self.text = text.strip()
        self.ann = ann
        t = self.text.split(None, 1)
        self.mn = t[0]
        rest = t[1] if len(t) > 1 else ''
        ops = []
        for p in rest.split(','):
            p = p.strip()
            if not p: continue
            ops.append(p.split()[0])
        self.ops = ops
        mn = self.mn
        R = lambda i: parse_reg(ops[i]) if i < len(ops) else []
        rd, wr = [], []
        kind = 'other'
        if mn.startswith('v_mfma'):
            kind = 'mfma'; wr = R(0); rd = R(1) + R(2) + R(3)
            self.srcA, self.srcB, self.srcC = R(1), R(2), R(3)
            self.passes = 4 if '16x16x32' in mn else 8
        elif mn.startswith('v_permlane'):
            kind = 'perm'; wr = R(0) + R(1); rd = R(0) + R(1)
        elif mn.startswith('v_cmp'):
            kind = 'valu'; wr = R(0); rd = R(1) + R(2)
        elif mn.startswith('v_readfirstlane') or mn.startswith('v_readlane'):
            kind = 'rdlane'; wr = R(0); rd = R(1)
        elif mn.startswith('v_'):
            kind = 'trans' if mn in TRANS else 'valu'
            wr = R(0); rd = sum((R(i) for i in range(1, len(ops))), [])
            if mn.startswith('v_dot2c') or mn.startswith('v_fmac'): rd += R(0)
            if mn.startswith('v_cndmask') and len(ops) == 3: rd += [('vcc', 0)]
        elif mn.startswith('ds_read'):
            kind = 'dsr'; wr = R(0); rd = R(1)
        elif mn.startswith('ds_write'):
            kind = 'dsw'; rd = R(0) + R(1) + R(2)
        elif mn.startswith('buffer_load') and ' lds' in self.text:
            kind = 'dma'; rd = R(0) + R(1) + R(2) + [('m0', 0)]
        elif mn.startswith('buffer_load'):
            kind = 'vld'; wr = R(0); rd = R(1) + R(2) + R(3)
        elif mn.startswith('global_load'):
            kind = 'vld'; wr = R(0); rd = R(1) + R(2)
        elif mn.startswith('buffer_store'):
            kind = 'vst'; rd = R(0) + R(1) + R(2) + R(3); self.data = R(0)
        elif mn.startswith('buffer_atomic'):
            kind = 'vld' if ' sc0' in self.text else 'vst'
            rd = R(0) + R(1) + R(2) + R(3); self.data = R(0)
            if kind == 'vld': wr = R(0)
        elif mn in ('buffer_wbl2', 'buffer_inv'):
            kind = 'vst'; self.data = []
        elif mn == 's_waitcnt':
            kind = 'wait'
        elif mn == 's_barrier':
            kind = 'barrier'
        elif mn == 's_nop':
            kind = 'nop'
        elif mn.startswith('s_load') or mn.startswith('s_mem'):
            kind = 'smem'; wr = R(0); rd = R(1)
        elif mn.startswith('s_cbranch') or mn == 's_branch' or mn == 's_endpgm':
            kind = 'branch'
        elif mn.startswith('s_cmp'):
            kind = 'salu'; rd = R(0) + R(1)
        elif mn.startswith('s_'):
            kind = 'salu'; wr = R(0); rd = sum((R(i) for i in range(1, len(ops))), [])
        self.kind, self.rd, self.wr = kind, set(rd), set(wr)
    def states(self):
        if self.kind == 'nop': return int(self.ops[0], 0) + 1
        return 1

class Wait:
    kind = 'ph'
    def __init__(self, regs=(), tags=(), lgkm_all=False, vm_all=False):
        self.regs = set(regs); self.tags = set(tags); self.lgkm_all = lgkm_all; self.vm_all = vm_all
        self.lg = None; self.vm = None
    def text(self):
        p = []
        if self.vm is not None: p.append('vmcnt(%d)' % self.vm)
        if self.lg is not None: p.append('lgkmcnt(%d)' % self.lg)
        return 's_waitcnt ' + ' '.join(p) if p else None

class Label:
    kind = 'label'
    def __init__(self, n): self.name = n

def regs(k, lo, n): return [(k, lo + i) for i in range(n)]

class Seg:
    def __init__(self, name):
        self.name = name; self.items = []
    def __call__(self, text, **ann):
        for l in text.split('\n'):
            l = l.strip()
            if l: self.items.append(I(l, **ann))
        return self
    def add(self, it):
        if isinstance(it, (list, tuple)):
            for x in it: self.add(x)
        elif isinstance(it, str): self(it)
        else: self.items.append(it)
    def label(self, n): self.items.append(Label(n))
    def wait(self, **kw): self.items.append(Wait(**kw))
    def text(self):
        out = []
        for it in self.items:
            if it.kind == 'label': out.append(it.name + ':')
            elif it.kind == 'ph':
                t = it.text()
                if t: out.append(' ' + t)
            else: out.append(' ' + it.text.replace(', ', ','))
        return '\n'.join(out) + '\n'

def flat(trace):
    for seg, ctx in trace:
        for it in seg.items:
            if it.kind != 'label': yield it, ctx, seg

def ev(x, ctx):
    return x(ctx) if callable(x) else x

def parse_wait(it):
    vm = re.search(r'vmcnt\((\d+)\)', it.text); lg = re.search(r'lgkmcnt\((\d+)\)', it.text)
    return (int(vm.group(1)) if vm else None, int(lg.group(1)) if lg else None)

def resolve(traces):
    for tr in traces:
        lq, vq = [], []
        for it, ctx, seg in flat(tr):
            k = it.kind
            if k == 'ph':
                lg = None
                if it.lgkm_all and lq: lg = 0
                else:
                    idx = [i for i, w in enumerate(lq) if w & it.regs]
                    if idx: lg = min(15, len(lq) - 1 - idx[-1])
                vm = None
                tags = set(ev(t, ctx) for t in it.tags)
                if it.vm_all and vq: vm = 0
                else:
                    idx = [i for i, (t, w) in enumerate(vq) if (t is not None and t in tags) or (w & it.regs)]
                    if idx: vm = min(63, len(vq) - 1 - idx[-1])
                if lg is not None:
                    it.lg = lg if it.lg is None else min(it.lg, lg); lq = lq[len(lq) - lg:] if lg else []
                if vm is not None:
                    it.vm = vm if it.vm is None else min(it.vm, vm); vq = vq[len(vq) - vm:] if vm else []
            elif k == 'wait':
                vm, lg = parse_wait(it)
                if lg is not None and len(lq) > lg: lq = lq[len(lq) - lg:] if lg else []
                if vm is not None and len(vq) > vm: vq = vq[len(vq) - vm:] if vm else []
            elif k in ('dsr', 'dsw', 'smem'): lq.append(it.wr)
            elif k in ('dma', 'vld', 'vst'): vq.append((ev(it.ann.get('tag'), ctx), it.wr))

def check(trace, name, verbose=False):
    errs = []
    lq, vq = [], []
    epoch = 0
    writes = []
    reads = []
    hist = []
    dma_epochs = []
    n = 0
    def err(it, seg, msg): errs.append('%s/%s #%d [%s]: %s' % (name, seg.name, n, it.text if hasattr(it, 'mn') else 'wait', msg))
    def dowait(vm, lg):
        nonlocal lq, vq
        if lg is not None and len(lq) > lg:
            done = lq[:len(lq) - lg]; lq = lq[len(lq) - lg:]
            if any(d[2] for d in done + lq) and lg != 0: errs.append('counted lgkm wait with smem in flight')
            for w, rec, _ in done:
                if rec is not None:
                    if 'status' in rec: rec['status'] = 'landed'
                    else: rec['done'] = epoch
        if vm is not None and len(vq) > vm:
            done = vq[:len(vq) - vm]; vq = vq[len(vq) - vm:]
            for w, rec in done:
                if rec is not None: rec['status'] = 'landed'
    for it, ctx, seg in flat(trace):
        n += 1
        k = it.kind
        if k == 'ph':
            if it.text() is None: continue
            dowait(it.vm, it.lg); hist.append((I('s_nop 0'), 1)); continue
        if k == 'wait':
            dowait(*parse_wait(it)); hist.append((it, 1)); continue
        if k == 'barrier':
            epoch += 1
            for w in writes:
                if w['status'] == 'landed': w['status'] = 'visible'
            hist.append((it, 1)); continue
        touch = it.rd | it.wr
        for w, rec, _ in lq:
            if w & touch: err(it, seg, 'touches pending LDS/SMEM result %s' % sorted(w & touch)[:2])
        for w, rec in vq:
            if w & touch and not it.ann.get('dummy'): err(it, seg, 'touches pending VMEM result %s' % sorted(w & touch)[:2])
        if len(vq) >= 63 and k in ('dma', 'vld', 'vst'): err(it, seg, 'vmcnt overflow')
        reg = it.ann.get('lds')
        rec = None
        if reg is not None:
            lo, hi, tag = ev(reg, ctx)
            if k == 'dsr':
                if tag is not None:
                    ov = [w for w in writes if w['lo'] < hi and lo < w['hi']]
                    if not ov: err(it, seg, 'LDS read of never-written region')
                    else:
                        newest = ov[-1]
                        if newest['tag'] != tag: err(it, seg, 'LDS read expects %s finds %s' % (tag, newest['tag']))
                        for w in ov:
                            if w['tag'] == tag and w['status'] != 'visible' and not it.ann.get('own'): err(it, seg, 'LDS read of %s not yet visible (%s)' % (tag, w['status']))
                            if w['tag'] == tag and it.ann.get('own') and w['status'] == 'inflight' and k != 'dsr': pass
                    rec = dict(lo=lo, hi=hi, done=None, tag=tag); reads.append(rec)
            else:
                for r in reads:
                    if r['lo'] < hi and lo < r['hi'] and (r['done'] is None or r['done'] >= epoch):
                        err(it, seg, 'LDS write %s over reads of %s not fenced by a barrier' % (tag, r['tag'])); break
                for w in writes:
                    if w['lo'] < hi and lo < w['hi'] and w['tag'] != tag and w['status'] == 'inflight':
                        err(it, seg, 'LDS write %s over in-flight write %s' % (tag, w['tag'])); break
                reads = [r for r in reads if not (r['lo'] < hi and lo < r['hi'] and r['done'] is not None and r['done'] < epoch)]
                writes = [w for w in writes if not (lo <= w['lo'] and w['hi'] <= hi and w['tag'] != tag)]
                rec = dict(lo=lo, hi=hi, tag=tag, status='inflight'); writes.append(rec)
                if k == 'dma': dma_epochs.append((tag, epoch))
        elif k in ('dsr', 'dsw', 'dma'):
            err(it, seg, 'LDS op without annotation')
        dist = 0
        for p, st in reversed(hist):
            if dist >= 20: break
            need = 0
            pk = p.kind
            isvalu_p = pk in ('valu', 'trans', 'perm', 'rdlane')
            vw = set(r for r in p.wr if r[0] in 'va')
            sw = set(r for r in p.wr if r[0] in ('s', 'vcc'))
            if pk == 'mfma':
                n_rd, n_ov, n_war = ((8, 6, 3), (12, 10, 7))[p.passes == 8]
                if k == 'mfma':
                    if p.wr & (set(it.srcA) | set(it.srcB)): need = n_rd
                    elif p.wr & set(it.srcC) and p.wr != set(it.srcC): need = n_ov
                    elif p.wr & it.wr and p.wr != set(it.srcC): need = n_ov
                else:
                    if p.wr & (it.rd | it.wr): need = n_rd
                    if k in ('valu', 'trans', 'perm') and set(p.srcC) & it.wr: need = max(need, n_war)
            elif isvalu_p:
                if k == 'mfma' and vw & it.rd: need = 2
                if (k == 'perm' or it.mn.endswith('_dpp')) and vw & it.rd: need = 2
                if p.mn.startswith('v_dot2') and p.mn != it.mn and vw & (it.rd | it.wr): need = max(need, 3)
                if k == 'rdlane' and vw & it.rd: need = 1
                if pk == 'trans' and k in ('valu', 'perm') and vw & it.rd: need = max(need, 1)
                if sw & it.rd:
                    if k in ('dma', 'vld', 'vst'): need = 5
                    elif k in ('valu', 'trans'): need = max(need, 2)
            elif pk == 'salu':
                if ('m0', 0) in p.wr and ('m0', 0) in it.rd and k == 'dma': need = 1
            elif pk == 'vst':
                if len(p.data) >= 3 and set(p.data) & it.wr: need = 2
            if need > dist: err(it, seg, 'hazard: needs %d wait states after [%s], has %d' % (need, p.text, dist))
            dist += st
        hist.append((it, it.states()))
        if len(hist) > 64: hist = hist[-40:]
        if k in ('dsr', 'dsw'): lq.append((it.wr, rec, False))
        elif k == 'smem': lq.append((it.wr, None, True))
        elif k in ('dma', 'vld', 'vst'): vq.append((it.wr, rec))
    return errs, epoch, dma_epochs
```

```python
import sys, struct, math
from fw import *

KN = "concat_heads__gqa_block_cached__gqa_block_cached__near_ridge_kernel"
WS_BYTES = 287834112
PST = 163840 + 256
INB = 256 * PST
def f2u(x): return struct.unpack('<I', struct.pack('<f', x))[0]

class Opt:
    kv_pol = 'nt'
    w_pol = ''
    st_pol = 'sc1'
    rd_pol = 'sc1'
    fl_pol = 'sc1'
    stamps = 0
    cyc = 0
    dbgst = 0
    codepf = 1
    force_redo = 0
    nowait = ''
    nodma = ''
    dmaburst = 0
    qevery = 3
    out_pol = ''
    rot = 1
    early = 0
    cap = 4
    vph1 = 1
    ibs = 4
    tlb = 0
    fulld = 0
    flagat = 8
    par = 1
    pfo = 1
    trace = ''
    kvat = '5,7,9,11'
    oevery = 1
    pfw = 0
    pfs = 7

K0, V0 = 0, 98304
XBUF = lambda m: 32768 + 20480 * (m & 1)
W0 = 81920
EX = 16384
FLG = V0 + 3 * 16384
KS = lambda i: K0 + 16384 * (i % 4)
VS = lambda i: V0 + 16384 * (i % 4)
WS_ = lambda n: (W0, V0 + 32768, V0 + 49152)[n % 3]
OSLOT = [KS(0), VS(1), VS(2), VS(0), VS(3), KS(1), KS(2), KS(3)]

S, P, NM, L = 0, 40, 80, 100
KA, VA, DK, DV, LANE16 = 105, 109, 117, 121, 123
T0 = 124
DWO = 124
CNT, FLA, DUM = 132, 133, 134
OV = 136
XAD, WQ0, DX, DWQ = 40, 44, 52, 53
Q, KB, VB, OA = 0, 80, 112, 144
XF = 144
PART = 144
sW, sP, sREDO, sCNT = 4, 5, 6, 7
SX, SWQ, SK, SV, SWO, SP_ = 8, 12, 16, 20, 24, 28
sOK, sOV, sMK, sMV = 32, 33, 34, 35
sBR, sHP, sB_ = 37, 38, 39
sWS = 40
sC, sTHR = 54, 56
sA, sB = 58, 59
sW1K, sHF = 60, 61
sST = 64
SF, SD, SO = 72, 76, 80
sG = 84
SG = 96
sM0, sM1 = 86, 88
sXO, sWO_ = 90, 91

def vr(b, n=1): return 'v%d' % b if n == 1 else 'v[%d:%d]' % (b, b + n - 1)
def ar(b, n=1): return 'a%d' % b if n == 1 else 'a[%d:%d]' % (b, b + n - 1)
def sr(b, n=1): return 's%d' % b if n == 1 else 's[%d:%d]' % (b, b + n - 1)
def mfma(d, a, b, c): return I('v_mfma_f32_16x16x32_bf16 %s, %s, %s, %s' % (d, a, b, c))
def otile(j, db):
    n = 8 * j + db
    return ('v', OV + 4 * n) if n < 30 else ('a', OA + 4 * (n - 30))
def oreg(j, db):
    k, b = otile(j, db)
    return '%s[%d:%d]' % (k, b, b + 3)
def qacc(db, j):
    n = 5 * db + j
    return OV + 4 * n if n < 30 else 4 * (n - 30)

def tstamp(s, o, ph, idx):
    if o.trace == ph and idx < 16:
        s('%s s[%d:%d]' % ('s_memtime' if o.cyc else 's_memrealtime', sST + 6, sST + 7)); s('s_waitcnt lgkmcnt(0)')
        s('v_writelane_b32 v135, s%d, %d' % (sST + 6, idx))
def stamp(s, o, idx):
    if o.trace:
        if idx == 15:
            st = sST
            s('s_mov_b32 s%d, s%d' % (st, sWS)); s('s_mov_b32 s%d, s%d' % (st + 1, sWS + 1))
            s('s_mov_b32 s%d, 0x%x' % (st + 2, WS_BYTES)); s('s_mov_b32 s%d, 0x20000' % (st + 3))
            s('s_mul_i32 s%d, s2, %d' % (st + 4, 128)); s('s_add_u32 s%d, s%d, 0x%x' % (st + 4, st + 4, WS_BYTES - 256 * 128))
            s('s_min_u32 s3, s%d, 1' % sW); s('s_lshl_b32 s3, s3, 30'); s('s_add_u32 s%d, s%d, s3' % (st + 4, st + 4))
            s('v_mbcnt_lo_u32_b32 v0, -1, 0'); s('v_lshlrev_b32 v0, 3, v0'); s('v_mov_b32 v2, v135'); s('v_mov_b32 v3, 0')
            s('s_mov_b64 exec, 0xffff')
            s('buffer_store_dwordx2 v[2:3], v0, s[%d:%d], s%d offen' % (st, st + 3, st + 4))
        return
    if not o.stamps: return
    if o.dbgst:
        if idx not in (0, 2, 3, 5, 6, 11, 13, 15): return
        idx = (0, 2, 3, 5, 6, 11, 13, 15).index(idx)
    st = sST
    t = 96
    r0 = 134
    a, b = 'v%d' % r0, 'v%d' % (r0 + 1)
    if o.dbgst:
        s('s_memrealtime s[%d:%d]' % (st + 4, st + 5))
        s('s_memtime s[%d:%d]' % (st + 6, st + 7))
        s('s_waitcnt lgkmcnt(0)')
        s('v_mov_b32 %s, s%d' % (a, st + 4)); s('v_mov_b32 %s, s%d' % (b, st + 6))
        s('s_sub_u32 s%d, s2, %d' % (st + 4, o.dbgst - 1))
        s('s_mul_i32 s%d, s%d, 0x1000' % (st + 4, st + 4))
        s('s_add_u32 s%d, s%d, 0x%x' % (st + 4, st + 4, idx * 8))
        s('s_nop 0')
        s('buffer_store_dwordx2 v[%d:%d], off, s[%d:%d], s%d' % (r0, r0 + 1, SD, SD + 3, st + 4), dummy=True)
        return
    s('%s s[%d:%d]' % ('s_memtime' if o.cyc else 's_memrealtime', st + 4, st + 5))
    s('s_waitcnt lgkmcnt(0)')
    s('s_mov_b32 s%d, s%d' % (st, sWS)); s('s_mov_b32 s%d, s%d' % (st + 1, sWS + 1))
    s('s_mov_b32 s%d, 0x%x' % (st + 2, WS_BYTES)); s('s_mov_b32 s%d, 0x20000' % (st + 3))
    s('v_mov_b32 %s, s%d' % (a, st + 4), dummy=True); s('v_mov_b32 %s, s%d' % (b, st + 5), dummy=True)
    s('s_mul_i32 s%d, s2, %d' % (st + 4, o.stamps * 8))
    s('s_add_u32 s%d, s%d, 0x%x' % (st + 4, st + 4, WS_BYTES - 256 * o.stamps * 8 + idx * 8))
    s('s_nop 0')
    s('buffer_store_dwordx2 v[%d:%d], off, s[%d:%d], s%d' % (r0, r0 + 1, st, st + 3, st + 4), dummy=True)

def dma(voff, srd, soff, imm, pol, tag, lo):
    return I('buffer_load_dwordx4 v%d, s[%d:%d], s%d offen offset:%d %s lds' % (voff, srd, srd + 3, soff, imm, pol),
             tag=tag, lds=(lambda c, f=tag, lo=lo: (lo[0], lo[1], ev(f, c))))
def dma_x(o, m):
    buf = XBUF(m)
    out = [[I('s_add_u32 m0, s%d, 0x%x' % (sW1K, buf + 4096 * j)), I('s_add_u32 s%d, s%d, 0x%x' % (sA, sXO, 32768 * j)),
            dma(DX, SX, sA, 0, o.w_pol, 'x%d' % m, (buf, buf + 20480))] for j in range(5)]
    out[4] += [I('s_add_u32 s%d, s%d, 128' % (sXO, sXO)), I('s_and_b32 s%d, s%d, 0x3ff' % (sXO, sXO))]
    return out
def grp4(pre, mk, post=()):
    out = []
    for t in range(4):
        g = list(pre) if t == 0 else []
        g.append(mk(t))
        if t == 3: g += list(post)
        out.append(g)
    return out
def dma_wq(o, n):
    b = WS_(n)
    return grp4([I('s_add_u32 m0, s%d, 0x%x' % (sMK, b)), I('s_nop 0')],
                lambda t: dma(DWQ + t, SWQ, sWO_, 1024 * t, o.w_pol, 'wq%d' % n, (b, b + 16384)),
                [I('s_add_u32 s%d, s%d, 0x40000' % (sWO_, sWO_)), I('s_and_b32 s%d, s%d, 0x3fffff' % (sWO_, sWO_))])
def dma_k(o, slot, tag):
    b = KS(slot)
    return grp4([I('s_add_u32 m0, s%d, 0x%x' % (sMK, b)), I('s_add_u32 s%d, s%d, 0x2000' % (sOK, sOK))],
                lambda t: dma(DK + t, SK, sOK, 1024 * t, o.kv_pol, tag, (b, b + 16384)))
def dma_v(o, slot, tag):
    b = VS(slot)
    return grp4([I('s_add_u32 m0, s%d, 0x%x' % (sMK, b)), I('s_add_u32 s%d, s%d, 0x2000' % (sOV, sOV))],
                lambda t: dma(DV + (t & 1), SV, sOV, 1024 * t, o.kv_pol, tag, (b, b + 16384)))
def dma_wo(o, u):
    c, phi, dh = u >> 2, (u >> 1) & 1, u & 1
    b = OSLOT[u % 8]
    return grp4([I('s_add_u32 m0, s%d, 0x%x' % (sMK, b)), I('s_lshl_b32 s%d, s%d, 2' % (sB, sMK)),
                 I('s_add_u32 s%d, s%d, 0x%x' % (sB, sB, 65536 * dh + 128 * c))],
                lambda t: dma(DWO + 4 * phi + t, SWO, sB, 1024 * t, o.w_pol, 'wo%d' % u, (b, b + 16384)))

def reg_(lo, tag): return (lambda c, f=tag: (lo, lo + 16384, ev(f, c)))
def rd_k(slot, tag):
    return [I('ds_read_b128 %s, v%d offset:%d' % (ar(KB + 4 * (4 * kb + s), 4), KA + s, 16384 * slot + 4096 * kb), lds=reg_(KS(slot), tag))
            for s in range(4) for kb in range(2)]
def rd_tr(dst, areg, n, imm, region):
    return [I('ds_read_b64_tr_b16 %s, v%d offset:%d' % (ar(dst + 4 * d + 2 * e, 2), areg + d, imm + 4096 * e), lds=region)
            for d in range(n) for e in range(2)]
def rd_v(dst, slot, tag): return rd_tr(dst, VA, 8, 16384 * slot, reg_(VS(slot), tag))

def spread(items, gaps):
    d = {g: [] for g in gaps}
    n, m = len(items), len(gaps)
    for i, it in enumerate(items): d[gaps[i * m // n]].append(it)
    return d

def srd(s, r, lo, hi, off, size):
    if off is None: s('s_mov_b32 s%d, s%d' % (r, lo)); s('s_mov_b32 s%d, s%d' % (r + 1, hi))
    else: s('s_add_u32 s%d, s%d, s%d' % (r, lo, off)); s('s_addc_u32 s%d, s%d, 0' % (r + 1, hi))
    if size is not None: s('s_mov_b32 s%d, 0x%x' % (r + 2, size))
    s('s_mov_b32 s%d, 0x20000' % (r + 3))

def gen_entry(o):
    s = Seg('entry')
    s('s_cmp_ge_u32 s2, 256')
    s('s_cbranch_scc1 L_done')
    s('s_and_b32 s3, s2, 7')
    s('s_lshr_b32 s36, s2, 3')
    if o.par: s('s_and_b32 s37, s3, 1'); s('s_lshr_b32 s38, s3, 1')
    else: s('s_lshr_b32 s37, s3, 2'); s('s_and_b32 s38, s3, 3')
    s('''s_lshl_b32 s38, s38, 2
         s_and_b32 s39, s36, 3
         s_or_b32 s38, s38, s39
         s_lshr_b32 s39, s36, 2
         s_mul_i32 s3, s37, 40
         s_add_u32 s42, s0, s3
         s_addc_u32 s43, s1, 0
         s_load_dwordx8 s[44:51], s[42:43], 0
         s_load_dwordx2 s[52:53], s[42:43], 32
         s_load_dwordx2 s[40:41], s[0:1], 96
         s_load_dwordx4 s[92:95], s[0:1], 80''')
    s('v_lshrrev_b32 v7, 6, v0')
    s('v_and_b32 v1, 63, v0')
    s('v_readfirstlane_b32 s%d, v7' % sW)
    s('v_lshlrev_b32 v%d, 4, v1' % LANE16)
    s('v_lshrrev_b32 v2, 4, v1')
    s('v_and_b32 v3, 15, v1')
    s('s_lshl_b32 s%d, s%d, 10' % (sW1K, sW))
    s('s_lshl_b32 s%d, s%d, 12' % (sMK, sW))
    s('s_lshr_b32 s%d, s%d, 1' % (sP, sW))
    s('s_and_b32 s%d, s%d, 1' % (sHF, sW))
    s('s_lshl_b32 s3, s%d, 2' % sHF)
    s('v_add_u32 v4, s3, v2')
    s('v_and_b32 v5, 7, v1')
    s('v_xor_b32 v5, v4, v5')
    s('v_lshlrev_b32 v5, 4, v5')
    s('v_lshrrev_b32 v4, 3, v0')
    s('v_lshl_add_u32 v%d, v4, 10, v5' % DX)
    s('v_lshlrev_b32 v6, 1, v2')
    s('v_xor_b32 v6, v6, v3')
    s('v_lshlrev_b32 v6, 4, v6')
    s('s_lshl_b32 s3, s%d, 2' % sHF)
    s('v_add_u32 v4, s3, v2')
    s('v_lshl_add_u32 v4, v4, 13, v6')
    s('s_lshl_b32 s3, s%d, 8' % sP)
    s('v_add_u32 v%d, s3, v4' % DWQ)
    s('v_xor_b32 v4, 0x80, v%d' % DWQ)
    s('v_add_u32 v%d, 0x%x, v4' % (DWQ + 1, 64512))
    s('v_add_u32 v%d, 0x%x, v%d' % (DWQ + 2, 2 * 64512, DWQ))
    s('v_add_u32 v%d, 0x%x, v4' % (DWQ + 3, 3 * 64512))
    if o.rot: s('s_and_b32 s3, s38, 3'); s('s_lshl_b32 s3, s3, 1'); s('s_add_u32 s3, s3, s39'); s('s_and_b32 s3, s3, 7')
    else: s('s_mov_b32 s3, 0')
    s('s_lshl_b32 s%d, s3, 7' % sXO); s('s_lshl_b32 s%d, s3, 19' % sWO_)
    s('s_waitcnt lgkmcnt(0)')
    s('s_mul_i32 s3, s39, 163840'); srd(s, SX, 44, 45, 3, 163840)
    s('s_lshl_b32 s3, s38, 9'); srd(s, SWQ, 50, 51, 3, None); s('s_sub_u32 s%d, 0x400000, s3' % (SWQ + 2))
    srd(s, SD, 94, 95, None, 256)
    stamp(s, o, 0)
    if o.pfw == 2:
        for g in dma_x(o, 0) + dma_wq(o, 0) + dma_wq(o, 1): s.add(g)
    if o.pfw:
        per = 128 >> o.pfs if o.pfs < 7 else 1
        s('v_lshrrev_b32 v7, 2, v0'); s('v_and_b32 v8, 3, v0'); s('v_lshlrev_b32 v8, 7, v8'); s('v_lshl_add_u32 v7, v7, 13, v8')
        s('s_lshl_b32 s3, s39, 19')
        for h in range(per): s('buffer_load_dword v59, v7, s[%d:%d], s3 offen offset:%d' % (SWQ, SWQ + 3, 64 * h), dummy=True)
        s('v_lshlrev_b32 v7, 7, v0')
        s('s_and_b32 s3, s38, 3'); s('s_mul_i32 s3, s3, 40960')
        for h in range(per): s('buffer_load_dword v59, v7, s[%d:%d], s3 offen offset:%d' % (SX, SX + 3, 64 * h), dummy=True)
        s('v_and_b32 v7, 0x1fff, v7'); s('s_add_u32 s3, s3, 0x8000')
        for h in range(per): s('buffer_load_dword v59, v7, s[%d:%d], s3 offen offset:%d' % (SX, SX + 3, 64 * h), dummy=True)
    if o.pfw != 2:
        for g in dma_x(o, 0) + dma_wq(o, 0) + dma_wq(o, 1): s.add(g)
    s('s_mov_b32 s3, 0x%x' % INB); srd(s, SF, sWS, sWS + 1, 3, 256 * (16 << o.ibs))
    s('s_lshl_b32 s%d, s37, 3' % sG); s('s_add_u32 s%d, s%d, s39' % (sG, sG))
    s('s_lshl_b32 s36, s%d, 4' % sG); s('s_add_u32 s36, s36, s38')
    s('s_min_u32 s3, s%d, 1' % sW); s('s_lshl_b32 s3, s3, 30')
    s('s_lshl_b32 s62, s36, %d' % (4 + o.ibs)); s('s_add_u32 s62, s62, s3')
    s('v_lshrrev_b32 v8, 2, v1'); s('v_lshlrev_b32 v8, %d, v8' % (o.ibs - 2)); s('v_and_b32 v9, 3, v1'); s('v_add_lshl_u32 v8, v8, v9, 2')
    s('v_add_u32 v9, s62, v8')
    s('v_mov_b32 v10, 0')
    s('buffer_store_dword v10, v9, s[%d:%d], 0 offen %s' % (SF, SF + 3, o.fl_pol), tag='clr')
    if o.codepf:
        s('s_getpc_b64 s[62:63]')
        s.label('L_pc')
        s('v_lshlrev_b32 v7, 7, v0')
        s('global_load_dword v59, v7, s[62:63]', dummy=True)
        s('v_add_u32 v7, 0x8000, v7')
        s('v_min_u32 v7, L_code_end-L_pc-4, v7')
        s('global_load_dword v59, v7, s[62:63]', dummy=True)
    s('s_mul_i32 s3, s36, %d' % PST); srd(s, SP_, sWS, sWS + 1, 3, 163840)
    s('''s_lshl_b32 s3, s39, 4
         s_add_u32 s3, s3, s38
         s_lshl_b32 s3, s3, 1
         s_add_u32 s3, s3, s%d
         s_lshl_b32 s3, s3, 18''' % sP)
    srd(s, SK, 46, 47, 3, 0x40000); srd(s, SV, 48, 49, 3, 0x40000)
    s('s_lshl_b32 s3, s38, 18'); srd(s, SWO, 52, 53, 3, 0x40000)
    srd(s, SO, 92, 93, None, 8 * 160 * 2048)
    s('s_mul_i32 s3, s%d, %d' % (sG, 16 * PST)); srd(s, SG, sWS, sWS + 1, 3, 16 * PST)
    if o.tlb:
        for r in (SK, SV, SWO): s('buffer_load_dword v59, off, s[%d:%d], 0' % (r, r + 3), dummy=True)
        s('v_mul_u32_u24 v7, %d, v3' % PST); s('s_mov_b32 s3, 163840')
        s('buffer_load_dword v59, v7, s[%d:%d], s3 offen sc1' % (SG, SG + 3), dummy=True)
        s('s_mul_i32 s3, s39, %d' % (160 * 2048))
        s('buffer_load_dword v59, off, s[%d:%d], s3 sc1' % (SO, SO + 3), dummy=True)
    s('s_lshl_b32 s3, s%d, 12' % sHF); s('s_sub_u32 s%d, s3, 0x2000' % sOK); s('s_mov_b32 s%d, s%d' % (sOV, sOK))
    c = math.log2(math.e) / math.sqrt(128.0)
    s('s_mov_b32 s%d, 0x%x' % (sC, f2u(c))); s('s_mov_b32 s%d, 0x%x' % (sC + 1, f2u(c)))
    s('s_mov_b32 s%d, 0x%x' % (sTHR, f2u(2.0 ** 24 if not o.force_redo else 1.0)))
    s('s_mov_b32 s%d, 0' % sREDO)
    s('s_lshl_b32 s3, s%d, %d' % (sG, 8 + o.ibs)); s('s_lshl_b32 s36, s38, %d' % o.ibs); s('s_add_u32 s3, s3, s36')
    s('s_lshl_b32 s36, s%d, 2' % sW); s('s_add_u32 s3, s3, s36')
    s('v_lshlrev_b32 v4, %d, v3' % (4 + o.ibs)); s('v_add_u32 v4, s3, v4')
    s('v_min_u32 v5, 1, v2'); s('v_lshl_add_u32 v%d, v5, 30, v4' % FLA)
    s('v_min_u32 v5, 1, v0'); s('v_lshlrev_b32 v5, 30, v5'); s('s_lshl_b32 s3, s%d, 3' % sG); s('s_add_u32 s3, s3, 128'); s('v_add_u32 v%d, s3, v5' % T0)
    s('v_mov_b32 v%d, 1' % CNT)
    s('v_xor_b32 v4, v2, v3'); s('v_lshlrev_b32 v4, 4, v4')
    s('v_lshl_add_u32 v%d, v2, 8, v4' % DK)
    for t in range(1, 4): s('v_xor_b32 v%d, %d, v%d' % (DK + t, 64 * t, DK))
    s('v_lshl_add_u32 v%d, v2, 8, v6' % DV)
    s('v_xor_b32 v%d, 0x80, v%d' % (DV + 1, DV))
    s('v_lshl_add_u32 v4, v3, 8, v4')
    s('s_lshl_b32 s36, s%d, 13' % sP)
    s('v_add_u32 v%d, s36, v4' % KA)
    for k in range(1, 4): s('v_xor_b32 v%d, %d, v%d' % (KA + k, 64 * k, KA))
    s('v_lshrrev_b32 v4, 1, v3'); s('v_xor_b32 v4, v4, v2'); s('v_lshlrev_b32 v4, 4, v4')
    s('v_lshl_add_u32 v4, v3, 7, v4')
    s('s_mul_i32 s3, s%d, 10240' % sHF)
    s('v_add_u32 v%d, s3, v4' % XAD)
    s('v_xor_b32 v%d, 64, v%d' % (XAD + 1, XAD))
    s('v_lshrrev_b32 v4, 2, v1')
    s('v_and_b32 v5, 7, v4')
    s('v_lshlrev_b32 v5, 5, v5')
    s('v_lshl_add_u32 v5, v4, 8, v5')
    s('v_and_b32 v4, 3, v1')
    s('v_lshl_add_u32 v5, v4, 3, v5')
    s('s_add_u32 s36, s36, 0x%x' % V0)
    s('v_add_u32 v%d, s36, v5' % VA)
    for k in range(1, 8): s('v_xor_b32 v%d, %d, v%d' % (VA + k, 32 * k, VA))
    for k in range(8): s('v_subrev_u32 v%d, 0x4000, v%d' % (WQ0 + k, VA + k))
    stamp(s, o, 1)
    return s

def is_vm(g): return any(x.kind in ('dma', 'vst', 'vld') for x in g)
class Pace:
    since = 99
def gemm_kstep(s, mf, need, reads, barrier, extra, every=1, vq=None):
    n = len(mf)
    rg = list(range(2, 2 + (len(reads) + 1) // 2)) if n <= 20 else list(range(2, 2 + len(reads)))
    rd = spread(reads, rg) if reads else {}
    for g in range(n):
        if g == 0: s.wait(regs=need)
        s.add(mf[g])
        if g == 1 and barrier is not None:
            s.wait(**barrier)
            s('s_barrier')
            for f in barrier_hooks: f()
            del barrier_hooks[:]
        s.add(rd.get(g, []))
        Pace.since += 1
        busy = len(rd.get(g, []))
        if vq and Pace.since >= every and busy < 2:
            s.add(vq.pop(0)); Pace.since = 0
        elif extra and busy < 2 and (not is_vm(extra[0]) or Pace.since >= every):
            if is_vm(extra[0]): Pace.since = 0
            s.add(extra.pop(0))
barrier_hooks = []

def gen_q(o):
    s = Seg('qphase')
    def reads_for(n):
        buf = n & 1
        areg, imm = ((WQ0, 0), (VA, 32768), (VA, 49152))[n % 3]
        w = rd_tr(KB + 32 * buf, areg, 8, imm, (WS_(n), WS_(n) + 16384, 'wq%d' % n))
        xb = XBUF(n >> 1)
        x = [I('ds_read_b128 %s, v%d offset:%d' % (ar(XF + 20 * buf + 4 * j, 4), XAD + (n & 1), xb + 2048 * j), lds=(xb, xb + 20480, 'x%d' % (n >> 1))) for j in range(5)]
        return x + w
    s.wait(tags=['x0', 'wq0'])
    s('s_barrier')
    stamp(s, o, 2)
    s.add(reads_for(0))
    vq = dma_wq(o, 2) + dma_x(o, 1)
    kv = [dma_k(o, 0, 'K0'), dma_v(o, 0, 'V0'), dma_k(o, 1, 'K1'), dma_v(o, 1, 'V1')]
    for n in range(16):
        buf = n & 1
        tstamp(s, o, 'q', n)
        mf = []
        for db in range(8):
            for j in range(5):
                d = vr(qacc(db, j), 4)
                mf.append(mfma(d, ar(KB + 32 * buf + 4 * db, 4), ar(XF + 20 * buf + 4 * j, 4), '0' if n == 0 else d))
        m = n + 1
        tags = []
        if m < 16:
            tags = ['wq%d' % m]
            if m % 2 == 0: tags.append('x%d' % (m >> 1))
        new = []
        if m + 2 < 16: new += dma_wq(o, m + 2)
        if m % 2 == 0 and m // 2 + 1 < 8: new += dma_x(o, m // 2 + 1)
        if m in o.kvat_l: new += kv.pop(0)
        if m == 14: new += dma_k(o, 2, 'K2') + dma_v(o, 2, 'V2')
        if m == 16: new += dma_k(o, 3, 'K3')
        barrier_hooks.append(lambda new=new: vq.extend(new))
        gemm_kstep(s, mf, regs('a', KB + 32 * buf, 32) + regs('a', XF + 20 * buf, 20), reads_for(m) if m < 16 else [], dict(tags=tags), [], o.qevery, vq)
    assert not vq and not kv, len(vq)
    stamp(s, o, 3)
    return s

def gen_qfin(o):
    s = Seg('qfin')
    c = sr(sC, 2)
    items = [(sidx, j) for sidx in range(4) for j in range(5)]
    def tq(i): return 60 + 4 * (i % 4)
    def st1(i):
        sidx, j = items[i]
        for e in range(2):
            b = qacc(2 * sidx + e, j)
            s('v_pk_mul_f32 %s, %s, %s' % (vr(b, 2), vr(b, 2), c)); s('v_pk_mul_f32 %s, %s, %s' % (vr(b + 2, 2), vr(b + 2, 2), c))
        for e in range(2):
            b = qacc(2 * sidx + e, j)
            s('v_cvt_pk_bf16_f32 v%d, v%d, v%d' % (tq(i) + 2 * e, b, b + 1)); s('v_cvt_pk_bf16_f32 v%d, v%d, v%d' % (tq(i) + 2 * e + 1, b + 2, b + 3))
    def st2(i):
        t = tq(i)
        s('v_permlane32_swap_b32 v%d, v%d' % (t, t + 2)); s('v_permlane32_swap_b32 v%d, v%d' % (t + 1, t + 3))
    def st3(i):
        t = tq(i)
        s('v_permlane16_swap_b32 v%d, v%d' % (t, t + 2)); s('v_permlane16_swap_b32 v%d, v%d' % (t + 1, t + 3))
    def st4(i):
        sidx, j = items[i]
        for k in range(4): s('v_accvgpr_write_b32 a%d, v%d' % (Q + 16 * j + 4 * sidx + k, tq(i) + k))
    n = len(items)
    for i in range(n + 3):
        if i < n: st1(i)
        else: s('s_nop 1')
        if 0 <= i - 3 < n: st4(i - 3)
        if 0 <= i - 2 < n: st3(i - 2)
        if 0 <= i - 1 < n: st2(i - 1)
        if i == n - 8:
            s.wait(tags=['K0'])
            s('s_barrier')
            s.add(rd_k(0, 'K0'))
    stamp(s, o, 4)
    return s

Kt = lambda d: (lambda c: 'K%d' % (c['I'] + d))
Vt = lambda d: (lambda c: 'V%d' % (c['I'] + d))

def qk_list(cinit):
    out = []
    for j in range(5):
        for r in range(8):
            kb, sidx = r & 1, r >> 1
            d = vr(S + 8 * j + 4 * kb, 4)
            cc = d if sidx else (vr(NM + 4 * j, 4) if cinit else '0')
            out.append(mfma(d, ar(KB + 4 * (4 * kb + sidx), 4), ar(Q + 16 * j + 4 * sidx, 4), cc))
    return out
def pv_list(par, vb, zero=False):
    return [mfma(oreg(j, db), ar(vb + 4 * db, 4), vr(P + 20 * par + 4 * j, 4), '0' if zero else oreg(j, db)) for j in range(5) for db in range(8)]

def rowred(s, regs_, tmps, op):
    for sw in ('v_permlane32_swap_b32', 'v_permlane16_swap_b32'):
        for r, t in zip(regs_, tmps): s('v_mov_b32 v%d, v%d' % (t, r))
        if len(regs_) < 3: s('s_nop 1')
        for r, t in zip(regs_, tmps): s('%s v%d, v%d' % (sw, t, r))
        for r, t in zip(regs_, tmps): s('%s v%d, v%d, v%d' % (op, r, r, t))

def max8(s, j, m, acc):
    b = S + 8 * j
    if acc: s('v_max3_f32 v%d, v%d, v%d, v%d' % (m, m, b, b + 1))
    else: s('v_max_f32 v%d, v%d, v%d' % (m, b, b + 1))
    for i in range(1, 4): s('v_max3_f32 v%d, v%d, v%d, v%d' % (m, m, b + 2 * i, b + 2 * i + 1))
MX, MT = 40, 45
def set_nm(s):
    rowred(s, [MX + j for j in range(5)], [MT + j for j in range(5)], 'v_max_f32')
    for j in range(5): s('v_sub_f32 v%d, 0, v%d' % (NM + 4 * j, MX + j))
    for j in range(5):
        for i in range(1, 4): s('v_mov_b32 v%d, v%d' % (NM + 4 * j + i, NM + 4 * j))

def gen_minit(o):
    s = Seg('minit')
    s.wait(regs=regs('a', KB, 32))
    mf = qk_list(False)
    tmp = Seg('t')
    for j in range(4): max8(tmp, j, MX + j, False)
    fill = {14 + 8 * (i // 4) + (i % 4): it for i, it in enumerate(tmp.items)}
    fill = {min(g, 39): None for g in ()} or fill
    late = []
    for g in range(40):
        s.add(mf[g])
        if g in fill: s.add(fill[g])
    for g in sorted(fill):
        if g >= 40: s.add(fill[g])
    s('s_nop 3')
    max8(s, 4, MX + 4, False)
    set_nm(s)
    for j in range(5):
        for i in range(0, 8, 2): s('v_pk_add_f32 %s, %s, %s' % (vr(S + 8 * j + i, 2), vr(S + 8 * j + i, 2), vr(NM + 4 * j, 2)))
    return s

def sm_exp(i):
    r = S + i
    return I('v_exp_f32 v%d, v%d' % (r, r))
def sm_post(i, par):
    j = i >> 3
    out = [I('v_add_f32 v%d, v%d, v%d' % (L + j, L + j, S + i))]
    if i & 1: out.append(I('v_cvt_pk_bf16_f32 v%d, v%d, v%d' % (P + 20 * par + 4 * j + ((i & 7) >> 1), S + i - 1, S + i)))
    return out
def sm_gap(G, par):
    x = G - 12
    if x < 0: x += 80; par ^= 1
    i = x >> 1
    return [sm_exp(i)] if x % 2 == 0 else sm_post(i, par)

def gen_s0(o):
    s = Seg('s0')
    s.label('L_s0')
    for j in range(5): s('v_mov_b32 v%d, 0' % (L + j))
    s.wait(tags=[Kt(1), Vt(0)])
    s('s_barrier')
    s.add(dma_k(o, 0, Kt(4)))
    if not o.vph1: s.add(dma_v(o, 3, Vt(3)))
    s('buffer_atomic_add v%d, v%d, s[%d:%d], 0 offen' % (CNT, T0, SD, SD + 3))
    s.add(rd_k(1, Kt(1)))
    for i in range(35):
        if i < 34: s.add(sm_exp(i))
        else: s('s_nop 0')
        if i > 0: s.add(sm_post(i - 1, 0))
    return s

def capped(o, groups):
    if not o.cap: return groups
    out = []
    for g in groups:
        k = [i for i, x in enumerate(g) if x.kind == 'dma'][0]
        out.append(g[:k] + [I('s_waitcnt vmcnt(%d)' % o.cap)] + g[k:])
    return out

def step(s, o, t, d, dmas, wtags, zero=False, last=False, extra1=None, dmas1=None):
    par = t & 1
    mf = qk_list(True) + pv_list(par ^ 1, VB, zero)
    fill = {g: [] for g in range(80)}
    for g, l in spread(rd_v(VB, (t - 1) % 4, Vt(d - 1)), [1, 5, 9, 13, 17, 21, 25, 29]).items(): fill[g] += l
    if last:
        for g, l in spread(rd_v(KB, t % 4, Vt(d)), [45, 49, 53, 57, 61, 65, 69, 73]).items(): fill[g] += l
    else:
        for g, l in spread(rd_k((t + 1) % 4, Kt(d + 1)), [45, 49, 53, 57, 61, 65, 69, 73]).items(): fill[g] += l
    if dmas:
        n = len(dmas)
        for g, l in spread(dmas, [42 + 2 * ((19 * i) // n // 1) for i in range(n)]).items(): fill[g] += l
    if dmas1:
        for g, l in spread(dmas1, [2, 12, 22, 32]).items(): fill[g] += l
    if extra1:
        for g, l in spread(extra1, list(range(33, 40))).items(): fill[g] += l
    for g in range(80):
        if g == 0: s.wait(regs=regs('a', KB, 32))
        if g == 40: s.wait(regs=regs('a', VB, 32))
        s.add(mf[g])
        if g == 40:
            s.wait(tags=wtags)
            s('s_barrier')
        s.add(sm_gap(g, par))
        s.add(fill[g])

def std_step(s, o, t, d, zero=False):
    if o.vph1: step(s, o, t, d, capped(o, dma_k(o, t % 4, Kt(d + 4))), [Kt(d + 1), Vt(d)], zero, dmas1=capped(o, dma_v(o, (t - 2) % 4, Vt(d + 2))))
    else: step(s, o, t, d, capped(o, dma_k(o, t % 4, Kt(d + 4)) + dma_v(o, (t - 1) % 4, Vt(d + 3))), [Kt(d + 1), Vt(d)], zero)

def gen_attn(o):
    s1 = Seg('step1')
    std_step(s1, o, 1, 1, zero=True)
    s1('s_mov_b32 s%d, 0' % sCNT)
    body = Seg('body')
    body.label('L_body')
    for i in range(4):
        std_step(body, o, 2 + i, i)
        if i == 0 and o.pfo:
            body('s_cmp_lg_u32 s%d, 6' % sCNT)
            body('s_cbranch_scc1 L_nopf')
            body('v_lshlrev_b32 v%d, 3, v%d' % (T0 + 1, LANE16))
            body('s_lshl_b32 s3, s39, 15'); body('s_lshl_b32 s36, s%d, 13' % sW); body('s_add_u32 s3, s3, s36')
            it = I('buffer_load_dword v%d, v%d, s[%d:%d], s3 offen' % (DUM, T0 + 1, SWO, SWO + 3)); it.kind = 'other'; body.add(it)
            body.label('L_nopf')
    body('s_add_u32 s%d, s%d, 1' % (sCNT, sCNT))
    body('s_cmp_lt_u32 s%d, 7' % sCNT)
    body('s_cbranch_scc1 L_body')
    tail = Seg('tail')
    pre = Seg('t')
    t0 = DWO
    pre('v_lshrrev_b32 v%d, 8, v%d' % (t0 + 1, DV))
    pre('v_and_b32 v%d, 0x70, v%d' % (t0, DV))
    pre('v_lshl_add_u32 v%d, v%d, 10, v%d' % (t0, t0 + 1, t0))
    pre('v_bfe_u32 v%d, v%d, 7, 1' % (t0 + 1, DV))
    pre('v_mul_u32_u24 v%d, 0x20200, v%d' % (t0 + 1, t0 + 1))
    pre('v_add_u32 v%d, v%d, v%d' % (t0, t0, t0 + 1))
    pre('v_xor_b32 v%d, 0x20200, v%d' % (t0 + 1, t0))
    pre('v_add_u32 v%d, %d, v%d' % (t0 + 2, 2 * 3072, t0))
    pre('v_add_u32 v%d, %d, v%d' % (t0 + 3, 3 * 3072, t0 + 1))
    pre('v_add_u32 v%d, %d, v%d' % (t0 + 1, 3072, t0 + 1))
    for t in range(4): pre('v_xor_b32 v%d, 0x20000, v%d' % (t0 + 4 + t, t0 + t))
    pre('s_lshl_b32 s%d, s%d, 3' % (sA, sG))
    cnt = [[I('buffer_load_dword v%d, off, s[%d:%d], s%d offset:128 sc1' % (CNT, SD, SD + 3, sA), tag='cnt')]]
    step(tail, o, 30, 30, cnt + dma_wo(o, 0) + dma_wo(o, 1), [Kt(31), Vt(30), Kt(32)], extra1=pre.items)
    step(tail, o, 31, 31, dma_wo(o, 2) + dma_wo(o, 3), [Vt(31), Kt(33), 'cnt'] + ([] if o.vph1 else [Vt(32)]), last=True)
    mf = pv_list(1, KB)
    tail.wait(regs=regs('a', KB, 32))
    for g in range(40):
        tail.add(mf[g])
        if g == 0: tail('s_barrier')
        if g < 12: tail.add(sm_gap(g, 0))
    stamp(tail, o, 5)
    return s1, body, tail

def gen_epi(o):
    s = Seg('epi')
    R = NM
    rowred(s, [L + j for j in range(5)], [90 + j for j in range(5)], 'v_add_f32')
    for j in range(5):
        s('v_cmp_nge_f32 %s, s%d, v%d' % (sr(sM0 if j == 0 else sM1, 2), sTHR, L + j))
        s('v_rcp_f32 v%d, v%d' % (R + 2 * j, L + j))
        if j: s('s_or_b64 %s, %s, %s' % (sr(sM0, 2), sr(sM0, 2), sr(sM1, 2)))
    s('s_cmp_lg_u64 %s, 0' % sr(sM0, 2))
    s('s_cselect_b32 s3, 1, 0')
    for j in range(5): s('v_mov_b32 v%d, v%d' % (R + 2 * j + 1, R + 2 * j))
    s('v_mov_b32 v95, s3')
    s('s_lshl_b32 s3, s%d, 2' % sW); s('s_add_u32 s3, s3, 0x%x' % FLG)
    s('v_mov_b32 v96, s3')
    tg = lambda n: (lambda c: '%s%d' % (n, c.get('redo', 0)))
    s('ds_write_b32 v96, v95', lds=(lambda c: (FLG, FLG + 16, ev(tg('flg'), c))))
    s('s_mul_i32 s3, s%d, 20480' % sW); s('s_add_u32 s3, s3, 0x%x' % EX)
    s('v_add_u32 v97, s3, v%d' % LANE16)
    s('s_xor_b32 s3, s%d, 2' % sW); s('s_mul_i32 s3, s3, 20480'); s('s_add_u32 s3, s3, 0x%x' % EX)
    s('v_add_u32 v98, s3, v%d' % LANE16)
    exr = (lambda c: (EX, EX + 81920, ev(tg('ex'), c)))
    for j in range(5):
        for sidx in range(4):
            f = 16 * j + 4 * sidx
            for e in range(2):
                k, b = otile(j, 2 * sidx + e)
                if k == 'a':
                    for i in range(4): s('v_accvgpr_read_b32 v%d, a%d' % (90 + i, b + i))
                    b = 90
                s('v_pk_mul_f32 %s, %s, %s' % (vr(b, 2), vr(b, 2), vr(R + 2 * j, 2)))
                s('v_pk_mul_f32 %s, %s, %s' % (vr(b + 2, 2), vr(b + 2, 2), vr(R + 2 * j, 2)))
                s('v_cvt_pk_bf16_f32 v%d, v%d, v%d' % (f + 2 * e, b, b + 1))
                s('v_cvt_pk_bf16_f32 v%d, v%d, v%d' % (f + 2 * e + 1, b + 2, b + 3))
            s('ds_write_b128 v97, %s offset:%d' % (vr(f, 4), 1024 * (4 * j + sidx)), lds=exr)
    s('v_mov_b32 v96, 0x%x' % FLG)
    s.wait(lgkm_all=True, tags=['wo0'])
    s('s_barrier')
    s('ds_read_b128 v[92:95], v96', lds=(lambda c: (FLG, FLG + 16, ev(tg('flg'), c))))
    s('s_mul_i32 s3, s%d, 0x2080' % sP)
    s('v_xor_b32 v84, s3, v%d' % VA)
    for k in range(1, 4): s('v_xor_b32 v%d, %d, v84' % (84 + k, 32 * k))
    for k in range(4): s('v_subrev_u32 v%d, 0x%x, v%d' % (80 + k, V0, 84 + k))
    s('v_readfirstlane_b32 s3, v%d' % CNT)
    s.wait(regs=regs('v', 92, 4))
    s('v_or_b32 v92, v92, v93'); s('v_or3_b32 v92, v92, v94, v95')
    s('s_cmp_lt_u32 s3, 16')
    s('v_readfirstlane_b32 s36, v92')
    s('s_cbranch_scc1 L_cntspin')
    s.label('L_cntok')
    s('s_andn2_b32 s36, s36, s%d' % sREDO)
    s('s_cbranch_scc1 L_redo')
    stamp(s, o, 6)
    return s

def gen_spin(s, name, back, load, cond):
    s.label(name)
    s('s_mov_b32 s%d, 0' % sCNT)
    s.label(name + '_l')
    s('s_sleep %d' % 4)
    s(load)
    s('s_waitcnt vmcnt(0)')
    s('s_add_u32 s%d, s%d, 1' % (sCNT, sCNT))
    s('s_cmp_gt_u32 s%d, 0x40000' % sCNT)
    s('s_cbranch_scc1 %s' % back)
    for l in cond: s(l.replace('@', name + '_l'))
    s('s_branch %s' % back)

def gen_redo(o):
    s = Seg('redo')
    s.label('L_redo')
    s('s_mov_b32 s%d, 1' % sREDO)
    s('s_waitcnt vmcnt(0) lgkmcnt(0)')
    s('s_barrier')
    s('v_lshrrev_b32 v%d, 4, v%d' % (T0, LANE16))
    s('v_and_b32 v%d, 15, v%d' % (T0 + 1, T0))
    s('v_and_b32 v%d, 48, v%d' % (T0, T0))
    s('v_lshl_add_u32 v%d, v%d, 8, v%d' % (T0, T0 + 1, T0))
    s('v_add_u32 v%d, 0x1000, v%d' % (T0 + 1, T0))
    for j in range(5): s('v_mov_b32 v%d, 0xff800000' % (MX + j))
    s('s_mov_b32 s%d, 0' % sA)
    lp = Seg('redo_loop')
    lp.label('L_redo_loop')
    for kb in range(2):
        for k in range(4): lp('buffer_load_dwordx4 %s, v%d, s[%d:%d], s%d offen offset:%d' % (ar(KB + 4 * (4 * kb + k), 4), T0 + kb, SK, SK + 3, sA, 64 * k))
    lp('s_waitcnt vmcnt(0)')
    lp.add(qk_list(False))
    lp('s_nop 7')
    for j in range(5): max8(lp, j, MX + j, True)
    lp('s_add_u32 s%d, s%d, 0x2000' % (sA, sA))
    lp('s_cmp_lt_u32 s%d, 0x40000' % sA)
    lp('s_cbranch_scc1 L_redo_loop')
    e = Seg('redo_end')
    set_nm(e)
    e('s_lshl_b32 s3, s%d, 12' % sHF); e('s_sub_u32 s%d, s3, 0x2000' % sOK); e('s_mov_b32 s%d, s%d' % (sOV, sOK))
    for i in range(4):
        e.add(dma_k(o, i, Kt(i)))
        if i < 3: e.add(dma_v(o, i, Vt(i)))
    e('v_mov_b32 v%d, 0x40000000' % T0)
    e.wait(tags=[Kt(0)])
    e('s_barrier')
    e.add(rd_k(0, Kt(0)))
    e.wait(regs=regs('a', KB, 32))
    e.add(qk_list(True))
    e('s_nop 7')
    e('s_branch L_s0')
    return s, lp, e

E0V, E1V = 136, 0
OWN = 0
PO = 88
AD, OD, IA, PL, AC, C10, C01 = 216, 217, 218, 219, 224, 220, 221
def etile(c, jn, j):
    return (E1V if c & 1 else E0V) + 8 * (5 * (jn >> 1) + j) + 4 * (jn & 1)
def abuf(p): return (112 + 4 * p) if p < 8 else (224 + 4 * (p - 8))
def poll_txt(): return 'buffer_load_dword v%d, v%d, s[%d:%d], 0 offen sc1' % (PL, IA, SF, SF + 3)
def flag_ops(o, c):
    return [I('v_mov_b32 v89, %d' % (c + 1)), I('buffer_store_dword v89, v%d, s[%d:%d], 0 offen %s' % (FLA, SF, SF + 3, o.fl_pol))]
def red_addr(o):
    s = Seg('t')
    s('s_lshl_b32 s3, s%d, 4' % sG); s('s_add_u32 s3, s3, s38'); s('s_lshl_b32 s3, s3, %d' % (4 + o.ibs))
    s('v_lshrrev_b32 v240, 6, v%d' % LANE16); s('v_lshlrev_b32 v240, %d, v240' % o.ibs); s('v_bfe_u32 v241, v%d, 4, 2' % LANE16)
    s('v_lshl_add_u32 v240, v241, 2, v240'); s('v_add_u32 v%d, s3, v240' % IA)
    s('v_lshrrev_b32 v240, 4, v%d' % LANE16)
    s('v_lshrrev_b32 v241, 3, v240')
    s('v_and_b32 v242, 7, v240')
    s('s_and_b32 s3, s38, 3'); s('s_mul_i32 s3, s3, 5')
    s('v_add_u32 v243, s3, v241')
    s('v_lshl_add_u32 v244, v243, 3, v242')
    s('v_lshrrev_b32 v245, 1, v243')
    s('v_and_b32 v246, 15, v244')
    s('v_lshlrev_b32 v246, 4, v246')
    s('v_lshl_add_u32 v246, v245, 10, v246')
    s('s_lshr_b32 s3, s38, 2')
    s('s_lshr_b32 s36, s3, 1'); s('s_lshl_b32 s36, s36, 3'); s('s_and_b32 s3, s3, 1'); s('s_add_u32 s36, s36, s3')
    s('s_mul_i32 s3, s36, 10240'); s('s_lshl_b32 s62, s%d, 8' % sW); s('s_add_u32 s3, s3, s62')
    s('v_cmp_gt_u32 vcc, 40, v240')
    s('v_add_u32 v246, s3, v246')
    s('v_mov_b32 v247, 0x40000000')
    s('v_cndmask_b32 v%d, v247, v246, vcc' % AD)
    s('s_mul_i32 s3, s39, %d' % (160 * 2048)); s('s_lshl_b32 s62, s37, 10'); s('s_add_u32 s3, s3, s62')
    s('s_lshl_b32 s62, s36, 6'); s('s_add_u32 s3, s3, s62'); s('s_lshl_b32 s62, s%d, 3' % sW); s('s_add_u32 s3, s3, s62')
    s('v_lshlrev_b32 v244, 11, v244'); s('v_add_u32 v244, s3, v244')
    s('v_cndmask_b32 v%d, v247, v244, vcc' % OD)
    s('v_mov_b32 v%d, 0x3f80' % C10); s('v_mov_b32 v%d, 0x3f800000' % C01)
    return s.items

def gen_op(o):
    s = Seg('op')
    exr = (lambda c: (EX, EX + 81920, 'ex%d' % c.get('redo', 0)))
    def reads_for(u, kk):
        base = OSLOT[u % 8]
        areg, imm = (80, base) if base < V0 else (84, base - V0)
        return rd_tr(KB + 16 * ((2 * u + kk) & 1), areg, 4, imm + 8192 * kk, (base, base + 16384, 'wo%d' % u))
    def conv(c):
        out = []
        for a in range(2):
            for j in range(5):
                b = etile(c, 2 * a, j)
                cv = [I('v_cvt_pk_bf16_f32 v%d, v%d, v%d' % (b + i, b + 2 * i, b + 2 * i + 1)) for i in range(4)]
                out.append(cv[:2]); out.append(cv[2:])
                out.append([I('s_mov_b32 s%d, 0x%x' % (sA, (20 * c + 10 * a + j) * 1024)),
                            I('buffer_store_dwordx4 %s, v%d, s[%d:%d], s%d offen %s' % (vr(b, 4), PO, SP_, SP_ + 3, sA, o.st_pol), tag='st%d' % c)])
        return out
    s('s_mov_b32 s%d, 0' % sREDO)
    s.add(reads_for(0, 0))
    part = [I('ds_read_b128 %s, v98 offset:%d' % (ar(PART + 4 * f, 4), 1024 * f), lds=exr) for f in range(20)]
    own = [I('ds_read_b128 %s, v97 offset:%d' % (ar(OWN + 4 * f, 4), 1024 * f), lds=exr) for f in range(20)]
    s('s_mul_i32 s3, s%d, 80' % sP); s('s_mul_i32 s36, s%d, 5' % sHF); s('s_add_u32 s3, s3, s36'); s('s_lshl_b32 s3, s3, 10')
    s('v_add_u32 v%d, s3, v%d' % (PO, LANE16))
    extra = [[x] for x in part + own]
    vq = []
    ra = red_addr(o)
    for u in range(16):
        c, phi, dh = u >> 2, (u >> 1) & 1, u & 1
        tstamp(s, o, 'o', u)
        for kk in range(2):
            ks = 2 * u + kk
            buf = ks & 1
            first = (u & 3) == 0 and kk == 0
            sidx = 2 * dh + kk
            mf = []
            for jn in range(4):
                for j in range(5):
                    d = vr(etile(c, jn, j), 4)
                    if phi: bf = ar(PART + 16 * j + 4 * sidx, 4)
                    elif c == 0: bf = vr(16 * j + 4 * sidx, 4)
                    else: bf = ar(OWN + 16 * j + 4 * sidx, 4)
                    mf.append(mfma(d, ar(KB + 16 * buf + 4 * jn, 4), bf, '0' if first else d))
            need = regs('a', KB + 16 * buf, 16)
            bar = None
            if kk == 1:
                m = u + 1
                new = []
                if m == 1: new += dma_wo(o, 4)
                if m == 2:
                    need = need + regs('a', PART, 80) + regs('a', OWN, 80)
                    new += dma_wo(o, 5) + dma_wo(o, 6) + dma_wo(o, 7)
                if u + 8 < 16: new += dma_wo(o, u + 8)
                if m < 16:
                    bar = dict(tags=['wo%d' % m])
                    barrier_hooks.append(lambda new=new: vq.extend(new))
                rds = reads_for(m, 0) if m < 16 else []
            else:
                rds = reads_for(u, 1)
            if ks == 4: extra += [ra[i:i + 2] for i in range(0, len(ra), 2)]
            if ks % 8 == 1 and c > 0: extra += conv(c - 1)
            if not o.early:
                for cc in range(2):
                    if ks == 8 * (cc + 1) + o.flagat: extra.insert(0, [Wait(tags=['st%d' % cc])] + flag_ops(o, cc))
                if ks == 30: extra.append([I(poll_txt(), tag='poll')])
            else:
                if ks == 8 + o.flagat: extra.insert(0, [Wait(tags=['st0'])] + flag_ops(o, 0))
                if ks == 21: extra.append([I(poll_txt(), tag='poll')])
                if ks == 24:
                    assert not extra
                    extra += [[Wait(regs=[('v', PL)])] + flag_ops(o, 1) + [I('v_cmp_gt_u32 vcc, 1, v%d' % PL), I('s_cbranch_vccnz L_spin1'), Label('L_got1')]]
                    extra += [[I('s_mov_b32 s%d, 0x%x' % (sB, PST * p)), I('buffer_load_dwordx4 %s, v%d, s[%d:%d], s%d offen %s' % (ar(abuf(p), 4), AD, SG, SG + 3, sB, o.rd_pol))] for p in range(16)]
                if ks == 29: extra.append([I(poll_txt(), tag='poll')])
            gemm_kstep(s, mf, need, rds, bar, extra, o.oevery, vq)
            if (u & 3) == 3 and kk == 1: stamp(s, o, 7 + c)
    assert not extra and not vq, (len(extra), len(vq))
    s('s_nop 3')
    for g in conv(3): s.add(g)
    stamp(s, o, 11)
    return s

def gen_red(o):
    s = Seg('red')
    poll = poll_txt()
    BUF = [136, 0, 136, 0] if not o.early else [0, 136, 0, 136]
    def check(n):
        s.wait(regs=[('v', PL)])
        s('v_cmp_gt_u32 vcc, %d, v%d' % (n, PL))
        s('s_cbranch_vccnz L_spin%d' % n)
        s.label('L_got%d' % n)
    if o.fulld:
        s('s_mul_i32 s3, s38, 2560'); s('s_lshl_b32 s36, s%d, 9' % sW); s('s_add_u32 s3, s3, s36')
        s('v_and_b32 v240, 0x1ff, v%d' % LANE16); s('v_lshrrev_b32 v241, 9, v%d' % LANE16); s('v_mul_u32_u24 v241, 163840, v241')
        s('v_add3_u32 v%d, v240, v241, s3' % AD)
    def loads(c):
        for p in range(16 if not o.fulld else 10):
            if c < 2 and p % 4 == 0: tstamp(s, o, 'z', 1 + p // 4 + 8 * c)
            if o.fulld: s('s_mov_b32 s%d, 0x%x' % (sA, 163840 * 2 * (p % 8) + 40960 * c + (512 if p >= 8 else 0)))
            else: s('s_mov_b32 s%d, 0x%x' % (sA, PST * p + 20480 * c))
            s('buffer_load_dwordx4 %s, v%d, s[%d:%d], s%d offen %s' % (vr(BUF[c] + 4 * p, 4), AD, SG, SG + 3, sA, o.rd_pol))
    def summ(c):
        a = AC + 8 * (c & 1)
        for i in range(8): s('v_mov_b32 v%d, 0' % (a + i))
        for p in range(16 if not o.fulld else 10):
            if p % 4 == 0: s.wait(regs=regs('v', BUF[c] + 4 * p, 16))
            for d in range(4):
                x = BUF[c] + 4 * p + d
                s('v_dot2c_f32_bf16 v%d, v%d, v%d' % (a + 2 * d, x, C10)); s('v_dot2c_f32_bf16 v%d, v%d, v%d' % (a + 2 * d + 1, x, C01))
        s('s_nop 2')
        for d in range(4): s('v_cvt_pk_bf16_f32 v%d, v%d, v%d' % (a + d, a + 2 * d, a + 2 * d + 1))
    def outst(c):
        a = AC + 8 * (c & 1)
        s('buffer_store_dwordx2 %s, v%d, s[%d:%d], 0 offen offset:%d %s' % (vr(a, 2), OD, SO, SO + 3, 128 * c, o.out_pol))
        s('buffer_store_dwordx2 %s, v%d, s[%d:%d], 0 offen offset:%d %s' % (vr(a + 2, 2), OD, SO, SO + 3, 128 * c + 32, o.out_pol))
    T = lambda i: tstamp(s, o, 'r', i)
    if not o.early:
        T(0); tstamp(s, o, 'z', 0)
        s.wait(regs=[('v', PL)], tags=['st2'])
        T(1)
        s.add(flag_ops(o, 2))
        check(2)
        T(2)
        stamp(s, o, 12)
        loads(0)
        T(3); tstamp(s, o, 'z', 5)
        s.wait(tags=['st3'])
        T(4); tstamp(s, o, 'z', 6)
        s.add(flag_ops(o, 3))
        tstamp(s, o, 'z', 7)
        s(poll, tag='poll')
        tstamp(s, o, 'z', 8)
        loads(1)
        T(5); tstamp(s, o, 'z', 13)
        summ(0)
        T(6); tstamp(s, o, 'z', 14)
        check(3)
        T(7)
        stamp(s, o, 13)
        s(poll, tag='poll')
        loads(2)
        outst(0)
        T(8)
        summ(1)
        T(9)
        check(4)
        T(10)
        stamp(s, o, 14)
        loads(3)
        outst(1)
        T(11)
        summ(2); outst(2)
        T(12)
        summ(3); outst(3)
        T(13)
    else:
        T(0)
        s.wait(regs=[('v', PL)], tags=['st2'])
        T(1)
        s.add(flag_ops(o, 2))
        check(2)
        T(2)
        stamp(s, o, 12)
        loads(1)
        T(3)
        s.wait(regs=[('a', abuf(p) + i) for p in range(16) for i in range(4)])
        for p in range(16):
            for i in range(4): s('v_accvgpr_read_b32 v%d, a%d' % (4 * p + i, abuf(p) + i))
        s.wait(tags=['st3'])
        T(4)
        s.add(flag_ops(o, 3))
        s(poll, tag='poll')
        summ(0); outst(0)
        T(5)
        check(3)
        T(6)
        stamp(s, o, 13)
        s(poll, tag='poll')
        loads(2)
        T(7)
        summ(1); outst(1)
        T(8)
        check(4)
        T(9)
        stamp(s, o, 14)
        loads(3)
        T(10)
        summ(2); outst(2)
        T(11)
        summ(3); outst(3)
        T(12); T(13)
    if o.trace: s('s_waitcnt vmcnt(0)'); T(14); T(15); tstamp(s, o, 'z', 15)
    if o.stamps or o.trace:
        s('s_waitcnt vmcnt(0)')
        stamp(s, o, 15)
    s.label('L_done')
    s('s_endpgm')
    sp = Seg('spins')
    if not o.early: sp.label('L_got1')
    for n in (1, 2, 3, 4): gen_spin(sp, 'L_spin%d' % n, 'L_got%d' % n, poll, ['v_cmp_gt_u32 vcc, %d, v%d' % (n, PL), 's_cbranch_vccnz @'])
    sp.label('L_cntspin')
    sp('s_lshl_b32 s%d, s%d, 3' % (sA, sG))
    gen_spin(sp, 'L_cntspin2', 'L_cntok', 'buffer_load_dword v%d, off, s[%d:%d], s%d offset:128 sc1' % (CNT, SD, SD + 3, sA),
             ['v_readfirstlane_b32 s3, v%d' % CNT, 's_cmp_lt_u32 s3, 16', 's_cbranch_scc1 @'])
    return s, sp

def desc(name, vgpr, accum, sgpr):
    return '''.amdhsa_kernel %s
  .amdhsa_next_free_vgpr %d
  .amdhsa_next_free_sgpr %d
  .amdhsa_accum_offset %d
  .amdhsa_group_segment_fixed_size 0
  .amdhsa_kernarg_size 104
  .amdhsa_user_sgpr_count 2
  .amdhsa_user_sgpr_kernarg_segment_ptr 1
  .amdhsa_system_sgpr_workgroup_id_x 1
  .amdhsa_float_denorm_mode_32 3
.end_amdhsa_kernel
''' % (name, vgpr, sgpr, accum)

def build(o, path):
    o.kvat_l = [int(x) for x in o.kvat.split(',')]
    entry, q, qf, mi, s0 = gen_entry(o), gen_q(o), gen_qfin(o), gen_minit(o), gen_s0(o)
    s1, body, tail = gen_attn(o)
    epi = gen_epi(o)
    r0, r1, r2 = gen_redo(o)
    op = gen_op(o)
    red, spins = gen_red(o)
    traces = []
    for redo in (0, 1):
        tr = [(entry, {}), (q, {}), (qf, {}), (mi, {})]
        for ps in range(redo + 1):
            if ps: tr += [(r0, {}), (r1, {}), (r1, {}), (r2, dict(I=0))]
            tr += [(s0, dict(I=0)), (s1, dict(I=0))]
            for it in range(7): tr.append((body, dict(I=2 + 4 * it)))
            tr += [(tail, dict(I=0)), (epi, dict(redo=ps))]
        tr += [(op, dict(redo=redo)), (red, {})]
        traces.append(('redo%d' % redo, tr))
    phase = {'q': [q], 'a': [s1, body], 'o': [op]}
    for ch in o.nowait:
        for sg in phase[ch]:
            for it in sg.items:
                if it.kind == 'ph': it.tags = set()
    for ch in o.nodma:
        for sg in phase[ch]: sg.items = [it for it in sg.items if it.kind != 'dma']
    resolve([t for _, t in traces])
    allerr = []
    for name, tr in traces: allerr += check(tr, name)[0]
    if o.nowait or o.nodma: allerr = []
    for e in allerr[:40]: print('ERR', e)
    if allerr: print(len(allerr), 'errors')
    hdr = open('concat_heads__gqa_block_cached__gqa_block_cached__near_ridge.s.ref').read().split('; Override')[0]
    txt = hdr + '; @launch grid=(256,1,1) block=(256,1,1) lds=163840\n'
    txt += '.amdgcn_target "amdgcn-amd-amdhsa--gfx950"\n.text\n.globl %s\n.p2align 8\n.type %s,@function\n%s:\n' % (KN, KN, KN)
    for sg in [entry, q, qf, mi, s0, s1, body, tail, epi, op, red, spins, r0, r1, r2]: txt += sg.text()
    txt += 'L_code_end:\n'
    txt += '.section .rodata,"a"\n.p2align 6\n' + desc(KN, 512, 256, 100)
    open(path, 'w').write(txt)
    return not allerr

if __name__ == '__main__':
    o = Opt()
    path = sys.argv[1]
    for kv in sys.argv[2:]:
        k, v = kv.split('=')
        cur = getattr(o, k)
        setattr(o, k, int(v) if isinstance(cur, int) else v.replace('+', ' '))
    ok = build(o, path)
    print('written', path, 'ok' if ok else 'WITH ERRORS')
```

```python
import sys, struct, math
from fw import *

KN = "concat_heads__gqa_block_cached__gqa_block_cached__near_ridge_kernel"
WS_BYTES = 287834112
PST = 163840 + 256
INB = 256 * PST
def f2u(x): return struct.unpack('<I', struct.pack('<f', x))[0]

class Opt:
    kv_pol = 'nt'
    w_pol = ''
    st_pol = 'sc1'
    rd_pol = 'sc1'
    fl_pol = 'sc1'
    stamps = 0
    cyc = 0
    dbgst = 0
    codepf = 1
    force_redo = 0
    nowait = ''
    nodma = ''
    dmaburst = 0
    qevery = 3
    kvfin = 0
    ldevery = 5
    out_pol = ''
    rot = 1
    early = 0
    cap = 4
    vph1 = 1
    ibs = 4
    tlb = 0
    fulld = 0
    flagat = 8
    par = 1
    pfo = 1
    trace = ''
    kvat = '5,7,9,11'
    oevery = 1
    pfw = 0
    pfs = 7

K0, V0 = 0, 98304
XBUF = lambda m: 32768 + 20480 * (m & 1)
W0 = 81920
EX = 16384
FLG = V0 + 3 * 16384
KS = lambda i: K0 + 16384 * (i % 4)
VS = lambda i: V0 + 16384 * (i % 4)
WS_ = lambda n: (W0, V0 + 32768, V0 + 49152)[n % 3]
OSLOT = [KS(0), VS(1), VS(2), VS(0), VS(3), KS(1), KS(2), KS(3)]

S, P, NM, L = 0, 40, 80, 100
KA, VA, DK, DV, LANE16 = 105, 109, 117, 121, 123
T0 = 124
DWO = 124
CNT, FLA, DUM = 132, 133, 134
OV = 136
XAD, WQ0, DX, DWQ = 40, 44, 52, 53
Q, KB, VB, OA = 0, 80, 112, 144
XF = 144
PART = 144
sW, sP, sREDO, sCNT = 4, 5, 6, 7
SX, SWQ, SK, SV, SWO, SP_ = 8, 12, 16, 20, 24, 28
sOK, sOV, sMK, sMV = 32, 33, 34, 35
sBR, sHP, sB_ = 37, 38, 39
sWS = 40
sC, sTHR = 54, 56
sA, sB = 58, 59
sW1K, sHF = 60, 61
sST = 64
SF, SD, SO = 72, 76, 80
sG = 84
SG = 96
sM0, sM1 = 86, 88
sXO, sWO_ = 90, 91

def vr(b, n=1): return 'v%d' % b if n == 1 else 'v[%d:%d]' % (b, b + n - 1)
def ar(b, n=1): return 'a%d' % b if n == 1 else 'a[%d:%d]' % (b, b + n - 1)
def sr(b, n=1): return 's%d' % b if n == 1 else 's[%d:%d]' % (b, b + n - 1)
def mfma(d, a, b, c): return I('v_mfma_f32_16x16x32_bf16 %s, %s, %s, %s' % (d, a, b, c))
def otile(j, db):
    n = 8 * j + db
    return ('v', OV + 4 * n) if n < 30 else ('a', OA + 4 * (n - 30))
def oreg(j, db):
    k, b = otile(j, db)
    return '%s[%d:%d]' % (k, b, b + 3)
def qacc(db, j):
    n = 5 * db + j
    return OV + 4 * n if n < 30 else 4 * (n - 30)

def tstamp(s, o, ph, idx):
    if o.trace == ph and idx < 16:
        s('%s s[%d:%d]' % ('s_memtime' if o.cyc else 's_memrealtime', sST + 6, sST + 7)); s('s_waitcnt lgkmcnt(0)')
        s('v_writelane_b32 v135, s%d, %d' % (sST + 6, idx))
def stamp(s, o, idx):
    if o.trace:
        if idx == 15:
            st = sST
            s('s_mov_b32 s%d, s%d' % (st, sWS)); s('s_mov_b32 s%d, s%d' % (st + 1, sWS + 1))
            s('s_mov_b32 s%d, 0x%x' % (st + 2, WS_BYTES)); s('s_mov_b32 s%d, 0x20000' % (st + 3))
            s('s_mul_i32 s%d, s2, %d' % (st + 4, 128)); s('s_add_u32 s%d, s%d, 0x%x' % (st + 4, st + 4, WS_BYTES - 256 * 128))
            s('s_min_u32 s3, s%d, 1' % sW); s('s_lshl_b32 s3, s3, 30'); s('s_add_u32 s%d, s%d, s3' % (st + 4, st + 4))
            s('v_mbcnt_lo_u32_b32 v0, -1, 0'); s('v_lshlrev_b32 v0, 3, v0'); s('v_mov_b32 v2, v135'); s('v_mov_b32 v3, 0')
            s('s_mov_b64 exec, 0xffff')
            s('buffer_store_dwordx2 v[2:3], v0, s[%d:%d], s%d offen' % (st, st + 3, st + 4))
        return
    if not o.stamps: return
    if o.dbgst:
        if idx not in (0, 2, 3, 5, 6, 11, 13, 15): return
        idx = (0, 2, 3, 5, 6, 11, 13, 15).index(idx)
    st = sST
    t = 96
    r0 = 134
    a, b = 'v%d' % r0, 'v%d' % (r0 + 1)
    if o.dbgst:
        s('s_memrealtime s[%d:%d]' % (st + 4, st + 5))
        s('s_memtime s[%d:%d]' % (st + 6, st + 7))
        s('s_waitcnt lgkmcnt(0)')
        s('v_mov_b32 %s, s%d' % (a, st + 4)); s('v_mov_b32 %s, s%d' % (b, st + 6))
        s('s_sub_u32 s%d, s2, %d' % (st + 4, o.dbgst - 1))
        s('s_mul_i32 s%d, s%d, 0x1000' % (st + 4, st + 4))
        s('s_add_u32 s%d, s%d, 0x%x' % (st + 4, st + 4, idx * 8))
        s('s_nop 0')
        s('buffer_store_dwordx2 v[%d:%d], off, s[%d:%d], s%d' % (r0, r0 + 1, SD, SD + 3, st + 4), dummy=True)
        return
    s('%s s[%d:%d]' % ('s_memtime' if o.cyc else 's_memrealtime', st + 4, st + 5))
    s('s_waitcnt lgkmcnt(0)')
    if idx == 0: s('s_mov_b64 s[%d:%d], s[%d:%d]' % (st + 4, st + 5, st + 6, st + 7))
    s('s_mov_b32 s%d, s%d' % (st, sWS)); s('s_mov_b32 s%d, s%d' % (st + 1, sWS + 1))
    s('s_mov_b32 s%d, 0x%x' % (st + 2, WS_BYTES)); s('s_mov_b32 s%d, 0x20000' % (st + 3))
    s('v_mov_b32 %s, s%d' % (a, st + 4), dummy=True); s('v_mov_b32 %s, s%d' % (b, st + 5), dummy=True)
    s('s_mul_i32 s%d, s2, %d' % (st + 4, o.stamps * 8))
    s('s_add_u32 s%d, s%d, 0x%x' % (st + 4, st + 4, WS_BYTES - 256 * o.stamps * 8 + idx * 8))
    s('s_nop 0')
    s('buffer_store_dwordx2 v[%d:%d], off, s[%d:%d], s%d' % (r0, r0 + 1, st, st + 3, st + 4), dummy=True)

def dma(voff, srd, soff, imm, pol, tag, lo):
    return I('buffer_load_dwordx4 v%d, s[%d:%d], s%d offen offset:%d %s lds' % (voff, srd, srd + 3, soff, imm, pol),
             tag=tag, lds=(lambda c, f=tag, lo=lo: (lo[0], lo[1], ev(f, c))))
def dma_x(o, m):
    buf = XBUF(m)
    out = [[I('s_add_u32 m0, s%d, 0x%x' % (sW1K, buf + 4096 * j)), I('s_add_u32 s%d, s%d, 0x%x' % (sA, sXO, 32768 * j)),
            dma(DX, SX, sA, 0, o.w_pol, 'x%d' % m, (buf, buf + 20480))] for j in range(5)]
    out[4] += [I('s_add_u32 s%d, s%d, 128' % (sXO, sXO)), I('s_and_b32 s%d, s%d, 0x3ff' % (sXO, sXO))]
    return out
def grp4(pre, mk, post=()):
    out = []
    for t in range(4):
        g = list(pre) if t == 0 else []
        g.append(mk(t))
        if t == 3: g += list(post)
        out.append(g)
    return out
def dma_wq(o, n):
    b = WS_(n)
    return grp4([I('s_add_u32 m0, s%d, 0x%x' % (sMK, b)), I('s_nop 0')],
                lambda t: dma(DWQ + t, SWQ, sWO_, 1024 * t, o.w_pol, 'wq%d' % n, (b, b + 16384)),
                [I('s_add_u32 s%d, s%d, 0x40000' % (sWO_, sWO_)), I('s_and_b32 s%d, s%d, 0x3fffff' % (sWO_, sWO_))])
def dma_k(o, slot, tag):
    b = KS(slot)
    return grp4([I('s_add_u32 m0, s%d, 0x%x' % (sMK, b)), I('s_add_u32 s%d, s%d, 0x2000' % (sOK, sOK))],
                lambda t: dma(DK + t, SK, sOK, 1024 * t, o.kv_pol, tag, (b, b + 16384)))
def dma_v(o, slot, tag):
    b = VS(slot)
    return grp4([I('s_add_u32 m0, s%d, 0x%x' % (sMK, b)), I('s_add_u32 s%d, s%d, 0x2000' % (sOV, sOV))],
                lambda t: dma(DV + (t & 1), SV, sOV, 1024 * t, o.kv_pol, tag, (b, b + 16384)))
def dma_wo(o, u):
    c, phi, dh = u >> 2, (u >> 1) & 1, u & 1
    b = OSLOT[u % 8]
    return grp4([I('s_add_u32 m0, s%d, 0x%x' % (sMK, b)), I('s_lshl_b32 s%d, s%d, 2' % (sB, sMK)),
                 I('s_add_u32 s%d, s%d, 0x%x' % (sB, sB, 65536 * dh + 128 * c))],
                lambda t: dma(DWO + 4 * phi + t, SWO, sB, 1024 * t, o.w_pol, 'wo%d' % u, (b, b + 16384)))

def reg_(lo, tag): return (lambda c, f=tag: (lo, lo + 16384, ev(f, c)))
def rd_k(slot, tag):
    return [I('ds_read_b128 %s, v%d offset:%d' % (ar(KB + 4 * (4 * kb + s), 4), KA + s, 16384 * slot + 4096 * kb), lds=reg_(KS(slot), tag))
            for s in range(4) for kb in range(2)]
def rd_tr(dst, areg, n, imm, region):
    return [I('ds_read_b64_tr_b16 %s, v%d offset:%d' % (ar(dst + 4 * d + 2 * e, 2), areg + d, imm + 4096 * e), lds=region)
            for d in range(n) for e in range(2)]
def rd_v(dst, slot, tag): return rd_tr(dst, VA, 8, 16384 * slot, reg_(VS(slot), tag))

def spread(items, gaps):
    d = {g: [] for g in gaps}
    n, m = len(items), len(gaps)
    for i, it in enumerate(items): d[gaps[i * m // n]].append(it)
    return d

def srd(s, r, lo, hi, off, size):
    if off is None: s('s_mov_b32 s%d, s%d' % (r, lo)); s('s_mov_b32 s%d, s%d' % (r + 1, hi))
    else: s('s_add_u32 s%d, s%d, s%d' % (r, lo, off)); s('s_addc_u32 s%d, s%d, 0' % (r + 1, hi))
    if size is not None: s('s_mov_b32 s%d, 0x%x' % (r + 2, size))
    s('s_mov_b32 s%d, 0x20000' % (r + 3))

def gen_entry(o):
    s = Seg('entry')
    if o.stamps and not o.dbgst: s('%s s[%d:%d]' % ('s_memtime' if o.cyc else 's_memrealtime', sST + 6, sST + 7))
    s('s_cmp_ge_u32 s2, 256')
    s('s_cbranch_scc1 L_done')
    s('s_and_b32 s3, s2, 7')
    s('s_lshr_b32 s36, s2, 3')
    if o.par: s('s_and_b32 s37, s3, 1'); s('s_lshr_b32 s38, s3, 1')
    else: s('s_lshr_b32 s37, s3, 2'); s('s_and_b32 s38, s3, 3')
    s('''s_lshl_b32 s38, s38, 2
         s_and_b32 s39, s36, 3
         s_or_b32 s38, s38, s39
         s_lshr_b32 s39, s36, 2
         s_mul_i32 s3, s37, 40
         s_add_u32 s42, s0, s3
         s_addc_u32 s43, s1, 0
         s_load_dwordx8 s[44:51], s[42:43], 0
         s_load_dwordx2 s[52:53], s[42:43], 32
         s_load_dwordx2 s[40:41], s[0:1], 96
         s_load_dwordx4 s[92:95], s[0:1], 80''')
    s('v_lshrrev_b32 v7, 6, v0')
    s('v_and_b32 v1, 63, v0')
    s('v_readfirstlane_b32 s%d, v7' % sW)
    s('v_lshlrev_b32 v%d, 4, v1' % LANE16)
    s('v_lshrrev_b32 v2, 4, v1')
    s('v_and_b32 v3, 15, v1')
    s('s_lshl_b32 s%d, s%d, 10' % (sW1K, sW))
    s('s_lshl_b32 s%d, s%d, 12' % (sMK, sW))
    s('s_lshr_b32 s%d, s%d, 1' % (sP, sW))
    s('s_and_b32 s%d, s%d, 1' % (sHF, sW))
    s('s_lshl_b32 s3, s%d, 2' % sHF)
    s('v_add_u32 v4, s3, v2')
    s('v_and_b32 v5, 7, v1')
    s('v_xor_b32 v5, v4, v5')
    s('v_lshlrev_b32 v5, 4, v5')
    s('v_lshrrev_b32 v4, 3, v0')
    s('v_lshl_add_u32 v%d, v4, 10, v5' % DX)
    s('v_lshlrev_b32 v6, 1, v2')
    s('v_xor_b32 v6, v6, v3')
    s('v_lshlrev_b32 v6, 4, v6')
    s('s_lshl_b32 s3, s%d, 2' % sHF)
    s('v_add_u32 v4, s3, v2')
    s('v_lshl_add_u32 v4, v4, 13, v6')
    s('s_lshl_b32 s3, s%d, 8' % sP)
    s('v_add_u32 v%d, s3, v4' % DWQ)
    s('v_xor_b32 v4, 0x80, v%d' % DWQ)
    s('v_add_u32 v%d, 0x%x, v4' % (DWQ + 1, 64512))
    s('v_add_u32 v%d, 0x%x, v%d' % (DWQ + 2, 2 * 64512, DWQ))
    s('v_add_u32 v%d, 0x%x, v4' % (DWQ + 3, 3 * 64512))
    if o.rot: s('s_and_b32 s3, s38, 3'); s('s_lshl_b32 s3, s3, 1'); s('s_add_u32 s3, s3, s39'); s('s_and_b32 s3, s3, 7')
    else: s('s_mov_b32 s3, 0')
    s('s_lshl_b32 s%d, s3, 7' % sXO); s('s_lshl_b32 s%d, s3, 19' % sWO_)
    s('s_waitcnt lgkmcnt(0)')
    s('s_mul_i32 s3, s39, 163840'); srd(s, SX, 44, 45, 3, 163840)
    s('s_lshl_b32 s3, s38, 9'); srd(s, SWQ, 50, 51, 3, None); s('s_sub_u32 s%d, 0x400000, s3' % (SWQ + 2))
    srd(s, SD, 94, 95, None, 256)
    stamp(s, o, 0)
    if o.pfw == 2:
        for g in dma_x(o, 0) + dma_wq(o, 0) + dma_wq(o, 1): s.add(g)
    if o.pfw:
        per = 128 >> o.pfs if o.pfs < 7 else 1
        s('v_lshrrev_b32 v7, 2, v0'); s('v_and_b32 v8, 3, v0'); s('v_lshlrev_b32 v8, 7, v8'); s('v_lshl_add_u32 v7, v7, 13, v8')
        s('s_lshl_b32 s3, s39, 19')
        for h in range(per): s('buffer_load_dword v59, v7, s[%d:%d], s3 offen offset:%d' % (SWQ, SWQ + 3, 64 * h), dummy=True)
        s('v_lshlrev_b32 v7, 7, v0')
        s('s_and_b32 s3, s38, 3'); s('s_mul_i32 s3, s3, 40960')
        for h in range(per): s('buffer_load_dword v59, v7, s[%d:%d], s3 offen offset:%d' % (SX, SX + 3, 64 * h), dummy=True)
        s('v_and_b32 v7, 0x1fff, v7'); s('s_add_u32 s3, s3, 0x8000')
        for h in range(per): s('buffer_load_dword v59, v7, s[%d:%d], s3 offen offset:%d' % (SX, SX + 3, 64 * h), dummy=True)
    if o.pfw != 2:
        for g in dma_x(o, 0) + dma_wq(o, 0) + dma_wq(o, 1): s.add(g)
    s('s_mov_b32 s3, 0x%x' % INB); srd(s, SF, sWS, sWS + 1, 3, 256 * (16 << o.ibs))
    s('s_lshl_b32 s%d, s37, 3' % sG); s('s_add_u32 s%d, s%d, s39' % (sG, sG))
    s('s_lshl_b32 s36, s%d, 4' % sG); s('s_add_u32 s36, s36, s38')
    s('s_min_u32 s3, s%d, 1' % sW); s('s_lshl_b32 s3, s3, 30')
    s('s_lshl_b32 s62, s36, %d' % (4 + o.ibs)); s('s_add_u32 s62, s62, s3')
    s('v_lshrrev_b32 v8, 2, v1'); s('v_lshlrev_b32 v8, %d, v8' % (o.ibs - 2)); s('v_and_b32 v9, 3, v1'); s('v_add_lshl_u32 v8, v8, v9, 2')
    s('v_add_u32 v9, s62, v8')
    s('v_mov_b32 v10, 0')
    s('buffer_store_dword v10, v9, s[%d:%d], 0 offen %s' % (SF, SF + 3, o.fl_pol), tag='clr')
    if o.codepf:
        s('s_getpc_b64 s[62:63]')
        s.label('L_pc')
        s('v_lshlrev_b32 v7, 7, v0')
        s('global_load_dword v59, v7, s[62:63]', dummy=True)
        s('v_add_u32 v7, 0x8000, v7')
        s('v_min_u32 v7, L_code_end-L_pc-4, v7')
        s('global_load_dword v59, v7, s[62:63]', dummy=True)
    s('s_mul_i32 s3, s36, %d' % PST); srd(s, SP_, sWS, sWS + 1, 3, 163840)
    s('''s_lshl_b32 s3, s39, 4
         s_add_u32 s3, s3, s38
         s_lshl_b32 s3, s3, 1
         s_add_u32 s3, s3, s%d
         s_lshl_b32 s3, s3, 18''' % sP)
    srd(s, SK, 46, 47, 3, 0x40000); srd(s, SV, 48, 49, 3, 0x40000)
    s('s_lshl_b32 s3, s38, 18'); srd(s, SWO, 52, 53, 3, 0x40000)
    srd(s, SO, 92, 93, None, 8 * 160 * 2048)
    s('s_mul_i32 s3, s%d, %d' % (sG, 16 * PST)); srd(s, SG, sWS, sWS + 1, 3, 16 * PST)
    if o.tlb:
        for r in (SK, SV, SWO): s('buffer_load_dword v59, off, s[%d:%d], 0' % (r, r + 3), dummy=True)
        s('v_mul_u32_u24 v7, %d, v3' % PST); s('s_mov_b32 s3, 163840')
        s('buffer_load_dword v59, v7, s[%d:%d], s3 offen sc1' % (SG, SG + 3), dummy=True)
        s('s_mul_i32 s3, s39, %d' % (160 * 2048))
        s('buffer_load_dword v59, off, s[%d:%d], s3 sc1' % (SO, SO + 3), dummy=True)
    s('s_lshl_b32 s3, s%d, 12' % sHF); s('s_sub_u32 s%d, s3, 0x2000' % sOK); s('s_mov_b32 s%d, s%d' % (sOV, sOK))
    c = math.log2(math.e) / math.sqrt(128.0)
    s('s_mov_b32 s%d, 0x%x' % (sC, f2u(c))); s('s_mov_b32 s%d, 0x%x' % (sC + 1, f2u(c)))
    s('s_mov_b32 s%d, 0x%x' % (sTHR, f2u(2.0 ** 24 if not o.force_redo else 1.0)))
    s('s_mov_b32 s%d, 0' % sREDO)
    s('s_lshl_b32 s3, s%d, %d' % (sG, 8 + o.ibs)); s('s_lshl_b32 s36, s38, %d' % o.ibs); s('s_add_u32 s3, s3, s36')
    s('s_lshl_b32 s36, s%d, 2' % sW); s('s_add_u32 s3, s3, s36')
    s('v_lshlrev_b32 v4, %d, v3' % (4 + o.ibs)); s('v_add_u32 v4, s3, v4')
    s('v_min_u32 v5, 1, v2'); s('v_lshl_add_u32 v%d, v5, 30, v4' % FLA)
    s('v_min_u32 v5, 1, v0'); s('v_lshlrev_b32 v5, 30, v5'); s('s_lshl_b32 s3, s%d, 3' % sG); s('s_add_u32 s3, s3, 128'); s('v_add_u32 v%d, s3, v5' % T0)
    s('v_mov_b32 v%d, 1' % CNT)
    s('v_xor_b32 v4, v2, v3'); s('v_lshlrev_b32 v4, 4, v4')
    s('v_lshl_add_u32 v%d, v2, 8, v4' % DK)
    for t in range(1, 4): s('v_xor_b32 v%d, %d, v%d' % (DK + t, 64 * t, DK))
    s('v_lshl_add_u32 v%d, v2, 8, v6' % DV)
    s('v_xor_b32 v%d, 0x80, v%d' % (DV + 1, DV))
    s('v_lshl_add_u32 v4, v3, 8, v4')
    s('s_lshl_b32 s36, s%d, 13' % sP)
    s('v_add_u32 v%d, s36, v4' % KA)
    for k in range(1, 4): s('v_xor_b32 v%d, %d, v%d' % (KA + k, 64 * k, KA))
    s('v_lshrrev_b32 v4, 1, v3'); s('v_xor_b32 v4, v4, v2'); s('v_lshlrev_b32 v4, 4, v4')
    s('v_lshl_add_u32 v4, v3, 7, v4')
    s('s_mul_i32 s3, s%d, 10240' % sHF)
    s('v_add_u32 v%d, s3, v4' % XAD)
    s('v_xor_b32 v%d, 64, v%d' % (XAD + 1, XAD))
    s('v_lshrrev_b32 v4, 2, v1')
    s('v_and_b32 v5, 7, v4')
    s('v_lshlrev_b32 v5, 5, v5')
    s('v_lshl_add_u32 v5, v4, 8, v5')
    s('v_and_b32 v4, 3, v1')
    s('v_lshl_add_u32 v5, v4, 3, v5')
    s('s_add_u32 s36, s36, 0x%x' % V0)
    s('v_add_u32 v%d, s36, v5' % VA)
    for k in range(1, 8): s('v_xor_b32 v%d, %d, v%d' % (VA + k, 32 * k, VA))
    for k in range(8): s('v_subrev_u32 v%d, 0x4000, v%d' % (WQ0 + k, VA + k))
    stamp(s, o, 1)
    return s

def is_vm(g): return any(x.kind in ('dma', 'vst', 'vld') for x in g)
class Pace:
    since = 99
def gemm_kstep(s, mf, need, reads, barrier, extra, every=1, vq=None):
    n = len(mf)
    rg = list(range(2, 2 + (len(reads) + 1) // 2)) if n <= 20 else list(range(2, 2 + len(reads)))
    rd = spread(reads, rg) if reads else {}
    for g in range(n):
        if g == 0: s.wait(regs=need)
        s.add(mf[g])
        if g == 1 and barrier is not None:
            s.wait(**barrier)
            s('s_barrier')
            for f in barrier_hooks: f()
            del barrier_hooks[:]
        s.add(rd.get(g, []))
        Pace.since += 1
        busy = len(rd.get(g, []))
        if vq and Pace.since >= every and busy < 2:
            s.add(vq.pop(0)); Pace.since = 0
        elif extra and busy < 2 and (not is_vm(extra[0]) or Pace.since >= every):
            if is_vm(extra[0]): Pace.since = 0
            s.add(extra.pop(0))
barrier_hooks = []

def gen_q(o):
    s = Seg('qphase')
    def reads_for(n):
        buf = n & 1
        areg, imm = ((WQ0, 0), (VA, 32768), (VA, 49152))[n % 3]
        w = rd_tr(KB + 32 * buf, areg, 8, imm, (WS_(n), WS_(n) + 16384, 'wq%d' % n))
        xb = XBUF(n >> 1)
        x = [I('ds_read_b128 %s, v%d offset:%d' % (ar(XF + 20 * buf + 4 * j, 4), XAD + (n & 1), xb + 2048 * j), lds=(xb, xb + 20480, 'x%d' % (n >> 1))) for j in range(5)]
        return x + w
    s.wait(tags=['x0', 'wq0'])
    s('s_barrier')
    stamp(s, o, 2)
    s.add(reads_for(0))
    vq = dma_wq(o, 2) + dma_x(o, 1)
    kv = [dma_k(o, 0, 'K0'), dma_v(o, 0, 'V0'), dma_k(o, 1, 'K1'), dma_v(o, 1, 'V1')]
    for n in range(16):
        buf = n & 1
        tstamp(s, o, 'q', n)
        mf = []
        for db in range(8):
            for j in range(5):
                d = vr(qacc(db, j), 4)
                mf.append(mfma(d, ar(KB + 32 * buf + 4 * db, 4), ar(XF + 20 * buf + 4 * j, 4), '0' if n == 0 else d))
        m = n + 1
        tags = []
        if m < 16:
            tags = ['wq%d' % m]
            if m % 2 == 0: tags.append('x%d' % (m >> 1))
        new = []
        if m + 2 < 16: new += dma_wq(o, m + 2)
        if m % 2 == 0 and m // 2 + 1 < 8: new += dma_x(o, m // 2 + 1)
        if o.kvfin:
            if m == 14: new += kv[0]
            if m == 15: new += kv[1]
            if m == 16: new += kv[2]; kv = []
        else:
            if m in o.kvat_l: new += kv.pop(0)
            if m == 14: new += dma_k(o, 2, 'K2') + dma_v(o, 2, 'V2')
            if m == 16: new += dma_k(o, 3, 'K3')
        barrier_hooks.append(lambda new=new: vq.extend(new))
        gemm_kstep(s, mf, regs('a', KB + 32 * buf, 32) + regs('a', XF + 20 * buf, 20), reads_for(m) if m < 16 else [], dict(tags=tags), [], o.qevery, vq)
    assert not vq and not kv, len(vq)
    stamp(s, o, 3)
    return s

def gen_qfin(o):
    s = Seg('qfin')
    c = sr(sC, 2)
    items = [(sidx, j) for sidx in range(4) for j in range(5)]
    def tq(i): return 60 + 4 * (i % 4)
    def st1(i):
        sidx, j = items[i]
        for e in range(2):
            b = qacc(2 * sidx + e, j)
            s('v_pk_mul_f32 %s, %s, %s' % (vr(b, 2), vr(b, 2), c)); s('v_pk_mul_f32 %s, %s, %s' % (vr(b + 2, 2), vr(b + 2, 2), c))
        for e in range(2):
            b = qacc(2 * sidx + e, j)
            s('v_cvt_pk_bf16_f32 v%d, v%d, v%d' % (tq(i) + 2 * e, b, b + 1)); s('v_cvt_pk_bf16_f32 v%d, v%d, v%d' % (tq(i) + 2 * e + 1, b + 2, b + 3))
    def st2(i):
        t = tq(i)
        s('v_permlane32_swap_b32 v%d, v%d' % (t, t + 2)); s('v_permlane32_swap_b32 v%d, v%d' % (t + 1, t + 3))
    def st3(i):
        t = tq(i)
        s('v_permlane16_swap_b32 v%d, v%d' % (t, t + 2)); s('v_permlane16_swap_b32 v%d, v%d' % (t + 1, t + 3))
    def st4(i):
        sidx, j = items[i]
        for k in range(4): s('v_accvgpr_write_b32 a%d, v%d' % (Q + 16 * j + 4 * sidx + k, tq(i) + k))
    n = len(items)
    kv = dma_v(o, 1, 'V1') + dma_k(o, 2, 'K2') + dma_v(o, 2, 'V2') + dma_k(o, 3, 'K3') if o.kvfin else []
    for i in range(n + 3):
        if kv and i >= 2: s.add(kv.pop(0))
        if i < n: st1(i)
        else: s('s_nop 1')
        if 0 <= i - 3 < n: st4(i - 3)
        if 0 <= i - 2 < n: st3(i - 2)
        if 0 <= i - 1 < n: st2(i - 1)
        if i == n - 8:
            s.wait(tags=['K0'])
            s('s_barrier')
            s.add(rd_k(0, 'K0'))
    stamp(s, o, 4)
    return s

Kt = lambda d: (lambda c: 'K%d' % (c['I'] + d))
Vt = lambda d: (lambda c: 'V%d' % (c['I'] + d))

def qk_list(cinit):
    out = []
    for j in range(5):
        for r in range(8):
            kb, sidx = r & 1, r >> 1
            d = vr(S + 8 * j + 4 * kb, 4)
            cc = d if sidx else (vr(NM + 4 * j, 4) if cinit else '0')
            out.append(mfma(d, ar(KB + 4 * (4 * kb + sidx), 4), ar(Q + 16 * j + 4 * sidx, 4), cc))
    return out
def pv_list(par, vb, zero=False):
    return [mfma(oreg(j, db), ar(vb + 4 * db, 4), vr(P + 20 * par + 4 * j, 4), '0' if zero else oreg(j, db)) for j in range(5) for db in range(8)]

def rowred(s, regs_, tmps, op):
    for sw in ('v_permlane32_swap_b32', 'v_permlane16_swap_b32'):
        for r, t in zip(regs_, tmps): s('v_mov_b32 v%d, v%d' % (t, r))
        if len(regs_) < 3: s('s_nop 1')
        for r, t in zip(regs_, tmps): s('%s v%d, v%d' % (sw, t, r))
        for r, t in zip(regs_, tmps): s('%s v%d, v%d, v%d' % (op, r, r, t))

def max8(s, j, m, acc):
    b = S + 8 * j
    if acc: s('v_max3_f32 v%d, v%d, v%d, v%d' % (m, m, b, b + 1))
    else: s('v_max_f32 v%d, v%d, v%d' % (m, b, b + 1))
    for i in range(1, 4): s('v_max3_f32 v%d, v%d, v%d, v%d' % (m, m, b + 2 * i, b + 2 * i + 1))
MX, MT = 40, 45
def set_nm(s):
    rowred(s, [MX + j for j in range(5)], [MT + j for j in range(5)], 'v_max_f32')
    for j in range(5): s('v_sub_f32 v%d, 0, v%d' % (NM + 4 * j, MX + j))
    for j in range(5):
        for i in range(1, 4): s('v_mov_b32 v%d, v%d' % (NM + 4 * j + i, NM + 4 * j))

def gen_minit(o):
    s = Seg('minit')
    s.wait(regs=regs('a', KB, 32))
    mf = qk_list(False)
    tmp = Seg('t')
    for j in range(4): max8(tmp, j, MX + j, False)
    fill = {14 + 8 * (i // 4) + (i % 4): it for i, it in enumerate(tmp.items)}
    fill = {min(g, 39): None for g in ()} or fill
    late = []
    for g in range(40):
        s.add(mf[g])
        if g in fill: s.add(fill[g])
    for g in sorted(fill):
        if g >= 40: s.add(fill[g])
    s('s_nop 3')
    max8(s, 4, MX + 4, False)
    set_nm(s)
    for j in range(5):
        for i in range(0, 8, 2): s('v_pk_add_f32 %s, %s, %s' % (vr(S + 8 * j + i, 2), vr(S + 8 * j + i, 2), vr(NM + 4 * j, 2)))
    return s

def sm_exp(i):
    r = S + i
    return I('v_exp_f32 v%d, v%d' % (r, r))
def sm_post(i, par):
    j = i >> 3
    out = [I('v_add_f32 v%d, v%d, v%d' % (L + j, L + j, S + i))]
    if i & 1: out.append(I('v_cvt_pk_bf16_f32 v%d, v%d, v%d' % (P + 20 * par + 4 * j + ((i & 7) >> 1), S + i - 1, S + i)))
    return out
def sm_gap(G, par):
    x = G - 12
    if x < 0: x += 80; par ^= 1
    i = x >> 1
    return [sm_exp(i)] if x % 2 == 0 else sm_post(i, par)

def gen_s0(o):
    s = Seg('s0')
    s.label('L_s0')
    for j in range(5): s('v_mov_b32 v%d, 0' % (L + j))
    s.wait(tags=[Kt(1), Vt(0)])
    s('s_barrier')
    s.add(dma_k(o, 0, Kt(4)))
    if not o.vph1: s.add(dma_v(o, 3, Vt(3)))
    s('buffer_atomic_add v%d, v%d, s[%d:%d], 0 offen' % (CNT, T0, SD, SD + 3))
    s.add(rd_k(1, Kt(1)))
    for i in range(35):
        if i < 34: s.add(sm_exp(i))
        else: s('s_nop 0')
        if i > 0: s.add(sm_post(i - 1, 0))
    return s

def capped(o, groups):
    if not o.cap: return groups
    out = []
    for g in groups:
        k = [i for i, x in enumerate(g) if x.kind == 'dma'][0]
        out.append(g[:k] + [I('s_waitcnt vmcnt(%d)' % o.cap)] + g[k:])
    return out

def step(s, o, t, d, dmas, wtags, zero=False, last=False, extra1=None, dmas1=None):
    par = t & 1
    mf = qk_list(True) + pv_list(par ^ 1, VB, zero)
    fill = {g: [] for g in range(80)}
    for g, l in spread(rd_v(VB, (t - 1) % 4, Vt(d - 1)), [1, 5, 9, 13, 17, 21, 25, 29]).items(): fill[g] += l
    if last:
        for g, l in spread(rd_v(KB, t % 4, Vt(d)), [45, 49, 53, 57, 61, 65, 69, 73]).items(): fill[g] += l
    else:
        for g, l in spread(rd_k((t + 1) % 4, Kt(d + 1)), [45, 49, 53, 57, 61, 65, 69, 73]).items(): fill[g] += l
    if dmas:
        n = len(dmas)
        for g, l in spread(dmas, [42 + 2 * ((19 * i) // n // 1) for i in range(n)]).items(): fill[g] += l
    if dmas1:
        for g, l in spread(dmas1, [2, 12, 22, 32]).items(): fill[g] += l
    if extra1:
        for g, l in spread(extra1, list(range(33, 40))).items(): fill[g] += l
    for g in range(80):
        if g == 0: s.wait(regs=regs('a', KB, 32))
        if g == 40: s.wait(regs=regs('a', VB, 32))
        s.add(mf[g])
        if g == 40:
            s.wait(tags=wtags)
            s('s_barrier')
        s.add(sm_gap(g, par))
        s.add(fill[g])

def std_step(s, o, t, d, zero=False):
    if o.vph1: step(s, o, t, d, capped(o, dma_k(o, t % 4, Kt(d + 4))), [Kt(d + 1), Vt(d)], zero, dmas1=capped(o, dma_v(o, (t - 2) % 4, Vt(d + 2))))
    else: step(s, o, t, d, capped(o, dma_k(o, t % 4, Kt(d + 4)) + dma_v(o, (t - 1) % 4, Vt(d + 3))), [Kt(d + 1), Vt(d)], zero)

def gen_attn(o):
    s1 = Seg('step1')
    std_step(s1, o, 1, 1, zero=True)
    s1('s_mov_b32 s%d, 0' % sCNT)
    body = Seg('body')
    body.label('L_body')
    for i in range(4):
        std_step(body, o, 2 + i, i)
        if i == 0 and o.pfo:
            body('s_cmp_lg_u32 s%d, 6' % sCNT)
            body('s_cbranch_scc1 L_nopf')
            body('v_lshlrev_b32 v%d, 3, v%d' % (T0 + 1, LANE16))
            body('s_lshl_b32 s3, s39, 15'); body('s_lshl_b32 s36, s%d, 13' % sW); body('s_add_u32 s3, s3, s36')
            it = I('buffer_load_dword v%d, v%d, s[%d:%d], s3 offen' % (DUM, T0 + 1, SWO, SWO + 3)); it.kind = 'other'; body.add(it)
            body.label('L_nopf')
    body('s_add_u32 s%d, s%d, 1' % (sCNT, sCNT))
    body('s_cmp_lt_u32 s%d, 7' % sCNT)
    body('s_cbranch_scc1 L_body')
    tail = Seg('tail')
    pre = Seg('t')
    t0 = DWO
    pre('v_lshrrev_b32 v%d, 8, v%d' % (t0 + 1, DV))
    pre('v_and_b32 v%d, 0x70, v%d' % (t0, DV))
    pre('v_lshl_add_u32 v%d, v%d, 10, v%d' % (t0, t0 + 1, t0))
    pre('v_bfe_u32 v%d, v%d, 7, 1' % (t0 + 1, DV))
    pre('v_mul_u32_u24 v%d, 0x20200, v%d' % (t0 + 1, t0 + 1))
    pre('v_add_u32 v%d, v%d, v%d' % (t0, t0, t0 + 1))
    pre('v_xor_b32 v%d, 0x20200, v%d' % (t0 + 1, t0))
    pre('v_add_u32 v%d, %d, v%d' % (t0 + 2, 2 * 3072, t0))
    pre('v_add_u32 v%d, %d, v%d' % (t0 + 3, 3 * 3072, t0 + 1))
    pre('v_add_u32 v%d, %d, v%d' % (t0 + 1, 3072, t0 + 1))
    for t in range(4): pre('v_xor_b32 v%d, 0x20000, v%d' % (t0 + 4 + t, t0 + t))
    pre('s_lshl_b32 s%d, s%d, 3' % (sA, sG))
    cnt = [[I('buffer_load_dword v%d, off, s[%d:%d], s%d offset:128 sc1' % (CNT, SD, SD + 3, sA), tag='cnt')]]
    step(tail, o, 30, 30, cnt + dma_wo(o, 0) + dma_wo(o, 1), [Kt(31), Vt(30), Kt(32)], extra1=pre.items)
    step(tail, o, 31, 31, dma_wo(o, 2) + dma_wo(o, 3), [Vt(31), Kt(33), 'cnt'] + ([] if o.vph1 else [Vt(32)]), last=True)
    mf = pv_list(1, KB)
    tail.wait(regs=regs('a', KB, 32))
    for g in range(40):
        tail.add(mf[g])
        if g == 0: tail('s_barrier')
        if g < 12: tail.add(sm_gap(g, 0))
    stamp(tail, o, 5)
    return s1, body, tail

def gen_epi(o):
    s = Seg('epi')
    R = NM
    rowred(s, [L + j for j in range(5)], [90 + j for j in range(5)], 'v_add_f32')
    for j in range(5):
        s('v_cmp_nge_f32 %s, s%d, v%d' % (sr(sM0 if j == 0 else sM1, 2), sTHR, L + j))
        s('v_rcp_f32 v%d, v%d' % (R + 2 * j, L + j))
        if j: s('s_or_b64 %s, %s, %s' % (sr(sM0, 2), sr(sM0, 2), sr(sM1, 2)))
    s('s_cmp_lg_u64 %s, 0' % sr(sM0, 2))
    s('s_cselect_b32 s3, 1, 0')
    for j in range(5): s('v_mov_b32 v%d, v%d' % (R + 2 * j + 1, R + 2 * j))
    s('v_mov_b32 v95, s3')
    s('s_lshl_b32 s3, s%d, 2' % sW); s('s_add_u32 s3, s3, 0x%x' % FLG)
    s('v_mov_b32 v96, s3')
    tg = lambda n: (lambda c: '%s%d' % (n, c.get('redo', 0)))
    s('ds_write_b32 v96, v95', lds=(lambda c: (FLG, FLG + 16, ev(tg('flg'), c))))
    s('s_mul_i32 s3, s%d, 20480' % sW); s('s_add_u32 s3, s3, 0x%x' % EX)
    s('v_add_u32 v97, s3, v%d' % LANE16)
    s('s_xor_b32 s3, s%d, 2' % sW); s('s_mul_i32 s3, s3, 20480'); s('s_add_u32 s3, s3, 0x%x' % EX)
    s('v_add_u32 v98, s3, v%d' % LANE16)
    exr = (lambda c: (EX, EX + 81920, ev(tg('ex'), c)))
    for j in range(5):
        for sidx in range(4):
            f = 16 * j + 4 * sidx
            for e in range(2):
                k, b = otile(j, 2 * sidx + e)
                if k == 'a':
                    for i in range(4): s('v_accvgpr_read_b32 v%d, a%d' % (90 + i, b + i))
                    b = 90
                s('v_pk_mul_f32 %s, %s, %s' % (vr(b, 2), vr(b, 2), vr(R + 2 * j, 2)))
                s('v_pk_mul_f32 %s, %s, %s' % (vr(b + 2, 2), vr(b + 2, 2), vr(R + 2 * j, 2)))
                s('v_cvt_pk_bf16_f32 v%d, v%d, v%d' % (f + 2 * e, b, b + 1))
                s('v_cvt_pk_bf16_f32 v%d, v%d, v%d' % (f + 2 * e + 1, b + 2, b + 3))
            s('ds_write_b128 v97, %s offset:%d' % (vr(f, 4), 1024 * (4 * j + sidx)), lds=exr)
    s('v_mov_b32 v96, 0x%x' % FLG)
    s.wait(lgkm_all=True, tags=['wo0'])
    s('s_barrier')
    s('ds_read_b128 v[92:95], v96', lds=(lambda c: (FLG, FLG + 16, ev(tg('flg'), c))))
    s('s_mul_i32 s3, s%d, 0x2080' % sP)
    s('v_xor_b32 v84, s3, v%d' % VA)
    for k in range(1, 4): s('v_xor_b32 v%d, %d, v84' % (84 + k, 32 * k))
    for k in range(4): s('v_subrev_u32 v%d, 0x%x, v%d' % (80 + k, V0, 84 + k))
    s('v_readfirstlane_b32 s3, v%d' % CNT)
    s.wait(regs=regs('v', 92, 4))
    s('v_or_b32 v92, v92, v93'); s('v_or3_b32 v92, v92, v94, v95')
    s('s_cmp_lt_u32 s3, 16')
    s('v_readfirstlane_b32 s36, v92')
    s('s_cbranch_scc1 L_cntspin')
    s.label('L_cntok')
    s('s_andn2_b32 s36, s36, s%d' % sREDO)
    s('s_cbranch_scc1 L_redo')
    stamp(s, o, 6)
    return s

def gen_spin(s, name, back, load, cond):
    s.label(name)
    s('s_mov_b32 s%d, 0' % sCNT)
    s.label(name + '_l')
    s('s_sleep %d' % 4)
    s(load)
    s('s_waitcnt vmcnt(0)')
    s('s_add_u32 s%d, s%d, 1' % (sCNT, sCNT))
    s('s_cmp_gt_u32 s%d, 0x40000' % sCNT)
    s('s_cbranch_scc1 %s' % back)
    for l in cond: s(l.replace('@', name + '_l'))
    s('s_branch %s' % back)

def gen_redo(o):
    s = Seg('redo')
    s.label('L_redo')
    s('s_mov_b32 s%d, 1' % sREDO)
    s('s_waitcnt vmcnt(0) lgkmcnt(0)')
    s('s_barrier')
    s('v_lshrrev_b32 v%d, 4, v%d' % (T0, LANE16))
    s('v_and_b32 v%d, 15, v%d' % (T0 + 1, T0))
    s('v_and_b32 v%d, 48, v%d' % (T0, T0))
    s('v_lshl_add_u32 v%d, v%d, 8, v%d' % (T0, T0 + 1, T0))
    s('v_add_u32 v%d, 0x1000, v%d' % (T0 + 1, T0))
    for j in range(5): s('v_mov_b32 v%d, 0xff800000' % (MX + j))
    s('s_mov_b32 s%d, 0' % sA)
    lp = Seg('redo_loop')
    lp.label('L_redo_loop')
    for kb in range(2):
        for k in range(4): lp('buffer_load_dwordx4 %s, v%d, s[%d:%d], s%d offen offset:%d' % (ar(KB + 4 * (4 * kb + k), 4), T0 + kb, SK, SK + 3, sA, 64 * k))
    lp('s_waitcnt vmcnt(0)')
    lp.add(qk_list(False))
    lp('s_nop 7')
    for j in range(5): max8(lp, j, MX + j, True)
    lp('s_add_u32 s%d, s%d, 0x2000' % (sA, sA))
    lp('s_cmp_lt_u32 s%d, 0x40000' % sA)
    lp('s_cbranch_scc1 L_redo_loop')
    e = Seg('redo_end')
    set_nm(e)
    e('s_lshl_b32 s3, s%d, 12' % sHF); e('s_sub_u32 s%d, s3, 0x2000' % sOK); e('s_mov_b32 s%d, s%d' % (sOV, sOK))
    for i in range(4):
        e.add(dma_k(o, i, Kt(i)))
        if i < 3: e.add(dma_v(o, i, Vt(i)))
    e('v_mov_b32 v%d, 0x40000000' % T0)
    e.wait(tags=[Kt(0)])
    e('s_barrier')
    e.add(rd_k(0, Kt(0)))
    e.wait(regs=regs('a', KB, 32))
    e.add(qk_list(True))
    e('s_nop 7')
    e('s_branch L_s0')
    return s, lp, e

E0V, E1V = 136, 0
OWN = 0
PO = 88
AD, OD, IA, PL, AC, C10, C01, AD2, OD2 = 216, 217, 218, 219, 224, 220, 221, 222, 223
def etile(c, jn, j):
    return (E1V if c & 1 else E0V) + 8 * (5 * (jn >> 1) + j) + 4 * (jn & 1)
def abuf(p): return (112 + 4 * p) if p < 8 else (224 + 4 * (p - 8))
def load_groups(o, c, dst, sreg):
    out = []
    for k in range(10):
        off, ad = (2 * PST * k, AD) if k < 8 else (8 * PST * (k - 8), AD2)
        out.append([I('s_mov_b32 s%d, 0x%x' % (sreg, off + 20480 * c)),
                    I('buffer_load_dwordx4 %s, v%d, s[%d:%d], s%d offen %s' % (dst(k), ad, SG, SG + 3, sreg, o.rd_pol))])
    return out
def poll_txt(): return 'buffer_load_dword v%d, v%d, s[%d:%d], 0 offen sc1' % (PL, IA, SF, SF + 3)
def flag_ops(o, c):
    return [I('v_mov_b32 v89, %d' % (c + 1)), I('buffer_store_dword v89, v%d, s[%d:%d], 0 offen %s' % (FLA, SF, SF + 3, o.fl_pol))]
def red_addr(o):
    s = Seg('t')
    s('s_lshl_b32 s3, s%d, 4' % sG); s('s_add_u32 s3, s3, s38'); s('s_lshl_b32 s3, s3, %d' % (4 + o.ibs))
    s('v_lshrrev_b32 v240, 6, v%d' % LANE16); s('v_lshlrev_b32 v240, %d, v240' % o.ibs); s('v_bfe_u32 v241, v%d, 4, 2' % LANE16)
    s('v_lshl_add_u32 v240, v241, 2, v240'); s('v_add_u32 v%d, s3, v240' % IA)
    s('v_lshrrev_b32 v240, 4, v%d' % LANE16)
    s('v_and_b32 v242, 7, v240')
    s('s_and_b32 s3, s38, 3'); s('s_mul_i32 s63, s3, 5')
    s('s_lshr_b32 s3, s38, 2')
    s('s_lshr_b32 s36, s3, 1'); s('s_lshl_b32 s36, s36, 3'); s('s_and_b32 s3, s3, 1'); s('s_add_u32 s36, s36, s3')
    s('s_mul_i32 s3, s36, 10240'); s('s_lshl_b32 s62, s%d, 8' % sW); s('s_add_u32 s%d, s3, s62' % sM0)
    s('s_mul_i32 s3, s39, %d' % (160 * 2048)); s('s_lshl_b32 s62, s37, 10'); s('s_add_u32 s3, s3, s62')
    s('s_lshl_b32 s62, s36, 6'); s('s_add_u32 s3, s3, s62'); s('s_lshl_b32 s62, s%d, 3' % sW); s('s_add_u32 s%d, s3, s62' % (sM0 + 1))
    s('v_bfe_u32 v241, v240, 3, 2')
    s('v_add_u32 v243, s63, v241')
    s('v_lshl_add_u32 v244, v243, 3, v242')
    s('v_lshrrev_b32 v245, 1, v243')
    s('v_and_b32 v246, 15, v244')
    s('v_lshlrev_b32 v246, 4, v246')
    s('v_lshl_add_u32 v246, v245, 10, v246')
    s('v_lshrrev_b32 v241, 5, v240')
    s('v_mul_u32_u24 v245, %d, v241' % PST)
    s('v_add3_u32 v%d, v246, v245, s%d' % (AD, sM0))
    s('v_lshlrev_b32 v241, 5, v241')
    s('v_lshl_add_u32 v244, v244, 11, v241')
    s('v_add_u32 v%d, s%d, v244' % (OD, sM0 + 1))
    s('s_add_u32 s63, s63, 4')
    s('s_lshr_b32 s3, s63, 1'); s('s_lshl_b32 s3, s3, 10'); s('s_and_b32 s62, s63, 1'); s('s_lshl_b32 s62, s62, 7'); s('s_add_u32 s3, s3, s62')
    s('s_add_u32 s3, s3, s%d' % sM0)
    s('v_lshrrev_b32 v241, 3, v240')
    s('v_mul_u32_u24 v245, %d, v241' % PST)
    s('v_lshl_add_u32 v245, v242, 4, v245')
    s('v_add_u32 v%d, s3, v245' % AD2)
    s('s_lshl_b32 s3, s63, 14'); s('s_add_u32 s3, s3, s%d' % (sM0 + 1))
    s('v_lshrrev_b32 v241, 5, v240'); s('v_lshlrev_b32 v241, 5, v241')
    s('v_lshl_add_u32 v244, v242, 11, v241')
    s('v_add_u32 v244, s3, v244')
    s('v_and_b32 v241, 24, v240')
    s('v_cmp_eq_u32 vcc, 0, v241')
    s('v_mov_b32 v247, 0x40000000')
    s('v_cmp_lt_u32 %s, 31, v240' % sr(sM1, 2))
    s('v_cndmask_b32 v%d, v247, v244, vcc' % OD2)
    s('v_mov_b32 v%d, 0x3f80' % C10); s('v_mov_b32 v%d, 0x3f800000' % C01)
    return s.items

def gen_op(o):
    s = Seg('op')
    exr = (lambda c: (EX, EX + 81920, 'ex%d' % c.get('redo', 0)))
    def reads_for(u, kk):
        base = OSLOT[u % 8]
        areg, imm = (80, base) if base < V0 else (84, base - V0)
        return rd_tr(KB + 16 * ((2 * u + kk) & 1), areg, 4, imm + 8192 * kk, (base, base + 16384, 'wo%d' % u))
    def conv(c):
        out = []
        for a in range(2):
            for j in range(5):
                b = etile(c, 2 * a, j)
                cv = [I('v_cvt_pk_bf16_f32 v%d, v%d, v%d' % (b + i, b + 2 * i, b + 2 * i + 1)) for i in range(4)]
                out.append(cv[:2]); out.append(cv[2:])
                out.append([I('s_mov_b32 s%d, 0x%x' % (sA, (20 * c + 10 * a + j) * 1024)),
                            I('buffer_store_dwordx4 %s, v%d, s[%d:%d], s%d offen %s' % (vr(b, 4), PO, SP_, SP_ + 3, sA, o.st_pol), tag='st%d' % c)])
        return out
    s('s_mov_b32 s%d, 0' % sREDO)
    s.add(reads_for(0, 0))
    part = [I('ds_read_b128 %s, v98 offset:%d' % (ar(PART + 4 * f, 4), 1024 * f), lds=exr) for f in range(20)]
    own = [I('ds_read_b128 %s, v97 offset:%d' % (ar(OWN + 4 * f, 4), 1024 * f), lds=exr) for f in range(20)]
    s('s_mul_i32 s3, s%d, 80' % sP); s('s_mul_i32 s36, s%d, 5' % sHF); s('s_add_u32 s3, s3, s36'); s('s_lshl_b32 s3, s3, 10')
    s('v_add_u32 v%d, s3, v%d' % (PO, LANE16))
    extra = [[x] for x in part + own]
    vq = []
    ra = red_addr(o)
    for u in range(16):
        c, phi, dh = u >> 2, (u >> 1) & 1, u & 1
        tstamp(s, o, 'o', u)
        for kk in range(2):
            ks = 2 * u + kk
            buf = ks & 1
            first = (u & 3) == 0 and kk == 0
            sidx = 2 * dh + kk
            mf = []
            for jn in range(4):
                for j in range(5):
                    d = vr(etile(c, jn, j), 4)
                    if phi: bf = ar(PART + 16 * j + 4 * sidx, 4)
                    elif c == 0: bf = vr(16 * j + 4 * sidx, 4)
                    else: bf = ar(OWN + 16 * j + 4 * sidx, 4)
                    mf.append(mfma(d, ar(KB + 16 * buf + 4 * jn, 4), bf, '0' if first else d))
            need = regs('a', KB + 16 * buf, 16)
            bar = None
            if kk == 1:
                m = u + 1
                new = []
                if m == 1: new += dma_wo(o, 4)
                if m == 2:
                    need = need + regs('a', PART, 80) + regs('a', OWN, 80)
                    new += dma_wo(o, 5) + dma_wo(o, 6) + dma_wo(o, 7)
                if u + 8 < 16: new += dma_wo(o, u + 8)
                if m < 16:
                    bar = dict(tags=['wo%d' % m])
                    barrier_hooks.append(lambda new=new: vq.extend(new))
                rds = reads_for(m, 0) if m < 16 else []
            else:
                rds = reads_for(u, 1)
            if ks == 4: extra += [ra[i:i + 2] for i in range(0, len(ra), 2)]
            chk = lambda n: [I('v_cmp_gt_u32 vcc, %d, v%d' % (n, PL)), I('s_cbranch_vccnz L_spin%d' % n), Label('L_got%d' % n)]
            if not o.early:
                if ks % 8 == 1 and c > 0: extra += conv(c - 1)
                for cc in range(2):
                    if ks == 8 * (cc + 1) + o.flagat: extra.insert(0, [Wait(tags=['st%d' % cc])] + flag_ops(o, cc))
                if ks == 30: extra.append([I(poll_txt(), tag='poll')])
            else:
                if ks % 8 == 0 and c > 0: extra += [[]] * 2 + conv(c - 1)
                if ks == 15: extra += [[]] * 8 + [[Wait(tags=['st0'])] + flag_ops(o, 0)]
                if ks == 19: extra.append([I(poll_txt(), tag='poll')])
                if ks == 23: extra += [[]] * 8 + [[Wait(regs=[('v', PL)])] + flag_ops(o, 1) + chk(1)]
                if ks == 26:
                    assert not extra
                    extra.append([I(poll_txt(), tag='poll')])
                    for g in load_groups(o, 0, lambda k: vr(136 + 4 * k, 4), sB): extra += [g] + [[]] * (o.ldevery - 1)
            gemm_kstep(s, mf, need, rds, bar, extra, o.oevery, vq)
            if (u & 3) == 3 and kk == 1: stamp(s, o, 7 + c)
    extra = [g for g in extra if g]
    assert not extra and not vq, (len(extra), len(vq))
    if o.early:
        s.wait(regs=[('v', PL)])
        s.add(flag_ops(o, 2) + chk(2))
    s('s_nop 3')
    for g in conv(3): s.add(g)
    stamp(s, o, 11)
    return s

def gen_red(o):
    s = Seg('red')
    poll = poll_txt()
    BUF = [136, 0, 136, 0] if not o.early else [136, 176, 0, 40]
    def check(n):
        s.wait(regs=[('v', PL)])
        s('v_cmp_gt_u32 vcc, %d, v%d' % (n, PL))
        s('s_cbranch_vccnz L_spin%d' % n)
        s.label('L_got%d' % n)
    def loads(c):
        for g in load_groups(o, c, lambda k: vr(BUF[c] + 4 * k, 4), sA): s.add(g)
    def summ(c):
        a = AC
        for i in range(16): s('v_mov_b32 v%d, 0' % (a + i))
        for k in range(10):
            if k in (0, 4, 8): s.wait(regs=regs('v', BUF[c] + 4 * k, 16 if k < 8 else 8))
            for d in range(4):
                x = BUF[c] + 4 * k + d
                b = a + (8 if k >= 8 else 0)
                s('v_dot2c_f32_bf16 v%d, v%d, v%d' % (b + 2 * d, x, C10)); s('v_dot2c_f32_bf16 v%d, v%d, v%d' % (b + 2 * d + 1, x, C01))
        t = 240
        s('s_nop 2')
        for i in range(8): s('v_add_f32_dpp v%d, v%d, v%d row_ror:8 row_mask:0xf bank_mask:0xf' % (t + i, a + 8 + i, a + 8 + i))
        for i in range(8): s('v_mov_b32 v%d, v%d' % (a + 8 + i, t + i))
        s('s_nop 0')
        for i in range(8): s('v_permlane16_swap_b32 v%d, v%d' % (t + i, a + 8 + i))
        for i in range(8): s('v_add_f32 v%d, v%d, v%d' % (a + 8 + i, a + 8 + i, t + i))
        for b in (a, a + 8):
            for i in range(4): s('v_permlane32_swap_b32 v%d, v%d' % (b + i, b + 4 + i))
        for b in (a, a + 8):
            for i in range(4): s('v_add_f32 v%d, v%d, v%d' % (b + i, b + i, b + 4 + i))
        o2 = 248 + 4 * (c & 1)
        for n_, b in enumerate((a, a + 8)):
            s('v_cvt_pk_bf16_f32 v%d, v%d, v%d' % (o2 + 2 * n_, b, b + 1)); s('v_cvt_pk_bf16_f32 v%d, v%d, v%d' % (o2 + 2 * n_ + 1, b + 2, b + 3))
    def outst(c):
        o2 = 248 + 4 * (c & 1)
        s('buffer_store_dwordx2 %s, v%d, s[%d:%d], 0 offen offset:%d %s' % (vr(o2, 2), OD, SO, SO + 3, 128 * c, o.out_pol))
        s('buffer_store_dwordx2 %s, v%d, s[%d:%d], 0 offen offset:%d %s' % (vr(o2 + 2, 2), OD2, SO, SO + 3, 128 * c, o.out_pol))
    T = lambda i: tstamp(s, o, 'r', i)
    if not o.early:
        T(0); tstamp(s, o, 'z', 0)
        s.wait(regs=[('v', PL)], tags=['st2'])
        T(1)
        s.add(flag_ops(o, 2))
        check(2)
        T(2)
        stamp(s, o, 12)
        loads(0)
        T(3); tstamp(s, o, 'z', 5)
        s.wait(tags=['st3'])
        T(4); tstamp(s, o, 'z', 6)
        s.add(flag_ops(o, 3))
        tstamp(s, o, 'z', 7)
        s(poll, tag='poll')
        tstamp(s, o, 'z', 8)
        loads(1)
        T(5); tstamp(s, o, 'z', 13)
        summ(0)
        T(6); tstamp(s, o, 'z', 14)
        check(3)
        T(7)
        stamp(s, o, 13)
        s(poll, tag='poll')
        loads(2)
        outst(0)
        T(8)
        summ(1)
        T(9)
        check(4)
        T(10)
        stamp(s, o, 14)
        loads(3)
        outst(1)
        T(11)
        summ(2); outst(2)
        T(12)
        summ(3); outst(3)
        T(13)
    else:
        T(0)
        s(poll, tag='poll')
        loads(1)
        T(1)
        summ(0)
        T(2)
        s.wait(regs=[('v', PL)], tags=['st3'])
        s.add(flag_ops(o, 3))
        T(3)
        check(3)
        T(4)
        stamp(s, o, 12)
        g2 = load_groups(o, 2, lambda k: vr(BUF[2] + 4 * k, 4), sA)
        s.add(g2[:5]); s(poll, tag='poll'); s.add(g2[5:])
        outst(0)
        T(5)
        summ(1)
        T(6)
        stamp(s, o, 13)
        check(4)
        T(7)
        stamp(s, o, 14)
        loads(3)
        outst(1)
        T(8)
        summ(2); outst(2)
        T(9)
        summ(3); outst(3)
        T(10); T(11); T(12); T(13)
    if o.trace: s('s_waitcnt vmcnt(0)'); T(14); T(15); tstamp(s, o, 'z', 15)
    if o.stamps or o.trace:
        s('s_waitcnt vmcnt(0)')
        stamp(s, o, 15)
    s.label('L_done')
    s('s_endpgm')
    sp = Seg('spins')
    if not o.early: sp.label('L_got1')
    for n in (1, 2, 3, 4): gen_spin(sp, 'L_spin%d' % n, 'L_got%d' % n, poll, ['v_cmp_gt_u32 vcc, %d, v%d' % (n, PL), 's_cbranch_vccnz @'])
    sp.label('L_cntspin')
    sp('s_lshl_b32 s%d, s%d, 3' % (sA, sG))
    gen_spin(sp, 'L_cntspin2', 'L_cntok', 'buffer_load_dword v%d, off, s[%d:%d], s%d offset:128 sc1' % (CNT, SD, SD + 3, sA),
             ['v_readfirstlane_b32 s3, v%d' % CNT, 's_cmp_lt_u32 s3, 16', 's_cbranch_scc1 @'])
    return s, sp

def desc(name, vgpr, accum, sgpr):
    return '''.amdhsa_kernel %s
  .amdhsa_next_free_vgpr %d
  .amdhsa_next_free_sgpr %d
  .amdhsa_accum_offset %d
  .amdhsa_group_segment_fixed_size 0
  .amdhsa_kernarg_size 104
  .amdhsa_user_sgpr_count 2
  .amdhsa_user_sgpr_kernarg_segment_ptr 1
  .amdhsa_system_sgpr_workgroup_id_x 1
  .amdhsa_float_denorm_mode_32 3
.end_amdhsa_kernel
''' % (name, vgpr, sgpr, accum)

def build(o, path):
    o.kvat_l = [int(x) for x in o.kvat.split(',')]
    entry, q, qf, mi, s0 = gen_entry(o), gen_q(o), gen_qfin(o), gen_minit(o), gen_s0(o)
    s1, body, tail = gen_attn(o)
    epi = gen_epi(o)
    r0, r1, r2 = gen_redo(o)
    op = gen_op(o)
    red, spins = gen_red(o)
    traces = []
    for redo in (0, 1):
        tr = [(entry, {}), (q, {}), (qf, {}), (mi, {})]
        for ps in range(redo + 1):
            if ps: tr += [(r0, {}), (r1, {}), (r1, {}), (r2, dict(I=0))]
            tr += [(s0, dict(I=0)), (s1, dict(I=0))]
            for it in range(7): tr.append((body, dict(I=2 + 4 * it)))
            tr += [(tail, dict(I=0)), (epi, dict(redo=ps))]
        tr += [(op, dict(redo=redo)), (red, {})]
        traces.append(('redo%d' % redo, tr))
    phase = {'q': [q], 'a': [s1, body], 'o': [op]}
    for ch in o.nowait:
        for sg in phase[ch]:
            for it in sg.items:
                if it.kind == 'ph': it.tags = set()
    for ch in o.nodma:
        for sg in phase[ch]: sg.items = [it for it in sg.items if it.kind != 'dma']
    resolve([t for _, t in traces])
    allerr = []
    for name, tr in traces: allerr += check(tr, name)[0]
    if o.nowait or o.nodma: allerr = []
    for e in allerr[:40]: print('ERR', e)
    if allerr: print(len(allerr), 'errors')
    hdr = open('concat_heads__gqa_block_cached__gqa_block_cached__near_ridge.s.ref').read().split('; Override')[0]
    txt = hdr + '; @launch grid=(256,1,1) block=(256,1,1) lds=163840\n'
    txt += '.amdgcn_target "amdgcn-amd-amdhsa--gfx950"\n.text\n.globl %s\n.p2align 8\n.type %s,@function\n%s:\n' % (KN, KN, KN)
    for sg in [entry, q, qf, mi, s0, s1, body, tail, epi, op, red, spins, r0, r1, r2]: txt += sg.text()
    txt += 'L_code_end:\n'
    txt += '.section .rodata,"a"\n.p2align 6\n' + desc(KN, 512, 256, 100)
    open(path, 'w').write(txt)
    return not allerr

if __name__ == '__main__':
    o = Opt()
    path = sys.argv[1]
    for kv in sys.argv[2:]:
        k, v = kv.split('=')
        cur = getattr(o, k)
        setattr(o, k, int(v) if isinstance(cur, int) else v.replace('+', ' '))
    ok = build(o, path)
    print('written', path, 'ok' if ok else 'WITH ERRORS')
```

```python
import sys, struct, math
from fw import *

KN = "concat_heads__gqa_block_cached__gqa_block_cached__near_ridge_kernel"
WS_BYTES = 287834112
PST = 163840 + 256
INB = 256 * PST
def f2u(x): return struct.unpack('<I', struct.pack('<f', x))[0]

class Opt:
    kv_pol = 'nt'
    w_pol = ''
    st_pol = 'sc1'
    rd_pol = 'sc1'
    fl_pol = 'sc1'
    stamps = 0
    cyc = 0
    dbgst = 0
    codepf = 1
    force_redo = 0
    nowait = ''
    nodma = ''
    dmaburst = 0
    qevery = 3
    diag = ''
    half = 1
    chk1 = 1
    unroll = 1
    rotp = 1
    short = 0
    kvfin = 0
    ldevery = 5
    out_pol = ''
    rot = 1
    early = 0
    cap = 4
    vph1 = 1
    ibs = 4
    tlb = 0
    fulld = 0
    flagat = 8
    par = 1
    pfo = 1
    trace = ''
    kvat = '5,7,9,11'
    oevery = 1
    pfw = 0
    pfs = 7

K0, V0 = 0, 98304
XBUF = lambda m: 32768 + 20480 * (m & 1)
W0 = 81920
EX = 16384
FLG = V0 + 3 * 16384
KS = lambda i: K0 + 16384 * (i % 4)
VS = lambda i: V0 + 16384 * (i % 4)
WS_ = lambda n: (W0, V0 + 32768, V0 + 49152)[n % 3]
OSLOT = [KS(0), VS(1), VS(2), VS(0), VS(3), KS(1), KS(2), KS(3)]

S, P, NM, L = 0, 40, 80, 100
KA, VA, DK, DV, LANE16 = 105, 109, 117, 121, 123
T0 = 124
DWO = 124
CNT, FLA, DUM = 132, 133, 134
OV = 136
XAD, WQ0, DX, DWQ = 40, 44, 52, 53
Q, KB, VB, OA = 0, 80, 112, 144
XF = 144
PART = 144
sW, sP, sREDO, sCNT = 4, 5, 6, 7
SX, SWQ, SK, SV, SWO, SP_ = 8, 12, 16, 20, 24, 28
sOK, sOV, sMK, sMV = 32, 33, 34, 35
sBR, sHP, sB_ = 37, 38, 39
sWS = 40
sC, sTHR = 54, 56
sA, sB = 58, 59
sW1K, sHF = 60, 61
sST = 64
SF, SD, SO = 72, 76, 80
sG = 84
SG = 96
sM0, sM1 = 86, 88
sXO, sWO_ = 90, 91

def vr(b, n=1): return 'v%d' % b if n == 1 else 'v[%d:%d]' % (b, b + n - 1)
def ar(b, n=1): return 'a%d' % b if n == 1 else 'a[%d:%d]' % (b, b + n - 1)
def sr(b, n=1): return 's%d' % b if n == 1 else 's[%d:%d]' % (b, b + n - 1)
def mfma(d, a, b, c): return I('v_mfma_f32_16x16x32_bf16 %s, %s, %s, %s' % (d, a, b, c))
def otile(j, db):
    n = 8 * j + db
    return ('v', OV + 4 * n) if n < 30 else ('a', OA + 4 * (n - 30))
def oreg(j, db):
    k, b = otile(j, db)
    return '%s[%d:%d]' % (k, b, b + 3)
def qacc(db, j):
    n = 5 * db + j
    return OV + 4 * n if n < 30 else 4 * (n - 30)

def tstamp(s, o, ph, idx):
    if o.trace == ph and idx < 16:
        s('%s s[%d:%d]' % ('s_memtime' if o.cyc else 's_memrealtime', sST + 6, sST + 7)); s('s_waitcnt lgkmcnt(0)')
        s('v_writelane_b32 v135, s%d, %d' % (sST + 6, idx))
def stamp(s, o, idx):
    if o.trace:
        if idx == 15:
            st = sST
            s('s_mov_b32 s%d, s%d' % (st, sWS)); s('s_mov_b32 s%d, s%d' % (st + 1, sWS + 1))
            s('s_mov_b32 s%d, 0x%x' % (st + 2, WS_BYTES)); s('s_mov_b32 s%d, 0x20000' % (st + 3))
            s('s_mul_i32 s%d, s2, %d' % (st + 4, 128)); s('s_add_u32 s%d, s%d, 0x%x' % (st + 4, st + 4, WS_BYTES - 256 * 128))
            s('s_min_u32 s3, s%d, 1' % sW); s('s_lshl_b32 s3, s3, 30'); s('s_add_u32 s%d, s%d, s3' % (st + 4, st + 4))
            s('v_mbcnt_lo_u32_b32 v0, -1, 0'); s('v_lshlrev_b32 v0, 3, v0'); s('v_mov_b32 v2, v135'); s('v_mov_b32 v3, 0')
            s('s_mov_b64 exec, 0xffff')
            s('buffer_store_dwordx2 v[2:3], v0, s[%d:%d], s%d offen' % (st, st + 3, st + 4))
        return
    if not o.stamps: return
    if o.dbgst:
        if idx not in (0, 2, 3, 5, 6, 11, 13, 15): return
        idx = (0, 2, 3, 5, 6, 11, 13, 15).index(idx)
    st = sST
    t = 96
    r0 = 134
    a, b = 'v%d' % r0, 'v%d' % (r0 + 1)
    if o.dbgst:
        s('s_memrealtime s[%d:%d]' % (st + 4, st + 5))
        s('s_memtime s[%d:%d]' % (st + 6, st + 7))
        s('s_waitcnt lgkmcnt(0)')
        s('v_mov_b32 %s, s%d' % (a, st + 4)); s('v_mov_b32 %s, s%d' % (b, st + 6))
        s('s_sub_u32 s%d, s2, %d' % (st + 4, o.dbgst - 1))
        s('s_mul_i32 s%d, s%d, 0x1000' % (st + 4, st + 4))
        s('s_add_u32 s%d, s%d, 0x%x' % (st + 4, st + 4, idx * 8))
        s('s_nop 0')
        s('buffer_store_dwordx2 v[%d:%d], off, s[%d:%d], s%d' % (r0, r0 + 1, SD, SD + 3, st + 4), dummy=True)
        return
    s('%s s[%d:%d]' % ('s_memtime' if o.cyc else 's_memrealtime', st + 4, st + 5))
    s('s_waitcnt lgkmcnt(0)')
    if idx == 0: s('s_mov_b64 s[%d:%d], s[%d:%d]' % (st + 4, st + 5, st + 6, st + 7))
    s('s_mov_b32 s%d, s%d' % (st, sWS)); s('s_mov_b32 s%d, s%d' % (st + 1, sWS + 1))
    s('s_mov_b32 s%d, 0x%x' % (st + 2, WS_BYTES)); s('s_mov_b32 s%d, 0x20000' % (st + 3))
    s('v_mov_b32 %s, s%d' % (a, st + 4), dummy=True); s('v_mov_b32 %s, s%d' % (b, st + 5), dummy=True)
    s('s_mul_i32 s%d, s2, %d' % (st + 4, o.stamps * 8))
    s('s_add_u32 s%d, s%d, 0x%x' % (st + 4, st + 4, WS_BYTES - 256 * o.stamps * 8 + idx * 8))
    s('s_nop 0')
    s('buffer_store_dwordx2 v[%d:%d], off, s[%d:%d], s%d' % (r0, r0 + 1, st, st + 3, st + 4), dummy=True)

def dma(voff, srd, soff, imm, pol, tag, lo):
    return I('buffer_load_dwordx4 v%d, s[%d:%d], s%d offen offset:%d %s lds' % (voff, srd, srd + 3, soff, imm, pol),
             tag=tag, lds=(lambda c, f=tag, lo=lo: (lo[0], lo[1], ev(f, c))))
def dma_x(o, m):
    buf = XBUF(m)
    out = [[I('s_add_u32 m0, s%d, 0x%x' % (sW1K, buf + 4096 * j)), I('s_add_u32 s%d, s%d, 0x%x' % (sA, sXO, 32768 * j)),
            dma(DX, SX, sA, 0, o.w_pol, 'x%d' % m, (buf, buf + 20480))] for j in range(5)]
    out[4] += [I('s_add_u32 s%d, s%d, 128' % (sXO, sXO)), I('s_and_b32 s%d, s%d, 0x3ff' % (sXO, sXO))]
    return out
def grp4(pre, mk, post=()):
    out = []
    for t in range(4):
        g = list(pre) if t == 0 else []
        g.append(mk(t))
        if t == 3: g += list(post)
        out.append(g)
    return out
def dma_wq(o, n):
    b = WS_(n)
    return grp4([I('s_add_u32 m0, s%d, 0x%x' % (sMK, b)), I('s_nop 0')],
                lambda t: dma(DWQ + t, SWQ, sWO_, 1024 * t, o.w_pol, 'wq%d' % n, (b, b + 16384)),
                [I('s_add_u32 s%d, s%d, 0x40000' % (sWO_, sWO_)), I('s_and_b32 s%d, s%d, 0x3fffff' % (sWO_, sWO_))])
def dma_k(o, slot, tag):
    b = KS(slot)
    return grp4([I('s_add_u32 s%d, s%d, 0x2000' % (sOK, sOK)), I('s_add_u32 m0, s%d, 0x%x' % (sMK, b))] + [I('s_and_b32 s%d, s%d, 0x3ffff' % (sOK, sOK)) if o.unroll else I('s_nop 0')],
                lambda t: dma(DK + t, SK, sOK, 1024 * t, o.kv_pol, tag, (b, b + 16384)))
def dma_v(o, slot, tag):
    b = VS(slot)
    return grp4([I('s_add_u32 s%d, s%d, 0x2000' % (sOV, sOV)), I('s_add_u32 m0, s%d, 0x%x' % (sMK, b))] + [I('s_and_b32 s%d, s%d, 0x3ffff' % (sOV, sOV)) if o.unroll else I('s_nop 0')],
                lambda t: dma(DV + (t & 1), SV, sOV, 1024 * t, o.kv_pol, tag, (b, b + 16384)))
def dma_wo(o, u):
    c, phi, dh = u >> 2, (u >> 1) & 1, u & 1
    b = OSLOT[u % 8]
    return grp4([I('s_add_u32 m0, s%d, 0x%x' % (sMK, b)), I('s_lshl_b32 s%d, s%d, 2' % (sB, sMK)),
                 I('s_add_u32 s%d, s%d, 0x%x' % (sB, sB, 65536 * dh + 128 * c))],
                lambda t: dma(DWO + 4 * phi + t, SWO, sB, 1024 * t, o.w_pol, 'wo%d' % u, (b, b + 16384)))

def reg_(lo, tag): return (lambda c, f=tag: (lo, lo + 16384, ev(f, c)))
def rd_k(slot, tag):
    return [I('ds_read_b128 %s, v%d offset:%d' % (ar(KB + 4 * (4 * kb + s), 4), KA + s, 16384 * slot + 4096 * kb), lds=reg_(KS(slot), tag))
            for s in range(4) for kb in range(2)]
def rd_tr(dst, areg, n, imm, region):
    return [I('ds_read_b64_tr_b16 %s, v%d offset:%d' % (ar(dst + 4 * d + 2 * e, 2), areg + d, imm + 4096 * e), lds=region)
            for d in range(n) for e in range(2)]
def rd_v(dst, slot, tag): return rd_tr(dst, VA, 8, 16384 * slot, reg_(VS(slot), tag))

def spread(items, gaps):
    d = {g: [] for g in gaps}
    n, m = len(items), len(gaps)
    for i, it in enumerate(items): d[gaps[i * m // n]].append(it)
    return d

def srd(s, r, lo, hi, off, size):
    if off is None: s('s_mov_b32 s%d, s%d' % (r, lo)); s('s_mov_b32 s%d, s%d' % (r + 1, hi))
    else: s('s_add_u32 s%d, s%d, s%d' % (r, lo, off)); s('s_addc_u32 s%d, s%d, 0' % (r + 1, hi))
    if size is not None: s('s_mov_b32 s%d, 0x%x' % (r + 2, size))
    s('s_mov_b32 s%d, 0x20000' % (r + 3))

def kv_start(s, o):
    s('s_mul_i32 s3, s%d, 0x%x' % (sP, 8192 * (o.rotp if o.unroll else 0))); s('s_lshl_b32 s36, s%d, 12' % sHF); s('s_add_u32 s3, s3, s36')
    s('s_sub_u32 s%d, s3, 0x2000' % sOK); s('s_mov_b32 s%d, s%d' % (sOV, sOK))

def gen_entry(o):
    s = Seg('entry')
    if o.stamps and not o.dbgst: s('%s s[%d:%d]' % ('s_memtime' if o.cyc else 's_memrealtime', sST + 6, sST + 7))
    s('s_cmp_ge_u32 s2, 256')
    s('s_cbranch_scc1 L_done')
    s('s_and_b32 s3, s2, 7')
    s('s_lshr_b32 s36, s2, 3')
    if o.par: s('s_and_b32 s37, s3, 1'); s('s_lshr_b32 s38, s3, 1')
    else: s('s_lshr_b32 s37, s3, 2'); s('s_and_b32 s38, s3, 3')
    s('''s_lshl_b32 s38, s38, 2
         s_and_b32 s39, s36, 3
         s_or_b32 s38, s38, s39
         s_lshr_b32 s39, s36, 2
         s_mul_i32 s3, s37, 40
         s_add_u32 s42, s0, s3
         s_addc_u32 s43, s1, 0
         s_load_dwordx8 s[44:51], s[42:43], 0
         s_load_dwordx2 s[52:53], s[42:43], 32
         s_load_dwordx2 s[40:41], s[0:1], 96
         s_load_dwordx4 s[92:95], s[0:1], 80''')
    s('v_lshrrev_b32 v7, 6, v0')
    s('v_and_b32 v1, 63, v0')
    s('v_readfirstlane_b32 s%d, v7' % sW)
    s('v_lshlrev_b32 v%d, 4, v1' % LANE16)
    s('v_lshrrev_b32 v2, 4, v1')
    s('v_and_b32 v3, 15, v1')
    s('s_lshl_b32 s%d, s%d, 10' % (sW1K, sW))
    s('s_lshl_b32 s%d, s%d, 12' % (sMK, sW))
    s('s_lshr_b32 s%d, s%d, 1' % (sP, sW))
    s('s_and_b32 s%d, s%d, 1' % (sHF, sW))
    s('s_lshl_b32 s3, s%d, 2' % sHF)
    s('v_add_u32 v4, s3, v2')
    s('v_and_b32 v5, 7, v1')
    s('v_xor_b32 v5, v4, v5')
    s('v_lshlrev_b32 v5, 4, v5')
    s('v_lshrrev_b32 v4, 3, v0')
    s('v_lshl_add_u32 v%d, v4, 10, v5' % DX)
    s('v_lshlrev_b32 v6, 1, v2')
    s('v_xor_b32 v6, v6, v3')
    s('v_lshlrev_b32 v6, 4, v6')
    s('s_lshl_b32 s3, s%d, 2' % sHF)
    s('v_add_u32 v4, s3, v2')
    s('v_lshl_add_u32 v4, v4, 13, v6')
    s('s_lshl_b32 s3, s%d, 8' % sP)
    s('v_add_u32 v%d, s3, v4' % DWQ)
    s('v_xor_b32 v4, 0x80, v%d' % DWQ)
    s('v_add_u32 v%d, 0x%x, v4' % (DWQ + 1, 64512))
    s('v_add_u32 v%d, 0x%x, v%d' % (DWQ + 2, 2 * 64512, DWQ))
    s('v_add_u32 v%d, 0x%x, v4' % (DWQ + 3, 3 * 64512))
    if o.rot: s('s_and_b32 s3, s38, 3'); s('s_lshl_b32 s3, s3, 1'); s('s_add_u32 s3, s3, s39'); s('s_and_b32 s3, s3, 7')
    else: s('s_mov_b32 s3, 0')
    s('s_lshl_b32 s%d, s3, 7' % sXO); s('s_lshl_b32 s%d, s3, 19' % sWO_)
    s('s_waitcnt lgkmcnt(0)')
    s('s_mul_i32 s3, s39, 163840'); srd(s, SX, 44, 45, 3, 163840)
    s('s_lshl_b32 s3, s38, 9'); srd(s, SWQ, 50, 51, 3, None); s('s_sub_u32 s%d, 0x400000, s3' % (SWQ + 2))
    srd(s, SD, 94, 95, None, 256)
    stamp(s, o, 0)
    if o.pfw == 2:
        for g in dma_x(o, 0) + dma_wq(o, 0) + dma_wq(o, 1): s.add(g)
    if o.pfw:
        per = 128 >> o.pfs if o.pfs < 7 else 1
        s('v_lshrrev_b32 v7, 2, v0'); s('v_and_b32 v8, 3, v0'); s('v_lshlrev_b32 v8, 7, v8'); s('v_lshl_add_u32 v7, v7, 13, v8')
        s('s_lshl_b32 s3, s39, 19')
        for h in range(per): s('buffer_load_dword v59, v7, s[%d:%d], s3 offen offset:%d' % (SWQ, SWQ + 3, 64 * h), dummy=True)
        s('v_lshlrev_b32 v7, 7, v0')
        s('s_and_b32 s3, s38, 3'); s('s_mul_i32 s3, s3, 40960')
        for h in range(per): s('buffer_load_dword v59, v7, s[%d:%d], s3 offen offset:%d' % (SX, SX + 3, 64 * h), dummy=True)
        s('v_and_b32 v7, 0x1fff, v7'); s('s_add_u32 s3, s3, 0x8000')
        for h in range(per): s('buffer_load_dword v59, v7, s[%d:%d], s3 offen offset:%d' % (SX, SX + 3, 64 * h), dummy=True)
    if o.pfw != 2:
        for g in dma_x(o, 0) + dma_wq(o, 0) + dma_wq(o, 1): s.add(g)
    s('s_mov_b32 s3, 0x%x' % INB); srd(s, SF, sWS, sWS + 1, 3, 256 * (16 << o.ibs))
    s('s_lshl_b32 s%d, s37, 3' % sG); s('s_add_u32 s%d, s%d, s39' % (sG, sG))
    s('s_lshl_b32 s36, s%d, 4' % sG); s('s_add_u32 s36, s36, s38')
    s('s_min_u32 s3, s%d, 1' % sW); s('s_lshl_b32 s3, s3, 30')
    s('s_lshl_b32 s62, s36, %d' % (4 + o.ibs)); s('s_add_u32 s62, s62, s3')
    s('v_lshrrev_b32 v8, 2, v1'); s('v_lshlrev_b32 v8, %d, v8' % (o.ibs - 2)); s('v_and_b32 v9, 3, v1'); s('v_add_lshl_u32 v8, v8, v9, 2')
    s('v_add_u32 v9, s62, v8')
    s('v_mov_b32 v10, 0')
    s('buffer_store_dword v10, v9, s[%d:%d], 0 offen %s' % (SF, SF + 3, o.fl_pol), tag='clr')
    if o.codepf:
        s('s_getpc_b64 s[62:63]')
        s.label('L_pc')
        s('v_lshlrev_b32 v7, 7, v0')
        s('global_load_dword v59, v7, s[62:63]', dummy=True)
        if o.unroll:
            s('v_add_u32 v7, 0x8000, v7')
            s('global_load_dword v59, v7, s[62:63]', dummy=True)
        s('v_add_u32 v7, 0x8000, v7')
        s('v_min_u32 v7, L_code_end-L_pc-4, v7')
        s('global_load_dword v59, v7, s[62:63]', dummy=True)
    s('s_mul_i32 s3, s36, %d' % PST); srd(s, SP_, sWS, sWS + 1, 3, 163840)
    s('''s_lshl_b32 s3, s39, 4
         s_add_u32 s3, s3, s38
         s_lshl_b32 s3, s3, 1
         s_add_u32 s3, s3, s%d
         s_lshl_b32 s3, s3, 18''' % sP)
    srd(s, SK, 46, 47, 3, 0x40000); srd(s, SV, 48, 49, 3, 0x40000)
    s('s_lshl_b32 s3, s38, 18'); srd(s, SWO, 52, 53, 3, 0x40000)
    srd(s, SO, 92, 93, None, 8 * 160 * 2048)
    s('s_mul_i32 s3, s%d, %d' % (sG, 16 * PST)); srd(s, SG, sWS, sWS + 1, 3, 16 * PST)
    if o.tlb:
        for r in (SK, SV, SWO): s('buffer_load_dword v59, off, s[%d:%d], 0' % (r, r + 3), dummy=True)
        s('v_mul_u32_u24 v7, %d, v3' % PST); s('s_mov_b32 s3, 163840')
        s('buffer_load_dword v59, v7, s[%d:%d], s3 offen sc1' % (SG, SG + 3), dummy=True)
        s('s_mul_i32 s3, s39, %d' % (160 * 2048))
        s('buffer_load_dword v59, off, s[%d:%d], s3 sc1' % (SO, SO + 3), dummy=True)
    kv_start(s, o)
    c = math.log2(math.e) / math.sqrt(128.0)
    s('s_mov_b32 s%d, 0x%x' % (sC, f2u(c))); s('s_mov_b32 s%d, 0x%x' % (sC + 1, f2u(c)))
    s('s_mov_b32 s%d, 0x%x' % (sTHR, f2u(2.0 ** 24 if not o.force_redo else 1.0)))
    s('s_mov_b32 s%d, 0' % sREDO)
    s('s_lshl_b32 s3, s%d, %d' % (sG, 8 + o.ibs)); s('s_lshl_b32 s36, s38, %d' % o.ibs); s('s_add_u32 s3, s3, s36')
    s('s_lshl_b32 s36, s%d, 2' % sW); s('s_add_u32 s3, s3, s36')
    s('v_lshlrev_b32 v4, %d, v3' % (4 + o.ibs)); s('v_add_u32 v4, s3, v4')
    s('v_min_u32 v5, 1, v2'); s('v_lshl_add_u32 v%d, v5, 30, v4' % FLA)
    s('v_min_u32 v5, 1, v0'); s('v_lshlrev_b32 v5, 30, v5'); s('s_lshl_b32 s3, s%d, 3' % sG); s('s_add_u32 s3, s3, 128'); s('v_add_u32 v%d, s3, v5' % T0)
    s('v_mov_b32 v%d, 1' % CNT)
    s('v_xor_b32 v4, v2, v3'); s('v_lshlrev_b32 v4, 4, v4')
    s('v_lshl_add_u32 v%d, v2, 8, v4' % DK)
    for t in range(1, 4): s('v_xor_b32 v%d, %d, v%d' % (DK + t, 64 * t, DK))
    s('v_lshl_add_u32 v%d, v2, 8, v6' % DV)
    s('v_xor_b32 v%d, 0x80, v%d' % (DV + 1, DV))
    s('v_lshl_add_u32 v4, v3, 8, v4')
    s('s_lshl_b32 s36, s%d, 13' % sP)
    s('v_add_u32 v%d, s36, v4' % KA)
    for k in range(1, 4): s('v_xor_b32 v%d, %d, v%d' % (KA + k, 64 * k, KA))
    s('v_lshrrev_b32 v4, 1, v3'); s('v_xor_b32 v4, v4, v2'); s('v_lshlrev_b32 v4, 4, v4')
    s('v_lshl_add_u32 v4, v3, 7, v4')
    s('s_mul_i32 s3, s%d, 10240' % sHF)
    s('v_add_u32 v%d, s3, v4' % XAD)
    s('v_xor_b32 v%d, 64, v%d' % (XAD + 1, XAD))
    s('v_lshrrev_b32 v4, 2, v1')
    s('v_and_b32 v5, 7, v4')
    s('v_lshlrev_b32 v5, 5, v5')
    s('v_lshl_add_u32 v5, v4, 8, v5')
    s('v_and_b32 v4, 3, v1')
    s('v_lshl_add_u32 v5, v4, 3, v5')
    s('s_add_u32 s36, s36, 0x%x' % V0)
    s('v_add_u32 v%d, s36, v5' % VA)
    for k in range(1, 8): s('v_xor_b32 v%d, %d, v%d' % (VA + k, 32 * k, VA))
    for k in range(8): s('v_subrev_u32 v%d, 0x4000, v%d' % (WQ0 + k, VA + k))
    stamp(s, o, 1)
    return s

def is_vm(g): return any(x.kind in ('dma', 'vst', 'vld') for x in g)
class Pace:
    since = 99
def gemm_kstep(s, mf, need, reads, barrier, extra, every=1, vq=None):
    n = len(mf)
    rg = list(range(2, 2 + (len(reads) + 1) // 2)) if n <= 20 else list(range(2, 2 + len(reads)))
    rd = spread(reads, rg) if reads else {}
    for g in range(n):
        if g == 0: s.wait(regs=need)
        s.add(mf[g])
        if g == 1 and barrier is not None:
            s.wait(**barrier)
            s('s_barrier')
            for f in barrier_hooks: f()
            del barrier_hooks[:]
        s.add(rd.get(g, []))
        Pace.since += 1
        busy = len(rd.get(g, []))
        if vq and Pace.since >= every and busy < 2:
            s.add(vq.pop(0)); Pace.since = 0
        elif extra and busy < 2 and (not is_vm(extra[0]) or Pace.since >= every):
            if is_vm(extra[0]): Pace.since = 0
            s.add(extra.pop(0))
barrier_hooks = []

def gen_q(o):
    s = Seg('qphase')
    def reads_for(n):
        buf = n & 1
        areg, imm = ((WQ0, 0), (VA, 32768), (VA, 49152))[n % 3]
        w = rd_tr(KB + 32 * buf, areg, 8, imm, (WS_(n), WS_(n) + 16384, 'wq%d' % n))
        xb = XBUF(n >> 1)
        x = [I('ds_read_b128 %s, v%d offset:%d' % (ar(XF + 20 * buf + 4 * j, 4), XAD + (n & 1), xb + 2048 * j), lds=(xb, xb + 20480, 'x%d' % (n >> 1))) for j in range(5)]
        return x + w
    s.wait(tags=['x0', 'wq0'])
    s('s_barrier')
    stamp(s, o, 2)
    s.add(reads_for(0))
    vq = dma_wq(o, 2) + dma_x(o, 1)
    kv = [dma_k(o, 0, 'K0'), dma_v(o, 0, 'V0'), dma_k(o, 1, 'K1'), dma_v(o, 1, 'V1')]
    for n in range(16):
        buf = n & 1
        tstamp(s, o, 'q', n)
        mf = []
        for db in range(8):
            for j in range(5):
                d = vr(qacc(db, j), 4)
                mf.append(mfma(d, ar(KB + 32 * buf + 4 * db, 4), ar(XF + 20 * buf + 4 * j, 4), '0' if n == 0 else d))
        m = n + 1
        tags = []
        if m < 16:
            tags = ['wq%d' % m]
            if m % 2 == 0: tags.append('x%d' % (m >> 1))
        new = []
        if m + 2 < 16: new += dma_wq(o, m + 2)
        if m % 2 == 0 and m // 2 + 1 < 8: new += dma_x(o, m // 2 + 1)
        if o.kvfin:
            if m == 14: new += kv[0]
            if m == 15: new += kv[1]
            if m == 16: new += kv[2]; kv = []
        else:
            if m in o.kvat_l: new += kv.pop(0)
            if m == 14: new += dma_k(o, 2, 'K2') + dma_v(o, 2, 'V2')
            if m == 16: new += dma_k(o, 3, 'K3')
        barrier_hooks.append(lambda new=new: vq.extend(new))
        gemm_kstep(s, mf, regs('a', KB + 32 * buf, 32) + regs('a', XF + 20 * buf, 20), reads_for(m) if m < 16 else [], dict(tags=tags), [], o.qevery, vq)
    assert not vq and not kv, len(vq)
    stamp(s, o, 3)
    return s

def gen_qfin(o):
    s = Seg('qfin')
    c = sr(sC, 2)
    items = [(sidx, j) for sidx in range(4) for j in range(5)]
    def tq(i): return 60 + 4 * (i % 4)
    def st1(i):
        sidx, j = items[i]
        for e in range(2):
            b = qacc(2 * sidx + e, j)
            s('v_pk_mul_f32 %s, %s, %s' % (vr(b, 2), vr(b, 2), c)); s('v_pk_mul_f32 %s, %s, %s' % (vr(b + 2, 2), vr(b + 2, 2), c))
        for e in range(2):
            b = qacc(2 * sidx + e, j)
            s('v_cvt_pk_bf16_f32 v%d, v%d, v%d' % (tq(i) + 2 * e, b, b + 1)); s('v_cvt_pk_bf16_f32 v%d, v%d, v%d' % (tq(i) + 2 * e + 1, b + 2, b + 3))
    def st2(i):
        t = tq(i)
        s('v_permlane32_swap_b32 v%d, v%d' % (t, t + 2)); s('v_permlane32_swap_b32 v%d, v%d' % (t + 1, t + 3))
    def st3(i):
        t = tq(i)
        s('v_permlane16_swap_b32 v%d, v%d' % (t, t + 2)); s('v_permlane16_swap_b32 v%d, v%d' % (t + 1, t + 3))
    def st4(i):
        sidx, j = items[i]
        for k in range(4): s('v_accvgpr_write_b32 a%d, v%d' % (Q + 16 * j + 4 * sidx + k, tq(i) + k))
    n = len(items)
    kv = dma_v(o, 1, 'V1') + dma_k(o, 2, 'K2') + dma_v(o, 2, 'V2') + dma_k(o, 3, 'K3') if o.kvfin else []
    for i in range(n + 3):
        if kv and i >= 2: s.add(kv.pop(0))
        if i < n: st1(i)
        else: s('s_nop 1')
        if 0 <= i - 3 < n: st4(i - 3)
        if 0 <= i - 2 < n: st3(i - 2)
        if 0 <= i - 1 < n: st2(i - 1)
        if i == n - 8:
            s.wait(tags=['K0'])
            s('s_barrier')
            s.add(rd_k(0, 'K0'))
    stamp(s, o, 4)
    return s

Kt = lambda d: (lambda c: 'K%d' % (c['I'] + d))
Vt = lambda d: (lambda c: 'V%d' % (c['I'] + d))

def qk_list(cinit):
    out = []
    for j in range(5):
        for r in range(8):
            kb, sidx = r & 1, r >> 1
            d = vr(S + 8 * j + 4 * kb, 4)
            cc = d if sidx else (vr(NM + 4 * j, 4) if cinit else '0')
            out.append(mfma(d, ar(KB + 4 * (4 * kb + sidx), 4), ar(Q + 16 * j + 4 * sidx, 4), cc))
    return out
def pv_list(par, vb, zero=False):
    return [mfma(oreg(j, db), ar(vb + 4 * db, 4), vr(P + 20 * par + 4 * j, 4), '0' if zero else oreg(j, db)) for j in range(5) for db in range(8)]

def rowred(s, regs_, tmps, op):
    for sw in ('v_permlane32_swap_b32', 'v_permlane16_swap_b32'):
        for r, t in zip(regs_, tmps): s('v_mov_b32 v%d, v%d' % (t, r))
        if len(regs_) < 3: s('s_nop 1')
        for r, t in zip(regs_, tmps): s('%s v%d, v%d' % (sw, t, r))
        for r, t in zip(regs_, tmps): s('%s v%d, v%d, v%d' % (op, r, r, t))

def max8(s, j, m, acc):
    b = S + 8 * j
    if acc: s('v_max3_f32 v%d, v%d, v%d, v%d' % (m, m, b, b + 1))
    else: s('v_max_f32 v%d, v%d, v%d' % (m, b, b + 1))
    for i in range(1, 4): s('v_max3_f32 v%d, v%d, v%d, v%d' % (m, m, b + 2 * i, b + 2 * i + 1))
MX, MT = 40, 45
def set_nm(s):
    rowred(s, [MX + j for j in range(5)], [MT + j for j in range(5)], 'v_max_f32')
    for j in range(5): s('v_sub_f32 v%d, 0, v%d' % (NM + 4 * j, MX + j))
    for j in range(5):
        for i in range(1, 4): s('v_mov_b32 v%d, v%d' % (NM + 4 * j + i, NM + 4 * j))

def gen_minit(o):
    s = Seg('minit')
    s.wait(regs=regs('a', KB, 32))
    mf = qk_list(False)
    tmp = Seg('t')
    for j in range(4): max8(tmp, j, MX + j, False)
    fill = {14 + 8 * (i // 4) + (i % 4): it for i, it in enumerate(tmp.items)}
    fill = {min(g, 39): None for g in ()} or fill
    late = []
    for g in range(40):
        s.add(mf[g])
        if g in fill: s.add(fill[g])
    for g in sorted(fill):
        if g >= 40: s.add(fill[g])
    s('s_nop 3')
    max8(s, 4, MX + 4, False)
    set_nm(s)
    for j in range(5):
        for i in range(0, 8, 2): s('v_pk_add_f32 %s, %s, %s' % (vr(S + 8 * j + i, 2), vr(S + 8 * j + i, 2), vr(NM + 4 * j, 2)))
    return s

def sm_exp(i):
    r = S + i
    return I('v_exp_f32 v%d, v%d' % (r, r))
def sm_post(i, par):
    j = i >> 3
    out = [I('v_add_f32 v%d, v%d, v%d' % (L + j, L + j, S + i))]
    if i & 1: out.append(I('v_cvt_pk_bf16_f32 v%d, v%d, v%d' % (P + 20 * par + 4 * j + ((i & 7) >> 1), S + i - 1, S + i)))
    return out
def sm_gap(G, par):
    x = G - 12
    if x < 0: x += 80; par ^= 1
    i = x >> 1
    return [sm_exp(i)] if x % 2 == 0 else sm_post(i, par)

def gen_s0(o):
    s = Seg('s0')
    s.label('L_s0')
    for j in range(5): s('v_mov_b32 v%d, 0' % (L + j))
    s.wait(tags=[Kt(1), Vt(0)])
    s('s_barrier')
    if o.unroll: s.add(o.sched[1])
    else:
        s.add(dma_k(o, 0, Kt(4)))
        if not o.vph1: s.add(dma_v(o, 3, Vt(3)))
    s('buffer_atomic_add v%d, v%d, s[%d:%d], 0 offen' % (CNT, T0, SD, SD + 3))
    s.add(rd_k(1, Kt(1)))
    for i in range(35):
        if i < 34: s.add(sm_exp(i))
        else: s('s_nop 0')
        if i > 0: s.add(sm_post(i - 1, 0))
    return s

def capped(o, groups):
    if not o.cap: return groups
    out = []
    for g in groups:
        k = [i for i, x in enumerate(g) if x.kind == 'dma'][0]
        out.append(g[:k] + [I('s_waitcnt vmcnt(%d)' % o.cap)] + g[k:])
    return out

def step(s, o, t, d, dmas, wtags, zero=False, last=False, extra1=None, dmas1=None):
    par = t & 1
    if o.unroll and t % 2 == 1: tstamp(s, o, 'a', t // 2)
    mf = qk_list(True) + pv_list(par ^ 1, VB, zero)
    fill = {g: [] for g in range(80)}
    for g, l in spread(rd_v(VB, (t - 1) % 4, Vt(d - 1)), [1, 5, 9, 13, 17, 21, 25, 29]).items(): fill[g] += l
    if last:
        for g, l in spread(rd_v(KB, t % 4, Vt(d)), [45, 49, 53, 57, 61, 65, 69, 73]).items(): fill[g] += l
    else:
        for g, l in spread(rd_k((t + 1) % 4, Kt(d + 1)), [45, 49, 53, 57, 61, 65, 69, 73]).items(): fill[g] += l
    if dmas:
        n = len(dmas)
        for g, l in spread(dmas, [42 + 2 * ((19 * i) // n // 1) for i in range(n)]).items(): fill[g] += l
    if dmas1:
        for g, l in spread(dmas1, [2, 12, 22, 32] if len(dmas1) == 4 else [4, 16, 28]).items(): fill[g] += l
    if extra1:
        for g, l in spread(extra1, list(range(33, 40))).items(): fill[g] += l
    for g in range(80):
        if g == 0: s.wait(regs=regs('a', KB, 32))
        if g == 40: s.wait(regs=regs('a', VB, 32))
        s.add(mf[g])
        if g == 40:
            s.wait(tags=wtags)
            s('s_barrier')
        s.add(sm_gap(g, par))
        s.add(fill[g])

def std_step(s, o, t, d, zero=False):
    if o.vph1: step(s, o, t, d, capped(o, dma_k(o, t % 4, Kt(d + 4))), [Kt(d + 1), Vt(d)], zero, dmas1=capped(o, dma_v(o, (t - 2) % 4, Vt(d + 2))))
    else: step(s, o, t, d, capped(o, dma_k(o, t % 4, Kt(d + 4)) + dma_v(o, (t - 1) % 4, Vt(d + 3))), [Kt(d + 1), Vt(d)], zero)

def wo_prefetch(s):
    s('v_lshlrev_b32 v%d, 3, v%d' % (T0 + 1, LANE16))
    s('s_lshl_b32 s3, s39, 15'); s('s_lshl_b32 s36, s%d, 13' % sW); s('s_add_u32 s3, s3, s36')
    return I('buffer_load_dword v%d, v%d, s[%d:%d], s3 offen' % (DUM, T0 + 1, SWO, SWO + 3), dummy=True)

def kv_schedule(o):
    q = []
    for j in range(4, 32):
        q += [('K', j, g) for g in capped(o, dma_k(o, j % 4, 'K%d' % j))]
        q += [('V', j - 1, g) for g in capped(o, dma_v(o, (j - 1) % 4, 'V%d' % (j - 1)))]
    q += [('V', 31, g) for g in capped(o, dma_v(o, 3, 'V31'))]
    free = lambda kind, j: 2 * (j - 4) + 1 if kind == 'K' else 2 * (j - 3) + 1
    last_h = 2 * 29 + 2 * o.short
    sched = {h: [] for h in range(1, 64)}
    n = len(q)
    slow = 8 * o.short
    h, i = 1, 0
    while i < n:
        cap = 4
        if slow > 0 and h >= 2: cap = 3; slow -= 1
        k = 0
        while k < cap and i < n and free(q[i][0], q[i][1]) <= h:
            sched[h].append(q[i][2]); i += 1; k += 1
        h += 1
    return sched

def gen_attn(o):
    s1 = Seg('step1')
    body = Seg('body')
    if o.unroll:
        sched = o.sched
        for t in range(1, 30):
            step(s1, o, t, t, sched[2 * t + 1], [Kt(t + 1), Vt(t)], t == 1, dmas1=sched[2 * t])
            if t == 26 and o.pfo: s1.add(wo_prefetch(s1))
    else:
        std_step(s1, o, 1, 1, zero=True)
        s1('s_mov_b32 s%d, 0' % sCNT)
        body.label('L_body')
        for i in range(4):
            std_step(body, o, 2 + i, i)
            if i == 0 and o.pfo:
                body('s_cmp_lg_u32 s%d, 6' % sCNT)
                body('s_cbranch_scc1 L_nopf')
                it = wo_prefetch(body); it.kind = 'other'; body.add(it)
                body.label('L_nopf')
        body('s_add_u32 s%d, s%d, 1' % (sCNT, sCNT))
        body('s_cmp_lt_u32 s%d, 7' % sCNT)
        body('s_cbranch_scc1 L_body')
    tail = Seg('tail')
    pre = Seg('t')
    t0 = DWO
    pre('v_lshrrev_b32 v%d, 8, v%d' % (t0 + 1, DV))
    pre('v_and_b32 v%d, 0x70, v%d' % (t0, DV))
    pre('v_lshl_add_u32 v%d, v%d, 10, v%d' % (t0, t0 + 1, t0))
    pre('v_bfe_u32 v%d, v%d, 7, 1' % (t0 + 1, DV))
    pre('v_mul_u32_u24 v%d, 0x20200, v%d' % (t0 + 1, t0 + 1))
    pre('v_add_u32 v%d, v%d, v%d' % (t0, t0, t0 + 1))
    pre('v_xor_b32 v%d, 0x20200, v%d' % (t0 + 1, t0))
    pre('v_add_u32 v%d, %d, v%d' % (t0 + 2, 2 * 3072, t0))
    pre('v_add_u32 v%d, %d, v%d' % (t0 + 3, 3 * 3072, t0 + 1))
    pre('v_add_u32 v%d, %d, v%d' % (t0 + 1, 3072, t0 + 1))
    for t in range(4): pre('v_xor_b32 v%d, 0x20000, v%d' % (t0 + 4 + t, t0 + t))
    pre('s_lshl_b32 s%d, s%d, 3' % (sA, sG))
    cnt = [[I('buffer_load_dword v%d, off, s[%d:%d], s%d offset:128 sc1' % (CNT, SD, SD + 3, sA), tag='cnt')]]
    if o.unroll:
        assert not any(o.sched[h] for h in range(62, 64))
        step(tail, o, 30, 30, o.sched[61] + cnt + dma_wo(o, 0) + dma_wo(o, 1), [Kt(31), Vt(30)], extra1=pre.items, dmas1=o.sched[60])
        step(tail, o, 31, 31, dma_wo(o, 2) + dma_wo(o, 3), [Vt(31), 'cnt'], last=True)
    else:
        step(tail, o, 30, 30, cnt + dma_wo(o, 0) + dma_wo(o, 1), [Kt(31), Vt(30), Kt(32)], extra1=pre.items)
        step(tail, o, 31, 31, dma_wo(o, 2) + dma_wo(o, 3), [Vt(31), Kt(33), 'cnt'] + ([] if o.vph1 else [Vt(32)]), last=True)
    mf = pv_list(1, KB)
    tail.wait(regs=regs('a', KB, 32))
    for g in range(40):
        tail.add(mf[g])
        if g == 0: tail('s_barrier')
        if g < 12: tail.add(sm_gap(g, 0))
    stamp(tail, o, 5)
    return s1, body, tail

def gen_epi(o):
    s = Seg('epi')
    R = NM
    rowred(s, [L + j for j in range(5)], [90 + j for j in range(5)], 'v_add_f32')
    for j in range(5):
        s('v_cmp_nge_f32 %s, s%d, v%d' % (sr(sM0 if j == 0 else sM1, 2), sTHR, L + j))
        s('v_rcp_f32 v%d, v%d' % (R + 2 * j, L + j))
        if j: s('s_or_b64 %s, %s, %s' % (sr(sM0, 2), sr(sM0, 2), sr(sM1, 2)))
    s('s_cmp_lg_u64 %s, 0' % sr(sM0, 2))
    s('s_cselect_b32 s3, 1, 0')
    for j in range(5): s('v_mov_b32 v%d, v%d' % (R + 2 * j + 1, R + 2 * j))
    s('v_mov_b32 v95, s3')
    s('s_lshl_b32 s3, s%d, 2' % sW); s('s_add_u32 s3, s3, 0x%x' % FLG)
    s('v_mov_b32 v96, s3')
    tg = lambda n: (lambda c: '%s%d' % (n, c.get('redo', 0)))
    s('ds_write_b32 v96, v95', lds=(lambda c: (FLG, FLG + 16, ev(tg('flg'), c))))
    s('s_mul_i32 s3, s%d, 20480' % sW); s('s_add_u32 s3, s3, 0x%x' % EX)
    s('v_add_u32 v97, s3, v%d' % LANE16)
    s('s_xor_b32 s3, s%d, 2' % sW); s('s_mul_i32 s3, s3, 20480'); s('s_add_u32 s3, s3, 0x%x' % EX)
    s('v_add_u32 v98, s3, v%d' % LANE16)
    exr = (lambda c: (EX, EX + 81920, ev(tg('ex'), c)))
    for j in range(5):
        for sidx in range(4):
            f = 16 * j + 4 * sidx
            for e in range(2):
                k, b = otile(j, 2 * sidx + e)
                if k == 'a':
                    for i in range(4): s('v_accvgpr_read_b32 v%d, a%d' % (90 + i, b + i))
                    b = 90
                s('v_pk_mul_f32 %s, %s, %s' % (vr(b, 2), vr(b, 2), vr(R + 2 * j, 2)))
                s('v_pk_mul_f32 %s, %s, %s' % (vr(b + 2, 2), vr(b + 2, 2), vr(R + 2 * j, 2)))
                s('v_cvt_pk_bf16_f32 v%d, v%d, v%d' % (f + 2 * e, b, b + 1))
                s('v_cvt_pk_bf16_f32 v%d, v%d, v%d' % (f + 2 * e + 1, b + 2, b + 3))
            s('ds_write_b128 v97, %s offset:%d' % (vr(f, 4), 1024 * (4 * j + sidx)), lds=exr)
    s('v_mov_b32 v96, 0x%x' % FLG)
    s.wait(lgkm_all=True, tags=['wo0'])
    s('s_barrier')
    s('ds_read_b128 v[92:95], v96', lds=(lambda c: (FLG, FLG + 16, ev(tg('flg'), c))))
    s('s_mul_i32 s3, s%d, 0x2080' % sP)
    s('v_xor_b32 v84, s3, v%d' % VA)
    for k in range(1, 4): s('v_xor_b32 v%d, %d, v84' % (84 + k, 32 * k))
    for k in range(4): s('v_subrev_u32 v%d, 0x%x, v%d' % (80 + k, V0, 84 + k))
    s('v_readfirstlane_b32 s3, v%d' % CNT)
    s.wait(regs=regs('v', 92, 4))
    s('v_or_b32 v92, v92, v93'); s('v_or3_b32 v92, v92, v94, v95')
    s('s_cmp_lt_u32 s3, 16')
    s('v_readfirstlane_b32 s36, v92')
    s('s_cbranch_scc1 L_cntspin')
    s.label('L_cntok')
    s('s_andn2_b32 s36, s36, s%d' % sREDO)
    s('s_cbranch_scc1 L_redo')
    stamp(s, o, 6)
    return s

def gen_spin(s, name, back, load, cond):
    s.label(name)
    s('s_mov_b32 s%d, 0' % sCNT)
    s.label(name + '_l')
    s('s_sleep %d' % 4)
    s(load)
    s('s_waitcnt vmcnt(0)')
    s('s_add_u32 s%d, s%d, 1' % (sCNT, sCNT))
    s('s_cmp_gt_u32 s%d, 0x40000' % sCNT)
    s('s_cbranch_scc1 %s' % back)
    for l in cond: s(l.replace('@', name + '_l'))
    s('s_branch %s' % back)

def gen_redo(o):
    s = Seg('redo')
    s.label('L_redo')
    s('s_mov_b32 s%d, 1' % sREDO)
    s('s_waitcnt vmcnt(0) lgkmcnt(0)')
    s('s_barrier')
    s('v_lshrrev_b32 v%d, 4, v%d' % (T0, LANE16))
    s('v_and_b32 v%d, 15, v%d' % (T0 + 1, T0))
    s('v_and_b32 v%d, 48, v%d' % (T0, T0))
    s('v_lshl_add_u32 v%d, v%d, 8, v%d' % (T0, T0 + 1, T0))
    s('v_add_u32 v%d, 0x1000, v%d' % (T0 + 1, T0))
    for j in range(5): s('v_mov_b32 v%d, 0xff800000' % (MX + j))
    s('s_mov_b32 s%d, 0' % sA)
    lp = Seg('redo_loop')
    lp.label('L_redo_loop')
    for kb in range(2):
        for k in range(4): lp('buffer_load_dwordx4 %s, v%d, s[%d:%d], s%d offen offset:%d' % (ar(KB + 4 * (4 * kb + k), 4), T0 + kb, SK, SK + 3, sA, 64 * k))
    lp('s_waitcnt vmcnt(0)')
    lp.add(qk_list(False))
    lp('s_nop 7')
    for j in range(5): max8(lp, j, MX + j, True)
    lp('s_add_u32 s%d, s%d, 0x2000' % (sA, sA))
    lp('s_cmp_lt_u32 s%d, 0x40000' % sA)
    lp('s_cbranch_scc1 L_redo_loop')
    e = Seg('redo_end')
    set_nm(e)
    kv_start(e, o)
    for i in range(4):
        e.add(dma_k(o, i, Kt(i)))
        if i < 3: e.add(dma_v(o, i, Vt(i)))
    e('v_mov_b32 v%d, 0x40000000' % T0)
    e.wait(tags=[Kt(0)])
    e('s_barrier')
    e.add(rd_k(0, Kt(0)))
    e.wait(regs=regs('a', KB, 32))
    e.add(qk_list(True))
    e('s_nop 7')
    e('s_branch L_s0')
    return s, lp, e

E0V, E1V = 136, 0
OWN = 0
PO = 88
AD, OD, IA, PL, AC, C10, C01, AD2, OD2 = 216, 217, 218, 219, 224, 220, 221, 222, 223
def etile(c, jn, j):
    return (E1V if c & 1 else E0V) + 8 * (5 * (jn >> 1) + j) + 4 * (jn & 1)
def abuf(p): return (112 + 4 * p) if p < 8 else (224 + 4 * (p - 8))
def load_groups(o, c, dst, sreg):
    out = []
    for k in range(10):
        off, ad = (2 * PST * k, AD) if k < 8 else (8 * PST * (k - 8), AD2)
        out.append([I('s_mov_b32 s%d, 0x%x' % (sreg, off + 20480 * c)),
                    I('buffer_load_dwordx4 %s, v%d, s[%d:%d], s%d offen %s' % (dst(k), ad, SG, SG + 3, sreg, o.rd_pol))])
    return out
def poll_txt(): return 'buffer_load_dword v%d, v%d, s[%d:%d], 0 offen sc1' % (PL, IA, SF, SF + 3)
def flag_ops(o, c):
    return [I('v_mov_b32 v89, %d' % (c + 1)), I('buffer_store_dword v89, v%d, s[%d:%d], 0 offen %s' % (FLA, SF, SF + 3, o.fl_pol))]
def red_addr(o):
    s = Seg('t')
    s('s_lshl_b32 s3, s%d, 4' % sG); s('s_add_u32 s3, s3, s38'); s('s_lshl_b32 s3, s3, %d' % (4 + o.ibs))
    s('v_lshrrev_b32 v240, 6, v%d' % LANE16); s('v_lshlrev_b32 v240, %d, v240' % o.ibs); s('v_bfe_u32 v241, v%d, 4, 2' % LANE16)
    s('v_lshl_add_u32 v240, v241, 2, v240'); s('v_add_u32 v%d, s3, v240' % IA)
    s('v_lshrrev_b32 v240, 4, v%d' % LANE16)
    s('v_and_b32 v242, 7, v240')
    s('s_and_b32 s3, s38, 3'); s('s_mul_i32 s63, s3, 5')
    s('s_lshr_b32 s3, s38, 2')
    s('s_lshr_b32 s36, s3, 1'); s('s_lshl_b32 s36, s36, 3'); s('s_and_b32 s3, s3, 1'); s('s_add_u32 s36, s36, s3')
    s('s_mul_i32 s3, s36, 10240'); s('s_lshl_b32 s62, s%d, 8' % sW); s('s_add_u32 s%d, s3, s62' % sM0)
    s('s_mul_i32 s3, s39, %d' % (160 * 2048)); s('s_lshl_b32 s62, s37, 10'); s('s_add_u32 s3, s3, s62')
    s('s_lshl_b32 s62, s36, 6'); s('s_add_u32 s3, s3, s62'); s('s_lshl_b32 s62, s%d, 3' % sW); s('s_add_u32 s%d, s3, s62' % (sM0 + 1))
    s('v_bfe_u32 v241, v240, 3, 2')
    s('v_add_u32 v243, s63, v241')
    s('v_lshl_add_u32 v244, v243, 3, v242')
    s('v_lshrrev_b32 v245, 1, v243')
    s('v_and_b32 v246, 15, v244')
    s('v_lshlrev_b32 v246, 4, v246')
    s('v_lshl_add_u32 v246, v245, 10, v246')
    s('v_lshrrev_b32 v241, 5, v240')
    s('v_mul_u32_u24 v245, %d, v241' % PST)
    s('v_add3_u32 v%d, v246, v245, s%d' % (AD, sM0))
    s('v_lshlrev_b32 v241, 5, v241')
    s('v_lshl_add_u32 v244, v244, 11, v241')
    s('v_add_u32 v%d, s%d, v244' % (OD, sM0 + 1))
    s('s_add_u32 s63, s63, 4')
    s('s_lshr_b32 s3, s63, 1'); s('s_lshl_b32 s3, s3, 10'); s('s_and_b32 s62, s63, 1'); s('s_lshl_b32 s62, s62, 7'); s('s_add_u32 s3, s3, s62')
    s('s_add_u32 s3, s3, s%d' % sM0)
    s('v_lshrrev_b32 v241, 3, v240')
    s('v_mul_u32_u24 v245, %d, v241' % PST)
    s('v_lshl_add_u32 v245, v242, 4, v245')
    s('v_add_u32 v%d, s3, v245' % AD2)
    s('s_lshl_b32 s3, s63, 14'); s('s_add_u32 s3, s3, s%d' % (sM0 + 1))
    s('v_lshrrev_b32 v241, 5, v240'); s('v_lshlrev_b32 v241, 5, v241')
    s('v_lshl_add_u32 v244, v242, 11, v241')
    s('v_add_u32 v244, s3, v244')
    s('v_and_b32 v241, 24, v240')
    s('v_cmp_eq_u32 vcc, 0, v241')
    s('v_mov_b32 v247, 0x40000000')
    s('v_cmp_lt_u32 %s, 31, v240' % sr(sM1, 2))
    s('v_cndmask_b32 v%d, v247, v244, vcc' % OD2)
    s('v_mov_b32 v%d, 0x3f80' % C10); s('v_mov_b32 v%d, 0x3f800000' % C01)
    return s.items

def gen_op(o):
    s = Seg('op')
    exr = (lambda c: (EX, EX + 81920, 'ex%d' % c.get('redo', 0)))
    if o.half: KSL = [(4 * c + r, [(2 * a + e, kk) for kk in range(2) for e in range(2)]) for c in range(4) for a in range(2) for r in range(4)]
    else: KSL = [(u, [(jn, kk) for jn in range(4)]) for u in range(16) for kk in range(2)]
    def reads_for(ks):
        u, fr = KSL[ks]
        base = OSLOT[u % 8]
        areg, imm = (80, base) if base < V0 else (84, base - V0)
        return [I('ds_read_b64_tr_b16 %s, v%d offset:%d' % (ar(KB + 16 * (ks & 1) + 4 * i + 2 * e, 2), areg + jn, imm + 8192 * kk + 4096 * e), lds=(base, base + 16384, 'wo%d' % u))
                for i, (jn, kk) in enumerate(fr) for e in range(2)]
    def conv(c, aa):
        out = []
        for a in aa:
            for j in range(5):
                b = etile(c, 2 * a, j)
                cv = [I('v_cvt_pk_bf16_f32 v%d, v%d, v%d' % (b + i, b + 2 * i, b + 2 * i + 1)) for i in range(4)]
                out.append(cv[:2]); out.append(cv[2:])
                out.append([I('s_mov_b32 s%d, 0x%x' % (sA, (20 * c + 10 * a + j) * 1024)),
                            I('buffer_store_dwordx4 %s, v%d, s[%d:%d], s%d offen %s' % (vr(b, 4), PO, SP_, SP_ + 3, sA, o.st_pol), tag='st%d' % c)])
        return out
    s('s_mov_b32 s%d, 0' % sREDO)
    s.add(reads_for(0))
    part = [I('ds_read_b128 %s, v98 offset:%d' % (ar(PART + 4 * f, 4), 1024 * f), lds=exr) for f in range(20)]
    own = [I('ds_read_b128 %s, v97 offset:%d' % (ar(OWN + 4 * f, 4), 1024 * f), lds=exr) for f in range(20)]
    s('s_mul_i32 s3, s%d, 80' % sP); s('s_mul_i32 s36, s%d, 5' % sHF); s('s_add_u32 s3, s3, s36'); s('s_lshl_b32 s3, s3, 10')
    s('v_add_u32 v%d, s3, v%d' % (PO, LANE16))
    extra = [part[i:i + 2] for i in range(0, 20, 2)] + [own[i:i + 2] for i in range(0, 20, 2)]
    vq = []
    ra = red_addr(o)
    seen = set()
    first_use = {}
    last_use = {}
    for ks, (u, fr) in enumerate(KSL):
        first_use.setdefault(u, ks); last_use[u] = ks
    pending = list(range(4, 16))
    ex_free = None
    for ks, (u, fr) in enumerate(KSL):
        c, phi, dh = u >> 2, (u >> 1) & 1, u & 1
        if ks % 2 == 0: tstamp(s, o, 'o', ks // 2)
        buf = ks & 1
        mf = []
        for i, (jn, kk) in enumerate(fr):
            sidx = 2 * dh + kk
            first = (c, jn) not in seen; seen.add((c, jn))
            for j in range(5):
                d = vr(etile(c, jn, j), 4)
                if phi: bf = ar(PART + 16 * j + 4 * sidx, 4)
                elif c == 0: bf = vr(16 * j + 4 * sidx, 4)
                else: bf = ar(OWN + 16 * j + 4 * sidx, 4)
                mf.append(mfma(d, ar(KB + 16 * buf + 4 * i, 4), bf, '0' if first else d))
        need = regs('a', KB + 16 * buf, 16)
        if phi and c == 0: need = need + regs('a', PART, 80)
        bar = None
        nxt = KSL[ks + 1][0] if ks + 1 < 32 else None
        if nxt is not None and first_use[nxt] == ks + 1:
            if nxt == 3: need = need + regs('a', OWN, 80) + regs('a', PART, 80)
            new = []
            for v in list(pending):
                ok = (v == 4 and nxt >= 1) or (5 <= v <= 7 and nxt >= 3) or (v >= 8 and last_use[v - 8] <= ks)
                if not ok: break
                new += dma_wo(o, v); pending.remove(v)
            bar = dict(tags=['wo%d' % nxt])
            barrier_hooks.append(lambda new=new: vq.extend(new))
        rds = reads_for(ks + 1) if nxt is not None else []
        if ks == 4: extra += [ra[i:i + 2] for i in range(0, len(ra), 2)]
        if o.half:
            if ks % 4 == 0 and ks > 0: extra += [[]] * 2 + conv((ks - 4) >> 3, [((ks - 4) >> 2) & 1])
        elif ks % 8 == 0 and ks > 0: extra += [[]] * 2 + conv(c - 1, [0, 1])
        for cc in range(2):
            if ks == 8 * (cc + 1) + o.flagat: extra.insert(0, [Wait(tags=['st%d' % cc])] + flag_ops(o, cc))
        if ks == 30: extra.append([I(poll_txt(), tag='poll')])
        gemm_kstep(s, mf, need, rds, bar, extra, o.oevery, vq)
        if ks % 8 == 7: stamp(s, o, 7 + c)
    extra = [g for g in extra if g]
    assert not extra and not vq and not pending, (len(extra), len(vq), pending)
    s('s_nop 3')
    for g in conv(3, [1] if o.half else [0, 1]): s.add(g)
    stamp(s, o, 11)
    return s

def gen_red(o):
    s = Seg('red')
    poll = poll_txt()
    BUF = [136, 176, 0, 40]
    def check(n):
        s.wait(regs=[('v', PL)])
        s('v_cmp_gt_u32 vcc, %d, v%d' % (n, PL))
        s('s_cbranch_vccnz L_spin%d' % n)
        s.label('L_got%d' % n)
    def loads(c):
        for g in load_groups(o, c, lambda k: vr(BUF[c] + 4 * k, 4), sA): s.add(g)
    def summ(c):
        a = AC
        for i in range(16): s('v_mov_b32 v%d, 0' % (a + i))
        for k in range(10):
            if k in (0, 4, 8): s.wait(regs=regs('v', BUF[c] + 4 * k, 16 if k < 8 else 8))
            for d in range(4):
                x = BUF[c] + 4 * k + d
                b = a + (8 if k >= 8 else 0)
                s('v_dot2c_f32_bf16 v%d, v%d, v%d' % (b + 2 * d, x, C10)); s('v_dot2c_f32_bf16 v%d, v%d, v%d' % (b + 2 * d + 1, x, C01))
        t = 240
        s('s_nop 2')
        for i in range(8): s('v_add_f32_dpp v%d, v%d, v%d row_ror:8 row_mask:0xf bank_mask:0xf' % (t + i, a + 8 + i, a + 8 + i))
        for i in range(8): s('v_mov_b32 v%d, v%d' % (a + 8 + i, t + i))
        s('s_nop 0')
        for i in range(8): s('v_permlane16_swap_b32 v%d, v%d' % (t + i, a + 8 + i))
        for i in range(8): s('v_add_f32 v%d, v%d, v%d' % (a + 8 + i, a + 8 + i, t + i))
        for b in (a, a + 8):
            for i in range(4): s('v_permlane32_swap_b32 v%d, v%d' % (b + i, b + 4 + i))
        for b in (a, a + 8):
            for i in range(4): s('v_add_f32 v%d, v%d, v%d' % (b + i, b + i, b + 4 + i))
        o2 = 248 + 4 * (c & 1)
        for n_, b in enumerate((a, a + 8)):
            s('v_cvt_pk_bf16_f32 v%d, v%d, v%d' % (o2 + 2 * n_, b, b + 1)); s('v_cvt_pk_bf16_f32 v%d, v%d, v%d' % (o2 + 2 * n_ + 1, b + 2, b + 3))
    def outst(c):
        o2 = 248 + 4 * (c & 1)
        s('buffer_store_dwordx2 %s, v%d, s[%d:%d], 0 offen offset:%d %s' % (vr(o2, 2), OD, SO, SO + 3, 128 * c, o.out_pol))
        s('buffer_store_dwordx2 %s, v%d, s[%d:%d], 0 offen offset:%d %s' % (vr(o2 + 2, 2), OD2, SO, SO + 3, 128 * c, o.out_pol))
    T = lambda i: tstamp(s, o, 'r', i)
    T(0)
    s.wait(regs=[('v', PL)], tags=['st2'])
    T(1)
    s.add(flag_ops(o, 2))
    check(1 if o.chk1 else 2)
    T(2)
    stamp(s, o, 12)
    loads(0)
    T(3)
    s.wait(tags=['st3'])
    T(4)
    s.add(flag_ops(o, 3))
    if o.chk1: check(2)
    s(poll, tag='poll')
    loads(1)
    T(5)
    summ(0)
    T(6)
    check(3)
    T(7)
    stamp(s, o, 13)
    s(poll, tag='poll')
    loads(2)
    outst(0)
    T(8)
    summ(1)
    T(9)
    check(4)
    T(10)
    stamp(s, o, 14)
    loads(3)
    outst(1)
    T(11)
    summ(2); outst(2)
    T(12)
    summ(3); outst(3)
    T(13)
    if o.trace: s('s_waitcnt vmcnt(0)'); T(14); T(15); tstamp(s, o, 'z', 15)
    if o.stamps or o.trace:
        s('s_waitcnt vmcnt(0)')
        stamp(s, o, 15)
    s.label('L_done')
    s('s_endpgm')
    sp = Seg('spins')
    if not o.chk1: sp.label('L_got1')
    for n in (1, 2, 3, 4): gen_spin(sp, 'L_spin%d' % n, 'L_got%d' % n, poll, ['v_cmp_gt_u32 vcc, %d, v%d' % (n, PL), 's_cbranch_vccnz @'])
    sp.label('L_cntspin')
    sp('s_lshl_b32 s%d, s%d, 3' % (sA, sG))
    gen_spin(sp, 'L_cntspin2', 'L_cntok', 'buffer_load_dword v%d, off, s[%d:%d], s%d offset:128 sc1' % (CNT, SD, SD + 3, sA),
             ['v_readfirstlane_b32 s3, v%d' % CNT, 's_cmp_lt_u32 s3, 16', 's_cbranch_scc1 @'])
    return s, sp

def desc(name, vgpr, accum, sgpr):
    return '''.amdhsa_kernel %s
  .amdhsa_next_free_vgpr %d
  .amdhsa_next_free_sgpr %d
  .amdhsa_accum_offset %d
  .amdhsa_group_segment_fixed_size 0
  .amdhsa_kernarg_size 104
  .amdhsa_user_sgpr_count 2
  .amdhsa_user_sgpr_kernarg_segment_ptr 1
  .amdhsa_system_sgpr_workgroup_id_x 1
  .amdhsa_float_denorm_mode_32 3
.end_amdhsa_kernel
''' % (name, vgpr, sgpr, accum)

def build(o, path):
    o.kvat_l = [int(x) for x in o.kvat.split(',')]
    if o.unroll: o.sched = kv_schedule(o)
    entry, q, qf, mi, s0 = gen_entry(o), gen_q(o), gen_qfin(o), gen_minit(o), gen_s0(o)
    s1, body, tail = gen_attn(o)
    epi = gen_epi(o)
    r0, r1, r2 = gen_redo(o)
    op = gen_op(o)
    red, spins = gen_red(o)
    traces = []
    for redo in (0, 1):
        tr = [(entry, {}), (q, {}), (qf, {}), (mi, {})]
        for ps in range(redo + 1):
            if ps: tr += [(r0, {}), (r1, {}), (r1, {}), (r2, dict(I=0))]
            tr += [(s0, dict(I=0)), (s1, dict(I=0))]
            if not o.unroll:
                for it in range(7): tr.append((body, dict(I=2 + 4 * it)))
            tr += [(tail, dict(I=0)), (epi, dict(redo=ps))]
        tr += [(op, dict(redo=redo)), (red, {})]
        traces.append(('redo%d' % redo, tr))
    phase = {'q': [q], 'a': [s1, body], 'o': [op]}
    for ch in o.nowait:
        for sg in phase[ch]:
            for it in sg.items:
                if it.kind == 'ph': it.tags = set()
    for ch in o.nodma:
        for sg in phase[ch]: sg.items = [it for it in sg.items if it.kind != 'dma']
    if o.diag:
        for sg in (s1, body, tail):
            out = []
            n = 0
            for it in sg.items:
                if it.kind == 'trans' and 'x' in o.diag: it = I(it.text.replace('v_exp_f32', 'v_mov_b32'))
                if it.kind in ('trans', 'valu') and 'v' in o.diag and it.mn in ('v_exp_f32', 'v_add_f32', 'v_cvt_pk_bf16_f32'): continue
                if it.kind == 'dsr' and 'l' in o.diag: continue
                if it.kind == 'mfma' and 'm' in o.diag:
                    n += 1
                    if n % 2: continue
                out.append(it)
            sg.items = out
        epi.items = [it for it in epi.items if not (it.kind == 'branch' and 'L_redo' in it.text)]
    resolve([t for _, t in traces])
    allerr = []
    for name, tr in traces: allerr += check(tr, name)[0]
    if o.nowait or o.nodma or o.diag: allerr = []
    for e in allerr[:40]: print('ERR', e)
    if allerr: print(len(allerr), 'errors')
    hdr = open('concat_heads__gqa_block_cached__gqa_block_cached__near_ridge.s.ref').read().split('; Override')[0]
    txt = hdr + '; @launch grid=(256,1,1) block=(256,1,1) lds=163840\n'
    txt += '.amdgcn_target "amdgcn-amd-amdhsa--gfx950"\n.text\n.globl %s\n.p2align 8\n.type %s,@function\n%s:\n' % (KN, KN, KN)
    for sg in [entry, q, qf, mi, s0, s1, body, tail, epi, op, red, spins, r0, r1, r2]: txt += sg.text()
    txt += 'L_code_end:\n'
    txt += '.section .rodata,"a"\n.p2align 6\n' + desc(KN, 512, 256, 100)
    open(path, 'w').write(txt)
    return not allerr

if __name__ == '__main__':
    o = Opt()
    path = sys.argv[1]
    for kv in sys.argv[2:]:
        k, v = kv.split('=')
        cur = getattr(o, k)
        setattr(o, k, int(v) if isinstance(cur, int) else v.replace('+', ' '))
    ok = build(o, path)
    print('written', path, 'ok' if ok else 'WITH ERRORS')
```

```python
import sys, struct, math
from fw import *

KN = "concat_heads__gqa_block_cached__gqa_block_cached__near_ridge_kernel"
WS_BYTES = 287834112
PST = 163840
INB = 256 * PST
def f2u(x): return struct.unpack('<I', struct.pack('<f', x))[0]

class Opt:
    kv_pol = 'nt'; w_pol = ''; st_pol = 'sc1'; rd_pol = 'sc1'; fl_pol = 'sc1'; out_pol = ''
    stamps = 0; cyc = 0; dbgst = 0; trace = ''
    force_redo = 0
    codepf = 1
    par = 1
    qevery = 3
    kvat = '5,7,9,11'
    cap = 4
    rotp = 1
    lasth = 60
    ninit = 10
    oevery = 1
    flagat = 6
    rotc = 1
    pfo = 0
    diag = ''

V0 = 98304
KAD = lambda j: 16384 * (j % 5)
VAD = lambda j: (V0, V0 + 16384, V0 + 32768, V0 + 49152, V0 - 16384)[(j + 2) % 5]
XBUF = lambda m: 32768 + 20480 * (m & 1)
WAD = lambda n: (V0 + 16384, V0 - 16384, V0)[n % 3]
EX = 16384
FLG = VAD(31)
OSLOT = [VAD(28), KAD(30), VAD(29), VAD(30), VAD(31), 16384, 32768, 49152]

S, P, NM, L = 0, 40, 80, 100
KA, KA2, VA, VA2, DK, DV, LANE16, CNT, FLA, CA = 105, 109, 113, 121, 129, 133, 135, 136, 137, 138
DWO = VA2
STV = 140
OV, NOV = 144, 28
XAD, DX, DWQ, DUM = 48, 50, 51, 59
Q, KB, VB, OA = 0, 80, 112, 144
XF = 144
OWN, PART = 0, 144
sW, sP, sREDO, sCNT = 4, 5, 6, 7
SX, SWQ, SK, SV, SWO, SP_ = 8, 12, 16, 20, 24, 28
sOK, sOV, sMK = 32, 33, 34
sBR, sHP, sBT = 37, 38, 39
sWS = 40
sCW, sCP = 44, 48
sC, sTHR = 54, 56
sA, sB = 58, 59
sW1K, sHF = 60, 61
sST = 64
SF, SD, SO = 72, 76, 80
sG = 84
sM0, sM1 = 86, 88
sXO, sWQO = 90, 91
SG = 96

def vr(b, n=1): return 'v%d' % b if n == 1 else 'v[%d:%d]' % (b, b + n - 1)
def ar(b, n=1): return 'a%d' % b if n == 1 else 'a[%d:%d]' % (b, b + n - 1)
def sr(b, n=1): return 's%d' % b if n == 1 else 's[%d:%d]' % (b, b + n - 1)
def mfma(d, a, b, c): return I('v_mfma_f32_16x16x32_bf16 %s, %s, %s, %s' % (d, a, b, c))
def otile(j, db):
    n = 8 * j + db
    return ('v', OV + 4 * n) if n < NOV else ('a', OA + 4 * (n - NOV))
def oreg(j, db):
    k, b = otile(j, db)
    return '%s[%d:%d]' % (k, b, b + 3)
def qacc(db, j):
    n = 8 * j + db
    return 4 * n if n < 12 else OV + 4 * (n - 12)

def clk(o): return 's_memtime' if o.cyc else 's_memrealtime'
def tstamp(s, o, ph, idx):
    if o.trace == ph and idx < 16:
        s('%s s[%d:%d]' % (clk(o), sST + 6, sST + 7)); s('s_waitcnt lgkmcnt(0)')
        s('v_writelane_b32 v%d, s%d, %d' % (STV + 2, sST + 6, idx))
def stamp(s, o, idx):
    st = sST
    def wsrd():
        s('s_mov_b32 s%d, s%d' % (st, sWS)); s('s_mov_b32 s%d, s%d' % (st + 1, sWS + 1))
        s('s_mov_b32 s%d, 0x%x' % (st + 2, WS_BYTES)); s('s_mov_b32 s%d, 0x20000' % (st + 3))
    if o.trace:
        if idx == 15:
            wsrd()
            s('s_mul_i32 s%d, s2, %d' % (st + 4, 128)); s('s_add_u32 s%d, s%d, 0x%x' % (st + 4, st + 4, WS_BYTES - 256 * 128))
            s('s_min_u32 s3, s%d, 1' % sW); s('s_lshl_b32 s3, s3, 30'); s('s_add_u32 s%d, s%d, s3' % (st + 4, st + 4))
            s('v_mbcnt_lo_u32_b32 v0, -1, 0'); s('v_lshlrev_b32 v0, 3, v0'); s('v_mov_b32 v2, v%d' % (STV + 2)); s('v_mov_b32 v3, 0')
            s('s_mov_b64 exec, 0xffff')
            s('buffer_store_dwordx2 v[2:3], v0, s[%d:%d], s%d offen' % (st, st + 3, st + 4))
        return
    if not o.stamps: return
    a, b = STV, STV + 1
    if o.dbgst:
        if idx not in (0, 2, 3, 5, 6, 11, 13, 15): return
        idx = (0, 2, 3, 5, 6, 11, 13, 15).index(idx)
        s('s_memrealtime s[%d:%d]' % (st + 4, st + 5)); s('s_memtime s[%d:%d]' % (st + 6, st + 7)); s('s_waitcnt lgkmcnt(0)')
        s('v_mov_b32 v%d, s%d' % (a, st + 4)); s('v_mov_b32 v%d, s%d' % (b, st + 6))
        s('s_sub_u32 s%d, s2, %d' % (st + 4, o.dbgst - 1)); s('s_mul_i32 s%d, s%d, 0x1000' % (st + 4, st + 4))
        s('s_add_u32 s%d, s%d, 0x%x' % (st + 4, st + 4, idx * 8)); s('s_nop 0')
        s('buffer_store_dwordx2 v[%d:%d], off, s[%d:%d], s%d' % (a, b, SD, SD + 3, st + 4))
        return
    s('%s s[%d:%d]' % (clk(o), st + 4, st + 5)); s('s_waitcnt lgkmcnt(0)')
    if idx == 0: s('s_mov_b64 s[%d:%d], s[%d:%d]' % (st + 4, st + 5, st + 6, st + 7))
    wsrd()
    s('v_mov_b32 v%d, s%d' % (a, st + 4)); s('v_mov_b32 v%d, s%d' % (b, st + 5))
    s('s_mul_i32 s%d, s2, %d' % (st + 4, o.stamps * 8))
    s('s_add_u32 s%d, s%d, 0x%x' % (st + 4, st + 4, WS_BYTES - 256 * o.stamps * 8 + idx * 8)); s('s_nop 0')
    s('buffer_store_dwordx2 v[%d:%d], off, s[%d:%d], s%d' % (a, b, st, st + 3, st + 4))

def dma(voff, srd, soff, imm, pol, tag, lo, n=16384):
    return I('buffer_load_dwordx4 v%d, s[%d:%d], s%d offen offset:%d %s lds' % (voff, srd, srd + 3, soff, imm, pol), tag=tag, lds=(lo, lo + n, tag))
def grp4(pre, mk, post=()):
    out = []
    for t in range(4):
        g = list(pre) if t == 0 else []
        g.append(mk(t))
        if t == 3: g += list(post)
        out.append(g)
    return out
def dma_x(o, m):
    buf = XBUF(m)
    out = [[I('s_add_u32 m0, s%d, 0x%x' % (sW1K, buf + 4096 * j)), I('s_add_u32 s%d, s%d, 0x%x' % (sA, sXO, 32768 * j)),
            dma(DX, SX, sA, 0, o.w_pol, 'x%d' % m, buf, 20480)] for j in range(5)]
    out[4] += [I('s_add_u32 s%d, s%d, 128' % (sXO, sXO)), I('s_and_b32 s%d, s%d, 0x3ff' % (sXO, sXO))]
    return out
def dma_wq(o, n):
    b = WAD(n)
    return grp4([I('s_add_u32 m0, s%d, 0x%x' % (sMK, b)), I('s_nop 0')],
                lambda t: dma(DWQ + t, SWQ, sWQO, 1024 * t, o.w_pol, 'wq%d' % n, b),
                [I('s_add_u32 s%d, s%d, 0x40000' % (sWQO, sWQO)), I('s_and_b32 s%d, s%d, 0x3fffff' % (sWQO, sWQO))])
def dma_kv(o, kind, j):
    b, so, srd_ = (KAD(j), sOK, SK) if kind == 'K' else (VAD(j), sOV, SV)
    vo = (lambda t: DK + t) if kind == 'K' else (lambda t: DV + (t & 1))
    return grp4([I('s_add_u32 s%d, s%d, 0x2000' % (so, so)), I('s_add_u32 m0, s%d, 0x%x' % (sMK, b)), I('s_and_b32 s%d, s%d, 0x3ffff' % (so, so))],
                lambda t: dma(vo(t), srd_, so, 1024 * t, o.kv_pol, '%s%d' % (kind, j), b))
KVSEQ = [(k, j) for j in range(32) for k in 'KV']
def dma_wo(o, u):
    c, phi, dh = u >> 2, (u >> 1) & 1, u & 1
    b = OSLOT[u % 8]
    return grp4([I('s_lshl_b32 s%d, s%d, 2' % (sB, sMK)), I('s_add_u32 s%d, s%d, s%d' % (sB, sB, sCW + c)),
                 I('s_add_u32 m0, s%d, 0x%x' % (sMK, b)), I('s_add_u32 s%d, s%d, 0x%x' % (sB, sB, 65536 * dh))],
                lambda t: dma(DWO + 4 * phi + t, SWO, sB, 1024 * t, o.w_pol, 'wo%d' % u, b))
def capped(o, groups):
    if not o.cap: return groups
    out = []
    for g in groups:
        k = [i for i, x in enumerate(g) if x.kind == 'dma'][0]
        out.append(g[:k] + [I('s_waitcnt vmcnt(%d)' % o.cap)] + g[k:])
    return out

def rd_k(j):
    b = KAD(j)
    areg, imm = (KA, b) if b < 65536 else (KA2, b - 65536)
    return [I('ds_read_b128 %s, v%d offset:%d' % (ar(KB + 4 * (4 * kb + s), 4), areg + s, imm + 4096 * kb), lds=(b, b + 16384, 'K%d' % j))
            for s in range(4) for kb in range(2)]
def rd_tr(dst, b, tag):
    areg, imm = (VA, b - V0) if b >= V0 else (VA2, 0)
    return [I('ds_read_b64_tr_b16 %s, v%d offset:%d' % (ar(dst + 4 * d + 2 * e, 2), areg + d, imm + 4096 * e), lds=(b, b + 16384, tag))
            for d in range(8) for e in range(2)]
def rd_v(dst, j): return rd_tr(dst, VAD(j), 'V%d' % j)

def spread(items, gaps):
    d = {g: [] for g in gaps}
    n, m = len(items), len(gaps)
    for i, it in enumerate(items): d[gaps[i * m // n]].append(it)
    return d
def srd(s, r, lo, hi, off, size):
    if off is None: s('s_mov_b32 s%d, s%d' % (r, lo)); s('s_mov_b32 s%d, s%d' % (r + 1, hi))
    else: s('s_add_u32 s%d, s%d, s%d' % (r, lo, off)); s('s_addc_u32 s%d, s%d, 0' % (r + 1, hi))
    if size is not None: s('s_mov_b32 s%d, 0x%x' % (r + 2, size))
    s('s_mov_b32 s%d, 0x20000' % (r + 3))
def kv_start(s, o):
    s('s_mul_i32 s3, s%d, 0x%x' % (sP, 8192 * o.rotp)); s('s_lshl_b32 s36, s%d, 12' % sHF); s('s_add_u32 s3, s3, s36')
    s('s_sub_u32 s%d, s3, 0x2000' % sOK); s('s_mov_b32 s%d, s%d' % (sOV, sOK))

def gen_entry(o):
    s = Seg('entry')
    if o.stamps and not o.dbgst: s('%s s[%d:%d]' % (clk(o), sST + 6, sST + 7))
    s('s_cmp_ge_u32 s2, 256')
    s('s_cbranch_scc1 L_done')
    s('s_and_b32 s3, s2, 7')
    s('s_lshr_b32 s36, s2, 3')
    if o.par: s('s_and_b32 s37, s3, 1'); s('s_lshr_b32 s38, s3, 1')
    else: s('s_lshr_b32 s37, s3, 2'); s('s_and_b32 s38, s3, 3')
    s('s_mul_i32 s3, s37, 40'); s('s_add_u32 s42, s0, s3'); s('s_addc_u32 s43, s1, 0')
    s('''s_load_dwordx8 s[44:51], s[42:43], 0
         s_load_dwordx2 s[52:53], s[42:43], 32
         s_load_dwordx2 s[40:41], s[0:1], 96
         s_load_dwordx4 s[92:95], s[0:1], 80''')
    if o.codepf:
        s('s_getpc_b64 s[62:63]')
        s.label('L_pc')
        s('v_lshrrev_b32 v7, 2, v0'); s('v_and_b32 v7, 0x30, v7'); s('v_and_b32 v8, 15, v0'); s('v_or_b32 v7, v7, v8')
        s('s_and_b32 s3, s36, 15'); s('s_lshl_b32 s3, s3, 6')
        s('v_add_lshl_u32 v7, s3, v7, 7')
        s('v_min_u32 v7, L_code_end-L_pc-4, v7')
        s('global_load_dword v%d, v7, s[62:63]' % DUM, dummy=True)
    s('''s_lshl_b32 s38, s38, 2
         s_and_b32 s39, s36, 3
         s_or_b32 s38, s38, s39
         s_lshr_b32 s39, s36, 2''')
    s('v_lshrrev_b32 v7, 6, v0')
    s('v_and_b32 v1, 63, v0')
    s('v_readfirstlane_b32 s%d, v7' % sW)
    s('v_lshrrev_b32 v2, 4, v1')
    s('v_and_b32 v3, 15, v1')
    s('v_and_b32 v5, 7, v1')
    s('s_lshl_b32 s%d, s%d, 10' % (sW1K, sW))
    s('s_lshl_b32 s%d, s%d, 12' % (sMK, sW))
    s('s_lshr_b32 s%d, s%d, 1' % (sP, sW))
    s('s_and_b32 s%d, s%d, 1' % (sHF, sW))
    s('s_lshl_b32 s3, s%d, 2' % sHF)
    s('v_add_u32 v9, s3, v2')
    s('v_xor_b32 v5, v9, v5')
    s('v_lshlrev_b32 v5, 4, v5')
    s('v_lshrrev_b32 v4, 3, v0')
    s('v_lshl_add_u32 v%d, v4, 10, v5' % DX)
    s('v_lshlrev_b32 v6, 1, v2')
    s('v_xor_b32 v6, v6, v3')
    s('v_lshlrev_b32 v6, 4, v6')
    s('v_lshl_add_u32 v4, v9, 13, v6')
    s('s_lshl_b32 s3, s%d, 8' % sP)
    s('v_add_u32 v%d, s3, v4' % DWQ)
    s('v_xor_b32 v4, 0x80, v%d' % DWQ)
    s('v_add_u32 v%d, 0x%x, v4' % (DWQ + 1, 64512))
    s('v_add_u32 v%d, 0x%x, v%d' % (DWQ + 2, 2 * 64512, DWQ))
    s('v_add_u32 v%d, 0x%x, v4' % (DWQ + 3, 3 * 64512))
    s('s_and_b32 s3, s38, 3'); s('s_lshl_b32 s3, s3, 1'); s('s_add_u32 s3, s3, s39'); s('s_and_b32 s3, s3, 7')
    s('s_lshl_b32 s%d, s3, 7' % sXO); s('s_lshl_b32 s%d, s3, 19' % sWQO)
    s('s_mul_i32 s3, s39, 163840'); s('s_lshl_b32 s36, s38, 9')
    s('s_waitcnt lgkmcnt(0)')
    srd(s, SX, 44, 45, 3, 163840)
    srd(s, SWQ, 50, 51, 36, None); s('s_sub_u32 s%d, 0x400000, s36' % (SWQ + 2))
    for g in dma_x(o, 0) + dma_wq(o, 0) + dma_wq(o, 1): s.add(g)
    srd(s, SD, 94, 95, None, 256)
    stamp(s, o, 0)
    s('v_lshlrev_b32 v%d, 4, v1' % LANE16)
    s('s_mov_b32 s3, 0x%x' % INB); srd(s, SF, sWS, sWS + 1, 3, 65536)
    s('s_lshl_b32 s%d, s37, 3' % sG); s('s_add_u32 s%d, s%d, s39' % (sG, sG))
    s('s_lshl_b32 s36, s%d, 4' % sG); s('s_add_u32 s36, s36, s38')
    s('s_min_u32 s3, s%d, 1' % sW); s('s_lshl_b32 s3, s3, 30')
    s('s_lshl_b32 s62, s36, 8'); s('s_add_u32 s62, s62, s3')
    s('v_lshlrev_b32 v8, 2, v1'); s('v_add_u32 v9, s62, v8'); s('v_mov_b32 v10, 0')
    s('buffer_store_dword v10, v9, s[%d:%d], 0 offen %s' % (SF, SF + 3, o.fl_pol), tag='clr')
    s('s_mul_i32 s3, s36, %d' % PST); srd(s, SP_, sWS, sWS + 1, 3, 163840)
    s('''s_lshl_b32 s3, s39, 4
         s_add_u32 s3, s3, s38
         s_lshl_b32 s3, s3, 1
         s_add_u32 s3, s3, s%d
         s_lshl_b32 s3, s3, 18''' % sP)
    srd(s, SK, 46, 47, 3, 0x40000); srd(s, SV, 48, 49, 3, 0x40000)
    s('s_lshl_b32 s3, s38, 18'); srd(s, SWO, 52, 53, 3, 0x40000)
    srd(s, SO, 92, 93, None, 8 * 160 * 2048)
    s('s_mul_i32 s3, s%d, %d' % (sG, 16 * PST)); srd(s, SG, sWS, sWS + 1, 3, 16 * PST)
    kv_start(s, o)
    for c in range(4):
        if o.rotc: s('s_add_u32 s3, s39, %d' % c); s('s_and_b32 s3, s3, 3')
        else: s('s_mov_b32 s3, %d' % c)
        s('s_lshl_b32 s%d, s3, 7' % (sCW + c)); s('s_mul_i32 s%d, s3, 20480' % (sCP + c))
    c = math.log2(math.e) / math.sqrt(128.0)
    s('s_mov_b32 s%d, 0x%x' % (sC, f2u(c))); s('s_mov_b32 s%d, 0x%x' % (sC + 1, f2u(c)))
    s('s_mov_b32 s%d, 0x%x' % (sTHR, f2u(2.0 ** 24 if not o.force_redo else 1.0)))
    s('s_mov_b32 s%d, 0' % sREDO)
    s('s_lshl_b32 s3, s%d, 12' % sG); s('s_lshl_b32 s36, s38, 4'); s('s_add_u32 s3, s3, s36')
    s('s_lshl_b32 s36, s%d, 2' % sW); s('s_add_u32 s3, s3, s36')
    s('v_lshlrev_b32 v4, 8, v3'); s('v_add_u32 v4, s3, v4')
    s('v_min_u32 v5, 1, v2'); s('v_lshl_add_u32 v%d, v5, 30, v4' % FLA)
    s('v_min_u32 v5, 1, v0'); s('v_lshlrev_b32 v5, 30, v5'); s('s_lshl_b32 s3, s%d, 3' % sG); s('s_add_u32 s3, s3, 128'); s('v_add_u32 v%d, s3, v5' % CA)
    s('v_mov_b32 v%d, 1' % CNT)
    s('v_xor_b32 v4, v2, v3'); s('v_lshlrev_b32 v4, 4, v4')
    s('v_lshl_add_u32 v%d, v2, 8, v4' % DK)
    for t in range(1, 4): s('v_xor_b32 v%d, %d, v%d' % (DK + t, 64 * t, DK))
    s('v_lshl_add_u32 v%d, v2, 8, v6' % DV)
    s('v_xor_b32 v%d, 0x80, v%d' % (DV + 1, DV))
    s('v_lshl_add_u32 v4, v3, 8, v4')
    s('s_lshl_b32 s36, s%d, 13' % sP)
    s('v_add_u32 v%d, s36, v4' % KA)
    for k in range(1, 4): s('v_xor_b32 v%d, %d, v%d' % (KA + k, 64 * k, KA))
    for k in range(4): s('v_add_u32 v%d, 0x10000, v%d' % (KA2 + k, KA + k))
    s('v_lshrrev_b32 v4, 1, v3'); s('v_xor_b32 v4, v4, v2'); s('v_lshlrev_b32 v4, 4, v4')
    s('v_lshl_add_u32 v4, v3, 7, v4')
    s('s_mul_i32 s3, s%d, 10240' % sHF)
    s('v_add_u32 v%d, s3, v4' % XAD)
    s('v_xor_b32 v%d, 64, v%d' % (XAD + 1, XAD))
    s('v_lshrrev_b32 v4, 2, v1')
    s('v_and_b32 v5, 7, v4')
    s('v_lshlrev_b32 v5, 5, v5')
    s('v_lshl_add_u32 v5, v4, 8, v5')
    s('v_and_b32 v4, 3, v1')
    s('v_lshl_add_u32 v5, v4, 3, v5')
    s('s_add_u32 s36, s36, 0x%x' % V0)
    s('v_add_u32 v%d, s36, v5' % VA)
    for k in range(1, 8): s('v_xor_b32 v%d, %d, v%d' % (VA + k, 32 * k, VA))
    for k in range(8): s('v_subrev_u32 v%d, 0x4000, v%d' % (VA2 + k, VA + k))
    stamp(s, o, 1)
    return s

def is_vm(g): return any(x.kind in ('dma', 'vst', 'vld') for x in g)
class Pace: since = 99
barrier_hooks = []
def gemm_kstep(s, mf, need, reads, barrier, extra, every=1, vq=None):
    n = len(mf)
    rg = list(range(2, 2 + (len(reads) + 1) // 2)) if n <= 20 else list(range(2, 2 + len(reads)))
    rd = spread(reads, rg) if reads else {}
    for g in range(n):
        if g == 0: s.wait(regs=need)
        s.add(mf[g])
        if g == 1 and barrier is not None:
            s.wait(**barrier)
            s('s_barrier')
            for f in barrier_hooks: f()
            del barrier_hooks[:]
        s.add(rd.get(g, []))
        Pace.since += 1
        busy = len(rd.get(g, []))
        if vq and Pace.since >= every and busy < 2:
            s.add(vq.pop(0)); Pace.since = 0
        elif extra and busy < 2 and (not is_vm(extra[0]) or Pace.since >= every):
            if is_vm(extra[0]): Pace.since = 0
            s.add(extra.pop(0))

def qconv_stream():
    c = sr(sC, 2)
    items = [(j, sidx) for j in range(5) for sidx in range(4)]
    tq = lambda i: 60 + 4 * (i % 4)
    def st1(i):
        j, sidx = items[i]; out = []
        for e in range(2):
            b = qacc(2 * sidx + e, j)
            out += [I('v_pk_mul_f32 %s, %s, %s' % (vr(b, 2), vr(b, 2), c)), I('v_pk_mul_f32 %s, %s, %s' % (vr(b + 2, 2), vr(b + 2, 2), c))]
        for e in range(2):
            b = qacc(2 * sidx + e, j)
            out += [I('v_cvt_pk_bf16_f32 v%d, v%d, v%d' % (tq(i) + 2 * e, b, b + 1)), I('v_cvt_pk_bf16_f32 v%d, v%d, v%d' % (tq(i) + 2 * e + 1, b + 2, b + 3))]
        return out
    sw = lambda op, i: [I('%s v%d, v%d' % (op, tq(i), tq(i) + 2)), I('%s v%d, v%d' % (op, tq(i) + 1, tq(i) + 3))]
    def st4(i):
        j, sidx = items[i]
        return [I('v_accvgpr_write_b32 a%d, v%d' % (Q + 16 * j + 4 * sidx + k, tq(i) + k)) for k in range(4)]
    n = len(items)
    rounds = []
    for i in range(n + 3):
        r = st1(i) if i < n else [I('s_nop 1')]
        if 0 <= i - 3 < n: r += st4(i - 3)
        if 0 <= i - 2 < n: r += sw('v_permlane16_swap_b32', i - 2)
        if 0 <= i - 1 < n: r += sw('v_permlane32_swap_b32', i - 1)
        rounds.append(r)
    return rounds

def gen_q(o):
    s = Seg('qphase')
    def reads_for(n):
        buf = n & 1
        w = rd_tr(KB + 32 * buf, WAD(n), 'wq%d' % n)
        xb = XBUF(n >> 1)
        x = [I('ds_read_b128 %s, v%d offset:%d' % (ar(XF + 20 * buf + 4 * j, 4), XAD + (n & 1), xb + 2048 * j), lds=(xb, xb + 20480, 'x%d' % (n >> 1))) for j in range(5)]
        return x + w
    s.wait(tags=['x0', 'wq0'])
    s('s_barrier')
    stamp(s, o, 2)
    s.add(reads_for(0))
    vq = dma_wq(o, 2) + dma_x(o, 1)
    kv = [dma_kv(o, k, j) for k, j in KVSEQ[:o.ninit]]
    rounds = qconv_stream()
    for n in range(16):
        buf = n & 1
        tstamp(s, o, 'q', n)
        order = [(db, j) for db in range(8) for j in range(5)] if n < 15 else [(db, j) for j in range(5) for db in range(8)]
        mf = []
        for db, j in order:
            d = vr(qacc(db, j), 4)
            mf.append(mfma(d, ar(KB + 32 * buf + 4 * db, 4), ar(XF + 20 * buf + 4 * j, 4), '0' if n == 0 else d))
        m = n + 1
        tags = []
        if m < 16:
            tags = ['wq%d' % m]
            if m % 2 == 0: tags.append('x%d' % (m >> 1))
        else: tags = ['K0']
        new = []
        if m + 2 < 16: new += dma_wq(o, m + 2)
        if m % 2 == 0 and m // 2 + 1 < 8: new += dma_x(o, m // 2 + 1)
        if m in o.kvat_l: new += kv.pop(0)
        if m == 14: new += kv.pop(0) + kv.pop(0)
        if m == 16: new += kv.pop(0)
        barrier_hooks.append(lambda new=new: vq.extend(new))
        extra = []
        if n == 15:
            head = sum(rounds[:3], []); del rounds[:3]
            extra = [[]] * 10 + [head[i:i + 2] for i in range(0, len(head), 2)]
        gemm_kstep(s, mf, regs('a', KB + 32 * buf, 32) + regs('a', XF + 20 * buf, 20), reads_for(m) if m < 16 else rd_k(0), dict(tags=tags), extra, o.qevery, vq)
    assert not vq
    for g in extra: s.add(g)
    stamp(s, o, 3)
    kvq = sum(kv, [])
    qk = qk_list(False)
    mx = []
    for j in range(4):
        t = Seg('t'); max8(t, j, MX + j, False); mx.append(t.items)
    done = 3
    pend = []
    first = True
    for r in rounds:
        if kvq: s.add(kvq.pop(0))
        k = 0
        for it in r:
            s.add(it); k += 1
            if pend and k % 2 == 0:
                if first: s.wait(regs=regs('a', KB, 32)); first = False
                s.add(pend.pop(0))
        done += 1
        if done >= 8 and (done - 8) % 4 == 0:
            j = (done - 8) // 4
            pend += qk[8 * j:8 * j + 8]
            if j >= 1: s.add(mx[j - 1])
    s('s_nop 0')
    for i, it in enumerate(qk[32:40]):
        s.add(it)
        if i in (2, 3, 4, 5): s.add(mx[3][i - 2])
    assert not pend
    s.add(kvq)
    s('s_nop 6')
    max8(s, 4, MX + 4, False)
    set_nm(s)
    for j in range(5):
        for i in range(0, 8, 2): s('v_pk_add_f32 %s, %s, %s' % (vr(S + 8 * j + i, 2), vr(S + 8 * j + i, 2), vr(NM + 4 * j, 2)))
    stamp(s, o, 4)
    return s

def qk_list(cinit):
    out = []
    for j in range(5):
        for r in range(8):
            kb, sidx = r & 1, r >> 1
            d = vr(S + 8 * j + 4 * kb, 4)
            cc = d if sidx else (vr(NM + 4 * j, 4) if cinit else '0')
            out.append(mfma(d, ar(KB + 4 * (4 * kb + sidx), 4), ar(Q + 16 * j + 4 * sidx, 4), cc))
    return out
def pv_list(par, vb, zero=False):
    return [mfma(oreg(j, db), ar(vb + 4 * db, 4), vr(P + 20 * par + 4 * j, 4), '0' if zero else oreg(j, db)) for j in range(5) for db in range(8)]
def rowred(s, regs_, tmps, op):
    for sw in ('v_permlane32_swap_b32', 'v_permlane16_swap_b32'):
        for r, t in zip(regs_, tmps): s('v_mov_b32 v%d, v%d' % (t, r))
        for r, t in zip(regs_, tmps): s('%s v%d, v%d' % (sw, t, r))
        for r, t in zip(regs_, tmps): s('%s v%d, v%d, v%d' % (op, r, r, t))
def max8(s, j, m, acc):
    b = S + 8 * j
    if acc: s('v_max3_f32 v%d, v%d, v%d, v%d' % (m, m, b, b + 1))
    else: s('v_max_f32 v%d, v%d, v%d' % (m, b, b + 1))
    for i in range(1, 4): s('v_max3_f32 v%d, v%d, v%d, v%d' % (m, m, b + 2 * i, b + 2 * i + 1))
MX, MT = L, 48
def set_nm(s):
    rowred(s, [MX + j for j in range(5)], [MT + j for j in range(5)], 'v_max_f32')
    for j in range(5): s('v_sub_f32 v%d, 0, v%d' % (NM + 4 * j, MX + j))
    for j in range(5):
        for i in range(1, 4): s('v_mov_b32 v%d, v%d' % (NM + 4 * j + i, NM + 4 * j))

def sm_exp(i): return I('v_exp_f32 v%d, v%d' % (S + i, S + i))
def sm_post(i, par):
    j = i >> 3
    out = [I('v_add_f32 v%d, v%d, v%d' % (L + j, L + j, S + i))]
    if i & 1: out.append(I('v_cvt_pk_bf16_f32 v%d, v%d, v%d' % (P + 20 * par + 4 * j + ((i & 7) >> 1), S + i - 1, S + i)))
    return out
def sm_gap(G, par):
    x = G - 12
    if x < 0: x += 80; par ^= 1
    i = x >> 1
    return [sm_exp(i)] if x % 2 == 0 else sm_post(i, par)

def kv_schedule(o):
    q = [(k, j, g) for k, j in KVSEQ[o.ninit:] for g in capped(o, dma_kv(o, k, j))]
    free = lambda kind, j: 2 * (j - 5) + 1 if kind == 'K' else 2 * (j - 4) + 1
    sched = {h: [] for h in range(1, 64)}
    n = len(q)
    slow = max(0, 4 * o.lasth - n)
    h, i = 1, 0
    while i < n:
        cap = 4
        if slow > 0: cap = 3
        k = 0
        while k < cap and i < n and free(q[i][0], q[i][1]) <= h:
            sched[h].append(q[i][2]); i += 1; k += 1
        slow -= 4 - k
        h += 1
    return sched

def gen_s0(o):
    s = Seg('s0')
    s.label('L_s0')
    for j in range(5): s('v_mov_b32 v%d, 0' % (L + j))
    s.wait(tags=['K1', 'V0'])
    s('s_barrier')
    s.add(rd_k(1))
    dm = spread(o.sched[1] + [[I('buffer_atomic_add v%d, v%d, s[%d:%d], 0 offen' % (CNT, CA, SD, SD + 3))]], [1, 8, 15, 22, 29])
    for i in range(35):
        if i < 34: s.add(sm_exp(i))
        else: s('s_nop 0')
        if i > 0: s.add(sm_post(i - 1, 0))
        s.add(dm.get(i, []))
    return s

def step(s, o, t, more1=(), more2=(), wtags=(), valu1=None):
    par = t & 1
    if t % 2 == 1: tstamp(s, o, 'a', t // 2)
    mf = qk_list(True) + pv_list(par ^ 1, VB, t == 1)
    fill = {g: [] for g in range(80)}
    for g, l in spread(rd_v(VB, t - 1), [1, 5, 9, 13, 17, 21, 25, 29]).items(): fill[g] += l
    for g, l in spread(rd_k(t + 1) if t < 31 else rd_v(KB, 31), [45, 49, 53, 57, 61, 65, 69, 73]).items(): fill[g] += l
    for base, dm in ((2, o.sched[2 * t] + list(more1)), (42, o.sched[2 * t + 1] + list(more2))):
        n = len(dm)
        for i, g in enumerate(dm): fill[base + 2 * ((19 * i) // n)] += g
    if valu1:
        for g, l in spread(valu1, list(range(33, 40))).items(): fill[g] += l
    for g in range(80):
        if g == 0: s.wait(regs=regs('a', KB, 32))
        if g == 40: s.wait(regs=regs('a', VB, 32))
        s.add(mf[g])
        if g == 40:
            s.wait(tags=(['K%d' % (t + 1)] if t < 31 else []) + ['V%d' % t] + list(wtags))
            s('s_barrier')
        s.add(sm_gap(g, par))
        s.add(fill[g])

def gen_attn(o):
    s = Seg('attn')
    pre = Seg('t')
    t0 = DWO
    pre('v_lshrrev_b32 v%d, 8, v%d' % (t0 + 1, DV))
    pre('v_and_b32 v%d, 0x70, v%d' % (t0, DV))
    pre('v_lshl_add_u32 v%d, v%d, 10, v%d' % (t0, t0 + 1, t0))
    pre('v_bfe_u32 v%d, v%d, 7, 1' % (t0 + 1, DV))
    pre('v_mul_u32_u24 v%d, 0x20200, v%d' % (t0 + 1, t0 + 1))
    pre('v_add_u32 v%d, v%d, v%d' % (t0, t0, t0 + 1))
    pre('v_xor_b32 v%d, 0x20200, v%d' % (t0 + 1, t0))
    pre('v_add_u32 v%d, %d, v%d' % (t0 + 2, 2 * 3072, t0))
    pre('v_add_u32 v%d, %d, v%d' % (t0 + 3, 3 * 3072, t0 + 1))
    pre('v_add_u32 v%d, %d, v%d' % (t0 + 1, 3072, t0 + 1))
    for t in range(4): pre('v_xor_b32 v%d, 0x20000, v%d' % (t0 + 4 + t, t0 + t))
    cnt = [[I('s_lshl_b32 s%d, s%d, 3' % (sA, sG)), I('buffer_load_dword v%d, off, s[%d:%d], s%d offset:128 sc1' % (CNT, SD, SD + 3, sA), tag='cnt')]]
    busy = lambda h: any(o.sched[x] for x in range(h, 64))
    early0 = not busy(59)
    for t in range(1, 32):
        if t == 29: step(s, o, t, valu1=pre.items, more2=dma_wo(o, 0) if early0 else [])
        elif t == 30: step(s, o, t, more2=cnt + ([] if early0 else dma_wo(o, 0)) + dma_wo(o, 1) + (dma_wo(o, 2) if early0 else []))
        elif t == 31: step(s, o, t, more1=[] if early0 else dma_wo(o, 2), more2=dma_wo(o, 3), wtags=['cnt'])
        else: step(s, o, t)
        if t == 26 and o.pfo:
            s('v_lshlrev_b32 v%d, 3, v%d' % (CA, LANE16))
            s('s_lshl_b32 s3, s39, 15'); s('s_lshl_b32 s36, s%d, 13' % sW); s('s_add_u32 s3, s3, s36')
            s('buffer_load_dword v%d, v%d, s[%d:%d], s3 offen' % (CA + 1, CA, SWO, SWO + 3), dummy=True)
    return s

def gen_epi(o):
    s = Seg('epi')
    R = NM
    v = Seg('t')
    rowred(v, [L + j for j in range(5)], [90 + j for j in range(5)], 'v_add_f32')
    for j in range(5):
        v('v_cmp_nge_f32 %s, s%d, v%d' % (sr(sM0 if j == 0 else sM1, 2), sTHR, L + j))
        v('v_rcp_f32 v%d, v%d' % (R + 2 * j, L + j))
        if j: v('s_or_b64 %s, %s, %s' % (sr(sM0, 2), sr(sM0, 2), sr(sM1, 2)))
    v('s_cmp_lg_u64 %s, 0' % sr(sM0, 2))
    v('s_cselect_b32 s3, 1, 0')
    for j in range(5): v('v_mov_b32 v%d, v%d' % (R + 2 * j + 1, R + 2 * j))
    v('v_mov_b32 v95, s3')
    v('s_lshl_b32 s3, s%d, 2' % sW); v('s_add_u32 s3, s3, 0x%x' % FLG)
    v('v_mov_b32 v96, s3')
    tg = lambda n: (lambda c: '%s%d' % (n, c.get('redo', 0)))
    v('ds_write_b32 v96, v95', lds=(lambda c: (FLG, FLG + 16, ev(tg('flg'), c))))
    v('s_mul_i32 s3, s%d, 20480' % sW); v('s_add_u32 s3, s3, 0x%x' % EX)
    v('v_add_u32 v97, s3, v%d' % LANE16)
    v('s_xor_b32 s3, s%d, 2' % sW); v('s_mul_i32 s3, s3, 20480'); v('s_add_u32 s3, s3, 0x%x' % EX)
    v('v_add_u32 v98, s3, v%d' % LANE16)
    exr = (lambda c: (EX, EX + 81920, ev(tg('ex'), c)))
    for j in range(5):
        for sidx in range(4):
            f = 16 * j + 4 * sidx
            for e in range(2):
                k, b = otile(j, 2 * sidx + e)
                if k == 'a':
                    for i in range(4): v('v_accvgpr_read_b32 v%d, a%d' % (90 + i, b + i))
                    b = 90
                v('v_pk_mul_f32 %s, %s, %s' % (vr(b, 2), vr(b, 2), vr(R + 2 * j, 2)))
                v('v_pk_mul_f32 %s, %s, %s' % (vr(b + 2, 2), vr(b + 2, 2), vr(R + 2 * j, 2)))
                v('v_cvt_pk_bf16_f32 v%d, v%d, v%d' % (f + 2 * e, b, b + 1))
                v('v_cvt_pk_bf16_f32 v%d, v%d, v%d' % (f + 2 * e + 1, b + 2, b + 3))
            v('ds_write_b128 v97, %s offset:%d' % (vr(f, 4), 1024 * (4 * j + sidx)), lds=exr)
    work = v.items
    mf = pv_list(1, KB)
    s.wait(regs=regs('a', KB, 32))
    for g in range(40):
        s.add(mf[g])
        if g == 0: s('s_barrier')
        if g < 12: s.add(sm_gap(g, 0))
        else: s.add(work[:2]); work = work[2:]
    stamp(s, o, 5)
    s.add(work)
    s('v_mov_b32 v96, 0x%x' % FLG)
    s.wait(lgkm_all=True, tags=['wo0'])
    s('s_barrier')
    s('ds_read_b128 v[92:95], v96', lds=(lambda c: (FLG, FLG + 16, ev(tg('flg'), c))))
    s('s_mul_i32 s3, s%d, 0x2080' % sP)
    s('v_xor_b32 v84, s3, v%d' % VA)
    for k in range(1, 4): s('v_xor_b32 v%d, %d, v84' % (84 + k, 32 * k))
    for k in range(4): s('v_subrev_u32 v%d, 0x%x, v%d' % (80 + k, V0, 84 + k))
    s('v_readfirstlane_b32 s3, v%d' % CNT)
    s.wait(regs=regs('v', 92, 4))
    s('v_or_b32 v92, v92, v93'); s('v_or3_b32 v92, v92, v94, v95')
    s('s_cmp_lt_u32 s3, 16')
    s('v_readfirstlane_b32 s36, v92')
    s('s_cbranch_scc1 L_cntspin')
    s.label('L_cntok')
    s('s_andn2_b32 s36, s36, s%d' % sREDO)
    if not o.diag: s('s_cbranch_scc1 L_redo')
    stamp(s, o, 6)
    return s

def gen_spin(s, name, back, load, cond):
    s.label(name)
    s('s_mov_b32 s%d, 0' % sCNT)
    s.label(name + '_l')
    s('s_sleep 4')
    s(load)
    s('s_waitcnt vmcnt(0)')
    s('s_add_u32 s%d, s%d, 1' % (sCNT, sCNT))
    s('s_cmp_gt_u32 s%d, 0x40000' % sCNT)
    s('s_cbranch_scc1 %s' % back)
    for l in cond: s(l.replace('@', name + '_l'))
    s('s_branch %s' % back)

def gen_redo(o):
    s = Seg('redo')
    s.label('L_redo')
    s('s_mov_b32 s%d, 1' % sREDO)
    s('s_waitcnt vmcnt(0) lgkmcnt(0)')
    s('s_barrier')
    t = 56
    s('v_lshrrev_b32 v%d, 4, v%d' % (t, LANE16))
    s('v_and_b32 v%d, 15, v%d' % (t + 1, t))
    s('v_and_b32 v%d, 48, v%d' % (t, t))
    s('v_lshl_add_u32 v%d, v%d, 8, v%d' % (t, t + 1, t))
    s('v_add_u32 v%d, 0x1000, v%d' % (t + 1, t))
    for j in range(5): s('v_mov_b32 v%d, 0xff800000' % (MX + j))
    s('s_mov_b32 s%d, 0' % sA)
    lp = Seg('redo_loop')
    lp.label('L_redo_loop')
    for kb in range(2):
        for k in range(4): lp('buffer_load_dwordx4 %s, v%d, s[%d:%d], s%d offen offset:%d' % (ar(KB + 4 * (4 * kb + k), 4), t + kb, SK, SK + 3, sA, 64 * k))
    lp('s_waitcnt vmcnt(0)')
    lp.add(qk_list(False))
    lp('s_nop 7')
    for j in range(5): max8(lp, j, MX + j, True)
    lp('s_add_u32 s%d, s%d, 0x2000' % (sA, sA))
    lp('s_cmp_lt_u32 s%d, 0x40000' % sA)
    lp('s_cbranch_scc1 L_redo_loop')
    e = Seg('redo_end')
    set_nm(e)
    kv_start(e, o)
    for k in range(8): e('v_subrev_u32 v%d, 0x4000, v%d' % (VA2 + k, VA + k))
    for k, j in KVSEQ[:o.ninit]: e.add(dma_kv(o, k, j))
    e('v_mov_b32 v%d, 0x40000000' % CA)
    e.wait(tags=['K0'])
    e('s_barrier')
    e.add(rd_k(0))
    e.wait(regs=regs('a', KB, 32))
    e.add(qk_list(True))
    e('s_nop 7')
    e('s_branch L_s0')
    return s, lp, e

E0V, E1V = 144, 0
PO = 88
AD, OD, IA, PL, C10, C01, AD2, OD2, AC, RT = 224, 225, 226, 227, 228, 229, 230, 231, 232, 248
def etile(c, jn, j): return (E1V if c & 1 else E0V) + 8 * (5 * (jn >> 1) + j) + 4 * (jn & 1)
def poll_txt(): return 'buffer_load_dword v%d, v%d, s[%d:%d], 0 offen sc1' % (PL, IA, SF, SF + 3)
def flag_ops(o, c):
    return [I('v_mov_b32 v89, %d' % (c + 1)), I('buffer_store_dword v89, v%d, s[%d:%d], 0 offen %s' % (FLA, SF, SF + 3, o.fl_pol))]
def load_groups(o, c, dst, sreg):
    out = []
    for k in range(10):
        off, ad = (2 * PST * k, AD) if k < 8 else (8 * PST * (k - 8), AD2)
        out.append([I('s_add_u32 s%d, s%d, 0x%x' % (sreg, sCP + c, off)),
                    I('buffer_load_dwordx4 %s, v%d, s[%d:%d], s%d offen %s' % (dst(k), ad, SG, SG + 3, sreg, o.rd_pol))])
    return out
def red_addr(o):
    s = Seg('t')
    t = RT
    s('s_lshl_b32 s3, s%d, 4' % sG); s('s_add_u32 s3, s3, s38'); s('s_lshl_b32 s3, s3, 8')
    s('v_lshrrev_b32 v%d, 2, v%d' % (t, LANE16)); s('v_add_u32 v%d, s3, v%d' % (IA, t))
    s('v_lshrrev_b32 v%d, 4, v%d' % (t, LANE16))
    s('v_and_b32 v%d, 7, v%d' % (t + 2, t))
    s('s_and_b32 s3, s38, 3'); s('s_mul_i32 s63, s3, 5')
    s('s_lshr_b32 s3, s38, 2')
    s('s_lshr_b32 s36, s3, 1'); s('s_lshl_b32 s36, s36, 3'); s('s_and_b32 s3, s3, 1'); s('s_add_u32 s36, s36, s3')
    s('s_mul_i32 s3, s36, 10240'); s('s_lshl_b32 s62, s%d, 8' % sW); s('s_add_u32 s%d, s3, s62' % sM0)
    s('s_mul_i32 s3, s39, %d' % (160 * 2048)); s('s_lshl_b32 s62, s37, 10'); s('s_add_u32 s3, s3, s62')
    s('s_lshl_b32 s62, s36, 6'); s('s_add_u32 s3, s3, s62'); s('s_lshl_b32 s62, s%d, 3' % sW); s('s_add_u32 s%d, s3, s62' % (sM0 + 1))
    s('v_bfe_u32 v%d, v%d, 3, 2' % (t + 1, t))
    s('v_add_u32 v%d, s63, v%d' % (t + 3, t + 1))
    s('v_lshl_add_u32 v%d, v%d, 3, v%d' % (t + 4, t + 3, t + 2))
    s('v_lshrrev_b32 v%d, 1, v%d' % (t + 5, t + 3))
    s('v_and_b32 v%d, 15, v%d' % (t + 6, t + 4))
    s('v_lshlrev_b32 v%d, 4, v%d' % (t + 6, t + 6))
    s('v_lshl_add_u32 v%d, v%d, 10, v%d' % (t + 6, t + 5, t + 6))
    s('v_lshrrev_b32 v%d, 5, v%d' % (t + 1, t))
    s('v_mul_u32_u24 v%d, %d, v%d' % (t + 5, PST, t + 1))
    s('v_add3_u32 v%d, v%d, v%d, s%d' % (AD, t + 6, t + 5, sM0))
    s('v_lshlrev_b32 v%d, 5, v%d' % (t + 1, t + 1))
    s('v_lshl_add_u32 v%d, v%d, 11, v%d' % (t + 4, t + 4, t + 1))
    s('v_add_u32 v%d, s%d, v%d' % (OD, sM0 + 1, t + 4))
    s('s_add_u32 s63, s63, 4')
    s('s_lshr_b32 s3, s63, 1'); s('s_lshl_b32 s3, s3, 10'); s('s_and_b32 s62, s63, 1'); s('s_lshl_b32 s62, s62, 7'); s('s_add_u32 s3, s3, s62')
    s('s_add_u32 s3, s3, s%d' % sM0)
    s('v_lshrrev_b32 v%d, 3, v%d' % (t + 3, t))
    s('v_mul_u32_u24 v%d, %d, v%d' % (t + 5, PST, t + 3))
    s('v_lshl_add_u32 v%d, v%d, 4, v%d' % (t + 5, t + 2, t + 5))
    s('v_add_u32 v%d, s3, v%d' % (AD2, t + 5))
    s('s_lshl_b32 s3, s63, 14'); s('s_add_u32 s3, s3, s%d' % (sM0 + 1))
    s('v_lshl_add_u32 v%d, v%d, 11, v%d' % (t + 4, t + 2, t + 1))
    s('v_and_b32 v%d, 24, v%d' % (t + 1, t))
    s('v_cmp_eq_u32 vcc, 0, v%d' % (t + 1))
    s('v_add_u32 v%d, s3, v%d' % (t + 4, t + 4))
    s('v_mov_b32 v%d, 0x40000000' % (t + 7))
    s('v_cndmask_b32 v%d, v%d, v%d, vcc' % (OD2, t + 7, t + 4))
    s('v_mov_b32 v%d, 0x3f80' % C10); s('v_mov_b32 v%d, 0x3f800000' % C01)
    return s.items

def gen_op(o):
    s = Seg('op')
    exr = (lambda c: (EX, EX + 81920, 'ex%d' % c.get('redo', 0)))
    KSL = [(4 * c + r, [(2 * a + e, kk) for kk in range(2) for e in range(2)]) for c in range(4) for a in range(2) for r in range(4)]
    def reads_for(ks):
        u, fr = KSL[ks]
        base = OSLOT[u % 8]
        areg, imm = (80, base) if base < V0 else (84, base - V0)
        return [I('ds_read_b64_tr_b16 %s, v%d offset:%d' % (ar(KB + 16 * (ks & 1) + 4 * i + 2 * e, 2), areg + jn, imm + 8192 * kk + 4096 * e), lds=(base, base + 16384, 'wo%d' % u))
                for i, (jn, kk) in enumerate(fr) for e in range(2)]
    def conv(c, a):
        out = []
        for j in range(5):
            b = etile(c, 2 * a, j)
            cv = [I('v_cvt_pk_bf16_f32 v%d, v%d, v%d' % (b + i, b + 2 * i, b + 2 * i + 1)) for i in range(4)]
            out.append(cv[:2]); out.append(cv[2:])
            out.append([I('s_add_u32 s%d, s%d, 0x%x' % (sA, sCP + c, (10 * a + j) * 1024)),
                        I('buffer_store_dwordx4 %s, v%d, s[%d:%d], s%d offen %s' % (vr(b, 4), PO, SP_, SP_ + 3, sA, o.st_pol), tag='st%d' % c)])
        return out
    s('s_mov_b32 s%d, 0' % sREDO)
    s.add(reads_for(0))
    part = [I('ds_read_b128 %s, v98 offset:%d' % (ar(PART + 4 * f, 4), 1024 * f), lds=exr) for f in range(20)]
    own = [I('ds_read_b128 %s, v97 offset:%d' % (ar(OWN + 4 * f, 4), 1024 * f), lds=exr) for f in range(20)]
    s('s_mul_i32 s3, s%d, 80' % sP); s('s_mul_i32 s36, s%d, 5' % sHF); s('s_add_u32 s3, s3, s36'); s('s_lshl_b32 s3, s3, 10')
    s('v_add_u32 v%d, s3, v%d' % (PO, LANE16))
    extra = [part[i:i + 2] for i in range(0, 20, 2)] + [own[i:i + 2] for i in range(0, 20, 2)]
    vq = []
    ra = red_addr(o)
    seen = set()
    first_use, last_use = {}, {}
    for ks, (u, fr) in enumerate(KSL):
        first_use.setdefault(u, ks); last_use[u] = ks
    pending = list(range(4, 16))
    for ks, (u, fr) in enumerate(KSL):
        c, phi, dh = u >> 2, (u >> 1) & 1, u & 1
        if ks % 2 == 0: tstamp(s, o, 'o', ks // 2)
        buf = ks & 1
        mf = []
        for i, (jn, kk) in enumerate(fr):
            sidx = 2 * dh + kk
            first = (c, jn) not in seen; seen.add((c, jn))
            for j in range(5):
                d = vr(etile(c, jn, j), 4)
                if phi: bf = ar(PART + 16 * j + 4 * sidx, 4)
                elif c == 0: bf = vr(16 * j + 4 * sidx, 4)
                else: bf = ar(OWN + 16 * j + 4 * sidx, 4)
                mf.append(mfma(d, ar(KB + 16 * buf + 4 * i, 4), bf, '0' if first else d))
        need = regs('a', KB + 16 * buf, 16)
        if phi and c == 0: need = need + regs('a', PART, 80)
        bar = None
        nxt = KSL[ks + 1][0] if ks + 1 < 32 else None
        if nxt is not None and first_use[nxt] == ks + 1:
            if nxt == 3: need = need + regs('a', OWN, 80) + regs('a', PART, 80)
            new = []
            for v in list(pending):
                ok = (v == 4 and nxt >= 1) or (5 <= v <= 7 and nxt >= 3) or (v >= 8 and last_use[v - 8] <= ks)
                if not ok: break
                new += dma_wo(o, v); pending.remove(v)
            bar = dict(tags=['wo%d' % nxt])
            barrier_hooks.append(lambda new=new: vq.extend(new))
        rds = reads_for(ks + 1) if nxt is not None else []
        if ks == 4: extra += [ra[i:i + 2] for i in range(0, len(ra), 2)]
        if ks % 4 == 0 and ks > 0:
            cv = [[]] * 2 + conv((ks - 4) >> 3, ((ks - 4) >> 2) & 1)
            extra[0:0] = cv
        for cc in range(2):
            if ks == 8 * (cc + 1) + o.flagat: extra.insert(0, [Wait(tags=['st%d' % cc])] + flag_ops(o, cc))
        if ks == 30: extra.append([I(poll_txt(), tag='poll')])
        gemm_kstep(s, mf, need, rds, bar, extra, o.oevery, vq)
        if ks % 8 == 7: stamp(s, o, 7 + c)
    extra = [g for g in extra if g]
    assert not extra and not vq and not pending, (len(extra), len(vq), pending)
    s('s_nop 3')
    for g in conv(3, 1): s.add(g)
    stamp(s, o, 11)
    return s

def gen_red(o):
    s = Seg('red')
    poll = poll_txt()
    BUF = [144, 184, 0, 40]
    def check(n):
        s.wait(regs=[('v', PL)])
        s('v_cmp_gt_u32 vcc, %d, v%d' % (n, PL))
        s('s_cbranch_vccnz L_spin%d' % n)
        s.label('L_got%d' % n)
    def loads(c):
        for g in load_groups(o, c, lambda k: vr(BUF[c] + 4 * k, 4), sA): s.add(g)
    def summ(c):
        a = AC
        for i in range(16): s('v_mov_b32 v%d, 0' % (a + i))
        for k in range(10):
            if k in (0, 4, 8): s.wait(regs=regs('v', BUF[c] + 4 * k, 16 if k < 8 else 8))
            for d in range(4):
                x = BUF[c] + 4 * k + d
                b = a + (8 if k >= 8 else 0)
                s('v_dot2c_f32_bf16 v%d, v%d, v%d' % (b + 2 * d, x, C10)); s('v_dot2c_f32_bf16 v%d, v%d, v%d' % (b + 2 * d + 1, x, C01))
        t = RT
        s('s_nop 2')
        for i in range(8): s('v_add_f32_dpp v%d, v%d, v%d row_ror:8 row_mask:0xf bank_mask:0xf' % (t + i, a + 8 + i, a + 8 + i))
        for i in range(8): s('v_mov_b32 v%d, v%d' % (a + 8 + i, t + i))
        s('s_nop 0')
        for i in range(8): s('v_permlane16_swap_b32 v%d, v%d' % (t + i, a + 8 + i))
        for i in range(8): s('v_add_f32 v%d, v%d, v%d' % (a + 8 + i, a + 8 + i, t + i))
        for b in (a, a + 8):
            for i in range(4): s('v_permlane32_swap_b32 v%d, v%d' % (b + i, b + 4 + i))
        for b in (a, a + 8):
            for i in range(4): s('v_add_f32 v%d, v%d, v%d' % (b + i, b + i, b + 4 + i))
        o2 = 100 + 4 * (c & 1)
        for n_, b in enumerate((a, a + 8)):
            s('v_cvt_pk_bf16_f32 v%d, v%d, v%d' % (o2 + 2 * n_, b, b + 1)); s('v_cvt_pk_bf16_f32 v%d, v%d, v%d' % (o2 + 2 * n_ + 1, b + 2, b + 3))
    def outst(c):
        o2 = 100 + 4 * (c & 1)
        s('buffer_store_dwordx2 %s, v%d, s[%d:%d], s%d offen %s' % (vr(o2, 2), OD, SO, SO + 3, sCW + c, o.out_pol))
        s('buffer_store_dwordx2 %s, v%d, s[%d:%d], s%d offen %s' % (vr(o2 + 2, 2), OD2, SO, SO + 3, sCW + c, o.out_pol))
    T = lambda i: tstamp(s, o, 'r', i)
    T(0)
    s.wait(regs=[('v', PL)], tags=['st2'])
    s.add(flag_ops(o, 2))
    check(1)
    T(1); stamp(s, o, 12)
    loads(0)
    T(2)
    s.wait(tags=['st3'])
    s.add(flag_ops(o, 3))
    check(2)
    T(3)
    s(poll, tag='poll')
    loads(1)
    T(4)
    summ(0)
    T(5)
    check(3)
    T(6); stamp(s, o, 13)
    s(poll, tag='poll')
    loads(2)
    outst(0)
    T(7)
    summ(1)
    T(8)
    check(4)
    T(9); stamp(s, o, 14)
    loads(3)
    outst(1)
    T(10)
    summ(2); outst(2)
    T(11)
    summ(3); outst(3)
    T(12)
    if o.stamps or o.trace:
        s('s_waitcnt vmcnt(0)')
        T(13); T(14); T(15)
        stamp(s, o, 15)
    s.label('L_done')
    s('s_endpgm')
    sp = Seg('spins')
    for n in (1, 2, 3, 4): gen_spin(sp, 'L_spin%d' % n, 'L_got%d' % n, poll, ['v_cmp_gt_u32 vcc, %d, v%d' % (n, PL), 's_cbranch_vccnz @'])
    sp.label('L_cntspin')
    sp('s_lshl_b32 s%d, s%d, 3' % (sA, sG))
    gen_spin(sp, 'L_cntspin2', 'L_cntok', 'buffer_load_dword v%d, off, s[%d:%d], s%d offset:128 sc1' % (CNT, SD, SD + 3, sA),
             ['v_readfirstlane_b32 s3, v%d' % CNT, 's_cmp_lt_u32 s3, 16', 's_cbranch_scc1 @'])
    return s, sp

def desc(name, vgpr, accum, sgpr):
    return '''.amdhsa_kernel %s
  .amdhsa_next_free_vgpr %d
  .amdhsa_next_free_sgpr %d
  .amdhsa_accum_offset %d
  .amdhsa_group_segment_fixed_size 0
  .amdhsa_kernarg_size 104
  .amdhsa_user_sgpr_count 2
  .amdhsa_user_sgpr_kernarg_segment_ptr 1
  .amdhsa_system_sgpr_workgroup_id_x 1
  .amdhsa_float_denorm_mode_32 3
.end_amdhsa_kernel
''' % (name, vgpr, sgpr, accum)

def build(o, path):
    o.kvat_l = [int(x) for x in o.kvat.split(',')]
    o.sched = kv_schedule(o)
    entry, q, s0, attn, epi = gen_entry(o), gen_q(o), gen_s0(o), gen_attn(o), gen_epi(o)
    r0, r1, r2 = gen_redo(o)
    op = gen_op(o)
    red, spins = gen_red(o)
    traces = []
    for redo in (0, 1):
        tr = [(entry, {}), (q, {})]
        for ps in range(redo + 1):
            if ps: tr += [(r0, {}), (r1, {}), (r1, {}), (r2, {})]
            tr += [(s0, {}), (attn, {}), (epi, dict(redo=ps))]
        tr += [(op, dict(redo=redo)), (red, {})]
        traces.append(('redo%d' % redo, tr))
    resolve([t for _, t in traces])
    allerr = []
    for name, tr in traces: allerr += check(tr, name)[0]
    for e in allerr[:30]: print('ERR', e)
    if allerr: print(len(allerr), 'errors')
    hdr = open('concat_heads__gqa_block_cached__gqa_block_cached__near_ridge.s.ref').read().split('; Override')[0]
    txt = hdr + '; @launch grid=(256,1,1) block=(256,1,1) lds=163840\n'
    txt += '.amdgcn_target "amdgcn-amd-amdhsa--gfx950"\n.text\n.globl %s\n.p2align 8\n.type %s,@function\n%s:\n' % (KN, KN, KN)
    for sg in [entry, q, s0, attn, epi, op, red, spins, r0, r1, r2]: txt += sg.text()
    txt += 'L_code_end:\n'
    txt += '.section .rodata,"a"\n.p2align 6\n' + desc(KN, 512, 256, 100)
    open(path, 'w').write(txt)
    return not allerr

if __name__ == '__main__':
    o = Opt()
    path = sys.argv[1]
    for kv in sys.argv[2:]:
        k, v = kv.split('=')
        cur = getattr(o, k)
        setattr(o, k, int(v) if isinstance(cur, int) else v.replace('+', ' '))
    ok = build(o, path)
    print('written', path, 'ok' if ok else 'WITH ERRORS', {h: len(v) for h, v in o.sched.items() if len(v) != 4 and (len(v) or h < 62)} if '-v' in path else '')
```

```python
import sys, struct, math
from fw import *

KN = "concat_heads__gqa_block_cached__gqa_block_cached__near_ridge_kernel"
WS_BYTES = 287834112
import os
PST = int(os.environ.get('PST', 172032))
INB = 256 * PST
def f2u(x): return struct.unpack('<I', struct.pack('<f', x))[0]

class Opt:
    kv_pol = 'nt'; w_pol = ''; st_pol = 'sc1'; rd_pol = 'sc1'; fl_pol = 'sc1'; out_pol = ''
    stamps = 0; cyc = 0; dbgst = 0; trace = ''
    force_redo = 0
    codepf = 1
    par = 1
    qevery = 3
    qpack = 0
    kvat = '5,7,9,11'
    cap = 4
    rotp = 1
    lsum = 0
    uni = 1
    lasth = 59
    ninit = 10
    oevery = 1
    flagat = 5
    rotc = 1
    dyn = 1
    nb = 2
    eclaim = 0
    nfirst = 5
    fl3 = 1
    early = 0
    epoll = 24
    ldevery = 5
    pfo = 0
    diag = ''

V0 = 98304
KAD = lambda j: 16384 * (j % 5)
VAD = lambda j: (V0, V0 + 16384, V0 + 32768, V0 + 49152, V0 - 16384)[(j + 2) % 5]
XBUF = lambda m: 32768 + 20480 * (m & 1)
WAD = lambda n: (V0 + 16384, V0 - 16384, V0)[n % 3]
EX = 16384
FLG = VAD(31)
OSLOT = [VAD(28), KAD(30), VAD(29), VAD(30), VAD(31), 16384, 32768, 49152]

S, P, NM, L = 0, 40, 80, 100
KA, KA2, VA, VA2, DK, DV, LANE16, CNT, FLA, CA = 105, 109, 113, 121, 129, 133, 135, 136, 137, 138
DWO = VA2
STV = 140
OV, NOV = 144, 28
XAD, DX, DWQ, DUM = 48, 50, 51, 59
Q, KB, VB, OA = 0, 80, 112, 144
XF = 144
OWN, PART = 0, 144
LS, ONES = 192, 212
sW, sP, sREDO, sCNT = 4, 5, 6, 7
SX, SWQ, SK, SV, SWO, SP_ = 8, 12, 16, 20, 24, 28
sOK, sOV, sMK = 32, 33, 34
sBR, sHP, sBT = 37, 38, 39
sWS = 40
sCW, sCP = 44, 48
sC, sTHR = 54, 56
sA, sB = 58, 59
sW1K, sHF = 60, 61
sST = 64
SF, SD, SO = 72, 76, 80
sG = 84
sM0, sM1 = 86, 88
sXO, sWQO = 90, 91
SG = 96
SG2 = 8
sE = 35

def vr(b, n=1): return 'v%d' % b if n == 1 else 'v[%d:%d]' % (b, b + n - 1)
def ar(b, n=1): return 'a%d' % b if n == 1 else 'a[%d:%d]' % (b, b + n - 1)
def sr(b, n=1): return 's%d' % b if n == 1 else 's[%d:%d]' % (b, b + n - 1)
def mfma(d, a, b, c): return I('v_mfma_f32_16x16x32_bf16 %s, %s, %s, %s' % (d, a, b, c))
def otile(j, db):
    n = 8 * j + db
    return ('v', OV + 4 * n) if n < NOV else ('a', OA + 4 * (n - NOV))
def oreg(j, db):
    k, b = otile(j, db)
    return '%s[%d:%d]' % (k, b, b + 3)
def qacc(db, j):
    n = 8 * j + db
    return 4 * n if n < 12 else OV + 4 * (n - 12)

def clk(o): return 's_memtime' if o.cyc else 's_memrealtime'
def tstamp(s, o, ph, idx):
    if o.trace == ph and idx < 16:
        s('%s s[%d:%d]' % (clk(o), sST + 6, sST + 7)); s('s_waitcnt lgkmcnt(0)')
        s('v_writelane_b32 v%d, s%d, %d' % (STV + 2, sST + 6, idx))
def stamp(s, o, idx):
    st = sST
    def wsrd():
        s('s_mov_b32 s%d, s%d' % (st, sWS)); s('s_mov_b32 s%d, s%d' % (st + 1, sWS + 1))
        s('s_mov_b32 s%d, 0x%x' % (st + 2, WS_BYTES)); s('s_mov_b32 s%d, 0x20000' % (st + 3))
    if o.trace:
        if idx == 15:
            wsrd()
            s('s_mul_i32 s%d, s2, %d' % (st + 4, 128)); s('s_add_u32 s%d, s%d, 0x%x' % (st + 4, st + 4, WS_BYTES - 256 * 128))
            s('s_min_u32 s3, s%d, 1' % sW); s('s_lshl_b32 s3, s3, 30'); s('s_add_u32 s%d, s%d, s3' % (st + 4, st + 4))
            s('v_mbcnt_lo_u32_b32 v0, -1, 0'); s('v_lshlrev_b32 v0, 3, v0'); s('v_mov_b32 v2, v%d' % (STV + 2)); s('v_mov_b32 v3, 0')
            s('s_mov_b64 exec, 0xffff')
            s('buffer_store_dwordx2 v[2:3], v0, s[%d:%d], s%d offen' % (st, st + 3, st + 4))
        return
    if not o.stamps: return
    a, b = STV, STV + 1
    if o.dbgst:
        if idx not in (0, 2, 3, 5, 6, 11, 13, 15): return
        idx = (0, 2, 3, 5, 6, 11, 13, 15).index(idx)
        s('s_memrealtime s[%d:%d]' % (st + 4, st + 5)); s('s_memtime s[%d:%d]' % (st + 6, st + 7)); s('s_waitcnt lgkmcnt(0)')
        s('v_mov_b32 v%d, s%d' % (a, st + 4)); s('v_mov_b32 v%d, s%d' % (b, st + 6))
        s('s_sub_u32 s%d, s2, %d' % (st + 4, o.dbgst - 1)); s('s_mul_i32 s%d, s%d, 0x1000' % (st + 4, st + 4))
        s('s_add_u32 s%d, s%d, 0x%x' % (st + 4, st + 4, idx * 8)); s('s_nop 0')
        s('buffer_store_dwordx2 v[%d:%d], off, s[%d:%d], s%d' % (a, b, SD, SD + 3, st + 4))
        return
    s('%s s[%d:%d]' % (clk(o), st + 4, st + 5)); s('s_waitcnt lgkmcnt(0)')
    if idx == 0: s('s_mov_b64 s[%d:%d], s[%d:%d]' % (st + 4, st + 5, st + 6, st + 7))
    wsrd()
    s('v_mov_b32 v%d, s%d' % (a, st + 4)); s('v_mov_b32 v%d, s%d' % (b, st + 5))
    s('s_mul_i32 s%d, s2, %d' % (st + 4, o.stamps * 8))
    s('s_add_u32 s%d, s%d, 0x%x' % (st + 4, st + 4, WS_BYTES - 256 * o.stamps * 8 + idx * 8)); s('s_nop 0')
    s('buffer_store_dwordx2 v[%d:%d], off, s[%d:%d], s%d' % (a, b, st, st + 3, st + 4))

def dma(voff, srd, soff, imm, pol, tag, lo, n=16384):
    return I('buffer_load_dwordx4 v%d, s[%d:%d], s%d offen offset:%d %s lds' % (voff, srd, srd + 3, soff, imm, pol), tag=tag, lds=(lo, lo + n, tag))
def grp4(pre, mk, post=()):
    out = []
    for t in range(4):
        g = list(pre) if t == 0 else []
        g.append(mk(t))
        if t == 3: g += list(post)
        out.append(g)
    return out
def dma_x(o, m):
    buf = XBUF(m)
    out = [[I('s_add_u32 m0, s%d, 0x%x' % (sW1K, buf + 4096 * j)), I('s_add_u32 s%d, s%d, 0x%x' % (sA, sXO, 32768 * j)),
            dma(DX, SX, sA, 0, o.w_pol, 'x%d' % m, buf, 20480)] for j in range(5)]
    out[4] += [I('s_add_u32 s%d, s%d, 128' % (sXO, sXO)), I('s_and_b32 s%d, s%d, 0x3ff' % (sXO, sXO))]
    return out
def dma_wq(o, n):
    b = WAD(n)
    return grp4([I('s_add_u32 m0, s%d, 0x%x' % (sMK, b)), I('s_nop 0')],
                lambda t: dma(DWQ + t, SWQ, sWQO, 1024 * t, o.w_pol, 'wq%d' % n, b),
                [I('s_add_u32 s%d, s%d, 0x40000' % (sWQO, sWQO)), I('s_and_b32 s%d, s%d, 0x3fffff' % (sWQO, sWQO))])
def dma_kv(o, kind, j):
    b, so, srd_ = (KAD(j), sOK, SK) if kind == 'K' else (VAD(j), sOV, SV)
    vo = (lambda t: DK + t) if kind == 'K' else (lambda t: DV + (t & 1))
    return grp4([I('s_add_u32 s%d, s%d, 0x2000' % (so, so)), I('s_add_u32 m0, s%d, 0x%x' % (sMK, b)), I('s_and_b32 s%d, s%d, 0x3ffff' % (so, so))],
                lambda t: dma(vo(t), srd_, so, 1024 * t, o.kv_pol, '%s%d' % (kind, j), b))
KVSEQ = [(k, j) for j in range(32) for k in 'KV']
def dma_wo(o, u):
    c, phi, dh = u >> 2, (u >> 1) & 1, u & 1
    b = OSLOT[u % 8]
    return grp4([I('s_lshl_b32 s%d, s%d, 2' % (sB, sMK)), I('s_add_u32 s%d, s%d, s%d' % (sB, sB, sCW + c)),
                 I('s_add_u32 m0, s%d, 0x%x' % (sMK, b)), I('s_add_u32 s%d, s%d, 0x%x' % (sB, sB, 65536 * dh))],
                lambda t: dma(DWO + 4 * phi + t, SWO, sB, 1024 * t, o.w_pol, 'wo%d' % u, b))
def capped(o, groups):
    if not o.cap: return groups
    out = []
    for g in groups:
        k = [i for i, x in enumerate(g) if x.kind == 'dma'][0]
        out.append(g[:k] + [I('s_waitcnt vmcnt(%d)' % o.cap)] + g[k:])
    return out

def rd_k(j):
    b = KAD(j)
    areg, imm = (KA, b) if b < 65536 else (KA2, b - 65536)
    return [I('ds_read_b128 %s, v%d offset:%d' % (ar(KB + 4 * (4 * kb + s), 4), areg + s, imm + 4096 * kb), lds=(b, b + 16384, 'K%d' % j))
            for s in range(4) for kb in range(2)]
def rd_tr(dst, b, tag):
    areg, imm = (VA, b - V0) if b >= V0 else (VA2, 0)
    return [I('ds_read_b64_tr_b16 %s, v%d offset:%d' % (ar(dst + 4 * d + 2 * e, 2), areg + d, imm + 4096 * e), lds=(b, b + 16384, tag))
            for d in range(8) for e in range(2)]
def rd_v(dst, j): return rd_tr(dst, VAD(j), 'V%d' % j)

def spread(items, gaps):
    d = {g: [] for g in gaps}
    n, m = len(items), len(gaps)
    for i, it in enumerate(items): d[gaps[i * m // n]].append(it)
    return d
def srd(s, r, lo, hi, off, size):
    if off is None: s('s_mov_b32 s%d, s%d' % (r, lo)); s('s_mov_b32 s%d, s%d' % (r + 1, hi))
    else: s('s_add_u32 s%d, s%d, s%d' % (r, lo, off)); s('s_addc_u32 s%d, s%d, 0' % (r + 1, hi))
    if size is not None: s('s_mov_b32 s%d, 0x%x' % (r + 2, size))
    s('s_mov_b32 s%d, 0x20000' % (r + 3))
def kv_start(s, o):
    s('s_mul_i32 s3, s%d, 0x%x' % (sP, 8192 * o.rotp)); s('s_lshl_b32 s36, s%d, 12' % sHF); s('s_add_u32 s3, s3, s36')
    s('s_sub_u32 s%d, s3, 0x2000' % sOK); s('s_mov_b32 s%d, s%d' % (sOV, sOK))

def gen_entry(o):
    s = Seg('entry')
    if o.stamps and not o.dbgst: s('%s s[%d:%d]' % (clk(o), sST + 6, sST + 7))
    s('s_cmp_ge_u32 s2, 256')
    s('s_cbranch_scc1 L_done')
    s('s_and_b32 s3, s2, 7')
    s('s_lshr_b32 s36, s2, 3')
    if o.par: s('s_and_b32 s37, s3, 1'); s('s_lshr_b32 s38, s3, 1')
    else: s('s_lshr_b32 s37, s3, 2'); s('s_and_b32 s38, s3, 3')
    s('s_mul_i32 s3, s37, 40'); s('s_add_u32 s42, s0, s3'); s('s_addc_u32 s43, s1, 0')
    s('''s_load_dwordx8 s[44:51], s[42:43], 0
         s_load_dwordx2 s[52:53], s[42:43], 32
         s_load_dwordx2 s[40:41], s[0:1], 96
         s_load_dwordx4 s[92:95], s[0:1], 80''')
    if o.codepf:
        s('s_getpc_b64 s[62:63]')
        s.label('L_pc')
        s('v_lshrrev_b32 v7, 2, v0'); s('v_and_b32 v7, 0x30, v7'); s('v_and_b32 v8, 15, v0'); s('v_or_b32 v7, v7, v8')
        s('s_and_b32 s3, s36, 15'); s('s_lshl_b32 s3, s3, 6')
        s('v_add_lshl_u32 v7, s3, v7, 7')
        s('v_min_u32 v7, L_code_end-L_pc-4, v7')
        s('global_load_dword v%d, v7, s[62:63]' % DUM, dummy=True)
    s('''s_lshl_b32 s38, s38, 2
         s_and_b32 s39, s36, 3
         s_or_b32 s38, s38, s39
         s_lshr_b32 s39, s36, 2''')
    s('v_lshrrev_b32 v7, 6, v0')
    s('v_and_b32 v1, 63, v0')
    s('v_readfirstlane_b32 s%d, v7' % sW)
    s('v_lshrrev_b32 v2, 4, v1')
    s('v_and_b32 v3, 15, v1')
    s('v_and_b32 v5, 7, v1')
    s('s_lshl_b32 s%d, s%d, 10' % (sW1K, sW))
    s('s_lshl_b32 s%d, s%d, 12' % (sMK, sW))
    s('s_lshr_b32 s%d, s%d, 1' % (sP, sW))
    s('s_and_b32 s%d, s%d, 1' % (sHF, sW))
    s('s_lshl_b32 s3, s%d, 2' % sHF)
    s('v_add_u32 v9, s3, v2')
    s('v_xor_b32 v5, v9, v5')
    s('v_lshlrev_b32 v5, 4, v5')
    s('v_lshrrev_b32 v4, 3, v0')
    s('v_lshl_add_u32 v%d, v4, 10, v5' % DX)
    s('v_lshlrev_b32 v6, 1, v2')
    s('v_xor_b32 v6, v6, v3')
    s('v_lshlrev_b32 v6, 4, v6')
    s('v_lshl_add_u32 v4, v9, 13, v6')
    s('s_lshl_b32 s3, s%d, 8' % sP)
    s('v_add_u32 v%d, s3, v4' % DWQ)
    s('v_xor_b32 v4, 0x80, v%d' % DWQ)
    s('v_add_u32 v%d, 0x%x, v4' % (DWQ + 1, 64512))
    s('v_add_u32 v%d, 0x%x, v%d' % (DWQ + 2, 2 * 64512, DWQ))
    s('v_add_u32 v%d, 0x%x, v4' % (DWQ + 3, 3 * 64512))
    s('s_and_b32 s3, s38, 3'); s('s_lshl_b32 s3, s3, 1'); s('s_add_u32 s3, s3, s39'); s('s_and_b32 s3, s3, 7')
    s('s_lshl_b32 s%d, s3, 7' % sXO); s('s_lshl_b32 s%d, s3, 19' % sWQO)
    s('s_mul_i32 s3, s39, 163840'); s('s_lshl_b32 s36, s38, 9')
    s('s_waitcnt lgkmcnt(0)')
    srd(s, SX, 44, 45, 3, 163840)
    srd(s, SWQ, 50, 51, 36, None); s('s_sub_u32 s%d, 0x400000, s36' % (SWQ + 2))
    for g in dma_x(o, 0) + dma_wq(o, 0) + dma_wq(o, 1): s.add(g)
    srd(s, SD, 94, 95, None, 256)
    stamp(s, o, 0)
    s('v_lshlrev_b32 v%d, 4, v1' % LANE16)
    s('s_mov_b32 s3, 0x%x' % INB); srd(s, SF, sWS, sWS + 1, 3, 65536 + 2048)
    s('s_lshl_b32 s%d, s37, 3' % sG); s('s_add_u32 s%d, s%d, s39' % (sG, sG))
    s('s_lshl_b32 s36, s%d, 4' % sG); s('s_add_u32 s36, s36, s38')
    s('s_min_u32 s3, s%d, 1' % sW); s('s_lshl_b32 s3, s3, 30')
    s('s_lshl_b32 s62, s36, 8'); s('s_add_u32 s62, s62, s3')
    s('v_lshlrev_b32 v8, 2, v1'); s('v_add_u32 v9, s62, v8'); s('v_mov_b32 v10, 0')
    s('buffer_store_dword v10, v9, s[%d:%d], 0 offen %s' % (SF, SF + 3, o.fl_pol), tag='clr')
    if o.dyn:
        s('s_lshl_b32 s3, s%d, 7' % sG); s('s_add_u32 s3, s3, 0x10000'); s('s_min_u32 s62, s38, 1'); s('s_lshl_b32 s62, s62, 30'); s('s_add_u32 s3, s3, s62')
        s('v_min_u32 v9, 1, v0'); s('v_lshlrev_b32 v9, 29, v9'); s('v_add_u32 v9, s3, v9')
        s('buffer_store_dword v10, v9, s[%d:%d], 0 offen %s' % (SF, SF + 3, o.fl_pol))
    s('s_mul_i32 s3, s36, %d' % PST); srd(s, SP_, sWS, sWS + 1, 3, 163840)
    s('''s_lshl_b32 s3, s39, 4
         s_add_u32 s3, s3, s38
         s_lshl_b32 s3, s3, 1
         s_add_u32 s3, s3, s%d
         s_lshl_b32 s3, s3, 18''' % sP)
    srd(s, SK, 46, 47, 3, 0x40000); srd(s, SV, 48, 49, 3, 0x40000)
    s('s_lshl_b32 s3, s38, 18'); srd(s, SWO, 52, 53, 3, 0x40000)
    srd(s, SO, 92, 93, None, 8 * 160 * 2048)
    s('s_mul_i32 s3, s%d, %d' % (sG, 16 * PST)); srd(s, SG, sWS, sWS + 1, 3, 16 * PST)
    kv_start(s, o)
    for c in range(4):
        if o.rotc: s('s_add_u32 s3, s39, %d' % c); s('s_and_b32 s3, s3, 3')
        else: s('s_mov_b32 s3, %d' % c)
        s('s_lshl_b32 s%d, s3, 7' % (sCW + c)); s('s_mul_i32 s%d, s3, 20480' % (sCP + c))
    c = math.log2(math.e) / math.sqrt(128.0)
    s('s_mov_b32 s%d, 0x%x' % (sC, f2u(c))); s('s_mov_b32 s%d, 0x%x' % (sC + 1, f2u(c)))
    s('s_mov_b32 s%d, 0x%x' % (sTHR, f2u(2.0 ** 24 if not o.force_redo else 1.0)))
    s('s_mov_b32 s%d, 0' % sREDO)
    s('s_lshl_b32 s3, s%d, 12' % sG); s('s_lshl_b32 s36, s38, 4'); s('s_add_u32 s3, s3, s36')
    s('s_lshl_b32 s36, s%d, 2' % sW); s('s_add_u32 s3, s3, s36')
    s('v_lshlrev_b32 v4, 8, v3'); s('v_add_u32 v4, s3, v4')
    s('v_min_u32 v5, 1, v2'); s('v_lshl_add_u32 v%d, v5, 30, v4' % FLA)
    s('v_min_u32 v5, 1, v0'); s('v_lshlrev_b32 v5, 30, v5'); s('s_lshl_b32 s3, s%d, 3' % sG); s('s_add_u32 s3, s3, 128'); s('v_add_u32 v%d, s3, v5' % CA)
    s('v_mov_b32 v%d, 1' % CNT)
    s('v_xor_b32 v4, v2, v3'); s('v_lshlrev_b32 v4, 4, v4')
    s('v_lshl_add_u32 v%d, v2, 8, v4' % DK)
    for t in range(1, 4): s('v_xor_b32 v%d, %d, v%d' % (DK + t, 64 * t, DK))
    s('v_lshl_add_u32 v%d, v2, 8, v6' % DV)
    s('v_xor_b32 v%d, 0x80, v%d' % (DV + 1, DV))
    s('v_lshl_add_u32 v4, v3, 8, v4')
    s('s_lshl_b32 s36, s%d, 13' % sP)
    s('v_add_u32 v%d, s36, v4' % KA)
    for k in range(1, 4): s('v_xor_b32 v%d, %d, v%d' % (KA + k, 64 * k, KA))
    for k in range(4): s('v_add_u32 v%d, 0x10000, v%d' % (KA2 + k, KA + k))
    s('v_lshrrev_b32 v4, 1, v3'); s('v_xor_b32 v4, v4, v2'); s('v_lshlrev_b32 v4, 4, v4')
    s('v_lshl_add_u32 v4, v3, 7, v4')
    s('s_mul_i32 s3, s%d, 10240' % sHF)
    s('v_add_u32 v%d, s3, v4' % XAD)
    s('v_xor_b32 v%d, 64, v%d' % (XAD + 1, XAD))
    s('v_lshrrev_b32 v4, 2, v1')
    s('v_and_b32 v5, 7, v4')
    s('v_lshlrev_b32 v5, 5, v5')
    s('v_lshl_add_u32 v5, v4, 8, v5')
    s('v_and_b32 v4, 3, v1')
    s('v_lshl_add_u32 v5, v4, 3, v5')
    s('s_add_u32 s36, s36, 0x%x' % V0)
    s('v_add_u32 v%d, s36, v5' % VA)
    for k in range(1, 8): s('v_xor_b32 v%d, %d, v%d' % (VA + k, 32 * k, VA))
    for k in range(8): s('v_subrev_u32 v%d, 0x4000, v%d' % (VA2 + k, VA + k))
    stamp(s, o, 1)
    return s

def is_vm(g): return any(x.kind in ('dma', 'vst', 'vld') for x in g)
class Pace: since = 99
barrier_hooks = []
def gemm_kstep(s, mf, need, reads, barrier, extra, every=1, vq=None, pack=False):
    n = len(mf)
    rg = list(range(2, 2 + (len(reads) + 1) // 2)) if (n <= 20 or pack) else list(range(2, 2 + len(reads)))
    rd = spread(reads, rg) if reads else {}
    for g in range(n):
        if g == 0: s.wait(regs=need)
        s.add(mf[g])
        if g == 1 and barrier is not None:
            s.wait(**barrier)
            s('s_barrier')
            for f in barrier_hooks: f()
            del barrier_hooks[:]
        s.add(rd.get(g, []))
        Pace.since += 1
        busy = len(rd.get(g, []))
        if vq and Pace.since >= every and busy < (1 if pack else 2):
            s.add(vq.pop(0)); Pace.since = 0
        elif extra and busy < 2 and (not is_vm(extra[0]) or Pace.since >= every):
            if is_vm(extra[0]): Pace.since = 0
            s.add(extra.pop(0))

def qconv_stream():
    c = sr(sC, 2)
    items = [(j, sidx) for j in range(5) for sidx in range(4)]
    tq = lambda i: 60 + 4 * (i % 4)
    def st1(i):
        j, sidx = items[i]; out = []
        for e in range(2):
            b = qacc(2 * sidx + e, j)
            out += [I('v_pk_mul_f32 %s, %s, %s' % (vr(b, 2), vr(b, 2), c)), I('v_pk_mul_f32 %s, %s, %s' % (vr(b + 2, 2), vr(b + 2, 2), c))]
        for e in range(2):
            b = qacc(2 * sidx + e, j)
            out += [I('v_cvt_pk_bf16_f32 v%d, v%d, v%d' % (tq(i) + 2 * e, b, b + 1)), I('v_cvt_pk_bf16_f32 v%d, v%d, v%d' % (tq(i) + 2 * e + 1, b + 2, b + 3))]
        return out
    sw = lambda op, i: [I('%s v%d, v%d' % (op, tq(i), tq(i) + 2)), I('%s v%d, v%d' % (op, tq(i) + 1, tq(i) + 3))]
    def st4(i):
        j, sidx = items[i]
        return [I('v_accvgpr_write_b32 a%d, v%d' % (Q + 16 * j + 4 * sidx + k, tq(i) + k)) for k in range(4)]
    n = len(items)
    rounds = []
    for i in range(n + 3):
        r = st1(i) if i < n else [I('s_nop 1')]
        if 0 <= i - 3 < n: r += st4(i - 3)
        if 0 <= i - 2 < n: r += sw('v_permlane16_swap_b32', i - 2)
        if 0 <= i - 1 < n: r += sw('v_permlane32_swap_b32', i - 1)
        rounds.append(r)
    return rounds

def gen_q(o):
    s = Seg('qphase')
    def reads_for(n):
        buf = n & 1
        w = rd_tr(KB + 32 * buf, WAD(n), 'wq%d' % n)
        xb = XBUF(n >> 1)
        x = [I('ds_read_b128 %s, v%d offset:%d' % (ar(XF + 20 * buf + 4 * j, 4), XAD + (n & 1), xb + 2048 * j), lds=(xb, xb + 20480, 'x%d' % (n >> 1))) for j in range(5)]
        return x + w
    s.wait(tags=['x0', 'wq0'])
    s('s_barrier')
    stamp(s, o, 2)
    s.add(reads_for(0))
    vq = dma_wq(o, 2) + dma_x(o, 1)
    kv = [dma_kv(o, k, j) for k, j in KVSEQ[:o.ninit]]
    rounds = qconv_stream()
    for n in range(16):
        buf = n & 1
        tstamp(s, o, 'q', n)
        order = [(db, j) for db in range(8) for j in range(5)] if n < 15 else [(db, j) for j in range(5) for db in range(8)]
        mf = []
        for db, j in order:
            d = vr(qacc(db, j), 4)
            mf.append(mfma(d, ar(KB + 32 * buf + 4 * db, 4), ar(XF + 20 * buf + 4 * j, 4), '0' if n == 0 else d))
        m = n + 1
        tags = []
        if m < 16:
            tags = ['wq%d' % m]
            if m % 2 == 0: tags.append('x%d' % (m >> 1))
        else: tags = ['K0']
        new = []
        if m + 2 < 16: new += dma_wq(o, m + 2)
        if m % 2 == 0 and m // 2 + 1 < 8: new += dma_x(o, m // 2 + 1)
        if m in o.kvat_l: new += kv.pop(0)
        if m == 14: new += kv.pop(0) + kv.pop(0)
        if m == 16: new += kv.pop(0)
        barrier_hooks.append(lambda new=new: vq.extend(new))
        extra = []
        if n == 15:
            head = sum(rounds[:3], []); del rounds[:3]
            extra = [[]] * 10 + [head[i:i + 2] for i in range(0, len(head), 2)]
        gemm_kstep(s, mf, regs('a', KB + 32 * buf, 32) + regs('a', XF + 20 * buf, 20), reads_for(m) if m < 16 else rd_k(0), dict(tags=tags), extra, o.qevery, vq, o.qpack)
    assert not vq
    for g in extra: s.add(g)
    stamp(s, o, 3)
    kvq = sum(kv, [])
    qk = qk_list(False)
    mx = []
    for j in range(4):
        t = Seg('t'); max8(t, j, MX + j, False); mx.append(t.items)
    done = 3
    pend = []
    first = True
    for r in rounds:
        if kvq: s.add(kvq.pop(0))
        k = 0
        for it in r:
            s.add(it); k += 1
            if pend and k % 2 == 0:
                if first: s.wait(regs=regs('a', KB, 32)); first = False
                s.add(pend.pop(0))
        done += 1
        if done >= 8 and (done - 8) % 4 == 0:
            j = (done - 8) // 4
            pend += qk[8 * j:8 * j + 8]
            if j >= 1: s.add(mx[j - 1])
    s('s_nop 0')
    for i, it in enumerate(qk[32:40]):
        s.add(it)
        if i in (2, 3, 4, 5): s.add(mx[3][i - 2])
    assert not pend
    s.add(kvq)
    s('s_nop 6')
    max8(s, 4, MX + 4, False)
    set_nm(s)
    for j in range(5):
        for i in range(0, 8, 2): s('v_pk_add_f32 %s, %s, %s' % (vr(S + 8 * j + i, 2), vr(S + 8 * j + i, 2), vr(NM + 4 * j, 2)))
    stamp(s, o, 4)
    return s

def qk_list(cinit):
    out = []
    for j in range(5):
        for r in range(8):
            kb, sidx = r & 1, r >> 1
            d = vr(S + 8 * j + 4 * kb, 4)
            cc = d if sidx else (vr(NM + 4 * j, 4) if cinit else '0')
            out.append(mfma(d, ar(KB + 4 * (4 * kb + sidx), 4), ar(Q + 16 * j + 4 * sidx, 4), cc))
    return out
def pv_list(o, par, vb, zero=False):
    out = []
    for j in range(5):
        pj = vr(P + 20 * par + 4 * j, 4)
        out += [mfma(oreg(j, db), ar(vb + 4 * db, 4), pj, '0' if zero else oreg(j, db)) for db in range(8)]
        if o.lsum: out.append(mfma(ar(LS + 4 * j, 4), ar(ONES, 4), pj, '0' if zero else ar(LS + 4 * j, 4)))
    return out
def rowred(s, regs_, tmps, op):
    for sw in ('v_permlane32_swap_b32', 'v_permlane16_swap_b32'):
        for r, t in zip(regs_, tmps): s('v_mov_b32 v%d, v%d' % (t, r))
        for r, t in zip(regs_, tmps): s('%s v%d, v%d' % (sw, t, r))
        for r, t in zip(regs_, tmps): s('%s v%d, v%d, v%d' % (op, r, r, t))
def max8(s, j, m, acc):
    b = S + 8 * j
    if acc: s('v_max3_f32 v%d, v%d, v%d, v%d' % (m, m, b, b + 1))
    else: s('v_max_f32 v%d, v%d, v%d' % (m, b, b + 1))
    for i in range(1, 4): s('v_max3_f32 v%d, v%d, v%d, v%d' % (m, m, b + 2 * i, b + 2 * i + 1))
MX, MT = L, 48
def set_nm(s):
    rowred(s, [MX + j for j in range(5)], [MT + j for j in range(5)], 'v_max_f32')
    for j in range(5): s('v_sub_f32 v%d, 0, v%d' % (NM + 4 * j, MX + j))
    for j in range(5):
        for i in range(1, 4): s('v_mov_b32 v%d, v%d' % (NM + 4 * j + i, NM + 4 * j))

def sm_exp(i): return I('v_exp_f32 v%d, v%d' % (S + i, S + i))
def sm_post(o, i, par):
    j = i >> 3
    out = [] if o.lsum else [I('v_add_f32 v%d, v%d, v%d' % (L + j, L + j, S + i))]
    if i & 1: out.append(I('v_cvt_pk_bf16_f32 v%d, v%d, v%d' % (P + 20 * par + 4 * j + ((i & 7) >> 1), S + i - 1, S + i)))
    return out
def sm_gap(o, G, par):
    if o.lsum:
        if G >= 40:
            if (G - 40) % 9 == 8: return []
            G -= (G - 40) // 9
    x = G - 12
    if x < 0: x += 80; par ^= 1
    i = x >> 1
    return [sm_exp(i)] if x % 2 == 0 else sm_post(o, i, par)

def kv_schedule(o):
    q = [(k, j, g) for k, j in KVSEQ[o.ninit:] for g in capped(o, dma_kv(o, k, j))]
    free = lambda kind, j: 2 * (j - 5) + 1 if kind == 'K' else 2 * (j - 4) + 1
    sched = {h: [] for h in range(1, 64)}
    n = len(q)
    slow = max(0, 4 * o.lasth - n)
    h, i = 1, 0
    while i < n:
        cap = 4
        if o.uni: cap = min(4, max(0, (n * h + o.lasth - 1) // o.lasth - i))
        elif slow > 0: cap = 3
        k = 0
        while k < cap and i < n and free(q[i][0], q[i][1]) <= h:
            sched[h].append(q[i][2]); i += 1; k += 1
        slow -= 4 - k
        h += 1
    return sched

def gen_s0(o):
    s = Seg('s0')
    s.label('L_s0')
    if o.lsum:
        s('v_mov_b32 v%d, 0x3f803f80' % L)
        for k in range(4): s('v_accvgpr_write_b32 a%d, v%d' % (ONES + k, L))
    else:
        for j in range(5): s('v_mov_b32 v%d, 0' % (L + j))
    s.wait(tags=['K1', 'V0'])
    s('s_barrier')
    s.add(rd_k(1))
    dm = spread(o.sched[1] + [[I('buffer_atomic_add v%d, v%d, s[%d:%d], 0 offen' % (CNT, CA, SD, SD + 3))]], [1, 8, 15, 22, 29])
    for i in range(35):
        if i < 34: s.add(sm_exp(i))
        else: s('s_nop 0')
        if i > 0: s.add(sm_post(o, i - 1, 0))
        s.add(dm.get(i, []))
    return s

def step(s, o, t, more1=(), more2=(), wtags=(), valu1=None):
    par = t & 1
    if t % 2 == 1: tstamp(s, o, 'a', t // 2)
    mf = qk_list(True) + pv_list(o, par ^ 1, VB, t == 1)
    NG = len(mf)
    fill = {g: [] for g in range(NG)}
    empty = [g for g in range(NG) if not sm_gap(o, g, par)]
    if o.lsum:
        g1 = [g for g in empty if g < 32]; g2 = [g for g in empty if 42 < g < NG - 8]
    else: g1, g2 = [1, 5, 9, 13, 17, 21, 25, 29], [45, 49, 53, 57, 61, 65, 69, 73]
    for g, l in spread(rd_v(VB, t - 1), g1).items(): fill[g] += l
    for g, l in spread(rd_k(t + 1) if t < 31 else rd_v(KB, 31), g2).items(): fill[g] += l
    for base, end, dm in ((2, 40, o.sched[2 * t] + list(more1)), (42, NG, o.sched[2 * t + 1] + list(more2))):
        n = len(dm)
        for i, g in enumerate(dm):
            pos = base + ((end - base) * i) // n
            if o.lsum:
                while len(sm_gap(o, pos, par)) + len(fill[pos]) > 1 or (sm_gap(o, pos, par) and sm_gap(o, pos, par)[0].kind == 'trans'): pos += 1
            else: pos &= ~1
            fill[pos] += g
    if valu1:
        for g, l in spread(valu1, list(range(33, 40))).items(): fill[g] += l
    for g in range(NG):
        if g == 0: s.wait(regs=regs('a', KB, 32))
        if g == 40: s.wait(regs=regs('a', VB, 32))
        s.add(mf[g])
        if g == 40:
            s.wait(tags=(['K%d' % (t + 1)] if t < 31 else []) + ['V%d' % t] + list(wtags))
            s('s_barrier')
        s.add(sm_gap(o, g, par))
        s.add(fill[g])

def gen_attn(o):
    s = Seg('attn')
    pre = Seg('t')
    t0 = DWO
    pre('v_lshrrev_b32 v%d, 8, v%d' % (t0 + 1, DV))
    pre('v_and_b32 v%d, 0x70, v%d' % (t0, DV))
    pre('v_lshl_add_u32 v%d, v%d, 10, v%d' % (t0, t0 + 1, t0))
    pre('v_bfe_u32 v%d, v%d, 7, 1' % (t0 + 1, DV))
    pre('v_mul_u32_u24 v%d, 0x20200, v%d' % (t0 + 1, t0 + 1))
    pre('v_add_u32 v%d, v%d, v%d' % (t0, t0, t0 + 1))
    pre('v_xor_b32 v%d, 0x20200, v%d' % (t0 + 1, t0))
    pre('v_add_u32 v%d, %d, v%d' % (t0 + 2, 2 * 3072, t0))
    pre('v_add_u32 v%d, %d, v%d' % (t0 + 3, 3 * 3072, t0 + 1))
    pre('v_add_u32 v%d, %d, v%d' % (t0 + 1, 3072, t0 + 1))
    for t in range(4): pre('v_xor_b32 v%d, 0x20000, v%d' % (t0 + 4 + t, t0 + t))
    cnt = [[I('s_lshl_b32 s%d, s%d, 3' % (sA, sG)), I('buffer_load_dword v%d, off, s[%d:%d], s%d offset:128 sc1' % (CNT, SD, SD + 3, sA), tag='cnt')]]
    busy = lambda h: any(o.sched[x] for x in range(h, 64))
    early0 = not busy(59)
    for t in range(1, 32):
        if t == 29: step(s, o, t, valu1=pre.items, more2=dma_wo(o, 0) if early0 else [])
        elif t == 30: step(s, o, t, more2=cnt + ([] if early0 else dma_wo(o, 0)) + dma_wo(o, 1) + (dma_wo(o, 2) if early0 else []))
        elif t == 31: step(s, o, t, more1=[] if early0 else dma_wo(o, 2), more2=dma_wo(o, 3), wtags=['cnt'])
        else: step(s, o, t)
        if t == 26 and o.pfo:
            s('v_lshlrev_b32 v%d, 3, v%d' % (CA, LANE16))
            s('s_lshl_b32 s3, s39, 15'); s('s_lshl_b32 s36, s%d, 13' % sW); s('s_add_u32 s3, s3, s36')
            s('buffer_load_dword v%d, v%d, s[%d:%d], s3 offen' % (CA + 1, CA, SWO, SWO + 3), dummy=True)
    return s

def gen_epi(o):
    s = Seg('epi')
    R = NM
    v = Seg('t')
    def inv(j):
        if o.lsum: v('v_accvgpr_read_b32 v%d, a%d' % (L + j, LS + 4 * j))
        v('v_cmp_nge_f32 %s, s%d, v%d' % (sr(sM0 if j == 0 else sM1, 2), sTHR, L + j))
        v('v_rcp_f32 v%d, v%d' % (R + 2 * j, L + j))
        if j: v('s_or_b64 %s, %s, %s' % (sr(sM0, 2), sr(sM0, 2), sr(sM1, 2)))
        else: v('s_nop 0')
        v('v_mov_b32 v%d, v%d' % (R + 2 * j + 1, R + 2 * j))
    if not o.lsum:
        rowred(v, [L + j for j in range(5)], [90 + j for j in range(5)], 'v_add_f32')
        for j in range(5): inv(j)
    def vote():
        v('s_cmp_lg_u64 %s, 0' % sr(sM0, 2))
        v('s_cselect_b32 s3, 1, 0')
        v('v_mov_b32 v95, s3')
        v('s_lshl_b32 s3, s%d, 2' % sW); v('s_add_u32 s3, s3, 0x%x' % FLG)
        v('v_mov_b32 v96, s3')
        v('ds_write_b32 v96, v95', lds=(lambda c: (FLG, FLG + 16, ev(tg('flg'), c))))
    tg = lambda n: (lambda c: '%s%d' % (n, c.get('redo', 0)))
    v('s_mul_i32 s3, s%d, 20480' % sW); v('s_add_u32 s3, s3, 0x%x' % EX)
    v('v_add_u32 v97, s3, v%d' % LANE16)
    v('s_xor_b32 s3, s%d, 2' % sW); v('s_mul_i32 s3, s3, 20480'); v('s_add_u32 s3, s3, 0x%x' % EX)
    v('v_add_u32 v98, s3, v%d' % LANE16)
    exr = (lambda c: (EX, EX + 81920, ev(tg('ex'), c)))
    for j in range(5):
        if o.lsum: inv(j)
        if j == 4: vote()
        for sidx in range(4):
            f = 16 * j + 4 * sidx
            for e in range(2):
                k, b = otile(j, 2 * sidx + e)
                if k == 'a':
                    for i in range(4): v('v_accvgpr_read_b32 v%d, a%d' % (90 + i, b + i))
                    b = 90
                v('v_pk_mul_f32 %s, %s, %s' % (vr(b, 2), vr(b, 2), vr(R + 2 * j, 2)))
                v('v_pk_mul_f32 %s, %s, %s' % (vr(b + 2, 2), vr(b + 2, 2), vr(R + 2 * j, 2)))
                v('v_cvt_pk_bf16_f32 v%d, v%d, v%d' % (f + 2 * e, b, b + 1))
                v('v_cvt_pk_bf16_f32 v%d, v%d, v%d' % (f + 2 * e + 1, b + 2, b + 3))
            v('ds_write_b128 v97, %s offset:%d' % (vr(f, 4), 1024 * (4 * j + sidx)), lds=exr)
    work = v.items
    mf = pv_list(o, 1, KB)
    s.wait(regs=regs('a', KB, 32))
    for g in range(len(mf)):
        s.add(mf[g])
        if g == 0: s('s_barrier')
        if g < 12: s.add(sm_gap(o, g, 0))
        else: s.add(work[:2]); work = work[2:]
    stamp(s, o, 5)
    s.add(work)
    s('v_mov_b32 v96, 0x%x' % FLG)
    s.wait(lgkm_all=True, tags=['wo0'])
    s('s_barrier')
    s('ds_read_b128 v[92:95], v96', lds=(lambda c: (FLG, FLG + 16, ev(tg('flg'), c))))
    s('s_mul_i32 s3, s%d, 0x2080' % sP)
    s('v_xor_b32 v84, s3, v%d' % VA)
    for k in range(1, 4): s('v_xor_b32 v%d, %d, v84' % (84 + k, 32 * k))
    for k in range(4): s('v_subrev_u32 v%d, 0x%x, v%d' % (80 + k, V0, 84 + k))
    s('v_readfirstlane_b32 s3, v%d' % CNT)
    s.wait(regs=regs('v', 92, 4))
    s('v_or_b32 v92, v92, v93'); s('v_or3_b32 v92, v92, v94, v95')
    s('s_cmp_lt_u32 s3, 16')
    s('v_readfirstlane_b32 s36, v92')
    s('s_cbranch_scc1 L_cntspin')
    s.label('L_cntok')
    s('s_andn2_b32 s36, s36, s%d' % sREDO)
    if not o.diag: s('s_cbranch_scc1 L_redo')
    stamp(s, o, 6)
    return s

def gen_spin(s, name, back, load, cond, sCNT=sCNT):
    s.label(name)
    s('s_mov_b32 s%d, 0' % sCNT)
    s.label(name + '_l')
    s('s_sleep 4')
    s(load)
    s('s_waitcnt vmcnt(0)')
    s('s_add_u32 s%d, s%d, 1' % (sCNT, sCNT))
    s('s_cmp_gt_u32 s%d, 0x40000' % sCNT)
    s('s_cbranch_scc1 %s' % back)
    for l in cond: s(l.replace('@', name + '_l'))
    s('s_branch %s' % back)

def gen_redo(o):
    s = Seg('redo')
    s.label('L_redo')
    s('s_mov_b32 s%d, 1' % sREDO)
    s('s_waitcnt vmcnt(0) lgkmcnt(0)')
    s('s_barrier')
    t = 56
    s('v_lshrrev_b32 v%d, 4, v%d' % (t, LANE16))
    s('v_and_b32 v%d, 15, v%d' % (t + 1, t))
    s('v_and_b32 v%d, 48, v%d' % (t, t))
    s('v_lshl_add_u32 v%d, v%d, 8, v%d' % (t, t + 1, t))
    s('v_add_u32 v%d, 0x1000, v%d' % (t + 1, t))
    for j in range(5): s('v_mov_b32 v%d, 0xff800000' % (MX + j))
    s('s_mov_b32 s%d, 0' % sA)
    lp = Seg('redo_loop')
    lp.label('L_redo_loop')
    for kb in range(2):
        for k in range(4): lp('buffer_load_dwordx4 %s, v%d, s[%d:%d], s%d offen offset:%d' % (ar(KB + 4 * (4 * kb + k), 4), t + kb, SK, SK + 3, sA, 64 * k))
    lp('s_waitcnt vmcnt(0)')
    lp.add(qk_list(False))
    lp('s_nop 7')
    for j in range(5): max8(lp, j, MX + j, True)
    lp('s_add_u32 s%d, s%d, 0x2000' % (sA, sA))
    lp('s_cmp_lt_u32 s%d, 0x40000' % sA)
    lp('s_cbranch_scc1 L_redo_loop')
    e = Seg('redo_end')
    set_nm(e)
    kv_start(e, o)
    for k in range(8): e('v_subrev_u32 v%d, 0x4000, v%d' % (VA2 + k, VA + k))
    for k, j in KVSEQ[:o.ninit]: e.add(dma_kv(o, k, j))
    e('v_mov_b32 v%d, 0x40000000' % CA)
    e.wait(tags=['K0'])
    e('s_barrier')
    e.add(rd_k(0))
    e.wait(regs=regs('a', KB, 32))
    e.add(qk_list(True))
    e('s_nop 7')
    e('s_branch L_s0')
    return s, lp, e

E0V, E1V = 144, 0
PO = 88
AD, OD, IA, PL, C10, C01, AD2, OD2, AC, RT = 224, 225, 226, 227, 228, 229, 230, 231, 232, 248
def etile(c, jn, j): return (E1V if c & 1 else E0V) + 8 * (5 * (jn >> 1) + j) + 4 * (jn & 1)
def poll_txt(): return 'buffer_load_dword v%d, v%d, s[%d:%d], 0 offen sc1' % (PL, IA, SF, SF + 3)
def flag_ops(o, c):
    return [I('v_mov_b32 v89, %d' % (c + 1)), I('buffer_store_dword v89, v%d, s[%d:%d], 0 offen %s' % (FLA, SF, SF + 3, o.fl_pol))]
def load_groups(o, c, dst, sreg, g=SG):
    out = []
    for k in range(10):
        off, ad = (2 * PST * k, AD) if k < 8 else (8 * PST * (k - 8), AD2)
        out.append([I('s_add_u32 s%d, s%d, 0x%x' % (sreg, sCP + c, off)),
                    I('buffer_load_dwordx4 %s, v%d, s[%d:%d], s%d offen %s' % (dst(k), ad, g, g + 3, sreg, o.rd_pol))])
    return out
def red_addr(o):
    s = Seg('t')
    t = RT
    s('s_lshl_b32 s3, s%d, 4' % sG); s('s_add_u32 s3, s3, s38'); s('s_lshl_b32 s3, s3, 8')
    s('v_lshrrev_b32 v%d, 2, v%d' % (t, LANE16)); s('v_add_u32 v%d, s3, v%d' % (IA, t))
    s('v_lshrrev_b32 v%d, 4, v%d' % (t, LANE16))
    s('v_and_b32 v%d, 7, v%d' % (t + 2, t))
    s('s_and_b32 s3, s38, 3'); s('s_mul_i32 s63, s3, 5')
    s('s_lshr_b32 s3, s38, 2')
    s('s_lshr_b32 s36, s3, 1'); s('s_lshl_b32 s36, s36, 3'); s('s_and_b32 s3, s3, 1'); s('s_add_u32 s36, s36, s3')
    s('s_mul_i32 s3, s36, 10240'); s('s_lshl_b32 s62, s%d, 8' % sW); s('s_add_u32 s%d, s3, s62' % sM0)
    s('s_mul_i32 s3, s39, %d' % (160 * 2048)); s('s_lshl_b32 s62, s37, 10'); s('s_add_u32 s3, s3, s62')
    s('s_lshl_b32 s62, s36, 6'); s('s_add_u32 s3, s3, s62'); s('s_lshl_b32 s62, s%d, 3' % sW); s('s_add_u32 s%d, s3, s62' % (sM0 + 1))
    s('v_bfe_u32 v%d, v%d, 3, 2' % (t + 1, t))
    s('v_add_u32 v%d, s63, v%d' % (t + 3, t + 1))
    s('v_lshl_add_u32 v%d, v%d, 3, v%d' % (t + 4, t + 3, t + 2))
    s('v_lshrrev_b32 v%d, 1, v%d' % (t + 5, t + 3))
    s('v_and_b32 v%d, 15, v%d' % (t + 6, t + 4))
    s('v_lshlrev_b32 v%d, 4, v%d' % (t + 6, t + 6))
    s('v_lshl_add_u32 v%d, v%d, 10, v%d' % (t + 6, t + 5, t + 6))
    s('v_lshrrev_b32 v%d, 5, v%d' % (t + 1, t))
    s('v_mul_u32_u24 v%d, %d, v%d' % (t + 5, PST, t + 1))
    s('v_add3_u32 v%d, v%d, v%d, s%d' % (AD, t + 6, t + 5, sM0))
    s('v_lshlrev_b32 v%d, 5, v%d' % (t + 1, t + 1))
    s('v_lshl_add_u32 v%d, v%d, 11, v%d' % (t + 4, t + 4, t + 1))
    s('v_add_u32 v%d, s%d, v%d' % (OD, sM0 + 1, t + 4))
    s('s_add_u32 s63, s63, 4')
    s('s_lshr_b32 s3, s63, 1'); s('s_lshl_b32 s3, s3, 10'); s('s_and_b32 s62, s63, 1'); s('s_lshl_b32 s62, s62, 7'); s('s_add_u32 s3, s3, s62')
    s('s_add_u32 s3, s3, s%d' % sM0)
    s('v_lshrrev_b32 v%d, 3, v%d' % (t + 3, t))
    s('v_mul_u32_u24 v%d, %d, v%d' % (t + 5, PST, t + 3))
    s('v_lshl_add_u32 v%d, v%d, 4, v%d' % (t + 5, t + 2, t + 5))
    s('v_add_u32 v%d, s3, v%d' % (AD2, t + 5))
    s('s_lshl_b32 s3, s63, 14'); s('s_add_u32 s3, s3, s%d' % (sM0 + 1))
    s('v_lshl_add_u32 v%d, v%d, 11, v%d' % (t + 4, t + 2, t + 1))
    s('v_and_b32 v%d, 24, v%d' % (t + 1, t))
    s('v_cmp_eq_u32 vcc, 0, v%d' % (t + 1))
    s('v_add_u32 v%d, s3, v%d' % (t + 4, t + 4))
    s('v_mov_b32 v%d, 0x40000000' % (t + 7))
    s('v_cndmask_b32 v%d, v%d, v%d, vcc' % (OD2, t + 7, t + 4))
    s('v_mov_b32 v%d, 0x3f80' % C10); s('v_mov_b32 v%d, 0x3f800000' % C01)
    return s.items

LA, LO, LD, LA2, LD2, QAD, CL = 108, 109, 110, 111, 112, 113, 114
ODS = ((116, 117), (118, 119), (90, 91))
sI0, sI1, sN, sDB, sIT = 13, 14, 15, 12, 7
def red_addr_dyn(o):
    s = Seg('t')
    t = RT
    s('s_lshl_b32 s3, s%d, 4' % sG); s('s_add_u32 s3, s3, s38'); s('s_lshl_b32 s3, s3, 8')
    s('v_lshrrev_b32 v%d, 2, v%d' % (t, LANE16)); s('v_add_u32 v%d, s3, v%d' % (IA, t))
    s('v_lshrrev_b32 v%d, 4, v%d' % (t, LANE16))
    s('v_and_b32 v%d, 7, v%d' % (t + 2, t))
    s('v_lshrrev_b32 v%d, 5, v%d' % (t + 1, t))
    s('v_bfe_u32 v%d, v%d, 3, 2' % (LO, t))
    s('v_mul_u32_u24 v%d, %d, v%d' % (t + 5, PST, t + 1))
    s('v_lshl_add_u32 v%d, v%d, 4, v%d' % (LA, t + 2, t + 5))
    s('v_lshlrev_b32 v%d, 5, v%d' % (t + 1, t + 1))
    s('v_lshl_add_u32 v%d, v%d, 11, v%d' % (t + 4, t + 2, t + 1))
    s('v_lshl_add_u32 v%d, v%d, 14, v%d' % (LD, LO, t + 4))
    s('v_cmp_eq_u32 vcc, 0, v%d' % LO)
    s('v_lshrrev_b32 v%d, 3, v%d' % (t + 3, t))
    s('v_mov_b32 v%d, 0x40000000' % (t + 7))
    s('v_cndmask_b32 v%d, v%d, v%d, vcc' % (LD2, t + 7, t + 4))
    s('v_mul_u32_u24 v%d, %d, v%d' % (t + 5, PST, t + 3))
    s('v_lshl_add_u32 v%d, v%d, 4, v%d' % (LA2, t + 2, t + 5))
    s('s_mul_i32 s3, s39, %d' % (160 * 2048)); s('s_lshl_b32 s62, s37, 10'); s('s_add_u32 s%d, s3, s62' % sDB)
    s('s_lshl_b32 s3, s%d, 7' % sG); s('s_add_u32 s3, s3, 0x10000')
    s('v_min_u32 v%d, 1, v%d' % (t + 3, t)); s('v_lshlrev_b32 v%d, 30, v%d' % (t + 3, t + 3)); s('v_add_u32 v%d, s3, v%d' % (QAD, t + 3))
    s('v_mov_b32 v%d, 0x3f80' % C10); s('v_mov_b32 v%d, 0x3f800000' % C01)
    return s.items

def gen_op(o):
    s = Seg('op')
    exr = (lambda c: (EX, EX + 81920, 'ex%d' % c.get('redo', 0)))
    KSL = [(4 * c + r, [(2 * a + e, kk) for kk in range(2) for e in range(2)]) for c in range(4) for a in range(2) for r in range(4)]
    def reads_for(ks):
        u, fr = KSL[ks]
        base = OSLOT[u % 8]
        areg, imm = (80, base) if base < V0 else (84, base - V0)
        return [I('ds_read_b64_tr_b16 %s, v%d offset:%d' % (ar(KB + 16 * (ks & 1) + 4 * i + 2 * e, 2), areg + jn, imm + 8192 * kk + 4096 * e), lds=(base, base + 16384, 'wo%d' % u))
                for i, (jn, kk) in enumerate(fr) for e in range(2)]
    def conv(c, a):
        out = []
        for j in range(5):
            b = etile(c, 2 * a, j)
            cv = [I('v_cvt_pk_bf16_f32 v%d, v%d, v%d' % (b + i, b + 2 * i, b + 2 * i + 1)) for i in range(4)]
            out.append(cv[:2]); out.append(cv[2:])
            out.append([I('s_add_u32 s%d, s%d, 0x%x' % (sA, sCP + c, (10 * a + j) * 1024)),
                        I('buffer_store_dwordx4 %s, v%d, s[%d:%d], s%d offen %s' % (vr(b, 4), PO, SP_, SP_ + 3, sA, o.st_pol), tag='st%d' % c)])
        return out
    s('s_mov_b32 s%d, 0' % sREDO)
    s.add(reads_for(0))
    part = [I('ds_read_b128 %s, v98 offset:%d' % (ar(PART + 4 * f, 4), 1024 * f), lds=exr) for f in range(20)]
    own = [I('ds_read_b128 %s, v97 offset:%d' % (ar(OWN + 4 * f, 4), 1024 * f), lds=exr) for f in range(20)]
    s('s_mul_i32 s3, s%d, 80' % sP); s('s_mul_i32 s36, s%d, 5' % sHF); s('s_add_u32 s3, s3, s36'); s('s_lshl_b32 s3, s3, 10')
    s('v_add_u32 v%d, s3, v%d' % (PO, LANE16))
    extra = [part[i:i + 2] for i in range(0, 20, 2)] + [own[i:i + 2] for i in range(0, 20, 2)]
    vq = []
    ra = red_addr_dyn(o) if o.dyn else red_addr(o)
    seen = set()
    first_use, last_use = {}, {}
    for ks, (u, fr) in enumerate(KSL):
        first_use.setdefault(u, ks); last_use[u] = ks
    pending = list(range(4, 16))
    for ks, (u, fr) in enumerate(KSL):
        c, phi, dh = u >> 2, (u >> 1) & 1, u & 1
        if ks % 2 == 0: tstamp(s, o, 'o', ks // 2)
        buf = ks & 1
        mf = []
        for i, (jn, kk) in enumerate(fr):
            sidx = 2 * dh + kk
            first = (c, jn) not in seen; seen.add((c, jn))
            for j in range(5):
                d = vr(etile(c, jn, j), 4)
                if phi: bf = ar(PART + 16 * j + 4 * sidx, 4)
                elif c == 0: bf = vr(16 * j + 4 * sidx, 4)
                else: bf = ar(OWN + 16 * j + 4 * sidx, 4)
                mf.append(mfma(d, ar(KB + 16 * buf + 4 * i, 4), bf, '0' if first else d))
        need = regs('a', KB + 16 * buf, 16)
        if phi and c == 0: need = need + regs('a', PART, 80)
        bar = None
        nxt = KSL[ks + 1][0] if ks + 1 < 32 else None
        if nxt is not None and first_use[nxt] == ks + 1:
            if nxt == 3: need = need + regs('a', OWN, 80) + regs('a', PART, 80)
            new = []
            for v in list(pending):
                ok = (v == 4 and nxt >= 1) or (5 <= v <= 7 and nxt >= 3) or (v >= 8 and last_use[v - 8] <= ks)
                if not ok: break
                new += dma_wo(o, v); pending.remove(v)
            bar = dict(tags=['wo%d' % nxt])
            barrier_hooks.append(lambda new=new: vq.extend(new))
        rds = reads_for(ks + 1) if nxt is not None else []
        if ks == 4: extra += [ra[i:i + 2] for i in range(0, len(ra), 2)]
        if ks % 4 == 0 and ks > 0:
            cv = [[]] * 2 + conv((ks - 4) >> 3, ((ks - 4) >> 2) & 1)
            extra[0:0] = cv
        for cc in range(3 if o.fl3 else 2):
            if ks == 8 * (cc + 1) + o.flagat: extra.insert(0, [Wait(tags=['st%d' % cc])] + flag_ops(o, cc))
        if o.early:
            if ks == o.epoll: extra.insert(0, [I(poll_txt(), tag='poll')])
            if ks == o.epoll + 2:
                extra += [[I('s_mov_b32 s%d, s%d' % (SG2, SG)), I('s_mov_b32 s%d, s%d' % (SG2 + 1, SG + 1))],
                          [Wait(regs=[('v', PL)]), I('v_cmp_gt_u32 vcc, 1, v%d' % PL), I('s_mov_b32 s%d, 0x20000' % (SG2 + 3)), I('s_cmp_eq_u64 vcc, 0'),
                           I('s_cselect_b32 s%d, 0x%x, 0' % (SG2 + 2, 16 * PST)), I('s_cselect_b32 s%d, 1, 0' % sE)]]
                for g in load_groups(o, 0, lambda k: vr(144 + 4 * k, 4), sB, SG2): extra += [g] + [[]] * (o.ldevery - 1)
        if o.dyn and o.eclaim and ks == o.eclaim:
            extra.insert(0, [I('v_mov_b32 v%d, %d' % (CL, o.nb)), I('buffer_atomic_add v%d, v%d, s[%d:%d], 0 offen sc0' % (CL, QAD, SF, SF + 3), tag='claim'), I(poll_txt(), tag='poll')])
        elif ks == 30 and not (o.dyn and o.eclaim): extra.insert(0 if o.early else len(extra), [I(poll_txt(), tag='poll')])
        gemm_kstep(s, mf, need, rds, bar, extra, o.oevery, vq)
        if ks % 8 == 7: stamp(s, o, 7 + c)
    extra = [g for g in extra if g]
    assert not extra and not vq and not pending, (len(extra), len(vq), pending)
    s('s_nop 3')
    for g in conv(3, 1): s.add(g)
    stamp(s, o, 11)
    if o.early:
        s('s_cmp_lg_u32 s%d, 0' % sE)
        s('s_cbranch_scc1 L_redE')
    return s

def summ_ops(s, buf, o2):
    a = AC
    for i in range(16): s('v_mov_b32 v%d, 0' % (a + i))
    for k in range(10):
        if k in (0, 4, 8): s.wait(regs=regs('v', buf + 4 * k, 16 if k < 8 else 8))
        for d in range(4):
            x = buf + 4 * k + d
            b = a + (8 if k >= 8 else 0)
            s('v_dot2c_f32_bf16 v%d, v%d, v%d' % (b + 2 * d, x, C10)); s('v_dot2c_f32_bf16 v%d, v%d, v%d' % (b + 2 * d + 1, x, C01))
    t = RT
    s('s_nop 2')
    for i in range(8): s('v_add_f32_dpp v%d, v%d, v%d row_ror:8 row_mask:0xf bank_mask:0xf' % (t + i, a + 8 + i, a + 8 + i))
    for i in range(8): s('v_mov_b32 v%d, v%d' % (a + 8 + i, t + i))
    s('s_nop 0')
    for i in range(8): s('v_permlane16_swap_b32 v%d, v%d' % (t + i, a + 8 + i))
    for i in range(8): s('v_add_f32 v%d, v%d, v%d' % (a + 8 + i, a + 8 + i, t + i))
    for b in (a, a + 8):
        for i in range(4): s('v_permlane32_swap_b32 v%d, v%d' % (b + i, b + 4 + i))
    for b in (a, a + 8):
        for i in range(4): s('v_add_f32 v%d, v%d, v%d' % (b + i, b + i, b + 4 + i))
    for n_, b in enumerate((a, a + 8)):
        s('v_cvt_pk_bf16_f32 v%d, v%d, v%d' % (o2 + 2 * n_, b, b + 1)); s('v_cvt_pk_bf16_f32 v%d, v%d, v%d' % (o2 + 2 * n_ + 1, b + 2, b + 3))

def gen_red_dyn(o):
    poll = poll_txt()
    BUF = (144, 184, 0)
    NB = o.nb
    def claim(s, n):
        s('v_mov_b32 v%d, %d' % (CL, n))
        s('buffer_atomic_add v%d, v%d, s[%d:%d], 0 offen sc0' % (CL, QAD, SF, SF + 3), tag='claim')
    def check(s, idx, name):
        s('s_lshr_b32 s%d, s%d, 6' % (sN, idx)); s('s_add_u32 s%d, s%d, 1' % (sN, sN))
        s.wait(regs=[('v', PL)])
        s('v_cmp_gt_u32 vcc, s%d, v%d' % (sN, PL))
        s('s_cbranch_vccnz L_spin%s' % name)
        s.label('L_got%s' % name)
    def addr(s, idx, x):
        t = RT
        s('s_lshr_b32 s3, s%d, 6' % idx)
        if o.rotc: s('s_add_u32 s3, s3, s39'); s('s_and_b32 s3, s3, 3')
        s('s_bfe_u32 s36, s%d, 0x10005' % idx); s('s_lshl_b32 s36, s36, 2'); s('s_add_u32 s3, s3, s36'); s('s_lshl_b32 s3, s3, 1')
        s('s_bfe_u32 s36, s%d, 0x10004' % idx); s('s_add_u32 s3, s3, s36')
        s('s_and_b32 s36, s%d, 3' % idx)
        s('s_mul_i32 s62, s3, 10240'); s('s_lshl_b32 s63, s36, 8'); s('s_add_u32 s%d, s62, s63' % sM0)
        s('s_lshl_b32 s62, s3, 3'); s('s_add_u32 s62, s62, s36'); s('s_lshl_b32 s62, s62, 3'); s('s_add_u32 s62, s62, s%d' % sDB)
        s('s_bfe_u32 s63, s%d, 0x20002' % idx); s('s_mul_i32 s63, s63, 5')
        s('v_add_u32 v%d, s63, v%d' % (t, LO))
        s('s_lshl_b32 s3, s63, 14'); s('s_add_u32 s62, s62, s3')
        s('v_lshrrev_b32 v%d, 1, v%d' % (t + 1, t))
        s('v_and_b32 v%d, 1, v%d' % (t, t))
        s('v_add_u32 v%d, s62, v%d' % (ODS[x][0], LD))
        s('v_lshlrev_b32 v%d, 7, v%d' % (t, t))
        s('s_add_u32 s62, s62, 0x10000')
        s('v_lshl_add_u32 v%d, v%d, 10, v%d' % (t, t + 1, t))
        s('v_add_u32 v%d, s62, v%d' % (ODS[x][1], LD2))
        s('v_add3_u32 v%d, v%d, v%d, s%d' % (AD, t, LA, sM0))
        s('s_lshr_b32 s3, s63, 1'); s('s_add_u32 s3, s3, 2'); s('s_lshl_b32 s3, s3, 10'); s('s_and_b32 s63, s63, 1'); s('s_lshl_b32 s63, s63, 7')
        s('s_add_u32 s3, s3, s63'); s('s_add_u32 s3, s3, s%d' % sM0)
        s('v_add_u32 v%d, s3, v%d' % (AD2, LA2))
    def loads(s, x, ks=range(10)):
        for k in ks:
            off, ad = (2 * PST * k, AD) if k < 8 else (8 * PST * (k - 8), AD2)
            s('s_mov_b32 s%d, 0x%x' % (sA, off))
            s('buffer_load_dwordx4 %s, v%d, s[%d:%d], s%d offen %s' % (vr(BUF[x] + 4 * k, 4), ad, SG, SG + 3, sA, o.rd_pol))
    def finish(s, x):
        o2 = (100, 104, 92)[x]
        summ_ops(s, BUF[x], o2)
        for h in range(2): s('buffer_store_dwordx2 %s, v%d, s[%d:%d], 0 offen %s' % (vr(o2 + 2 * h, 2), ODS[x][h], SO, SO + 3, o.out_pol))
    pre = Seg('redpre')
    for i in range(15): tstamp(pre, o, 'r', i)
    pre('s_mov_b32 s%d, 0' % sIT)
    if o.eclaim:
        pre.wait(tags=['claim', 'poll'])
        pre('v_readfirstlane_b32 s%d, v%d' % (sI0, CL))
        pre('s_lshr_b32 s%d, s%d, 6' % (sN, sI0)); pre('s_add_u32 s%d, s%d, 1' % (sN, sN))
        pre('v_cmp_gt_u32 vcc, s%d, v%d' % (sN, PL))
        pre('s_add_u32 s%d, s%d, 1' % (sI1, sI0))
        pre('s_cbranch_vccnz L_late')
        addr(pre, sI0, 0)
        loads(pre, 0, range(o.nfirst))
        pre.wait(tags=['st3'])
        pre.add(flag_ops(o, 3))
        loads(pre, 0, range(o.nfirst, 10))
        late = Seg('late')
        late.label('L_late')
        late('s_waitcnt vmcnt(0)')
        late.add(flag_ops(o, 3))
        late('s_cmp_ge_u32 s%d, 256' % sI0)
        late('s_cbranch_scc1 L_end')
        check(late, sI0, 'P')
        addr(late, sI0, 0)
        loads(late, 0)
        late('s_branch L_rb0')
        o.late = late
        tstamp(pre, o, 'r', 2)
        stamp(pre, o, 12)
    else:
        claim(pre, NB)
        pre.wait(tags=['st3'])
        pre.add(flag_ops(o, 3))
        tstamp(pre, o, 'r', 1)
        pre.wait(tags=['claim'])
        pre('v_readfirstlane_b32 s%d, v%d' % (sI0, CL))
        tstamp(pre, o, 'r', 2)
        stamp(pre, o, 12)
        pre('s_add_u32 s%d, s%d, 1' % (sI1, sI0))
        pre('s_cmp_ge_u32 s%d, 256' % sI0)
        pre('s_cbranch_scc1 L_end')
        check(pre, sI0, 'P')
        addr(pre, sI0, 0)
        loads(pre, 0)
    if NB == 3:
        pre('s_cmp_ge_u32 s%d, 256' % sI1)
        pre('s_cbranch_scc1 L_rlast0')
        check(pre, sI1, 'Q')
        addr(pre, sI1, 1)
        loads(pre, 1)
        pre('s_add_u32 s%d, s%d, 1' % (sI1, sI1))
    body, fin = [], []
    for x in range(NB):
        y = (x + NB - 1) % NB
        b = Seg('redbody%d' % x)
        b.label('L_rb%d' % x)
        if o.trace == 'r':
            b('%s s[%d:%d]' % (clk(o), sST + 6, sST + 7)); b('s_waitcnt lgkmcnt(0)'); b('s_add_u32 m0, s%d, 3' % sIT); b('s_nop 0'); b('v_writelane_b32 v%d, s%d, m0' % (STV + 2, sST + 6))
        b('s_add_u32 s%d, s%d, 1' % (sIT, sIT)); b('s_cmp_gt_u32 s%d, 300' % sIT); b('s_cbranch_scc1 L_rf%d' % x)
        b('s_cmp_ge_u32 s%d, 256' % sI1)
        b('s_cbranch_scc1 L_rf%d' % x)
        check(b, sI1, 'B%d' % x)
        addr(b, sI1, y)
        claim(b, 1)
        b(poll, tag='poll')
        loads(b, y)
        finish(b, x)
        b.wait(regs=[('v', CL)])
        b('v_readfirstlane_b32 s%d, v%d' % (sI1, CL))
        if x == NB - 1: b('s_branch L_rb0')
        body.append(b)
        f = Seg('redfin%d' % x)
        f.label('L_rf%d' % x)
        finish(f, x)
        if NB == 3:
            if x == 2: f.label('L_rlast0')
            finish(f, (x + 1) % 3)
        if x < NB - 1: f('s_branch L_end')
        fin.append(f)
    e = Seg('redend')
    e.label('L_end')
    if o.stamps or o.trace:
        e('s_waitcnt vmcnt(0)')
        tstamp(e, o, 'r', 15)
        stamp(e, o, 13); stamp(e, o, 14); stamp(e, o, 15)
    e.label('L_done')
    e('s_endpgm')
    sp = Seg('spins')
    for n in ('P', 'B0', 'B1') + (('Q', 'B2') if NB == 3 else ()): gen_spin(sp, 'L_spin' + n, 'L_got' + n, poll, ['v_cmp_gt_u32 vcc, s%d, v%d' % (sN, PL), 's_cbranch_vccnz @'], 35)
    sp.label('L_cntspin')
    sp('s_lshl_b32 s%d, s%d, 3' % (sA, sG))
    gen_spin(sp, 'L_cntspin2', 'L_cntok', 'buffer_load_dword v%d, off, s[%d:%d], s%d offset:128 sc1' % (CNT, SD, SD + 3, sA),
             ['v_readfirstlane_b32 s3, v%d' % CNT, 's_cmp_lt_u32 s3, 16', 's_cbranch_scc1 @'], 35)
    return pre, body, fin, e, sp

def gen_red(o, early, sfx):
    s = Seg('red' + sfx)
    if sfx: s.label('L_red' + sfx)
    poll = poll_txt()
    BUF = [144, 184, 0, 40]
    def check(n):
        s.wait(regs=[('v', PL)])
        s('v_cmp_gt_u32 vcc, %d, v%d' % (n, PL))
        s('s_cbranch_vccnz L_spin%d%s' % (n, sfx))
        s.label('L_got%d%s' % (n, sfx))
    def loads(c):
        for g in load_groups(o, c, lambda k: vr(BUF[c] + 4 * k, 4), sA): s.add(g)
    def summ(c): summ_ops(s, BUF[c], 100 + 4 * (c & 1))
    def outst(c):
        o2 = 100 + 4 * (c & 1)
        s('buffer_store_dwordx2 %s, v%d, s[%d:%d], s%d offen %s' % (vr(o2, 2), OD, SO, SO + 3, sCW + c, o.out_pol))
        s('buffer_store_dwordx2 %s, v%d, s[%d:%d], s%d offen %s' % (vr(o2 + 2, 2), OD2, SO, SO + 3, sCW + c, o.out_pol))
    T = lambda i: tstamp(s, o, 'r', i)
    T(0)
    if o.fl3:
        s.wait(tags=['st3'])
        s.add(flag_ops(o, 3))
        check(1)
        T(1); stamp(s, o, 12)
        loads(0)
        T(2)
        check(2)
        T(3)
        s(poll, tag='poll')
        loads(1)
        T(4)
        summ(0)
    else:
        s.wait(regs=[('v', PL)], tags=['st2'])
        s.add(flag_ops(o, 2))
    if o.fl3: pass
    elif not early:
        check(1)
        T(1); stamp(s, o, 12)
        s.wait(regs=regs('v', BUF[0], 40))
        loads(0)
        T(2)
        s.wait(tags=['st3'])
        s.add(flag_ops(o, 3))
        check(2)
        T(3)
        s(poll, tag='poll')
        loads(1)
        T(4)
        summ(0)
    else:
        check(2)
        T(1); stamp(s, o, 12)
        loads(1)
        T(2)
        s.wait(tags=['st3'])
        s.add(flag_ops(o, 3))
        T(3)
        s(poll, tag='poll')
        T(4)
        summ(0)
    T(5)
    check(3)
    T(6); stamp(s, o, 13)
    s(poll, tag='poll')
    loads(2)
    outst(0)
    T(7)
    summ(1)
    T(8)
    check(4)
    T(9); stamp(s, o, 14)
    loads(3)
    outst(1)
    T(10)
    summ(2); outst(2)
    T(11)
    summ(3); outst(3)
    T(12)
    if o.stamps or o.trace:
        s('s_waitcnt vmcnt(0)')
        T(13); T(14); T(15)
        stamp(s, o, 15)
    if not sfx: s.label('L_done')
    s('s_endpgm')
    sp = Seg('spins')
    for n in (2, 3, 4) if early else (1, 2, 3, 4): gen_spin(sp, 'L_spin%d%s' % (n, sfx), 'L_got%d%s' % (n, sfx), poll, ['v_cmp_gt_u32 vcc, %d, v%d' % (n, PL), 's_cbranch_vccnz @'])
    if sfx: return s, sp
    sp.label('L_cntspin')
    sp('s_lshl_b32 s%d, s%d, 3' % (sA, sG))
    gen_spin(sp, 'L_cntspin2', 'L_cntok', 'buffer_load_dword v%d, off, s[%d:%d], s%d offset:128 sc1' % (CNT, SD, SD + 3, sA),
             ['v_readfirstlane_b32 s3, v%d' % CNT, 's_cmp_lt_u32 s3, 16', 's_cbranch_scc1 @'])
    return s, sp

def desc(name, vgpr, accum, sgpr):
    return '''.amdhsa_kernel %s
  .amdhsa_next_free_vgpr %d
  .amdhsa_next_free_sgpr %d
  .amdhsa_accum_offset %d
  .amdhsa_group_segment_fixed_size 0
  .amdhsa_kernarg_size 104
  .amdhsa_user_sgpr_count 2
  .amdhsa_user_sgpr_kernarg_segment_ptr 1
  .amdhsa_system_sgpr_workgroup_id_x 1
  .amdhsa_float_denorm_mode_32 3
.end_amdhsa_kernel
''' % (name, vgpr, sgpr, accum)

def build(o, path):
    o.kvat_l = [int(x) for x in o.kvat.split(',')]
    o.sched = kv_schedule(o)
    entry, q, s0, attn, epi = gen_entry(o), gen_q(o), gen_s0(o), gen_attn(o), gen_epi(o)
    r0, r1, r2 = gen_redo(o)
    op = gen_op(o)
    if o.dyn:
        pre, body, fin, e, spins = gen_red_dyn(o)
        tail_code = [pre] + body + fin + [e, spins]
        tails = [[pre] + body + body + [fin[0], e], [pre] + body + [body[0], fin[1], e]]
        xtails = [[pre, fin[0], e], [pre, body[0], fin[1], e]]
        if o.eclaim:
            assert o.nb == 2
            h = Seg('h'); h.items = pre.items[:[i for i, it in enumerate(pre.items) if it.kind == 'branch' and 'L_late' in it.text][0] + 1]
            xtails += [[h, o.late, body[0], body[1], fin[0], e], [h, o.late, fin[0], e]]
            tail_code.append(o.late)
        if o.nb == 3:
            h = Seg('h'); h.items = pre.items[:[i for i, it in enumerate(pre.items) if it.kind == 'branch' and 'L_rlast0' in it.text][0] + 1]
            l = Seg('l'); l.items = fin[2].items[[i for i, it in enumerate(fin[2].items) if it.kind == 'label' and it.name == 'L_rlast0'][0]:]
            xtails += [[pre, body[0], body[1], fin[2], e], [pre] + body + [body[0], body[1], fin[2], e], [h, l, e]]
    else:
        red, spins = gen_red(o, False, '')
        redE, spinsE = gen_red(o, True, 'E') if o.early else (Seg('x'), Seg('x'))
        tail_code = [red, redE, spins, spinsE]
        tails = [[red], [redE if o.early else red]]
    traces = []
    for redo in (0, 1):
        tr = [(entry, {}), (q, {})]
        for ps in range(redo + 1):
            if ps: tr += [(r0, {}), (r1, {}), (r1, {}), (r2, {})]
            tr += [(s0, {}), (attn, {}), (epi, dict(redo=ps))]
        tr += [(op, dict(redo=redo))] + [(x, {}) for x in tails[redo]]
        traces.append(('redo%d' % redo, tr))
    if o.dyn:
        base = traces[0][1][:-len(tails[0])]
        for i, xt in enumerate(xtails): traces.append(('x%d' % i, base + [(x, {}) for x in xt]))
    resolve([t for _, t in traces])
    allerr = []
    for name, tr in traces: allerr += check(tr, name)[0]
    for e in allerr[:30]: print('ERR', e)
    if allerr: print(len(allerr), 'errors')
    hdr = open('concat_heads__gqa_block_cached__gqa_block_cached__near_ridge.s.ref').read().split('; Override')[0]
    txt = hdr + '; @launch grid=(256,1,1) block=(256,1,1) lds=163840\n'
    txt += '.amdgcn_target "amdgcn-amd-amdhsa--gfx950"\n.text\n.globl %s\n.p2align 8\n.type %s,@function\n%s:\n' % (KN, KN, KN)
    for sg in [entry, q, s0, attn, epi, op] + tail_code + [r0, r1, r2]: txt += sg.text()
    txt += 'L_code_end:\n'
    txt += '.section .rodata,"a"\n.p2align 6\n' + desc(KN, 512, 256, 100)
    open(path, 'w').write(txt)
    return not allerr

if __name__ == '__main__':
    o = Opt()
    path = sys.argv[1]
    for kv in sys.argv[2:]:
        k, v = kv.split('=')
        cur = getattr(o, k)
        setattr(o, k, int(v) if isinstance(cur, int) else v.replace('+', ' '))
    ok = build(o, path)
    print('written', path, 'ok' if ok else 'WITH ERRORS', {h: len(v) for h, v in o.sched.items() if len(v) != 4 and (len(v) or h < 62)} if '-v' in path else '')
```

```python
import sys, struct, math
from fw import *

KN = "concat_heads__gqa_block_cached__gqa_block_cached__near_ridge_kernel"
WS_BYTES = 287834112
import os
PST = int(os.environ.get('PST', 172032))
INB = 256 * PST
def f2u(x): return struct.unpack('<I', struct.pack('<f', x))[0]

class Opt:
    kv_pol = 'nt'; w_pol = ''; st_pol = 'sc1'; rd_pol = 'sc1'; fl_pol = 'sc1'; out_pol = ''
    stamps = 0; cyc = 0; dbgst = 0; trace = ''
    force_redo = 0
    codepf = 1
    par = 1
    qevery = 3
    qpack = 0
    slots = 0
    kvat = '5,7,9,11'
    cap = 4
    cap2 = 0
    rotp = 1
    lsum = 0
    uni = 1
    lasth = 58
    ninit = 10
    oevery = 1
    flagat = 5
    rotc = 1
    dyn = 1
    nb = 3
    sl8 = 1
    eclaim = 0
    nfirst = 5
    fl3 = 1
    early = 0
    epoll = 24
    ldevery = 5
    pfo = 0
    diag = ''

V0 = 98304
KAD = lambda j: 16384 * (j % 5)
VAD = lambda j: (V0, V0 + 16384, V0 + 32768, V0 + 49152, V0 - 16384)[(j + 2) % 5]
XBUF = lambda m: 32768 + 20480 * (m & 1)
WAD = lambda n: (V0 + 16384, V0 - 16384, V0)[n % 3]
EX = 16384
FLG = VAD(31)
OSLOT = [VAD(28), KAD(30), VAD(29), VAD(30), VAD(31), 16384, 32768, 49152]

S, P, NM, L = 0, 40, 80, 100
KA, KA2, VA, VA2, DK, DV, LANE16, CNT, FLA, CA = 105, 109, 113, 121, 129, 133, 135, 136, 137, 138
DWO = VA2
STV = 140
OV, NOV = 144, 28
XAD, DX, DWQ, DUM = 48, 50, 51, 59
Q, KB, VB, OA = 0, 80, 112, 144
XF = 144
OWN, PART = 0, 144
LS, ONES = 192, 212
sW, sP, sREDO, sCNT = 4, 5, 6, 7
SX, SWQ, SK, SV, SWO, SP_ = 8, 12, 16, 20, 24, 28
sOK, sOV, sMK = 32, 33, 34
sBR, sHP, sBT = 37, 38, 39
sWS = 40
sCW, sCP = 44, 48
sC, sTHR = 54, 56
sA, sB = 58, 59
sW1K, sHF = 60, 61
sST = 64
SF, SD, SO = 72, 76, 80
sG = 84
sM0, sM1 = 86, 88
sXO, sWQO = 90, 91
SG = 96
SG2 = 8
sE = 35

def vr(b, n=1): return 'v%d' % b if n == 1 else 'v[%d:%d]' % (b, b + n - 1)
def ar(b, n=1): return 'a%d' % b if n == 1 else 'a[%d:%d]' % (b, b + n - 1)
def sr(b, n=1): return 's%d' % b if n == 1 else 's[%d:%d]' % (b, b + n - 1)
def mfma(d, a, b, c): return I('v_mfma_f32_16x16x32_bf16 %s, %s, %s, %s' % (d, a, b, c))
def otile(j, db):
    n = 8 * j + db
    return ('v', OV + 4 * n) if n < NOV else ('a', OA + 4 * (n - NOV))
def oreg(j, db):
    k, b = otile(j, db)
    return '%s[%d:%d]' % (k, b, b + 3)
def qacc(db, j):
    n = 8 * j + db
    return 4 * n if n < 12 else OV + 4 * (n - 12)

def clk(o): return 's_memtime' if o.cyc else 's_memrealtime'
def tstamp(s, o, ph, idx):
    if o.trace == ph and idx < 16:
        s('%s s[%d:%d]' % (clk(o), sST + 6, sST + 7)); s('s_waitcnt lgkmcnt(0)')
        s('v_writelane_b32 v%d, s%d, %d' % (STV + 2, sST + 6, idx))
def stamp(s, o, idx):
    st = sST
    def wsrd():
        s('s_mov_b32 s%d, s%d' % (st, sWS)); s('s_mov_b32 s%d, s%d' % (st + 1, sWS + 1))
        s('s_mov_b32 s%d, 0x%x' % (st + 2, WS_BYTES)); s('s_mov_b32 s%d, 0x20000' % (st + 3))
    if o.trace:
        if idx == 15:
            wsrd()
            s('s_mul_i32 s%d, s2, %d' % (st + 4, 128)); s('s_add_u32 s%d, s%d, 0x%x' % (st + 4, st + 4, WS_BYTES - 256 * 128))
            s('s_min_u32 s3, s%d, 1' % sW); s('s_lshl_b32 s3, s3, 30'); s('s_add_u32 s%d, s%d, s3' % (st + 4, st + 4))
            s('v_mbcnt_lo_u32_b32 v0, -1, 0'); s('v_lshlrev_b32 v0, 3, v0'); s('v_mov_b32 v2, v%d' % (STV + 2)); s('v_mov_b32 v3, 0')
            s('s_mov_b64 exec, 0xffff')
            s('buffer_store_dwordx2 v[2:3], v0, s[%d:%d], s%d offen' % (st, st + 3, st + 4))
        return
    if not o.stamps: return
    a, b = STV, STV + 1
    if o.dbgst:
        if idx not in (0, 2, 3, 5, 6, 11, 13, 15): return
        idx = (0, 2, 3, 5, 6, 11, 13, 15).index(idx)
        s('s_memrealtime s[%d:%d]' % (st + 4, st + 5)); s('s_memtime s[%d:%d]' % (st + 6, st + 7)); s('s_waitcnt lgkmcnt(0)')
        s('v_mov_b32 v%d, s%d' % (a, st + 4)); s('v_mov_b32 v%d, s%d' % (b, st + 6))
        s('s_sub_u32 s%d, s2, %d' % (st + 4, o.dbgst - 1)); s('s_mul_i32 s%d, s%d, 0x1000' % (st + 4, st + 4))
        s('s_add_u32 s%d, s%d, 0x%x' % (st + 4, st + 4, idx * 8)); s('s_nop 0')
        s('buffer_store_dwordx2 v[%d:%d], off, s[%d:%d], s%d' % (a, b, SD, SD + 3, st + 4))
        return
    s('%s s[%d:%d]' % (clk(o), st + 4, st + 5)); s('s_waitcnt lgkmcnt(0)')
    if idx == 0: s('s_mov_b64 s[%d:%d], s[%d:%d]' % (st + 4, st + 5, st + 6, st + 7))
    wsrd()
    s('v_mov_b32 v%d, s%d' % (a, st + 4)); s('v_mov_b32 v%d, s%d' % (b, st + 5))
    s('s_mul_i32 s%d, s2, %d' % (st + 4, o.stamps * 8))
    s('s_add_u32 s%d, s%d, 0x%x' % (st + 4, st + 4, WS_BYTES - 256 * o.stamps * 8 + idx * 8)); s('s_nop 0')
    s('buffer_store_dwordx2 v[%d:%d], off, s[%d:%d], s%d' % (a, b, st, st + 3, st + 4))

def dma(voff, srd, soff, imm, pol, tag, lo, n=16384):
    return I('buffer_load_dwordx4 v%d, s[%d:%d], s%d offen offset:%d %s lds' % (voff, srd, srd + 3, soff, imm, pol), tag=tag, lds=(lo, lo + n, tag))
def grp4(pre, mk, post=()):
    out = []
    for t in range(4):
        g = list(pre) if t == 0 else []
        g.append(mk(t))
        if t == 3: g += list(post)
        out.append(g)
    return out
def dma_x(o, m):
    buf = XBUF(m)
    out = [[I('s_add_u32 m0, s%d, 0x%x' % (sW1K, buf + 4096 * j)), I('s_add_u32 s%d, s%d, 0x%x' % (sA, sXO, 32768 * j)),
            dma(DX, SX, sA, 0, o.w_pol, 'x%d' % m, buf, 20480)] for j in range(5)]
    out[4] += [I('s_add_u32 s%d, s%d, 128' % (sXO, sXO)), I('s_and_b32 s%d, s%d, 0x3ff' % (sXO, sXO))]
    return out
def dma_wq(o, n):
    b = WAD(n)
    return grp4([I('s_add_u32 m0, s%d, 0x%x' % (sMK, b)), I('s_nop 0')],
                lambda t: dma(DWQ + t, SWQ, sWQO, 1024 * t, o.w_pol, 'wq%d' % n, b),
                [I('s_add_u32 s%d, s%d, 0x40000' % (sWQO, sWQO)), I('s_and_b32 s%d, s%d, 0x3fffff' % (sWQO, sWQO))])
def dma_kv(o, kind, j):
    b, so, srd_ = (KAD(j), sOK, SK) if kind == 'K' else (VAD(j), sOV, SV)
    vo = (lambda t: DK + t) if kind == 'K' else (lambda t: DV + (t & 1))
    return grp4([I('s_add_u32 s%d, s%d, 0x2000' % (so, so)), I('s_add_u32 m0, s%d, 0x%x' % (sMK, b)), I('s_and_b32 s%d, s%d, 0x3ffff' % (so, so))],
                lambda t: dma(vo(t), srd_, so, 1024 * t, o.kv_pol, '%s%d' % (kind, j), b))
KVSEQ = [(k, j) for j in range(32) for k in 'KV']
def dma_wo(o, u):
    c, phi, dh = u >> 2, (u >> 1) & 1, u & 1
    b = OSLOT[u % 8]
    return grp4([I('s_lshl_b32 s%d, s%d, 2' % (sB, sMK)), I('s_add_u32 s%d, s%d, s%d' % (sB, sB, sCW + c)),
                 I('s_add_u32 m0, s%d, 0x%x' % (sMK, b)), I('s_add_u32 s%d, s%d, 0x%x' % (sB, sB, 65536 * dh))],
                lambda t: dma(DWO + 4 * phi + t, SWO, sB, 1024 * t, o.w_pol, 'wo%d' % u, b))
def capped(o, groups):
    if not o.cap: return groups
    out = []
    for g in groups:
        k = [i for i, x in enumerate(g) if x.kind == 'dma'][0]
        if o.cap2:
            lo = I('s_waitcnt vmcnt(%d)' % o.cap); lo.kind = 'other'
            out.append(g[:k] + [I('s_waitcnt vmcnt(%d)' % o.cap2), I('s_cbranch_vccnz 1'), lo] + g[k:])
        else: out.append(g[:k] + [I('s_waitcnt vmcnt(%d)' % o.cap)] + g[k:])
    return out

def rd_k(j):
    b = KAD(j)
    areg, imm = (KA, b) if b < 65536 else (KA2, b - 65536)
    return [I('ds_read_b128 %s, v%d offset:%d' % (ar(KB + 4 * (4 * kb + s), 4), areg + s, imm + 4096 * kb), lds=(b, b + 16384, 'K%d' % j))
            for s in range(4) for kb in range(2)]
def rd_tr(dst, b, tag):
    areg, imm = (VA, b - V0) if b >= V0 else (VA2, 0)
    return [I('ds_read_b64_tr_b16 %s, v%d offset:%d' % (ar(dst + 4 * d + 2 * e, 2), areg + d, imm + 4096 * e), lds=(b, b + 16384, tag))
            for d in range(8) for e in range(2)]
def rd_v(dst, j): return rd_tr(dst, VAD(j), 'V%d' % j)

def spread(items, gaps):
    d = {g: [] for g in gaps}
    n, m = len(items), len(gaps)
    for i, it in enumerate(items): d[gaps[i * m // n]].append(it)
    return d
def srd(s, r, lo, hi, off, size):
    if off is None: s('s_mov_b32 s%d, s%d' % (r, lo)); s('s_mov_b32 s%d, s%d' % (r + 1, hi))
    else: s('s_add_u32 s%d, s%d, s%d' % (r, lo, off)); s('s_addc_u32 s%d, s%d, 0' % (r + 1, hi))
    if size is not None: s('s_mov_b32 s%d, 0x%x' % (r + 2, size))
    s('s_mov_b32 s%d, 0x20000' % (r + 3))
def kv_start(s, o):
    s('s_mul_i32 s3, s%d, 0x%x' % (sP, 8192 * o.rotp)); s('s_lshl_b32 s36, s%d, 12' % sHF); s('s_add_u32 s3, s3, s36')
    s('s_sub_u32 s%d, s3, 0x2000' % sOK); s('s_mov_b32 s%d, s%d' % (sOV, sOK))

def gen_entry(o):
    s = Seg('entry')
    if o.stamps and not o.dbgst: s('%s s[%d:%d]' % (clk(o), sST + 6, sST + 7))
    s('s_cmp_ge_u32 s2, 256')
    s('s_cbranch_scc1 L_done')
    s('s_and_b32 s3, s2, 7')
    s('s_lshr_b32 s36, s2, 3')
    if o.par: s('s_and_b32 s37, s3, 1'); s('s_lshr_b32 s38, s3, 1')
    else: s('s_lshr_b32 s37, s3, 2'); s('s_and_b32 s38, s3, 3')
    s('s_mul_i32 s3, s37, 40'); s('s_add_u32 s42, s0, s3'); s('s_addc_u32 s43, s1, 0')
    s('''s_load_dwordx8 s[44:51], s[42:43], 0
         s_load_dwordx2 s[52:53], s[42:43], 32
         s_load_dwordx2 s[40:41], s[0:1], 96
         s_load_dwordx4 s[92:95], s[0:1], 80''')
    if o.codepf:
        s('s_getpc_b64 s[62:63]')
        s.label('L_pc')
        s('v_lshrrev_b32 v7, 2, v0'); s('v_and_b32 v7, 0x30, v7'); s('v_and_b32 v8, 15, v0'); s('v_or_b32 v7, v7, v8')
        s('s_and_b32 s3, s36, 15'); s('s_lshl_b32 s3, s3, 6')
        s('v_add_lshl_u32 v7, s3, v7, 7')
        s('v_min_u32 v7, L_code_end-L_pc-4, v7')
        s('global_load_dword v%d, v7, s[62:63]' % DUM, dummy=True)
    s('''s_lshl_b32 s38, s38, 2
         s_and_b32 s39, s36, 3
         s_or_b32 s38, s38, s39
         s_lshr_b32 s39, s36, 2''')
    s('v_lshrrev_b32 v7, 6, v0')
    s('v_and_b32 v1, 63, v0')
    s('v_readfirstlane_b32 s%d, v7' % sW)
    s('v_lshrrev_b32 v2, 4, v1')
    s('v_and_b32 v3, 15, v1')
    s('v_and_b32 v5, 7, v1')
    s('s_lshl_b32 s%d, s%d, 10' % (sW1K, sW))
    s('s_lshl_b32 s%d, s%d, 12' % (sMK, sW))
    s('s_lshr_b32 s%d, s%d, 1' % (sP, sW))
    s('s_and_b32 s%d, s%d, 1' % (sHF, sW))
    s('s_lshl_b32 s3, s%d, 2' % sHF)
    s('v_add_u32 v9, s3, v2')
    s('v_xor_b32 v5, v9, v5')
    s('v_lshlrev_b32 v5, 4, v5')
    s('v_lshrrev_b32 v4, 3, v0')
    s('v_lshl_add_u32 v%d, v4, 10, v5' % DX)
    s('v_lshlrev_b32 v6, 1, v2')
    s('v_xor_b32 v6, v6, v3')
    s('v_lshlrev_b32 v6, 4, v6')
    s('v_lshl_add_u32 v4, v9, 13, v6')
    s('s_lshl_b32 s3, s%d, 8' % sP)
    s('v_add_u32 v%d, s3, v4' % DWQ)
    s('v_xor_b32 v4, 0x80, v%d' % DWQ)
    s('v_add_u32 v%d, 0x%x, v4' % (DWQ + 1, 64512))
    s('v_add_u32 v%d, 0x%x, v%d' % (DWQ + 2, 2 * 64512, DWQ))
    s('v_add_u32 v%d, 0x%x, v4' % (DWQ + 3, 3 * 64512))
    s('s_and_b32 s3, s38, 3'); s('s_lshl_b32 s3, s3, 1'); s('s_add_u32 s3, s3, s39'); s('s_and_b32 s3, s3, 7')
    s('s_lshl_b32 s%d, s3, 7' % sXO); s('s_lshl_b32 s%d, s3, 19' % sWQO)
    s('s_mul_i32 s3, s39, 163840'); s('s_lshl_b32 s36, s38, 9')
    s('s_waitcnt lgkmcnt(0)')
    srd(s, SX, 44, 45, 3, 163840)
    srd(s, SWQ, 50, 51, 36, None); s('s_sub_u32 s%d, 0x400000, s36' % (SWQ + 2))
    for g in dma_x(o, 0) + dma_wq(o, 0) + dma_wq(o, 1): s.add(g)
    srd(s, SD, 94, 95, None, 256)
    stamp(s, o, 0)
    s('v_lshlrev_b32 v%d, 4, v1' % LANE16)
    s('s_mov_b32 s3, 0x%x' % INB); srd(s, SF, sWS, sWS + 1, 3, 65536 + 2048)
    s('s_lshl_b32 s%d, s37, 3' % sG); s('s_add_u32 s%d, s%d, s39' % (sG, sG))
    s('s_lshl_b32 s36, s%d, 4' % sG); s('s_add_u32 s36, s36, s38')
    s('s_min_u32 s3, s%d, 1' % sW); s('s_lshl_b32 s3, s3, 30')
    s('s_lshl_b32 s62, s36, 8'); s('s_add_u32 s62, s62, s3')
    s('v_lshlrev_b32 v8, 2, v1'); s('v_add_u32 v9, s62, v8'); s('v_mov_b32 v10, 0')
    s('buffer_store_dword v10, v9, s[%d:%d], 0 offen %s' % (SF, SF + 3, o.fl_pol), tag='clr')
    if o.dyn:
        s('s_lshl_b32 s3, s%d, 7' % sG); s('s_add_u32 s3, s3, 0x10000'); s('s_min_u32 s62, s38, 1'); s('s_lshl_b32 s62, s62, 30'); s('s_add_u32 s3, s3, s62')
        s('v_min_u32 v9, 1, v0'); s('v_lshlrev_b32 v9, 29, v9'); s('v_add_u32 v9, s3, v9')
        s('buffer_store_dword v10, v9, s[%d:%d], 0 offen %s' % (SF, SF + 3, o.fl_pol))
    s('s_mul_i32 s3, s36, %d' % PST); srd(s, SP_, sWS, sWS + 1, 3, 163840)
    s('''s_lshl_b32 s3, s39, 4
         s_add_u32 s3, s3, s38
         s_lshl_b32 s3, s3, 1
         s_add_u32 s3, s3, s%d
         s_lshl_b32 s3, s3, 18''' % sP)
    srd(s, SK, 46, 47, 3, 0x40000); srd(s, SV, 48, 49, 3, 0x40000)
    s('s_lshl_b32 s3, s38, 18'); srd(s, SWO, 52, 53, 3, 0x40000)
    srd(s, SO, 92, 93, None, 8 * 160 * 2048)
    s('s_mul_i32 s3, s%d, %d' % (sG, 16 * PST)); srd(s, SG, sWS, sWS + 1, 3, 16 * PST)
    kv_start(s, o)
    for c in range(4):
        if o.rotc: s('s_add_u32 s3, s39, %d' % c); s('s_and_b32 s3, s3, 3')
        else: s('s_mov_b32 s3, %d' % c)
        s('s_lshl_b32 s%d, s3, 7' % (sCW + c)); s('s_mul_i32 s%d, s3, 20480' % (sCP + c))
    c = math.log2(math.e) / math.sqrt(128.0)
    s('s_mov_b32 s%d, 0x%x' % (sC, f2u(c))); s('s_mov_b32 s%d, 0x%x' % (sC + 1, f2u(c)))
    s('s_mov_b32 s%d, 0x%x' % (sTHR, f2u(2.0 ** 24 if not o.force_redo else 1.0)))
    s('s_mov_b32 s%d, 0' % sREDO)
    s('s_lshl_b32 s3, s%d, 12' % sG); s('s_lshl_b32 s36, s38, 4'); s('s_add_u32 s3, s3, s36')
    s('s_lshl_b32 s36, s%d, 2' % sW); s('s_add_u32 s3, s3, s36')
    s('v_lshlrev_b32 v4, 8, v3'); s('v_add_u32 v4, s3, v4')
    s('v_min_u32 v5, 1, v2'); s('v_lshl_add_u32 v%d, v5, 30, v4' % FLA)
    s('v_min_u32 v5, 1, v0'); s('v_lshlrev_b32 v5, 30, v5'); s('s_lshl_b32 s3, s%d, 3' % sG); s('s_add_u32 s3, s3, 128'); s('v_add_u32 v%d, s3, v5' % CA)
    s('v_mov_b32 v%d, 1' % CNT)
    s('v_xor_b32 v4, v2, v3'); s('v_lshlrev_b32 v4, 4, v4')
    s('v_lshl_add_u32 v%d, v2, 8, v4' % DK)
    for t in range(1, 4): s('v_xor_b32 v%d, %d, v%d' % (DK + t, 64 * t, DK))
    s('v_lshl_add_u32 v%d, v2, 8, v6' % DV)
    s('v_xor_b32 v%d, 0x80, v%d' % (DV + 1, DV))
    s('v_lshl_add_u32 v4, v3, 8, v4')
    s('s_lshl_b32 s36, s%d, 13' % sP)
    s('v_add_u32 v%d, s36, v4' % KA)
    for k in range(1, 4): s('v_xor_b32 v%d, %d, v%d' % (KA + k, 64 * k, KA))
    for k in range(4): s('v_add_u32 v%d, 0x10000, v%d' % (KA2 + k, KA + k))
    s('v_lshrrev_b32 v4, 1, v3'); s('v_xor_b32 v4, v4, v2'); s('v_lshlrev_b32 v4, 4, v4')
    s('v_lshl_add_u32 v4, v3, 7, v4')
    s('s_mul_i32 s3, s%d, 10240' % sHF)
    s('v_add_u32 v%d, s3, v4' % XAD)
    s('v_xor_b32 v%d, 64, v%d' % (XAD + 1, XAD))
    s('v_lshrrev_b32 v4, 2, v1')
    s('v_and_b32 v5, 7, v4')
    s('v_lshlrev_b32 v5, 5, v5')
    s('v_lshl_add_u32 v5, v4, 8, v5')
    s('v_and_b32 v4, 3, v1')
    s('v_lshl_add_u32 v5, v4, 3, v5')
    s('s_add_u32 s36, s36, 0x%x' % V0)
    s('v_add_u32 v%d, s36, v5' % VA)
    for k in range(1, 8): s('v_xor_b32 v%d, %d, v%d' % (VA + k, 32 * k, VA))
    for k in range(8): s('v_subrev_u32 v%d, 0x4000, v%d' % (VA2 + k, VA + k))
    stamp(s, o, 1)
    return s

def is_vm(g): return any(x.kind in ('dma', 'vst', 'vld') for x in g)
class Pace: since = 99; slots = 0
barrier_hooks = []
def gemm_kstep(s, mf, need, reads, barrier, extra, every=1, vq=None, pack=False):
    n = len(mf)
    rg = list(range(2, 2 + (len(reads) + 1) // 2)) if (n <= 20 or pack) else list(range(2, 2 + len(reads)))
    rd = spread(reads, rg) if reads else {}
    part = False
    for g in range(n):
        if g == 0: s.wait(regs=need)
        s.add(mf[g])
        if g == 1 and barrier is not None:
            s.wait(**barrier)
            s('s_barrier')
            for f in barrier_hooks: f()
            del barrier_hooks[:]
        s.add(rd.get(g, []))
        Pace.since += 1
        busy = len(rd.get(g, []))
        if Pace.slots:
            free = 2 - busy - (2 if (g == 1 and barrier is not None) else 0)
            m0_fresh = False
            while free > 0:
                q = vq if vq else None
                if q is not None:
                    head = [x for x in q[0] if not (x.kind == 'nop')]
                    vm = head[0].kind in ('dma', 'vst', 'vld')
                    if vm and (Pace.since < every or m0_fresh): q = None
                if q is None:
                    while extra and extra[0] == [] and free == 2 - busy:
                        extra.pop(0); free = 0
                    if free <= 0 or not extra or extra[0] == []: break
                    q = extra
                    head = list(q[0])
                    vm = head[0].kind in ('dma', 'vst', 'vld')
                    if vm and Pace.since < every: break
                it = head.pop(0)
                s.add(it)
                if it.kind != 'label': free -= 1
                if vm: Pace.since = 0
                m0_fresh = it.kind == 'salu' and ('m0', 0) in it.wr
                if q is extra: part = bool(head)
                if head: q[0] = head
                else: q.pop(0)
            if g == n - 1 and part: s.add(extra.pop(0))
        elif vq and Pace.since >= every and busy < (1 if pack else 2):
            s.add(vq.pop(0)); Pace.since = 0
        elif extra and busy < 2 and (not is_vm(extra[0]) or Pace.since >= every):
            if is_vm(extra[0]): Pace.since = 0
            s.add(extra.pop(0))

def qconv_stream():
    c = sr(sC, 2)
    items = [(j, sidx) for j in range(5) for sidx in range(4)]
    tq = lambda i: 60 + 4 * (i % 4)
    def st1(i):
        j, sidx = items[i]; out = []
        for e in range(2):
            b = qacc(2 * sidx + e, j)
            out += [I('v_pk_mul_f32 %s, %s, %s' % (vr(b, 2), vr(b, 2), c)), I('v_pk_mul_f32 %s, %s, %s' % (vr(b + 2, 2), vr(b + 2, 2), c))]
        for e in range(2):
            b = qacc(2 * sidx + e, j)
            out += [I('v_cvt_pk_bf16_f32 v%d, v%d, v%d' % (tq(i) + 2 * e, b, b + 1)), I('v_cvt_pk_bf16_f32 v%d, v%d, v%d' % (tq(i) + 2 * e + 1, b + 2, b + 3))]
        return out
    sw = lambda op, i: [I('%s v%d, v%d' % (op, tq(i), tq(i) + 2)), I('%s v%d, v%d' % (op, tq(i) + 1, tq(i) + 3))]
    def st4(i):
        j, sidx = items[i]
        return [I('v_accvgpr_write_b32 a%d, v%d' % (Q + 16 * j + 4 * sidx + k, tq(i) + k)) for k in range(4)]
    n = len(items)
    rounds = []
    for i in range(n + 3):
        r = st1(i) if i < n else [I('s_nop 1')]
        if 0 <= i - 3 < n: r += st4(i - 3)
        if 0 <= i - 2 < n: r += sw('v_permlane16_swap_b32', i - 2)
        if 0 <= i - 1 < n: r += sw('v_permlane32_swap_b32', i - 1)
        rounds.append(r)
    return rounds

def gen_q(o):
    s = Seg('qphase')
    def reads_for(n):
        buf = n & 1
        w = rd_tr(KB + 32 * buf, WAD(n), 'wq%d' % n)
        xb = XBUF(n >> 1)
        x = [I('ds_read_b128 %s, v%d offset:%d' % (ar(XF + 20 * buf + 4 * j, 4), XAD + (n & 1), xb + 2048 * j), lds=(xb, xb + 20480, 'x%d' % (n >> 1))) for j in range(5)]
        return x + w
    s.wait(tags=['x0', 'wq0'])
    s('s_barrier')
    stamp(s, o, 2)
    s.add(reads_for(0))
    vq = dma_wq(o, 2) + dma_x(o, 1)
    kv = [dma_kv(o, k, j) for k, j in KVSEQ[:o.ninit]]
    rounds = qconv_stream()
    for n in range(16):
        buf = n & 1
        tstamp(s, o, 'q', n)
        order = [(db, j) for db in range(8) for j in range(5)] if n < 15 else [(db, j) for j in range(5) for db in range(8)]
        mf = []
        for db, j in order:
            d = vr(qacc(db, j), 4)
            mf.append(mfma(d, ar(KB + 32 * buf + 4 * db, 4), ar(XF + 20 * buf + 4 * j, 4), '0' if n == 0 else d))
        m = n + 1
        tags = []
        if m < 16:
            tags = ['wq%d' % m]
            if m % 2 == 0: tags.append('x%d' % (m >> 1))
        else: tags = ['K0']
        new = []
        if m + 2 < 16: new += dma_wq(o, m + 2)
        if m % 2 == 0 and m // 2 + 1 < 8: new += dma_x(o, m // 2 + 1)
        if m in o.kvat_l: new += kv.pop(0)
        if m == 14: new += kv.pop(0) + kv.pop(0)
        if m == 16: new += kv.pop(0)
        barrier_hooks.append(lambda new=new: vq.extend(new))
        extra = []
        if n == 15:
            head = sum(rounds[:3], []); del rounds[:3]
            extra = [[]] * 10 + [head[i:i + 2] for i in range(0, len(head), 2)]
        gemm_kstep(s, mf, regs('a', KB + 32 * buf, 32) + regs('a', XF + 20 * buf, 20), reads_for(m) if m < 16 else rd_k(0), dict(tags=tags), extra, o.qevery, vq, o.qpack)
    assert not vq
    for g in extra: s.add(g)
    stamp(s, o, 3)
    kvq = sum(kv, [])
    qk = qk_list(False)
    mx = []
    for j in range(4):
        t = Seg('t'); max8(t, j, MX + j, False); mx.append(t.items)
    done = 3
    pend = []
    first = True
    for r in rounds:
        if kvq: s.add(kvq.pop(0))
        k = 0
        for it in r:
            s.add(it); k += 1
            if pend and k % 2 == 0:
                if first: s.wait(regs=regs('a', KB, 32)); first = False
                s.add(pend.pop(0))
        done += 1
        if done >= 8 and (done - 8) % 4 == 0:
            j = (done - 8) // 4
            pend += qk[8 * j:8 * j + 8]
            if j >= 1: s.add(mx[j - 1])
    s('s_nop 0')
    for i, it in enumerate(qk[32:40]):
        s.add(it)
        if i in (2, 3, 4, 5): s.add(mx[3][i - 2])
    assert not pend
    s.add(kvq)
    s('s_nop 6')
    max8(s, 4, MX + 4, False)
    set_nm(s)
    for j in range(5):
        for i in range(0, 8, 2): s('v_pk_add_f32 %s, %s, %s' % (vr(S + 8 * j + i, 2), vr(S + 8 * j + i, 2), vr(NM + 4 * j, 2)))
    stamp(s, o, 4)
    return s

def qk_list(cinit):
    out = []
    for j in range(5):
        for r in range(8):
            kb, sidx = r & 1, r >> 1
            d = vr(S + 8 * j + 4 * kb, 4)
            cc = d if sidx else (vr(NM + 4 * j, 4) if cinit else '0')
            out.append(mfma(d, ar(KB + 4 * (4 * kb + sidx), 4), ar(Q + 16 * j + 4 * sidx, 4), cc))
    return out
def pv_list(o, par, vb, zero=False):
    out = []
    for j in range(5):
        pj = vr(P + 20 * par + 4 * j, 4)
        out += [mfma(oreg(j, db), ar(vb + 4 * db, 4), pj, '0' if zero else oreg(j, db)) for db in range(8)]
        if o.lsum: out.append(mfma(ar(LS + 4 * j, 4), ar(ONES, 4), pj, '0' if zero else ar(LS + 4 * j, 4)))
    return out
def rowred(s, regs_, tmps, op):
    for sw in ('v_permlane32_swap_b32', 'v_permlane16_swap_b32'):
        for r, t in zip(regs_, tmps): s('v_mov_b32 v%d, v%d' % (t, r))
        for r, t in zip(regs_, tmps): s('%s v%d, v%d' % (sw, t, r))
        for r, t in zip(regs_, tmps): s('%s v%d, v%d, v%d' % (op, r, r, t))
def max8(s, j, m, acc):
    b = S + 8 * j
    if acc: s('v_max3_f32 v%d, v%d, v%d, v%d' % (m, m, b, b + 1))
    else: s('v_max_f32 v%d, v%d, v%d' % (m, b, b + 1))
    for i in range(1, 4): s('v_max3_f32 v%d, v%d, v%d, v%d' % (m, m, b + 2 * i, b + 2 * i + 1))
MX, MT = L, 48
def set_nm(s):
    rowred(s, [MX + j for j in range(5)], [MT + j for j in range(5)], 'v_max_f32')
    for j in range(5): s('v_sub_f32 v%d, 0, v%d' % (NM + 4 * j, MX + j))
    for j in range(5):
        for i in range(1, 4): s('v_mov_b32 v%d, v%d' % (NM + 4 * j + i, NM + 4 * j))

def sm_exp(i): return I('v_exp_f32 v%d, v%d' % (S + i, S + i))
def sm_post(o, i, par):
    j = i >> 3
    out = [] if o.lsum else [I('v_add_f32 v%d, v%d, v%d' % (L + j, L + j, S + i))]
    if i & 1: out.append(I('v_cvt_pk_bf16_f32 v%d, v%d, v%d' % (P + 20 * par + 4 * j + ((i & 7) >> 1), S + i - 1, S + i)))
    return out
def sm_gap(o, G, par):
    if o.lsum:
        if G >= 40:
            if (G - 40) % 9 == 8: return []
            G -= (G - 40) // 9
    x = G - 12
    if x < 0: x += 80; par ^= 1
    i = x >> 1
    return [sm_exp(i)] if x % 2 == 0 else sm_post(o, i, par)

def kv_schedule(o):
    q = [(k, j, g) for k, j in KVSEQ[o.ninit:] for g in capped(o, dma_kv(o, k, j))]
    free = lambda kind, j: 2 * (j - 5) + 1 if kind == 'K' else 2 * (j - 4) + 1
    sched = {h: [] for h in range(1, 64)}
    n = len(q)
    slow = max(0, 4 * o.lasth - n)
    h, i = 1, 0
    while i < n:
        cap = 4
        if o.uni: cap = min(4, max(0, (n * h + o.lasth - 1) // o.lasth - i))
        elif slow > 0: cap = 3
        k = 0
        while k < cap and i < n and free(q[i][0], q[i][1]) <= h:
            sched[h].append(q[i][2]); i += 1; k += 1
        slow -= 4 - k
        h += 1
    return sched

def gen_s0(o):
    s = Seg('s0')
    s.label('L_s0')
    if o.lsum:
        s('v_mov_b32 v%d, 0x3f803f80' % L)
        for k in range(4): s('v_accvgpr_write_b32 a%d, v%d' % (ONES + k, L))
    else:
        for j in range(5): s('v_mov_b32 v%d, 0' % (L + j))
    if o.cap2: s('s_and_b32 s3, s39, 1'); s('s_cselect_b64 vcc, -1, 0')
    s.wait(tags=['K1', 'V0'])
    s('s_barrier')
    s.add(rd_k(1))
    dm = spread(o.sched[1] + [[I('buffer_atomic_add v%d, v%d, s[%d:%d], 0 offen' % (CNT, CA, SD, SD + 3))]], [1, 8, 15, 22, 29])
    for i in range(35):
        if i < 34: s.add(sm_exp(i))
        else: s('s_nop 0')
        if i > 0: s.add(sm_post(o, i - 1, 0))
        s.add(dm.get(i, []))
    return s

def step(s, o, t, more1=(), more2=(), wtags=(), valu1=None):
    par = t & 1
    if t % 2 == 1: tstamp(s, o, 'a', t // 2)
    mf = qk_list(True) + pv_list(o, par ^ 1, VB, t == 1)
    NG = len(mf)
    fill = {g: [] for g in range(NG)}
    empty = [g for g in range(NG) if not sm_gap(o, g, par)]
    if o.lsum:
        g1 = [g for g in empty if g < 32]; g2 = [g for g in empty if 42 < g < NG - 8]
    else: g1, g2 = [1, 5, 9, 13, 17, 21, 25, 29], [45, 49, 53, 57, 61, 65, 69, 73]
    for g, l in spread(rd_v(VB, t - 1), g1).items(): fill[g] += l
    for g, l in spread(rd_k(t + 1) if t < 31 else rd_v(KB, 31), g2).items(): fill[g] += l
    for base, end, dm in ((2, 40, o.sched[2 * t] + list(more1)), (42, NG, o.sched[2 * t + 1] + list(more2))):
        n = len(dm)
        for i, g in enumerate(dm):
            pos = base + ((end - base) * i) // n
            if o.lsum:
                while len(sm_gap(o, pos, par)) + len(fill[pos]) > 1 or (sm_gap(o, pos, par) and sm_gap(o, pos, par)[0].kind == 'trans'): pos += 1
            else: pos &= ~1
            fill[pos] += g
    if valu1:
        for g, l in spread(valu1, list(range(33, 40))).items(): fill[g] += l
    for g in range(NG):
        if g == 0: s.wait(regs=regs('a', KB, 32))
        if g == 40: s.wait(regs=regs('a', VB, 32))
        s.add(mf[g])
        if g == 40:
            s.wait(tags=(['K%d' % (t + 1)] if t < 31 else []) + ['V%d' % t] + list(wtags))
            s('s_barrier')
        s.add(sm_gap(o, g, par))
        s.add(fill[g])

def gen_attn(o):
    s = Seg('attn')
    pre = Seg('t')
    t0 = DWO
    pre('v_lshrrev_b32 v%d, 8, v%d' % (t0 + 1, DV))
    pre('v_and_b32 v%d, 0x70, v%d' % (t0, DV))
    pre('v_lshl_add_u32 v%d, v%d, 10, v%d' % (t0, t0 + 1, t0))
    pre('v_bfe_u32 v%d, v%d, 7, 1' % (t0 + 1, DV))
    pre('v_mul_u32_u24 v%d, 0x20200, v%d' % (t0 + 1, t0 + 1))
    pre('v_add_u32 v%d, v%d, v%d' % (t0, t0, t0 + 1))
    pre('v_xor_b32 v%d, 0x20200, v%d' % (t0 + 1, t0))
    pre('v_add_u32 v%d, %d, v%d' % (t0 + 2, 2 * 3072, t0))
    pre('v_add_u32 v%d, %d, v%d' % (t0 + 3, 3 * 3072, t0 + 1))
    pre('v_add_u32 v%d, %d, v%d' % (t0 + 1, 3072, t0 + 1))
    for t in range(4): pre('v_xor_b32 v%d, 0x20000, v%d' % (t0 + 4 + t, t0 + t))
    cnt = [[I('s_lshl_b32 s%d, s%d, 3' % (sA, sG)), I('buffer_load_dword v%d, off, s[%d:%d], s%d offset:128 sc1' % (CNT, SD, SD + 3, sA), tag='cnt')]]
    busy = lambda h: any(o.sched[x] for x in range(h, 64))
    early0 = not busy(59)
    for t in range(1, 32):
        if t == 29: step(s, o, t, valu1=pre.items, more2=dma_wo(o, 0) if early0 else [])
        elif t == 30: step(s, o, t, more2=cnt + ([] if early0 else dma_wo(o, 0)) + dma_wo(o, 1) + (dma_wo(o, 2) if early0 else []))
        elif t == 31: step(s, o, t, more1=[] if early0 else dma_wo(o, 2), more2=dma_wo(o, 3), wtags=['cnt'])
        else: step(s, o, t)
        if t == 26 and o.pfo:
            s('v_lshlrev_b32 v%d, 3, v%d' % (CA, LANE16))
            s('s_lshl_b32 s3, s39, 15'); s('s_lshl_b32 s36, s%d, 13' % sW); s('s_add_u32 s3, s3, s36')
            s('buffer_load_dword v%d, v%d, s[%d:%d], s3 offen' % (CA + 1, CA, SWO, SWO + 3), dummy=True)
    return s

def gen_epi(o):
    s = Seg('epi')
    R = NM
    v = Seg('t')
    def inv(j):
        if o.lsum: v('v_accvgpr_read_b32 v%d, a%d' % (L + j, LS + 4 * j))
        v('v_cmp_nge_f32 %s, s%d, v%d' % (sr(sM0 if j == 0 else sM1, 2), sTHR, L + j))
        v('v_rcp_f32 v%d, v%d' % (R + 2 * j, L + j))
        if j: v('s_or_b64 %s, %s, %s' % (sr(sM0, 2), sr(sM0, 2), sr(sM1, 2)))
        else: v('s_nop 0')
        v('v_mov_b32 v%d, v%d' % (R + 2 * j + 1, R + 2 * j))
    if not o.lsum:
        rowred(v, [L + j for j in range(5)], [90 + j for j in range(5)], 'v_add_f32')
        for j in range(5): inv(j)
    def vote():
        v('s_cmp_lg_u64 %s, 0' % sr(sM0, 2))
        v('s_cselect_b32 s3, 1, 0')
        v('v_mov_b32 v95, s3')
        v('s_lshl_b32 s3, s%d, 2' % sW); v('s_add_u32 s3, s3, 0x%x' % FLG)
        v('v_mov_b32 v96, s3')
        v('ds_write_b32 v96, v95', lds=(lambda c: (FLG, FLG + 16, ev(tg('flg'), c))))
    tg = lambda n: (lambda c: '%s%d' % (n, c.get('redo', 0)))
    v('s_mul_i32 s3, s%d, 20480' % sW); v('s_add_u32 s3, s3, 0x%x' % EX)
    v('v_add_u32 v97, s3, v%d' % LANE16)
    v('s_xor_b32 s3, s%d, 2' % sW); v('s_mul_i32 s3, s3, 20480'); v('s_add_u32 s3, s3, 0x%x' % EX)
    v('v_add_u32 v98, s3, v%d' % LANE16)
    exr = (lambda c: (EX, EX + 81920, ev(tg('ex'), c)))
    for j in range(5):
        if o.lsum: inv(j)
        if j == 4: vote()
        for sidx in range(4):
            f = 16 * j + 4 * sidx
            for e in range(2):
                k, b = otile(j, 2 * sidx + e)
                if k == 'a':
                    for i in range(4): v('v_accvgpr_read_b32 v%d, a%d' % (90 + i, b + i))
                    b = 90
                v('v_pk_mul_f32 %s, %s, %s' % (vr(b, 2), vr(b, 2), vr(R + 2 * j, 2)))
                v('v_pk_mul_f32 %s, %s, %s' % (vr(b + 2, 2), vr(b + 2, 2), vr(R + 2 * j, 2)))
                v('v_cvt_pk_bf16_f32 v%d, v%d, v%d' % (f + 2 * e, b, b + 1))
                v('v_cvt_pk_bf16_f32 v%d, v%d, v%d' % (f + 2 * e + 1, b + 2, b + 3))
            v('ds_write_b128 v97, %s offset:%d' % (vr(f, 4), 1024 * (4 * j + sidx)), lds=exr)
    work = v.items
    mf = pv_list(o, 1, KB)
    s.wait(regs=regs('a', KB, 32))
    for g in range(len(mf)):
        s.add(mf[g])
        if g == 0: s('s_barrier')
        if g < 12: s.add(sm_gap(o, g, 0))
        else: s.add(work[:2]); work = work[2:]
    stamp(s, o, 5)
    s.add(work)
    s('v_mov_b32 v96, 0x%x' % FLG)
    s.wait(lgkm_all=True, tags=['wo0'])
    s('s_barrier')
    s('ds_read_b128 v[92:95], v96', lds=(lambda c: (FLG, FLG + 16, ev(tg('flg'), c))))
    s('s_mul_i32 s3, s%d, 0x2080' % sP)
    s('v_xor_b32 v84, s3, v%d' % VA)
    for k in range(1, 4): s('v_xor_b32 v%d, %d, v84' % (84 + k, 32 * k))
    for k in range(4): s('v_subrev_u32 v%d, 0x%x, v%d' % (80 + k, V0, 84 + k))
    s('v_readfirstlane_b32 s3, v%d' % CNT)
    s.wait(regs=regs('v', 92, 4))
    s('v_or_b32 v92, v92, v93'); s('v_or3_b32 v92, v92, v94, v95')
    s('s_cmp_lt_u32 s3, 16')
    s('v_readfirstlane_b32 s36, v92')
    s('s_cbranch_scc1 L_cntspin')
    s.label('L_cntok')
    s('s_andn2_b32 s36, s36, s%d' % sREDO)
    if not o.diag: s('s_cbranch_scc1 L_redo')
    stamp(s, o, 6)
    return s

def gen_spin(s, name, back, load, cond, sCNT=sCNT):
    s.label(name)
    s('s_mov_b32 s%d, 0' % sCNT)
    s.label(name + '_l')
    s('s_sleep 4')
    s(load)
    s('s_waitcnt vmcnt(0)')
    s('s_add_u32 s%d, s%d, 1' % (sCNT, sCNT))
    s('s_cmp_gt_u32 s%d, 0x40000' % sCNT)
    s('s_cbranch_scc1 %s' % back)
    for l in cond: s(l.replace('@', name + '_l'))
    s('s_branch %s' % back)

def gen_redo(o):
    s = Seg('redo')
    s.label('L_redo')
    s('s_mov_b32 s%d, 1' % sREDO)
    s('s_waitcnt vmcnt(0) lgkmcnt(0)')
    s('s_barrier')
    t = 56
    s('v_lshrrev_b32 v%d, 4, v%d' % (t, LANE16))
    s('v_and_b32 v%d, 15, v%d' % (t + 1, t))
    s('v_and_b32 v%d, 48, v%d' % (t, t))
    s('v_lshl_add_u32 v%d, v%d, 8, v%d' % (t, t + 1, t))
    s('v_add_u32 v%d, 0x1000, v%d' % (t + 1, t))
    for j in range(5): s('v_mov_b32 v%d, 0xff800000' % (MX + j))
    s('s_mov_b32 s%d, 0' % sA)
    lp = Seg('redo_loop')
    lp.label('L_redo_loop')
    for kb in range(2):
        for k in range(4): lp('buffer_load_dwordx4 %s, v%d, s[%d:%d], s%d offen offset:%d' % (ar(KB + 4 * (4 * kb + k), 4), t + kb, SK, SK + 3, sA, 64 * k))
    lp('s_waitcnt vmcnt(0)')
    lp.add(qk_list(False))
    lp('s_nop 7')
    for j in range(5): max8(lp, j, MX + j, True)
    lp('s_add_u32 s%d, s%d, 0x2000' % (sA, sA))
    lp('s_cmp_lt_u32 s%d, 0x40000' % sA)
    lp('s_cbranch_scc1 L_redo_loop')
    e = Seg('redo_end')
    set_nm(e)
    kv_start(e, o)
    for k in range(8): e('v_subrev_u32 v%d, 0x4000, v%d' % (VA2 + k, VA + k))
    for k, j in KVSEQ[:o.ninit]: e.add(dma_kv(o, k, j))
    e('v_mov_b32 v%d, 0x40000000' % CA)
    e.wait(tags=['K0'])
    e('s_barrier')
    e.add(rd_k(0))
    e.wait(regs=regs('a', KB, 32))
    e.add(qk_list(True))
    e('s_nop 7')
    e('s_branch L_s0')
    return s, lp, e

E0V, E1V = 144, 0
PO = 88
AD, OD, IA, PL, C10, C01, AD2, OD2, AC, RT = 224, 225, 226, 227, 228, 229, 230, 231, 232, 248
def etile(c, jn, j): return (E1V if c & 1 else E0V) + 8 * (5 * (jn >> 1) + j) + 4 * (jn & 1)
def poll_txt(): return 'buffer_load_dword v%d, v%d, s[%d:%d], 0 offen sc1' % (PL, IA, SF, SF + 3)
def flag_ops(o, c):
    return [I('v_mov_b32 v89, %d' % (c + 1)), I('buffer_store_dword v89, v%d, s[%d:%d], 0 offen %s' % (FLA, SF, SF + 3, o.fl_pol))]
def load_groups(o, c, dst, sreg, g=SG):
    out = []
    for k in range(10):
        off, ad = (2 * PST * k, AD) if k < 8 else (8 * PST * (k - 8), AD2)
        out.append([I('s_add_u32 s%d, s%d, 0x%x' % (sreg, sCP + c, off)),
                    I('buffer_load_dwordx4 %s, v%d, s[%d:%d], s%d offen %s' % (dst(k), ad, g, g + 3, sreg, o.rd_pol))])
    return out
def red_addr(o):
    s = Seg('t')
    t = RT
    s('s_lshl_b32 s3, s%d, 4' % sG); s('s_add_u32 s3, s3, s38'); s('s_lshl_b32 s3, s3, 8')
    s('v_lshrrev_b32 v%d, 2, v%d' % (t, LANE16)); s('v_add_u32 v%d, s3, v%d' % (IA, t))
    s('v_lshrrev_b32 v%d, 4, v%d' % (t, LANE16))
    s('v_and_b32 v%d, 7, v%d' % (t + 2, t))
    s('s_and_b32 s3, s38, 3'); s('s_mul_i32 s63, s3, 5')
    s('s_lshr_b32 s3, s38, 2')
    s('s_lshr_b32 s36, s3, 1'); s('s_lshl_b32 s36, s36, 3'); s('s_and_b32 s3, s3, 1'); s('s_add_u32 s36, s36, s3')
    s('s_mul_i32 s3, s36, 10240'); s('s_lshl_b32 s62, s%d, 8' % sW); s('s_add_u32 s%d, s3, s62' % sM0)
    s('s_mul_i32 s3, s39, %d' % (160 * 2048)); s('s_lshl_b32 s62, s37, 10'); s('s_add_u32 s3, s3, s62')
    s('s_lshl_b32 s62, s36, 6'); s('s_add_u32 s3, s3, s62'); s('s_lshl_b32 s62, s%d, 3' % sW); s('s_add_u32 s%d, s3, s62' % (sM0 + 1))
    s('v_bfe_u32 v%d, v%d, 3, 2' % (t + 1, t))
    s('v_add_u32 v%d, s63, v%d' % (t + 3, t + 1))
    s('v_lshl_add_u32 v%d, v%d, 3, v%d' % (t + 4, t + 3, t + 2))
    s('v_lshrrev_b32 v%d, 1, v%d' % (t + 5, t + 3))
    s('v_and_b32 v%d, 15, v%d' % (t + 6, t + 4))
    s('v_lshlrev_b32 v%d, 4, v%d' % (t + 6, t + 6))
    s('v_lshl_add_u32 v%d, v%d, 10, v%d' % (t + 6, t + 5, t + 6))
    s('v_lshrrev_b32 v%d, 5, v%d' % (t + 1, t))
    s('v_mul_u32_u24 v%d, %d, v%d' % (t + 5, PST, t + 1))
    s('v_add3_u32 v%d, v%d, v%d, s%d' % (AD, t + 6, t + 5, sM0))
    s('v_lshlrev_b32 v%d, 5, v%d' % (t + 1, t + 1))
    s('v_lshl_add_u32 v%d, v%d, 11, v%d' % (t + 4, t + 4, t + 1))
    s('v_add_u32 v%d, s%d, v%d' % (OD, sM0 + 1, t + 4))
    s('s_add_u32 s63, s63, 4')
    s('s_lshr_b32 s3, s63, 1'); s('s_lshl_b32 s3, s3, 10'); s('s_and_b32 s62, s63, 1'); s('s_lshl_b32 s62, s62, 7'); s('s_add_u32 s3, s3, s62')
    s('s_add_u32 s3, s3, s%d' % sM0)
    s('v_lshrrev_b32 v%d, 3, v%d' % (t + 3, t))
    s('v_mul_u32_u24 v%d, %d, v%d' % (t + 5, PST, t + 3))
    s('v_lshl_add_u32 v%d, v%d, 4, v%d' % (t + 5, t + 2, t + 5))
    s('v_add_u32 v%d, s3, v%d' % (AD2, t + 5))
    s('s_lshl_b32 s3, s63, 14'); s('s_add_u32 s3, s3, s%d' % (sM0 + 1))
    s('v_lshl_add_u32 v%d, v%d, 11, v%d' % (t + 4, t + 2, t + 1))
    s('v_and_b32 v%d, 24, v%d' % (t + 1, t))
    s('v_cmp_eq_u32 vcc, 0, v%d' % (t + 1))
    s('v_add_u32 v%d, s3, v%d' % (t + 4, t + 4))
    s('v_mov_b32 v%d, 0x40000000' % (t + 7))
    s('v_cndmask_b32 v%d, v%d, v%d, vcc' % (OD2, t + 7, t + 4))
    s('v_mov_b32 v%d, 0x3f80' % C10); s('v_mov_b32 v%d, 0x3f800000' % C01)
    return s.items

LA, LO, LD, LA2, LD2, QAD, CL = 108, 109, 110, 111, 112, 113, 114
ODS = ((116, 117), (118, 119), (90, 91))
sI0, sI1, sN, sDB, sIT = 13, 14, 15, 12, 7
def red_addr_dyn(o):
    s = Seg('t')
    t = RT
    s('s_lshl_b32 s3, s%d, 4' % sG); s('s_add_u32 s3, s3, s38'); s('s_lshl_b32 s3, s3, 8')
    s('v_lshrrev_b32 v%d, 2, v%d' % (t, LANE16)); s('v_add_u32 v%d, s3, v%d' % (IA, t))
    s('v_lshrrev_b32 v%d, 4, v%d' % (t, LANE16))
    s('v_and_b32 v%d, 7, v%d' % (t + 2, t))
    s('v_lshrrev_b32 v%d, 5, v%d' % (t + 1, t))
    s('v_bfe_u32 v%d, v%d, 3, 2' % (LO, t))
    s('v_mul_u32_u24 v%d, %d, v%d' % (t + 5, PST, t + 1))
    s('v_lshl_add_u32 v%d, v%d, 4, v%d' % (LA, t + 2, t + 5))
    s('v_lshlrev_b32 v%d, 5, v%d' % (t + 1, t + 1))
    s('v_lshl_add_u32 v%d, v%d, 11, v%d' % (t + 4, t + 2, t + 1))
    s('v_lshl_add_u32 v%d, v%d, 14, v%d' % (LD, LO, t + 4))
    s('v_cmp_eq_u32 vcc, 0, v%d' % LO)
    s('v_lshrrev_b32 v%d, 3, v%d' % (t + 3, t))
    s('v_mov_b32 v%d, 0x40000000' % (t + 7))
    s('v_cndmask_b32 v%d, v%d, v%d, vcc' % (LD2, t + 7, t + 4))
    s('v_mul_u32_u24 v%d, %d, v%d' % (t + 5, PST, t + 3))
    s('v_lshl_add_u32 v%d, v%d, 4, v%d' % (LA2, t + 2, t + 5))
    if o.sl8:
        s('v_lshl_add_u32 v%d, v%d, 8, v%d' % (LA2, LO, LA))
        s('v_lshl_add_u32 v%d, v%d, 3, v%d' % (LD2, LO, t + 4))
    s('s_mul_i32 s3, s39, %d' % (160 * 2048)); s('s_lshl_b32 s62, s37, 10'); s('s_add_u32 s%d, s3, s62' % sDB)
    s('s_lshl_b32 s3, s%d, 7' % sG); s('s_add_u32 s3, s3, 0x10000')
    s('v_min_u32 v%d, 1, v%d' % (t + 3, t)); s('v_lshlrev_b32 v%d, 30, v%d' % (t + 3, t + 3)); s('v_add_u32 v%d, s3, v%d' % (QAD, t + 3))
    s('v_mov_b32 v%d, 0x3f80' % C10); s('v_mov_b32 v%d, 0x3f800000' % C01)
    return s.items

def gen_op(o):
    s = Seg('op')
    exr = (lambda c: (EX, EX + 81920, 'ex%d' % c.get('redo', 0)))
    KSL = [(4 * c + r, [(2 * a + e, kk) for kk in range(2) for e in range(2)]) for c in range(4) for a in range(2) for r in range(4)]
    def reads_for(ks):
        u, fr = KSL[ks]
        base = OSLOT[u % 8]
        areg, imm = (80, base) if base < V0 else (84, base - V0)
        return [I('ds_read_b64_tr_b16 %s, v%d offset:%d' % (ar(KB + 16 * (ks & 1) + 4 * i + 2 * e, 2), areg + jn, imm + 8192 * kk + 4096 * e), lds=(base, base + 16384, 'wo%d' % u))
                for i, (jn, kk) in enumerate(fr) for e in range(2)]
    def conv(c, a):
        out = []
        for j in range(5):
            b = etile(c, 2 * a, j)
            cv = [I('v_cvt_pk_bf16_f32 v%d, v%d, v%d' % (b + i, b + 2 * i, b + 2 * i + 1)) for i in range(4)]
            out.append(cv[:2]); out.append(cv[2:])
            out.append([I('s_add_u32 s%d, s%d, 0x%x' % (sA, sCP + c, (10 * a + j) * 1024)),
                        I('buffer_store_dwordx4 %s, v%d, s[%d:%d], s%d offen %s' % (vr(b, 4), PO, SP_, SP_ + 3, sA, o.st_pol), tag='st%d' % c)])
        return out
    s('s_mov_b32 s%d, 0' % sREDO)
    s.add(reads_for(0))
    part = [I('ds_read_b128 %s, v98 offset:%d' % (ar(PART + 4 * f, 4), 1024 * f), lds=exr) for f in range(20)]
    own = [I('ds_read_b128 %s, v97 offset:%d' % (ar(OWN + 4 * f, 4), 1024 * f), lds=exr) for f in range(20)]
    s('s_mul_i32 s3, s%d, 80' % sP); s('s_mul_i32 s36, s%d, 5' % sHF); s('s_add_u32 s3, s3, s36'); s('s_lshl_b32 s3, s3, 10')
    s('v_add_u32 v%d, s3, v%d' % (PO, LANE16))
    extra = [part[i:i + 2] for i in range(0, 20, 2)] + [own[i:i + 2] for i in range(0, 20, 2)]
    vq = []
    ra = red_addr_dyn(o) if o.dyn else red_addr(o)
    seen = set()
    first_use, last_use = {}, {}
    for ks, (u, fr) in enumerate(KSL):
        first_use.setdefault(u, ks); last_use[u] = ks
    pending = list(range(4, 16))
    for ks, (u, fr) in enumerate(KSL):
        c, phi, dh = u >> 2, (u >> 1) & 1, u & 1
        if ks % 2 == 0: tstamp(s, o, 'o', ks // 2)
        buf = ks & 1
        mf = []
        for i, (jn, kk) in enumerate(fr):
            sidx = 2 * dh + kk
            first = (c, jn) not in seen; seen.add((c, jn))
            for j in range(5):
                d = vr(etile(c, jn, j), 4)
                if phi: bf = ar(PART + 16 * j + 4 * sidx, 4)
                elif c == 0: bf = vr(16 * j + 4 * sidx, 4)
                else: bf = ar(OWN + 16 * j + 4 * sidx, 4)
                mf.append(mfma(d, ar(KB + 16 * buf + 4 * i, 4), bf, '0' if first else d))
        need = regs('a', KB + 16 * buf, 16)
        if phi and c == 0: need = need + regs('a', PART, 80)
        bar = None
        nxt = KSL[ks + 1][0] if ks + 1 < 32 else None
        if nxt is not None and first_use[nxt] == ks + 1:
            if nxt == 3: need = need + regs('a', OWN, 80) + regs('a', PART, 80)
            new = []
            for v in list(pending):
                ok = (v == 4 and nxt >= 1) or (5 <= v <= 7 and nxt >= 3) or (v >= 8 and last_use[v - 8] <= ks)
                if not ok: break
                new += dma_wo(o, v); pending.remove(v)
            bar = dict(tags=['wo%d' % nxt])
            barrier_hooks.append(lambda new=new: vq.extend(new))
        rds = reads_for(ks + 1) if nxt is not None else []
        if ks == 4: extra += [ra[i:i + 2] for i in range(0, len(ra), 2)]
        if ks % 4 == 0 and ks > 0:
            cv = [[]] * 2 + conv((ks - 4) >> 3, ((ks - 4) >> 2) & 1)
            extra[0:0] = cv
        for cc in range(3 if o.fl3 else 2):
            if ks == 8 * (cc + 1) + o.flagat: extra.insert(0, [Wait(tags=['st%d' % cc])] + flag_ops(o, cc))
        if o.early:
            if ks == o.epoll: extra.insert(0, [I(poll_txt(), tag='poll')])
            if ks == o.epoll + 2:
                extra += [[I('s_mov_b32 s%d, s%d' % (SG2, SG)), I('s_mov_b32 s%d, s%d' % (SG2 + 1, SG + 1))],
                          [Wait(regs=[('v', PL)]), I('v_cmp_gt_u32 vcc, 1, v%d' % PL), I('s_mov_b32 s%d, 0x20000' % (SG2 + 3)), I('s_cmp_eq_u64 vcc, 0'),
                           I('s_cselect_b32 s%d, 0x%x, 0' % (SG2 + 2, 16 * PST)), I('s_cselect_b32 s%d, 1, 0' % sE)]]
                for g in load_groups(o, 0, lambda k: vr(144 + 4 * k, 4), sB, SG2): extra += [g] + [[]] * (o.ldevery - 1)
        if o.dyn and o.eclaim and ks == o.eclaim:
            extra.insert(0, [I('v_mov_b32 v%d, %d' % (CL, o.nb)), I('buffer_atomic_add v%d, v%d, s[%d:%d], 0 offen sc0' % (CL, QAD, SF, SF + 3), tag='claim'), I(poll_txt(), tag='poll')])
        elif ks == 30 and not (o.dyn and o.eclaim): extra.insert(0 if o.early else len(extra), [I(poll_txt(), tag='poll')])
        gemm_kstep(s, mf, need, rds, bar, extra, o.oevery, vq)
        if ks % 8 == 7: stamp(s, o, 7 + c)
    extra = [g for g in extra if g]
    assert not extra and not vq and not pending, (len(extra), len(vq), pending)
    s('s_nop 3')
    for g in conv(3, 1): s.add(g)
    stamp(s, o, 11)
    if o.early:
        s('s_cmp_lg_u32 s%d, 0' % sE)
        s('s_cbranch_scc1 L_redE')
    return s

def summ_ops(s, buf, o2):
    a = AC
    for i in range(16): s('v_mov_b32 v%d, 0' % (a + i))
    for k in range(10):
        if k in (0, 4, 8): s.wait(regs=regs('v', buf + 4 * k, 16 if k < 8 else 8))
        for d in range(4):
            x = buf + 4 * k + d
            b = a + (8 if k >= 8 else 0)
            s('v_dot2c_f32_bf16 v%d, v%d, v%d' % (b + 2 * d, x, C10)); s('v_dot2c_f32_bf16 v%d, v%d, v%d' % (b + 2 * d + 1, x, C01))
    t = RT
    s('s_nop 2')
    for i in range(8): s('v_add_f32_dpp v%d, v%d, v%d row_ror:8 row_mask:0xf bank_mask:0xf' % (t + i, a + 8 + i, a + 8 + i))
    for i in range(8): s('v_mov_b32 v%d, v%d' % (a + 8 + i, t + i))
    s('s_nop 0')
    for i in range(8): s('v_permlane16_swap_b32 v%d, v%d' % (t + i, a + 8 + i))
    for i in range(8): s('v_add_f32 v%d, v%d, v%d' % (a + 8 + i, a + 8 + i, t + i))
    for b in (a, a + 8):
        for i in range(4): s('v_permlane32_swap_b32 v%d, v%d' % (b + i, b + 4 + i))
    for b in (a, a + 8):
        for i in range(4): s('v_add_f32 v%d, v%d, v%d' % (b + i, b + i, b + 4 + i))
    for n_, b in enumerate((a, a + 8)):
        s('v_cvt_pk_bf16_f32 v%d, v%d, v%d' % (o2 + 2 * n_, b, b + 1)); s('v_cvt_pk_bf16_f32 v%d, v%d, v%d' % (o2 + 2 * n_ + 1, b + 2, b + 3))

def gen_red_dyn(o):
    poll = poll_txt()
    BUF = (144, 184, 0)
    NB = o.nb
    NSL = 320 if o.sl8 else 256
    def chunk_of(s, dst, idx):
        if o.sl8: s('s_mul_i32 s%d, s%d, 52429' % (dst, idx)); s('s_lshr_b32 s%d, s%d, 22' % (dst, dst))
        else: s('s_lshr_b32 s%d, s%d, 6' % (dst, idx))
    def claim(s, n):
        s('v_mov_b32 v%d, %d' % (CL, n))
        s('buffer_atomic_add v%d, v%d, s[%d:%d], 0 offen sc0' % (CL, QAD, SF, SF + 3), tag='claim')
    def check(s, idx, name):
        chunk_of(s, sN, idx); s('s_add_u32 s%d, s%d, 1' % (sN, sN))
        s.wait(regs=[('v', PL)])
        s('v_cmp_gt_u32 vcc, s%d, v%d' % (sN, PL))
        s('s_cbranch_vccnz L_spin%s' % name)
        s.label('L_got%s' % name)
    def addr(s, idx, x):
        t = RT
        if o.sl8:
            s('s_sub_u32 s3, s%d, 1' % sN); s('s_mul_i32 s36, s3, 80'); s('s_sub_u32 s36, s%d, s36' % idx)
            if o.rotc: s('s_add_u32 s3, s3, s39'); s('s_and_b32 s3, s3, 3')
            s('s_bfe_u32 s62, s36, 0x10001'); s('s_lshl_b32 s62, s62, 2'); s('s_add_u32 s3, s3, s62'); s('s_lshl_b32 s3, s3, 1')
            s('s_and_b32 s62, s36, 1'); s('s_add_u32 s3, s3, s62')
            s('s_lshr_b32 s36, s36, 2')
            s('s_lshl_b32 s62, s3, 6'); s('s_lshl_b32 s63, s36, 14'); s('s_add_u32 s62, s62, s63'); s('s_add_u32 s62, s62, s%d' % sDB)
            s('v_add_u32 v%d, s62, v%d' % (ODS[x][0], LD2))
            s('s_mul_i32 s3, s3, 10'); s('s_lshr_b32 s62, s36, 1'); s('s_add_u32 s3, s3, s62'); s('s_lshl_b32 s3, s3, 10')
            s('s_and_b32 s36, s36, 1'); s('s_lshl_b32 s36, s36, 7'); s('s_add_u32 s3, s3, s36')
            s('v_add_u32 v%d, s3, v%d' % (AD, LA2))
            return
        s('s_lshr_b32 s3, s%d, 6' % idx)
        if o.rotc: s('s_add_u32 s3, s3, s39'); s('s_and_b32 s3, s3, 3')
        s('s_bfe_u32 s36, s%d, 0x10005' % idx); s('s_lshl_b32 s36, s36, 2'); s('s_add_u32 s3, s3, s36'); s('s_lshl_b32 s3, s3, 1')
        s('s_bfe_u32 s36, s%d, 0x10004' % idx); s('s_add_u32 s3, s3, s36')
        s('s_and_b32 s36, s%d, 3' % idx)
        s('s_mul_i32 s62, s3, 10240'); s('s_lshl_b32 s63, s36, 8'); s('s_add_u32 s%d, s62, s63' % sM0)
        s('s_lshl_b32 s62, s3, 3'); s('s_add_u32 s62, s62, s36'); s('s_lshl_b32 s62, s62, 3'); s('s_add_u32 s62, s62, s%d' % sDB)
        s('s_bfe_u32 s63, s%d, 0x20002' % idx); s('s_mul_i32 s63, s63, 5')
        s('v_add_u32 v%d, s63, v%d' % (t, LO))
        s('s_lshl_b32 s3, s63, 14'); s('s_add_u32 s62, s62, s3')
        s('v_lshrrev_b32 v%d, 1, v%d' % (t + 1, t))
        s('v_and_b32 v%d, 1, v%d' % (t, t))
        s('v_add_u32 v%d, s62, v%d' % (ODS[x][0], LD))
        s('v_lshlrev_b32 v%d, 7, v%d' % (t, t))
        s('s_add_u32 s62, s62, 0x10000')
        s('v_lshl_add_u32 v%d, v%d, 10, v%d' % (t, t + 1, t))
        s('v_add_u32 v%d, s62, v%d' % (ODS[x][1], LD2))
        s('v_add3_u32 v%d, v%d, v%d, s%d' % (AD, t, LA, sM0))
        s('s_lshr_b32 s3, s63, 1'); s('s_add_u32 s3, s3, 2'); s('s_lshl_b32 s3, s3, 10'); s('s_and_b32 s63, s63, 1'); s('s_lshl_b32 s63, s63, 7')
        s('s_add_u32 s3, s3, s63'); s('s_add_u32 s3, s3, s%d' % sM0)
        s('v_add_u32 v%d, s3, v%d' % (AD2, LA2))
    def loads(s, x, ks=range(10)):
        for k in ks:
            if o.sl8 and k >= 8: continue
            off, ad = (2 * PST * k, AD) if k < 8 else (8 * PST * (k - 8), AD2)
            s('s_mov_b32 s%d, 0x%x' % (sA, off))
            s('buffer_load_dwordx4 %s, v%d, s[%d:%d], s%d offen %s' % (vr(BUF[x] + 4 * k, 4), ad, SG, SG + 3, sA, o.rd_pol))
    def finish(s, x):
        o2 = (100, 104, 92)[x]
        if o.sl8:
            a = AC
            for k in range(8):
                if k in (0, 4): s.wait(regs=regs('v', BUF[x] + 4 * k, 16))
                for d in range(4):
                    r = BUF[x] + 4 * k + d
                    if k == 0: s('v_lshlrev_b32 v%d, 16, v%d' % (a + 2 * d, r)); s('v_and_b32 v%d, 0xffff0000, v%d' % (a + 2 * d + 1, r))
                    else: s('v_dot2c_f32_bf16 v%d, v%d, v%d' % (a + 2 * d, r, C10)); s('v_dot2c_f32_bf16 v%d, v%d, v%d' % (a + 2 * d + 1, r, C01))
            s('s_nop 2')
            for i in range(4): s('v_permlane32_swap_b32 v%d, v%d' % (a + i, a + 4 + i))
            for i in range(4): s('v_add_f32 v%d, v%d, v%d' % (a + i, a + i, a + 4 + i))
            s('v_cvt_pk_bf16_f32 v%d, v%d, v%d' % (o2, a, a + 1)); s('v_cvt_pk_bf16_f32 v%d, v%d, v%d' % (o2 + 1, a + 2, a + 3))
            s('buffer_store_dwordx2 %s, v%d, s[%d:%d], 0 offen %s' % (vr(o2, 2), ODS[x][0], SO, SO + 3, o.out_pol))
            return
        summ_ops(s, BUF[x], o2)
        for h in range(2): s('buffer_store_dwordx2 %s, v%d, s[%d:%d], 0 offen %s' % (vr(o2 + 2 * h, 2), ODS[x][h], SO, SO + 3, o.out_pol))
    pre = Seg('redpre')
    for i in range(15): tstamp(pre, o, 'r', i)
    pre('s_mov_b32 s%d, 0' % sIT)
    if o.eclaim:
        pre.wait(tags=['claim', 'poll'])
        pre('v_readfirstlane_b32 s%d, v%d' % (sI0, CL))
        pre('s_lshr_b32 s%d, s%d, 6' % (sN, sI0)); pre('s_add_u32 s%d, s%d, 1' % (sN, sN))
        pre('v_cmp_gt_u32 vcc, s%d, v%d' % (sN, PL))
        pre('s_add_u32 s%d, s%d, 1' % (sI1, sI0))
        pre('s_cbranch_vccnz L_late')
        addr(pre, sI0, 0)
        loads(pre, 0, range(o.nfirst))
        pre.wait(tags=['st3'])
        pre.add(flag_ops(o, 3))
        loads(pre, 0, range(o.nfirst, 10))
        late = Seg('late')
        late.label('L_late')
        late('s_waitcnt vmcnt(0)')
        late.add(flag_ops(o, 3))
        late('s_cmp_ge_u32 s%d, 256' % sI0)
        late('s_cbranch_scc1 L_end')
        check(late, sI0, 'P')
        addr(late, sI0, 0)
        loads(late, 0)
        late('s_branch L_rb0')
        o.late = late
        tstamp(pre, o, 'r', 2)
        stamp(pre, o, 12)
    else:
        claim(pre, NB)
        pre.wait(tags=['st3'])
        pre.add(flag_ops(o, 3))
        tstamp(pre, o, 'r', 1)
        pre.wait(tags=['claim'])
        pre('v_readfirstlane_b32 s%d, v%d' % (sI0, CL))
        tstamp(pre, o, 'r', 2)
        stamp(pre, o, 12)
        pre('s_add_u32 s%d, s%d, 1' % (sI1, sI0))
        pre('s_cmp_ge_u32 s%d, %d' % (sI0, NSL))
        pre('s_cbranch_scc1 L_end')
        check(pre, sI0, 'P')
        addr(pre, sI0, 0)
        loads(pre, 0)
    if NB == 3:
        pre('s_cmp_ge_u32 s%d, %d' % (sI1, NSL))
        pre('s_cbranch_scc1 L_rlast0')
        check(pre, sI1, 'Q')
        addr(pre, sI1, 1)
        loads(pre, 1)
        pre('s_add_u32 s%d, s%d, 1' % (sI1, sI1))
    body, fin = [], []
    for x in range(NB):
        y = (x + NB - 1) % NB
        b = Seg('redbody%d' % x)
        b.label('L_rb%d' % x)
        if o.trace == 'r':
            b('%s s[%d:%d]' % (clk(o), sST + 6, sST + 7)); b('s_waitcnt lgkmcnt(0)'); b('s_add_u32 m0, s%d, 3' % sIT); b('s_nop 0'); b('v_writelane_b32 v%d, s%d, m0' % (STV + 2, sST + 6))
        b('s_add_u32 s%d, s%d, 1' % (sIT, sIT)); b('s_cmp_gt_u32 s%d, 400' % sIT); b('s_cbranch_scc1 L_rf%d' % x)
        b('s_cmp_ge_u32 s%d, %d' % (sI1, NSL))
        b('s_cbranch_scc1 L_rf%d' % x)
        check(b, sI1, 'B%d' % x)
        addr(b, sI1, y)
        claim(b, 1)
        b(poll, tag='poll')
        loads(b, y)
        finish(b, x)
        b.wait(regs=[('v', CL)])
        b('v_readfirstlane_b32 s%d, v%d' % (sI1, CL))
        if x == NB - 1: b('s_branch L_rb0')
        body.append(b)
        f = Seg('redfin%d' % x)
        f.label('L_rf%d' % x)
        finish(f, x)
        if NB == 3:
            if x == 2: f.label('L_rlast0')
            finish(f, (x + 1) % 3)
        if x < NB - 1: f('s_branch L_end')
        fin.append(f)
    e = Seg('redend')
    e.label('L_end')
    if o.stamps or o.trace:
        e('s_waitcnt vmcnt(0)')
        tstamp(e, o, 'r', 15)
        stamp(e, o, 13); stamp(e, o, 14); stamp(e, o, 15)
    e.label('L_done')
    e('s_endpgm')
    sp = Seg('spins')
    for n in ('P', 'B0', 'B1') + (('Q', 'B2') if NB == 3 else ()): gen_spin(sp, 'L_spin' + n, 'L_got' + n, poll, ['v_cmp_gt_u32 vcc, s%d, v%d' % (sN, PL), 's_cbranch_vccnz @'], 35)
    sp.label('L_cntspin')
    sp('s_lshl_b32 s%d, s%d, 3' % (sA, sG))
    gen_spin(sp, 'L_cntspin2', 'L_cntok', 'buffer_load_dword v%d, off, s[%d:%d], s%d offset:128 sc1' % (CNT, SD, SD + 3, sA),
             ['v_readfirstlane_b32 s3, v%d' % CNT, 's_cmp_lt_u32 s3, 16', 's_cbranch_scc1 @'], 35)
    return pre, body, fin, e, sp

def gen_red(o, early, sfx):
    s = Seg('red' + sfx)
    if sfx: s.label('L_red' + sfx)
    poll = poll_txt()
    BUF = [144, 184, 0, 40]
    def check(n):
        s.wait(regs=[('v', PL)])
        s('v_cmp_gt_u32 vcc, %d, v%d' % (n, PL))
        s('s_cbranch_vccnz L_spin%d%s' % (n, sfx))
        s.label('L_got%d%s' % (n, sfx))
    def loads(c):
        for g in load_groups(o, c, lambda k: vr(BUF[c] + 4 * k, 4), sA): s.add(g)
    def summ(c): summ_ops(s, BUF[c], 100 + 4 * (c & 1))
    def outst(c):
        o2 = 100 + 4 * (c & 1)
        s('buffer_store_dwordx2 %s, v%d, s[%d:%d], s%d offen %s' % (vr(o2, 2), OD, SO, SO + 3, sCW + c, o.out_pol))
        s('buffer_store_dwordx2 %s, v%d, s[%d:%d], s%d offen %s' % (vr(o2 + 2, 2), OD2, SO, SO + 3, sCW + c, o.out_pol))
    T = lambda i: tstamp(s, o, 'r', i)
    T(0)
    if o.fl3:
        s.wait(tags=['st3'])
        s.add(flag_ops(o, 3))
        check(1)
        T(1); stamp(s, o, 12)
        loads(0)
        T(2)
        check(2)
        T(3)
        s(poll, tag='poll')
        loads(1)
        T(4)
        summ(0)
    else:
        s.wait(regs=[('v', PL)], tags=['st2'])
        s.add(flag_ops(o, 2))
    if o.fl3: pass
    elif not early:
        check(1)
        T(1); stamp(s, o, 12)
        s.wait(regs=regs('v', BUF[0], 40))
        loads(0)
        T(2)
        s.wait(tags=['st3'])
        s.add(flag_ops(o, 3))
        check(2)
        T(3)
        s(poll, tag='poll')
        loads(1)
        T(4)
        summ(0)
    else:
        check(2)
        T(1); stamp(s, o, 12)
        loads(1)
        T(2)
        s.wait(tags=['st3'])
        s.add(flag_ops(o, 3))
        T(3)
        s(poll, tag='poll')
        T(4)
        summ(0)
    T(5)
    check(3)
    T(6); stamp(s, o, 13)
    s(poll, tag='poll')
    loads(2)
    outst(0)
    T(7)
    summ(1)
    T(8)
    check(4)
    T(9); stamp(s, o, 14)
    loads(3)
    outst(1)
    T(10)
    summ(2); outst(2)
    T(11)
    summ(3); outst(3)
    T(12)
    if o.stamps or o.trace:
        s('s_waitcnt vmcnt(0)')
        T(13); T(14); T(15)
        stamp(s, o, 15)
    if not sfx: s.label('L_done')
    s('s_endpgm')
    sp = Seg('spins')
    for n in (2, 3, 4) if early else (1, 2, 3, 4): gen_spin(sp, 'L_spin%d%s' % (n, sfx), 'L_got%d%s' % (n, sfx), poll, ['v_cmp_gt_u32 vcc, %d, v%d' % (n, PL), 's_cbranch_vccnz @'])
    if sfx: return s, sp
    sp.label('L_cntspin')
    sp('s_lshl_b32 s%d, s%d, 3' % (sA, sG))
    gen_spin(sp, 'L_cntspin2', 'L_cntok', 'buffer_load_dword v%d, off, s[%d:%d], s%d offset:128 sc1' % (CNT, SD, SD + 3, sA),
             ['v_readfirstlane_b32 s3, v%d' % CNT, 's_cmp_lt_u32 s3, 16', 's_cbranch_scc1 @'])
    return s, sp

def desc(name, vgpr, accum, sgpr):
    return '''.amdhsa_kernel %s
  .amdhsa_next_free_vgpr %d
  .amdhsa_next_free_sgpr %d
  .amdhsa_accum_offset %d
  .amdhsa_group_segment_fixed_size 0
  .amdhsa_kernarg_size 104
  .amdhsa_user_sgpr_count 2
  .amdhsa_user_sgpr_kernarg_segment_ptr 1
  .amdhsa_system_sgpr_workgroup_id_x 1
  .amdhsa_float_denorm_mode_32 3
.end_amdhsa_kernel
''' % (name, vgpr, sgpr, accum)

def build(o, path):
    o.kvat_l = [int(x) for x in o.kvat.split(',')]
    o.sched = kv_schedule(o)
    Pace.slots = o.slots
    entry, q, s0, attn, epi = gen_entry(o), gen_q(o), gen_s0(o), gen_attn(o), gen_epi(o)
    r0, r1, r2 = gen_redo(o)
    op = gen_op(o)
    if o.dyn:
        pre, body, fin, e, spins = gen_red_dyn(o)
        tail_code = [pre] + body + fin + [e, spins]
        tails = [[pre] + body + body + [fin[0], e], [pre] + body + [body[0], fin[1], e]]
        xtails = [[pre, fin[0], e], [pre, body[0], fin[1], e]]
        if o.eclaim:
            assert o.nb == 2
            h = Seg('h'); h.items = pre.items[:[i for i, it in enumerate(pre.items) if it.kind == 'branch' and 'L_late' in it.text][0] + 1]
            xtails += [[h, o.late, body[0], body[1], fin[0], e], [h, o.late, fin[0], e]]
            tail_code.append(o.late)
        if o.nb == 3:
            h = Seg('h'); h.items = pre.items[:[i for i, it in enumerate(pre.items) if it.kind == 'branch' and 'L_rlast0' in it.text][0] + 1]
            l = Seg('l'); l.items = fin[2].items[[i for i, it in enumerate(fin[2].items) if it.kind == 'label' and it.name == 'L_rlast0'][0]:]
            xtails += [[pre, body[0], body[1], fin[2], e], [pre] + body + [body[0], body[1], fin[2], e], [h, l, e]]
    else:
        red, spins = gen_red(o, False, '')
        redE, spinsE = gen_red(o, True, 'E') if o.early else (Seg('x'), Seg('x'))
        tail_code = [red, redE, spins, spinsE]
        tails = [[red], [redE if o.early else red]]
    traces = []
    for redo in (0, 1):
        tr = [(entry, {}), (q, {})]
        for ps in range(redo + 1):
            if ps: tr += [(r0, {}), (r1, {}), (r1, {}), (r2, {})]
            tr += [(s0, {}), (attn, {}), (epi, dict(redo=ps))]
        tr += [(op, dict(redo=redo))] + [(x, {}) for x in tails[redo]]
        traces.append(('redo%d' % redo, tr))
    if o.dyn:
        base = traces[0][1][:-len(tails[0])]
        for i, xt in enumerate(xtails): traces.append(('x%d' % i, base + [(x, {}) for x in xt]))
    resolve([t for _, t in traces])
    allerr = []
    for name, tr in traces: allerr += check(tr, name)[0]
    for e in allerr[:30]: print('ERR', e)
    if allerr: print(len(allerr), 'errors')
    hdr = open('concat_heads__gqa_block_cached__gqa_block_cached__near_ridge.s.ref').read().split('; Override')[0]
    txt = hdr + '; @launch grid=(256,1,1) block=(256,1,1) lds=163840\n'
    txt += '.amdgcn_target "amdgcn-amd-amdhsa--gfx950"\n.text\n.globl %s\n.p2align 8\n.type %s,@function\n%s:\n' % (KN, KN, KN)
    for sg in [entry, q, s0, attn, epi, op] + tail_code + [r0, r1, r2]: txt += sg.text()
    txt += 'L_code_end:\n'
    txt += '.section .rodata,"a"\n.p2align 6\n' + desc(KN, 512, 256, 100)
    open(path, 'w').write(txt)
    return not allerr

if __name__ == '__main__':
    o = Opt()
    path = sys.argv[1]
    for kv in sys.argv[2:]:
        k, v = kv.split('=')
        cur = getattr(o, k)
        setattr(o, k, int(v) if isinstance(cur, int) else v.replace('+', ' '))
    ok = build(o, path)
    print('written', path, 'ok' if ok else 'WITH ERRORS', {h: len(v) for h, v in o.sched.items() if len(v) != 4 and (len(v) or h < 62)} if '-v' in path else '')
```

```python
import re

REG_RE = re.compile(r'^(-?)(?:abs\()?([vas])(?:\[(\d+):(\d+)\]|(\d+))\)?$')

def parse_reg(tok):
    tok = tok.strip()
    if tok in ('vcc', 'm0', 'exec', 'scc'):
        return [(tok, 0)]
    m = REG_RE.match(tok)
    if not m:
        return []
    k = m.group(2)
    if m.group(5) is not None:
        return [(k, int(m.group(5)))]
    return [(k, i) for i in range(int(m.group(3)), int(m.group(4)) + 1)]

TRANS = ('v_exp_f32', 'v_log_f32', 'v_rcp_f32', 'v_rsq_f32', 'v_sqrt_f32')

class I:
    def __init__(self, text, **ann):
        self.text = text.strip()
        self.ann = ann
        t = self.text.split(None, 1)
        self.mn = t[0]
        rest = t[1] if len(t) > 1 else ''
        ops = []
        for p in rest.split(','):
            p = p.strip()
            if not p: continue
            ops.append(p.split()[0])
        self.ops = ops
        mn = self.mn
        R = lambda i: parse_reg(ops[i]) if i < len(ops) else []
        rd, wr = [], []
        kind = 'other'
        if mn.startswith('v_mfma'):
            kind = 'mfma'; wr = R(0); rd = R(1) + R(2) + R(3)
            self.srcA, self.srcB, self.srcC = R(1), R(2), R(3)
            self.passes = 4 if '16x16x32' in mn else 8
        elif mn.startswith('v_permlane'):
            kind = 'perm'; wr = R(0) + R(1); rd = R(0) + R(1)
        elif mn.startswith('v_cmp'):
            kind = 'valu'; wr = R(0); rd = R(1) + R(2)
        elif mn.startswith('v_readfirstlane') or mn.startswith('v_readlane'):
            kind = 'rdlane'; wr = R(0); rd = R(1)
        elif mn.startswith('v_'):
            kind = 'trans' if mn in TRANS else 'valu'
            wr = R(0); rd = sum((R(i) for i in range(1, len(ops))), [])
            if mn.startswith('v_dot2c') or mn.startswith('v_fmac'): rd += R(0)
            if mn.startswith('v_cndmask') and len(ops) == 3: rd += [('vcc', 0)]
        elif mn.startswith('ds_read'):
            kind = 'dsr'; wr = R(0); rd = R(1)
        elif mn.startswith('ds_write'):
            kind = 'dsw'; rd = R(0) + R(1) + R(2)
        elif mn.startswith('buffer_load') and ' lds' in self.text:
            kind = 'dma'; rd = R(0) + R(1) + R(2) + [('m0', 0)]
        elif mn.startswith('buffer_load'):
            kind = 'vld'; wr = R(0); rd = R(1) + R(2) + R(3)
        elif mn.startswith('global_load'):
            kind = 'vld'; wr = R(0); rd = R(1) + R(2)
        elif mn.startswith('buffer_store'):
            kind = 'vst'; rd = R(0) + R(1) + R(2) + R(3); self.data = R(0)
        elif mn.startswith('buffer_atomic'):
            kind = 'vld' if ' sc0' in self.text else 'vst'
            rd = R(0) + R(1) + R(2) + R(3); self.data = R(0)
            if kind == 'vld': wr = R(0)
        elif mn in ('buffer_wbl2', 'buffer_inv'):
            kind = 'vst'; self.data = []
        elif mn == 's_waitcnt':
            kind = 'wait'
        elif mn == 's_barrier':
            kind = 'barrier'
        elif mn == 's_nop':
            kind = 'nop'
        elif mn.startswith('s_load') or mn.startswith('s_mem'):
            kind = 'smem'; wr = R(0); rd = R(1)
        elif mn.startswith('s_cbranch') or mn == 's_branch' or mn == 's_endpgm':
            kind = 'branch'
        elif mn.startswith('s_cmp'):
            kind = 'salu'; rd = R(0) + R(1)
        elif mn.startswith('s_'):
            kind = 'salu'; wr = R(0); rd = sum((R(i) for i in range(1, len(ops))), [])
        self.kind, self.rd, self.wr = kind, set(rd), set(wr)
    def states(self):
        if self.kind == 'nop': return int(self.ops[0], 0) + 1
        return 1

class Wait:
    kind = 'ph'
    def __init__(self, regs=(), tags=(), lgkm_all=False, vm_all=False):
        self.regs = set(regs); self.tags = set(tags); self.lgkm_all = lgkm_all; self.vm_all = vm_all
        self.lg = None; self.vm = None
    def text(self):
        p = []
        if self.vm is not None: p.append('vmcnt(%d)' % self.vm)
        if self.lg is not None: p.append('lgkmcnt(%d)' % self.lg)
        return 's_waitcnt ' + ' '.join(p) if p else None

class CondOps(Wait):
    n = 0
    def __init__(self, tags, ops, sreg):
        Wait.__init__(self, tags=tags); self.ops = ops; self.sreg = sreg; self.cond = True
        CondOps.n += 1; self.id = CondOps.n
    def text(self):
        body = [o.replace(', ', ',') for o in self.ops]
        if self.vm is None: return '\n '.join(body)
        self.vm = min(self.vm, 15)
        r = self.sreg
        return '\n '.join(['s_getreg_b32 s%d,hwreg(HW_REG_IB_STS)' % r, 's_and_b32 s%d,s%d,0xc000000f' % (r, r), 's_cmp_le_u32 s%d,%d' % (r, self.vm),
                           's_cbranch_scc0 L_cond%d' % self.id, 's_waitcnt vmcnt(%d)' % self.vm] + body) + '\nL_cond%d:' % self.id

class Label:
    kind = 'label'
    def __init__(self, n): self.name = n

def regs(k, lo, n): return [(k, lo + i) for i in range(n)]

class Seg:
    def __init__(self, name):
        self.name = name; self.items = []
    def __call__(self, text, **ann):
        for l in text.split('\n'):
            l = l.strip()
            if l: self.items.append(I(l, **ann))
        return self
    def add(self, it):
        if isinstance(it, (list, tuple)):
            for x in it: self.add(x)
        elif isinstance(it, str): self(it)
        else: self.items.append(it)
    def label(self, n): self.items.append(Label(n))
    def wait(self, **kw): self.items.append(Wait(**kw))
    def text(self):
        out = []
        for it in self.items:
            if it.kind == 'label': out.append(it.name + ':')
            elif it.kind == 'ph':
                t = it.text()
                if t: out.append(' ' + t)
            else: out.append(' ' + it.text.replace(', ', ','))
        return '\n'.join(out) + '\n'

def flat(trace):
    for seg, ctx in trace:
        for it in seg.items:
            if it.kind != 'label': yield it, ctx, seg

def ev(x, ctx):
    return x(ctx) if callable(x) else x

def parse_wait(it):
    vm = re.search(r'vmcnt\((\d+)\)', it.text); lg = re.search(r'lgkmcnt\((\d+)\)', it.text)
    return (int(vm.group(1)) if vm else None, int(lg.group(1)) if lg else None)

def resolve(traces):
    for tr in traces:
        lq, vq = [], []
        for it, ctx, seg in flat(tr):
            k = it.kind
            if k == 'ph':
                lg = None
                if it.lgkm_all and lq: lg = 0
                else:
                    idx = [i for i, w in enumerate(lq) if w & it.regs]
                    if idx: lg = min(15, len(lq) - 1 - idx[-1])
                vm = None
                tags = set(ev(t, ctx) for t in it.tags)
                if it.vm_all and vq: vm = 0
                else:
                    idx = [i for i, (t, w) in enumerate(vq) if (t is not None and t in tags) or (w & it.regs)]
                    if idx: vm = min(63, len(vq) - 1 - idx[-1])
                if lg is not None:
                    it.lg = lg if it.lg is None else min(it.lg, lg); lq = lq[len(lq) - lg:] if lg else []
                if vm is not None:
                    it.vm = vm if it.vm is None else min(it.vm, vm)
                    if not getattr(it, 'cond', False): vq = vq[len(vq) - vm:] if vm else []
            elif k == 'wait':
                vm, lg = parse_wait(it)
                if lg is not None and len(lq) > lg: lq = lq[len(lq) - lg:] if lg else []
                if vm is not None and len(vq) > vm: vq = vq[len(vq) - vm:] if vm else []
            elif k in ('dsr', 'dsw', 'smem'): lq.append(it.wr)
            elif k in ('dma', 'vld', 'vst'): vq.append((ev(it.ann.get('tag'), ctx), it.wr))

def check(trace, name, verbose=False):
    errs = []
    lq, vq = [], []
    epoch = 0
    writes = []
    reads = []
    hist = []
    dma_epochs = []
    n = 0
    def err(it, seg, msg): errs.append('%s/%s #%d [%s]: %s' % (name, seg.name, n, it.text if hasattr(it, 'mn') else 'wait', msg))
    def dowait(vm, lg):
        nonlocal lq, vq
        if lg is not None and len(lq) > lg:
            done = lq[:len(lq) - lg]; lq = lq[len(lq) - lg:]
            if any(d[2] for d in done + lq) and lg != 0: errs.append('counted lgkm wait with smem in flight')
            for w, rec, _ in done:
                if rec is not None:
                    if 'status' in rec: rec['status'] = 'landed'
                    else: rec['done'] = epoch
        if vm is not None and len(vq) > vm:
            done = vq[:len(vq) - vm]; vq = vq[len(vq) - vm:]
            for w, rec in done:
                if rec is not None: rec['status'] = 'landed'
    for it, ctx, seg in flat(trace):
        n += 1
        k = it.kind
        if k == 'ph':
            if it.text() is None: continue
            if getattr(it, 'cond', False): hist.append((I('s_nop 0'), 1)); continue
            dowait(it.vm, it.lg); hist.append((I('s_nop 0'), 1)); continue
        if k == 'wait':
            dowait(*parse_wait(it)); hist.append((it, 1)); continue
        if k == 'barrier':
            epoch += 1
            for w in writes:
                if w['status'] == 'landed': w['status'] = 'visible'
            hist.append((it, 1)); continue
        touch = it.rd | it.wr
        for w, rec, _ in lq:
            if w & touch: err(it, seg, 'touches pending LDS/SMEM result %s' % sorted(w & touch)[:2])
        for w, rec in vq:
            if w & touch and not it.ann.get('dummy'): err(it, seg, 'touches pending VMEM result %s' % sorted(w & touch)[:2])
        if len(vq) >= 63 and k in ('dma', 'vld', 'vst'): err(it, seg, 'vmcnt overflow')
        reg = it.ann.get('lds')
        rec = None
        if reg is not None:
            lo, hi, tag = ev(reg, ctx)
            if k == 'dsr':
                if tag is not None:
                    ov = [w for w in writes if w['lo'] < hi and lo < w['hi']]
                    if not ov: err(it, seg, 'LDS read of never-written region')
                    else:
                        newest = ov[-1]
                        if newest['tag'] != tag: err(it, seg, 'LDS read expects %s finds %s' % (tag, newest['tag']))
                        for w in ov:
                            if w['tag'] == tag and w['status'] != 'visible' and not it.ann.get('own'): err(it, seg, 'LDS read of %s not yet visible (%s)' % (tag, w['status']))
                            if w['tag'] == tag and it.ann.get('own') and w['status'] == 'inflight' and k != 'dsr': pass
                    rec = dict(lo=lo, hi=hi, done=None, tag=tag); reads.append(rec)
            else:
                for r in reads:
                    if r['lo'] < hi and lo < r['hi'] and (r['done'] is None or r['done'] >= epoch):
                        err(it, seg, 'LDS write %s over reads of %s not fenced by a barrier' % (tag, r['tag'])); break
                for w in writes:
                    if w['lo'] < hi and lo < w['hi'] and w['tag'] != tag and w['status'] == 'inflight':
                        err(it, seg, 'LDS write %s over in-flight write %s' % (tag, w['tag'])); break
                reads = [r for r in reads if not (r['lo'] < hi and lo < r['hi'] and r['done'] is not None and r['done'] < epoch)]
                writes = [w for w in writes if not (lo <= w['lo'] and w['hi'] <= hi and w['tag'] != tag)]
                rec = dict(lo=lo, hi=hi, tag=tag, status='inflight'); writes.append(rec)
                if k == 'dma': dma_epochs.append((tag, epoch))
        elif k in ('dsr', 'dsw', 'dma'):
            err(it, seg, 'LDS op without annotation')
        dist = 0
        for p, st in reversed(hist):
            if dist >= 20: break
            need = 0
            pk = p.kind
            isvalu_p = pk in ('valu', 'trans', 'perm', 'rdlane')
            vw = set(r for r in p.wr if r[0] in 'va')
            sw = set(r for r in p.wr if r[0] in ('s', 'vcc'))
            if pk == 'mfma':
                n_rd, n_ov, n_war = ((8, 6, 3), (12, 10, 7))[p.passes == 8]
                if k == 'mfma':
                    if p.wr & (set(it.srcA) | set(it.srcB)): need = n_rd
                    elif p.wr & set(it.srcC) and p.wr != set(it.srcC): need = n_ov
                    elif p.wr & it.wr and p.wr != set(it.srcC): need = n_ov
                else:
                    if p.wr & (it.rd | it.wr): need = n_rd
                    if k in ('valu', 'trans', 'perm') and set(p.srcC) & it.wr: need = max(need, n_war)
            elif isvalu_p:
                if k == 'mfma' and vw & it.rd: need = 2
                if (k == 'perm' or it.mn.endswith('_dpp')) and vw & it.rd: need = 2
                if p.mn.startswith('v_dot2') and p.mn != it.mn and vw & (it.rd | it.wr): need = max(need, 3)
                if k == 'rdlane' and vw & it.rd: need = 1
                if pk == 'trans' and k in ('valu', 'perm') and vw & it.rd: need = max(need, 1)
                if sw & it.rd:
                    if k in ('dma', 'vld', 'vst'): need = 5
                    elif k in ('valu', 'trans'): need = max(need, 2)
            elif pk == 'salu':
                if ('m0', 0) in p.wr and ('m0', 0) in it.rd and k == 'dma': need = 1
            elif pk == 'vst':
                if len(p.data) >= 3 and set(p.data) & it.wr: need = 2
            if need > dist: err(it, seg, 'hazard: needs %d wait states after [%s], has %d' % (need, p.text, dist))
            dist += st
        hist.append((it, it.states()))
        if len(hist) > 64: hist = hist[-40:]
        if k in ('dsr', 'dsw'): lq.append((it.wr, rec, False))
        elif k == 'smem': lq.append((it.wr, None, True))
        elif k in ('dma', 'vld', 'vst'): vq.append((it.wr, rec))
    return errs, epoch, dma_epochs
```

```python
import sys, struct, math
from fw import *

KN = "concat_heads__gqa_block_cached__gqa_block_cached__near_ridge_kernel"
WS_BYTES = 287834112
import os
PST = int(os.environ.get('PST', 172032))
INB = 256 * PST
def f2u(x): return struct.unpack('<I', struct.pack('<f', x))[0]

class Opt:
    kv_pol = 'nt'; w_pol = ''; st_pol = 'sc1'; rd_pol = 'sc1'; fl_pol = 'sc1'; out_pol = ''
    stamps = 0; cyc = 0; dbgst = 0; trace = ''
    force_redo = 0
    codepf = 1
    par = 1
    qevery = 3
    qpack = 0
    x1e = 0
    slots = 1
    kvat = '5,7,9,11'
    cap = 4
    cap2 = 0
    rotp = 1
    stage = 0
    stat = '8,10'
    lsum = 1
    uni = 1
    lasth = 59
    ninit = 10
    oevery = 1
    flagat = 5
    rotc = 1
    dyn = 1
    nb = 3
    rep = 4
    fl = '13,23'
    cfl = ''
    rcap = 0
    sl8 = 1
    eclaim = 0
    nfirst = 5
    fl3 = 1
    early = 0
    epoll = 24
    ldevery = 5
    pfo = 0
    diag = ''

V0 = 98304
KAD = lambda j: 16384 * (j % 5)
VAD = lambda j: (V0, V0 + 16384, V0 + 32768, V0 + 49152, V0 - 16384)[(j + 2) % 5]
XBUF = lambda m: 32768 + 20480 * (m & 1)
WAD = lambda n: (V0 + 16384, V0 - 16384, V0)[n % 3]
EX = 16384
FLG = VAD(31)
OSLOT = [VAD(28), KAD(30), VAD(29), VAD(30), VAD(31), 16384, 32768, 49152]

S, P, NM, L = 0, 40, 80, 100
KA, KA2, VA, VA2, DK, DV, LANE16, CNT, FLA, CA = 105, 109, 113, 121, 129, 133, 135, 136, 137, 138
DWO = VA2
STV = 140
OV, NOV = 144, 28
XAD, DX, DWQ, DUM = 48, 50, 51, 59
Q, KB, VB, OA = 0, 80, 112, 144
XF = 144
OWN, PART = 0, 144
STG = 216
LS, ONES = 192, 212
sW, sP, sREDO, sCNT = 4, 5, 6, 7
SX, SWQ, SK, SV, SWO, SP_ = 8, 12, 16, 20, 24, 28
sOK, sOV, sMK = 32, 33, 34
sBR, sHP, sBT = 37, 38, 39
sWS = 40
sCW, sCP = 44, 48
sC, sTHR = 54, 56
sA, sB = 58, 59
sW1K, sHF = 60, 61
sST = 64
SF, SD, SO = 72, 76, 80
sG = 84
sM0, sM1 = 86, 88
sXO, sWQO = 90, 91
sO5 = 57
SG = 96
SG2 = 8
sE = 35

def vr(b, n=1): return 'v%d' % b if n == 1 else 'v[%d:%d]' % (b, b + n - 1)
def ar(b, n=1): return 'a%d' % b if n == 1 else 'a[%d:%d]' % (b, b + n - 1)
def sr(b, n=1): return 's%d' % b if n == 1 else 's[%d:%d]' % (b, b + n - 1)
def mfma(d, a, b, c): return I('v_mfma_f32_16x16x32_bf16 %s, %s, %s, %s' % (d, a, b, c))
def otile(j, db):
    n = 8 * j + db
    return ('v', OV + 4 * n) if n < NOV else ('a', OA + 4 * (n - NOV))
def oreg(j, db):
    k, b = otile(j, db)
    return '%s[%d:%d]' % (k, b, b + 3)
def qacc(db, j):
    n = 8 * j + db
    return 4 * n if n < 12 else OV + 4 * (n - 12)

def clk(o): return 's_memtime' if o.cyc else 's_memrealtime'
def tstamp(s, o, ph, idx):
    if o.trace == ph and idx < 16:
        s('%s s[%d:%d]' % (clk(o), sST + 6, sST + 7)); s('s_waitcnt lgkmcnt(0)')
        s('v_writelane_b32 v%d, s%d, %d' % (STV + 2, sST + 6, idx))
def stamp(s, o, idx):
    st = sST
    def wsrd():
        s('s_mov_b32 s%d, s%d' % (st, sWS)); s('s_mov_b32 s%d, s%d' % (st + 1, sWS + 1))
        s('s_mov_b32 s%d, 0x%x' % (st + 2, WS_BYTES)); s('s_mov_b32 s%d, 0x20000' % (st + 3))
    if o.trace:
        if idx == 15:
            wsrd()
            s('s_mul_i32 s%d, s2, %d' % (st + 4, 128)); s('s_add_u32 s%d, s%d, 0x%x' % (st + 4, st + 4, WS_BYTES - 256 * 128))
            s('s_min_u32 s3, s%d, 1' % sW); s('s_lshl_b32 s3, s3, 30'); s('s_add_u32 s%d, s%d, s3' % (st + 4, st + 4))
            s('v_mbcnt_lo_u32_b32 v0, -1, 0'); s('v_lshlrev_b32 v0, 3, v0'); s('v_mov_b32 v2, v%d' % (STV + 2)); s('v_mov_b32 v3, 0')
            s('s_mov_b64 exec, 0xffff')
            s('buffer_store_dwordx2 v[2:3], v0, s[%d:%d], s%d offen' % (st, st + 3, st + 4))
        return
    if not o.stamps: return
    a, b = STV, STV + 1
    if o.dbgst:
        if idx not in (0, 2, 3, 5, 6, 11, 13, 15): return
        idx = (0, 2, 3, 5, 6, 11, 13, 15).index(idx)
        s('s_memrealtime s[%d:%d]' % (st + 4, st + 5)); s('s_memtime s[%d:%d]' % (st + 6, st + 7)); s('s_waitcnt lgkmcnt(0)')
        s('v_mov_b32 v%d, s%d' % (a, st + 4)); s('v_mov_b32 v%d, s%d' % (b, st + 6))
        s('s_sub_u32 s%d, s2, %d' % (st + 4, o.dbgst - 1)); s('s_mul_i32 s%d, s%d, 0x1000' % (st + 4, st + 4))
        s('s_add_u32 s%d, s%d, 0x%x' % (st + 4, st + 4, idx * 8)); s('s_nop 0')
        s('buffer_store_dwordx2 v[%d:%d], off, s[%d:%d], s%d' % (a, b, SD, SD + 3, st + 4))
        return
    s('%s s[%d:%d]' % (clk(o), st + 4, st + 5)); s('s_waitcnt lgkmcnt(0)')
    if idx == 0: s('s_mov_b64 s[%d:%d], s[%d:%d]' % (st + 4, st + 5, st + 6, st + 7))
    wsrd()
    s('v_mov_b32 v%d, s%d' % (a, st + 4)); s('v_mov_b32 v%d, s%d' % (b, st + 5))
    s('s_mul_i32 s%d, s2, %d' % (st + 4, o.stamps * 8))
    s('s_add_u32 s%d, s%d, 0x%x' % (st + 4, st + 4, WS_BYTES - 256 * o.stamps * 8 + idx * 8)); s('s_nop 0')
    s('buffer_store_dwordx2 v[%d:%d], off, s[%d:%d], s%d' % (a, b, st, st + 3, st + 4))

def dma(voff, srd, soff, imm, pol, tag, lo, n=16384):
    return I('buffer_load_dwordx4 v%d, s[%d:%d], s%d offen offset:%d %s lds' % (voff, srd, srd + 3, soff, imm, pol), tag=tag, lds=(lo, lo + n, tag))
def grp4(pre, mk, post=()):
    out = []
    for t in range(4):
        g = list(pre) if t == 0 else []
        g.append(mk(t))
        if t == 3: g += list(post)
        out.append(g)
    return out
def dma_x(o, m):
    buf = XBUF(m)
    out = [[I('s_add_u32 m0, s%d, 0x%x' % (sW1K, buf + 4096 * j)), I('s_add_u32 s%d, s%d, 0x%x' % (sA, sXO, 32768 * j)),
            dma(DX, SX, sA, 0, o.w_pol, 'x%d' % m, buf, 20480)] for j in range(5)]
    out[4] += [I('s_add_u32 s%d, s%d, 128' % (sXO, sXO)), I('s_and_b32 s%d, s%d, 0x3ff' % (sXO, sXO))]
    return out
def dma_wq(o, n):
    b = WAD(n)
    return grp4([I('s_add_u32 m0, s%d, 0x%x' % (sMK, b)), I('s_nop 0')],
                lambda t: dma(DWQ + t, SWQ, sWQO, 1024 * t, o.w_pol, 'wq%d' % n, b),
                [I('s_add_u32 s%d, s%d, 0x40000' % (sWQO, sWQO)), I('s_and_b32 s%d, s%d, 0x3fffff' % (sWQO, sWQO))])
def stage_ld(o, kind):
    srd_, r = (SK, STG) if kind == 'K' else (SV, STG + 16)
    vo = (lambda t: DK + t) if kind == 'K' else (lambda t: DV + (t & 1))
    return [[I('buffer_load_dwordx4 %s, v%d, s[%d:%d], s%d offen offset:%d %s' % (ar(r + 4 * t, 4), vo(t), srd_, srd_ + 3, sO5, 1024 * t, o.kv_pol))] for t in range(4)]
def stage_wr(o, kind):
    b, r, ad = (KAD(5), STG, 139) if kind == 'K' else (VAD(5), STG + 16, 143)
    out = [[I('ds_write_b128 v%d, %s offset:%d' % (ad, ar(r + 4 * t, 4), 1024 * t), lds=(b, b + 16384, '%s5' % kind))] for t in range(4)]
    out[0].insert(0, Wait(regs=regs('a', r, 16)))
    return out
def dma_kv(o, kind, j):
    b, so, srd_ = (KAD(j), sOK, SK) if kind == 'K' else (VAD(j), sOV, SV)
    vo = (lambda t: DK + t) if kind == 'K' else (lambda t: DV + (t & 1))
    return grp4([I('s_add_u32 s%d, s%d, 0x%x' % (so, so, 0x4000 if (o.stage and j == 6) else 0x2000)), I('s_add_u32 m0, s%d, 0x%x' % (sMK, b)), I('s_and_b32 s%d, s%d, 0x3ffff' % (so, so))],
                lambda t: dma(vo(t), srd_, so, 1024 * t, o.kv_pol, '%s%d' % (kind, j), b))
KVSEQ = [(k, j) for j in range(32) for k in 'KV']
def dma_wo(o, u):
    c, phi, dh = u >> 2, (u >> 1) & 1, u & 1
    b = OSLOT[u % 8]
    return grp4([I('s_lshl_b32 s%d, s%d, 2' % (sB, sMK)), I('s_add_u32 s%d, s%d, s%d' % (sB, sB, sCW + c)),
                 I('s_add_u32 m0, s%d, 0x%x' % (sMK, b)), I('s_add_u32 s%d, s%d, 0x%x' % (sB, sB, 65536 * dh))],
                lambda t: dma(DWO + 4 * phi + t, SWO, sB, 1024 * t, o.w_pol, 'wo%d' % u, b))
def capped(o, groups):
    if not o.cap: return groups
    out = []
    for g in groups:
        k = [i for i, x in enumerate(g) if x.kind == 'dma'][0]
        if o.cap2:
            lo = I('s_waitcnt vmcnt(%d)' % o.cap); lo.kind = 'other'
            out.append(g[:k] + [I('s_waitcnt vmcnt(%d)' % o.cap2), I('s_cbranch_vccnz 1'), lo] + g[k:])
        else: out.append(g[:k] + [I('s_waitcnt vmcnt(%d)' % o.cap)] + g[k:])
    return out

def rd_k(j):
    b = KAD(j)
    areg, imm = (KA, b) if b < 65536 else (KA2, b - 65536)
    return [I('ds_read_b128 %s, v%d offset:%d' % (ar(KB + 4 * (4 * kb + s), 4), areg + s, imm + 4096 * kb), lds=(b, b + 16384, 'K%d' % j))
            for s in range(4) for kb in range(2)]
def rd_tr(dst, b, tag):
    areg, imm = (VA, b - V0) if b >= V0 else (VA2, 0)
    return [I('ds_read_b64_tr_b16 %s, v%d offset:%d' % (ar(dst + 4 * d + 2 * e, 2), areg + d, imm + 4096 * e), lds=(b, b + 16384, tag))
            for d in range(8) for e in range(2)]
def rd_v(dst, j): return rd_tr(dst, VAD(j), 'V%d' % j)

def spread(items, gaps):
    d = {g: [] for g in gaps}
    n, m = len(items), len(gaps)
    for i, it in enumerate(items): d[gaps[i * m // n]].append(it)
    return d
def srd(s, r, lo, hi, off, size):
    if off is None: s('s_mov_b32 s%d, s%d' % (r, lo)); s('s_mov_b32 s%d, s%d' % (r + 1, hi))
    else: s('s_add_u32 s%d, s%d, s%d' % (r, lo, off)); s('s_addc_u32 s%d, s%d, 0' % (r + 1, hi))
    if size is not None: s('s_mov_b32 s%d, 0x%x' % (r + 2, size))
    s('s_mov_b32 s%d, 0x20000' % (r + 3))
def kv_start(s, o):
    s('s_mul_i32 s3, s%d, 0x%x' % (sP, 8192 * o.rotp)); s('s_lshl_b32 s36, s%d, 12' % sHF); s('s_add_u32 s3, s3, s36')
    s('s_sub_u32 s%d, s3, 0x2000' % sOK); s('s_mov_b32 s%d, s%d' % (sOV, sOK))
    if o.stage: s('s_add_u32 s%d, s3, 0xa000' % sO5)

def gen_entry(o):
    s = Seg('entry')
    if o.stamps and not o.dbgst: s('%s s[%d:%d]' % (clk(o), sST + 6, sST + 7))
    s('s_cmp_ge_u32 s2, 256')
    s('s_cbranch_scc1 L_done')
    s('s_and_b32 s3, s2, 7')
    s('s_lshr_b32 s36, s2, 3')
    if o.par: s('s_and_b32 s37, s3, 1'); s('s_lshr_b32 s38, s3, 1')
    else: s('s_lshr_b32 s37, s3, 2'); s('s_and_b32 s38, s3, 3')
    s('s_mul_i32 s3, s37, 40'); s('s_add_u32 s42, s0, s3'); s('s_addc_u32 s43, s1, 0')
    s('''s_load_dwordx8 s[44:51], s[42:43], 0
         s_load_dwordx2 s[52:53], s[42:43], 32
         s_load_dwordx2 s[40:41], s[0:1], 96
         s_load_dwordx4 s[92:95], s[0:1], 80''')
    if o.codepf:
        s('s_getpc_b64 s[62:63]')
        s.label('L_pc')
        s('v_lshrrev_b32 v7, 2, v0'); s('v_and_b32 v7, 0x30, v7'); s('v_and_b32 v8, 15, v0'); s('v_or_b32 v7, v7, v8')
        s('s_and_b32 s3, s36, 15'); s('s_lshl_b32 s3, s3, 6')
        s('v_add_lshl_u32 v7, s3, v7, 7')
        s('v_min_u32 v7, L_code_end-L_pc-4, v7')
        s('global_load_dword v%d, v7, s[62:63]' % DUM, dummy=True)
    s('''s_lshl_b32 s38, s38, 2
         s_and_b32 s39, s36, 3
         s_or_b32 s38, s38, s39
         s_lshr_b32 s39, s36, 2''')
    s('v_lshrrev_b32 v7, 6, v0')
    s('v_and_b32 v1, 63, v0')
    s('v_readfirstlane_b32 s%d, v7' % sW)
    s('v_lshrrev_b32 v2, 4, v1')
    s('v_and_b32 v3, 15, v1')
    s('v_and_b32 v5, 7, v1')
    s('s_lshl_b32 s%d, s%d, 10' % (sW1K, sW))
    s('s_lshl_b32 s%d, s%d, 12' % (sMK, sW))
    s('s_lshr_b32 s%d, s%d, 1' % (sP, sW))
    s('s_and_b32 s%d, s%d, 1' % (sHF, sW))
    s('s_lshl_b32 s3, s%d, 2' % sHF)
    s('v_add_u32 v9, s3, v2')
    s('v_xor_b32 v5, v9, v5')
    s('v_lshlrev_b32 v5, 4, v5')
    s('v_lshrrev_b32 v4, 3, v0')
    s('v_lshl_add_u32 v%d, v4, 10, v5' % DX)
    s('v_lshlrev_b32 v6, 1, v2')
    s('v_xor_b32 v6, v6, v3')
    s('v_lshlrev_b32 v6, 4, v6')
    s('v_lshl_add_u32 v4, v9, 13, v6')
    s('s_lshl_b32 s3, s%d, 8' % sP)
    s('v_add_u32 v%d, s3, v4' % DWQ)
    s('v_xor_b32 v4, 0x80, v%d' % DWQ)
    s('v_add_u32 v%d, 0x%x, v4' % (DWQ + 1, 64512))
    s('v_add_u32 v%d, 0x%x, v%d' % (DWQ + 2, 2 * 64512, DWQ))
    s('v_add_u32 v%d, 0x%x, v4' % (DWQ + 3, 3 * 64512))
    s('s_and_b32 s3, s38, 3'); s('s_lshl_b32 s3, s3, 1'); s('s_add_u32 s3, s3, s39'); s('s_and_b32 s3, s3, 7')
    s('s_lshl_b32 s%d, s3, 7' % sXO); s('s_lshl_b32 s%d, s3, 19' % sWQO)
    s('s_mul_i32 s3, s39, 163840'); s('s_lshl_b32 s36, s38, 9')
    s('s_waitcnt lgkmcnt(0)')
    srd(s, SX, 44, 45, 3, 163840)
    srd(s, SWQ, 50, 51, 36, None); s('s_sub_u32 s%d, 0x400000, s36' % (SWQ + 2))
    for g in dma_x(o, 0) + dma_wq(o, 0) + dma_wq(o, 1): s.add(g)
    srd(s, SD, 94, 95, None, 256)
    stamp(s, o, 0)
    s('v_lshlrev_b32 v%d, 4, v1' % LANE16)
    s('s_mov_b32 s3, 0x%x' % INB); srd(s, SF, sWS, sWS + 1, 3, 65536 + 2048)
    s('s_lshl_b32 s%d, s37, 3' % sG); s('s_add_u32 s%d, s%d, s39' % (sG, sG))
    s('s_lshl_b32 s36, s%d, 4' % sG); s('s_add_u32 s36, s36, s38')
    s('s_min_u32 s3, s%d, 1' % sW); s('s_lshl_b32 s3, s3, 30')
    s('s_lshl_b32 s62, s36, 8'); s('s_add_u32 s62, s62, s3')
    s('v_lshlrev_b32 v8, 2, v1'); s('v_add_u32 v9, s62, v8'); s('v_mov_b32 v10, 0')
    s('buffer_store_dword v10, v9, s[%d:%d], 0 offen %s' % (SF, SF + 3, o.fl_pol), tag='clr')
    if o.dyn:
        s('s_lshl_b32 s3, s%d, 7' % sG); s('s_add_u32 s3, s3, 0x10000'); s('s_min_u32 s62, s38, 1'); s('s_lshl_b32 s62, s62, 30'); s('s_add_u32 s3, s3, s62')
        s('v_min_u32 v9, 1, v0'); s('v_lshlrev_b32 v9, 29, v9'); s('v_add_u32 v9, s3, v9')
        s('buffer_store_dword v10, v9, s[%d:%d], 0 offen %s' % (SF, SF + 3, o.fl_pol))
    s('s_mul_i32 s3, s36, %d' % PST); srd(s, SP_, sWS, sWS + 1, 3, 163840)
    s('''s_lshl_b32 s3, s39, 4
         s_add_u32 s3, s3, s38
         s_lshl_b32 s3, s3, 1
         s_add_u32 s3, s3, s%d
         s_lshl_b32 s3, s3, 18''' % sP)
    srd(s, SK, 46, 47, 3, 0x40000); srd(s, SV, 48, 49, 3, 0x40000)
    s('s_lshl_b32 s3, s38, 18'); srd(s, SWO, 52, 53, 3, 0x40000)
    srd(s, SO, 92, 93, None, 8 * 160 * 2048)
    s('s_mul_i32 s3, s%d, %d' % (sG, 16 * PST)); srd(s, SG, sWS, sWS + 1, 3, 16 * PST)
    kv_start(s, o)
    for c in range(4):
        if o.rotc: s('s_add_u32 s3, s39, %d' % c); s('s_and_b32 s3, s3, 3')
        else: s('s_mov_b32 s3, %d' % c)
        s('s_lshl_b32 s%d, s3, 7' % (sCW + c)); s('s_mul_i32 s%d, s3, 20480' % (sCP + c))
    c = math.log2(math.e) / math.sqrt(128.0)
    s('s_mov_b32 s%d, 0x%x' % (sC, f2u(c))); s('s_mov_b32 s%d, 0x%x' % (sC + 1, f2u(c)))
    s('s_mov_b32 s%d, 0x%x' % (sTHR, f2u(2.0 ** 24 if not o.force_redo else 1.0)))
    s('s_mov_b32 s%d, 0' % sREDO)
    s('s_lshl_b32 s3, s%d, 12' % sG); s('s_lshl_b32 s36, s38, 4'); s('s_add_u32 s3, s3, s36')
    s('s_lshl_b32 s36, s%d, 2' % sW); s('s_add_u32 s3, s3, s36')
    s('v_lshlrev_b32 v4, 8, v3'); s('v_add_u32 v4, s3, v4')
    s('v_and_b32 v5, %d, v1' % (48 | (16 // o.rep - 1))); s('v_min_u32 v5, 1, v5'); s('v_lshl_add_u32 v%d, v5, 30, v4' % FLA)
    s('v_min_u32 v5, 1, v0'); s('v_lshlrev_b32 v5, 30, v5'); s('s_lshl_b32 s3, s%d, 3' % sG); s('s_add_u32 s3, s3, 128'); s('v_add_u32 v%d, s3, v5' % CA)
    s('v_mov_b32 v%d, 1' % CNT)
    s('v_xor_b32 v4, v2, v3'); s('v_lshlrev_b32 v4, 4, v4')
    s('v_lshl_add_u32 v%d, v2, 8, v4' % DK)
    for t in range(1, 4): s('v_xor_b32 v%d, %d, v%d' % (DK + t, 64 * t, DK))
    s('v_lshl_add_u32 v%d, v2, 8, v6' % DV)
    s('v_xor_b32 v%d, 0x80, v%d' % (DV + 1, DV))
    s('v_lshl_add_u32 v4, v3, 8, v4')
    s('s_lshl_b32 s36, s%d, 13' % sP)
    s('v_add_u32 v%d, s36, v4' % KA)
    for k in range(1, 4): s('v_xor_b32 v%d, %d, v%d' % (KA + k, 64 * k, KA))
    for k in range(4): s('v_add_u32 v%d, 0x10000, v%d' % (KA2 + k, KA + k))
    s('v_lshrrev_b32 v4, 1, v3'); s('v_xor_b32 v4, v4, v2'); s('v_lshlrev_b32 v4, 4, v4')
    s('v_lshl_add_u32 v4, v3, 7, v4')
    s('s_mul_i32 s3, s%d, 10240' % sHF)
    s('v_add_u32 v%d, s3, v4' % XAD)
    s('v_xor_b32 v%d, 64, v%d' % (XAD + 1, XAD))
    s('v_lshrrev_b32 v4, 2, v1')
    s('v_and_b32 v5, 7, v4')
    s('v_lshlrev_b32 v5, 5, v5')
    s('v_lshl_add_u32 v5, v4, 8, v5')
    s('v_and_b32 v4, 3, v1')
    s('v_lshl_add_u32 v5, v4, 3, v5')
    s('s_add_u32 s36, s36, 0x%x' % V0)
    s('v_add_u32 v%d, s36, v5' % VA)
    for k in range(1, 8): s('v_xor_b32 v%d, %d, v%d' % (VA + k, 32 * k, VA))
    for k in range(8): s('v_subrev_u32 v%d, 0x4000, v%d' % (VA2 + k, VA + k))
    if o.stage:
        s('s_add_u32 s3, s%d, 0x%x' % (sMK, KAD(5))); s('v_add_u32 v139, s3, v%d' % LANE16)
        s('s_add_u32 s3, s%d, 0x%x' % (sMK, VAD(5))); s('v_add_u32 v143, s3, v%d' % LANE16)
    stamp(s, o, 1)
    return s

def is_vm(g): return any(x.kind in ('dma', 'vst', 'vld') for x in g)
class Pace: since = 99; slots = 0
barrier_hooks = []
def gemm_kstep(s, mf, need, reads, barrier, extra, every=1, vq=None, pack=False):
    n = len(mf)
    rg = list(range(2, 2 + (len(reads) + 1) // 2)) if (n <= 20 or pack) else list(range(2, 2 + len(reads)))
    rd = spread(reads, rg) if reads else {}
    part = False
    for g in range(n):
        if g == 0: s.wait(regs=need)
        s.add(mf[g])
        if g == 1 and barrier is not None:
            s.wait(**barrier)
            s('s_barrier')
            for f in barrier_hooks: f()
            del barrier_hooks[:]
        s.add(rd.get(g, []))
        Pace.since += 1
        busy = len(rd.get(g, []))
        if Pace.slots:
            free = 2 - busy - (2 if (g == 1 and barrier is not None) else 0)
            m0_fresh = False
            while free > 0:
                q = vq if vq else None
                if q is not None:
                    head = [x for x in q[0] if not (x.kind == 'nop')]
                    vm = head[0].kind in ('dma', 'vst', 'vld')
                    if vm and (Pace.since < every or m0_fresh): q = None
                if q is None:
                    while extra and extra[0] == [] and free == 2 - busy:
                        extra.pop(0); free = 0
                    if free <= 0 or not extra or extra[0] == []: break
                    q = extra
                    head = list(q[0])
                    vm = head[0].kind in ('dma', 'vst', 'vld')
                    if vm and Pace.since < every: break
                it = head.pop(0)
                s.add(it)
                if it.kind != 'label': free -= 1
                if vm: Pace.since = 0
                m0_fresh = it.kind == 'salu' and ('m0', 0) in it.wr
                if q is extra: part = bool(head)
                if head: q[0] = head
                else: q.pop(0)
            if g == n - 1 and part: s.add(extra.pop(0))
        elif vq and Pace.since >= every and busy < (1 if pack else 2):
            s.add(vq.pop(0)); Pace.since = 0
        elif extra and busy < 2 and (not is_vm(extra[0]) or Pace.since >= every):
            if is_vm(extra[0]): Pace.since = 0
            s.add(extra.pop(0))

def qconv_stream():
    c = sr(sC, 2)
    items = [(j, sidx) for j in range(5) for sidx in range(4)]
    tq = lambda i: 60 + 4 * (i % 4)
    def st1(i):
        j, sidx = items[i]; out = []
        for e in range(2):
            b = qacc(2 * sidx + e, j)
            out += [I('v_pk_mul_f32 %s, %s, %s' % (vr(b, 2), vr(b, 2), c)), I('v_pk_mul_f32 %s, %s, %s' % (vr(b + 2, 2), vr(b + 2, 2), c))]
        for e in range(2):
            b = qacc(2 * sidx + e, j)
            out += [I('v_cvt_pk_bf16_f32 v%d, v%d, v%d' % (tq(i) + 2 * e, b, b + 1)), I('v_cvt_pk_bf16_f32 v%d, v%d, v%d' % (tq(i) + 2 * e + 1, b + 2, b + 3))]
        return out
    sw = lambda op, i: [I('%s v%d, v%d' % (op, tq(i), tq(i) + 2)), I('%s v%d, v%d' % (op, tq(i) + 1, tq(i) + 3))]
    def st4(i):
        j, sidx = items[i]
        return [I('v_accvgpr_write_b32 a%d, v%d' % (Q + 16 * j + 4 * sidx + k, tq(i) + k)) for k in range(4)]
    n = len(items)
    rounds = []
    for i in range(n + 3):
        r = st1(i) if i < n else [I('s_nop 1')]
        if 0 <= i - 3 < n: r += st4(i - 3)
        if 0 <= i - 2 < n: r += sw('v_permlane16_swap_b32', i - 2)
        if 0 <= i - 1 < n: r += sw('v_permlane32_swap_b32', i - 1)
        rounds.append(r)
    return rounds

def gen_q(o):
    s = Seg('qphase')
    def reads_for(n):
        buf = n & 1
        w = rd_tr(KB + 32 * buf, WAD(n), 'wq%d' % n)
        xb = XBUF(n >> 1)
        x = [I('ds_read_b128 %s, v%d offset:%d' % (ar(XF + 20 * buf + 4 * j, 4), XAD + (n & 1), xb + 2048 * j), lds=(xb, xb + 20480, 'x%d' % (n >> 1))) for j in range(5)]
        return x + w
    if o.x1e: s.add(dma_x(o, 1))
    if o.x1e > 1: s.add(dma_wq(o, 2))
    s.wait(tags=['x0', 'wq0'])
    s('s_barrier')
    stamp(s, o, 2)
    s.add(reads_for(0))
    vq = (dma_wq(o, 2) if o.x1e < 2 else []) + (dma_x(o, 1) if not o.x1e else [])
    kv = [dma_kv(o, k, j) for k, j in KVSEQ[:o.ninit]]
    rounds = qconv_stream()
    for n in range(16):
        buf = n & 1
        tstamp(s, o, 'q', n)
        order = [(db, j) for db in range(8) for j in range(5)] if n < 15 else [(db, j) for j in range(5) for db in range(8)]
        mf = []
        for db, j in order:
            d = vr(qacc(db, j), 4)
            mf.append(mfma(d, ar(KB + 32 * buf + 4 * db, 4), ar(XF + 20 * buf + 4 * j, 4), '0' if n == 0 else d))
        m = n + 1
        tags = []
        if m < 16:
            tags = ['wq%d' % m]
            if m % 2 == 0: tags.append('x%d' % (m >> 1))
        else: tags = ['K0']
        new = []
        if m + 2 < 16: new += dma_wq(o, m + 2)
        if m % 2 == 0 and m // 2 + 1 < 8: new += dma_x(o, m // 2 + 1)
        for _ in range(o.kvat_l.count(m)): new += kv.pop(0)
        if o.stage and m in o.stat_l: new += stage_ld(o, 'KV'[o.stat_l.index(m)])
        if m == 14: new += kv.pop(0) + kv.pop(0)
        if m == 16: new += kv.pop(0)
        barrier_hooks.append(lambda new=new: vq.extend(new))
        extra = []
        if n == 15:
            head = sum(rounds[:3], []); del rounds[:3]
            extra = [[]] * 10 + [head[i:i + 2] for i in range(0, len(head), 2)]
        gemm_kstep(s, mf, regs('a', KB + 32 * buf, 32) + regs('a', XF + 20 * buf, 20), reads_for(m) if m < 16 else rd_k(0), dict(tags=tags), extra, o.qevery, vq, o.qpack)
    assert not vq
    for g in extra: s.add(g)
    stamp(s, o, 3)
    kvq = sum(kv, [])
    qk = qk_list(False)
    mx = []
    for j in range(4):
        t = Seg('t'); max8(t, j, MX + j, False); mx.append(t.items)
    done = 3
    pend = []
    first = True
    for r in rounds:
        if kvq: s.add(kvq.pop(0))
        k = 0
        for it in r:
            s.add(it); k += 1
            if pend and k % 2 == 0:
                if first: s.wait(regs=regs('a', KB, 32)); first = False
                s.add(pend.pop(0))
        done += 1
        if done >= 8 and (done - 8) % 4 == 0:
            j = (done - 8) // 4
            pend += qk[8 * j:8 * j + 8]
            if j >= 1: s.add(mx[j - 1])
    s('s_nop 0')
    for i, it in enumerate(qk[32:40]):
        s.add(it)
        if i in (2, 3, 4, 5): s.add(mx[3][i - 2])
    assert not pend
    s.add(kvq)
    s('s_nop 6')
    max8(s, 4, MX + 4, False)
    set_nm(s)
    for j in range(5):
        for i in range(0, 8, 2): s('v_pk_add_f32 %s, %s, %s' % (vr(S + 8 * j + i, 2), vr(S + 8 * j + i, 2), vr(NM + 4 * j, 2)))
    stamp(s, o, 4)
    return s

def qk_list(cinit):
    out = []
    for j in range(5):
        for r in range(8):
            kb, sidx = r & 1, r >> 1
            d = vr(S + 8 * j + 4 * kb, 4)
            cc = d if sidx else (vr(NM + 4 * j, 4) if cinit else '0')
            out.append(mfma(d, ar(KB + 4 * (4 * kb + sidx), 4), ar(Q + 16 * j + 4 * sidx, 4), cc))
    return out
def pv_list(o, par, vb, zero=False):
    out = []
    for j in range(5):
        pj = vr(P + 20 * par + 4 * j, 4)
        out += [mfma(oreg(j, db), ar(vb + 4 * db, 4), pj, '0' if zero else oreg(j, db)) for db in range(8)]
        if o.lsum: out.append(mfma(ar(LS + 4 * j, 4), ar(ONES, 4), pj, '0' if zero else ar(LS + 4 * j, 4)))
    return out
def rowred(s, regs_, tmps, op):
    for sw in ('v_permlane32_swap_b32', 'v_permlane16_swap_b32'):
        for r, t in zip(regs_, tmps): s('v_mov_b32 v%d, v%d' % (t, r))
        for r, t in zip(regs_, tmps): s('%s v%d, v%d' % (sw, t, r))
        for r, t in zip(regs_, tmps): s('%s v%d, v%d, v%d' % (op, r, r, t))
def max8(s, j, m, acc):
    b = S + 8 * j
    if acc: s('v_max3_f32 v%d, v%d, v%d, v%d' % (m, m, b, b + 1))
    else: s('v_max_f32 v%d, v%d, v%d' % (m, b, b + 1))
    for i in range(1, 4): s('v_max3_f32 v%d, v%d, v%d, v%d' % (m, m, b + 2 * i, b + 2 * i + 1))
MX, MT = L, 48
def set_nm(s):
    rowred(s, [MX + j for j in range(5)], [MT + j for j in range(5)], 'v_max_f32')
    for j in range(5): s('v_sub_f32 v%d, 0, v%d' % (NM + 4 * j, MX + j))
    for j in range(5):
        for i in range(1, 4): s('v_mov_b32 v%d, v%d' % (NM + 4 * j + i, NM + 4 * j))

def sm_exp(i): return I('v_exp_f32 v%d, v%d' % (S + i, S + i))
def sm_post(o, i, par):
    j = i >> 3
    out = [] if o.lsum else [I('v_add_f32 v%d, v%d, v%d' % (L + j, L + j, S + i))]
    if i & 1: out.append(I('v_cvt_pk_bf16_f32 v%d, v%d, v%d' % (P + 20 * par + 4 * j + ((i & 7) >> 1), S + i - 1, S + i)))
    return out
def sm_gap(o, G, par):
    if o.lsum:
        if G >= 40:
            if (G - 40) % 9 == 8: return []
            G -= (G - 40) // 9
    x = G - 12
    if x < 0: x += 80; par ^= 1
    i = x >> 1
    return [sm_exp(i)] if x % 2 == 0 else sm_post(o, i, par)

def kv_schedule(o):
    q = [(k, j, g) for k, j in KVSEQ[o.ninit + 2 * o.stage:] for g in capped(o, dma_kv(o, k, j))]
    free = lambda kind, j: 2 * (j - 5) + 1 if kind == 'K' else 2 * (j - 4) + 1
    sched = {h: [] for h in range(1, 64)}
    n = len(q)
    slow = max(0, 4 * o.lasth - n)
    h, i = 1, 0
    while i < n:
        cap = 4
        h0 = 2 * o.stage
        if o.uni: cap = min(4, max(0, (n * (h - h0) + o.lasth - h0 - 1) // (o.lasth - h0) - i))
        elif slow > 0: cap = 3
        k = 0
        while k < cap and i < n and free(q[i][0], q[i][1]) <= h:
            sched[h].append(q[i][2]); i += 1; k += 1
        slow -= 4 - k
        h += 1
    if o.stage:
        assert o.ninit == 10
        sched[1] = stage_wr(o, 'K') + sched[1]
        sched[3] = stage_wr(o, 'V') + sched[3]
    return sched

def gen_s0(o):
    s = Seg('s0')
    s.label('L_s0')
    if o.lsum:
        s('v_mov_b32 v%d, 0x3f803f80' % L)
        for k in range(4): s('v_accvgpr_write_b32 a%d, v%d' % (ONES + k, L))
    else:
        for j in range(5): s('v_mov_b32 v%d, 0' % (L + j))
    if o.cap2: s('s_and_b32 s3, s39, 1'); s('s_cselect_b64 vcc, -1, 0')
    s.wait(tags=['K1', 'V0'])
    s('s_barrier')
    s.add(rd_k(1))
    dm = spread(o.sched[1] + [[I('buffer_atomic_add v%d, v%d, s[%d:%d], 0 offen' % (CNT, CA, SD, SD + 3))]], [1, 8, 15, 22, 29])
    for i in range(35):
        if i < 34: s.add(sm_exp(i))
        else: s('s_nop 0')
        if i > 0: s.add(sm_post(o, i - 1, 0))
        s.add(dm.get(i, []))
    return s

def step(s, o, t, more1=(), more2=(), wtags=(), valu1=None):
    par = t & 1
    if t % 2 == 1: tstamp(s, o, 'a', t // 2)
    mf = qk_list(True) + pv_list(o, par ^ 1, VB, t == 1)
    NG = len(mf)
    fill = {g: [] for g in range(NG)}
    empty = [g for g in range(NG) if not sm_gap(o, g, par)]
    if o.lsum:
        g1 = [g for g in empty if g < 32]; g2 = [g for g in empty if 42 < g < NG - 8]
    else: g1, g2 = [1, 5, 9, 13, 17, 21, 25, 29], [45, 49, 53, 57, 61, 65, 69, 73]
    for g, l in spread(rd_v(VB, t - 1), g1).items(): fill[g] += l
    for g, l in spread(rd_k(t + 1) if t < 31 else rd_v(KB, 31), g2).items(): fill[g] += l
    for base, end, dm in ((2, 40, o.sched[2 * t] + list(more1)), (42, NG, o.sched[2 * t + 1] + list(more2))):
        n = len(dm)
        for i, g in enumerate(dm):
            pos = base + ((end - base) * i) // n
            if o.lsum:
                while len(sm_gap(o, pos, par)) + len(fill[pos]) > 1 or (sm_gap(o, pos, par) and sm_gap(o, pos, par)[0].kind == 'trans'): pos += 1
            else: pos &= ~1
            fill[pos] += g
    if valu1:
        for g, l in spread(valu1, list(range(33, 40))).items(): fill[g] += l
    for g in range(NG):
        if g == 0: s.wait(regs=regs('a', KB, 32))
        if g == 40: s.wait(regs=regs('a', VB, 32))
        s.add(mf[g])
        if g == 40:
            s.wait(tags=(['K%d' % (t + 1)] if t < 31 else []) + ['V%d' % t] + list(wtags))
            s('s_barrier')
        s.add(sm_gap(o, g, par))
        s.add(fill[g])

def gen_attn(o):
    s = Seg('attn')
    pre = Seg('t')
    t0 = DWO
    pre('v_lshrrev_b32 v%d, 8, v%d' % (t0 + 1, DV))
    pre('v_and_b32 v%d, 0x70, v%d' % (t0, DV))
    pre('v_lshl_add_u32 v%d, v%d, 10, v%d' % (t0, t0 + 1, t0))
    pre('v_bfe_u32 v%d, v%d, 7, 1' % (t0 + 1, DV))
    pre('v_mul_u32_u24 v%d, 0x20200, v%d' % (t0 + 1, t0 + 1))
    pre('v_add_u32 v%d, v%d, v%d' % (t0, t0, t0 + 1))
    pre('v_xor_b32 v%d, 0x20200, v%d' % (t0 + 1, t0))
    pre('v_add_u32 v%d, %d, v%d' % (t0 + 2, 2 * 3072, t0))
    pre('v_add_u32 v%d, %d, v%d' % (t0 + 3, 3 * 3072, t0 + 1))
    pre('v_add_u32 v%d, %d, v%d' % (t0 + 1, 3072, t0 + 1))
    for t in range(4): pre('v_xor_b32 v%d, 0x20000, v%d' % (t0 + 4 + t, t0 + t))
    cnt = [[I('s_lshl_b32 s%d, s%d, 3' % (sA, sG)), I('buffer_load_dword v%d, off, s[%d:%d], s%d offset:128 sc1' % (CNT, SD, SD + 3, sA), tag='cnt')]]
    busy = lambda h: any(o.sched[x] for x in range(h, 64))
    early0 = not busy(59)
    for t in range(1, 32):
        if t == 29: step(s, o, t, valu1=pre.items, more2=dma_wo(o, 0) if early0 else [])
        elif t == 30: step(s, o, t, more2=cnt + ([] if early0 else dma_wo(o, 0)) + dma_wo(o, 1) + (dma_wo(o, 2) if early0 else []))
        elif t == 31: step(s, o, t, more1=[] if early0 else dma_wo(o, 2), more2=dma_wo(o, 3), wtags=['cnt'])
        else: step(s, o, t)
        if t == 26 and o.pfo:
            s('v_lshlrev_b32 v%d, 3, v%d' % (CA, LANE16))
            s('s_lshl_b32 s3, s39, 15'); s('s_lshl_b32 s36, s%d, 13' % sW); s('s_add_u32 s3, s3, s36')
            s('buffer_load_dword v%d, v%d, s[%d:%d], s3 offen' % (CA + 1, CA, SWO, SWO + 3), dummy=True)
    return s

def gen_epi(o):
    s = Seg('epi')
    R = NM
    v = Seg('t')
    def inv(j):
        if o.lsum: v('v_accvgpr_read_b32 v%d, a%d' % (L + j, LS + 4 * j))
        v('v_cmp_nge_f32 %s, s%d, v%d' % (sr(sM0 if j == 0 else sM1, 2), sTHR, L + j))
        v('v_rcp_f32 v%d, v%d' % (R + 2 * j, L + j))
        if j: v('s_or_b64 %s, %s, %s' % (sr(sM0, 2), sr(sM0, 2), sr(sM1, 2)))
        else: v('s_nop 0')
        v('v_mov_b32 v%d, v%d' % (R + 2 * j + 1, R + 2 * j))
    if not o.lsum:
        rowred(v, [L + j for j in range(5)], [90 + j for j in range(5)], 'v_add_f32')
        for j in range(5): inv(j)
    def vote():
        v('s_cmp_lg_u64 %s, 0' % sr(sM0, 2))
        v('s_cselect_b32 s3, 1, 0')
        v('v_mov_b32 v95, s3')
        v('s_lshl_b32 s3, s%d, 2' % sW); v('s_add_u32 s3, s3, 0x%x' % FLG)
        v('v_mov_b32 v96, s3')
        v('ds_write_b32 v96, v95', lds=(lambda c: (FLG, FLG + 16, ev(tg('flg'), c))))
    tg = lambda n: (lambda c: '%s%d' % (n, c.get('redo', 0)))
    v('s_mul_i32 s3, s%d, 20480' % sW); v('s_add_u32 s3, s3, 0x%x' % EX)
    v('v_add_u32 v97, s3, v%d' % LANE16)
    v('s_xor_b32 s3, s%d, 2' % sW); v('s_mul_i32 s3, s3, 20480'); v('s_add_u32 s3, s3, 0x%x' % EX)
    v('v_add_u32 v98, s3, v%d' % LANE16)
    exr = (lambda c: (EX, EX + 81920, ev(tg('ex'), c)))
    for j in range(5):
        if o.lsum: inv(j)
        if j == 4: vote()
        for sidx in range(4):
            f = 16 * j + 4 * sidx
            for e in range(2):
                k, b = otile(j, 2 * sidx + e)
                if k == 'a':
                    for i in range(4): v('v_accvgpr_read_b32 v%d, a%d' % (90 + i, b + i))
                    b = 90
                v('v_pk_mul_f32 %s, %s, %s' % (vr(b, 2), vr(b, 2), vr(R + 2 * j, 2)))
                v('v_pk_mul_f32 %s, %s, %s' % (vr(b + 2, 2), vr(b + 2, 2), vr(R + 2 * j, 2)))
                v('v_cvt_pk_bf16_f32 v%d, v%d, v%d' % (f + 2 * e, b, b + 1))
                v('v_cvt_pk_bf16_f32 v%d, v%d, v%d' % (f + 2 * e + 1, b + 2, b + 3))
            v('ds_write_b128 v97, %s offset:%d' % (vr(f, 4), 1024 * (4 * j + sidx)), lds=exr)
    work = v.items
    mf = pv_list(o, 1, KB)
    s.wait(regs=regs('a', KB, 32))
    for g in range(len(mf)):
        s.add(mf[g])
        if g == 0: s('s_barrier')
        if g < 12: s.add(sm_gap(o, g, 0))
        else: s.add(work[:2]); work = work[2:]
    stamp(s, o, 5)
    s.add(work)
    s('v_mov_b32 v96, 0x%x' % FLG)
    s.wait(lgkm_all=True, tags=['wo0'])
    s('s_barrier')
    s('ds_read_b128 v[92:95], v96', lds=(lambda c: (FLG, FLG + 16, ev(tg('flg'), c))))
    s('s_mul_i32 s3, s%d, 0x2080' % sP)
    s('v_xor_b32 v84, s3, v%d' % VA)
    for k in range(1, 4): s('v_xor_b32 v%d, %d, v84' % (84 + k, 32 * k))
    for k in range(4): s('v_subrev_u32 v%d, 0x%x, v%d' % (80 + k, V0, 84 + k))
    s('v_readfirstlane_b32 s3, v%d' % CNT)
    s.wait(regs=regs('v', 92, 4))
    s('v_or_b32 v92, v92, v93'); s('v_or3_b32 v92, v92, v94, v95')
    s('s_cmp_lt_u32 s3, 16')
    s('v_readfirstlane_b32 s36, v92')
    s('s_cbranch_scc1 L_cntspin')
    s.label('L_cntok')
    s('s_andn2_b32 s36, s36, s%d' % sREDO)
    if not o.diag: s('s_cbranch_scc1 L_redo')
    stamp(s, o, 6)
    return s

def gen_spin(s, name, back, load, cond, sCNT=sCNT):
    s.label(name)
    s('s_mov_b32 s%d, 0' % sCNT)
    s.label(name + '_l')
    s('s_sleep 4')
    s(load)
    s('s_waitcnt vmcnt(0)')
    s('s_add_u32 s%d, s%d, 1' % (sCNT, sCNT))
    s('s_cmp_gt_u32 s%d, 0x40000' % sCNT)
    s('s_cbranch_scc1 %s' % back)
    for l in cond: s(l.replace('@', name + '_l'))
    s('s_branch %s' % back)

def gen_redo(o):
    s = Seg('redo')
    s.label('L_redo')
    s('s_mov_b32 s%d, 1' % sREDO)
    s('s_waitcnt vmcnt(0) lgkmcnt(0)')
    s('s_barrier')
    t = 56
    s('v_lshrrev_b32 v%d, 4, v%d' % (t, LANE16))
    s('v_and_b32 v%d, 15, v%d' % (t + 1, t))
    s('v_and_b32 v%d, 48, v%d' % (t, t))
    s('v_lshl_add_u32 v%d, v%d, 8, v%d' % (t, t + 1, t))
    s('v_add_u32 v%d, 0x1000, v%d' % (t + 1, t))
    for j in range(5): s('v_mov_b32 v%d, 0xff800000' % (MX + j))
    s('s_mov_b32 s%d, 0' % sA)
    lp = Seg('redo_loop')
    lp.label('L_redo_loop')
    for kb in range(2):
        for k in range(4): lp('buffer_load_dwordx4 %s, v%d, s[%d:%d], s%d offen offset:%d' % (ar(KB + 4 * (4 * kb + k), 4), t + kb, SK, SK + 3, sA, 64 * k))
    lp('s_waitcnt vmcnt(0)')
    lp.add(qk_list(False))
    lp('s_nop 7')
    for j in range(5): max8(lp, j, MX + j, True)
    lp('s_add_u32 s%d, s%d, 0x2000' % (sA, sA))
    lp('s_cmp_lt_u32 s%d, 0x40000' % sA)
    lp('s_cbranch_scc1 L_redo_loop')
    e = Seg('redo_end')
    set_nm(e)
    kv_start(e, o)
    for k in range(8): e('v_subrev_u32 v%d, 0x4000, v%d' % (VA2 + k, VA + k))
    for k, j in KVSEQ[:o.ninit]: e.add(dma_kv(o, k, j))
    if o.stage: e.add(stage_ld(o, 'K') + stage_ld(o, 'V'))
    e('v_mov_b32 v%d, 0x40000000' % CA)
    e.wait(tags=['K0'])
    e('s_barrier')
    e.add(rd_k(0))
    e.wait(regs=regs('a', KB, 32))
    e.add(qk_list(True))
    e('s_nop 7')
    e('s_branch L_s0')
    return s, lp, e

E0V, E1V = 144, 0
PO = 88
AD, OD, IA, PL, C10, C01, AD2, OD2, AC, RT = 224, 225, 226, 227, 228, 229, 230, 231, 232, 248
def etile(c, jn, j): return (E1V if c & 1 else E0V) + 8 * (5 * (jn >> 1) + j) + 4 * (jn & 1)
def poll_txt(): return 'buffer_load_dword v%d, v%d, s[%d:%d], 0 offen sc1' % (PL, IA, SF, SF + 3)
def flag_ops(o, c):
    return [I('v_mov_b32 v89, %d' % (c + 1)), I('buffer_store_dword v89, v%d, s[%d:%d], 0 offen %s' % (FLA, SF, SF + 3, o.fl_pol))]
def load_groups(o, c, dst, sreg, g=SG):
    out = []
    for k in range(10):
        off, ad = (2 * PST * k, AD) if k < 8 else (8 * PST * (k - 8), AD2)
        out.append([I('s_add_u32 s%d, s%d, 0x%x' % (sreg, sCP + c, off)),
                    I('buffer_load_dwordx4 %s, v%d, s[%d:%d], s%d offen %s' % (dst(k), ad, g, g + 3, sreg, o.rd_pol))])
    return out
def red_addr(o):
    s = Seg('t')
    t = RT
    s('s_lshl_b32 s3, s%d, 4' % sG); s('s_and_b32 s62, s38, %d' % (15 & ~(16 // o.rep - 1))); s('s_add_u32 s3, s3, s62'); s('s_lshl_b32 s3, s3, 8')
    s('v_lshrrev_b32 v%d, 2, v%d' % (t, LANE16)); s('v_add_u32 v%d, s3, v%d' % (IA, t))
    s('v_lshrrev_b32 v%d, 4, v%d' % (t, LANE16))
    s('v_and_b32 v%d, 7, v%d' % (t + 2, t))
    s('s_and_b32 s3, s38, 3'); s('s_mul_i32 s63, s3, 5')
    s('s_lshr_b32 s3, s38, 2')
    s('s_lshr_b32 s36, s3, 1'); s('s_lshl_b32 s36, s36, 3'); s('s_and_b32 s3, s3, 1'); s('s_add_u32 s36, s36, s3')
    s('s_mul_i32 s3, s36, 10240'); s('s_lshl_b32 s62, s%d, 8' % sW); s('s_add_u32 s%d, s3, s62' % sM0)
    s('s_mul_i32 s3, s39, %d' % (160 * 2048)); s('s_lshl_b32 s62, s37, 10'); s('s_add_u32 s3, s3, s62')
    s('s_lshl_b32 s62, s36, 6'); s('s_add_u32 s3, s3, s62'); s('s_lshl_b32 s62, s%d, 3' % sW); s('s_add_u32 s%d, s3, s62' % (sM0 + 1))
    s('v_bfe_u32 v%d, v%d, 3, 2' % (t + 1, t))
    s('v_add_u32 v%d, s63, v%d' % (t + 3, t + 1))
    s('v_lshl_add_u32 v%d, v%d, 3, v%d' % (t + 4, t + 3, t + 2))
    s('v_lshrrev_b32 v%d, 1, v%d' % (t + 5, t + 3))
    s('v_and_b32 v%d, 15, v%d' % (t + 6, t + 4))
    s('v_lshlrev_b32 v%d, 4, v%d' % (t + 6, t + 6))
    s('v_lshl_add_u32 v%d, v%d, 10, v%d' % (t + 6, t + 5, t + 6))
    s('v_lshrrev_b32 v%d, 5, v%d' % (t + 1, t))
    s('v_mul_u32_u24 v%d, %d, v%d' % (t + 5, PST, t + 1))
    s('v_add3_u32 v%d, v%d, v%d, s%d' % (AD, t + 6, t + 5, sM0))
    s('v_lshlrev_b32 v%d, 5, v%d' % (t + 1, t + 1))
    s('v_lshl_add_u32 v%d, v%d, 11, v%d' % (t + 4, t + 4, t + 1))
    s('v_add_u32 v%d, s%d, v%d' % (OD, sM0 + 1, t + 4))
    s('s_add_u32 s63, s63, 4')
    s('s_lshr_b32 s3, s63, 1'); s('s_lshl_b32 s3, s3, 10'); s('s_and_b32 s62, s63, 1'); s('s_lshl_b32 s62, s62, 7'); s('s_add_u32 s3, s3, s62')
    s('s_add_u32 s3, s3, s%d' % sM0)
    s('v_lshrrev_b32 v%d, 3, v%d' % (t + 3, t))
    s('v_mul_u32_u24 v%d, %d, v%d' % (t + 5, PST, t + 3))
    s('v_lshl_add_u32 v%d, v%d, 4, v%d' % (t + 5, t + 2, t + 5))
    s('v_add_u32 v%d, s3, v%d' % (AD2, t + 5))
    s('s_lshl_b32 s3, s63, 14'); s('s_add_u32 s3, s3, s%d' % (sM0 + 1))
    s('v_lshl_add_u32 v%d, v%d, 11, v%d' % (t + 4, t + 2, t + 1))
    s('v_and_b32 v%d, 24, v%d' % (t + 1, t))
    s('v_cmp_eq_u32 vcc, 0, v%d' % (t + 1))
    s('v_add_u32 v%d, s3, v%d' % (t + 4, t + 4))
    s('v_mov_b32 v%d, 0x40000000' % (t + 7))
    s('v_cndmask_b32 v%d, v%d, v%d, vcc' % (OD2, t + 7, t + 4))
    s('v_mov_b32 v%d, 0x3f80' % C10); s('v_mov_b32 v%d, 0x3f800000' % C01)
    return s.items

LA, LO, LD, LA2, LD2, QAD, CL = 108, 109, 110, 111, 112, 113, 114
ODS = ((116, 117), (118, 119), (90, 91))
sI0, sI1, sN, sDB, sIT = 13, 14, 15, 12, 7
def red_addr_dyn(o):
    s = Seg('t')
    t = RT
    s('s_lshl_b32 s3, s%d, 4' % sG); s('s_and_b32 s62, s38, %d' % (15 & ~(16 // o.rep - 1))); s('s_add_u32 s3, s3, s62'); s('s_lshl_b32 s3, s3, 8')
    s('v_lshrrev_b32 v%d, 2, v%d' % (t, LANE16)); s('v_add_u32 v%d, s3, v%d' % (IA, t))
    s('v_lshrrev_b32 v%d, 4, v%d' % (t, LANE16))
    s('v_and_b32 v%d, 7, v%d' % (t + 2, t))
    s('v_lshrrev_b32 v%d, 5, v%d' % (t + 1, t))
    s('v_bfe_u32 v%d, v%d, 3, 2' % (LO, t))
    s('v_mul_u32_u24 v%d, %d, v%d' % (t + 5, PST, t + 1))
    s('v_lshl_add_u32 v%d, v%d, 4, v%d' % (LA, t + 2, t + 5))
    s('v_lshlrev_b32 v%d, 5, v%d' % (t + 1, t + 1))
    s('v_lshl_add_u32 v%d, v%d, 11, v%d' % (t + 4, t + 2, t + 1))
    s('v_lshl_add_u32 v%d, v%d, 14, v%d' % (LD, LO, t + 4))
    s('v_cmp_eq_u32 vcc, 0, v%d' % LO)
    s('v_lshrrev_b32 v%d, 3, v%d' % (t + 3, t))
    s('v_mov_b32 v%d, 0x40000000' % (t + 7))
    s('v_cndmask_b32 v%d, v%d, v%d, vcc' % (LD2, t + 7, t + 4))
    s('v_mul_u32_u24 v%d, %d, v%d' % (t + 5, PST, t + 3))
    s('v_lshl_add_u32 v%d, v%d, 4, v%d' % (LA2, t + 2, t + 5))
    if o.sl8:
        s('v_lshl_add_u32 v%d, v%d, 8, v%d' % (LA2, LO, LA))
        s('v_lshl_add_u32 v%d, v%d, 3, v%d' % (LD2, LO, t + 4))
    s('s_mul_i32 s3, s39, %d' % (160 * 2048)); s('s_lshl_b32 s62, s37, 10'); s('s_add_u32 s%d, s3, s62' % sDB)
    s('s_lshl_b32 s3, s%d, 7' % sG); s('s_add_u32 s3, s3, 0x10000')
    s('v_min_u32 v%d, 1, v%d' % (t + 3, t)); s('v_lshlrev_b32 v%d, 30, v%d' % (t + 3, t + 3)); s('v_add_u32 v%d, s3, v%d' % (QAD, t + 3))
    s('v_mov_b32 v%d, 0x3f80' % C10); s('v_mov_b32 v%d, 0x3f800000' % C01)
    return s.items

def gen_op(o):
    s = Seg('op')
    exr = (lambda c: (EX, EX + 81920, 'ex%d' % c.get('redo', 0)))
    KSL = [(4 * c + r, [(2 * a + e, kk) for kk in range(2) for e in range(2)]) for c in range(4) for a in range(2) for r in range(4)]
    def reads_for(ks):
        u, fr = KSL[ks]
        base = OSLOT[u % 8]
        areg, imm = (80, base) if base < V0 else (84, base - V0)
        return [I('ds_read_b64_tr_b16 %s, v%d offset:%d' % (ar(KB + 16 * (ks & 1) + 4 * i + 2 * e, 2), areg + jn, imm + 8192 * kk + 4096 * e), lds=(base, base + 16384, 'wo%d' % u))
                for i, (jn, kk) in enumerate(fr) for e in range(2)]
    def conv(c, a):
        out = []
        for j in range(5):
            b = etile(c, 2 * a, j)
            cv = [I('v_cvt_pk_bf16_f32 v%d, v%d, v%d' % (b + i, b + 2 * i, b + 2 * i + 1)) for i in range(4)]
            out.append(cv[:2]); out.append(cv[2:])
            out.append([I('s_add_u32 s%d, s%d, 0x%x' % (sA, sCP + c, (10 * a + j) * 1024)),
                        I('buffer_store_dwordx4 %s, v%d, s[%d:%d], s%d offen %s' % (vr(b, 4), PO, SP_, SP_ + 3, sA, o.st_pol), tag='st%d' % c)])
        return out
    s('s_mov_b32 s%d, 0' % sREDO)
    s.add(reads_for(0))
    part = [I('ds_read_b128 %s, v98 offset:%d' % (ar(PART + 4 * f, 4), 1024 * f), lds=exr) for f in range(20)]
    own = [I('ds_read_b128 %s, v97 offset:%d' % (ar(OWN + 4 * f, 4), 1024 * f), lds=exr) for f in range(20)]
    s('s_mul_i32 s3, s%d, 80' % sP); s('s_mul_i32 s36, s%d, 5' % sHF); s('s_add_u32 s3, s3, s36'); s('s_lshl_b32 s3, s3, 10')
    s('v_add_u32 v%d, s3, v%d' % (PO, LANE16))
    extra = [part[i:i + 2] for i in range(0, 20, 2)] + [own[i:i + 2] for i in range(0, 20, 2)]
    vq = []
    ra = red_addr_dyn(o) if o.dyn else red_addr(o)
    seen = set()
    first_use, last_use = {}, {}
    for ks, (u, fr) in enumerate(KSL):
        first_use.setdefault(u, ks); last_use[u] = ks
    pending = list(range(4, 16))
    for ks, (u, fr) in enumerate(KSL):
        c, phi, dh = u >> 2, (u >> 1) & 1, u & 1
        if ks % 2 == 0: tstamp(s, o, 'o', ks // 2)
        buf = ks & 1
        mf = []
        for i, (jn, kk) in enumerate(fr):
            sidx = 2 * dh + kk
            first = (c, jn) not in seen; seen.add((c, jn))
            for j in range(5):
                d = vr(etile(c, jn, j), 4)
                if phi: bf = ar(PART + 16 * j + 4 * sidx, 4)
                elif c == 0: bf = vr(16 * j + 4 * sidx, 4)
                else: bf = ar(OWN + 16 * j + 4 * sidx, 4)
                mf.append(mfma(d, ar(KB + 16 * buf + 4 * i, 4), bf, '0' if first else d))
        need = regs('a', KB + 16 * buf, 16)
        if phi and c == 0: need = need + regs('a', PART, 80)
        bar = None
        nxt = KSL[ks + 1][0] if ks + 1 < 32 else None
        if nxt is not None and first_use[nxt] == ks + 1:
            if nxt == 3: need = need + regs('a', OWN, 80) + regs('a', PART, 80)
            new = []
            for v in list(pending):
                ok = (v == 4 and nxt >= 1) or (5 <= v <= 7 and nxt >= 3) or (v >= 8 and last_use[v - 8] <= ks)
                if not ok: break
                new += dma_wo(o, v); pending.remove(v)
            bar = dict(tags=['wo%d' % nxt])
            barrier_hooks.append(lambda new=new: vq.extend(new))
        rds = reads_for(ks + 1) if nxt is not None else []
        if ks == 4: extra += [ra[i:i + 2] for i in range(0, len(ra), 2)]
        if ks % 4 == 0 and ks > 0:
            cv = [[]] * 2 + conv((ks - 4) >> 3, ((ks - 4) >> 2) & 1)
            extra[0:0] = cv
        for cc, at in enumerate(int(x) for x in o.fl.split(',')):
            if ks == at: extra.insert(0, [Wait(tags=['st%d' % cc])] + flag_ops(o, cc))
        for x in (o.cfl.split(',') if o.cfl else []):
            cc, at = (int(y) for y in x.split(':'))
            if ks == at: extra.insert(0, [CondOps(['st%d' % cc], [i.text for i in flag_ops(o, cc)], 43)])
        if o.early:
            if ks == o.epoll: extra.insert(0, [I(poll_txt(), tag='poll')])
            if ks == o.epoll + 2:
                extra += [[I('s_mov_b32 s%d, s%d' % (SG2, SG)), I('s_mov_b32 s%d, s%d' % (SG2 + 1, SG + 1))],
                          [Wait(regs=[('v', PL)]), I('v_cmp_gt_u32 vcc, 1, v%d' % PL), I('s_mov_b32 s%d, 0x20000' % (SG2 + 3)), I('s_cmp_eq_u64 vcc, 0'),
                           I('s_cselect_b32 s%d, 0x%x, 0' % (SG2 + 2, 16 * PST)), I('s_cselect_b32 s%d, 1, 0' % sE)]]
                for g in load_groups(o, 0, lambda k: vr(144 + 4 * k, 4), sB, SG2): extra += [g] + [[]] * (o.ldevery - 1)
        if o.dyn and o.eclaim and ks == o.eclaim:
            extra.insert(0, [I('v_mov_b32 v%d, %d' % (CL, o.nb)), I('buffer_atomic_add v%d, v%d, s[%d:%d], 0 offen sc0' % (CL, QAD, SF, SF + 3), tag='claim'), I(poll_txt(), tag='poll')])
        elif ks == 30 and not (o.dyn and o.eclaim): extra.insert(0 if o.early else len(extra), [I(poll_txt(), tag='poll')])
        gemm_kstep(s, mf, need, rds, bar, extra, o.oevery, vq)
        if ks % 8 == 7: stamp(s, o, 7 + c)
    extra = [g for g in extra if g]
    assert not extra and not vq and not pending, (len(extra), len(vq), pending)
    s('s_nop 3')
    for g in conv(3, 1): s.add(g)
    stamp(s, o, 11)
    if o.early:
        s('s_cmp_lg_u32 s%d, 0' % sE)
        s('s_cbranch_scc1 L_redE')
    return s

def summ_ops(s, buf, o2):
    a = AC
    for i in range(16): s('v_mov_b32 v%d, 0' % (a + i))
    for k in range(10):
        if k in (0, 4, 8): s.wait(regs=regs('v', buf + 4 * k, 16 if k < 8 else 8))
        for d in range(4):
            x = buf + 4 * k + d
            b = a + (8 if k >= 8 else 0)
            s('v_dot2c_f32_bf16 v%d, v%d, v%d' % (b + 2 * d, x, C10)); s('v_dot2c_f32_bf16 v%d, v%d, v%d' % (b + 2 * d + 1, x, C01))
    t = RT
    s('s_nop 2')
    for i in range(8): s('v_add_f32_dpp v%d, v%d, v%d row_ror:8 row_mask:0xf bank_mask:0xf' % (t + i, a + 8 + i, a + 8 + i))
    for i in range(8): s('v_mov_b32 v%d, v%d' % (a + 8 + i, t + i))
    s('s_nop 0')
    for i in range(8): s('v_permlane16_swap_b32 v%d, v%d' % (t + i, a + 8 + i))
    for i in range(8): s('v_add_f32 v%d, v%d, v%d' % (a + 8 + i, a + 8 + i, t + i))
    for b in (a, a + 8):
        for i in range(4): s('v_permlane32_swap_b32 v%d, v%d' % (b + i, b + 4 + i))
    for b in (a, a + 8):
        for i in range(4): s('v_add_f32 v%d, v%d, v%d' % (b + i, b + i, b + 4 + i))
    for n_, b in enumerate((a, a + 8)):
        s('v_cvt_pk_bf16_f32 v%d, v%d, v%d' % (o2 + 2 * n_, b, b + 1)); s('v_cvt_pk_bf16_f32 v%d, v%d, v%d' % (o2 + 2 * n_ + 1, b + 2, b + 3))

def gen_red_dyn(o):
    poll = poll_txt()
    BUF = (144, 184, 0)
    NB = o.nb
    NSL = 320 if o.sl8 else 256
    def chunk_of(s, dst, idx):
        if o.sl8: s('s_mul_i32 s%d, s%d, 52429' % (dst, idx)); s('s_lshr_b32 s%d, s%d, 22' % (dst, dst))
        else: s('s_lshr_b32 s%d, s%d, 6' % (dst, idx))
    def claim(s, n):
        s('v_mov_b32 v%d, %d' % (CL, n))
        s('buffer_atomic_add v%d, v%d, s[%d:%d], 0 offen sc0' % (CL, QAD, SF, SF + 3), tag='claim')
    def check(s, idx, name):
        chunk_of(s, sN, idx); s('s_add_u32 s%d, s%d, 1' % (sN, sN))
        s.wait(regs=[('v', PL)])
        s('v_cmp_gt_u32 vcc, s%d, v%d' % (sN, PL))
        s('s_cbranch_vccnz L_spin%s' % name)
        s.label('L_got%s' % name)
    def addr(s, idx, x):
        t = RT
        if o.sl8:
            s('s_sub_u32 s3, s%d, 1' % sN); s('s_mul_i32 s36, s3, 80'); s('s_sub_u32 s36, s%d, s36' % idx)
            if o.rotc: s('s_add_u32 s3, s3, s39'); s('s_and_b32 s3, s3, 3')
            s('s_bfe_u32 s62, s36, 0x10001'); s('s_lshl_b32 s62, s62, 2'); s('s_add_u32 s3, s3, s62'); s('s_lshl_b32 s3, s3, 1')
            s('s_and_b32 s62, s36, 1'); s('s_add_u32 s3, s3, s62')
            s('s_lshr_b32 s36, s36, 2')
            s('s_lshl_b32 s62, s3, 6'); s('s_lshl_b32 s63, s36, 14'); s('s_add_u32 s62, s62, s63'); s('s_add_u32 s62, s62, s%d' % sDB)
            s('v_add_u32 v%d, s62, v%d' % (ODS[x][0], LD2))
            s('s_mul_i32 s3, s3, 10'); s('s_lshr_b32 s62, s36, 1'); s('s_add_u32 s3, s3, s62'); s('s_lshl_b32 s3, s3, 10')
            s('s_and_b32 s36, s36, 1'); s('s_lshl_b32 s36, s36, 7'); s('s_add_u32 s3, s3, s36')
            s('v_add_u32 v%d, s3, v%d' % (AD, LA2))
            return
        s('s_lshr_b32 s3, s%d, 6' % idx)
        if o.rotc: s('s_add_u32 s3, s3, s39'); s('s_and_b32 s3, s3, 3')
        s('s_bfe_u32 s36, s%d, 0x10005' % idx); s('s_lshl_b32 s36, s36, 2'); s('s_add_u32 s3, s3, s36'); s('s_lshl_b32 s3, s3, 1')
        s('s_bfe_u32 s36, s%d, 0x10004' % idx); s('s_add_u32 s3, s3, s36')
        s('s_and_b32 s36, s%d, 3' % idx)
        s('s_mul_i32 s62, s3, 10240'); s('s_lshl_b32 s63, s36, 8'); s('s_add_u32 s%d, s62, s63' % sM0)
        s('s_lshl_b32 s62, s3, 3'); s('s_add_u32 s62, s62, s36'); s('s_lshl_b32 s62, s62, 3'); s('s_add_u32 s62, s62, s%d' % sDB)
        s('s_bfe_u32 s63, s%d, 0x20002' % idx); s('s_mul_i32 s63, s63, 5')
        s('v_add_u32 v%d, s63, v%d' % (t, LO))
        s('s_lshl_b32 s3, s63, 14'); s('s_add_u32 s62, s62, s3')
        s('v_lshrrev_b32 v%d, 1, v%d' % (t + 1, t))
        s('v_and_b32 v%d, 1, v%d' % (t, t))
        s('v_add_u32 v%d, s62, v%d' % (ODS[x][0], LD))
        s('v_lshlrev_b32 v%d, 7, v%d' % (t, t))
        s('s_add_u32 s62, s62, 0x10000')
        s('v_lshl_add_u32 v%d, v%d, 10, v%d' % (t, t + 1, t))
        s('v_add_u32 v%d, s62, v%d' % (ODS[x][1], LD2))
        s('v_add3_u32 v%d, v%d, v%d, s%d' % (AD, t, LA, sM0))
        s('s_lshr_b32 s3, s63, 1'); s('s_add_u32 s3, s3, 2'); s('s_lshl_b32 s3, s3, 10'); s('s_and_b32 s63, s63, 1'); s('s_lshl_b32 s63, s63, 7')
        s('s_add_u32 s3, s3, s63'); s('s_add_u32 s3, s3, s%d' % sM0)
        s('v_add_u32 v%d, s3, v%d' % (AD2, LA2))
    def loads(s, x, ks=range(10)):
        for k in ks:
            if o.sl8 and k >= 8: continue
            off, ad = (2 * PST * k, AD) if k < 8 else (8 * PST * (k - 8), AD2)
            s('s_mov_b32 s%d, 0x%x' % (sA, off))
            if o.rcap: s('s_waitcnt vmcnt(%d)' % o.rcap)
            s('buffer_load_dwordx4 %s, v%d, s[%d:%d], s%d offen %s' % (vr(BUF[x] + 4 * k, 4), ad, SG, SG + 3, sA, o.rd_pol))
    def finish(s, x):
        o2 = (100, 104, 92)[x]
        if o.sl8:
            a = AC
            for k in range(8):
                if k in (0, 4): s.wait(regs=regs('v', BUF[x] + 4 * k, 16))
                for d in range(4):
                    r = BUF[x] + 4 * k + d
                    if k == 0: s('v_lshlrev_b32 v%d, 16, v%d' % (a + 2 * d, r)); s('v_and_b32 v%d, 0xffff0000, v%d' % (a + 2 * d + 1, r))
                    else: s('v_dot2c_f32_bf16 v%d, v%d, v%d' % (a + 2 * d, r, C10)); s('v_dot2c_f32_bf16 v%d, v%d, v%d' % (a + 2 * d + 1, r, C01))
            s('s_nop 2')
            for i in range(4): s('v_permlane32_swap_b32 v%d, v%d' % (a + i, a + 4 + i))
            for i in range(4): s('v_add_f32 v%d, v%d, v%d' % (a + i, a + i, a + 4 + i))
            s('v_cvt_pk_bf16_f32 v%d, v%d, v%d' % (o2, a, a + 1)); s('v_cvt_pk_bf16_f32 v%d, v%d, v%d' % (o2 + 1, a + 2, a + 3))
            s('buffer_store_dwordx2 %s, v%d, s[%d:%d], 0 offen %s' % (vr(o2, 2), ODS[x][0], SO, SO + 3, o.out_pol))
            return
        summ_ops(s, BUF[x], o2)
        for h in range(2): s('buffer_store_dwordx2 %s, v%d, s[%d:%d], 0 offen %s' % (vr(o2 + 2 * h, 2), ODS[x][h], SO, SO + 3, o.out_pol))
    pre = Seg('redpre')
    for i in range(15): tstamp(pre, o, 'r', i)
    pre('s_mov_b32 s%d, 0' % sIT)
    if o.eclaim:
        pre.wait(tags=['claim', 'poll'])
        pre('v_readfirstlane_b32 s%d, v%d' % (sI0, CL))
        pre('s_lshr_b32 s%d, s%d, 6' % (sN, sI0)); pre('s_add_u32 s%d, s%d, 1' % (sN, sN))
        pre('v_cmp_gt_u32 vcc, s%d, v%d' % (sN, PL))
        pre('s_add_u32 s%d, s%d, 1' % (sI1, sI0))
        pre('s_cbranch_vccnz L_late')
        addr(pre, sI0, 0)
        loads(pre, 0, range(o.nfirst))
        pre.wait(tags=['st3'])
        pre.add(flag_ops(o, 3))
        loads(pre, 0, range(o.nfirst, 10))
        late = Seg('late')
        late.label('L_late')
        late('s_waitcnt vmcnt(0)')
        late.add(flag_ops(o, 3))
        late('s_cmp_ge_u32 s%d, 256' % sI0)
        late('s_cbranch_scc1 L_end')
        check(late, sI0, 'P')
        addr(late, sI0, 0)
        loads(late, 0)
        late('s_branch L_rb0')
        o.late = late
        tstamp(pre, o, 'r', 2)
        stamp(pre, o, 12)
    else:
        claim(pre, NB)
        pre.wait(tags=['st3'])
        pre.add(flag_ops(o, 3))
        tstamp(pre, o, 'r', 1)
        pre.wait(tags=['claim'])
        pre('v_readfirstlane_b32 s%d, v%d' % (sI0, CL))
        tstamp(pre, o, 'r', 2)
        stamp(pre, o, 12)
        pre('s_add_u32 s%d, s%d, 1' % (sI1, sI0))
        pre('s_cmp_ge_u32 s%d, %d' % (sI0, NSL))
        pre('s_cbranch_scc1 L_end')
        check(pre, sI0, 'P')
        addr(pre, sI0, 0)
        loads(pre, 0)
    if NB == 3:
        pre('s_cmp_ge_u32 s%d, %d' % (sI1, NSL))
        pre('s_cbranch_scc1 L_rlast0')
        check(pre, sI1, 'Q')
        addr(pre, sI1, 1)
        loads(pre, 1)
        pre('s_add_u32 s%d, s%d, 1' % (sI1, sI1))
    body, fin = [], []
    for x in range(NB):
        y = (x + NB - 1) % NB
        b = Seg('redbody%d' % x)
        b.label('L_rb%d' % x)
        if o.trace == 'r':
            b('%s s[%d:%d]' % (clk(o), sST + 6, sST + 7)); b('s_waitcnt lgkmcnt(0)'); b('s_add_u32 m0, s%d, 3' % sIT); b('s_nop 0'); b('v_writelane_b32 v%d, s%d, m0' % (STV + 2, sST + 6))
        b('s_add_u32 s%d, s%d, 1' % (sIT, sIT)); b('s_cmp_gt_u32 s%d, 400' % sIT); b('s_cbranch_scc1 L_rf%d' % x)
        b('s_cmp_ge_u32 s%d, %d' % (sI1, NSL))
        b('s_cbranch_scc1 L_rf%d' % x)
        check(b, sI1, 'B%d' % x)
        addr(b, sI1, y)
        claim(b, 1)
        b(poll, tag='poll')
        loads(b, y)
        finish(b, x)
        b.wait(regs=[('v', CL)])
        b('v_readfirstlane_b32 s%d, v%d' % (sI1, CL))
        if x == NB - 1: b('s_branch L_rb0')
        body.append(b)
        f = Seg('redfin%d' % x)
        f.label('L_rf%d' % x)
        finish(f, x)
        if NB == 3:
            if x == 2: f.label('L_rlast0')
            finish(f, (x + 1) % 3)
        if x < NB - 1: f('s_branch L_end')
        fin.append(f)
    e = Seg('redend')
    e.label('L_end')
    if o.stamps or o.trace:
        e('s_waitcnt vmcnt(0)')
        tstamp(e, o, 'r', 15)
        stamp(e, o, 13); stamp(e, o, 14); stamp(e, o, 15)
    e.label('L_done')
    e('s_endpgm')
    sp = Seg('spins')
    for n in ('P', 'B0', 'B1') + (('Q', 'B2') if NB == 3 else ()): gen_spin(sp, 'L_spin' + n, 'L_got' + n, poll, ['v_cmp_gt_u32 vcc, s%d, v%d' % (sN, PL), 's_cbranch_vccnz @'], 35)
    sp.label('L_cntspin')
    sp('s_lshl_b32 s%d, s%d, 3' % (sA, sG))
    gen_spin(sp, 'L_cntspin2', 'L_cntok', 'buffer_load_dword v%d, off, s[%d:%d], s%d offset:128 sc1' % (CNT, SD, SD + 3, sA),
             ['v_readfirstlane_b32 s3, v%d' % CNT, 's_cmp_lt_u32 s3, 16', 's_cbranch_scc1 @'], 35)
    return pre, body, fin, e, sp

def gen_red(o, early, sfx):
    s = Seg('red' + sfx)
    if sfx: s.label('L_red' + sfx)
    poll = poll_txt()
    BUF = [144, 184, 0, 40]
    def check(n):
        s.wait(regs=[('v', PL)])
        s('v_cmp_gt_u32 vcc, %d, v%d' % (n, PL))
        s('s_cbranch_vccnz L_spin%d%s' % (n, sfx))
        s.label('L_got%d%s' % (n, sfx))
    def loads(c):
        for g in load_groups(o, c, lambda k: vr(BUF[c] + 4 * k, 4), sA): s.add(g)
    def summ(c): summ_ops(s, BUF[c], 100 + 4 * (c & 1))
    def outst(c):
        o2 = 100 + 4 * (c & 1)
        s('buffer_store_dwordx2 %s, v%d, s[%d:%d], s%d offen %s' % (vr(o2, 2), OD, SO, SO + 3, sCW + c, o.out_pol))
        s('buffer_store_dwordx2 %s, v%d, s[%d:%d], s%d offen %s' % (vr(o2 + 2, 2), OD2, SO, SO + 3, sCW + c, o.out_pol))
    T = lambda i: tstamp(s, o, 'r', i)
    T(0)
    if o.fl3:
        s.wait(tags=['st3'])
        s.add(flag_ops(o, 3))
        check(1)
        T(1); stamp(s, o, 12)
        loads(0)
        T(2)
        check(2)
        T(3)
        s(poll, tag='poll')
        loads(1)
        T(4)
        summ(0)
    else:
        s.wait(regs=[('v', PL)], tags=['st2'])
        s.add(flag_ops(o, 2))
    if o.fl3: pass
    elif not early:
        check(1)
        T(1); stamp(s, o, 12)
        s.wait(regs=regs('v', BUF[0], 40))
        loads(0)
        T(2)
        s.wait(tags=['st3'])
        s.add(flag_ops(o, 3))
        check(2)
        T(3)
        s(poll, tag='poll')
        loads(1)
        T(4)
        summ(0)
    else:
        check(2)
        T(1); stamp(s, o, 12)
        loads(1)
        T(2)
        s.wait(tags=['st3'])
        s.add(flag_ops(o, 3))
        T(3)
        s(poll, tag='poll')
        T(4)
        summ(0)
    T(5)
    check(3)
    T(6); stamp(s, o, 13)
    s(poll, tag='poll')
    loads(2)
    outst(0)
    T(7)
    summ(1)
    T(8)
    check(4)
    T(9); stamp(s, o, 14)
    loads(3)
    outst(1)
    T(10)
    summ(2); outst(2)
    T(11)
    summ(3); outst(3)
    T(12)
    if o.stamps or o.trace:
        s('s_waitcnt vmcnt(0)')
        T(13); T(14); T(15)
        stamp(s, o, 15)
    if not sfx: s.label('L_done')
    s('s_endpgm')
    sp = Seg('spins')
    for n in (2, 3, 4) if early else (1, 2, 3, 4): gen_spin(sp, 'L_spin%d%s' % (n, sfx), 'L_got%d%s' % (n, sfx), poll, ['v_cmp_gt_u32 vcc, %d, v%d' % (n, PL), 's_cbranch_vccnz @'])
    if sfx: return s, sp
    sp.label('L_cntspin')
    sp('s_lshl_b32 s%d, s%d, 3' % (sA, sG))
    gen_spin(sp, 'L_cntspin2', 'L_cntok', 'buffer_load_dword v%d, off, s[%d:%d], s%d offset:128 sc1' % (CNT, SD, SD + 3, sA),
             ['v_readfirstlane_b32 s3, v%d' % CNT, 's_cmp_lt_u32 s3, 16', 's_cbranch_scc1 @'])
    return s, sp

def desc(name, vgpr, accum, sgpr):
    return '''.amdhsa_kernel %s
  .amdhsa_next_free_vgpr %d
  .amdhsa_next_free_sgpr %d
  .amdhsa_accum_offset %d
  .amdhsa_group_segment_fixed_size 0
  .amdhsa_kernarg_size 104
  .amdhsa_user_sgpr_count 2
  .amdhsa_user_sgpr_kernarg_segment_ptr 1
  .amdhsa_system_sgpr_workgroup_id_x 1
  .amdhsa_float_denorm_mode_32 3
.end_amdhsa_kernel
''' % (name, vgpr, sgpr, accum)

def build(o, path):
    o.kvat_l = [int(x) for x in o.kvat.split(',')]
    o.stat_l = [int(x) for x in o.stat.split(',')]
    o.sched = kv_schedule(o)
    Pace.slots = o.slots
    entry, q, s0, attn, epi = gen_entry(o), gen_q(o), gen_s0(o), gen_attn(o), gen_epi(o)
    r0, r1, r2 = gen_redo(o)
    op = gen_op(o)
    if o.dyn:
        pre, body, fin, e, spins = gen_red_dyn(o)
        tail_code = [pre] + body + fin + [e, spins]
        tails = [[pre] + body + body + [fin[0], e], [pre] + body + [body[0], fin[1], e]]
        xtails = [[pre, fin[0], e], [pre, body[0], fin[1], e]]
        if o.eclaim:
            assert o.nb == 2
            h = Seg('h'); h.items = pre.items[:[i for i, it in enumerate(pre.items) if it.kind == 'branch' and 'L_late' in it.text][0] + 1]
            xtails += [[h, o.late, body[0], body[1], fin[0], e], [h, o.late, fin[0], e]]
            tail_code.append(o.late)
        if o.nb == 3:
            h = Seg('h'); h.items = pre.items[:[i for i, it in enumerate(pre.items) if it.kind == 'branch' and 'L_rlast0' in it.text][0] + 1]
            l = Seg('l'); l.items = fin[2].items[[i for i, it in enumerate(fin[2].items) if it.kind == 'label' and it.name == 'L_rlast0'][0]:]
            xtails += [[pre, body[0], body[1], fin[2], e], [pre] + body + [body[0], body[1], fin[2], e], [h, l, e]]
    else:
        red, spins = gen_red(o, False, '')
        redE, spinsE = gen_red(o, True, 'E') if o.early else (Seg('x'), Seg('x'))
        tail_code = [red, redE, spins, spinsE]
        tails = [[red], [redE if o.early else red]]
    traces = []
    for redo in (0, 1):
        tr = [(entry, {}), (q, {})]
        for ps in range(redo + 1):
            if ps: tr += [(r0, {}), (r1, {}), (r1, {}), (r2, {})]
            tr += [(s0, {}), (attn, {}), (epi, dict(redo=ps))]
        tr += [(op, dict(redo=redo))] + [(x, {}) for x in tails[redo]]
        traces.append(('redo%d' % redo, tr))
    if o.dyn:
        base = traces[0][1][:-len(tails[0])]
        for i, xt in enumerate(xtails): traces.append(('x%d' % i, base + [(x, {}) for x in xt]))
    resolve([t for _, t in traces])
    allerr = []
    for name, tr in traces: allerr += check(tr, name)[0]
    for e in allerr[:30]: print('ERR', e)
    if allerr: print(len(allerr), 'errors')
    hdr = open('concat_heads__gqa_block_cached__gqa_block_cached__near_ridge.s.ref').read().split('; Override')[0]
    txt = hdr + '; @launch grid=(256,1,1) block=(256,1,1) lds=163840\n'
    txt += '.amdgcn_target "amdgcn-amd-amdhsa--gfx950"\n.text\n.globl %s\n.p2align 8\n.type %s,@function\n%s:\n' % (KN, KN, KN)
    for sg in [entry, q, s0, attn, epi, op] + tail_code + [r0, r1, r2]: txt += sg.text()
    txt += 'L_code_end:\n'
    txt += '.section .rodata,"a"\n.p2align 6\n' + desc(KN, 512, 256, 100)
    open(path, 'w').write(txt)
    return not allerr

if __name__ == '__main__':
    o = Opt()
    path = sys.argv[1]
    for kv in sys.argv[2:]:
        k, v = kv.split('=')
        cur = getattr(o, k)
        setattr(o, k, int(v) if isinstance(cur, int) else v.replace('+', ' '))
    ok = build(o, path)
    print('written', path, 'ok' if ok else 'WITH ERRORS', {h: len(v) for h, v in o.sched.items() if len(v) != 4 and (len(v) or h < 62)} if '-v' in path else '')
```

```python
import sys, struct, math
from fw import *

KN = "concat_heads__gqa_block_cached__gqa_block_cached__near_ridge_kernel"
WS_BYTES = 287834112
import os
PST = int(os.environ.get('PST', 172032))
INB = 256 * PST
def f2u(x): return struct.unpack('<I', struct.pack('<f', x))[0]

class Opt:
    kv_pol = 'nt'; w_pol = ''; st_pol = 'sc1'; rd_pol = 'sc1'; fl_pol = 'sc1'; out_pol = ''
    stamps = 0; cyc = 0; dbgst = 0; trace = ''
    force_redo = 0
    codepf = 1
    par = 1
    qevery = 3
    qpack = 0
    x1e = 0
    defer = 1
    slots = 1
    kvat = '5,7,9,11'
    cap = 4
    cap2 = 0
    rotp = 1
    stage = 0
    stat = '8,10'
    lsum = 1
    uni = 1
    lasth = 59
    ninit = 10
    oevery = 1
    flagat = 5
    rotc = 1
    dyn = 1
    nb = 3
    rep = 4
    fl = '13,23'
    cfl = ''
    rcap = 0
    sl8 = 1
    eclaim = 0
    nfirst = 5
    fl3 = 1
    early = 0
    epoll = 24
    ldevery = 5
    pfo = 0
    diag = ''

V0 = 98304
KAD = lambda j: 16384 * (j % 5)
VAD = lambda j: (V0, V0 + 16384, V0 + 32768, V0 + 49152, V0 - 16384)[(j + 2) % 5]
XBUF = lambda m: 32768 + 20480 * (m & 1)
WAD = lambda n: (V0 + 16384, V0 - 16384, V0)[n % 3]
EX = 16384
FLG = VAD(31)
OSLOT = [VAD(28), KAD(30), VAD(29), VAD(30), VAD(31), 16384, 32768, 49152]

S, P, NM, L = 0, 40, 80, 100
KA, KA2, VA, VA2, DK, DV, LANE16, CNT, FLA, CA = 105, 109, 113, 121, 129, 133, 135, 136, 137, 138
DWO = VA2
STV = 140
OV, NOV = 144, 28
XAD, DX, DWQ, DUM = 48, 50, 51, 59
Q, KB, VB, OA = 0, 80, 112, 144
XF = 144
OWN, PART = 0, 144
STG = 216
LS, ONES = 192, 212
sW, sP, sREDO, sCNT = 4, 5, 6, 7
SX, SWQ, SK, SV, SWO, SP_ = 8, 12, 16, 20, 24, 28
sOK, sOV, sMK = 32, 33, 34
sBR, sHP, sBT = 37, 38, 39
sWS = 40
sCW, sCP = 44, 48
sC, sTHR = 54, 56
sA, sB = 58, 59
sW1K, sHF = 60, 61
sST = 64
SF, SD, SO = 72, 76, 80
sG = 84
sM0, sM1 = 86, 88
sXO, sWQO = 90, 91
sO5 = 57
SG = 96
SG2 = 8
sE = 35

def vr(b, n=1): return 'v%d' % b if n == 1 else 'v[%d:%d]' % (b, b + n - 1)
def ar(b, n=1): return 'a%d' % b if n == 1 else 'a[%d:%d]' % (b, b + n - 1)
def sr(b, n=1): return 's%d' % b if n == 1 else 's[%d:%d]' % (b, b + n - 1)
def mfma(d, a, b, c): return I('v_mfma_f32_16x16x32_bf16 %s, %s, %s, %s' % (d, a, b, c))
def otile(j, db):
    n = 8 * j + db
    return ('v', OV + 4 * n) if n < NOV else ('a', OA + 4 * (n - NOV))
def oreg(j, db):
    k, b = otile(j, db)
    return '%s[%d:%d]' % (k, b, b + 3)
def qacc(db, j):
    n = 8 * j + db
    return 4 * n if n < 12 else OV + 4 * (n - 12)

def clk(o): return 's_memtime' if o.cyc else 's_memrealtime'
def tstamp(s, o, ph, idx):
    if o.trace == ph and idx < 16:
        s('%s s[%d:%d]' % (clk(o), sST + 6, sST + 7)); s('s_waitcnt lgkmcnt(0)')
        s('v_writelane_b32 v%d, s%d, %d' % (STV + 2, sST + 6, idx))
def stamp(s, o, idx):
    st = sST
    def wsrd():
        s('s_mov_b32 s%d, s%d' % (st, sWS)); s('s_mov_b32 s%d, s%d' % (st + 1, sWS + 1))
        s('s_mov_b32 s%d, 0x%x' % (st + 2, WS_BYTES)); s('s_mov_b32 s%d, 0x20000' % (st + 3))
    if o.trace:
        if idx == 15:
            wsrd()
            s('s_mul_i32 s%d, s2, %d' % (st + 4, 128)); s('s_add_u32 s%d, s%d, 0x%x' % (st + 4, st + 4, WS_BYTES - 256 * 128))
            s('s_min_u32 s3, s%d, 1' % sW); s('s_lshl_b32 s3, s3, 30'); s('s_add_u32 s%d, s%d, s3' % (st + 4, st + 4))
            s('v_mbcnt_lo_u32_b32 v0, -1, 0'); s('v_lshlrev_b32 v0, 3, v0'); s('v_mov_b32 v2, v%d' % (STV + 2)); s('v_mov_b32 v3, 0')
            s('s_mov_b64 exec, 0xffff')
            s('buffer_store_dwordx2 v[2:3], v0, s[%d:%d], s%d offen' % (st, st + 3, st + 4))
        return
    if not o.stamps: return
    a, b = STV, STV + 1
    if o.dbgst:
        if idx not in (0, 2, 3, 5, 6, 11, 13, 15): return
        idx = (0, 2, 3, 5, 6, 11, 13, 15).index(idx)
        s('s_memrealtime s[%d:%d]' % (st + 4, st + 5)); s('s_memtime s[%d:%d]' % (st + 6, st + 7)); s('s_waitcnt lgkmcnt(0)')
        s('v_mov_b32 v%d, s%d' % (a, st + 4)); s('v_mov_b32 v%d, s%d' % (b, st + 6))
        s('s_sub_u32 s%d, s2, %d' % (st + 4, o.dbgst - 1)); s('s_mul_i32 s%d, s%d, 0x1000' % (st + 4, st + 4))
        s('s_add_u32 s%d, s%d, 0x%x' % (st + 4, st + 4, idx * 8)); s('s_nop 0')
        s('buffer_store_dwordx2 v[%d:%d], off, s[%d:%d], s%d' % (a, b, SD, SD + 3, st + 4))
        return
    s('%s s[%d:%d]' % (clk(o), st + 4, st + 5)); s('s_waitcnt lgkmcnt(0)')
    if idx == 0: s('s_mov_b64 s[%d:%d], s[%d:%d]' % (st + 4, st + 5, st + 6, st + 7))
    wsrd()
    s('v_mov_b32 v%d, s%d' % (a, st + 4)); s('v_mov_b32 v%d, s%d' % (b, st + 5))
    s('s_mul_i32 s%d, s2, %d' % (st + 4, o.stamps * 8))
    s('s_add_u32 s%d, s%d, 0x%x' % (st + 4, st + 4, WS_BYTES - 256 * o.stamps * 8 + idx * 8)); s('s_nop 0')
    s('buffer_store_dwordx2 v[%d:%d], off, s[%d:%d], s%d' % (a, b, st, st + 3, st + 4))

def dma(voff, srd, soff, imm, pol, tag, lo, n=16384):
    return I('buffer_load_dwordx4 v%d, s[%d:%d], s%d offen offset:%d %s lds' % (voff, srd, srd + 3, soff, imm, pol), tag=tag, lds=(lo, lo + n, tag))
def grp4(pre, mk, post=()):
    out = []
    for t in range(4):
        g = list(pre) if t == 0 else []
        g.append(mk(t))
        if t == 3: g += list(post)
        out.append(g)
    return out
def dma_x(o, m):
    buf = XBUF(m)
    out = [[I('s_add_u32 m0, s%d, 0x%x' % (sW1K, buf + 4096 * j)), I('s_add_u32 s%d, s%d, 0x%x' % (sA, sXO, 32768 * j)),
            dma(DX, SX, sA, 0, o.w_pol, 'x%d' % m, buf, 20480)] for j in range(5)]
    out[4] += [I('s_add_u32 s%d, s%d, 128' % (sXO, sXO)), I('s_and_b32 s%d, s%d, 0x3ff' % (sXO, sXO))]
    return out
def dma_wq(o, n):
    b = WAD(n)
    return grp4([I('s_add_u32 m0, s%d, 0x%x' % (sMK, b)), I('s_nop 0')],
                lambda t: dma(DWQ + t, SWQ, sWQO, 1024 * t, o.w_pol, 'wq%d' % n, b),
                [I('s_add_u32 s%d, s%d, 0x40000' % (sWQO, sWQO)), I('s_and_b32 s%d, s%d, 0x3fffff' % (sWQO, sWQO))])
def stage_ld(o, kind):
    srd_, r = (SK, STG) if kind == 'K' else (SV, STG + 16)
    vo = (lambda t: DK + t) if kind == 'K' else (lambda t: DV + (t & 1))
    return [[I('buffer_load_dwordx4 %s, v%d, s[%d:%d], s%d offen offset:%d %s' % (ar(r + 4 * t, 4), vo(t), srd_, srd_ + 3, sO5, 1024 * t, o.kv_pol))] for t in range(4)]
def stage_wr(o, kind):
    b, r, ad = (KAD(5), STG, 139) if kind == 'K' else (VAD(5), STG + 16, 143)
    out = [[I('ds_write_b128 v%d, %s offset:%d' % (ad, ar(r + 4 * t, 4), 1024 * t), lds=(b, b + 16384, '%s5' % kind))] for t in range(4)]
    out[0].insert(0, Wait(regs=regs('a', r, 16)))
    return out
def dma_kv(o, kind, j):
    b, so, srd_ = (KAD(j), sOK, SK) if kind == 'K' else (VAD(j), sOV, SV)
    vo = (lambda t: DK + t) if kind == 'K' else (lambda t: DV + (t & 1))
    return grp4([I('s_add_u32 s%d, s%d, 0x%x' % (so, so, 0x4000 if (o.stage and j == 6) else 0x2000)), I('s_add_u32 m0, s%d, 0x%x' % (sMK, b)), I('s_and_b32 s%d, s%d, 0x3ffff' % (so, so))],
                lambda t: dma(vo(t), srd_, so, 1024 * t, o.kv_pol, '%s%d' % (kind, j), b))
KVSEQ = [(k, j) for j in range(32) for k in 'KV']
def dma_wo(o, u):
    c, phi, dh = u >> 2, (u >> 1) & 1, u & 1
    b = OSLOT[u % 8]
    return grp4([I('s_lshl_b32 s%d, s%d, 2' % (sB, sMK)), I('s_add_u32 s%d, s%d, s%d' % (sB, sB, sCW + c)),
                 I('s_add_u32 m0, s%d, 0x%x' % (sMK, b)), I('s_add_u32 s%d, s%d, 0x%x' % (sB, sB, 65536 * dh))],
                lambda t: dma(DWO + 4 * phi + t, SWO, sB, 1024 * t, o.w_pol, 'wo%d' % u, b))
def capped(o, groups):
    if not o.cap: return groups
    out = []
    for g in groups:
        k = [i for i, x in enumerate(g) if x.kind == 'dma'][0]
        if o.cap2:
            lo = I('s_waitcnt vmcnt(%d)' % o.cap); lo.kind = 'other'
            out.append(g[:k] + [I('s_waitcnt vmcnt(%d)' % o.cap2), I('s_cbranch_vccnz 1'), lo] + g[k:])
        else: out.append(g[:k] + [I('s_waitcnt vmcnt(%d)' % o.cap)] + g[k:])
    return out

def rd_k(j):
    b = KAD(j)
    areg, imm = (KA, b) if b < 65536 else (KA2, b - 65536)
    return [I('ds_read_b128 %s, v%d offset:%d' % (ar(KB + 4 * (4 * kb + s), 4), areg + s, imm + 4096 * kb), lds=(b, b + 16384, 'K%d' % j))
            for s in range(4) for kb in range(2)]
def rd_tr(dst, b, tag):
    areg, imm = (VA, b - V0) if b >= V0 else (VA2, 0)
    return [I('ds_read_b64_tr_b16 %s, v%d offset:%d' % (ar(dst + 4 * d + 2 * e, 2), areg + d, imm + 4096 * e), lds=(b, b + 16384, tag))
            for d in range(8) for e in range(2)]
def rd_v(dst, j): return rd_tr(dst, VAD(j), 'V%d' % j)

def spread(items, gaps):
    d = {g: [] for g in gaps}
    n, m = len(items), len(gaps)
    for i, it in enumerate(items): d[gaps[i * m // n]].append(it)
    return d
def srd(s, r, lo, hi, off, size):
    if off is None: s('s_mov_b32 s%d, s%d' % (r, lo)); s('s_mov_b32 s%d, s%d' % (r + 1, hi))
    else: s('s_add_u32 s%d, s%d, s%d' % (r, lo, off)); s('s_addc_u32 s%d, s%d, 0' % (r + 1, hi))
    if size is not None: s('s_mov_b32 s%d, 0x%x' % (r + 2, size))
    s('s_mov_b32 s%d, 0x20000' % (r + 3))
def kv_start(s, o):
    s('s_mul_i32 s3, s%d, 0x%x' % (sP, 8192 * o.rotp)); s('s_lshl_b32 s36, s%d, 12' % sHF); s('s_add_u32 s3, s3, s36')
    s('s_sub_u32 s%d, s3, 0x2000' % sOK); s('s_mov_b32 s%d, s%d' % (sOV, sOK))
    if o.stage: s('s_add_u32 s%d, s3, 0xa000' % sO5)

def gen_entry(o):
    s = Seg('entry')
    if o.stamps and not o.dbgst: s('%s s[%d:%d]' % (clk(o), sST + 6, sST + 7))
    s('s_cmp_ge_u32 s2, 256')
    s('s_cbranch_scc1 L_done')
    s('v_mov_b32 v64, v0')
    s('s_and_b32 s3, s2, 7')
    s('s_lshr_b32 s36, s2, 3')
    if o.par: s('s_and_b32 s37, s3, 1'); s('s_lshr_b32 s38, s3, 1')
    else: s('s_lshr_b32 s37, s3, 2'); s('s_and_b32 s38, s3, 3')
    s('s_mul_i32 s3, s37, 40'); s('s_add_u32 s42, s0, s3'); s('s_addc_u32 s43, s1, 0')
    s('''s_load_dwordx8 s[44:51], s[42:43], 0
         s_load_dwordx2 s[52:53], s[42:43], 32
         s_load_dwordx2 s[40:41], s[0:1], 96
         s_load_dwordx4 s[92:95], s[0:1], 80''')
    if o.codepf:
        s('s_getpc_b64 s[62:63]')
        s.label('L_pc')
        s('v_lshrrev_b32 v71, 2, v64'); s('v_and_b32 v71, 0x30, v71'); s('v_and_b32 v72, 15, v64'); s('v_or_b32 v71, v71, v72')
        s('s_and_b32 s3, s36, 15'); s('s_lshl_b32 s3, s3, 6')
        s('v_add_lshl_u32 v71, s3, v71, 7')
        s('v_min_u32 v71, L_code_end-L_pc-4, v71')
        s('global_load_dword v%d, v71, s[62:63]' % DUM, dummy=True)
    s('''s_lshl_b32 s38, s38, 2
         s_and_b32 s39, s36, 3
         s_or_b32 s38, s38, s39
         s_lshr_b32 s39, s36, 2''')
    s('v_lshrrev_b32 v71, 6, v64')
    s('v_and_b32 v65, 63, v64')
    s('v_readfirstlane_b32 s%d, v71' % sW)
    s('v_lshrrev_b32 v66, 4, v65')
    s('v_and_b32 v67, 15, v65')
    s('v_and_b32 v69, 7, v65')
    s('s_lshl_b32 s%d, s%d, 10' % (sW1K, sW))
    s('s_lshl_b32 s%d, s%d, 12' % (sMK, sW))
    s('s_lshr_b32 s%d, s%d, 1' % (sP, sW))
    s('s_and_b32 s%d, s%d, 1' % (sHF, sW))
    s('s_lshl_b32 s3, s%d, 2' % sHF)
    s('v_add_u32 v73, s3, v66')
    s('v_xor_b32 v69, v73, v69')
    s('v_lshlrev_b32 v69, 4, v69')
    s('v_lshrrev_b32 v68, 3, v64')
    s('v_lshl_add_u32 v%d, v68, 10, v69' % DX)
    s('v_lshlrev_b32 v70, 1, v66')
    s('v_xor_b32 v70, v70, v67')
    s('v_lshlrev_b32 v70, 4, v70')
    s('v_lshl_add_u32 v68, v73, 13, v70')
    s('s_lshl_b32 s3, s%d, 8' % sP)
    s('v_add_u32 v%d, s3, v68' % DWQ)
    s('v_xor_b32 v68, 0x80, v%d' % DWQ)
    s('v_add_u32 v%d, 0x%x, v68' % (DWQ + 1, 64512))
    s('v_add_u32 v%d, 0x%x, v%d' % (DWQ + 2, 2 * 64512, DWQ))
    s('v_add_u32 v%d, 0x%x, v68' % (DWQ + 3, 3 * 64512))
    s('s_and_b32 s3, s38, 3'); s('s_lshl_b32 s3, s3, 1'); s('s_add_u32 s3, s3, s39'); s('s_and_b32 s3, s3, 7')
    s('s_lshl_b32 s%d, s3, 7' % sXO); s('s_lshl_b32 s%d, s3, 19' % sWQO)
    s('s_mul_i32 s3, s39, 163840'); s('s_lshl_b32 s36, s38, 9')
    s('s_waitcnt lgkmcnt(0)')
    srd(s, SX, 44, 45, 3, 163840)
    srd(s, SWQ, 50, 51, 36, None); s('s_sub_u32 s%d, 0x400000, s36' % (SWQ + 2))
    for g in dma_x(o, 0) + dma_wq(o, 0) + dma_wq(o, 1): s.add(g)
    srd(s, SD, 94, 95, None, 256)
    stamp(s, o, 0)
    s('v_lshlrev_b32 v%d, 4, v65' % LANE16)
    urgent = s
    if o.defer: s = Seg('deferred')
    s('s_mov_b32 s3, 0x%x' % INB); srd(s, SF, sWS, sWS + 1, 3, 65536 + 2048)
    s('s_lshl_b32 s%d, s37, 3' % sG); s('s_add_u32 s%d, s%d, s39' % (sG, sG))
    s('s_lshl_b32 s36, s%d, 4' % sG); s('s_add_u32 s36, s36, s38')
    s('s_min_u32 s3, s%d, 1' % sW); s('s_lshl_b32 s3, s3, 30')
    s('s_lshl_b32 s62, s36, 8'); s('s_add_u32 s62, s62, s3')
    s('v_lshlrev_b32 v72, 2, v65'); s('v_add_u32 v73, s62, v72'); s('v_mov_b32 v74, 0')
    s('buffer_store_dword v74, v73, s[%d:%d], 0 offen %s' % (SF, SF + 3, o.fl_pol), tag='clr')
    if o.dyn:
        s('s_lshl_b32 s3, s%d, 7' % sG); s('s_add_u32 s3, s3, 0x10000'); s('s_min_u32 s62, s38, 1'); s('s_lshl_b32 s62, s62, 30'); s('s_add_u32 s3, s3, s62')
        s('v_min_u32 v73, 1, v64'); s('v_lshlrev_b32 v73, 29, v73'); s('v_add_u32 v73, s3, v73')
        s('buffer_store_dword v74, v73, s[%d:%d], 0 offen %s' % (SF, SF + 3, o.fl_pol))
    s('s_mul_i32 s3, s36, %d' % PST); srd(s, SP_, sWS, sWS + 1, 3, 163840)
    s('''s_lshl_b32 s3, s39, 4
         s_add_u32 s3, s3, s38
         s_lshl_b32 s3, s3, 1
         s_add_u32 s3, s3, s%d
         s_lshl_b32 s3, s3, 18''' % sP)
    srd(s, SK, 46, 47, 3, 0x40000); srd(s, SV, 48, 49, 3, 0x40000)
    s('s_lshl_b32 s3, s38, 18'); srd(s, SWO, 52, 53, 3, 0x40000)
    srd(s, SO, 92, 93, None, 8 * 160 * 2048)
    s('s_mul_i32 s3, s%d, %d' % (sG, 16 * PST)); srd(s, SG, sWS, sWS + 1, 3, 16 * PST)
    kv_start(s, o)
    for c in range(4):
        if o.rotc: s('s_add_u32 s3, s39, %d' % c); s('s_and_b32 s3, s3, 3')
        else: s('s_mov_b32 s3, %d' % c)
        s('s_lshl_b32 s%d, s3, 7' % (sCW + c)); s('s_mul_i32 s%d, s3, 20480' % (sCP + c))
    c = math.log2(math.e) / math.sqrt(128.0)
    s('s_mov_b32 s%d, 0x%x' % (sC, f2u(c))); s('s_mov_b32 s%d, 0x%x' % (sC + 1, f2u(c)))
    s('s_mov_b32 s%d, 0x%x' % (sTHR, f2u(2.0 ** 24 if not o.force_redo else 1.0)))
    s('s_mov_b32 s%d, 0' % sREDO)
    s('s_lshl_b32 s3, s%d, 12' % sG); s('s_lshl_b32 s36, s38, 4'); s('s_add_u32 s3, s3, s36')
    s('s_lshl_b32 s36, s%d, 2' % sW); s('s_add_u32 s3, s3, s36')
    s('v_lshlrev_b32 v68, 8, v67'); s('v_add_u32 v68, s3, v68')
    s('v_and_b32 v69, %d, v65' % (48 | (16 // o.rep - 1))); s('v_min_u32 v69, 1, v69'); s('v_lshl_add_u32 v%d, v69, 30, v68' % FLA)
    s('v_min_u32 v69, 1, v64'); s('v_lshlrev_b32 v69, 30, v69'); s('s_lshl_b32 s3, s%d, 3' % sG); s('s_add_u32 s3, s3, 128'); s('v_add_u32 v%d, s3, v69' % CA)
    s('v_mov_b32 v%d, 1' % CNT)
    s('v_xor_b32 v68, v66, v67'); s('v_lshlrev_b32 v68, 4, v68')
    s('v_lshl_add_u32 v%d, v66, 8, v68' % DK)
    for t in range(1, 4): s('v_xor_b32 v%d, %d, v%d' % (DK + t, 64 * t, DK))
    s('v_lshl_add_u32 v%d, v66, 8, v70' % DV)
    s('v_xor_b32 v%d, 0x80, v%d' % (DV + 1, DV))
    s('v_lshl_add_u32 v68, v67, 8, v68')
    s('s_lshl_b32 s36, s%d, 13' % sP)
    s('v_add_u32 v%d, s36, v68' % KA)
    for k in range(1, 4): s('v_xor_b32 v%d, %d, v%d' % (KA + k, 64 * k, KA))
    for k in range(4): s('v_add_u32 v%d, 0x10000, v%d' % (KA2 + k, KA + k))
    late, s = s, urgent
    s('s_lshl_b32 s36, s%d, 13' % sP)
    s('v_lshrrev_b32 v68, 1, v67'); s('v_xor_b32 v68, v68, v66'); s('v_lshlrev_b32 v68, 4, v68')
    s('v_lshl_add_u32 v68, v67, 7, v68')
    s('s_mul_i32 s3, s%d, 10240' % sHF)
    s('v_add_u32 v%d, s3, v68' % XAD)
    s('v_xor_b32 v%d, 64, v%d' % (XAD + 1, XAD))
    s('v_lshrrev_b32 v68, 2, v65')
    s('v_and_b32 v69, 7, v68')
    s('v_lshlrev_b32 v69, 5, v69')
    s('v_lshl_add_u32 v69, v68, 8, v69')
    s('v_and_b32 v68, 3, v65')
    s('v_lshl_add_u32 v69, v68, 3, v69')
    s('s_add_u32 s36, s36, 0x%x' % V0)
    s('v_add_u32 v%d, s36, v69' % VA)
    for k in range(1, 8): s('v_xor_b32 v%d, %d, v%d' % (VA + k, 32 * k, VA))
    for k in range(8): s('v_subrev_u32 v%d, 0x4000, v%d' % (VA2 + k, VA + k))
    if o.stage:
        s('s_add_u32 s3, s%d, 0x%x' % (sMK, KAD(5))); s('v_add_u32 v139, s3, v%d' % LANE16)
        s('s_add_u32 s3, s%d, 0x%x' % (sMK, VAD(5))); s('v_add_u32 v143, s3, v%d' % LANE16)
    stamp(s, o, 1)
    o.deferred = late.items if o.defer else []
    return s

def is_vm(g): return any(x.kind in ('dma', 'vst', 'vld') for x in g)
class Pace: since = 99; slots = 0
class Atomic(list): pass
barrier_hooks = []
def gemm_kstep(s, mf, need, reads, barrier, extra, every=1, vq=None, pack=False):
    n = len(mf)
    rg = list(range(2, 2 + (len(reads) + 1) // 2)) if (n <= 20 or pack) else list(range(2, 2 + len(reads)))
    rd = spread(reads, rg) if reads else {}
    part = False
    for g in range(n):
        if g == 0: s.wait(regs=need)
        s.add(mf[g])
        if g == 1 and barrier is not None:
            s.wait(**barrier)
            s('s_barrier')
            for f in barrier_hooks: f()
            del barrier_hooks[:]
        s.add(rd.get(g, []))
        Pace.since += 1
        busy = len(rd.get(g, []))
        if Pace.slots:
            free = 2 - busy - (2 if (g == 1 and barrier is not None) else 0)
            m0_fresh = False
            while free > 0:
                q = vq if vq else None
                if q is not None:
                    head = [x for x in q[0] if not (x.kind == 'nop')]
                    vm = head[0].kind in ('dma', 'vst', 'vld')
                    if vm and (Pace.since < every or m0_fresh): q = None
                if q is None:
                    while extra and extra[0] == [] and free == 2 - busy:
                        extra.pop(0); free = 0
                    if free <= 0 or not extra or extra[0] == []: break
                    q = extra
                    if isinstance(q[0], Atomic):
                        s.add(list(q.pop(0))); free -= 2; m0_fresh = False
                        continue
                    head = list(q[0])
                    vm = head[0].kind in ('dma', 'vst', 'vld')
                    if vm and Pace.since < every: break
                it = head.pop(0)
                s.add(it)
                if it.kind != 'label': free -= 1
                if vm: Pace.since = 0
                m0_fresh = it.kind == 'salu' and ('m0', 0) in it.wr
                if q is extra: part = bool(head)
                if head: q[0] = head
                else: q.pop(0)
            if g == n - 1 and part: s.add(extra.pop(0))
        elif vq and Pace.since >= every and busy < (1 if pack else 2):
            s.add(vq.pop(0)); Pace.since = 0
        elif extra and busy < 2 and (not is_vm(extra[0]) or Pace.since >= every):
            if is_vm(extra[0]): Pace.since = 0
            s.add(extra.pop(0))

def qconv_stream():
    c = sr(sC, 2)
    items = [(j, sidx) for j in range(5) for sidx in range(4)]
    tq = lambda i: 60 + 4 * (i % 4)
    def st1(i):
        j, sidx = items[i]; out = []
        for e in range(2):
            b = qacc(2 * sidx + e, j)
            out += [I('v_pk_mul_f32 %s, %s, %s' % (vr(b, 2), vr(b, 2), c)), I('v_pk_mul_f32 %s, %s, %s' % (vr(b + 2, 2), vr(b + 2, 2), c))]
        for e in range(2):
            b = qacc(2 * sidx + e, j)
            out += [I('v_cvt_pk_bf16_f32 v%d, v%d, v%d' % (tq(i) + 2 * e, b, b + 1)), I('v_cvt_pk_bf16_f32 v%d, v%d, v%d' % (tq(i) + 2 * e + 1, b + 2, b + 3))]
        return out
    sw = lambda op, i: [I('%s v%d, v%d' % (op, tq(i), tq(i) + 2)), I('%s v%d, v%d' % (op, tq(i) + 1, tq(i) + 3))]
    def st4(i):
        j, sidx = items[i]
        return [I('v_accvgpr_write_b32 a%d, v%d' % (Q + 16 * j + 4 * sidx + k, tq(i) + k)) for k in range(4)]
    n = len(items)
    rounds = []
    for i in range(n + 3):
        r = st1(i) if i < n else [I('s_nop 1')]
        if 0 <= i - 3 < n: r += st4(i - 3)
        if 0 <= i - 2 < n: r += sw('v_permlane16_swap_b32', i - 2)
        if 0 <= i - 1 < n: r += sw('v_permlane32_swap_b32', i - 1)
        rounds.append(r)
    return rounds

def gen_q(o):
    s = Seg('qphase')
    def reads_for(n):
        buf = n & 1
        w = rd_tr(KB + 32 * buf, WAD(n), 'wq%d' % n)
        xb = XBUF(n >> 1)
        x = [I('ds_read_b128 %s, v%d offset:%d' % (ar(XF + 20 * buf + 4 * j, 4), XAD + (n & 1), xb + 2048 * j), lds=(xb, xb + 20480, 'x%d' % (n >> 1))) for j in range(5)]
        return x + w
    if o.x1e: s.add(dma_x(o, 1))
    if o.x1e > 1: s.add(dma_wq(o, 2))
    s.wait(tags=['x0', 'wq0'])
    s('s_barrier')
    stamp(s, o, 2)
    s.add(reads_for(0))
    vq = (dma_wq(o, 2) if o.x1e < 2 else []) + (dma_x(o, 1) if not o.x1e else [])
    kv = [dma_kv(o, k, j) for k, j in KVSEQ[:o.ninit]]
    rounds = qconv_stream()
    for n in range(16):
        buf = n & 1
        tstamp(s, o, 'q', n)
        order = [(db, j) for db in range(8) for j in range(5)] if n < 15 else [(db, j) for j in range(5) for db in range(8)]
        mf = []
        for db, j in order:
            d = vr(qacc(db, j), 4)
            mf.append(mfma(d, ar(KB + 32 * buf + 4 * db, 4), ar(XF + 20 * buf + 4 * j, 4), '0' if n == 0 else d))
        m = n + 1
        tags = []
        if m < 16:
            tags = ['wq%d' % m]
            if m % 2 == 0: tags.append('x%d' % (m >> 1))
        else: tags = ['K0']
        new = []
        if m + 2 < 16: new += dma_wq(o, m + 2)
        if m % 2 == 0 and m // 2 + 1 < 8: new += dma_x(o, m // 2 + 1)
        for _ in range(o.kvat_l.count(m)): new += kv.pop(0)
        if o.stage and m in o.stat_l: new += stage_ld(o, 'KV'[o.stat_l.index(m)])
        if m == 14: new += kv.pop(0) + kv.pop(0)
        if m == 16: new += kv.pop(0)
        barrier_hooks.append(lambda new=new: vq.extend(new))
        extra = []
        if n == 0:
            dfr = []
            for x in o.deferred:
                if x.mn == 's_addc_u32': dfr[-1] = Atomic(dfr[-1] + [x])
                else: dfr.append([x])
        if n < 4: extra = dfr
        if n == 3: tailx = extra
        if n == 4:
            for g in dfr: s.add(list(g))
        if n == 15:
            head = sum(rounds[:3], []); del rounds[:3]
            extra = [[]] * 10 + [head[i:i + 2] for i in range(0, len(head), 2)]
        gemm_kstep(s, mf, regs('a', KB + 32 * buf, 32) + regs('a', XF + 20 * buf, 20), reads_for(m) if m < 16 else rd_k(0), dict(tags=tags), extra, o.qevery, vq, o.qpack)
    assert not vq
    for g in extra: s.add(g)
    stamp(s, o, 3)
    kvq = sum(kv, [])
    qk = qk_list(False)
    mx = []
    for j in range(4):
        t = Seg('t'); max8(t, j, MX + j, False); mx.append(t.items)
    done = 3
    pend = []
    first = True
    for r in rounds:
        if kvq: s.add(kvq.pop(0))
        k = 0
        for it in r:
            s.add(it); k += 1
            if pend and k % 2 == 0:
                if first: s.wait(regs=regs('a', KB, 32)); first = False
                s.add(pend.pop(0))
        done += 1
        if done >= 8 and (done - 8) % 4 == 0:
            j = (done - 8) // 4
            pend += qk[8 * j:8 * j + 8]
            if j >= 1: s.add(mx[j - 1])
    s('s_nop 0')
    for i, it in enumerate(qk[32:40]):
        s.add(it)
        if i in (2, 3, 4, 5): s.add(mx[3][i - 2])
    assert not pend
    s.add(kvq)
    s('s_nop 6')
    max8(s, 4, MX + 4, False)
    set_nm(s)
    for j in range(5):
        for i in range(0, 8, 2): s('v_pk_add_f32 %s, %s, %s' % (vr(S + 8 * j + i, 2), vr(S + 8 * j + i, 2), vr(NM + 4 * j, 2)))
    stamp(s, o, 4)
    return s

def qk_list(cinit):
    out = []
    for j in range(5):
        for r in range(8):
            kb, sidx = r & 1, r >> 1
            d = vr(S + 8 * j + 4 * kb, 4)
            cc = d if sidx else (vr(NM + 4 * j, 4) if cinit else '0')
            out.append(mfma(d, ar(KB + 4 * (4 * kb + sidx), 4), ar(Q + 16 * j + 4 * sidx, 4), cc))
    return out
def pv_list(o, par, vb, zero=False):
    out = []
    for j in range(5):
        pj = vr(P + 20 * par + 4 * j, 4)
        out += [mfma(oreg(j, db), ar(vb + 4 * db, 4), pj, '0' if zero else oreg(j, db)) for db in range(8)]
        if o.lsum: out.append(mfma(ar(LS + 4 * j, 4), ar(ONES, 4), pj, '0' if zero else ar(LS + 4 * j, 4)))
    return out
def rowred(s, regs_, tmps, op):
    for sw in ('v_permlane32_swap_b32', 'v_permlane16_swap_b32'):
        for r, t in zip(regs_, tmps): s('v_mov_b32 v%d, v%d' % (t, r))
        for r, t in zip(regs_, tmps): s('%s v%d, v%d' % (sw, t, r))
        for r, t in zip(regs_, tmps): s('%s v%d, v%d, v%d' % (op, r, r, t))
def max8(s, j, m, acc):
    b = S + 8 * j
    if acc: s('v_max3_f32 v%d, v%d, v%d, v%d' % (m, m, b, b + 1))
    else: s('v_max_f32 v%d, v%d, v%d' % (m, b, b + 1))
    for i in range(1, 4): s('v_max3_f32 v%d, v%d, v%d, v%d' % (m, m, b + 2 * i, b + 2 * i + 1))
MX, MT = L, 48
def set_nm(s):
    rowred(s, [MX + j for j in range(5)], [MT + j for j in range(5)], 'v_max_f32')
    for j in range(5): s('v_sub_f32 v%d, 0, v%d' % (NM + 4 * j, MX + j))
    for j in range(5):
        for i in range(1, 4): s('v_mov_b32 v%d, v%d' % (NM + 4 * j + i, NM + 4 * j))

def sm_exp(i): return I('v_exp_f32 v%d, v%d' % (S + i, S + i))
def sm_post(o, i, par):
    j = i >> 3
    out = [] if o.lsum else [I('v_add_f32 v%d, v%d, v%d' % (L + j, L + j, S + i))]
    if i & 1: out.append(I('v_cvt_pk_bf16_f32 v%d, v%d, v%d' % (P + 20 * par + 4 * j + ((i & 7) >> 1), S + i - 1, S + i)))
    return out
def sm_gap(o, G, par):
    if o.lsum:
        if G >= 40:
            if (G - 40) % 9 == 8: return []
            G -= (G - 40) // 9
    x = G - 12
    if x < 0: x += 80; par ^= 1
    i = x >> 1
    return [sm_exp(i)] if x % 2 == 0 else sm_post(o, i, par)

def kv_schedule(o):
    q = [(k, j, g) for k, j in KVSEQ[o.ninit + 2 * o.stage:] for g in capped(o, dma_kv(o, k, j))]
    free = lambda kind, j: 2 * (j - 5) + 1 if kind == 'K' else 2 * (j - 4) + 1
    sched = {h: [] for h in range(1, 64)}
    n = len(q)
    slow = max(0, 4 * o.lasth - n)
    h, i = 1, 0
    while i < n:
        cap = 4
        h0 = 2 * o.stage
        if o.uni: cap = min(4, max(0, (n * (h - h0) + o.lasth - h0 - 1) // (o.lasth - h0) - i))
        elif slow > 0: cap = 3
        k = 0
        while k < cap and i < n and free(q[i][0], q[i][1]) <= h:
            sched[h].append(q[i][2]); i += 1; k += 1
        slow -= 4 - k
        h += 1
    if o.stage:
        assert o.ninit == 10
        sched[1] = stage_wr(o, 'K') + sched[1]
        sched[3] = stage_wr(o, 'V') + sched[3]
    return sched

def gen_s0(o):
    s = Seg('s0')
    s.label('L_s0')
    if o.lsum:
        s('v_mov_b32 v%d, 0x3f803f80' % L)
        for k in range(4): s('v_accvgpr_write_b32 a%d, v%d' % (ONES + k, L))
    else:
        for j in range(5): s('v_mov_b32 v%d, 0' % (L + j))
    if o.cap2: s('s_and_b32 s3, s39, 1'); s('s_cselect_b64 vcc, -1, 0')
    s.wait(tags=['K1', 'V0'])
    s('s_barrier')
    s.add(rd_k(1))
    dm = spread(o.sched[1] + [[I('buffer_atomic_add v%d, v%d, s[%d:%d], 0 offen' % (CNT, CA, SD, SD + 3))]], [1, 8, 15, 22, 29])
    for i in range(35):
        if i < 34: s.add(sm_exp(i))
        else: s('s_nop 0')
        if i > 0: s.add(sm_post(o, i - 1, 0))
        s.add(dm.get(i, []))
    return s

def step(s, o, t, more1=(), more2=(), wtags=(), valu1=None):
    par = t & 1
    if t % 2 == 1: tstamp(s, o, 'a', t // 2)
    mf = qk_list(True) + pv_list(o, par ^ 1, VB, t == 1)
    NG = len(mf)
    fill = {g: [] for g in range(NG)}
    empty = [g for g in range(NG) if not sm_gap(o, g, par)]
    if o.lsum:
        g1 = [g for g in empty if g < 32]; g2 = [g for g in empty if 42 < g < NG - 8]
    else: g1, g2 = [1, 5, 9, 13, 17, 21, 25, 29], [45, 49, 53, 57, 61, 65, 69, 73]
    for g, l in spread(rd_v(VB, t - 1), g1).items(): fill[g] += l
    for g, l in spread(rd_k(t + 1) if t < 31 else rd_v(KB, 31), g2).items(): fill[g] += l
    for base, end, dm in ((2, 40, o.sched[2 * t] + list(more1)), (42, NG, o.sched[2 * t + 1] + list(more2))):
        n = len(dm)
        for i, g in enumerate(dm):
            pos = base + ((end - base) * i) // n
            if o.lsum:
                while len(sm_gap(o, pos, par)) + len(fill[pos]) > 1 or (sm_gap(o, pos, par) and sm_gap(o, pos, par)[0].kind == 'trans'): pos += 1
            else: pos &= ~1
            fill[pos] += g
    if valu1:
        for g, l in spread(valu1, list(range(33, 40))).items(): fill[g] += l
    for g in range(NG):
        if g == 0: s.wait(regs=regs('a', KB, 32))
        if g == 40: s.wait(regs=regs('a', VB, 32))
        s.add(mf[g])
        if g == 40:
            s.wait(tags=(['K%d' % (t + 1)] if t < 31 else []) + ['V%d' % t] + list(wtags))
            s('s_barrier')
        s.add(sm_gap(o, g, par))
        s.add(fill[g])

def gen_attn(o):
    s = Seg('attn')
    pre = Seg('t')
    t0 = DWO
    pre('v_lshrrev_b32 v%d, 8, v%d' % (t0 + 1, DV))
    pre('v_and_b32 v%d, 0x70, v%d' % (t0, DV))
    pre('v_lshl_add_u32 v%d, v%d, 10, v%d' % (t0, t0 + 1, t0))
    pre('v_bfe_u32 v%d, v%d, 7, 1' % (t0 + 1, DV))
    pre('v_mul_u32_u24 v%d, 0x20200, v%d' % (t0 + 1, t0 + 1))
    pre('v_add_u32 v%d, v%d, v%d' % (t0, t0, t0 + 1))
    pre('v_xor_b32 v%d, 0x20200, v%d' % (t0 + 1, t0))
    pre('v_add_u32 v%d, %d, v%d' % (t0 + 2, 2 * 3072, t0))
    pre('v_add_u32 v%d, %d, v%d' % (t0 + 3, 3 * 3072, t0 + 1))
    pre('v_add_u32 v%d, %d, v%d' % (t0 + 1, 3072, t0 + 1))
    for t in range(4): pre('v_xor_b32 v%d, 0x20000, v%d' % (t0 + 4 + t, t0 + t))
    cnt = [[I('s_lshl_b32 s%d, s%d, 3' % (sA, sG)), I('buffer_load_dword v%d, off, s[%d:%d], s%d offset:128 sc1' % (CNT, SD, SD + 3, sA), tag='cnt')]]
    busy = lambda h: any(o.sched[x] for x in range(h, 64))
    early0 = not busy(59)
    for t in range(1, 32):
        if t == 29: step(s, o, t, valu1=pre.items, more2=dma_wo(o, 0) if early0 else [])
        elif t == 30: step(s, o, t, more2=cnt + ([] if early0 else dma_wo(o, 0)) + dma_wo(o, 1) + (dma_wo(o, 2) if early0 else []))
        elif t == 31: step(s, o, t, more1=[] if early0 else dma_wo(o, 2), more2=dma_wo(o, 3), wtags=['cnt'])
        else: step(s, o, t)
        if t == 26 and o.pfo:
            s('v_lshlrev_b32 v%d, 3, v%d' % (CA, LANE16))
            s('s_lshl_b32 s3, s39, 15'); s('s_lshl_b32 s36, s%d, 13' % sW); s('s_add_u32 s3, s3, s36')
            s('buffer_load_dword v%d, v%d, s[%d:%d], s3 offen' % (CA + 1, CA, SWO, SWO + 3), dummy=True)
    return s

def gen_epi(o):
    s = Seg('epi')
    R = NM
    v = Seg('t')
    def inv(j):
        if o.lsum: v('v_accvgpr_read_b32 v%d, a%d' % (L + j, LS + 4 * j))
        v('v_cmp_nge_f32 %s, s%d, v%d' % (sr(sM0 if j == 0 else sM1, 2), sTHR, L + j))
        v('v_rcp_f32 v%d, v%d' % (R + 2 * j, L + j))
        if j: v('s_or_b64 %s, %s, %s' % (sr(sM0, 2), sr(sM0, 2), sr(sM1, 2)))
        else: v('s_nop 0')
        v('v_mov_b32 v%d, v%d' % (R + 2 * j + 1, R + 2 * j))
    if not o.lsum:
        rowred(v, [L + j for j in range(5)], [90 + j for j in range(5)], 'v_add_f32')
        for j in range(5): inv(j)
    def vote():
        v('s_cmp_lg_u64 %s, 0' % sr(sM0, 2))
        v('s_cselect_b32 s3, 1, 0')
        v('v_mov_b32 v95, s3')
        v('s_lshl_b32 s3, s%d, 2' % sW); v('s_add_u32 s3, s3, 0x%x' % FLG)
        v('v_mov_b32 v96, s3')
        v('ds_write_b32 v96, v95', lds=(lambda c: (FLG, FLG + 16, ev(tg('flg'), c))))
    tg = lambda n: (lambda c: '%s%d' % (n, c.get('redo', 0)))
    v('s_mul_i32 s3, s%d, 20480' % sW); v('s_add_u32 s3, s3, 0x%x' % EX)
    v('v_add_u32 v97, s3, v%d' % LANE16)
    v('s_xor_b32 s3, s%d, 2' % sW); v('s_mul_i32 s3, s3, 20480'); v('s_add_u32 s3, s3, 0x%x' % EX)
    v('v_add_u32 v98, s3, v%d' % LANE16)
    exr = (lambda c: (EX, EX + 81920, ev(tg('ex'), c)))
    for j in range(5):
        if o.lsum: inv(j)
        if j == 4: vote()
        for sidx in range(4):
            f = 16 * j + 4 * sidx
            for e in range(2):
                k, b = otile(j, 2 * sidx + e)
                if k == 'a':
                    for i in range(4): v('v_accvgpr_read_b32 v%d, a%d' % (90 + i, b + i))
                    b = 90
                v('v_pk_mul_f32 %s, %s, %s' % (vr(b, 2), vr(b, 2), vr(R + 2 * j, 2)))
                v('v_pk_mul_f32 %s, %s, %s' % (vr(b + 2, 2), vr(b + 2, 2), vr(R + 2 * j, 2)))
                v('v_cvt_pk_bf16_f32 v%d, v%d, v%d' % (f + 2 * e, b, b + 1))
                v('v_cvt_pk_bf16_f32 v%d, v%d, v%d' % (f + 2 * e + 1, b + 2, b + 3))
            v('ds_write_b128 v97, %s offset:%d' % (vr(f, 4), 1024 * (4 * j + sidx)), lds=exr)
    work = v.items
    mf = pv_list(o, 1, KB)
    s.wait(regs=regs('a', KB, 32))
    for g in range(len(mf)):
        s.add(mf[g])
        if g == 0: s('s_barrier')
        if g < 12: s.add(sm_gap(o, g, 0))
        else: s.add(work[:2]); work = work[2:]
    stamp(s, o, 5)
    s.add(work)
    s('v_mov_b32 v96, 0x%x' % FLG)
    s.wait(lgkm_all=True, tags=['wo0'])
    s('s_barrier')
    s('ds_read_b128 v[92:95], v96', lds=(lambda c: (FLG, FLG + 16, ev(tg('flg'), c))))
    s('s_mul_i32 s3, s%d, 0x2080' % sP)
    s('v_xor_b32 v84, s3, v%d' % VA)
    for k in range(1, 4): s('v_xor_b32 v%d, %d, v84' % (84 + k, 32 * k))
    for k in range(4): s('v_subrev_u32 v%d, 0x%x, v%d' % (80 + k, V0, 84 + k))
    s('v_readfirstlane_b32 s3, v%d' % CNT)
    s.wait(regs=regs('v', 92, 4))
    s('v_or_b32 v92, v92, v93'); s('v_or3_b32 v92, v92, v94, v95')
    s('s_cmp_lt_u32 s3, 16')
    s('v_readfirstlane_b32 s36, v92')
    s('s_cbranch_scc1 L_cntspin')
    s.label('L_cntok')
    s('s_andn2_b32 s36, s36, s%d' % sREDO)
    if not o.diag: s('s_cbranch_scc1 L_redo')
    stamp(s, o, 6)
    return s

def gen_spin(s, name, back, load, cond, sCNT=sCNT):
    s.label(name)
    s('s_mov_b32 s%d, 0' % sCNT)
    s.label(name + '_l')
    s('s_sleep 4')
    s(load)
    s('s_waitcnt vmcnt(0)')
    s('s_add_u32 s%d, s%d, 1' % (sCNT, sCNT))
    s('s_cmp_gt_u32 s%d, 0x40000' % sCNT)
    s('s_cbranch_scc1 %s' % back)
    for l in cond: s(l.replace('@', name + '_l'))
    s('s_branch %s' % back)

def gen_redo(o):
    s = Seg('redo')
    s.label('L_redo')
    s('s_mov_b32 s%d, 1' % sREDO)
    s('s_waitcnt vmcnt(0) lgkmcnt(0)')
    s('s_barrier')
    t = 56
    s('v_lshrrev_b32 v%d, 4, v%d' % (t, LANE16))
    s('v_and_b32 v%d, 15, v%d' % (t + 1, t))
    s('v_and_b32 v%d, 48, v%d' % (t, t))
    s('v_lshl_add_u32 v%d, v%d, 8, v%d' % (t, t + 1, t))
    s('v_add_u32 v%d, 0x1000, v%d' % (t + 1, t))
    for j in range(5): s('v_mov_b32 v%d, 0xff800000' % (MX + j))
    s('s_mov_b32 s%d, 0' % sA)
    lp = Seg('redo_loop')
    lp.label('L_redo_loop')
    for kb in range(2):
        for k in range(4): lp('buffer_load_dwordx4 %s, v%d, s[%d:%d], s%d offen offset:%d' % (ar(KB + 4 * (4 * kb + k), 4), t + kb, SK, SK + 3, sA, 64 * k))
    lp('s_waitcnt vmcnt(0)')
    lp.add(qk_list(False))
    lp('s_nop 7')
    for j in range(5): max8(lp, j, MX + j, True)
    lp('s_add_u32 s%d, s%d, 0x2000' % (sA, sA))
    lp('s_cmp_lt_u32 s%d, 0x40000' % sA)
    lp('s_cbranch_scc1 L_redo_loop')
    e = Seg('redo_end')
    set_nm(e)
    kv_start(e, o)
    for k in range(8): e('v_subrev_u32 v%d, 0x4000, v%d' % (VA2 + k, VA + k))
    for k, j in KVSEQ[:o.ninit]: e.add(dma_kv(o, k, j))
    if o.stage: e.add(stage_ld(o, 'K') + stage_ld(o, 'V'))
    e('v_mov_b32 v%d, 0x40000000' % CA)
    e.wait(tags=['K0'])
    e('s_barrier')
    e.add(rd_k(0))
    e.wait(regs=regs('a', KB, 32))
    e.add(qk_list(True))
    e('s_nop 7')
    e('s_branch L_s0')
    return s, lp, e

E0V, E1V = 144, 0
PO = 88
AD, OD, IA, PL, C10, C01, AD2, OD2, AC, RT = 224, 225, 226, 227, 228, 229, 230, 231, 232, 248
def etile(c, jn, j): return (E1V if c & 1 else E0V) + 8 * (5 * (jn >> 1) + j) + 4 * (jn & 1)
def poll_txt(): return 'buffer_load_dword v%d, v%d, s[%d:%d], 0 offen sc1' % (PL, IA, SF, SF + 3)
def flag_ops(o, c):
    return [I('v_mov_b32 v89, %d' % (c + 1)), I('buffer_store_dword v89, v%d, s[%d:%d], 0 offen %s' % (FLA, SF, SF + 3, o.fl_pol))]
def load_groups(o, c, dst, sreg, g=SG):
    out = []
    for k in range(10):
        off, ad = (2 * PST * k, AD) if k < 8 else (8 * PST * (k - 8), AD2)
        out.append([I('s_add_u32 s%d, s%d, 0x%x' % (sreg, sCP + c, off)),
                    I('buffer_load_dwordx4 %s, v%d, s[%d:%d], s%d offen %s' % (dst(k), ad, g, g + 3, sreg, o.rd_pol))])
    return out
def red_addr(o):
    s = Seg('t')
    t = RT
    s('s_lshl_b32 s3, s%d, 4' % sG); s('s_and_b32 s62, s38, %d' % (15 & ~(16 // o.rep - 1))); s('s_add_u32 s3, s3, s62'); s('s_lshl_b32 s3, s3, 8')
    s('v_lshrrev_b32 v%d, 2, v%d' % (t, LANE16)); s('v_add_u32 v%d, s3, v%d' % (IA, t))
    s('v_lshrrev_b32 v%d, 4, v%d' % (t, LANE16))
    s('v_and_b32 v%d, 7, v%d' % (t + 2, t))
    s('s_and_b32 s3, s38, 3'); s('s_mul_i32 s63, s3, 5')
    s('s_lshr_b32 s3, s38, 2')
    s('s_lshr_b32 s36, s3, 1'); s('s_lshl_b32 s36, s36, 3'); s('s_and_b32 s3, s3, 1'); s('s_add_u32 s36, s36, s3')
    s('s_mul_i32 s3, s36, 10240'); s('s_lshl_b32 s62, s%d, 8' % sW); s('s_add_u32 s%d, s3, s62' % sM0)
    s('s_mul_i32 s3, s39, %d' % (160 * 2048)); s('s_lshl_b32 s62, s37, 10'); s('s_add_u32 s3, s3, s62')
    s('s_lshl_b32 s62, s36, 6'); s('s_add_u32 s3, s3, s62'); s('s_lshl_b32 s62, s%d, 3' % sW); s('s_add_u32 s%d, s3, s62' % (sM0 + 1))
    s('v_bfe_u32 v%d, v%d, 3, 2' % (t + 1, t))
    s('v_add_u32 v%d, s63, v%d' % (t + 3, t + 1))
    s('v_lshl_add_u32 v%d, v%d, 3, v%d' % (t + 4, t + 3, t + 2))
    s('v_lshrrev_b32 v%d, 1, v%d' % (t + 5, t + 3))
    s('v_and_b32 v%d, 15, v%d' % (t + 6, t + 4))
    s('v_lshlrev_b32 v%d, 4, v%d' % (t + 6, t + 6))
    s('v_lshl_add_u32 v%d, v%d, 10, v%d' % (t + 6, t + 5, t + 6))
    s('v_lshrrev_b32 v%d, 5, v%d' % (t + 1, t))
    s('v_mul_u32_u24 v%d, %d, v%d' % (t + 5, PST, t + 1))
    s('v_add3_u32 v%d, v%d, v%d, s%d' % (AD, t + 6, t + 5, sM0))
    s('v_lshlrev_b32 v%d, 5, v%d' % (t + 1, t + 1))
    s('v_lshl_add_u32 v%d, v%d, 11, v%d' % (t + 4, t + 4, t + 1))
    s('v_add_u32 v%d, s%d, v%d' % (OD, sM0 + 1, t + 4))
    s('s_add_u32 s63, s63, 4')
    s('s_lshr_b32 s3, s63, 1'); s('s_lshl_b32 s3, s3, 10'); s('s_and_b32 s62, s63, 1'); s('s_lshl_b32 s62, s62, 7'); s('s_add_u32 s3, s3, s62')
    s('s_add_u32 s3, s3, s%d' % sM0)
    s('v_lshrrev_b32 v%d, 3, v%d' % (t + 3, t))
    s('v_mul_u32_u24 v%d, %d, v%d' % (t + 5, PST, t + 3))
    s('v_lshl_add_u32 v%d, v%d, 4, v%d' % (t + 5, t + 2, t + 5))
    s('v_add_u32 v%d, s3, v%d' % (AD2, t + 5))
    s('s_lshl_b32 s3, s63, 14'); s('s_add_u32 s3, s3, s%d' % (sM0 + 1))
    s('v_lshl_add_u32 v%d, v%d, 11, v%d' % (t + 4, t + 2, t + 1))
    s('v_and_b32 v%d, 24, v%d' % (t + 1, t))
    s('v_cmp_eq_u32 vcc, 0, v%d' % (t + 1))
    s('v_add_u32 v%d, s3, v%d' % (t + 4, t + 4))
    s('v_mov_b32 v%d, 0x40000000' % (t + 7))
    s('v_cndmask_b32 v%d, v%d, v%d, vcc' % (OD2, t + 7, t + 4))
    s('v_mov_b32 v%d, 0x3f80' % C10); s('v_mov_b32 v%d, 0x3f800000' % C01)
    return s.items

LA, LO, LD, LA2, LD2, QAD, CL = 108, 109, 110, 111, 112, 113, 114
ODS = ((116, 117), (118, 119), (90, 91))
sI0, sI1, sN, sDB, sIT = 13, 14, 15, 12, 7
def red_addr_dyn(o):
    s = Seg('t')
    t = RT
    s('s_lshl_b32 s3, s%d, 4' % sG); s('s_and_b32 s62, s38, %d' % (15 & ~(16 // o.rep - 1))); s('s_add_u32 s3, s3, s62'); s('s_lshl_b32 s3, s3, 8')
    s('v_lshrrev_b32 v%d, 2, v%d' % (t, LANE16)); s('v_add_u32 v%d, s3, v%d' % (IA, t))
    s('v_lshrrev_b32 v%d, 4, v%d' % (t, LANE16))
    s('v_and_b32 v%d, 7, v%d' % (t + 2, t))
    s('v_lshrrev_b32 v%d, 5, v%d' % (t + 1, t))
    s('v_bfe_u32 v%d, v%d, 3, 2' % (LO, t))
    s('v_mul_u32_u24 v%d, %d, v%d' % (t + 5, PST, t + 1))
    s('v_lshl_add_u32 v%d, v%d, 4, v%d' % (LA, t + 2, t + 5))
    s('v_lshlrev_b32 v%d, 5, v%d' % (t + 1, t + 1))
    s('v_lshl_add_u32 v%d, v%d, 11, v%d' % (t + 4, t + 2, t + 1))
    s('v_lshl_add_u32 v%d, v%d, 14, v%d' % (LD, LO, t + 4))
    s('v_cmp_eq_u32 vcc, 0, v%d' % LO)
    s('v_lshrrev_b32 v%d, 3, v%d' % (t + 3, t))
    s('v_mov_b32 v%d, 0x40000000' % (t + 7))
    s('v_cndmask_b32 v%d, v%d, v%d, vcc' % (LD2, t + 7, t + 4))
    s('v_mul_u32_u24 v%d, %d, v%d' % (t + 5, PST, t + 3))
    s('v_lshl_add_u32 v%d, v%d, 4, v%d' % (LA2, t + 2, t + 5))
    if o.sl8:
        s('v_lshl_add_u32 v%d, v%d, 8, v%d' % (LA2, LO, LA))
        s('v_lshl_add_u32 v%d, v%d, 3, v%d' % (LD2, LO, t + 4))
    s('s_mul_i32 s3, s39, %d' % (160 * 2048)); s('s_lshl_b32 s62, s37, 10'); s('s_add_u32 s%d, s3, s62' % sDB)
    s('s_lshl_b32 s3, s%d, 7' % sG); s('s_add_u32 s3, s3, 0x10000')
    s('v_min_u32 v%d, 1, v%d' % (t + 3, t)); s('v_lshlrev_b32 v%d, 30, v%d' % (t + 3, t + 3)); s('v_add_u32 v%d, s3, v%d' % (QAD, t + 3))
    s('v_mov_b32 v%d, 0x3f80' % C10); s('v_mov_b32 v%d, 0x3f800000' % C01)
    return s.items

def gen_op(o):
    s = Seg('op')
    exr = (lambda c: (EX, EX + 81920, 'ex%d' % c.get('redo', 0)))
    KSL = [(4 * c + r, [(2 * a + e, kk) for kk in range(2) for e in range(2)]) for c in range(4) for a in range(2) for r in range(4)]
    def reads_for(ks):
        u, fr = KSL[ks]
        base = OSLOT[u % 8]
        areg, imm = (80, base) if base < V0 else (84, base - V0)
        return [I('ds_read_b64_tr_b16 %s, v%d offset:%d' % (ar(KB + 16 * (ks & 1) + 4 * i + 2 * e, 2), areg + jn, imm + 8192 * kk + 4096 * e), lds=(base, base + 16384, 'wo%d' % u))
                for i, (jn, kk) in enumerate(fr) for e in range(2)]
    def conv(c, a):
        out = []
        for j in range(5):
            b = etile(c, 2 * a, j)
            cv = [I('v_cvt_pk_bf16_f32 v%d, v%d, v%d' % (b + i, b + 2 * i, b + 2 * i + 1)) for i in range(4)]
            out.append(cv[:2]); out.append(cv[2:])
            out.append([I('s_add_u32 s%d, s%d, 0x%x' % (sA, sCP + c, (10 * a + j) * 1024)),
                        I('buffer_store_dwordx4 %s, v%d, s[%d:%d], s%d offen %s' % (vr(b, 4), PO, SP_, SP_ + 3, sA, o.st_pol), tag='st%d' % c)])
        return out
    s('s_mov_b32 s%d, 0' % sREDO)
    s.add(reads_for(0))
    part = [I('ds_read_b128 %s, v98 offset:%d' % (ar(PART + 4 * f, 4), 1024 * f), lds=exr) for f in range(20)]
    own = [I('ds_read_b128 %s, v97 offset:%d' % (ar(OWN + 4 * f, 4), 1024 * f), lds=exr) for f in range(20)]
    s('s_mul_i32 s3, s%d, 80' % sP); s('s_mul_i32 s36, s%d, 5' % sHF); s('s_add_u32 s3, s3, s36'); s('s_lshl_b32 s3, s3, 10')
    s('v_add_u32 v%d, s3, v%d' % (PO, LANE16))
    extra = [part[i:i + 2] for i in range(0, 20, 2)] + [own[i:i + 2] for i in range(0, 20, 2)]
    vq = []
    ra = red_addr_dyn(o) if o.dyn else red_addr(o)
    seen = set()
    first_use, last_use = {}, {}
    for ks, (u, fr) in enumerate(KSL):
        first_use.setdefault(u, ks); last_use[u] = ks
    pending = list(range(4, 16))
    for ks, (u, fr) in enumerate(KSL):
        c, phi, dh = u >> 2, (u >> 1) & 1, u & 1
        if ks % 2 == 0: tstamp(s, o, 'o', ks // 2)
        buf = ks & 1
        mf = []
        for i, (jn, kk) in enumerate(fr):
            sidx = 2 * dh + kk
            first = (c, jn) not in seen; seen.add((c, jn))
            for j in range(5):
                d = vr(etile(c, jn, j), 4)
                if phi: bf = ar(PART + 16 * j + 4 * sidx, 4)
                elif c == 0: bf = vr(16 * j + 4 * sidx, 4)
                else: bf = ar(OWN + 16 * j + 4 * sidx, 4)
                mf.append(mfma(d, ar(KB + 16 * buf + 4 * i, 4), bf, '0' if first else d))
        need = regs('a', KB + 16 * buf, 16)
        if phi and c == 0: need = need + regs('a', PART, 80)
        bar = None
        nxt = KSL[ks + 1][0] if ks + 1 < 32 else None
        if nxt is not None and first_use[nxt] == ks + 1:
            if nxt == 3: need = need + regs('a', OWN, 80) + regs('a', PART, 80)
            new = []
            for v in list(pending):
                ok = (v == 4 and nxt >= 1) or (5 <= v <= 7 and nxt >= 3) or (v >= 8 and last_use[v - 8] <= ks)
                if not ok: break
                new += dma_wo(o, v); pending.remove(v)
            bar = dict(tags=['wo%d' % nxt])
            barrier_hooks.append(lambda new=new: vq.extend(new))
        rds = reads_for(ks + 1) if nxt is not None else []
        if ks == 4: extra += [ra[i:i + 2] for i in range(0, len(ra), 2)]
        if ks % 4 == 0 and ks > 0:
            cv = [[]] * 2 + conv((ks - 4) >> 3, ((ks - 4) >> 2) & 1)
            extra[0:0] = cv
        for cc, at in enumerate(int(x) for x in o.fl.split(',')):
            if ks == at: extra.insert(0, [Wait(tags=['st%d' % cc])] + flag_ops(o, cc))
        for x in (o.cfl.split(',') if o.cfl else []):
            cc, at = (int(y) for y in x.split(':'))
            if ks == at: extra.insert(0, [CondOps(['st%d' % cc], [i.text for i in flag_ops(o, cc)], 43)])
        if o.early:
            if ks == o.epoll: extra.insert(0, [I(poll_txt(), tag='poll')])
            if ks == o.epoll + 2:
                extra += [[I('s_mov_b32 s%d, s%d' % (SG2, SG)), I('s_mov_b32 s%d, s%d' % (SG2 + 1, SG + 1))],
                          [Wait(regs=[('v', PL)]), I('v_cmp_gt_u32 vcc, 1, v%d' % PL), I('s_mov_b32 s%d, 0x20000' % (SG2 + 3)), I('s_cmp_eq_u64 vcc, 0'),
                           I('s_cselect_b32 s%d, 0x%x, 0' % (SG2 + 2, 16 * PST)), I('s_cselect_b32 s%d, 1, 0' % sE)]]
                for g in load_groups(o, 0, lambda k: vr(144 + 4 * k, 4), sB, SG2): extra += [g] + [[]] * (o.ldevery - 1)
        if o.dyn and o.eclaim and ks == o.eclaim:
            extra.insert(0, [I('v_mov_b32 v%d, %d' % (CL, o.nb)), I('buffer_atomic_add v%d, v%d, s[%d:%d], 0 offen sc0' % (CL, QAD, SF, SF + 3), tag='claim'), I(poll_txt(), tag='poll')])
        elif ks == 30 and not (o.dyn and o.eclaim): extra.insert(0 if o.early else len(extra), [I(poll_txt(), tag='poll')])
        gemm_kstep(s, mf, need, rds, bar, extra, o.oevery, vq)
        if ks % 8 == 7: stamp(s, o, 7 + c)
    extra = [g for g in extra if g]
    assert not extra and not vq and not pending, (len(extra), len(vq), pending)
    s('s_nop 3')
    for g in conv(3, 1): s.add(g)
    stamp(s, o, 11)
    if o.early:
        s('s_cmp_lg_u32 s%d, 0' % sE)
        s('s_cbranch_scc1 L_redE')
    return s

def summ_ops(s, buf, o2):
    a = AC
    for i in range(16): s('v_mov_b32 v%d, 0' % (a + i))
    for k in range(10):
        if k in (0, 4, 8): s.wait(regs=regs('v', buf + 4 * k, 16 if k < 8 else 8))
        for d in range(4):
            x = buf + 4 * k + d
            b = a + (8 if k >= 8 else 0)
            s('v_dot2c_f32_bf16 v%d, v%d, v%d' % (b + 2 * d, x, C10)); s('v_dot2c_f32_bf16 v%d, v%d, v%d' % (b + 2 * d + 1, x, C01))
    t = RT
    s('s_nop 2')
    for i in range(8): s('v_add_f32_dpp v%d, v%d, v%d row_ror:8 row_mask:0xf bank_mask:0xf' % (t + i, a + 8 + i, a + 8 + i))
    for i in range(8): s('v_mov_b32 v%d, v%d' % (a + 8 + i, t + i))
    s('s_nop 0')
    for i in range(8): s('v_permlane16_swap_b32 v%d, v%d' % (t + i, a + 8 + i))
    for i in range(8): s('v_add_f32 v%d, v%d, v%d' % (a + 8 + i, a + 8 + i, t + i))
    for b in (a, a + 8):
        for i in range(4): s('v_permlane32_swap_b32 v%d, v%d' % (b + i, b + 4 + i))
    for b in (a, a + 8):
        for i in range(4): s('v_add_f32 v%d, v%d, v%d' % (b + i, b + i, b + 4 + i))
    for n_, b in enumerate((a, a + 8)):
        s('v_cvt_pk_bf16_f32 v%d, v%d, v%d' % (o2 + 2 * n_, b, b + 1)); s('v_cvt_pk_bf16_f32 v%d, v%d, v%d' % (o2 + 2 * n_ + 1, b + 2, b + 3))

def gen_red_dyn(o):
    poll = poll_txt()
    BUF = (144, 184, 0)
    NB = o.nb
    NSL = 320 if o.sl8 else 256
    def chunk_of(s, dst, idx):
        if o.sl8: s('s_mul_i32 s%d, s%d, 52429' % (dst, idx)); s('s_lshr_b32 s%d, s%d, 22' % (dst, dst))
        else: s('s_lshr_b32 s%d, s%d, 6' % (dst, idx))
    def claim(s, n):
        s('v_mov_b32 v%d, %d' % (CL, n))
        s('buffer_atomic_add v%d, v%d, s[%d:%d], 0 offen sc0' % (CL, QAD, SF, SF + 3), tag='claim')
    def check(s, idx, name):
        chunk_of(s, sN, idx); s('s_add_u32 s%d, s%d, 1' % (sN, sN))
        s.wait(regs=[('v', PL)])
        s('v_cmp_gt_u32 vcc, s%d, v%d' % (sN, PL))
        s('s_cbranch_vccnz L_spin%s' % name)
        s.label('L_got%s' % name)
    def addr(s, idx, x):
        t = RT
        if o.sl8:
            s('s_sub_u32 s3, s%d, 1' % sN); s('s_mul_i32 s36, s3, 80'); s('s_sub_u32 s36, s%d, s36' % idx)
            if o.rotc: s('s_add_u32 s3, s3, s39'); s('s_and_b32 s3, s3, 3')
            s('s_bfe_u32 s62, s36, 0x10001'); s('s_lshl_b32 s62, s62, 2'); s('s_add_u32 s3, s3, s62'); s('s_lshl_b32 s3, s3, 1')
            s('s_and_b32 s62, s36, 1'); s('s_add_u32 s3, s3, s62')
            s('s_lshr_b32 s36, s36, 2')
            s('s_lshl_b32 s62, s3, 6'); s('s_lshl_b32 s63, s36, 14'); s('s_add_u32 s62, s62, s63'); s('s_add_u32 s62, s62, s%d' % sDB)
            s('v_add_u32 v%d, s62, v%d' % (ODS[x][0], LD2))
            s('s_mul_i32 s3, s3, 10'); s('s_lshr_b32 s62, s36, 1'); s('s_add_u32 s3, s3, s62'); s('s_lshl_b32 s3, s3, 10')
            s('s_and_b32 s36, s36, 1'); s('s_lshl_b32 s36, s36, 7'); s('s_add_u32 s3, s3, s36')
            s('v_add_u32 v%d, s3, v%d' % (AD, LA2))
            return
        s('s_lshr_b32 s3, s%d, 6' % idx)
        if o.rotc: s('s_add_u32 s3, s3, s39'); s('s_and_b32 s3, s3, 3')
        s('s_bfe_u32 s36, s%d, 0x10005' % idx); s('s_lshl_b32 s36, s36, 2'); s('s_add_u32 s3, s3, s36'); s('s_lshl_b32 s3, s3, 1')
        s('s_bfe_u32 s36, s%d, 0x10004' % idx); s('s_add_u32 s3, s3, s36')
        s('s_and_b32 s36, s%d, 3' % idx)
        s('s_mul_i32 s62, s3, 10240'); s('s_lshl_b32 s63, s36, 8'); s('s_add_u32 s%d, s62, s63' % sM0)
        s('s_lshl_b32 s62, s3, 3'); s('s_add_u32 s62, s62, s36'); s('s_lshl_b32 s62, s62, 3'); s('s_add_u32 s62, s62, s%d' % sDB)
        s('s_bfe_u32 s63, s%d, 0x20002' % idx); s('s_mul_i32 s63, s63, 5')
        s('v_add_u32 v%d, s63, v%d' % (t, LO))
        s('s_lshl_b32 s3, s63, 14'); s('s_add_u32 s62, s62, s3')
        s('v_lshrrev_b32 v%d, 1, v%d' % (t + 1, t))
        s('v_and_b32 v%d, 1, v%d' % (t, t))
        s('v_add_u32 v%d, s62, v%d' % (ODS[x][0], LD))
        s('v_lshlrev_b32 v%d, 7, v%d' % (t, t))
        s('s_add_u32 s62, s62, 0x10000')
        s('v_lshl_add_u32 v%d, v%d, 10, v%d' % (t, t + 1, t))
        s('v_add_u32 v%d, s62, v%d' % (ODS[x][1], LD2))
        s('v_add3_u32 v%d, v%d, v%d, s%d' % (AD, t, LA, sM0))
        s('s_lshr_b32 s3, s63, 1'); s('s_add_u32 s3, s3, 2'); s('s_lshl_b32 s3, s3, 10'); s('s_and_b32 s63, s63, 1'); s('s_lshl_b32 s63, s63, 7')
        s('s_add_u32 s3, s3, s63'); s('s_add_u32 s3, s3, s%d' % sM0)
        s('v_add_u32 v%d, s3, v%d' % (AD2, LA2))
    def loads(s, x, ks=range(10)):
        for k in ks:
            if o.sl8 and k >= 8: continue
            off, ad = (2 * PST * k, AD) if k < 8 else (8 * PST * (k - 8), AD2)
            s('s_mov_b32 s%d, 0x%x' % (sA, off))
            if o.rcap: s('s_waitcnt vmcnt(%d)' % o.rcap)
            s('buffer_load_dwordx4 %s, v%d, s[%d:%d], s%d offen %s' % (vr(BUF[x] + 4 * k, 4), ad, SG, SG + 3, sA, o.rd_pol))
    def finish(s, x):
        o2 = (100, 104, 92)[x]
        if o.sl8:
            a = AC
            for k in range(8):
                if k in (0, 4): s.wait(regs=regs('v', BUF[x] + 4 * k, 16))
                for d in range(4):
                    r = BUF[x] + 4 * k + d
                    if k == 0: s('v_lshlrev_b32 v%d, 16, v%d' % (a + 2 * d, r)); s('v_and_b32 v%d, 0xffff0000, v%d' % (a + 2 * d + 1, r))
                    else: s('v_dot2c_f32_bf16 v%d, v%d, v%d' % (a + 2 * d, r, C10)); s('v_dot2c_f32_bf16 v%d, v%d, v%d' % (a + 2 * d + 1, r, C01))
            s('s_nop 2')
            for i in range(4): s('v_permlane32_swap_b32 v%d, v%d' % (a + i, a + 4 + i))
            for i in range(4): s('v_add_f32 v%d, v%d, v%d' % (a + i, a + i, a + 4 + i))
            s('v_cvt_pk_bf16_f32 v%d, v%d, v%d' % (o2, a, a + 1)); s('v_cvt_pk_bf16_f32 v%d, v%d, v%d' % (o2 + 1, a + 2, a + 3))
            s('buffer_store_dwordx2 %s, v%d, s[%d:%d], 0 offen %s' % (vr(o2, 2), ODS[x][0], SO, SO + 3, o.out_pol))
            return
        summ_ops(s, BUF[x], o2)
        for h in range(2): s('buffer_store_dwordx2 %s, v%d, s[%d:%d], 0 offen %s' % (vr(o2 + 2 * h, 2), ODS[x][h], SO, SO + 3, o.out_pol))
    pre = Seg('redpre')
    for i in range(15): tstamp(pre, o, 'r', i)
    pre('s_mov_b32 s%d, 0' % sIT)
    if o.eclaim:
        pre.wait(tags=['claim', 'poll'])
        pre('v_readfirstlane_b32 s%d, v%d' % (sI0, CL))
        pre('s_lshr_b32 s%d, s%d, 6' % (sN, sI0)); pre('s_add_u32 s%d, s%d, 1' % (sN, sN))
        pre('v_cmp_gt_u32 vcc, s%d, v%d' % (sN, PL))
        pre('s_add_u32 s%d, s%d, 1' % (sI1, sI0))
        pre('s_cbranch_vccnz L_late')
        addr(pre, sI0, 0)
        loads(pre, 0, range(o.nfirst))
        pre.wait(tags=['st3'])
        pre.add(flag_ops(o, 3))
        loads(pre, 0, range(o.nfirst, 10))
        late = Seg('late')
        late.label('L_late')
        late('s_waitcnt vmcnt(0)')
        late.add(flag_ops(o, 3))
        late('s_cmp_ge_u32 s%d, 256' % sI0)
        late('s_cbranch_scc1 L_end')
        check(late, sI0, 'P')
        addr(late, sI0, 0)
        loads(late, 0)
        late('s_branch L_rb0')
        o.late = late
        tstamp(pre, o, 'r', 2)
        stamp(pre, o, 12)
    else:
        claim(pre, NB)
        pre.wait(tags=['st3'])
        pre.add(flag_ops(o, 3))
        tstamp(pre, o, 'r', 1)
        pre.wait(tags=['claim'])
        pre('v_readfirstlane_b32 s%d, v%d' % (sI0, CL))
        tstamp(pre, o, 'r', 2)
        stamp(pre, o, 12)
        pre('s_add_u32 s%d, s%d, 1' % (sI1, sI0))
        pre('s_cmp_ge_u32 s%d, %d' % (sI0, NSL))
        pre('s_cbranch_scc1 L_end')
        check(pre, sI0, 'P')
        addr(pre, sI0, 0)
        loads(pre, 0)
    if NB == 3:
        pre('s_cmp_ge_u32 s%d, %d' % (sI1, NSL))
        pre('s_cbranch_scc1 L_rlast0')
        check(pre, sI1, 'Q')
        addr(pre, sI1, 1)
        loads(pre, 1)
        pre('s_add_u32 s%d, s%d, 1' % (sI1, sI1))
    body, fin = [], []
    for x in range(NB):
        y = (x + NB - 1) % NB
        b = Seg('redbody%d' % x)
        b.label('L_rb%d' % x)
        if o.trace == 'r':
            b('%s s[%d:%d]' % (clk(o), sST + 6, sST + 7)); b('s_waitcnt lgkmcnt(0)'); b('s_add_u32 m0, s%d, 3' % sIT); b('s_nop 0'); b('v_writelane_b32 v%d, s%d, m0' % (STV + 2, sST + 6))
        b('s_add_u32 s%d, s%d, 1' % (sIT, sIT)); b('s_cmp_gt_u32 s%d, 400' % sIT); b('s_cbranch_scc1 L_rf%d' % x)
        b('s_cmp_ge_u32 s%d, %d' % (sI1, NSL))
        b('s_cbranch_scc1 L_rf%d' % x)
        check(b, sI1, 'B%d' % x)
        addr(b, sI1, y)
        claim(b, 1)
        b(poll, tag='poll')
        loads(b, y)
        finish(b, x)
        b.wait(regs=[('v', CL)])
        b('v_readfirstlane_b32 s%d, v%d' % (sI1, CL))
        if x == NB - 1: b('s_branch L_rb0')
        body.append(b)
        f = Seg('redfin%d' % x)
        f.label('L_rf%d' % x)
        finish(f, x)
        if NB == 3:
            if x == 2: f.label('L_rlast0')
            finish(f, (x + 1) % 3)
        if x < NB - 1: f('s_branch L_end')
        fin.append(f)
    e = Seg('redend')
    e.label('L_end')
    if o.stamps or o.trace:
        e('s_waitcnt vmcnt(0)')
        tstamp(e, o, 'r', 15)
        stamp(e, o, 13); stamp(e, o, 14); stamp(e, o, 15)
    e.label('L_done')
    e('s_endpgm')
    sp = Seg('spins')
    for n in ('P', 'B0', 'B1') + (('Q', 'B2') if NB == 3 else ()): gen_spin(sp, 'L_spin' + n, 'L_got' + n, poll, ['v_cmp_gt_u32 vcc, s%d, v%d' % (sN, PL), 's_cbranch_vccnz @'], 35)
    sp.label('L_cntspin')
    sp('s_lshl_b32 s%d, s%d, 3' % (sA, sG))
    gen_spin(sp, 'L_cntspin2', 'L_cntok', 'buffer_load_dword v%d, off, s[%d:%d], s%d offset:128 sc1' % (CNT, SD, SD + 3, sA),
             ['v_readfirstlane_b32 s3, v%d' % CNT, 's_cmp_lt_u32 s3, 16', 's_cbranch_scc1 @'], 35)
    return pre, body, fin, e, sp

def gen_red(o, early, sfx):
    s = Seg('red' + sfx)
    if sfx: s.label('L_red' + sfx)
    poll = poll_txt()
    BUF = [144, 184, 0, 40]
    def check(n):
        s.wait(regs=[('v', PL)])
        s('v_cmp_gt_u32 vcc, %d, v%d' % (n, PL))
        s('s_cbranch_vccnz L_spin%d%s' % (n, sfx))
        s.label('L_got%d%s' % (n, sfx))
    def loads(c):
        for g in load_groups(o, c, lambda k: vr(BUF[c] + 4 * k, 4), sA): s.add(g)
    def summ(c): summ_ops(s, BUF[c], 100 + 4 * (c & 1))
    def outst(c):
        o2 = 100 + 4 * (c & 1)
        s('buffer_store_dwordx2 %s, v%d, s[%d:%d], s%d offen %s' % (vr(o2, 2), OD, SO, SO + 3, sCW + c, o.out_pol))
        s('buffer_store_dwordx2 %s, v%d, s[%d:%d], s%d offen %s' % (vr(o2 + 2, 2), OD2, SO, SO + 3, sCW + c, o.out_pol))
    T = lambda i: tstamp(s, o, 'r', i)
    T(0)
    if o.fl3:
        s.wait(tags=['st3'])
        s.add(flag_ops(o, 3))
        check(1)
        T(1); stamp(s, o, 12)
        loads(0)
        T(2)
        check(2)
        T(3)
        s(poll, tag='poll')
        loads(1)
        T(4)
        summ(0)
    else:
        s.wait(regs=[('v', PL)], tags=['st2'])
        s.add(flag_ops(o, 2))
    if o.fl3: pass
    elif not early:
        check(1)
        T(1); stamp(s, o, 12)
        s.wait(regs=regs('v', BUF[0], 40))
        loads(0)
        T(2)
        s.wait(tags=['st3'])
        s.add(flag_ops(o, 3))
        check(2)
        T(3)
        s(poll, tag='poll')
        loads(1)
        T(4)
        summ(0)
    else:
        check(2)
        T(1); stamp(s, o, 12)
        loads(1)
        T(2)
        s.wait(tags=['st3'])
        s.add(flag_ops(o, 3))
        T(3)
        s(poll, tag='poll')
        T(4)
        summ(0)
    T(5)
    check(3)
    T(6); stamp(s, o, 13)
    s(poll, tag='poll')
    loads(2)
    outst(0)
    T(7)
    summ(1)
    T(8)
    check(4)
    T(9); stamp(s, o, 14)
    loads(3)
    outst(1)
    T(10)
    summ(2); outst(2)
    T(11)
    summ(3); outst(3)
    T(12)
    if o.stamps or o.trace:
        s('s_waitcnt vmcnt(0)')
        T(13); T(14); T(15)
        stamp(s, o, 15)
    if not sfx: s.label('L_done')
    s('s_endpgm')
    sp = Seg('spins')
    for n in (2, 3, 4) if early else (1, 2, 3, 4): gen_spin(sp, 'L_spin%d%s' % (n, sfx), 'L_got%d%s' % (n, sfx), poll, ['v_cmp_gt_u32 vcc, %d, v%d' % (n, PL), 's_cbranch_vccnz @'])
    if sfx: return s, sp
    sp.label('L_cntspin')
    sp('s_lshl_b32 s%d, s%d, 3' % (sA, sG))
    gen_spin(sp, 'L_cntspin2', 'L_cntok', 'buffer_load_dword v%d, off, s[%d:%d], s%d offset:128 sc1' % (CNT, SD, SD + 3, sA),
             ['v_readfirstlane_b32 s3, v%d' % CNT, 's_cmp_lt_u32 s3, 16', 's_cbranch_scc1 @'])
    return s, sp

def desc(name, vgpr, accum, sgpr):
    return '''.amdhsa_kernel %s
  .amdhsa_next_free_vgpr %d
  .amdhsa_next_free_sgpr %d
  .amdhsa_accum_offset %d
  .amdhsa_group_segment_fixed_size 0
  .amdhsa_kernarg_size 104
  .amdhsa_user_sgpr_count 2
  .amdhsa_user_sgpr_kernarg_segment_ptr 1
  .amdhsa_system_sgpr_workgroup_id_x 1
  .amdhsa_float_denorm_mode_32 3
.end_amdhsa_kernel
''' % (name, vgpr, sgpr, accum)

def build(o, path):
    o.kvat_l = [int(x) for x in o.kvat.split(',')]
    o.stat_l = [int(x) for x in o.stat.split(',')]
    o.sched = kv_schedule(o)
    Pace.slots = o.slots
    entry, q, s0, attn, epi = gen_entry(o), gen_q(o), gen_s0(o), gen_attn(o), gen_epi(o)
    r0, r1, r2 = gen_redo(o)
    op = gen_op(o)
    if o.dyn:
        pre, body, fin, e, spins = gen_red_dyn(o)
        tail_code = [pre] + body + fin + [e, spins]
        tails = [[pre] + body + body + [fin[0], e], [pre] + body + [body[0], fin[1], e]]
        xtails = [[pre, fin[0], e], [pre, body[0], fin[1], e]]
        if o.eclaim:
            assert o.nb == 2
            h = Seg('h'); h.items = pre.items[:[i for i, it in enumerate(pre.items) if it.kind == 'branch' and 'L_late' in it.text][0] + 1]
            xtails += [[h, o.late, body[0], body[1], fin[0], e], [h, o.late, fin[0], e]]
            tail_code.append(o.late)
        if o.nb == 3:
            h = Seg('h'); h.items = pre.items[:[i for i, it in enumerate(pre.items) if it.kind == 'branch' and 'L_rlast0' in it.text][0] + 1]
            l = Seg('l'); l.items = fin[2].items[[i for i, it in enumerate(fin[2].items) if it.kind == 'label' and it.name == 'L_rlast0'][0]:]
            xtails += [[pre, body[0], body[1], fin[2], e], [pre] + body + [body[0], body[1], fin[2], e], [h, l, e]]
    else:
        red, spins = gen_red(o, False, '')
        redE, spinsE = gen_red(o, True, 'E') if o.early else (Seg('x'), Seg('x'))
        tail_code = [red, redE, spins, spinsE]
        tails = [[red], [redE if o.early else red]]
    traces = []
    for redo in (0, 1):
        tr = [(entry, {}), (q, {})]
        for ps in range(redo + 1):
            if ps: tr += [(r0, {}), (r1, {}), (r1, {}), (r2, {})]
            tr += [(s0, {}), (attn, {}), (epi, dict(redo=ps))]
        tr += [(op, dict(redo=redo))] + [(x, {}) for x in tails[redo]]
        traces.append(('redo%d' % redo, tr))
    if o.dyn:
        base = traces[0][1][:-len(tails[0])]
        for i, xt in enumerate(xtails): traces.append(('x%d' % i, base + [(x, {}) for x in xt]))
    resolve([t for _, t in traces])
    allerr = []
    for name, tr in traces: allerr += check(tr, name)[0]
    for e in allerr[:30]: print('ERR', e)
    if allerr: print(len(allerr), 'errors')
    hdr = open('concat_heads__gqa_block_cached__gqa_block_cached__near_ridge.s.ref').read().split('; Override')[0]
    txt = hdr + '; @launch grid=(256,1,1) block=(256,1,1) lds=163840\n'
    txt += '.amdgcn_target "amdgcn-amd-amdhsa--gfx950"\n.text\n.globl %s\n.p2align 8\n.type %s,@function\n%s:\n' % (KN, KN, KN)
    for sg in [entry, q, s0, attn, epi, op] + tail_code + [r0, r1, r2]: txt += sg.text()
    txt += 'L_code_end:\n'
    txt += '.section .rodata,"a"\n.p2align 6\n' + desc(KN, 512, 256, 100)
    open(path, 'w').write(txt)
    return not allerr

if __name__ == '__main__':
    o = Opt()
    path = sys.argv[1]
    for kv in sys.argv[2:]:
        k, v = kv.split('=')
        cur = getattr(o, k)
        setattr(o, k, int(v) if isinstance(cur, int) else v.replace('+', ' '))
    ok = build(o, path)
    print('written', path, 'ok' if ok else 'WITH ERRORS', {h: len(v) for h, v in o.sched.items() if len(v) != 4 and (len(v) or h < 62)} if '-v' in path else '')
```

```python
import sys, struct, math
from fw import *

KN = "concat_heads__gqa_block_cached__gqa_block_cached__near_ridge_kernel"
WS_BYTES = 287834112
import os
PST = int(os.environ.get('PST', 172032))
INB = 256 * PST
def f2u(x): return struct.unpack('<I', struct.pack('<f', x))[0]

class Opt:
    kv_pol = 'nt'; w_pol = ''; st_pol = 'sc1'; rd_pol = 'sc1'; fl_pol = 'sc1'; out_pol = ''
    stamps = 0; cyc = 0; dbgst = 0; trace = ''
    force_redo = 0
    codepf = 1
    par = 1
    qevery = 3
    qpack = 0
    x1e = 0
    defer = 0
    capalt = 0
    lite = 0
    slots = 1
    kvat = '5,7,9,11'
    cap = 4
    cap2 = 0
    rotp = 1
    stage = 0
    stat = '8,10'
    lsum = 1
    uni = 1
    hold = 0
    lasth = 57
    ninit = 10
    oevery = 3
    loc = -1
    flagat = 5
    rotc = 1
    exsp = 0
    dyn = 1
    nb = 3
    rep = 4
    fl = '13,23'
    cfl = ''
    rcap = 0
    sl8 = 1
    eclaim = 0
    nfirst = 5
    fl3 = 1
    early = 0
    epoll = 24
    ldevery = 5
    pfo = 0
    diag = ''

V0 = 98304
KAD = lambda j: 16384 * (j % 5)
VAD = lambda j: (V0, V0 + 16384, V0 + 32768, V0 + 49152, V0 - 16384)[(j + 2) % 5]
XBUF = lambda m: 32768 + 20480 * (m & 1)
WAD = lambda n: (V0 + 16384, V0 - 16384, V0)[n % 3]
EX = 16384
FLG = VAD(31)
OSLOT = [VAD(28), KAD(30), VAD(29), VAD(30), VAD(31), 16384, 32768, 49152]

S, P, NM, L = 0, 40, 80, 100
KA, KA2, VA, VA2, DK, DV, LANE16, CNT, FLA, CA = 105, 109, 113, 121, 129, 133, 135, 136, 137, 138
DWO = VA2
STV = 140
OV, NOV = 144, 28
XAD, DX, DWQ, DUM = 48, 50, 51, 59
Q, KB, VB, OA = 0, 80, 112, 144
XF = 144
OWN, PART = 0, 144
STG = 216
LS, ONES = 192, 212
sW, sP, sREDO, sCNT = 4, 5, 6, 7
SX, SWQ, SK, SV, SWO, SP_ = 8, 12, 16, 20, 24, 28
sOK, sOV, sMK = 32, 33, 34
sBR, sHP, sBT = 37, 38, 39
sWS = 40
sCW, sCP = 44, 48
sC, sTHR = 54, 56
sA, sB = 58, 59
sW1K, sHF = 60, 61
sST = 64
SF, SD, SO = 72, 76, 80
sG = 84
sM0, sM1 = 86, 88
sXO, sWQO = 90, 91
sO5 = 57
sH, sSW = 100, 101
SG = 96
SG2 = 8
sE = 35

def vr(b, n=1): return 'v%d' % b if n == 1 else 'v[%d:%d]' % (b, b + n - 1)
def ar(b, n=1): return 'a%d' % b if n == 1 else 'a[%d:%d]' % (b, b + n - 1)
def sr(b, n=1): return 's%d' % b if n == 1 else 's[%d:%d]' % (b, b + n - 1)
def mfma(d, a, b, c): return I('v_mfma_f32_16x16x32_bf16 %s, %s, %s, %s' % (d, a, b, c))
def otile(j, db):
    n = 8 * j + db
    return ('v', OV + 4 * n) if n < NOV else ('a', OA + 4 * (n - NOV))
def oreg(j, db):
    k, b = otile(j, db)
    return '%s[%d:%d]' % (k, b, b + 3)
def qacc(db, j):
    n = 8 * j + db
    return 4 * n if n < 12 else OV + 4 * (n - 12)

def clk(o): return 's_memtime' if o.cyc else 's_memrealtime'
def tstamp(s, o, ph, idx):
    if o.trace == ph and idx < 16:
        s('%s s[%d:%d]' % (clk(o), sST + 6, sST + 7)); s('s_waitcnt lgkmcnt(0)')
        s('v_writelane_b32 v%d, s%d, %d' % (STV + 2, sST + 6, idx))
def stamp(s, o, idx):
    st = sST
    def wsrd():
        s('s_mov_b32 s%d, s%d' % (st, sWS)); s('s_mov_b32 s%d, s%d' % (st + 1, sWS + 1))
        s('s_mov_b32 s%d, 0x%x' % (st + 2, WS_BYTES)); s('s_mov_b32 s%d, 0x20000' % (st + 3))
    if o.trace:
        if idx == 15:
            wsrd()
            s('s_mul_i32 s%d, s2, %d' % (st + 4, 128)); s('s_add_u32 s%d, s%d, 0x%x' % (st + 4, st + 4, WS_BYTES - 256 * 128))
            s('s_min_u32 s3, s%d, 1' % sW); s('s_lshl_b32 s3, s3, 30'); s('s_add_u32 s%d, s%d, s3' % (st + 4, st + 4))
            s('v_mbcnt_lo_u32_b32 v0, -1, 0'); s('v_lshlrev_b32 v0, 3, v0'); s('v_mov_b32 v2, v%d' % (STV + 2)); s('v_mov_b32 v3, 0')
            s('s_mov_b64 exec, 0xffff')
            s('buffer_store_dwordx2 v[2:3], v0, s[%d:%d], s%d offen' % (st, st + 3, st + 4))
        return
    if not o.stamps: return
    if o.lite and idx not in (0, 15): return
    a, b = STV, STV + 1
    if o.dbgst:
        if idx not in (0, 2, 3, 5, 6, 11, 13, 15): return
        idx = (0, 2, 3, 5, 6, 11, 13, 15).index(idx)
        s('s_memrealtime s[%d:%d]' % (st + 4, st + 5)); s('s_memtime s[%d:%d]' % (st + 6, st + 7)); s('s_waitcnt lgkmcnt(0)')
        s('v_mov_b32 v%d, s%d' % (a, st + 4)); s('v_mov_b32 v%d, s%d' % (b, st + 6))
        s('s_sub_u32 s%d, s2, %d' % (st + 4, o.dbgst - 1)); s('s_mul_i32 s%d, s%d, 0x1000' % (st + 4, st + 4))
        s('s_add_u32 s%d, s%d, 0x%x' % (st + 4, st + 4, idx * 8)); s('s_nop 0')
        s('buffer_store_dwordx2 v[%d:%d], off, s[%d:%d], s%d' % (a, b, SD, SD + 3, st + 4))
        return
    s('%s s[%d:%d]' % (clk(o), st + 4, st + 5)); s('s_waitcnt lgkmcnt(0)')
    if idx == 0: s('s_mov_b64 s[%d:%d], s[%d:%d]' % (st + 4, st + 5, st + 6, st + 7))
    wsrd()
    s('v_mov_b32 v%d, s%d' % (a, st + 4)); s('v_mov_b32 v%d, s%d' % (b, st + 5))
    s('s_mul_i32 s%d, s2, %d' % (st + 4, o.stamps * 8))
    s('s_add_u32 s%d, s%d, 0x%x' % (st + 4, st + 4, WS_BYTES - 256 * o.stamps * 8 + idx * 8)); s('s_nop 0')
    s('buffer_store_dwordx2 v[%d:%d], off, s[%d:%d], s%d' % (a, b, st, st + 3, st + 4))

def dma(voff, srd, soff, imm, pol, tag, lo, n=16384):
    return I('buffer_load_dwordx4 v%d, s[%d:%d], s%d offen offset:%d %s lds' % (voff, srd, srd + 3, soff, imm, pol), tag=tag, lds=(lo, lo + n, tag))
def grp4(pre, mk, post=()):
    out = []
    for t in range(4):
        g = list(pre) if t == 0 else []
        g.append(mk(t))
        if t == 3: g += list(post)
        out.append(g)
    return out
def dma_x(o, m):
    buf = XBUF(m)
    out = [[I('s_add_u32 m0, s%d, 0x%x' % (sW1K, buf + 4096 * j)), I('s_add_u32 s%d, s%d, 0x%x' % (sA, sXO, 32768 * j)),
            dma(DX, SX, sA, 0, o.w_pol, 'x%d' % m, buf, 20480)] for j in range(5)]
    out[4] += [I('s_add_u32 s%d, s%d, 128' % (sXO, sXO)), I('s_and_b32 s%d, s%d, 0x3ff' % (sXO, sXO))]
    return out
def dma_wq(o, n):
    b = WAD(n)
    return grp4([I('s_add_u32 m0, s%d, 0x%x' % (sMK, b)), I('s_nop 0')],
                lambda t: dma(DWQ + t, SWQ, sWQO, 1024 * t, o.w_pol, 'wq%d' % n, b),
                [I('s_add_u32 s%d, s%d, 0x40000' % (sWQO, sWQO)), I('s_and_b32 s%d, s%d, 0x3fffff' % (sWQO, sWQO))])
def stage_ld(o, kind):
    srd_, r = (SK, STG) if kind == 'K' else (SV, STG + 16)
    vo = (lambda t: DK + t) if kind == 'K' else (lambda t: DV + (t & 1))
    return [[I('buffer_load_dwordx4 %s, v%d, s[%d:%d], s%d offen offset:%d %s' % (ar(r + 4 * t, 4), vo(t), srd_, srd_ + 3, sO5, 1024 * t, o.kv_pol))] for t in range(4)]
def stage_wr(o, kind):
    b, r, ad = (KAD(5), STG, 139) if kind == 'K' else (VAD(5), STG + 16, 143)
    out = [[I('ds_write_b128 v%d, %s offset:%d' % (ad, ar(r + 4 * t, 4), 1024 * t), lds=(b, b + 16384, '%s5' % kind))] for t in range(4)]
    out[0].insert(0, Wait(regs=regs('a', r, 16)))
    return out
def dma_kv(o, kind, j):
    b, so, srd_ = (KAD(j), sOK, SK) if kind == 'K' else (VAD(j), sOV, SV)
    vo = (lambda t: DK + t) if kind == 'K' else (lambda t: DV + (t & 1))
    return grp4([I('s_add_u32 s%d, s%d, 0x%x' % (so, so, 0x4000 if (o.stage and j == 6) else 0x2000)), I('s_add_u32 m0, s%d, 0x%x' % (sMK, b)), I('s_and_b32 s%d, s%d, 0x3ffff' % (so, so))],
                lambda t: dma(vo(t), srd_, so, 1024 * t, o.kv_pol, '%s%d' % (kind, j), b))
KVSEQ = [(k, j) for j in range(32) for k in 'KV']
def dma_wo(o, u):
    c, phi, dh = u >> 2, (u >> 1) & 1, u & 1
    b = OSLOT[u % 8]
    return grp4([I('s_lshl_b32 s%d, s%d, 2' % (sB, sMK)), I('s_add_u32 s%d, s%d, s%d' % (sB, sB, sCW + c)),
                 I('s_add_u32 m0, s%d, 0x%x' % (sMK, b)), I('s_add_u32 s%d, s%d, 0x%x' % (sB, sB, 65536 * dh))],
                lambda t: dma(DWO + 4 * phi + t, SWO, sB, 1024 * t, o.w_pol, 'wo%d' % u, b))
def capped(o, groups):
    if not o.cap: return groups
    out = []
    for g in groups:
        k = [i for i, x in enumerate(g) if x.kind == 'dma'][0]
        if o.cap2:
            lo = I('s_waitcnt vmcnt(%d)' % o.cap); lo.kind = 'other'
            out.append(g[:k] + [I('s_waitcnt vmcnt(%d)' % o.cap2), I('s_cbranch_vccnz 1'), lo] + g[k:])
        else: out.append(g[:k] + [I('s_waitcnt vmcnt(%d)' % (o.cap - (1 if o.capalt and len(out) % o.capalt == 0 else 0)))] + g[k:])
    return out

def rd_k(j):
    b = KAD(j)
    areg, imm = (KA, b) if b < 65536 else (KA2, b - 65536)
    return [I('ds_read_b128 %s, v%d offset:%d' % (ar(KB + 4 * (4 * kb + s), 4), areg + s, imm + 4096 * kb), lds=(b, b + 16384, 'K%d' % j))
            for s in range(4) for kb in range(2)]
def rd_tr(dst, b, tag):
    areg, imm = (VA, b - V0) if b >= V0 else (VA2, 0)
    return [I('ds_read_b64_tr_b16 %s, v%d offset:%d' % (ar(dst + 4 * d + 2 * e, 2), areg + d, imm + 4096 * e), lds=(b, b + 16384, tag))
            for d in range(8) for e in range(2)]
def rd_v(dst, j): return rd_tr(dst, VAD(j), 'V%d' % j)

def spread(items, gaps):
    d = {g: [] for g in gaps}
    n, m = len(items), len(gaps)
    for i, it in enumerate(items): d[gaps[i * m // n]].append(it)
    return d
def srd(s, r, lo, hi, off, size):
    if off is None: s('s_mov_b32 s%d, s%d' % (r, lo)); s('s_mov_b32 s%d, s%d' % (r + 1, hi))
    else: s('s_add_u32 s%d, s%d, s%d' % (r, lo, off)); s('s_addc_u32 s%d, s%d, 0' % (r + 1, hi))
    if size is not None: s('s_mov_b32 s%d, 0x%x' % (r + 2, size))
    s('s_mov_b32 s%d, 0x20000' % (r + 3))
def kv_start(s, o):
    s('s_mul_i32 s3, s%d, 0x%x' % (sP, 8192 * o.rotp)); s('s_lshl_b32 s36, s%d, 12' % sHF); s('s_add_u32 s3, s3, s36')
    s('s_sub_u32 s%d, s3, 0x2000' % sOK); s('s_mov_b32 s%d, s%d' % (sOV, sOK))
    if o.stage: s('s_add_u32 s%d, s3, 0xa000' % sO5)

def gen_entry(o):
    s = Seg('entry')
    if o.stamps and not o.dbgst: s('%s s[%d:%d]' % (clk(o), sST + 6, sST + 7))
    s('s_cmp_ge_u32 s2, 256')
    s('s_cbranch_scc1 L_done')
    s('v_mov_b32 v64, v0')
    s('s_and_b32 s3, s2, 7')
    s('s_lshr_b32 s36, s2, 3')
    if o.par: s('s_and_b32 s37, s3, 1'); s('s_lshr_b32 s38, s3, 1')
    else: s('s_lshr_b32 s37, s3, 2'); s('s_and_b32 s38, s3, 3')
    s('s_mul_i32 s3, s37, 40'); s('s_add_u32 s42, s0, s3'); s('s_addc_u32 s43, s1, 0')
    s('''s_load_dwordx8 s[44:51], s[42:43], 0
         s_load_dwordx2 s[52:53], s[42:43], 32
         s_load_dwordx2 s[40:41], s[0:1], 96
         s_load_dwordx4 s[92:95], s[0:1], 80''')
    if o.codepf:
        s('s_getpc_b64 s[62:63]')
        s.label('L_pc')
        s('v_lshrrev_b32 v71, 2, v64'); s('v_and_b32 v71, 0x30, v71'); s('v_and_b32 v72, 15, v64'); s('v_or_b32 v71, v71, v72')
        s('s_and_b32 s3, s36, 15'); s('s_lshl_b32 s3, s3, 6')
        s('v_add_lshl_u32 v71, s3, v71, 7')
        s('v_min_u32 v71, L_code_end-L_pc-4, v71')
        s('global_load_dword v%d, v71, s[62:63]' % DUM, dummy=True)
    s('''s_lshl_b32 s38, s38, 2
         s_and_b32 s39, s36, 3
         s_or_b32 s38, s38, s39
         s_lshr_b32 s39, s36, 2''')
    s('v_lshrrev_b32 v71, 6, v64')
    s('v_and_b32 v65, 63, v64')
    s('v_readfirstlane_b32 s%d, v71' % sW)
    s('v_lshrrev_b32 v66, 4, v65')
    s('v_and_b32 v67, 15, v65')
    s('v_and_b32 v69, 7, v65')
    s('s_lshl_b32 s%d, s%d, 10' % (sW1K, sW))
    s('s_lshl_b32 s%d, s%d, 12' % (sMK, sW))
    s('s_lshr_b32 s%d, s%d, 1' % (sP, sW))
    s('s_and_b32 s%d, s%d, 1' % (sHF, sW))
    s('s_lshl_b32 s3, s%d, 2' % sHF)
    s('v_add_u32 v73, s3, v66')
    s('v_xor_b32 v69, v73, v69')
    s('v_lshlrev_b32 v69, 4, v69')
    s('v_lshrrev_b32 v68, 3, v64')
    s('v_lshl_add_u32 v%d, v68, 10, v69' % DX)
    s('v_lshlrev_b32 v70, 1, v66')
    s('v_xor_b32 v70, v70, v67')
    s('v_lshlrev_b32 v70, 4, v70')
    s('v_lshl_add_u32 v68, v73, 13, v70')
    s('s_lshl_b32 s3, s%d, 8' % sP)
    s('v_add_u32 v%d, s3, v68' % DWQ)
    s('v_xor_b32 v68, 0x80, v%d' % DWQ)
    s('v_add_u32 v%d, 0x%x, v68' % (DWQ + 1, 64512))
    s('v_add_u32 v%d, 0x%x, v%d' % (DWQ + 2, 2 * 64512, DWQ))
    s('v_add_u32 v%d, 0x%x, v68' % (DWQ + 3, 3 * 64512))
    s('s_and_b32 s3, s38, 3'); s('s_lshl_b32 s3, s3, 1'); s('s_add_u32 s3, s3, s39'); s('s_and_b32 s3, s3, 7')
    s('s_lshl_b32 s%d, s3, 7' % sXO); s('s_lshl_b32 s%d, s3, 19' % sWQO)
    s('s_mul_i32 s3, s39, 163840'); s('s_lshl_b32 s36, s38, 9')
    s('s_waitcnt lgkmcnt(0)')
    srd(s, SX, 44, 45, 3, 163840)
    srd(s, SWQ, 50, 51, 36, None); s('s_sub_u32 s%d, 0x400000, s36' % (SWQ + 2))
    for g in dma_x(o, 0) + dma_wq(o, 0) + dma_wq(o, 1): s.add(g)
    srd(s, SD, 94, 95, None, 256)
    stamp(s, o, 0)
    s('v_lshlrev_b32 v%d, 4, v65' % LANE16)
    urgent = s
    if o.defer: s = Seg('deferred')
    s('s_mov_b32 s3, 0x%x' % (INB if o.loc < 0 else 0)); srd(s, SF, sWS, sWS + 1, 3, 65536 + 4096)
    s('s_lshl_b32 s%d, s37, 3' % sG); s('s_add_u32 s%d, s%d, s39' % (sG, sG))
    s('s_lshl_b32 s36, s%d, 4' % sG); s('s_add_u32 s36, s36, s38')
    s('s_min_u32 s3, s%d, 1' % sW); s('s_lshl_b32 s3, s3, 30')
    s('s_lshl_b32 s62, s36, 8'); s('s_add_u32 s62, s62, s3')
    s('v_lshlrev_b32 v72, 2, v65'); s('v_add_u32 v73, s62, v72'); s('v_mov_b32 v74, 0')
    s('buffer_store_dword v74, v73, s[%d:%d], 0 offen %s' % (SF, SF + 3, o.fl_pol), tag='clr')
    if o.dyn:
        s('s_lshl_b32 s3, s%d, 8' % sG); s('s_add_u32 s3, s3, 0x10000'); s('s_min_u32 s62, s38, 1'); s('s_lshl_b32 s62, s62, 30'); s('s_add_u32 s3, s3, s62')
        s('v_lshrrev_b32 v73, 1, v64'); s('v_min_u32 v73, 1, v73'); s('v_lshlrev_b32 v73, 29, v73'); s('v_lshl_add_u32 v73, v64, 7, v73'); s('v_add_u32 v73, s3, v73')
        s('buffer_store_dword v74, v73, s[%d:%d], 0 offen %s' % (SF, SF + 3, o.fl_pol))
    if o.loc < 0:
        s('s_mul_i32 s3, s36, %d' % PST); srd(s, SP_, sWS, sWS + 1, 3, 163840)
        s('s_mul_i32 s3, s%d, %d' % (sG, 16 * PST)); srd(s, SG, sWS, sWS + 1, 3, 16 * PST)
    else:
        s('s_lshl_b32 s3, s%d, 23' % sG); s('s_add_u32 s3, s3, 0x41ffff')
        srd(s, SG, sWS, sWS + 1, 3, 1 << 23); s('s_and_b32 s%d, s%d, 0xffc00000' % (SG, SG))
        s('s_lshr_b32 s3, s38, 3'); s('s_lshl_b32 s3, s3, 22'); s('s_and_b32 s62, s38, 7'); s('s_lshl_b32 s62, s62, 18'); s('s_add_u32 s3, s3, s62')
        srd(s, SP_, SG, SG + 1, 3, 1 << 18)
        s('s_mov_b32 s%d, 0' % sSW)
        if o.loc < 2:
            s('s_getreg_b32 s3, hwreg(HW_REG_XCC_ID)'); s('s_bfe_u32 s3, s3, 0x10002'); s('s_xor_b32 s%d, s3, %d' % (sH, o.loc))
        else:
            s('s_lshl_b32 s3, s%d, 8' % sW); s('s_add_u32 s62, s%d, s3' % SP_); s('s_addc_u32 s63, s%d, 0' % (SP_ + 1))
            s('s_load_dword s3, s[62:63], 0x1000'); s('s_waitcnt lgkmcnt(0)')
            s('s_mov_b32 s68, 0x5bd1e995')
            for txt in ('s_load_dword s69, s[62:63], 0x2000', 's_load_dword s68, s[62:63], 0', 's_waitcnt lgkmcnt(1)', 's_mov_b32 s3, s68', 's_waitcnt lgkmcnt(0)'):
                it = I(txt); it.kind = 'other'; s.add(it)
            s('s_cmp_eq_u32 s3, 0x5bd1e995'); s('s_cselect_b32 s%d, 1, 0' % sH)
    s('''s_lshl_b32 s3, s39, 4
         s_add_u32 s3, s3, s38
         s_lshl_b32 s3, s3, 1
         s_add_u32 s3, s3, s%d
         s_lshl_b32 s3, s3, 18''' % sP)
    srd(s, SK, 46, 47, 3, 0x40000); srd(s, SV, 48, 49, 3, 0x40000)
    s('s_lshl_b32 s3, s38, 18'); srd(s, SWO, 52, 53, 3, 0x40000)
    srd(s, SO, 92, 93, None, 8 * 160 * 2048)
    kv_start(s, o)
    for c in range(4):
        if o.rotc: s('s_add_u32 s3, s39, %d' % c); s('s_and_b32 s3, s3, 3')
        else: s('s_mov_b32 s3, %d' % c)
        s('s_lshl_b32 s%d, s3, 7' % (sCW + c)); s('s_mul_i32 s%d, s3, %d' % (sCP + c, 20480 if o.loc < 0 else 32768))
    c = math.log2(math.e) / math.sqrt(128.0)
    s('s_mov_b32 s%d, 0x%x' % (sC, f2u(c))); s('s_mov_b32 s%d, 0x%x' % (sC + 1, f2u(c)))
    s('s_mov_b32 s%d, 0x%x' % (sTHR, f2u(2.0 ** 24 if not o.force_redo else 1.0)))
    s('s_mov_b32 s%d, 0' % sREDO)
    s('s_lshl_b32 s3, s%d, 12' % sG); s('s_lshl_b32 s36, s38, 4'); s('s_add_u32 s3, s3, s36')
    s('s_lshl_b32 s36, s%d, 2' % sW); s('s_add_u32 s3, s3, s36')
    s('v_lshlrev_b32 v68, 8, v67'); s('v_add_u32 v68, s3, v68')
    s('v_and_b32 v69, %d, v65' % (48 | (16 // o.rep - 1))); s('v_min_u32 v69, 1, v69'); s('v_lshl_add_u32 v%d, v69, 30, v68' % FLA)
    s('v_min_u32 v69, 1, v64'); s('v_lshlrev_b32 v69, 30, v69'); s('s_lshl_b32 s3, s%d, 3' % sG); s('s_add_u32 s3, s3, 128'); s('v_add_u32 v%d, s3, v69' % CA)
    s('v_mov_b32 v%d, 1' % CNT)
    s('v_xor_b32 v68, v66, v67'); s('v_lshlrev_b32 v68, 4, v68')
    s('v_lshl_add_u32 v%d, v66, 8, v68' % DK)
    for t in range(1, 4): s('v_xor_b32 v%d, %d, v%d' % (DK + t, 64 * t, DK))
    s('v_lshl_add_u32 v%d, v66, 8, v70' % DV)
    s('v_xor_b32 v%d, 0x80, v%d' % (DV + 1, DV))
    s('v_lshl_add_u32 v68, v67, 8, v68')
    s('s_lshl_b32 s36, s%d, 13' % sP)
    s('v_add_u32 v%d, s36, v68' % KA)
    for k in range(1, 4): s('v_xor_b32 v%d, %d, v%d' % (KA + k, 64 * k, KA))
    for k in range(4): s('v_add_u32 v%d, 0x10000, v%d' % (KA2 + k, KA + k))
    late, s = s, urgent
    s('s_lshl_b32 s36, s%d, 13' % sP)
    s('v_lshrrev_b32 v68, 1, v67'); s('v_xor_b32 v68, v68, v66'); s('v_lshlrev_b32 v68, 4, v68')
    s('v_lshl_add_u32 v68, v67, 7, v68')
    s('s_mul_i32 s3, s%d, 10240' % sHF)
    s('v_add_u32 v%d, s3, v68' % XAD)
    s('v_xor_b32 v%d, 64, v%d' % (XAD + 1, XAD))
    s('v_lshrrev_b32 v68, 2, v65')
    s('v_and_b32 v69, 7, v68')
    s('v_lshlrev_b32 v69, 5, v69')
    s('v_lshl_add_u32 v69, v68, 8, v69')
    s('v_and_b32 v68, 3, v65')
    s('v_lshl_add_u32 v69, v68, 3, v69')
    s('s_add_u32 s36, s36, 0x%x' % V0)
    s('v_add_u32 v%d, s36, v69' % VA)
    for k in range(1, 8): s('v_xor_b32 v%d, %d, v%d' % (VA + k, 32 * k, VA))
    for k in range(8): s('v_subrev_u32 v%d, 0x4000, v%d' % (VA2 + k, VA + k))
    if o.stage:
        s('s_add_u32 s3, s%d, 0x%x' % (sMK, KAD(5))); s('v_add_u32 v139, s3, v%d' % LANE16)
        s('s_add_u32 s3, s%d, 0x%x' % (sMK, VAD(5))); s('v_add_u32 v143, s3, v%d' % LANE16)
    stamp(s, o, 1)
    o.deferred = late.items if o.defer else []
    return s

def is_vm(g): return any(x.kind in ('dma', 'vst', 'vld') for x in g)
class Pace: since = 99; slots = 0
class Atomic(list): pass
barrier_hooks = []
def gemm_kstep(s, mf, need, reads, barrier, extra, every=1, vq=None, pack=False):
    n = len(mf)
    rg = list(range(2, 2 + (len(reads) + 1) // 2)) if (n <= 20 or pack) else list(range(2, 2 + len(reads)))
    rd = spread(reads, rg) if reads else {}
    part = False
    for g in range(n):
        if g == 0: s.wait(regs=need)
        s.add(mf[g])
        if g == 1 and barrier is not None:
            s.wait(**barrier)
            s('s_barrier')
            for f in barrier_hooks: f()
            del barrier_hooks[:]
        s.add(rd.get(g, []))
        Pace.since += 1
        busy = len(rd.get(g, []))
        if Pace.slots:
            free = 2 - busy - (2 if (g == 1 and barrier is not None) else 0)
            m0_fresh = False
            while free > 0:
                q = vq if vq else None
                if q is not None:
                    head = [x for x in q[0] if not (x.kind == 'nop')]
                    vm = head[0].kind in ('dma', 'vst', 'vld')
                    if vm and (Pace.since < every or m0_fresh): q = None
                if q is None:
                    while extra and extra[0] == [] and free == 2 - busy:
                        extra.pop(0); free = 0
                    if free <= 0 or not extra or extra[0] == []: break
                    q = extra
                    if isinstance(q[0], Atomic):
                        s.add(list(q.pop(0))); free -= 2; m0_fresh = False
                        continue
                    head = list(q[0])
                    vm = False
                it = head.pop(0)
                s.add(it)
                if it.kind != 'label': free -= 1
                if vm: Pace.since = 0
                m0_fresh = it.kind == 'salu' and ('m0', 0) in it.wr
                if q is extra: part = bool(head)
                if head: q[0] = head
                else: q.pop(0)
            if g == n - 1 and part: s.add(extra.pop(0))
        elif vq and Pace.since >= every and busy < (1 if pack else 2):
            s.add(vq.pop(0)); Pace.since = 0
        elif extra and busy < 2 and (not is_vm(extra[0]) or Pace.since >= every):
            if is_vm(extra[0]): Pace.since = 0
            s.add(extra.pop(0))

def qconv_stream():
    c = sr(sC, 2)
    items = [(j, sidx) for j in range(5) for sidx in range(4)]
    tq = lambda i: 60 + 4 * (i % 4)
    def st1(i):
        j, sidx = items[i]; out = []
        for e in range(2):
            b = qacc(2 * sidx + e, j)
            out += [I('v_pk_mul_f32 %s, %s, %s' % (vr(b, 2), vr(b, 2), c)), I('v_pk_mul_f32 %s, %s, %s' % (vr(b + 2, 2), vr(b + 2, 2), c))]
        for e in range(2):
            b = qacc(2 * sidx + e, j)
            out += [I('v_cvt_pk_bf16_f32 v%d, v%d, v%d' % (tq(i) + 2 * e, b, b + 1)), I('v_cvt_pk_bf16_f32 v%d, v%d, v%d' % (tq(i) + 2 * e + 1, b + 2, b + 3))]
        return out
    sw = lambda op, i: [I('%s v%d, v%d' % (op, tq(i), tq(i) + 2)), I('%s v%d, v%d' % (op, tq(i) + 1, tq(i) + 3))]
    def st4(i):
        j, sidx = items[i]
        return [I('v_accvgpr_write_b32 a%d, v%d' % (Q + 16 * j + 4 * sidx + k, tq(i) + k)) for k in range(4)]
    n = len(items)
    rounds = []
    for i in range(n + 3):
        r = st1(i) if i < n else [I('s_nop 1')]
        if 0 <= i - 3 < n: r += st4(i - 3)
        if 0 <= i - 2 < n: r += sw('v_permlane16_swap_b32', i - 2)
        if 0 <= i - 1 < n: r += sw('v_permlane32_swap_b32', i - 1)
        rounds.append(r)
    return rounds

def gen_q(o):
    s = Seg('qphase')
    def reads_for(n):
        buf = n & 1
        w = rd_tr(KB + 32 * buf, WAD(n), 'wq%d' % n)
        xb = XBUF(n >> 1)
        x = [I('ds_read_b128 %s, v%d offset:%d' % (ar(XF + 20 * buf + 4 * j, 4), XAD + (n & 1), xb + 2048 * j), lds=(xb, xb + 20480, 'x%d' % (n >> 1))) for j in range(5)]
        return x + w
    if o.x1e: s.add(dma_x(o, 1))
    if o.x1e > 1: s.add(dma_wq(o, 2))
    s.wait(tags=['x0', 'wq0'])
    s('s_barrier')
    stamp(s, o, 2)
    s.add(reads_for(0))
    vq = (dma_wq(o, 2) if o.x1e < 2 else []) + (dma_x(o, 1) if not o.x1e else [])
    kv = [dma_kv(o, k, j) for k, j in KVSEQ[:o.ninit]]
    rounds = qconv_stream()
    for n in range(16):
        buf = n & 1
        tstamp(s, o, 'q', n)
        order = [(db, j) for db in range(8) for j in range(5)] if n < 15 else [(db, j) for j in range(5) for db in range(8)]
        mf = []
        for db, j in order:
            d = vr(qacc(db, j), 4)
            mf.append(mfma(d, ar(KB + 32 * buf + 4 * db, 4), ar(XF + 20 * buf + 4 * j, 4), '0' if n == 0 else d))
        m = n + 1
        tags = []
        if m < 16:
            tags = ['wq%d' % m]
            if m % 2 == 0: tags.append('x%d' % (m >> 1))
        else: tags = ['K0']
        new = []
        if m + 2 < 16: new += dma_wq(o, m + 2)
        if m % 2 == 0 and m // 2 + 1 < 8: new += dma_x(o, m // 2 + 1)
        for _ in range(o.kvat_l.count(m)): new += kv.pop(0)
        if o.stage and m in o.stat_l: new += stage_ld(o, 'KV'[o.stat_l.index(m)])
        if m == 14: new += kv.pop(0) + kv.pop(0)
        if m == 16: new += kv.pop(0)
        barrier_hooks.append(lambda new=new: vq.extend(new))
        extra = []
        if n == 0:
            dfr = []
            for x in o.deferred:
                if x.mn == 's_addc_u32': dfr[-1] = Atomic(dfr[-1] + [x])
                else: dfr.append([x])
        if n < 4: extra = dfr
        if n == 3: tailx = extra
        if n == 4:
            for g in dfr: s.add(list(g))
        if n == 15:
            head = sum(rounds[:3], []); del rounds[:3]
            extra = [[]] * 10 + [head[i:i + 2] for i in range(0, len(head), 2)]
        gemm_kstep(s, mf, regs('a', KB + 32 * buf, 32) + regs('a', XF + 20 * buf, 20), reads_for(m) if m < 16 else rd_k(0), dict(tags=tags), extra, o.qevery, vq, o.qpack)
    assert not vq
    for g in extra: s.add(g)
    stamp(s, o, 3)
    kvq = sum(kv, [])
    qk = qk_list(False)
    mx = []
    for j in range(4):
        t = Seg('t'); max8(t, j, MX + j, False); mx.append(t.items)
    done = 3
    pend = []
    first = True
    for r in rounds:
        if kvq: s.add(kvq.pop(0))
        k = 0
        for it in r:
            s.add(it); k += 1
            if pend and k % 2 == 0:
                if first: s.wait(regs=regs('a', KB, 32)); first = False
                s.add(pend.pop(0))
        done += 1
        if done >= 8 and (done - 8) % 4 == 0:
            j = (done - 8) // 4
            pend += qk[8 * j:8 * j + 8]
            if j >= 1: s.add(mx[j - 1])
    s('s_nop 0')
    for i, it in enumerate(qk[32:40]):
        s.add(it)
        if i in (2, 3, 4, 5): s.add(mx[3][i - 2])
    assert not pend
    s.add(kvq)
    s('s_nop 6')
    max8(s, 4, MX + 4, False)
    set_nm(s)
    for j in range(5):
        for i in range(0, 8, 2): s('v_pk_add_f32 %s, %s, %s' % (vr(S + 8 * j + i, 2), vr(S + 8 * j + i, 2), vr(NM + 4 * j, 2)))
    stamp(s, o, 4)
    return s

def qk_list(cinit):
    out = []
    for j in range(5):
        for r in range(8):
            kb, sidx = r & 1, r >> 1
            d = vr(S + 8 * j + 4 * kb, 4)
            cc = d if sidx else (vr(NM + 4 * j, 4) if cinit else '0')
            out.append(mfma(d, ar(KB + 4 * (4 * kb + sidx), 4), ar(Q + 16 * j + 4 * sidx, 4), cc))
    return out
def pv_list(o, par, vb, zero=False):
    out = []
    for j in range(5):
        pj = vr(P + 20 * par + 4 * j, 4)
        out += [mfma(oreg(j, db), ar(vb + 4 * db, 4), pj, '0' if zero else oreg(j, db)) for db in range(8)]
        if o.lsum: out.append(mfma(ar(LS + 4 * j, 4), ar(ONES, 4), pj, '0' if zero else ar(LS + 4 * j, 4)))
    return out
def rowred(s, regs_, tmps, op):
    for sw in ('v_permlane32_swap_b32', 'v_permlane16_swap_b32'):
        for r, t in zip(regs_, tmps): s('v_mov_b32 v%d, v%d' % (t, r))
        for r, t in zip(regs_, tmps): s('%s v%d, v%d' % (sw, t, r))
        for r, t in zip(regs_, tmps): s('%s v%d, v%d, v%d' % (op, r, r, t))
def max8(s, j, m, acc):
    b = S + 8 * j
    if acc: s('v_max3_f32 v%d, v%d, v%d, v%d' % (m, m, b, b + 1))
    else: s('v_max_f32 v%d, v%d, v%d' % (m, b, b + 1))
    for i in range(1, 4): s('v_max3_f32 v%d, v%d, v%d, v%d' % (m, m, b + 2 * i, b + 2 * i + 1))
MX, MT = L, 48
def set_nm(s):
    rowred(s, [MX + j for j in range(5)], [MT + j for j in range(5)], 'v_max_f32')
    for j in range(5): s('v_sub_f32 v%d, 0, v%d' % (NM + 4 * j, MX + j))
    for j in range(5):
        for i in range(1, 4): s('v_mov_b32 v%d, v%d' % (NM + 4 * j + i, NM + 4 * j))

def sm_exp(i): return I('v_exp_f32 v%d, v%d' % (S + i, S + i))
def sm_post(o, i, par):
    j = i >> 3
    out = [] if o.lsum else [I('v_add_f32 v%d, v%d, v%d' % (L + j, L + j, S + i))]
    if i & 1: out.append(I('v_cvt_pk_bf16_f32 v%d, v%d, v%d' % (P + 20 * par + 4 * j + ((i & 7) >> 1), S + i - 1, S + i)))
    return out
def sm_gap(o, G, par):
    if o.lsum:
        if G >= 40:
            if (G - 40) % 9 == 8: return []
            G -= (G - 40) // 9
    x = G - 12
    if x < 0: x += 80; par ^= 1
    i = x >> 1
    return [sm_exp(i)] if x % 2 == 0 else sm_post(o, i, par)

def kv_schedule(o):
    q = [(k, j, g) for k, j in KVSEQ[o.ninit + 2 * o.stage:] for g in capped(o, dma_kv(o, k, j))]
    free = lambda kind, j: 2 * (j - 5) + 1 if kind == 'K' else 2 * (j - 4) + 1
    sched = {h: [] for h in range(1, 64)}
    n = len(q)
    slow = max(0, 4 * o.lasth - n)
    h, i = 1, 0
    while i < n:
        cap = 4
        h0 = 2 * o.stage
        if o.hold:
            if h <= o.hold: i0 = i + 4
            else: cap = min(4, max(0, i0 + ((n - i0) * (h - o.hold) + o.lasth - o.hold - 1) // (o.lasth - o.hold) - i))
        elif o.uni: cap = min(4, max(0, (n * (h - h0) + o.lasth - h0 - 1) // (o.lasth - h0) - i))
        elif slow > 0: cap = 3
        k = 0
        while k < cap and i < n and free(q[i][0], q[i][1]) <= h:
            sched[h].append(q[i][2]); i += 1; k += 1
        slow -= 4 - k
        h += 1
    if o.stage:
        assert o.ninit == 10
        sched[1] = stage_wr(o, 'K') + sched[1]
        sched[3] = stage_wr(o, 'V') + sched[3]
    return sched

def gen_s0(o):
    s = Seg('s0')
    s.label('L_s0')
    if o.lsum:
        s('v_mov_b32 v%d, 0x3f803f80' % L)
        for k in range(4): s('v_accvgpr_write_b32 a%d, v%d' % (ONES + k, L))
    else:
        for j in range(5): s('v_mov_b32 v%d, 0' % (L + j))
    if o.cap2: s('s_and_b32 s3, s39, 1'); s('s_cselect_b64 vcc, -1, 0')
    s.wait(tags=['K1', 'V0'])
    s('s_barrier')
    s.add(rd_k(1))
    dm = spread(o.sched[1] + [[I('buffer_atomic_add v%d, v%d, s[%d:%d], 0 offen' % (CNT, CA, SD, SD + 3))]], [1, 8, 15, 22, 29])
    for i in range(35):
        if i < 34: s.add(sm_exp(i))
        else: s('s_nop 0')
        if i > 0: s.add(sm_post(o, i - 1, 0))
        s.add(dm.get(i, []))
    return s

def step(s, o, t, more1=(), more2=(), wtags=(), valu1=None):
    par = t & 1
    if t % 2 == 1: tstamp(s, o, 'a', t // 2)
    mf = qk_list(True) + pv_list(o, par ^ 1, VB, t == 1)
    NG = len(mf)
    fill = {g: [] for g in range(NG)}
    empty = [g for g in range(NG) if not sm_gap(o, g, par)]
    if o.lsum:
        g1 = [g for g in empty if g < 32]; g2 = [g for g in empty if 42 < g < NG - 8]
    else: g1, g2 = [1, 5, 9, 13, 17, 21, 25, 29], [45, 49, 53, 57, 61, 65, 69, 73]
    for g, l in spread(rd_v(VB, t - 1), g1).items(): fill[g] += l
    for g, l in spread(rd_k(t + 1) if t < 31 else rd_v(KB, 31), g2).items(): fill[g] += l
    for base, end, dm in ((2, 40, o.sched[2 * t] + list(more1)), (42, NG, o.sched[2 * t + 1] + list(more2))):
        n = len(dm)
        for i, g in enumerate(dm):
            pos = base + ((end - base) * i) // n
            if o.lsum:
                while len(sm_gap(o, pos, par)) + len(fill[pos]) > 1 or (sm_gap(o, pos, par) and sm_gap(o, pos, par)[0].kind == 'trans'): pos += 1
            else: pos &= ~1
            fill[pos] += g
    if valu1:
        for g, l in spread(valu1, list(range(33, 40))).items(): fill[g] += l
    for g in range(NG):
        if g == 0: s.wait(regs=regs('a', KB, 32))
        if g == 40: s.wait(regs=regs('a', VB, 32))
        s.add(mf[g])
        if g == 40:
            s.wait(tags=(['K%d' % (t + 1)] if t < 31 else []) + ['V%d' % t] + list(wtags))
            s('s_barrier')
        s.add(sm_gap(o, g, par))
        s.add(fill[g])

def gen_attn(o):
    s = Seg('attn')
    pre = Seg('t')
    t0 = DWO
    pre('v_lshrrev_b32 v%d, 8, v%d' % (t0 + 1, DV))
    pre('v_and_b32 v%d, 0x70, v%d' % (t0, DV))
    pre('v_lshl_add_u32 v%d, v%d, 10, v%d' % (t0, t0 + 1, t0))
    pre('v_bfe_u32 v%d, v%d, 7, 1' % (t0 + 1, DV))
    pre('v_mul_u32_u24 v%d, 0x20200, v%d' % (t0 + 1, t0 + 1))
    pre('v_add_u32 v%d, v%d, v%d' % (t0, t0, t0 + 1))
    pre('v_xor_b32 v%d, 0x20200, v%d' % (t0 + 1, t0))
    pre('v_add_u32 v%d, %d, v%d' % (t0 + 2, 2 * 3072, t0))
    pre('v_add_u32 v%d, %d, v%d' % (t0 + 3, 3 * 3072, t0 + 1))
    pre('v_add_u32 v%d, %d, v%d' % (t0 + 1, 3072, t0 + 1))
    for t in range(4): pre('v_xor_b32 v%d, 0x20000, v%d' % (t0 + 4 + t, t0 + t))
    cnt = [[I('s_lshl_b32 s%d, s%d, 3' % (sA, sG)), I('buffer_load_dword v%d, off, s[%d:%d], s%d offset:128 sc1' % (CNT, SD, SD + 3, sA), tag='cnt')]]
    busy = lambda h: any(o.sched[x] for x in range(h, 64))
    early0 = not busy(59)
    for t in range(1, 32):
        if t == 29: step(s, o, t, valu1=pre.items, more2=dma_wo(o, 0) if early0 else [])
        elif t == 30: step(s, o, t, more2=cnt + ([] if early0 else dma_wo(o, 0)) + dma_wo(o, 1) + (dma_wo(o, 2) if early0 else []))
        elif t == 31: step(s, o, t, more1=[] if early0 else dma_wo(o, 2), more2=dma_wo(o, 3), wtags=['cnt'])
        else: step(s, o, t)
        if t == 26 and o.pfo:
            s('v_lshlrev_b32 v%d, 3, v%d' % (CA, LANE16))
            s('s_lshl_b32 s3, s39, 15'); s('s_lshl_b32 s36, s%d, 13' % sW); s('s_add_u32 s3, s3, s36')
            s('buffer_load_dword v%d, v%d, s[%d:%d], s3 offen' % (CA + 1, CA, SWO, SWO + 3), dummy=True)
    return s

def gen_epi(o):
    s = Seg('epi')
    R = NM
    v = Seg('t')
    def inv(j):
        if o.lsum: v('v_accvgpr_read_b32 v%d, a%d' % (L + j, LS + 4 * j))
        v('v_cmp_nge_f32 %s, s%d, v%d' % (sr(sM0 if j == 0 else sM1, 2), sTHR, L + j))
        v('v_rcp_f32 v%d, v%d' % (R + 2 * j, L + j))
        if j: v('s_or_b64 %s, %s, %s' % (sr(sM0, 2), sr(sM0, 2), sr(sM1, 2)))
        else: v('s_nop 0')
        v('v_mov_b32 v%d, v%d' % (R + 2 * j + 1, R + 2 * j))
    if not o.lsum:
        rowred(v, [L + j for j in range(5)], [90 + j for j in range(5)], 'v_add_f32')
        for j in range(5): inv(j)
    def vote():
        v('s_cmp_lg_u64 %s, 0' % sr(sM0, 2))
        v('s_cselect_b32 s3, 1, 0')
        v('v_mov_b32 v95, s3')
        v('s_lshl_b32 s3, s%d, 2' % sW); v('s_add_u32 s3, s3, 0x%x' % FLG)
        v('v_mov_b32 v96, s3')
        v('ds_write_b32 v96, v95', lds=(lambda c: (FLG, FLG + 16, ev(tg('flg'), c))))
    tg = lambda n: (lambda c: '%s%d' % (n, c.get('redo', 0)))
    v('s_mul_i32 s3, s%d, 20480' % sW); v('s_add_u32 s3, s3, 0x%x' % EX)
    v('v_add_u32 v97, s3, v%d' % LANE16)
    v('s_xor_b32 s3, s%d, 2' % sW); v('s_mul_i32 s3, s3, 20480'); v('s_add_u32 s3, s3, 0x%x' % EX)
    v('v_add_u32 v98, s3, v%d' % LANE16)
    exr = (lambda c: (EX, EX + 81920, ev(tg('ex'), c)))
    for j in range(5):
        if o.lsum: inv(j)
        if j == 4: vote()
        for sidx in range(4):
            f = 16 * j + 4 * sidx
            for e in range(2):
                k, b = otile(j, 2 * sidx + e)
                if k == 'a':
                    for i in range(4): v('v_accvgpr_read_b32 v%d, a%d' % (90 + i, b + i))
                    b = 90
                v('v_pk_mul_f32 %s, %s, %s' % (vr(b, 2), vr(b, 2), vr(R + 2 * j, 2)))
                v('v_pk_mul_f32 %s, %s, %s' % (vr(b + 2, 2), vr(b + 2, 2), vr(R + 2 * j, 2)))
                v('v_cvt_pk_bf16_f32 v%d, v%d, v%d' % (f + 2 * e, b, b + 1))
                v('v_cvt_pk_bf16_f32 v%d, v%d, v%d' % (f + 2 * e + 1, b + 2, b + 3))
            v('ds_write_b128 v97, %s offset:%d' % (vr(f, 4), 1024 * (4 * j + sidx)), lds=exr)
    work = v.items
    mf = pv_list(o, 1, KB)
    s.wait(regs=regs('a', KB, 32))
    for g in range(len(mf)):
        s.add(mf[g])
        if g == 0: s('s_barrier')
        if g < 12: s.add(sm_gap(o, g, 0))
        else: s.add(work[:2]); work = work[2:]
    stamp(s, o, 5)
    s.add(work)
    s('v_mov_b32 v96, 0x%x' % FLG)
    s.wait(lgkm_all=True, tags=['wo0'])
    s('s_barrier')
    s('ds_read_b128 v[92:95], v96', lds=(lambda c: (FLG, FLG + 16, ev(tg('flg'), c))))
    s('s_mul_i32 s3, s%d, 0x2080' % sP)
    s('v_xor_b32 v84, s3, v%d' % VA)
    for k in range(1, 4): s('v_xor_b32 v%d, %d, v84' % (84 + k, 32 * k))
    for k in range(4): s('v_subrev_u32 v%d, 0x%x, v%d' % (80 + k, V0, 84 + k))
    s('v_readfirstlane_b32 s3, v%d' % CNT)
    s.wait(regs=regs('v', 92, 4))
    s('v_or_b32 v92, v92, v93'); s('v_or3_b32 v92, v92, v94, v95')
    s('s_cmp_lt_u32 s3, 16')
    s('v_readfirstlane_b32 s36, v92')
    s('s_cbranch_scc1 L_cntspin')
    s.label('L_cntok')
    s('s_andn2_b32 s36, s36, s%d' % sREDO)
    if not o.diag: s('s_cbranch_scc1 L_redo')
    stamp(s, o, 6)
    return s

def gen_spin(s, name, back, load, cond, sCNT=sCNT):
    s.label(name)
    s('s_mov_b32 s%d, 0' % sCNT)
    s.label(name + '_l')
    s('s_sleep 4')
    s(load)
    s('s_waitcnt vmcnt(0)')
    s('s_add_u32 s%d, s%d, 1' % (sCNT, sCNT))
    s('s_cmp_gt_u32 s%d, 0x40000' % sCNT)
    s('s_cbranch_scc1 %s' % back)
    for l in cond: s(l.replace('@', name + '_l'))
    s('s_branch %s' % back)

def gen_redo(o):
    s = Seg('redo')
    s.label('L_redo')
    s('s_mov_b32 s%d, 1' % sREDO)
    s('s_waitcnt vmcnt(0) lgkmcnt(0)')
    s('s_barrier')
    t = 56
    s('v_lshrrev_b32 v%d, 4, v%d' % (t, LANE16))
    s('v_and_b32 v%d, 15, v%d' % (t + 1, t))
    s('v_and_b32 v%d, 48, v%d' % (t, t))
    s('v_lshl_add_u32 v%d, v%d, 8, v%d' % (t, t + 1, t))
    s('v_add_u32 v%d, 0x1000, v%d' % (t + 1, t))
    for j in range(5): s('v_mov_b32 v%d, 0xff800000' % (MX + j))
    s('s_mov_b32 s%d, 0' % sA)
    lp = Seg('redo_loop')
    lp.label('L_redo_loop')
    for kb in range(2):
        for k in range(4): lp('buffer_load_dwordx4 %s, v%d, s[%d:%d], s%d offen offset:%d' % (ar(KB + 4 * (4 * kb + k), 4), t + kb, SK, SK + 3, sA, 64 * k))
    lp('s_waitcnt vmcnt(0)')
    lp.add(qk_list(False))
    lp('s_nop 7')
    for j in range(5): max8(lp, j, MX + j, True)
    lp('s_add_u32 s%d, s%d, 0x2000' % (sA, sA))
    lp('s_cmp_lt_u32 s%d, 0x40000' % sA)
    lp('s_cbranch_scc1 L_redo_loop')
    e = Seg('redo_end')
    set_nm(e)
    kv_start(e, o)
    for k in range(8): e('v_subrev_u32 v%d, 0x4000, v%d' % (VA2 + k, VA + k))
    for k, j in KVSEQ[:o.ninit]: e.add(dma_kv(o, k, j))
    if o.stage: e.add(stage_ld(o, 'K') + stage_ld(o, 'V'))
    e('v_mov_b32 v%d, 0x40000000' % CA)
    e.wait(tags=['K0'])
    e('s_barrier')
    e.add(rd_k(0))
    e.wait(regs=regs('a', KB, 32))
    e.add(qk_list(True))
    e('s_nop 7')
    e('s_branch L_s0')
    return s, lp, e

E0V, E1V = 144, 0
PO = 88
AD, OD, IA, PL, C10, C01, AD2, OD2, AC, RT = 224, 225, 226, 227, 228, 229, 230, 231, 232, 248
def etile(c, jn, j): return (E1V if c & 1 else E0V) + 8 * (5 * (jn >> 1) + j) + 4 * (jn & 1)
def poll_txt(): return 'buffer_load_dword v%d, v%d, s[%d:%d], 0 offen sc1' % (PL, IA, SF, SF + 3)
def flag_ops(o, c):
    return [I('v_mov_b32 v89, %d' % (c + 1)), I('buffer_store_dword v89, v%d, s[%d:%d], 0 offen %s' % (FLA, SF, SF + 3, o.fl_pol))]
def load_groups(o, c, dst, sreg, g=SG):
    out = []
    for k in range(10):
        off, ad = (2 * PST * k, AD) if k < 8 else (8 * PST * (k - 8), AD2)
        out.append([I('s_add_u32 s%d, s%d, 0x%x' % (sreg, sCP + c, off)),
                    I('buffer_load_dwordx4 %s, v%d, s[%d:%d], s%d offen %s' % (dst(k), ad, g, g + 3, sreg, o.rd_pol))])
    return out
def red_addr(o):
    s = Seg('t')
    t = RT
    s('s_lshl_b32 s3, s%d, 4' % sG); s('s_and_b32 s62, s38, %d' % (15 & ~(16 // o.rep - 1))); s('s_add_u32 s3, s3, s62'); s('s_lshl_b32 s3, s3, 8')
    s('v_lshrrev_b32 v%d, 2, v%d' % (t, LANE16)); s('v_add_u32 v%d, s3, v%d' % (IA, t))
    s('v_lshrrev_b32 v%d, 4, v%d' % (t, LANE16))
    s('v_and_b32 v%d, 7, v%d' % (t + 2, t))
    s('s_and_b32 s3, s38, 3'); s('s_mul_i32 s63, s3, 5')
    s('s_lshr_b32 s3, s38, 2')
    s('s_lshr_b32 s36, s3, 1'); s('s_lshl_b32 s36, s36, 3'); s('s_and_b32 s3, s3, 1'); s('s_add_u32 s36, s36, s3')
    s('s_mul_i32 s3, s36, 10240'); s('s_lshl_b32 s62, s%d, 8' % sW); s('s_add_u32 s%d, s3, s62' % sM0)
    s('s_mul_i32 s3, s39, %d' % (160 * 2048)); s('s_lshl_b32 s62, s37, 10'); s('s_add_u32 s3, s3, s62')
    s('s_lshl_b32 s62, s36, 6'); s('s_add_u32 s3, s3, s62'); s('s_lshl_b32 s62, s%d, 3' % sW); s('s_add_u32 s%d, s3, s62' % (sM0 + 1))
    s('v_bfe_u32 v%d, v%d, 3, 2' % (t + 1, t))
    s('v_add_u32 v%d, s63, v%d' % (t + 3, t + 1))
    s('v_lshl_add_u32 v%d, v%d, 3, v%d' % (t + 4, t + 3, t + 2))
    s('v_lshrrev_b32 v%d, 1, v%d' % (t + 5, t + 3))
    s('v_and_b32 v%d, 15, v%d' % (t + 6, t + 4))
    s('v_lshlrev_b32 v%d, 4, v%d' % (t + 6, t + 6))
    s('v_lshl_add_u32 v%d, v%d, 10, v%d' % (t + 6, t + 5, t + 6))
    s('v_lshrrev_b32 v%d, 5, v%d' % (t + 1, t))
    s('v_mul_u32_u24 v%d, %d, v%d' % (t + 5, PST, t + 1))
    s('v_add3_u32 v%d, v%d, v%d, s%d' % (AD, t + 6, t + 5, sM0))
    s('v_lshlrev_b32 v%d, 5, v%d' % (t + 1, t + 1))
    s('v_lshl_add_u32 v%d, v%d, 11, v%d' % (t + 4, t + 4, t + 1))
    s('v_add_u32 v%d, s%d, v%d' % (OD, sM0 + 1, t + 4))
    s('s_add_u32 s63, s63, 4')
    s('s_lshr_b32 s3, s63, 1'); s('s_lshl_b32 s3, s3, 10'); s('s_and_b32 s62, s63, 1'); s('s_lshl_b32 s62, s62, 7'); s('s_add_u32 s3, s3, s62')
    s('s_add_u32 s3, s3, s%d' % sM0)
    s('v_lshrrev_b32 v%d, 3, v%d' % (t + 3, t))
    s('v_mul_u32_u24 v%d, %d, v%d' % (t + 5, PST, t + 3))
    s('v_lshl_add_u32 v%d, v%d, 4, v%d' % (t + 5, t + 2, t + 5))
    s('v_add_u32 v%d, s3, v%d' % (AD2, t + 5))
    s('s_lshl_b32 s3, s63, 14'); s('s_add_u32 s3, s3, s%d' % (sM0 + 1))
    s('v_lshl_add_u32 v%d, v%d, 11, v%d' % (t + 4, t + 2, t + 1))
    s('v_and_b32 v%d, 24, v%d' % (t + 1, t))
    s('v_cmp_eq_u32 vcc, 0, v%d' % (t + 1))
    s('v_add_u32 v%d, s3, v%d' % (t + 4, t + 4))
    s('v_mov_b32 v%d, 0x40000000' % (t + 7))
    s('v_cndmask_b32 v%d, v%d, v%d, vcc' % (OD2, t + 7, t + 4))
    s('v_mov_b32 v%d, 0x3f80' % C10); s('v_mov_b32 v%d, 0x3f800000' % C01)
    return s.items

LA, LO, LD, LA2, LD2, QAD, CL = 108, 109, 110, 111, 112, 113, 114
ODS = ((116, 117), (118, 119), (90, 91))
sI0, sI1, sN, sDB, sIT = 13, 14, 15, 12, 7
def red_addr_dyn(o):
    s = Seg('t')
    t = RT
    s('s_lshl_b32 s3, s%d, 4' % sG); s('s_and_b32 s62, s38, %d' % (15 & ~(16 // o.rep - 1))); s('s_add_u32 s3, s3, s62'); s('s_lshl_b32 s3, s3, 8')
    s('v_lshrrev_b32 v%d, 2, v%d' % (t, LANE16)); s('v_add_u32 v%d, s3, v%d' % (IA, t))
    s('v_lshrrev_b32 v%d, 4, v%d' % (t, LANE16))
    s('v_and_b32 v%d, 7, v%d' % (t + 2, t))
    s('v_lshrrev_b32 v%d, 5, v%d' % (t + 1, t))
    s('v_bfe_u32 v%d, v%d, 3, 2' % (LO, t))
    s('v_mul_u32_u24 v%d, %d, v%d' % (t + 5, PST if o.loc < 0 else 1 << 18, t + 1))
    s('v_lshl_add_u32 v%d, v%d, 4, v%d' % (LA, t + 2, t + 5))
    s('v_lshlrev_b32 v%d, 5, v%d' % (t + 1, t + 1))
    s('v_lshl_add_u32 v%d, v%d, 11, v%d' % (t + 4, t + 2, t + 1))
    s('v_lshl_add_u32 v%d, v%d, 14, v%d' % (LD, LO, t + 4))
    s('v_cmp_eq_u32 vcc, 0, v%d' % LO)
    s('v_lshrrev_b32 v%d, 3, v%d' % (t + 3, t))
    s('v_mov_b32 v%d, 0x40000000' % (t + 7))
    s('v_cndmask_b32 v%d, v%d, v%d, vcc' % (LD2, t + 7, t + 4))
    s('v_mul_u32_u24 v%d, %d, v%d' % (t + 5, PST, t + 3))
    s('v_lshl_add_u32 v%d, v%d, 4, v%d' % (LA2, t + 2, t + 5))
    if o.sl8:
        s('v_lshl_add_u32 v%d, v%d, 8, v%d' % (LA2, LO, LA))
        s('v_lshl_add_u32 v%d, v%d, 3, v%d' % (LD2, LO, t + 4))
    s('s_mul_i32 s3, s39, %d' % (160 * 2048)); s('s_lshl_b32 s62, s37, 10'); s('s_add_u32 s%d, s3, s62' % sDB)
    s('s_lshl_b32 s3, s%d, 8' % sG); s('s_add_u32 s3, s3, 0x10000')
    if o.loc >= 0: s('s_lshl_b32 s62, s%d, 7' % sH); s('s_add_u32 s3, s3, s62')
    s('v_min_u32 v%d, 1, v%d' % (t + 3, t)); s('v_lshlrev_b32 v%d, 30, v%d' % (t + 3, t + 3)); s('v_add_u32 v%d, s3, v%d' % (QAD, t + 3))
    s('v_mov_b32 v%d, 0x3f80' % C10); s('v_mov_b32 v%d, 0x3f800000' % C01)
    return s.items

def gen_op(o):
    s = Seg('op')
    exr = (lambda c: (EX, EX + 81920, 'ex%d' % c.get('redo', 0)))
    KSL = [(4 * c + r, [(2 * a + e, kk) for kk in range(2) for e in range(2)]) for c in range(4) for a in range(2) for r in range(4)]
    def reads_for(ks):
        u, fr = KSL[ks]
        base = OSLOT[u % 8]
        areg, imm = (80, base) if base < V0 else (84, base - V0)
        return [I('ds_read_b64_tr_b16 %s, v%d offset:%d' % (ar(KB + 16 * (ks & 1) + 4 * i + 2 * e, 2), areg + jn, imm + 8192 * kk + 4096 * e), lds=(base, base + 16384, 'wo%d' % u))
                for i, (jn, kk) in enumerate(fr) for e in range(2)]
    def conv(c, a):
        out = []
        for j in range(5):
            b = etile(c, 2 * a, j)
            cv = [I('v_cvt_pk_bf16_f32 v%d, v%d, v%d' % (b + i, b + 2 * i, b + 2 * i + 1)) for i in range(4)]
            out.append(cv[:2]); out.append(cv[2:])
            out.append([I('s_add_u32 s%d, s%d, 0x%x' % (sA, sCP + c, ((10 if o.loc < 0 else 16) * a + j) * 1024)),
                        I('buffer_store_dwordx4 %s, v%d, s[%d:%d], s%d offen %s' % (vr(b, 4), PO, SP_, SP_ + 3, sA, o.st_pol), tag='st%d' % c)])
        return out
    s('s_mov_b32 s%d, 0' % sREDO)
    s.add(reads_for(0))
    part = [I('ds_read_b128 %s, v98 offset:%d' % (ar(PART + 4 * f, 4), 1024 * f), lds=exr) for f in range(20)]
    own = [I('ds_read_b128 %s, v97 offset:%d' % (ar(OWN + 4 * f, 4), 1024 * f), lds=exr) for f in range(20)]
    s('s_mul_i32 s3, s%d, %d' % (sP, 80 if o.loc < 0 else 128)); s('s_mul_i32 s36, s%d, %d' % (sHF, 5 if o.loc < 0 else 8)); s('s_add_u32 s3, s3, s36'); s('s_lshl_b32 s3, s3, 10')
    s('v_add_u32 v%d, s3, v%d' % (PO, LANE16))
    if o.exsp: extra = sum(([[x], []] if i % 3 else [[x]] for i, x in enumerate(part)), []) + sum(([[x], [], []] for x in own), [])
    else: extra = [part[i:i + 2] for i in range(0, 20, 2)] + [own[i:i + 2] for i in range(0, 20, 2)]
    vq = []
    ra = red_addr_dyn(o) if o.dyn else red_addr(o)
    seen = set()
    first_use, last_use = {}, {}
    for ks, (u, fr) in enumerate(KSL):
        first_use.setdefault(u, ks); last_use[u] = ks
    pending = list(range(4, 16))
    for ks, (u, fr) in enumerate(KSL):
        c, phi, dh = u >> 2, (u >> 1) & 1, u & 1
        if ks % 2 == 0: tstamp(s, o, 'o', ks // 2)
        buf = ks & 1
        mf = []
        for i, (jn, kk) in enumerate(fr):
            sidx = 2 * dh + kk
            first = (c, jn) not in seen; seen.add((c, jn))
            for j in range(5):
                d = vr(etile(c, jn, j), 4)
                if phi: bf = ar(PART + 16 * j + 4 * sidx, 4)
                elif c == 0: bf = vr(16 * j + 4 * sidx, 4)
                else: bf = ar(OWN + 16 * j + 4 * sidx, 4)
                mf.append(mfma(d, ar(KB + 16 * buf + 4 * i, 4), bf, '0' if first else d))
        need = regs('a', KB + 16 * buf, 16)
        if phi and c == 0: need = need + regs('a', PART, 80)
        bar = None
        nxt = KSL[ks + 1][0] if ks + 1 < 32 else None
        exk = 6 if o.exsp else 2
        if nxt is not None and (first_use[nxt] == ks + 1 or ks == exk):
            if ks == exk: need = need + regs('a', OWN, 80) + regs('a', PART, 80)
            new = []
            for v in list(pending):
                ok = v == 4 or (5 <= v <= 7 and ks >= exk) or (v >= 8 and last_use[v - 8] <= ks)
                if not ok: break
                new += dma_wo(o, v); pending.remove(v)
            bar = dict(tags=['wo%d' % nxt])
            barrier_hooks.append(lambda new=new: vq.extend(new))
        rds = reads_for(ks + 1) if nxt is not None else []
        if ks == (9 if o.exsp else 4): extra += [ra[i:i + 2] for i in range(0, len(ra), 2)]
        if ks % 4 == 0 and ks > 0:
            cv = [[]] * 2 + conv((ks - 4) >> 3, ((ks - 4) >> 2) & 1)
            extra[0:0] = cv
        for cc, at in enumerate(int(x) for x in o.fl.split(',')):
            if ks == at: extra.insert(0, [Wait(tags=['st%d' % cc])] + flag_ops(o, cc))
        for x in (o.cfl.split(',') if o.cfl else []):
            cc, at = (int(y) for y in x.split(':'))
            if ks == at: extra.insert(0, [CondOps(['st%d' % cc], [i.text for i in flag_ops(o, cc)], 43)])
        if o.early:
            if ks == o.epoll: extra.insert(0, [I(poll_txt(), tag='poll')])
            if ks == o.epoll + 2:
                extra += [[I('s_mov_b32 s%d, s%d' % (SG2, SG)), I('s_mov_b32 s%d, s%d' % (SG2 + 1, SG + 1))],
                          [Wait(regs=[('v', PL)]), I('v_cmp_gt_u32 vcc, 1, v%d' % PL), I('s_mov_b32 s%d, 0x20000' % (SG2 + 3)), I('s_cmp_eq_u64 vcc, 0'),
                           I('s_cselect_b32 s%d, 0x%x, 0' % (SG2 + 2, 16 * PST)), I('s_cselect_b32 s%d, 1, 0' % sE)]]
                for g in load_groups(o, 0, lambda k: vr(144 + 4 * k, 4), sB, SG2): extra += [g] + [[]] * (o.ldevery - 1)
        if o.dyn and o.eclaim and ks == o.eclaim:
            extra.insert(0, [I('v_mov_b32 v%d, %d' % (CL, o.nb)), I('buffer_atomic_add v%d, v%d, s[%d:%d], 0 offen sc0' % (CL, QAD, SF, SF + 3), tag='claim'), I(poll_txt(), tag='poll')])
        elif ks == 30 and not (o.dyn and o.eclaim): extra.insert(0 if o.early else len(extra), [I(poll_txt(), tag='poll')])
        gemm_kstep(s, mf, need, rds, bar, extra, o.oevery, vq)
        if ks % 8 == 7: stamp(s, o, 7 + c)
    extra = [g for g in extra if g]
    assert not extra and not vq and not pending, (len(extra), len(vq), pending)
    s('s_nop 3')
    for g in conv(3, 1): s.add(g)
    stamp(s, o, 11)
    if o.early:
        s('s_cmp_lg_u32 s%d, 0' % sE)
        s('s_cbranch_scc1 L_redE')
    return s

def summ_ops(s, buf, o2):
    a = AC
    for i in range(16): s('v_mov_b32 v%d, 0' % (a + i))
    for k in range(10):
        if k in (0, 4, 8): s.wait(regs=regs('v', buf + 4 * k, 16 if k < 8 else 8))
        for d in range(4):
            x = buf + 4 * k + d
            b = a + (8 if k >= 8 else 0)
            s('v_dot2c_f32_bf16 v%d, v%d, v%d' % (b + 2 * d, x, C10)); s('v_dot2c_f32_bf16 v%d, v%d, v%d' % (b + 2 * d + 1, x, C01))
    t = RT
    s('s_nop 2')
    for i in range(8): s('v_add_f32_dpp v%d, v%d, v%d row_ror:8 row_mask:0xf bank_mask:0xf' % (t + i, a + 8 + i, a + 8 + i))
    for i in range(8): s('v_mov_b32 v%d, v%d' % (a + 8 + i, t + i))
    s('s_nop 0')
    for i in range(8): s('v_permlane16_swap_b32 v%d, v%d' % (t + i, a + 8 + i))
    for i in range(8): s('v_add_f32 v%d, v%d, v%d' % (a + 8 + i, a + 8 + i, t + i))
    for b in (a, a + 8):
        for i in range(4): s('v_permlane32_swap_b32 v%d, v%d' % (b + i, b + 4 + i))
    for b in (a, a + 8):
        for i in range(4): s('v_add_f32 v%d, v%d, v%d' % (b + i, b + i, b + 4 + i))
    for n_, b in enumerate((a, a + 8)):
        s('v_cvt_pk_bf16_f32 v%d, v%d, v%d' % (o2 + 2 * n_, b, b + 1)); s('v_cvt_pk_bf16_f32 v%d, v%d, v%d' % (o2 + 2 * n_ + 1, b + 2, b + 3))

def gen_red_dyn(o):
    poll = poll_txt()
    BUF = (144, 184, 0)
    NB = o.nb
    NSL = 160 if o.loc >= 0 else 320 if o.sl8 else 256
    def chunk_of(s, dst, idx):
        if o.loc >= 0: s('s_mul_i32 s%d, s%d, 52429' % (dst, idx)); s('s_lshr_b32 s%d, s%d, 21' % (dst, dst))
        elif o.sl8: s('s_mul_i32 s%d, s%d, 52429' % (dst, idx)); s('s_lshr_b32 s%d, s%d, 22' % (dst, dst))
        else: s('s_lshr_b32 s%d, s%d, 6' % (dst, idx))
    def claim(s, n):
        s('v_mov_b32 v%d, %d' % (CL, n))
        s('buffer_atomic_add v%d, v%d, s[%d:%d], 0 offen sc0' % (CL, QAD, SF, SF + 3), tag='claim')
    def check(s, idx, name):
        chunk_of(s, sN, idx); s('s_add_u32 s%d, s%d, 1' % (sN, sN))
        s.wait(regs=[('v', PL)])
        s('v_cmp_gt_u32 vcc, s%d, v%d' % (sN, PL))
        s('s_cbranch_vccnz L_spin%s' % name)
        s.label('L_got%s' % name)
    def addr(s, idx, x):
        t = RT
        if o.sl8:
            s('s_sub_u32 s3, s%d, 1' % sN); s('s_mul_i32 s36, s3, %d' % (NSL // 4)); s('s_sub_u32 s36, s%d, s36' % idx)
            if o.rotc: s('s_add_u32 s3, s3, s39'); s('s_and_b32 s3, s3, 3')
            s('s_bfe_u32 s62, s36, 0x10001'); s('s_lshl_b32 s62, s62, 2'); s('s_add_u32 s3, s3, s62'); s('s_lshl_b32 s3, s3, 1')
            s('s_and_b32 s62, s36, 1'); s('s_add_u32 s3, s3, s62')
            s('s_lshr_b32 s36, s36, 2')
            s('s_lshl_b32 s62, s3, 6'); s('s_lshl_b32 s63, s36, 14'); s('s_add_u32 s62, s62, s63'); s('s_add_u32 s62, s62, s%d' % sDB)
            if o.loc >= 0: s('s_mul_i32 s63, s%d, %d' % (sH, 10 << 14)); s('s_add_u32 s62, s62, s63')
            s('v_add_u32 v%d, s62, v%d' % (ODS[x][0], LD2))
            if o.loc >= 0: s('s_lshl_b32 s3, s3, 1'); s('s_add_u32 s3, s3, s%d' % sH); s('s_lshl_b32 s3, s3, 3')
            else: s('s_mul_i32 s3, s3, 10')
            s('s_lshr_b32 s62, s36, 1'); s('s_add_u32 s3, s3, s62'); s('s_lshl_b32 s3, s3, 10')
            s('s_and_b32 s36, s36, 1'); s('s_lshl_b32 s36, s36, 7'); s('s_add_u32 s3, s3, s36')
            s('v_add_u32 v%d, s3, v%d' % (AD, LA2))
            return
        s('s_lshr_b32 s3, s%d, 6' % idx)
        if o.rotc: s('s_add_u32 s3, s3, s39'); s('s_and_b32 s3, s3, 3')
        s('s_bfe_u32 s36, s%d, 0x10005' % idx); s('s_lshl_b32 s36, s36, 2'); s('s_add_u32 s3, s3, s36'); s('s_lshl_b32 s3, s3, 1')
        s('s_bfe_u32 s36, s%d, 0x10004' % idx); s('s_add_u32 s3, s3, s36')
        s('s_and_b32 s36, s%d, 3' % idx)
        s('s_mul_i32 s62, s3, 10240'); s('s_lshl_b32 s63, s36, 8'); s('s_add_u32 s%d, s62, s63' % sM0)
        s('s_lshl_b32 s62, s3, 3'); s('s_add_u32 s62, s62, s36'); s('s_lshl_b32 s62, s62, 3'); s('s_add_u32 s62, s62, s%d' % sDB)
        s('s_bfe_u32 s63, s%d, 0x20002' % idx); s('s_mul_i32 s63, s63, 5')
        s('v_add_u32 v%d, s63, v%d' % (t, LO))
        s('s_lshl_b32 s3, s63, 14'); s('s_add_u32 s62, s62, s3')
        s('v_lshrrev_b32 v%d, 1, v%d' % (t + 1, t))
        s('v_and_b32 v%d, 1, v%d' % (t, t))
        s('v_add_u32 v%d, s62, v%d' % (ODS[x][0], LD))
        s('v_lshlrev_b32 v%d, 7, v%d' % (t, t))
        s('s_add_u32 s62, s62, 0x10000')
        s('v_lshl_add_u32 v%d, v%d, 10, v%d' % (t, t + 1, t))
        s('v_add_u32 v%d, s62, v%d' % (ODS[x][1], LD2))
        s('v_add3_u32 v%d, v%d, v%d, s%d' % (AD, t, LA, sM0))
        s('s_lshr_b32 s3, s63, 1'); s('s_add_u32 s3, s3, 2'); s('s_lshl_b32 s3, s3, 10'); s('s_and_b32 s63, s63, 1'); s('s_lshl_b32 s63, s63, 7')
        s('s_add_u32 s3, s3, s63'); s('s_add_u32 s3, s3, s%d' % sM0)
        s('v_add_u32 v%d, s3, v%d' % (AD2, LA2))
    def loads(s, x, ks=range(10)):
        for k in ks:
            if o.sl8 and k >= 8: continue
            off, ad = (2 * PST * k, AD) if k < 8 else (8 * PST * (k - 8), AD2)
            if o.loc >= 0: off = ((k >> 2) << 22) + ((k & 3) << 19)
            s('s_mov_b32 s%d, 0x%x' % (sA, off))
            if o.rcap: s('s_waitcnt vmcnt(%d)' % o.rcap)
            s('buffer_load_dwordx4 %s, v%d, s[%d:%d], s%d offen %s' % (vr(BUF[x] + 4 * k, 4), ad, SG, SG + 3, sA, o.rd_pol))
    def finish(s, x):
        o2 = (100, 104, 92)[x]
        if o.sl8:
            a = AC
            for k in range(8):
                if k in (0, 4): s.wait(regs=regs('v', BUF[x] + 4 * k, 16))
                for d in range(4):
                    r = BUF[x] + 4 * k + d
                    if k == 0: s('v_lshlrev_b32 v%d, 16, v%d' % (a + 2 * d, r)); s('v_and_b32 v%d, 0xffff0000, v%d' % (a + 2 * d + 1, r))
                    else: s('v_dot2c_f32_bf16 v%d, v%d, v%d' % (a + 2 * d, r, C10)); s('v_dot2c_f32_bf16 v%d, v%d, v%d' % (a + 2 * d + 1, r, C01))
            s('s_nop 2')
            for i in range(4): s('v_permlane32_swap_b32 v%d, v%d' % (a + i, a + 4 + i))
            for i in range(4): s('v_add_f32 v%d, v%d, v%d' % (a + i, a + i, a + 4 + i))
            s('v_cvt_pk_bf16_f32 v%d, v%d, v%d' % (o2, a, a + 1)); s('v_cvt_pk_bf16_f32 v%d, v%d, v%d' % (o2 + 1, a + 2, a + 3))
            s('buffer_store_dwordx2 %s, v%d, s[%d:%d], 0 offen %s' % (vr(o2, 2), ODS[x][0], SO, SO + 3, o.out_pol))
            return
        summ_ops(s, BUF[x], o2)
        for h in range(2): s('buffer_store_dwordx2 %s, v%d, s[%d:%d], 0 offen %s' % (vr(o2 + 2 * h, 2), ODS[x][h], SO, SO + 3, o.out_pol))
    pre = Seg('redpre')
    for i in range(15): tstamp(pre, o, 'r', i)
    pre('s_mov_b32 s%d, 0' % sIT)
    if o.eclaim:
        pre.wait(tags=['claim', 'poll'])
        pre('v_readfirstlane_b32 s%d, v%d' % (sI0, CL))
        pre('s_lshr_b32 s%d, s%d, 6' % (sN, sI0)); pre('s_add_u32 s%d, s%d, 1' % (sN, sN))
        pre('v_cmp_gt_u32 vcc, s%d, v%d' % (sN, PL))
        pre('s_add_u32 s%d, s%d, 1' % (sI1, sI0))
        pre('s_cbranch_vccnz L_late')
        addr(pre, sI0, 0)
        loads(pre, 0, range(o.nfirst))
        pre.wait(tags=['st3'])
        pre.add(flag_ops(o, 3))
        loads(pre, 0, range(o.nfirst, 10))
        late = Seg('late')
        late.label('L_late')
        late('s_waitcnt vmcnt(0)')
        late.add(flag_ops(o, 3))
        late('s_cmp_ge_u32 s%d, 256' % sI0)
        late('s_cbranch_scc1 L_end')
        check(late, sI0, 'P')
        addr(late, sI0, 0)
        loads(late, 0)
        late('s_branch L_rb0')
        o.late = late
        tstamp(pre, o, 'r', 2)
        stamp(pre, o, 12)
    else:
        claim(pre, NB)
        pre.wait(tags=['st3'])
        pre.add(flag_ops(o, 3))
        tstamp(pre, o, 'r', 1)
        pre.wait(tags=['claim'])
        pre('v_readfirstlane_b32 s%d, v%d' % (sI0, CL))
        tstamp(pre, o, 'r', 2)
        stamp(pre, o, 12)
        if o.loc >= 0: pre.label('L_pre2')
        pre('s_add_u32 s%d, s%d, 1' % (sI1, sI0))
        pre('s_cmp_ge_u32 s%d, %d' % (sI0, NSL))
        pre('s_cbranch_scc1 %s' % ('L_end' if o.loc < 0 else 'L_swP'))
        check(pre, sI0, 'P')
        addr(pre, sI0, 0)
        loads(pre, 0)
    if NB == 3:
        pre('s_cmp_ge_u32 s%d, %d' % (sI1, NSL))
        pre('s_cbranch_scc1 L_rlast0')
        check(pre, sI1, 'Q')
        addr(pre, sI1, 1)
        loads(pre, 1)
        pre('s_add_u32 s%d, s%d, 1' % (sI1, sI1))
    body, fin = [], []
    for x in range(NB):
        y = (x + NB - 1) % NB
        b = Seg('redbody%d' % x)
        b.label('L_rb%d' % x)
        if o.trace == 'r':
            b('%s s[%d:%d]' % (clk(o), sST + 6, sST + 7)); b('s_waitcnt lgkmcnt(0)'); b('s_add_u32 m0, s%d, 3' % sIT); b('s_nop 0'); b('v_writelane_b32 v%d, s%d, m0' % (STV + 2, sST + 6))
        b('s_add_u32 s%d, s%d, 1' % (sIT, sIT)); b('s_cmp_gt_u32 s%d, 400' % sIT); b('s_cbranch_scc1 L_rf%d' % x)
        b('s_cmp_ge_u32 s%d, %d' % (sI1, NSL))
        b('s_cbranch_scc1 %s%d' % ('L_rf' if o.loc < 0 else 'L_sw', x))
        check(b, sI1, 'B%d' % x)
        addr(b, sI1, y)
        claim(b, 1)
        b(poll, tag='poll')
        loads(b, y)
        finish(b, x)
        b.wait(regs=[('v', CL)])
        b('v_readfirstlane_b32 s%d, v%d' % (sI1, CL))
        if x == NB - 1: b('s_branch L_rb0')
        body.append(b)
        f = Seg('redfin%d' % x)
        f.label('L_rf%d' % x)
        finish(f, x)
        if NB == 3:
            if x == 2: f.label('L_rlast0')
            finish(f, (x + 1) % 3)
        if x < NB - 1: f('s_branch L_end')
        fin.append(f)
    e = Seg('redend')
    e.label('L_end')
    if o.stamps or o.trace:
        e('s_waitcnt vmcnt(0)')
        tstamp(e, o, 'r', 15)
        stamp(e, o, 13); stamp(e, o, 14); stamp(e, o, 15)
    e.label('L_done')
    e('s_endpgm')
    sp = Seg('spins')
    for n in ('P', 'B0', 'B1') + (('Q', 'B2') if NB == 3 else ()): gen_spin(sp, 'L_spin' + n, 'L_got' + n, poll, ['v_cmp_gt_u32 vcc, s%d, v%d' % (sN, PL), 's_cbranch_vccnz @'], 35)
    if o.loc >= 0:
        for n, done, back, reg, cnt in [('P', 'L_end', 'L_pre2', sI0, NB)] + [(str(x), 'L_rf%d' % x, 'L_rb%d' % x, sI1, 1) for x in range(NB)]:
            sp.label('L_sw' + n)
            sp('s_cmp_lg_u32 s%d, 0' % sSW); sp('s_cbranch_scc1 %s' % done)
            sp('s_mov_b32 s%d, 1' % sSW); sp('s_xor_b32 s%d, s%d, 1' % (sH, sH))
            sp('s_waitcnt vmcnt(0)')
            sp('v_xor_b32 v%d, 0x80, v%d' % (QAD, QAD))
            claim(sp, cnt)
            sp('s_waitcnt vmcnt(0)')
            sp('v_readfirstlane_b32 s%d, v%d' % (reg, CL))
            sp('s_branch %s' % back)
    sp.label('L_cntspin')
    sp('s_lshl_b32 s%d, s%d, 3' % (sA, sG))
    gen_spin(sp, 'L_cntspin2', 'L_cntok', 'buffer_load_dword v%d, off, s[%d:%d], s%d offset:128 sc1' % (CNT, SD, SD + 3, sA),
             ['v_readfirstlane_b32 s3, v%d' % CNT, 's_cmp_lt_u32 s3, 16', 's_cbranch_scc1 @'], 35)
    return pre, body, fin, e, sp

def gen_red(o, early, sfx):
    s = Seg('red' + sfx)
    if sfx: s.label('L_red' + sfx)
    poll = poll_txt()
    BUF = [144, 184, 0, 40]
    def check(n):
        s.wait(regs=[('v', PL)])
        s('v_cmp_gt_u32 vcc, %d, v%d' % (n, PL))
        s('s_cbranch_vccnz L_spin%d%s' % (n, sfx))
        s.label('L_got%d%s' % (n, sfx))
    def loads(c):
        for g in load_groups(o, c, lambda k: vr(BUF[c] + 4 * k, 4), sA): s.add(g)
    def summ(c): summ_ops(s, BUF[c], 100 + 4 * (c & 1))
    def outst(c):
        o2 = 100 + 4 * (c & 1)
        s('buffer_store_dwordx2 %s, v%d, s[%d:%d], s%d offen %s' % (vr(o2, 2), OD, SO, SO + 3, sCW + c, o.out_pol))
        s('buffer_store_dwordx2 %s, v%d, s[%d:%d], s%d offen %s' % (vr(o2 + 2, 2), OD2, SO, SO + 3, sCW + c, o.out_pol))
    T = lambda i: tstamp(s, o, 'r', i)
    T(0)
    if o.fl3:
        s.wait(tags=['st3'])
        s.add(flag_ops(o, 3))
        check(1)
        T(1); stamp(s, o, 12)
        loads(0)
        T(2)
        check(2)
        T(3)
        s(poll, tag='poll')
        loads(1)
        T(4)
        summ(0)
    else:
        s.wait(regs=[('v', PL)], tags=['st2'])
        s.add(flag_ops(o, 2))
    if o.fl3: pass
    elif not early:
        check(1)
        T(1); stamp(s, o, 12)
        s.wait(regs=regs('v', BUF[0], 40))
        loads(0)
        T(2)
        s.wait(tags=['st3'])
        s.add(flag_ops(o, 3))
        check(2)
        T(3)
        s(poll, tag='poll')
        loads(1)
        T(4)
        summ(0)
    else:
        check(2)
        T(1); stamp(s, o, 12)
        loads(1)
        T(2)
        s.wait(tags=['st3'])
        s.add(flag_ops(o, 3))
        T(3)
        s(poll, tag='poll')
        T(4)
        summ(0)
    T(5)
    check(3)
    T(6); stamp(s, o, 13)
    s(poll, tag='poll')
    loads(2)
    outst(0)
    T(7)
    summ(1)
    T(8)
    check(4)
    T(9); stamp(s, o, 14)
    loads(3)
    outst(1)
    T(10)
    summ(2); outst(2)
    T(11)
    summ(3); outst(3)
    T(12)
    if o.stamps or o.trace:
        s('s_waitcnt vmcnt(0)')
        T(13); T(14); T(15)
        stamp(s, o, 15)
    if not sfx: s.label('L_done')
    s('s_endpgm')
    sp = Seg('spins')
    for n in (2, 3, 4) if early else (1, 2, 3, 4): gen_spin(sp, 'L_spin%d%s' % (n, sfx), 'L_got%d%s' % (n, sfx), poll, ['v_cmp_gt_u32 vcc, %d, v%d' % (n, PL), 's_cbranch_vccnz @'])
    if sfx: return s, sp
    sp.label('L_cntspin')
    sp('s_lshl_b32 s%d, s%d, 3' % (sA, sG))
    gen_spin(sp, 'L_cntspin2', 'L_cntok', 'buffer_load_dword v%d, off, s[%d:%d], s%d offset:128 sc1' % (CNT, SD, SD + 3, sA),
             ['v_readfirstlane_b32 s3, v%d' % CNT, 's_cmp_lt_u32 s3, 16', 's_cbranch_scc1 @'])
    return s, sp

def desc(name, vgpr, accum, sgpr):
    return '''.amdhsa_kernel %s
  .amdhsa_next_free_vgpr %d
  .amdhsa_next_free_sgpr %d
  .amdhsa_accum_offset %d
  .amdhsa_group_segment_fixed_size 0
  .amdhsa_kernarg_size 104
  .amdhsa_user_sgpr_count 2
  .amdhsa_user_sgpr_kernarg_segment_ptr 1
  .amdhsa_system_sgpr_workgroup_id_x 1
  .amdhsa_float_denorm_mode_32 3
.end_amdhsa_kernel
''' % (name, vgpr, sgpr, accum)

DOC = """;
; One workgroup per CU = one (branch, batch, head pair); waves 0,1 own the first head, waves 2,3 the second, 80 query rows each.
; Everything is computed transposed (queries along the lanes) with v_mfma_f32_16x16x32_bf16; all tiles reach LDS by LDS-DMA.
;   red    : the 16 partials of a (branch, batch) are summed in 8-row x 32-column slices handed out by a counter
"""
def build(o, path):
    o.kvat_l = [int(x) for x in o.kvat.split(',')]
    o.stat_l = [int(x) for x in o.stat.split(',')]
    o.sched = kv_schedule(o)
    Pace.slots = o.slots
    entry, q, s0, attn, epi = gen_entry(o), gen_q(o), gen_s0(o), gen_attn(o), gen_epi(o)
    r0, r1, r2 = gen_redo(o)
    op = gen_op(o)
    if o.dyn:
        pre, body, fin, e, spins = gen_red_dyn(o)
        tail_code = [pre] + body + fin + [e, spins]
        tails = [[pre] + body + body + [fin[0], e], [pre] + body + [body[0], fin[1], e]]
        xtails = [[pre, fin[0], e], [pre, body[0], fin[1], e]]
        if o.eclaim:
            assert o.nb == 2
            h = Seg('h'); h.items = pre.items[:[i for i, it in enumerate(pre.items) if it.kind == 'branch' and 'L_late' in it.text][0] + 1]
            xtails += [[h, o.late, body[0], body[1], fin[0], e], [h, o.late, fin[0], e]]
            tail_code.append(o.late)
        if o.nb == 3:
            h = Seg('h'); h.items = pre.items[:[i for i, it in enumerate(pre.items) if it.kind == 'branch' and 'L_rlast0' in it.text][0] + 1]
            l = Seg('l'); l.items = fin[2].items[[i for i, it in enumerate(fin[2].items) if it.kind == 'label' and it.name == 'L_rlast0'][0]:]
            xtails += [[pre, body[0], body[1], fin[2], e], [pre] + body + [body[0], body[1], fin[2], e], [h, l, e]]
    else:
        red, spins = gen_red(o, False, '')
        redE, spinsE = gen_red(o, True, 'E') if o.early else (Seg('x'), Seg('x'))
        tail_code = [red, redE, spins, spinsE]
        tails = [[red], [redE if o.early else red]]
    traces = []
    for redo in (0, 1):
        tr = [(entry, {}), (q, {})]
        for ps in range(redo + 1):
            if ps: tr += [(r0, {}), (r1, {}), (r1, {}), (r2, {})]
            tr += [(s0, {}), (attn, {}), (epi, dict(redo=ps))]
        tr += [(op, dict(redo=redo))] + [(x, {}) for x in tails[redo]]
        traces.append(('redo%d' % redo, tr))
    if o.dyn:
        base = traces[0][1][:-len(tails[0])]
        for i, xt in enumerate(xtails): traces.append(('x%d' % i, base + [(x, {}) for x in xt]))
    resolve([t for _, t in traces])
    allerr = []
    for name, tr in traces: allerr += check(tr, name)[0]
    for e in allerr[:6]: print('ERR', e)
    if allerr: print(len(allerr), 'errors')
    hdr = open('concat_heads__gqa_block_cached__gqa_block_cached__near_ridge.s.ref').read().split('; Override')[0]
    txt = hdr + '; @launch grid=(256,1,1) block=(256,1,1) lds=163840\n' + DOC
    txt += '.amdgcn_target "amdgcn-amd-amdhsa--gfx950"\n.text\n.globl %s\n.p2align 8\n.type %s,@function\n%s:\n' % (KN, KN, KN)
    for sg in [entry, q, s0, attn, epi, op] + tail_code + [r0, r1, r2]: txt += '; ---- %s\n' % sg.name + sg.text()
    txt += 'L_code_end:\n'
    txt += '.section .rodata,"a"\n.p2align 6\n' + desc(KN, 512, 256, 102)
    open(path, 'w').write(txt)
    return not allerr

if __name__ == '__main__':
    o = Opt()
    path = sys.argv[1]
    for kv in sys.argv[2:]:
        k, v = kv.split('=')
        cur = getattr(o, k)
        setattr(o, k, int(v) if isinstance(cur, int) else v.replace('+', ' '))
    ok = build(o, path)
    if not ok: os.remove(path); sys.exit(1)
    print('written', path, 'ok' if ok else 'WITH ERRORS', {h: len(v) for h, v in o.sched.items() if len(v) != 4 and (len(v) or h < 62)} if '-v' in path else '')
```

```python
import sys, struct, math
from fw import *

KN = "concat_heads__gqa_block_cached__gqa_block_cached__near_ridge_kernel"
WS_BYTES = 287834112
import os
PST = int(os.environ.get('PST', 172032))
INB = 256 * PST
def f2u(x): return struct.unpack('<I', struct.pack('<f', x))[0]

class Opt:
    kv_pol = 'nt'; w_pol = ''; st_pol = 'sc1'; rd_pol = 'sc1'; fl_pol = 'sc1'; out_pol = ''
    stamps = 0; cyc = 0; dbgst = 0; trace = ''
    force_redo = 0
    codepf = 1
    par = 1
    qevery = 3
    qpack = 0
    x1e = 0
    defer = 0
    capalt = 0
    lite = 0
    slots = 1
    kvat = '5,7,9,11'
    cap = 4
    cap2 = 0
    capl = 0
    tl = 99
    rotp = 1
    split = 1
    qpk = 1
    epw = 2
    epk = 1
    stage = 0
    stat = '8,10'
    lsum = 1
    uni = 1
    hold = 0
    lasth = 57
    ninit = 10
    oevery = 3
    loc = -1
    flagat = 5
    rotc = 1
    exsp = 0
    dyn = 1
    nb = 3
    f2post = 0
    jit = 0
    slp = 4
    rep = 4
    fl = '13,23'
    cfl = ''
    rcap = 0
    sl8 = 1
    eclaim = 0
    nfirst = 5
    fl3 = 1
    early = 0
    epoll = 24
    ldevery = 5
    pfo = 0
    diag = ''

V0 = 98304
KAD = lambda j: 16384 * (j % 5)
VAD = lambda j: (V0, V0 + 16384, V0 + 32768, V0 + 49152, V0 - 16384)[(j + 2) % 5]
XBUF = lambda m: 32768 + 20480 * (m & 1)
WAD = lambda n: (V0 + 16384, V0 - 16384, V0)[n % 3]
EX = 16384
FLG = VAD(31)
OSLOT = [VAD(28), KAD(30), VAD(29), VAD(30), VAD(31), 16384, 32768, 49152]

S, P, NM, L = 0, 40, 80, 100
KA, KA2, VA, VA2, DK, DV, LANE16, CNT, FLA, CA = 105, 109, 113, 121, 129, 133, 135, 136, 137, 138
DWO = VA2
STV = 140
OV, NOV = 144, 28
XAD, DX, DWQ, DUM = 48, 50, 51, 59
Q, KB, VB, OA = 0, 80, 112, 144
XF = 144
OWN, PART = 0, 144
STG = 216
LS, ONES = 192, 212
sW, sP, sREDO, sCNT = 4, 5, 6, 7
SX, SWQ, SK, SV, SWO, SP_ = 8, 12, 16, 20, 24, 28
sOK, sOV, sMK = 32, 33, 34
sBR, sHP, sBT = 37, 38, 39
sWS = 40
sCW, sCP = 44, 48
sC, sTHR = 54, 56
sA, sB = 58, 59
sW1K, sHF = 60, 61
sST = 64
SF, SD, SO = 72, 76, 80
sG = 84
sM0, sM1 = 86, 88
sXO, sWQO = 90, 91
sO5 = 57
sH, sSW = 100, 101
SG = 96
SG2 = 8
sE = 35

def vr(b, n=1): return 'v%d' % b if n == 1 else 'v[%d:%d]' % (b, b + n - 1)
def ar(b, n=1): return 'a%d' % b if n == 1 else 'a[%d:%d]' % (b, b + n - 1)
def sr(b, n=1): return 's%d' % b if n == 1 else 's[%d:%d]' % (b, b + n - 1)
def mfma(d, a, b, c): return I('v_mfma_f32_16x16x32_bf16 %s, %s, %s, %s' % (d, a, b, c))
def otile(j, db):
    n = 8 * j + db
    return ('v', OV + 4 * n) if n < NOV else ('a', OA + 4 * (n - NOV))
def oreg(j, db):
    k, b = otile(j, db)
    return '%s[%d:%d]' % (k, b, b + 3)
def qacc(db, j):
    n = 8 * j + db
    return 4 * n if n < 12 else OV + 4 * (n - 12)

def clk(o): return 's_memtime' if o.cyc else 's_memrealtime'
def tstamp(s, o, ph, idx):
    if o.trace == ph and idx < 16:
        s('%s s[%d:%d]' % (clk(o), sST + 6, sST + 7)); s('s_waitcnt lgkmcnt(0)')
        s('v_writelane_b32 v%d, s%d, %d' % (STV + 2, sST + 6, idx))
def stamp(s, o, idx):
    st = sST
    def wsrd():
        s('s_mov_b32 s%d, s%d' % (st, sWS)); s('s_mov_b32 s%d, s%d' % (st + 1, sWS + 1))
        s('s_mov_b32 s%d, 0x%x' % (st + 2, WS_BYTES)); s('s_mov_b32 s%d, 0x20000' % (st + 3))
    if o.trace:
        if idx == 15:
            wsrd()
            s('s_mul_i32 s%d, s2, %d' % (st + 4, 128)); s('s_add_u32 s%d, s%d, 0x%x' % (st + 4, st + 4, WS_BYTES - 256 * 128))
            s('s_min_u32 s3, s%d, 1' % sW); s('s_lshl_b32 s3, s3, 30'); s('s_add_u32 s%d, s%d, s3' % (st + 4, st + 4))
            s('v_mbcnt_lo_u32_b32 v0, -1, 0'); s('v_lshlrev_b32 v0, 3, v0'); s('v_mov_b32 v2, v%d' % (STV + 2)); s('v_mov_b32 v3, 0')
            s('s_mov_b64 exec, 0xffff')
            s('buffer_store_dwordx2 v[2:3], v0, s[%d:%d], s%d offen' % (st, st + 3, st + 4))
        return
    if not o.stamps: return
    if o.lite and idx not in (0, 15): return
    a, b = STV, STV + 1
    if o.dbgst:
        if idx not in (0, 2, 3, 5, 6, 11, 13, 15): return
        idx = (0, 2, 3, 5, 6, 11, 13, 15).index(idx)
        s('s_memrealtime s[%d:%d]' % (st + 4, st + 5)); s('s_memtime s[%d:%d]' % (st + 6, st + 7)); s('s_waitcnt lgkmcnt(0)')
        s('v_mov_b32 v%d, s%d' % (a, st + 4)); s('v_mov_b32 v%d, s%d' % (b, st + 6))
        s('s_sub_u32 s%d, s2, %d' % (st + 4, o.dbgst - 1)); s('s_mul_i32 s%d, s%d, 0x1000' % (st + 4, st + 4))
        s('s_add_u32 s%d, s%d, 0x%x' % (st + 4, st + 4, idx * 8)); s('s_nop 0')
        s('buffer_store_dwordx2 v[%d:%d], off, s[%d:%d], s%d' % (a, b, SD, SD + 3, st + 4))
        return
    s('%s s[%d:%d]' % (clk(o), st + 4, st + 5)); s('s_waitcnt lgkmcnt(0)')
    if idx == 0: s('s_mov_b64 s[%d:%d], s[%d:%d]' % (st + 4, st + 5, st + 6, st + 7))
    wsrd()
    s('v_mov_b32 v%d, s%d' % (a, st + 4)); s('v_mov_b32 v%d, s%d' % (b, st + 5))
    s('s_mul_i32 s%d, s2, %d' % (st + 4, o.stamps * 8))
    s('s_add_u32 s%d, s%d, 0x%x' % (st + 4, st + 4, WS_BYTES - 256 * o.stamps * 8 + idx * 8)); s('s_nop 0')
    s('buffer_store_dwordx2 v[%d:%d], off, s[%d:%d], s%d' % (a, b, st, st + 3, st + 4))

def dma(voff, srd, soff, imm, pol, tag, lo, n=16384):
    return I('buffer_load_dwordx4 v%d, s[%d:%d], s%d offen offset:%d %s lds' % (voff, srd, srd + 3, soff, imm, pol), tag=tag, lds=(lo, lo + n, tag))
def grp4(pre, mk, post=()):
    out = []
    for t in range(4):
        g = list(pre) if t == 0 else []
        g.append(mk(t))
        if t == 3: g += list(post)
        out.append(g)
    return out
def dma_x(o, m):
    buf = XBUF(m)
    out = [[I('s_add_u32 m0, s%d, 0x%x' % (sW1K, buf + 4096 * j)), I('s_add_u32 s%d, s%d, 0x%x' % (sA, sXO, 32768 * j)),
            dma(DX, SX, sA, 0, o.w_pol, 'x%d' % m, buf, 20480)] for j in range(5)]
    out[4] += [I('s_add_u32 s%d, s%d, 128' % (sXO, sXO)), I('s_and_b32 s%d, s%d, 0x3ff' % (sXO, sXO))]
    return out
def dma_wq(o, n):
    b = WAD(n)
    return grp4([I('s_add_u32 m0, s%d, 0x%x' % (sMK, b)), I('s_nop 0')],
                lambda t: dma(DWQ + t, SWQ, sWQO, 1024 * t, o.w_pol, 'wq%d' % n, b),
                [I('s_add_u32 s%d, s%d, 0x40000' % (sWQO, sWQO)), I('s_and_b32 s%d, s%d, 0x3fffff' % (sWQO, sWQO))])
def stage_ld(o, kind):
    srd_, r = (SK, STG) if kind == 'K' else (SV, STG + 16)
    vo = (lambda t: DK + t) if kind == 'K' else (lambda t: DV + (t & 1))
    return [[I('buffer_load_dwordx4 %s, v%d, s[%d:%d], s%d offen offset:%d %s' % (ar(r + 4 * t, 4), vo(t), srd_, srd_ + 3, sO5, 1024 * t, o.kv_pol))] for t in range(4)]
def stage_wr(o, kind):
    b, r, ad = (KAD(5), STG, 139) if kind == 'K' else (VAD(5), STG + 16, 143)
    out = [[I('ds_write_b128 v%d, %s offset:%d' % (ad, ar(r + 4 * t, 4), 1024 * t), lds=(b, b + 16384, '%s5' % kind))] for t in range(4)]
    out[0].insert(0, Wait(regs=regs('a', r, 16)))
    return out
def dma_kv(o, kind, j):
    b, so, srd_ = (KAD(j), sOK, SK) if kind == 'K' else (VAD(j), sOV, SV)
    vo = (lambda t: DK + t) if kind == 'K' else (lambda t: DV + (t & 1))
    return grp4([I('s_add_u32 s%d, s%d, 0x%x' % (so, so, 0x4000 if (o.stage and j == 6) else 0x2000)), I('s_add_u32 m0, s%d, 0x%x' % (sMK, b)), I('s_and_b32 s%d, s%d, 0x3ffff' % (so, so))],
                lambda t: dma(vo(t), srd_, so, 1024 * t, o.kv_pol, '%s%d' % (kind, j), b))
KVSEQ = [(k, j) for j in range(32) for k in 'KV']
def dma_wo(o, u):
    c, phi, dh = u >> 2, (u >> 1) & 1, u & 1
    b = OSLOT[u % 8]
    return grp4([I('s_lshl_b32 s%d, s%d, 2' % (sB, sMK)), I('s_add_u32 s%d, s%d, s%d' % (sB, sB, sCW + c)),
                 I('s_add_u32 m0, s%d, 0x%x' % (sMK, b)), I('s_add_u32 s%d, s%d, 0x%x' % (sB, sB, 65536 * dh))],
                lambda t: dma(DWO + 4 * phi + t, SWO, sB, 1024 * t, o.w_pol, 'wo%d' % u, b))
def capped(o, groups, j=0):
    if not o.cap: return groups
    out = []
    for g in groups:
        k = [i for i, x in enumerate(g) if x.kind == 'dma'][0]
        if j >= o.tl: out.append(g[:k] + [I('s_waitcnt vmcnt(%d)' % o.capl)] + g[k:])
        elif o.cap2:
            lo = I('s_waitcnt vmcnt(%d)' % o.cap); lo.kind = 'other'
            out.append(g[:k] + [I('s_waitcnt vmcnt(%d)' % o.cap2), I('s_cbranch_vccnz 1'), lo] + g[k:])
        else: out.append(g[:k] + [I('s_waitcnt vmcnt(%d)' % (o.cap - (1 if o.capalt and len(out) % o.capalt == 0 else 0)))] + g[k:])
    return out

def rd_k(j):
    b = KAD(j)
    areg, imm = (KA, b) if b < 65536 else (KA2, b - 65536)
    return [I('ds_read_b128 %s, v%d offset:%d' % (ar(KB + 4 * (4 * kb + s), 4), areg + s, imm + 4096 * kb), lds=(b, b + 16384, 'K%d' % j))
            for s in range(4) for kb in range(2)]
def rd_tr(dst, b, tag):
    areg, imm = (VA, b - V0) if b >= V0 else (VA2, 0)
    return [I('ds_read_b64_tr_b16 %s, v%d offset:%d' % (ar(dst + 4 * d + 2 * e, 2), areg + d, imm + 4096 * e), lds=(b, b + 16384, tag))
            for d in range(8) for e in range(2)]
def rd_v(dst, j): return rd_tr(dst, VAD(j), 'V%d' % j)

def spread(items, gaps):
    d = {g: [] for g in gaps}
    n, m = len(items), len(gaps)
    for i, it in enumerate(items): d[gaps[i * m // n]].append(it)
    return d
def srd(s, r, lo, hi, off, size):
    if off is None: s('s_mov_b32 s%d, s%d' % (r, lo)); s('s_mov_b32 s%d, s%d' % (r + 1, hi))
    else: s('s_add_u32 s%d, s%d, s%d' % (r, lo, off)); s('s_addc_u32 s%d, s%d, 0' % (r + 1, hi))
    if size is not None: s('s_mov_b32 s%d, 0x%x' % (r + 2, size))
    s('s_mov_b32 s%d, 0x20000' % (r + 3))
def kv_start(s, o):
    s('s_mul_i32 s3, s%d, 0x%x' % (sP, 8192 * o.rotp)); s('s_lshl_b32 s36, s%d, 12' % sHF); s('s_add_u32 s3, s3, s36')
    s('s_sub_u32 s%d, s3, 0x2000' % sOK); s('s_mov_b32 s%d, s%d' % (sOV, sOK))
    if o.stage: s('s_add_u32 s%d, s3, 0xa000' % sO5)

def gen_entry(o):
    s = Seg('entry')
    if o.stamps and not o.dbgst: s('%s s[%d:%d]' % (clk(o), sST + 6, sST + 7))
    s('s_cmp_ge_u32 s2, 256')
    s('s_cbranch_scc1 L_done')
    s('v_mov_b32 v64, v0')
    s('s_and_b32 s3, s2, 7')
    s('s_lshr_b32 s36, s2, 3')
    if o.par: s('s_and_b32 s37, s3, 1'); s('s_lshr_b32 s38, s3, 1')
    else: s('s_lshr_b32 s37, s3, 2'); s('s_and_b32 s38, s3, 3')
    s('s_mul_i32 s3, s37, 40'); s('s_add_u32 s42, s0, s3'); s('s_addc_u32 s43, s1, 0')
    s('''s_load_dwordx8 s[44:51], s[42:43], 0
         s_load_dwordx2 s[52:53], s[42:43], 32
         s_load_dwordx2 s[40:41], s[0:1], 96
         s_load_dwordx4 s[92:95], s[0:1], 80''')
    if o.codepf:
        s('s_getpc_b64 s[62:63]')
        s.label('L_pc')
        s('v_lshrrev_b32 v71, 2, v64'); s('v_and_b32 v71, 0x30, v71'); s('v_and_b32 v72, 15, v64'); s('v_or_b32 v71, v71, v72')
        s('s_and_b32 s3, s36, 15'); s('s_lshl_b32 s3, s3, 6')
        s('v_add_lshl_u32 v71, s3, v71, 7')
        s('v_min_u32 v71, L_code_end-L_pc-4, v71')
        s('global_load_dword v%d, v71, s[62:63]' % DUM, dummy=True)
    s('''s_lshl_b32 s38, s38, 2
         s_and_b32 s39, s36, 3
         s_or_b32 s38, s38, s39
         s_lshr_b32 s39, s36, 2''')
    s('v_lshrrev_b32 v71, 6, v64')
    s('v_and_b32 v65, 63, v64')
    s('v_readfirstlane_b32 s%d, v71' % sW)
    s('v_lshrrev_b32 v66, 4, v65')
    s('v_and_b32 v67, 15, v65')
    s('v_and_b32 v69, 7, v65')
    s('s_lshl_b32 s%d, s%d, 10' % (sW1K, sW))
    s('s_lshl_b32 s%d, s%d, 12' % (sMK, sW))
    s('s_lshr_b32 s%d, s%d, 1' % (sP, sW))
    s('s_and_b32 s%d, s%d, 1' % (sHF, sW))
    s('s_lshl_b32 s3, s%d, 2' % sHF)
    s('v_add_u32 v73, s3, v66')
    s('v_xor_b32 v69, v73, v69')
    s('v_lshlrev_b32 v69, 4, v69')
    s('v_lshrrev_b32 v68, 3, v64')
    s('v_lshl_add_u32 v%d, v68, 10, v69' % DX)
    s('v_lshlrev_b32 v70, 1, v66')
    s('v_xor_b32 v70, v70, v67')
    s('v_lshlrev_b32 v70, 4, v70')
    s('v_lshl_add_u32 v68, v73, 13, v70')
    s('s_lshl_b32 s3, s%d, 8' % sP)
    s('v_add_u32 v%d, s3, v68' % DWQ)
    s('v_xor_b32 v68, 0x80, v%d' % DWQ)
    s('v_add_u32 v%d, 0x%x, v68' % (DWQ + 1, 64512))
    s('v_add_u32 v%d, 0x%x, v%d' % (DWQ + 2, 2 * 64512, DWQ))
    s('v_add_u32 v%d, 0x%x, v68' % (DWQ + 3, 3 * 64512))
    s('s_and_b32 s3, s38, 3'); s('s_lshl_b32 s3, s3, 1'); s('s_add_u32 s3, s3, s39'); s('s_and_b32 s3, s3, 7')
    s('s_lshl_b32 s%d, s3, 7' % sXO); s('s_lshl_b32 s%d, s3, 19' % sWQO)
    s('s_mul_i32 s3, s39, 163840'); s('s_lshl_b32 s36, s38, 9')
    s('s_waitcnt lgkmcnt(0)')
    srd(s, SX, 44, 45, 3, 163840)
    srd(s, SWQ, 50, 51, 36, None); s('s_sub_u32 s%d, 0x400000, s36' % (SWQ + 2))
    for g in dma_x(o, 0) + dma_wq(o, 0) + dma_wq(o, 1): s.add(g)
    srd(s, SD, 94, 95, None, 256)
    stamp(s, o, 0)
    s('v_lshlrev_b32 v%d, 4, v65' % LANE16)
    urgent = s
    if o.defer: s = Seg('deferred')
    s('s_mov_b32 s3, 0x%x' % (INB if o.loc < 0 else 0)); srd(s, SF, sWS, sWS + 1, 3, 65536 + 4096)
    s('s_lshl_b32 s%d, s37, 3' % sG); s('s_add_u32 s%d, s%d, s39' % (sG, sG))
    s('s_lshl_b32 s36, s%d, 4' % sG); s('s_add_u32 s36, s36, s38')
    s('s_min_u32 s3, s%d, 1' % sW); s('s_lshl_b32 s3, s3, 30')
    s('s_lshl_b32 s62, s36, 8'); s('s_add_u32 s62, s62, s3')
    s('v_lshlrev_b32 v72, 2, v65'); s('v_add_u32 v73, s62, v72'); s('v_mov_b32 v74, 0')
    s('buffer_store_dword v74, v73, s[%d:%d], 0 offen %s' % (SF, SF + 3, o.fl_pol), tag='clr')
    if o.dyn:
        s('s_lshl_b32 s3, s%d, 8' % sG); s('s_add_u32 s3, s3, 0x10000'); s('s_min_u32 s62, s38, 1'); s('s_lshl_b32 s62, s62, 30'); s('s_add_u32 s3, s3, s62')
        s('v_lshrrev_b32 v73, 1, v64'); s('v_min_u32 v73, 1, v73'); s('v_lshlrev_b32 v73, 29, v73'); s('v_lshl_add_u32 v73, v64, 7, v73'); s('v_add_u32 v73, s3, v73')
        s('buffer_store_dword v74, v73, s[%d:%d], 0 offen %s' % (SF, SF + 3, o.fl_pol))
    if o.loc < 0:
        s('s_mul_i32 s3, s36, %d' % PST); srd(s, SP_, sWS, sWS + 1, 3, 163840)
        s('s_mul_i32 s3, s%d, %d' % (sG, 16 * PST)); srd(s, SG, sWS, sWS + 1, 3, 16 * PST)
    else:
        s('s_lshl_b32 s3, s%d, 23' % sG); s('s_add_u32 s3, s3, 0x41ffff')
        srd(s, SG, sWS, sWS + 1, 3, 1 << 23); s('s_and_b32 s%d, s%d, 0xffc00000' % (SG, SG))
        s('s_lshr_b32 s3, s38, 3'); s('s_lshl_b32 s3, s3, 22'); s('s_and_b32 s62, s38, 7'); s('s_lshl_b32 s62, s62, 18'); s('s_add_u32 s3, s3, s62')
        srd(s, SP_, SG, SG + 1, 3, 1 << 18)
        s('s_mov_b32 s%d, 0' % sSW)
        if o.loc < 2:
            s('s_getreg_b32 s3, hwreg(HW_REG_XCC_ID)'); s('s_bfe_u32 s3, s3, 0x10002'); s('s_xor_b32 s%d, s3, %d' % (sH, o.loc))
        else:
            s('s_lshl_b32 s3, s%d, 8' % sW); s('s_add_u32 s62, s%d, s3' % SP_); s('s_addc_u32 s63, s%d, 0' % (SP_ + 1))
            s('s_load_dword s3, s[62:63], 0x1000'); s('s_waitcnt lgkmcnt(0)')
            s('s_mov_b32 s68, 0x5bd1e995')
            for txt in ('s_load_dword s69, s[62:63], 0x2000', 's_load_dword s68, s[62:63], 0', 's_waitcnt lgkmcnt(1)', 's_mov_b32 s3, s68', 's_waitcnt lgkmcnt(0)'):
                it = I(txt); it.kind = 'other'; s.add(it)
            s('s_cmp_eq_u32 s3, 0x5bd1e995'); s('s_cselect_b32 s%d, 1, 0' % sH)
    s('''s_lshl_b32 s3, s39, 4
         s_add_u32 s3, s3, s38
         s_lshl_b32 s3, s3, 1
         s_add_u32 s3, s3, s%d
         s_lshl_b32 s3, s3, 18''' % sP)
    srd(s, SK, 46, 47, 3, 0x40000); srd(s, SV, 48, 49, 3, 0x40000)
    s('s_lshl_b32 s3, s38, 18'); srd(s, SWO, 52, 53, 3, 0x40000)
    srd(s, SO, 92, 93, None, 8 * 160 * 2048)
    kv_start(s, o)
    for c in range(4):
        if o.rotc: s('s_add_u32 s3, s39, %d' % c); s('s_and_b32 s3, s3, 3')
        else: s('s_mov_b32 s3, %d' % c)
        s('s_lshl_b32 s%d, s3, 7' % (sCW + c)); s('s_mul_i32 s%d, s3, %d' % (sCP + c, 20480 if o.loc < 0 else 32768))
    c = math.log2(math.e) / math.sqrt(128.0)
    s('s_mov_b32 s%d, 0x%x' % (sC, f2u(c))); s('s_mov_b32 s%d, 0x%x' % (sC + 1, f2u(c)))
    s('s_mov_b32 s%d, 0x%x' % (sTHR, f2u(2.0 ** 24 if not o.force_redo else 1.0)))
    s('s_mov_b32 s%d, 0' % sREDO)
    s('s_lshl_b32 s3, s%d, 12' % sG); s('s_lshl_b32 s36, s38, 4'); s('s_add_u32 s3, s3, s36')
    s('s_lshl_b32 s36, s%d, 2' % sW); s('s_add_u32 s3, s3, s36')
    s('v_lshlrev_b32 v68, 8, v67'); s('v_add_u32 v68, s3, v68')
    s('v_and_b32 v69, %d, v65' % (48 | (16 // o.rep - 1))); s('v_min_u32 v69, 1, v69'); s('v_lshl_add_u32 v%d, v69, 30, v68' % FLA)
    s('v_min_u32 v69, 1, v64'); s('v_lshlrev_b32 v69, 30, v69'); s('s_lshl_b32 s3, s%d, 3' % sG); s('s_add_u32 s3, s3, 128'); s('v_add_u32 v%d, s3, v69' % CA)
    s('v_mov_b32 v%d, 1' % CNT)
    s('v_xor_b32 v68, v66, v67'); s('v_lshlrev_b32 v68, 4, v68')
    s('v_lshl_add_u32 v%d, v66, 8, v68' % DK)
    for t in range(1, 4): s('v_xor_b32 v%d, %d, v%d' % (DK + t, 64 * t, DK))
    s('v_lshl_add_u32 v%d, v66, 8, v70' % DV)
    s('v_xor_b32 v%d, 0x80, v%d' % (DV + 1, DV))
    s('v_lshl_add_u32 v68, v67, 8, v68')
    s('s_lshl_b32 s36, s%d, 13' % sP)
    s('v_add_u32 v%d, s36, v68' % KA)
    for k in range(1, 4): s('v_xor_b32 v%d, %d, v%d' % (KA + k, 64 * k, KA))
    for k in range(4): s('v_add_u32 v%d, 0x10000, v%d' % (KA2 + k, KA + k))
    late, s = s, urgent
    s('s_lshl_b32 s36, s%d, 13' % sP)
    s('v_lshrrev_b32 v68, 1, v67'); s('v_xor_b32 v68, v68, v66'); s('v_lshlrev_b32 v68, 4, v68')
    s('v_lshl_add_u32 v68, v67, 7, v68')
    s('s_mul_i32 s3, s%d, 10240' % sHF)
    s('v_add_u32 v%d, s3, v68' % XAD)
    s('v_xor_b32 v%d, 64, v%d' % (XAD + 1, XAD))
    s('v_lshrrev_b32 v68, 2, v65')
    s('v_and_b32 v69, 7, v68')
    s('v_lshlrev_b32 v69, 5, v69')
    s('v_lshl_add_u32 v69, v68, 8, v69')
    s('v_and_b32 v68, 3, v65')
    s('v_lshl_add_u32 v69, v68, 3, v69')
    s('s_add_u32 s36, s36, 0x%x' % V0)
    s('v_add_u32 v%d, s36, v69' % VA)
    for k in range(1, 8): s('v_xor_b32 v%d, %d, v%d' % (VA + k, 32 * k, VA))
    for k in range(8): s('v_subrev_u32 v%d, 0x4000, v%d' % (VA2 + k, VA + k))
    if o.stage:
        s('s_add_u32 s3, s%d, 0x%x' % (sMK, KAD(5))); s('v_add_u32 v139, s3, v%d' % LANE16)
        s('s_add_u32 s3, s%d, 0x%x' % (sMK, VAD(5))); s('v_add_u32 v143, s3, v%d' % LANE16)
    stamp(s, o, 1)
    o.deferred = late.items if o.defer else []
    return s

def is_vm(g): return any(x.kind in ('dma', 'vst', 'vld') for x in g)
class Pace: since = 99; slots = 0
class Atomic(list): pass
barrier_hooks = []
def gemm_kstep(s, mf, need, reads, barrier, extra, every=1, vq=None, pack=False):
    n = len(mf)
    rg = list(range(2, 2 + (len(reads) + 1) // 2)) if (n <= 20 or pack) else list(range(2, 2 + len(reads)))
    rd = spread(reads, rg) if reads else {}
    part = False
    for g in range(n):
        if g == 0: s.wait(regs=need)
        s.add(mf[g])
        if g == 1 and barrier is not None:
            s.wait(**barrier)
            s('s_barrier')
            for f in barrier_hooks: f()
            del barrier_hooks[:]
        s.add(rd.get(g, []))
        Pace.since += 1
        busy = len(rd.get(g, []))
        if Pace.slots:
            free = 2 - busy - (2 if (g == 1 and barrier is not None) else 0)
            m0_fresh = False
            while free > 0:
                q = vq if vq else None
                if q is not None:
                    head = [x for x in q[0] if not (x.kind == 'nop')]
                    vm = head[0].kind in ('dma', 'vst', 'vld')
                    if vm and (Pace.since < every or m0_fresh): q = None
                if q is None:
                    while extra and extra[0] == [] and free == 2 - busy:
                        extra.pop(0); free = 0
                    if free <= 0 or not extra or extra[0] == []: break
                    q = extra
                    if isinstance(q[0], Atomic):
                        s.add(list(q.pop(0))); free -= 2; m0_fresh = False
                        continue
                    head = list(q[0])
                    vm = False
                it = head.pop(0)
                s.add(it)
                if it.kind != 'label': free -= 1
                if vm: Pace.since = 0
                m0_fresh = it.kind == 'salu' and ('m0', 0) in it.wr
                if q is extra: part = bool(head)
                if head: q[0] = head
                else: q.pop(0)
            if g == n - 1 and part: s.add(extra.pop(0))
        elif vq and Pace.since >= every and busy < (1 if pack else 2):
            s.add(vq.pop(0)); Pace.since = 0
        elif extra and busy < 2 and (not is_vm(extra[0]) or Pace.since >= every):
            if is_vm(extra[0]): Pace.since = 0
            s.add(extra.pop(0))

def qconv_stream(o):
    c = sr(sC, 2)
    items = [(j, sidx) for j in range(5) for sidx in range(4)]
    tq = lambda i: 60 + 4 * (i % 4)
    def st1(i):
        j, sidx = items[i]; out = []
        for e in range(2):
            b = qacc(2 * sidx + e, j)
            if (o.qpk == 1 and (i < 3 or (i >= 8 and i % 4 == 0))) or o.qpk == 2: out += [I('v_mul_f32 v%d, s%d, v%d' % (b + k, sC, b + k)) for k in range(4)]
            else: out += [I('v_pk_mul_f32 %s, %s, %s' % (vr(b, 2), vr(b, 2), c)), I('v_pk_mul_f32 %s, %s, %s' % (vr(b + 2, 2), vr(b + 2, 2), c))]
        for e in range(2):
            b = qacc(2 * sidx + e, j)
            out += [I('v_cvt_pk_bf16_f32 v%d, v%d, v%d' % (tq(i) + 2 * e, b, b + 1)), I('v_cvt_pk_bf16_f32 v%d, v%d, v%d' % (tq(i) + 2 * e + 1, b + 2, b + 3))]
        return out
    sw = lambda op, i: [I('%s v%d, v%d' % (op, tq(i), tq(i) + 2)), I('%s v%d, v%d' % (op, tq(i) + 1, tq(i) + 3))]
    def st4(i):
        j, sidx = items[i]
        return [I('v_accvgpr_write_b32 a%d, v%d' % (Q + 16 * j + 4 * sidx + k, tq(i) + k)) for k in range(4)]
    n = len(items)
    rounds = []
    for i in range(n + 3):
        r = st1(i) if i < n else [I('s_nop 1')]
        if 0 <= i - 3 < n: r += st4(i - 3)
        if 0 <= i - 2 < n: r += sw('v_permlane16_swap_b32', i - 2)
        if 0 <= i - 1 < n: r += sw('v_permlane32_swap_b32', i - 1)
        rounds.append(r)
    return rounds

def gen_q(o):
    s = Seg('qphase')
    def reads_for(n):
        buf = n & 1
        w = rd_tr(KB + 32 * buf, WAD(n), 'wq%d' % n)
        xb = XBUF(n >> 1)
        x = [I('ds_read_b128 %s, v%d offset:%d' % (ar(XF + 20 * buf + 4 * j, 4), XAD + (n & 1), xb + 2048 * j), lds=(xb, xb + 20480, 'x%d' % (n >> 1))) for j in range(5)]
        return x + w
    if o.x1e: s.add(dma_x(o, 1))
    if o.x1e > 1: s.add(dma_wq(o, 2))
    s.wait(tags=['x0', 'wq0'])
    s('s_barrier')
    stamp(s, o, 2)
    s.add(reads_for(0))
    vq = (dma_wq(o, 2) if o.x1e < 2 else []) + (dma_x(o, 1) if not o.x1e else [])
    kv = [dma_kv(o, k, j) for k, j in KVSEQ[:o.ninit]]
    rounds = qconv_stream(o)
    for n in range(16):
        buf = n & 1
        tstamp(s, o, 'q', n)
        order = [(db, j) for db in range(8) for j in range(5)] if n < 15 else [(db, j) for j in range(5) for db in range(8)]
        mf = []
        for db, j in order:
            d = vr(qacc(db, j), 4)
            mf.append(mfma(d, ar(KB + 32 * buf + 4 * db, 4), ar(XF + 20 * buf + 4 * j, 4), '0' if n == 0 else d))
        m = n + 1
        tags = []
        if m < 16:
            tags = ['wq%d' % m]
            if m % 2 == 0: tags.append('x%d' % (m >> 1))
        else: tags = ['K0']
        new = []
        if m + 2 < 16: new += dma_wq(o, m + 2)
        if m % 2 == 0 and m // 2 + 1 < 8: new += dma_x(o, m // 2 + 1)
        for _ in range(o.kvat_l.count(m)): new += kv.pop(0)
        if o.stage and m in o.stat_l: new += stage_ld(o, 'KV'[o.stat_l.index(m)])
        if m == 14: new += kv.pop(0) + kv.pop(0)
        if m == 16: new += kv.pop(0)
        barrier_hooks.append(lambda new=new: vq.extend(new))
        extra = []
        if n == 0:
            dfr = []
            for x in o.deferred:
                if x.mn == 's_addc_u32': dfr[-1] = Atomic(dfr[-1] + [x])
                else: dfr.append([x])
        if n < 4: extra = dfr
        if n == 3: tailx = extra
        if n == 4:
            for g in dfr: s.add(list(g))
        if n == 15:
            head = sum(rounds[:3], []); del rounds[:3]
            extra = [[]] * 10 + [head[i:i + 2] for i in range(0, len(head), 2)]
        gemm_kstep(s, mf, regs('a', KB + 32 * buf, 32) + regs('a', XF + 20 * buf, 20), reads_for(m) if m < 16 else rd_k(0), dict(tags=tags), extra, o.qevery, vq, o.qpack)
    assert not vq
    for g in extra: s.add(g)
    stamp(s, o, 3)
    kvq = sum(kv, [])
    qk = qk_list(False)
    mx = []
    for j in range(4):
        t = Seg('t'); max8(t, j, MX + j, False); mx.append(t.items)
    done = 3
    pend = []
    first = True
    for r in rounds:
        if kvq: s.add(kvq.pop(0))
        k = 0
        for it in r:
            s.add(it); k += 1
            if pend and k % 2 == 0:
                if first: s.wait(regs=regs('a', KB, 32)); first = False
                s.add(pend.pop(0))
        done += 1
        if done >= 8 and (done - 8) % 4 == 0:
            j = (done - 8) // 4
            pend += qk[8 * j:8 * j + 8]
            if j >= 1: s.add(mx[j - 1])
    s('s_nop 0')
    for i, it in enumerate(qk[32:40]):
        s.add(it)
        if i in (2, 3, 4, 5): s.add(mx[3][i - 2])
    assert not pend
    s.add(kvq)
    s('s_nop 6')
    max8(s, 4, MX + 4, False)
    set_nm(s)
    for j in range(5):
        for i in range(0, 8, 2): s('v_pk_add_f32 %s, %s, %s' % (vr(S + 8 * j + i, 2), vr(S + 8 * j + i, 2), vr(NM + 4 * j, 2)))
    stamp(s, o, 4)
    return s

def qk_list(cinit):
    out = []
    for j in range(5):
        for r in range(8):
            kb, sidx = r & 1, r >> 1
            d = vr(S + 8 * j + 4 * kb, 4)
            cc = d if sidx else (vr(NM + 4 * j, 4) if cinit else '0')
            out.append(mfma(d, ar(KB + 4 * (4 * kb + sidx), 4), ar(Q + 16 * j + 4 * sidx, 4), cc))
    return out
def pv_list(o, par, vb, zero=False):
    out = []
    for j in range(5):
        pj = vr(P + 20 * par + 4 * j, 4)
        out += [mfma(oreg(j, db), ar(vb + 4 * db, 4), pj, '0' if zero else oreg(j, db)) for db in range(8)]
        if o.lsum: out.append(mfma(ar(LS + 4 * j, 4), ar(ONES, 4), pj, '0' if zero else ar(LS + 4 * j, 4)))
    return out
def rowred(s, regs_, tmps, op):
    for sw in ('v_permlane32_swap_b32', 'v_permlane16_swap_b32'):
        for r, t in zip(regs_, tmps): s('v_mov_b32 v%d, v%d' % (t, r))
        for r, t in zip(regs_, tmps): s('%s v%d, v%d' % (sw, t, r))
        for r, t in zip(regs_, tmps): s('%s v%d, v%d, v%d' % (op, r, r, t))
def max8(s, j, m, acc):
    b = S + 8 * j
    if acc: s('v_max3_f32 v%d, v%d, v%d, v%d' % (m, m, b, b + 1))
    else: s('v_max_f32 v%d, v%d, v%d' % (m, b, b + 1))
    for i in range(1, 4): s('v_max3_f32 v%d, v%d, v%d, v%d' % (m, m, b + 2 * i, b + 2 * i + 1))
MX, MT = L, 48
def set_nm(s):
    rowred(s, [MX + j for j in range(5)], [MT + j for j in range(5)], 'v_max_f32')
    for j in range(5): s('v_sub_f32 v%d, 0, v%d' % (NM + 4 * j, MX + j))
    for j in range(5):
        for i in range(1, 4): s('v_mov_b32 v%d, v%d' % (NM + 4 * j + i, NM + 4 * j))

def sm_exp(i): return I('v_exp_f32 v%d, v%d' % (S + i, S + i))
def sm_post(o, i, par):
    j = i >> 3
    out = [] if o.lsum else [I('v_add_f32 v%d, v%d, v%d' % (L + j, L + j, S + i))]
    if i & 1: out.append(I('v_cvt_pk_bf16_f32 v%d, v%d, v%d' % (P + 20 * par + 4 * j + ((i & 7) >> 1), S + i - 1, S + i)))
    return out
def sm_gap(o, G, par):
    if o.lsum:
        if G >= 40:
            if (G - 40) % 9 == 8: return []
            G -= (G - 40) // 9
    x = G - 12
    if x < 0: x += 80; par ^= 1
    i = x >> 1
    return [sm_exp(i)] if x % 2 == 0 else sm_post(o, i, par)

def kv_schedule(o):
    q = [(k, j, g) for k, j in KVSEQ[o.ninit + 2 * o.stage:] for g in capped(o, dma_kv(o, k, j), j)]
    free = lambda kind, j: 2 * (j - 5) + 1 if kind == 'K' else 2 * (j - 4) + 1
    sched = {h: [] for h in range(1, 64)}
    n = len(q)
    slow = max(0, 4 * o.lasth - n)
    h, i = 1, 0
    while i < n:
        cap = 4
        h0 = 2 * o.stage
        if o.hold:
            if h <= o.hold: i0 = i + 4
            else: cap = min(4, max(0, i0 + ((n - i0) * (h - o.hold) + o.lasth - o.hold - 1) // (o.lasth - o.hold) - i))
        elif o.uni: cap = min(4, max(0, (n * (h - h0) + o.lasth - h0 - 1) // (o.lasth - h0) - i))
        elif slow > 0: cap = 3
        k = 0
        while k < cap and i < n and free(q[i][0], q[i][1]) <= h:
            sched[h].append(q[i][2]); i += 1; k += 1
        slow -= 4 - k
        h += 1
    if o.stage:
        assert o.ninit == 10
        sched[1] = stage_wr(o, 'K') + sched[1]
        sched[3] = stage_wr(o, 'V') + sched[3]
    return sched

def gen_s0(o):
    s = Seg('s0')
    s.label('L_s0')
    if o.lsum:
        s('v_mov_b32 v%d, 0x3f803f80' % L)
        for k in range(4): s('v_accvgpr_write_b32 a%d, v%d' % (ONES + k, L))
    else:
        for j in range(5): s('v_mov_b32 v%d, 0' % (L + j))
    if o.cap2: s('s_and_b32 s3, s39, 1'); s('s_cselect_b64 vcc, -1, 0')
    s.wait(tags=['K1', 'V0'])
    s('s_barrier')
    s.add(rd_k(1))
    dm = spread(o.sched[1] + [[I('buffer_atomic_add v%d, v%d, s[%d:%d], 0 offen' % (CNT, CA, SD, SD + 3))]], [1, 8, 15, 22, 29])
    for i in range(35):
        if i < 34: s.add(sm_exp(i))
        else: s('s_nop 0')
        if i > 0: s.add(sm_post(o, i - 1, 0))
        s.add(dm.get(i, []))
    return s

def step(s, o, t, more1=(), more2=(), wtags=(), valu1=None):
    par = t & 1
    if t % 2 == 1: tstamp(s, o, 'a', t // 2)
    if t >= 26: tstamp(s, o, 'e', 2 * (t - 26))
    mf = qk_list(True) + pv_list(o, par ^ 1, VB, t == 1)
    NG = len(mf)
    fill = {g: [] for g in range(NG)}
    empty = [g for g in range(NG) if not sm_gap(o, g, par)]
    if o.lsum:
        g1 = [g for g in empty if g < 32]; g2 = [g for g in empty if 42 < g < NG - 8]
    else: g1, g2 = [1, 5, 9, 13, 17, 21, 25, 29], [45, 49, 53, 57, 61, 65, 69, 73]
    for g, l in spread(rd_v(VB, t - 1), g1).items(): fill[g] += l
    for g, l in spread(rd_k(t + 1) if t < 31 else rd_v(KB, 31), g2).items(): fill[g] += l
    for base, end, dm in ((4, 40, o.sched[2 * t] + list(more1)), (44, NG, o.sched[2 * t + 1] + list(more2))):
        n = len(dm)
        last = -1
        for i, g in enumerate(dm):
            pos = base + ((end - base) * i) // n
            if o.lsum:
                while len(sm_gap(o, pos, par)) + len(fill[pos]) > 1 or (sm_gap(o, pos, par) and sm_gap(o, pos, par)[0].kind == 'trans'): pos += 1
            else: pos &= ~1
            if o.split:
                k = [n_ for n_, x in enumerate(g) if x.kind in ('wait', 'dma', 'vld', 'ph', 'dsw')][0]
                lo = max(base - 3, last + 1)
                for n_ in range(k): fill[max(lo, pos - (k - n_))].append(g[n_])
                g = g[k:]
                last = pos
            fill[pos] += g
    if valu1:
        for g, l in spread(valu1, list(range(33, 40))).items(): fill[g] += l
    for g in range(NG):
        if g == 0: s.wait(regs=regs('a', KB, 32))
        if g == 40:
            if t >= 26: tstamp(s, o, 'e', 2 * (t - 26) + 1)
            s.wait(regs=regs('a', VB, 32))
        s.add(mf[g])
        if g == 40:
            s.wait(tags=(['K%d' % (t + 1)] if t < 31 else []) + ['V%d' % t] + list(wtags))
            s('s_barrier')
        s.add(sm_gap(o, g, par))
        s.add(fill[g])

def gen_attn(o):
    s = Seg('attn')
    pre = Seg('t')
    t0 = DWO
    pre('v_lshrrev_b32 v%d, 8, v%d' % (t0 + 1, DV))
    pre('v_and_b32 v%d, 0x70, v%d' % (t0, DV))
    pre('v_lshl_add_u32 v%d, v%d, 10, v%d' % (t0, t0 + 1, t0))
    pre('v_bfe_u32 v%d, v%d, 7, 1' % (t0 + 1, DV))
    pre('v_mul_u32_u24 v%d, 0x20200, v%d' % (t0 + 1, t0 + 1))
    pre('v_add_u32 v%d, v%d, v%d' % (t0, t0, t0 + 1))
    pre('v_xor_b32 v%d, 0x20200, v%d' % (t0 + 1, t0))
    pre('v_add_u32 v%d, %d, v%d' % (t0 + 2, 2 * 3072, t0))
    pre('v_add_u32 v%d, %d, v%d' % (t0 + 3, 3 * 3072, t0 + 1))
    pre('v_add_u32 v%d, %d, v%d' % (t0 + 1, 3072, t0 + 1))
    for t in range(4): pre('v_xor_b32 v%d, 0x20000, v%d' % (t0 + 4 + t, t0 + t))
    cnt = [[I('s_lshl_b32 s%d, s%d, 3' % (sA, sG)), I('buffer_load_dword v%d, off, s[%d:%d], s%d offset:128 sc1' % (CNT, SD, SD + 3, sA), tag='cnt')]]
    busy = lambda h: any(o.sched[x] for x in range(h, 64))
    early0 = not busy(59)
    for t in range(1, 32):
        if t == 29: step(s, o, t, valu1=pre.items, more2=dma_wo(o, 0) if early0 else [])
        elif t == 30: step(s, o, t, more2=cnt + ([] if early0 else dma_wo(o, 0)) + dma_wo(o, 1) + (dma_wo(o, 2) if early0 else []))
        elif t == 31: step(s, o, t, more1=[] if early0 else dma_wo(o, 2), more2=dma_wo(o, 3), wtags=['cnt'])
        else: step(s, o, t)
        if t == 26 and o.pfo:
            s('v_lshlrev_b32 v%d, 3, v%d' % (CA, LANE16))
            s('s_lshl_b32 s3, s39, 15'); s('s_lshl_b32 s36, s%d, 13' % sW); s('s_add_u32 s3, s3, s36')
            s('buffer_load_dword v%d, v%d, s[%d:%d], s3 offen' % (CA + 1, CA, SWO, SWO + 3), dummy=True)
    return s

def gen_epi(o):
    s = Seg('epi')
    R = NM
    v = Seg('t')
    def inv(j):
        if o.lsum: v('v_accvgpr_read_b32 v%d, a%d' % (L + j, LS + 4 * j))
        v('v_cmp_nge_f32 %s, s%d, v%d' % (sr(sM0 if j == 0 else sM1, 2), sTHR, L + j))
        v('v_rcp_f32 v%d, v%d' % (R + 2 * j, L + j))
        if j: v('s_or_b64 %s, %s, %s' % (sr(sM0, 2), sr(sM0, 2), sr(sM1, 2)))
        else: v('s_nop 0')
        v('v_mov_b32 v%d, v%d' % (R + 2 * j + 1, R + 2 * j))
    if not o.lsum:
        rowred(v, [L + j for j in range(5)], [90 + j for j in range(5)], 'v_add_f32')
        for j in range(5): inv(j)
    def vote():
        v('s_cmp_lg_u64 %s, 0' % sr(sM0, 2))
        v('s_cselect_b32 s3, 1, 0')
        v('v_mov_b32 v95, s3')
        v('s_lshl_b32 s3, s%d, 2' % sW); v('s_add_u32 s3, s3, 0x%x' % FLG)
        v('v_mov_b32 v96, s3')
        v('ds_write_b32 v96, v95', lds=(lambda c: (FLG, FLG + 16, ev(tg('flg'), c))))
    tg = lambda n: (lambda c: '%s%d' % (n, c.get('redo', 0)))
    v('s_mul_i32 s3, s%d, 20480' % sW); v('s_add_u32 s3, s3, 0x%x' % EX)
    v('v_add_u32 v97, s3, v%d' % LANE16)
    v('s_xor_b32 s3, s%d, 2' % sW); v('s_mul_i32 s3, s3, 20480'); v('s_add_u32 s3, s3, 0x%x' % EX)
    v('v_add_u32 v98, s3, v%d' % LANE16)
    exr = (lambda c: (EX, EX + 81920, ev(tg('ex'), c)))
    for j in range(5):
        if o.lsum: inv(j)
        if j == 4: vote()
        for sidx in range(4):
            f = 16 * j + 4 * sidx
            for e in range(2):
                k, b = otile(j, 2 * sidx + e)
                if k == 'a':
                    for i in range(4): v('v_accvgpr_read_b32 v%d, a%d' % (90 + i, b + i))
                    b = 90
                if j < o.epk:
                    for i in range(4): v('v_mul_f32 v%d, v%d, v%d' % (b + i, b + i, R + 2 * j))
                else:
                    v('v_pk_mul_f32 %s, %s, %s' % (vr(b, 2), vr(b, 2), vr(R + 2 * j, 2)))
                    v('v_pk_mul_f32 %s, %s, %s' % (vr(b + 2, 2), vr(b + 2, 2), vr(R + 2 * j, 2)))
                v('v_cvt_pk_bf16_f32 v%d, v%d, v%d' % (f + 2 * e, b, b + 1))
                v('v_cvt_pk_bf16_f32 v%d, v%d, v%d' % (f + 2 * e + 1, b + 2, b + 3))
            v('ds_write_b128 v97, %s offset:%d' % (vr(f, 4), 1024 * (4 * j + sidx)), lds=exr)
    work = v.items
    mf = pv_list(o, 1, KB)
    tstamp(s, o, 'e', 12)
    s.wait(regs=regs('a', KB, 32))
    for g in range(len(mf)):
        s.add(mf[g])
        if g == 0: s('s_barrier')
        if g < 12: s.add(sm_gap(o, g, 0))
        else: s.add(work[:o.epw]); work = work[o.epw:]
    stamp(s, o, 5); tstamp(s, o, 'e', 13)
    s.add(work)
    tstamp(s, o, 'e', 14)
    s('v_mov_b32 v96, 0x%x' % FLG)
    s.wait(lgkm_all=True, tags=['wo0'])
    s('s_barrier')
    s('ds_read_b128 v[92:95], v96', lds=(lambda c: (FLG, FLG + 16, ev(tg('flg'), c))))
    s('s_mul_i32 s3, s%d, 0x2080' % sP)
    s('v_xor_b32 v84, s3, v%d' % VA)
    for k in range(1, 4): s('v_xor_b32 v%d, %d, v84' % (84 + k, 32 * k))
    for k in range(4): s('v_subrev_u32 v%d, 0x%x, v%d' % (80 + k, V0, 84 + k))
    s('v_readfirstlane_b32 s3, v%d' % CNT)
    s.wait(regs=regs('v', 92, 4))
    s('v_or_b32 v92, v92, v93'); s('v_or3_b32 v92, v92, v94, v95')
    s('s_cmp_lt_u32 s3, 16')
    s('v_readfirstlane_b32 s36, v92')
    s('s_cbranch_scc1 L_cntspin')
    s.label('L_cntok')
    s('s_andn2_b32 s36, s36, s%d' % sREDO)
    if not o.diag: s('s_cbranch_scc1 L_redo')
    stamp(s, o, 6); tstamp(s, o, 'e', 15)
    return s

def gen_spin(s, name, back, load, cond, sCNT=sCNT):
    s.label(name)
    s('s_mov_b32 s%d, 0' % sCNT)
    s.label(name + '_l')
    s('s_sleep %d' % Pace.slp)
    s(load)
    s('s_waitcnt vmcnt(0)')
    s('s_add_u32 s%d, s%d, 1' % (sCNT, sCNT))
    s('s_cmp_gt_u32 s%d, 0x40000' % sCNT)
    s('s_cbranch_scc1 %s' % back)
    for l in cond: s(l.replace('@', name + '_l'))
    s('s_branch %s' % back)

def gen_redo(o):
    s = Seg('redo')
    s.label('L_redo')
    s('s_mov_b32 s%d, 1' % sREDO)
    s('s_waitcnt vmcnt(0) lgkmcnt(0)')
    s('s_barrier')
    t = 56
    s('v_lshrrev_b32 v%d, 4, v%d' % (t, LANE16))
    s('v_and_b32 v%d, 15, v%d' % (t + 1, t))
    s('v_and_b32 v%d, 48, v%d' % (t, t))
    s('v_lshl_add_u32 v%d, v%d, 8, v%d' % (t, t + 1, t))
    s('v_add_u32 v%d, 0x1000, v%d' % (t + 1, t))
    for j in range(5): s('v_mov_b32 v%d, 0xff800000' % (MX + j))
    s('s_mov_b32 s%d, 0' % sA)
    lp = Seg('redo_loop')
    lp.label('L_redo_loop')
    for kb in range(2):
        for k in range(4): lp('buffer_load_dwordx4 %s, v%d, s[%d:%d], s%d offen offset:%d' % (ar(KB + 4 * (4 * kb + k), 4), t + kb, SK, SK + 3, sA, 64 * k))
    lp('s_waitcnt vmcnt(0)')
    lp.add(qk_list(False))
    lp('s_nop 7')
    for j in range(5): max8(lp, j, MX + j, True)
    lp('s_add_u32 s%d, s%d, 0x2000' % (sA, sA))
    lp('s_cmp_lt_u32 s%d, 0x40000' % sA)
    lp('s_cbranch_scc1 L_redo_loop')
    e = Seg('redo_end')
    set_nm(e)
    kv_start(e, o)
    for k in range(8): e('v_subrev_u32 v%d, 0x4000, v%d' % (VA2 + k, VA + k))
    for k, j in KVSEQ[:o.ninit]: e.add(dma_kv(o, k, j))
    if o.stage: e.add(stage_ld(o, 'K') + stage_ld(o, 'V'))
    e('v_mov_b32 v%d, 0x40000000' % CA)
    e.wait(tags=['K0'])
    e('s_barrier')
    e.add(rd_k(0))
    e.wait(regs=regs('a', KB, 32))
    e.add(qk_list(True))
    e('s_nop 7')
    e('s_branch L_s0')
    return s, lp, e

E0V, E1V = 144, 0
PO = 88
AD, OD, IA, PL, C10, C01, AD2, OD2, AC, RT = 224, 225, 226, 227, 228, 229, 230, 231, 232, 248
def etile(c, jn, j): return (E1V if c & 1 else E0V) + 8 * (5 * (jn >> 1) + j) + 4 * (jn & 1)
def poll_txt(): return 'buffer_load_dword v%d, v%d, s[%d:%d], 0 offen sc1' % (PL, IA, SF, SF + 3)
def flag_ops(o, c):
    return [I('v_mov_b32 v89, %d' % (c + 1)), I('buffer_store_dword v89, v%d, s[%d:%d], 0 offen %s' % (FLA, SF, SF + 3, o.fl_pol))]
def load_groups(o, c, dst, sreg, g=SG):
    out = []
    for k in range(10):
        off, ad = (2 * PST * k, AD) if k < 8 else (8 * PST * (k - 8), AD2)
        out.append([I('s_add_u32 s%d, s%d, 0x%x' % (sreg, sCP + c, off)),
                    I('buffer_load_dwordx4 %s, v%d, s[%d:%d], s%d offen %s' % (dst(k), ad, g, g + 3, sreg, o.rd_pol))])
    return out
def red_addr(o):
    s = Seg('t')
    t = RT
    s('s_lshl_b32 s3, s%d, 4' % sG); s('s_and_b32 s62, s38, %d' % (15 & ~(16 // o.rep - 1))); s('s_add_u32 s3, s3, s62'); s('s_lshl_b32 s3, s3, 8')
    s('v_lshrrev_b32 v%d, 2, v%d' % (t, LANE16)); s('v_add_u32 v%d, s3, v%d' % (IA, t))
    s('v_lshrrev_b32 v%d, 4, v%d' % (t, LANE16))
    s('v_and_b32 v%d, 7, v%d' % (t + 2, t))
    s('s_and_b32 s3, s38, 3'); s('s_mul_i32 s63, s3, 5')
    s('s_lshr_b32 s3, s38, 2')
    s('s_lshr_b32 s36, s3, 1'); s('s_lshl_b32 s36, s36, 3'); s('s_and_b32 s3, s3, 1'); s('s_add_u32 s36, s36, s3')
    s('s_mul_i32 s3, s36, 10240'); s('s_lshl_b32 s62, s%d, 8' % sW); s('s_add_u32 s%d, s3, s62' % sM0)
    s('s_mul_i32 s3, s39, %d' % (160 * 2048)); s('s_lshl_b32 s62, s37, 10'); s('s_add_u32 s3, s3, s62')
    s('s_lshl_b32 s62, s36, 6'); s('s_add_u32 s3, s3, s62'); s('s_lshl_b32 s62, s%d, 3' % sW); s('s_add_u32 s%d, s3, s62' % (sM0 + 1))
    s('v_bfe_u32 v%d, v%d, 3, 2' % (t + 1, t))
    s('v_add_u32 v%d, s63, v%d' % (t + 3, t + 1))
    s('v_lshl_add_u32 v%d, v%d, 3, v%d' % (t + 4, t + 3, t + 2))
    s('v_lshrrev_b32 v%d, 1, v%d' % (t + 5, t + 3))
    s('v_and_b32 v%d, 15, v%d' % (t + 6, t + 4))
    s('v_lshlrev_b32 v%d, 4, v%d' % (t + 6, t + 6))
    s('v_lshl_add_u32 v%d, v%d, 10, v%d' % (t + 6, t + 5, t + 6))
    s('v_lshrrev_b32 v%d, 5, v%d' % (t + 1, t))
    s('v_mul_u32_u24 v%d, %d, v%d' % (t + 5, PST, t + 1))
    s('v_add3_u32 v%d, v%d, v%d, s%d' % (AD, t + 6, t + 5, sM0))
    s('v_lshlrev_b32 v%d, 5, v%d' % (t + 1, t + 1))
    s('v_lshl_add_u32 v%d, v%d, 11, v%d' % (t + 4, t + 4, t + 1))
    s('v_add_u32 v%d, s%d, v%d' % (OD, sM0 + 1, t + 4))
    s('s_add_u32 s63, s63, 4')
    s('s_lshr_b32 s3, s63, 1'); s('s_lshl_b32 s3, s3, 10'); s('s_and_b32 s62, s63, 1'); s('s_lshl_b32 s62, s62, 7'); s('s_add_u32 s3, s3, s62')
    s('s_add_u32 s3, s3, s%d' % sM0)
    s('v_lshrrev_b32 v%d, 3, v%d' % (t + 3, t))
    s('v_mul_u32_u24 v%d, %d, v%d' % (t + 5, PST, t + 3))
    s('v_lshl_add_u32 v%d, v%d, 4, v%d' % (t + 5, t + 2, t + 5))
    s('v_add_u32 v%d, s3, v%d' % (AD2, t + 5))
    s('s_lshl_b32 s3, s63, 14'); s('s_add_u32 s3, s3, s%d' % (sM0 + 1))
    s('v_lshl_add_u32 v%d, v%d, 11, v%d' % (t + 4, t + 2, t + 1))
    s('v_and_b32 v%d, 24, v%d' % (t + 1, t))
    s('v_cmp_eq_u32 vcc, 0, v%d' % (t + 1))
    s('v_add_u32 v%d, s3, v%d' % (t + 4, t + 4))
    s('v_mov_b32 v%d, 0x40000000' % (t + 7))
    s('v_cndmask_b32 v%d, v%d, v%d, vcc' % (OD2, t + 7, t + 4))
    s('v_mov_b32 v%d, 0x3f80' % C10); s('v_mov_b32 v%d, 0x3f800000' % C01)
    return s.items

LA, LO, LD, LA2, LD2, QAD, CL = 108, 109, 110, 111, 112, 113, 114
ODS = ((116, 117), (118, 119), (90, 91))
sI0, sI1, sN, sDB, sIT = 13, 14, 15, 12, 7
def red_addr_dyn(o):
    s = Seg('t')
    t = RT
    s('s_lshl_b32 s3, s%d, 4' % sG); s('s_and_b32 s62, s38, %d' % (15 & ~(16 // o.rep - 1))); s('s_add_u32 s3, s3, s62'); s('s_lshl_b32 s3, s3, 8')
    s('v_lshrrev_b32 v%d, 2, v%d' % (t, LANE16)); s('v_add_u32 v%d, s3, v%d' % (IA, t))
    s('v_lshrrev_b32 v%d, 4, v%d' % (t, LANE16))
    s('v_and_b32 v%d, 7, v%d' % (t + 2, t))
    s('v_lshrrev_b32 v%d, 5, v%d' % (t + 1, t))
    s('v_bfe_u32 v%d, v%d, 3, 2' % (LO, t))
    s('v_mul_u32_u24 v%d, %d, v%d' % (t + 5, PST if o.loc < 0 else 1 << 18, t + 1))
    s('v_lshl_add_u32 v%d, v%d, 4, v%d' % (LA, t + 2, t + 5))
    s('v_lshlrev_b32 v%d, 5, v%d' % (t + 1, t + 1))
    s('v_lshl_add_u32 v%d, v%d, 11, v%d' % (t + 4, t + 2, t + 1))
    s('v_lshl_add_u32 v%d, v%d, 14, v%d' % (LD, LO, t + 4))
    s('v_cmp_eq_u32 vcc, 0, v%d' % LO)
    s('v_lshrrev_b32 v%d, 3, v%d' % (t + 3, t))
    s('v_mov_b32 v%d, 0x40000000' % (t + 7))
    s('v_cndmask_b32 v%d, v%d, v%d, vcc' % (LD2, t + 7, t + 4))
    s('v_mul_u32_u24 v%d, %d, v%d' % (t + 5, PST, t + 3))
    s('v_lshl_add_u32 v%d, v%d, 4, v%d' % (LA2, t + 2, t + 5))
    if o.sl8:
        s('v_lshl_add_u32 v%d, v%d, 8, v%d' % (LA2, LO, LA))
        s('v_lshl_add_u32 v%d, v%d, 3, v%d' % (LD2, LO, t + 4))
    s('s_mul_i32 s3, s39, %d' % (160 * 2048)); s('s_lshl_b32 s62, s37, 10'); s('s_add_u32 s%d, s3, s62' % sDB)
    s('s_lshl_b32 s3, s%d, 8' % sG); s('s_add_u32 s3, s3, 0x10000')
    if o.loc >= 0: s('s_lshl_b32 s62, s%d, 7' % sH); s('s_add_u32 s3, s3, s62')
    s('v_min_u32 v%d, 1, v%d' % (t + 3, t)); s('v_lshlrev_b32 v%d, 30, v%d' % (t + 3, t + 3)); s('v_add_u32 v%d, s3, v%d' % (QAD, t + 3))
    s('v_mov_b32 v%d, 0x3f80' % C10); s('v_mov_b32 v%d, 0x3f800000' % C01)
    return s.items

def gen_op(o):
    s = Seg('op')
    exr = (lambda c: (EX, EX + 81920, 'ex%d' % c.get('redo', 0)))
    KSL = [(4 * c + r, [(2 * a + e, kk) for kk in range(2) for e in range(2)]) for c in range(4) for a in range(2) for r in range(4)]
    def reads_for(ks):
        u, fr = KSL[ks]
        base = OSLOT[u % 8]
        areg, imm = (80, base) if base < V0 else (84, base - V0)
        return [I('ds_read_b64_tr_b16 %s, v%d offset:%d' % (ar(KB + 16 * (ks & 1) + 4 * i + 2 * e, 2), areg + jn, imm + 8192 * kk + 4096 * e), lds=(base, base + 16384, 'wo%d' % u))
                for i, (jn, kk) in enumerate(fr) for e in range(2)]
    def conv(c, a):
        out = []
        for j in range(5):
            b = etile(c, 2 * a, j)
            cv = [I('v_cvt_pk_bf16_f32 v%d, v%d, v%d' % (b + i, b + 2 * i, b + 2 * i + 1)) for i in range(4)]
            out.append(cv[:2]); out.append(cv[2:])
            out.append([I('s_add_u32 s%d, s%d, 0x%x' % (sA, sCP + c, ((10 if o.loc < 0 else 16) * a + j) * 1024)),
                        I('buffer_store_dwordx4 %s, v%d, s[%d:%d], s%d offen %s' % (vr(b, 4), PO, SP_, SP_ + 3, sA, o.st_pol), tag='st%d' % c)])
        return out
    s('s_mov_b32 s%d, 0' % sREDO)
    s.add(reads_for(0))
    part = [I('ds_read_b128 %s, v98 offset:%d' % (ar(PART + 4 * f, 4), 1024 * f), lds=exr) for f in range(20)]
    own = [I('ds_read_b128 %s, v97 offset:%d' % (ar(OWN + 4 * f, 4), 1024 * f), lds=exr) for f in range(20)]
    s('s_mul_i32 s3, s%d, %d' % (sP, 80 if o.loc < 0 else 128)); s('s_mul_i32 s36, s%d, %d' % (sHF, 5 if o.loc < 0 else 8)); s('s_add_u32 s3, s3, s36'); s('s_lshl_b32 s3, s3, 10')
    s('v_add_u32 v%d, s3, v%d' % (PO, LANE16))
    if o.exsp: extra = sum(([[x], []] if i % 3 else [[x]] for i, x in enumerate(part)), []) + sum(([[x], [], []] for x in own), [])
    else: extra = [part[i:i + 2] for i in range(0, 20, 2)] + [own[i:i + 2] for i in range(0, 20, 2)]
    vq = []
    ra = red_addr_dyn(o) if o.dyn else red_addr(o)
    seen = set()
    first_use, last_use = {}, {}
    for ks, (u, fr) in enumerate(KSL):
        first_use.setdefault(u, ks); last_use[u] = ks
    pending = list(range(4, 16))
    for ks, (u, fr) in enumerate(KSL):
        c, phi, dh = u >> 2, (u >> 1) & 1, u & 1
        if ks % 2 == 0: tstamp(s, o, 'o', ks // 2)
        buf = ks & 1
        mf = []
        for i, (jn, kk) in enumerate(fr):
            sidx = 2 * dh + kk
            first = (c, jn) not in seen; seen.add((c, jn))
            for j in range(5):
                d = vr(etile(c, jn, j), 4)
                if phi: bf = ar(PART + 16 * j + 4 * sidx, 4)
                elif c == 0: bf = vr(16 * j + 4 * sidx, 4)
                else: bf = ar(OWN + 16 * j + 4 * sidx, 4)
                mf.append(mfma(d, ar(KB + 16 * buf + 4 * i, 4), bf, '0' if first else d))
        need = regs('a', KB + 16 * buf, 16)
        if phi and c == 0: need = need + regs('a', PART, 80)
        bar = None
        nxt = KSL[ks + 1][0] if ks + 1 < 32 else None
        exk = 6 if o.exsp else 2
        if nxt is not None and (first_use[nxt] == ks + 1 or ks == exk):
            if ks == exk: need = need + regs('a', OWN, 80) + regs('a', PART, 80)
            new = []
            for v in list(pending):
                ok = v == 4 or (5 <= v <= 7 and ks >= exk) or (v >= 8 and last_use[v - 8] <= ks)
                if not ok: break
                new += dma_wo(o, v); pending.remove(v)
            bar = dict(tags=['wo%d' % nxt])
            barrier_hooks.append(lambda new=new: vq.extend(new))
        rds = reads_for(ks + 1) if nxt is not None else []
        if ks == (9 if o.exsp else 4): extra += [ra[i:i + 2] for i in range(0, len(ra), 2)]
        if ks % 4 == 0 and ks > 0:
            cv = [[]] * 2 + conv((ks - 4) >> 3, ((ks - 4) >> 2) & 1)
            extra[0:0] = cv
        for cc, at in enumerate(int(x) for x in o.fl.split(',')):
            if ks == at: extra.insert(0, [Wait(tags=['st%d' % cc])] + flag_ops(o, cc))
        for x in (o.cfl.split(',') if o.cfl else []):
            cc, at = (int(y) for y in x.split(':'))
            if ks == at: extra.insert(0, [CondOps(['st%d' % cc], [i.text for i in flag_ops(o, cc)], 43)])
        if o.early:
            if ks == o.epoll: extra.insert(0, [I(poll_txt(), tag='poll')])
            if ks == o.epoll + 2:
                extra += [[I('s_mov_b32 s%d, s%d' % (SG2, SG)), I('s_mov_b32 s%d, s%d' % (SG2 + 1, SG + 1))],
                          [Wait(regs=[('v', PL)]), I('v_cmp_gt_u32 vcc, 1, v%d' % PL), I('s_mov_b32 s%d, 0x20000' % (SG2 + 3)), I('s_cmp_eq_u64 vcc, 0'),
                           I('s_cselect_b32 s%d, 0x%x, 0' % (SG2 + 2, 16 * PST)), I('s_cselect_b32 s%d, 1, 0' % sE)]]
                for g in load_groups(o, 0, lambda k: vr(144 + 4 * k, 4), sB, SG2): extra += [g] + [[]] * (o.ldevery - 1)
        if o.dyn and o.eclaim and ks == o.eclaim:
            extra.insert(0, [I('v_mov_b32 v%d, %d' % (CL, o.nb)), I('buffer_atomic_add v%d, v%d, s[%d:%d], 0 offen sc0' % (CL, QAD, SF, SF + 3), tag='claim'), I(poll_txt(), tag='poll')])
        elif ks == 30 and not (o.dyn and o.eclaim): extra.insert(0 if o.early else len(extra), [I(poll_txt(), tag='poll')])
        gemm_kstep(s, mf, need, rds, bar, extra, o.oevery, vq)
        if ks % 8 == 7: stamp(s, o, 7 + c)
    extra = [g for g in extra if g]
    assert not extra and not vq and not pending, (len(extra), len(vq), pending)
    s('s_nop 3')
    for g in conv(3, 1): s.add(g)
    stamp(s, o, 11)
    if o.early:
        s('s_cmp_lg_u32 s%d, 0' % sE)
        s('s_cbranch_scc1 L_redE')
    return s

def summ_ops(s, buf, o2):
    a = AC
    for i in range(16): s('v_mov_b32 v%d, 0' % (a + i))
    for k in range(10):
        if k in (0, 4, 8): s.wait(regs=regs('v', buf + 4 * k, 16 if k < 8 else 8))
        for d in range(4):
            x = buf + 4 * k + d
            b = a + (8 if k >= 8 else 0)
            s('v_dot2c_f32_bf16 v%d, v%d, v%d' % (b + 2 * d, x, C10)); s('v_dot2c_f32_bf16 v%d, v%d, v%d' % (b + 2 * d + 1, x, C01))
    t = RT
    s('s_nop 2')
    for i in range(8): s('v_add_f32_dpp v%d, v%d, v%d row_ror:8 row_mask:0xf bank_mask:0xf' % (t + i, a + 8 + i, a + 8 + i))
    for i in range(8): s('v_mov_b32 v%d, v%d' % (a + 8 + i, t + i))
    s('s_nop 0')
    for i in range(8): s('v_permlane16_swap_b32 v%d, v%d' % (t + i, a + 8 + i))
    for i in range(8): s('v_add_f32 v%d, v%d, v%d' % (a + 8 + i, a + 8 + i, t + i))
    for b in (a, a + 8):
        for i in range(4): s('v_permlane32_swap_b32 v%d, v%d' % (b + i, b + 4 + i))
    for b in (a, a + 8):
        for i in range(4): s('v_add_f32 v%d, v%d, v%d' % (b + i, b + i, b + 4 + i))
    for n_, b in enumerate((a, a + 8)):
        s('v_cvt_pk_bf16_f32 v%d, v%d, v%d' % (o2 + 2 * n_, b, b + 1)); s('v_cvt_pk_bf16_f32 v%d, v%d, v%d' % (o2 + 2 * n_ + 1, b + 2, b + 3))

def gen_red_dyn(o):
    poll = poll_txt()
    BUF = (144, 184, 0)
    NB = o.nb
    NSL = 160 if o.loc >= 0 else 320 if o.sl8 else 256
    def chunk_of(s, dst, idx):
        if o.loc >= 0: s('s_mul_i32 s%d, s%d, 52429' % (dst, idx)); s('s_lshr_b32 s%d, s%d, 21' % (dst, dst))
        elif o.sl8: s('s_mul_i32 s%d, s%d, 52429' % (dst, idx)); s('s_lshr_b32 s%d, s%d, 22' % (dst, dst))
        else: s('s_lshr_b32 s%d, s%d, 6' % (dst, idx))
    def claim(s, n):
        s('v_mov_b32 v%d, %d' % (CL, n))
        s('buffer_atomic_add v%d, v%d, s[%d:%d], 0 offen sc0' % (CL, QAD, SF, SF + 3), tag='claim')
    def check(s, idx, name):
        chunk_of(s, sN, idx); s('s_add_u32 s%d, s%d, 1' % (sN, sN))
        s.wait(regs=[('v', PL)])
        s('v_cmp_gt_u32 vcc, s%d, v%d' % (sN, PL))
        s('s_cbranch_vccnz L_spin%s' % name)
        s.label('L_got%s' % name)
    def addr(s, idx, x):
        t = RT
        if o.sl8:
            s('s_sub_u32 s3, s%d, 1' % sN); s('s_mul_i32 s36, s3, %d' % (NSL // 4)); s('s_sub_u32 s36, s%d, s36' % idx)
            if o.rotc: s('s_add_u32 s3, s3, s39'); s('s_and_b32 s3, s3, 3')
            s('s_bfe_u32 s62, s36, 0x10001'); s('s_lshl_b32 s62, s62, 2'); s('s_add_u32 s3, s3, s62'); s('s_lshl_b32 s3, s3, 1')
            s('s_and_b32 s62, s36, 1'); s('s_add_u32 s3, s3, s62')
            s('s_lshr_b32 s36, s36, 2')
            s('s_lshl_b32 s62, s3, 6'); s('s_lshl_b32 s63, s36, 14'); s('s_add_u32 s62, s62, s63'); s('s_add_u32 s62, s62, s%d' % sDB)
            if o.loc >= 0: s('s_mul_i32 s63, s%d, %d' % (sH, 10 << 14)); s('s_add_u32 s62, s62, s63')
            s('v_add_u32 v%d, s62, v%d' % (ODS[x][0], LD2))
            if o.loc >= 0: s('s_lshl_b32 s3, s3, 1'); s('s_add_u32 s3, s3, s%d' % sH); s('s_lshl_b32 s3, s3, 3')
            else: s('s_mul_i32 s3, s3, 10')
            s('s_lshr_b32 s62, s36, 1'); s('s_add_u32 s3, s3, s62'); s('s_lshl_b32 s3, s3, 10')
            s('s_and_b32 s36, s36, 1'); s('s_lshl_b32 s36, s36, 7'); s('s_add_u32 s3, s3, s36')
            s('v_add_u32 v%d, s3, v%d' % (AD, LA2))
            return
        s('s_lshr_b32 s3, s%d, 6' % idx)
        if o.rotc: s('s_add_u32 s3, s3, s39'); s('s_and_b32 s3, s3, 3')
        s('s_bfe_u32 s36, s%d, 0x10005' % idx); s('s_lshl_b32 s36, s36, 2'); s('s_add_u32 s3, s3, s36'); s('s_lshl_b32 s3, s3, 1')
        s('s_bfe_u32 s36, s%d, 0x10004' % idx); s('s_add_u32 s3, s3, s36')
        s('s_and_b32 s36, s%d, 3' % idx)
        s('s_mul_i32 s62, s3, 10240'); s('s_lshl_b32 s63, s36, 8'); s('s_add_u32 s%d, s62, s63' % sM0)
        s('s_lshl_b32 s62, s3, 3'); s('s_add_u32 s62, s62, s36'); s('s_lshl_b32 s62, s62, 3'); s('s_add_u32 s62, s62, s%d' % sDB)
        s('s_bfe_u32 s63, s%d, 0x20002' % idx); s('s_mul_i32 s63, s63, 5')
        s('v_add_u32 v%d, s63, v%d' % (t, LO))
        s('s_lshl_b32 s3, s63, 14'); s('s_add_u32 s62, s62, s3')
        s('v_lshrrev_b32 v%d, 1, v%d' % (t + 1, t))
        s('v_and_b32 v%d, 1, v%d' % (t, t))
        s('v_add_u32 v%d, s62, v%d' % (ODS[x][0], LD))
        s('v_lshlrev_b32 v%d, 7, v%d' % (t, t))
        s('s_add_u32 s62, s62, 0x10000')
        s('v_lshl_add_u32 v%d, v%d, 10, v%d' % (t, t + 1, t))
        s('v_add_u32 v%d, s62, v%d' % (ODS[x][1], LD2))
        s('v_add3_u32 v%d, v%d, v%d, s%d' % (AD, t, LA, sM0))
        s('s_lshr_b32 s3, s63, 1'); s('s_add_u32 s3, s3, 2'); s('s_lshl_b32 s3, s3, 10'); s('s_and_b32 s63, s63, 1'); s('s_lshl_b32 s63, s63, 7')
        s('s_add_u32 s3, s3, s63'); s('s_add_u32 s3, s3, s%d' % sM0)
        s('v_add_u32 v%d, s3, v%d' % (AD2, LA2))
    def loads(s, x, ks=range(10)):
        for k in ks:
            if o.sl8 and k >= 8: continue
            off, ad = (2 * PST * k, AD) if k < 8 else (8 * PST * (k - 8), AD2)
            if o.loc >= 0: off = ((k >> 2) << 22) + ((k & 3) << 19)
            s('s_mov_b32 s%d, 0x%x' % (sA, off))
            if o.rcap: s('s_waitcnt vmcnt(%d)' % o.rcap)
            s('buffer_load_dwordx4 %s, v%d, s[%d:%d], s%d offen %s' % (vr(BUF[x] + 4 * k, 4), ad, SG, SG + 3, sA, o.rd_pol))
    def finish(s, x):
        o2 = (100, 104, 92)[x]
        if o.sl8:
            a = AC
            for k in range(8):
                if k in (0, 4): s.wait(regs=regs('v', BUF[x] + 4 * k, 16))
                for d in range(4):
                    r = BUF[x] + 4 * k + d
                    if k == 0: s('v_lshlrev_b32 v%d, 16, v%d' % (a + 2 * d, r)); s('v_and_b32 v%d, 0xffff0000, v%d' % (a + 2 * d + 1, r))
                    else: s('v_dot2c_f32_bf16 v%d, v%d, v%d' % (a + 2 * d, r, C10)); s('v_dot2c_f32_bf16 v%d, v%d, v%d' % (a + 2 * d + 1, r, C01))
            s('s_nop 2')
            for i in range(4): s('v_permlane32_swap_b32 v%d, v%d' % (a + i, a + 4 + i))
            for i in range(4): s('v_add_f32 v%d, v%d, v%d' % (a + i, a + i, a + 4 + i))
            s('v_cvt_pk_bf16_f32 v%d, v%d, v%d' % (o2, a, a + 1)); s('v_cvt_pk_bf16_f32 v%d, v%d, v%d' % (o2 + 1, a + 2, a + 3))
            s('buffer_store_dwordx2 %s, v%d, s[%d:%d], 0 offen %s' % (vr(o2, 2), ODS[x][0], SO, SO + 3, o.out_pol))
            return
        summ_ops(s, BUF[x], o2)
        for h in range(2): s('buffer_store_dwordx2 %s, v%d, s[%d:%d], 0 offen %s' % (vr(o2 + 2 * h, 2), ODS[x][h], SO, SO + 3, o.out_pol))
    pre = Seg('redpre')
    for i in range(15): tstamp(pre, o, 'r', i)
    pre('s_mov_b32 s%d, 0' % sIT)
    if o.eclaim:
        pre.wait(tags=['claim', 'poll'])
        pre('v_readfirstlane_b32 s%d, v%d' % (sI0, CL))
        pre('s_lshr_b32 s%d, s%d, 6' % (sN, sI0)); pre('s_add_u32 s%d, s%d, 1' % (sN, sN))
        pre('v_cmp_gt_u32 vcc, s%d, v%d' % (sN, PL))
        pre('s_add_u32 s%d, s%d, 1' % (sI1, sI0))
        pre('s_cbranch_vccnz L_late')
        addr(pre, sI0, 0)
        loads(pre, 0, range(o.nfirst))
        pre.wait(tags=['st3'])
        pre.add(flag_ops(o, 3))
        loads(pre, 0, range(o.nfirst, 10))
        late = Seg('late')
        late.label('L_late')
        late('s_waitcnt vmcnt(0)')
        late.add(flag_ops(o, 3))
        late('s_cmp_ge_u32 s%d, 256' % sI0)
        late('s_cbranch_scc1 L_end')
        check(late, sI0, 'P')
        addr(late, sI0, 0)
        loads(late, 0)
        late('s_branch L_rb0')
        o.late = late
        tstamp(pre, o, 'r', 2)
        stamp(pre, o, 12)
    else:
        if o.f2post:
            pre.wait(tags=['st2'])
            pre.add(flag_ops(o, 2))
        claim(pre, NB)
        pre.wait(tags=['st3'])
        pre.add(flag_ops(o, 3))
        tstamp(pre, o, 'r', 1)
        pre.wait(tags=['claim'])
        pre('v_readfirstlane_b32 s%d, v%d' % (sI0, CL))
        tstamp(pre, o, 'r', 2)
        stamp(pre, o, 12)
        if o.loc >= 0: pre.label('L_pre2')
        pre('s_add_u32 s%d, s%d, 1' % (sI1, sI0))
        pre('s_cmp_ge_u32 s%d, %d' % (sI0, NSL))
        pre('s_cbranch_scc1 %s' % ('L_end' if o.loc < 0 else 'L_swP'))
        check(pre, sI0, 'P')
        addr(pre, sI0, 0)
        loads(pre, 0)
    if NB == 3:
        pre('s_cmp_ge_u32 s%d, %d' % (sI1, NSL))
        pre('s_cbranch_scc1 L_rlast0')
        check(pre, sI1, 'Q')
        addr(pre, sI1, 1)
        loads(pre, 1)
        pre('s_add_u32 s%d, s%d, 1' % (sI1, sI1))
    body, fin = [], []
    for x in range(NB):
        y = (x + NB - 1) % NB
        b = Seg('redbody%d' % x)
        b.label('L_rb%d' % x)
        if o.trace == 'r':
            b('%s s[%d:%d]' % (clk(o), sST + 6, sST + 7)); b('s_waitcnt lgkmcnt(0)'); b('s_add_u32 m0, s%d, 3' % sIT); b('s_nop 0'); b('v_writelane_b32 v%d, s%d, m0' % (STV + 2, sST + 6))
        b('s_add_u32 s%d, s%d, 1' % (sIT, sIT)); b('s_cmp_gt_u32 s%d, 400' % sIT); b('s_cbranch_scc1 L_rf%d' % x)
        b('s_cmp_ge_u32 s%d, %d' % (sI1, NSL))
        b('s_cbranch_scc1 %s%d' % ('L_rf' if o.loc < 0 else 'L_sw', x))
        check(b, sI1, 'B%d' % x)
        addr(b, sI1, y)
        claim(b, 1)
        b(poll, tag='poll')
        loads(b, y)
        finish(b, x)
        b.wait(regs=[('v', CL)])
        b('v_readfirstlane_b32 s%d, v%d' % (sI1, CL))
        if x == NB - 1: b('s_branch L_rb0')
        body.append(b)
        f = Seg('redfin%d' % x)
        f.label('L_rf%d' % x)
        finish(f, x)
        if NB == 3:
            if x == 2: f.label('L_rlast0')
            finish(f, (x + 1) % 3)
        if x < NB - 1: f('s_branch L_end')
        fin.append(f)
    e = Seg('redend')
    e.label('L_end')
    if o.stamps or o.trace:
        e('s_waitcnt vmcnt(0)')
        tstamp(e, o, 'r', 15)
        stamp(e, o, 13); stamp(e, o, 14); stamp(e, o, 15)
    e.label('L_done')
    e('s_endpgm')
    sp = Seg('spins')
    for n in ('P', 'B0', 'B1') + (('Q', 'B2') if NB == 3 else ()): gen_spin(sp, 'L_spin' + n, 'L_got' + n, poll, ['v_cmp_gt_u32 vcc, s%d, v%d' % (sN, PL), 's_cbranch_vccnz @'], 35)
    if o.loc >= 0:
        for n, done, back, reg, cnt in [('P', 'L_end', 'L_pre2', sI0, NB)] + [(str(x), 'L_rf%d' % x, 'L_rb%d' % x, sI1, 1) for x in range(NB)]:
            sp.label('L_sw' + n)
            sp('s_cmp_lg_u32 s%d, 0' % sSW); sp('s_cbranch_scc1 %s' % done)
            sp('s_mov_b32 s%d, 1' % sSW); sp('s_xor_b32 s%d, s%d, 1' % (sH, sH))
            sp('s_waitcnt vmcnt(0)')
            sp('v_xor_b32 v%d, 0x80, v%d' % (QAD, QAD))
            claim(sp, cnt)
            sp('s_waitcnt vmcnt(0)')
            sp('v_readfirstlane_b32 s%d, v%d' % (reg, CL))
            sp('s_branch %s' % back)
    sp.label('L_cntspin')
    sp('s_lshl_b32 s%d, s%d, 3' % (sA, sG))
    gen_spin(sp, 'L_cntspin2', 'L_cntok', 'buffer_load_dword v%d, off, s[%d:%d], s%d offset:128 sc1' % (CNT, SD, SD + 3, sA),
             ['v_readfirstlane_b32 s3, v%d' % CNT, 's_cmp_lt_u32 s3, 16', 's_cbranch_scc1 @'], 35)
    return pre, body, fin, e, sp

def gen_red(o, early, sfx):
    s = Seg('red' + sfx)
    if sfx: s.label('L_red' + sfx)
    poll = poll_txt()
    BUF = [144, 184, 0, 40]
    def check(n):
        s.wait(regs=[('v', PL)])
        s('v_cmp_gt_u32 vcc, %d, v%d' % (n, PL))
        s('s_cbranch_vccnz L_spin%d%s' % (n, sfx))
        s.label('L_got%d%s' % (n, sfx))
    def loads(c):
        for g in load_groups(o, c, lambda k: vr(BUF[c] + 4 * k, 4), sA): s.add(g)
    def summ(c): summ_ops(s, BUF[c], 100 + 4 * (c & 1))
    def outst(c):
        o2 = 100 + 4 * (c & 1)
        s('buffer_store_dwordx2 %s, v%d, s[%d:%d], s%d offen %s' % (vr(o2, 2), OD, SO, SO + 3, sCW + c, o.out_pol))
        s('buffer_store_dwordx2 %s, v%d, s[%d:%d], s%d offen %s' % (vr(o2 + 2, 2), OD2, SO, SO + 3, sCW + c, o.out_pol))
    T = lambda i: tstamp(s, o, 'r', i)
    T(0)
    if o.fl3:
        s.wait(tags=['st3'])
        s.add(flag_ops(o, 3))
        check(1)
        T(1); stamp(s, o, 12)
        loads(0)
        T(2)
        check(2)
        T(3)
        s(poll, tag='poll')
        loads(1)
        T(4)
        summ(0)
    else:
        s.wait(regs=[('v', PL)], tags=['st2'])
        s.add(flag_ops(o, 2))
    if o.fl3: pass
    elif not early:
        check(1)
        T(1); stamp(s, o, 12)
        s.wait(regs=regs('v', BUF[0], 40))
        loads(0)
        T(2)
        s.wait(tags=['st3'])
        s.add(flag_ops(o, 3))
        check(2)
        T(3)
        s(poll, tag='poll')
        loads(1)
        T(4)
        summ(0)
    else:
        check(2)
        T(1); stamp(s, o, 12)
        loads(1)
        T(2)
        s.wait(tags=['st3'])
        s.add(flag_ops(o, 3))
        T(3)
        s(poll, tag='poll')
        T(4)
        summ(0)
    T(5)
    check(3)
    T(6); stamp(s, o, 13)
    s(poll, tag='poll')
    loads(2)
    outst(0)
    T(7)
    summ(1)
    T(8)
    check(4)
    T(9); stamp(s, o, 14)
    loads(3)
    outst(1)
    T(10)
    summ(2); outst(2)
    T(11)
    summ(3); outst(3)
    T(12)
    if o.stamps or o.trace:
        s('s_waitcnt vmcnt(0)')
        T(13); T(14); T(15)
        stamp(s, o, 15)
    if not sfx: s.label('L_done')
    s('s_endpgm')
    sp = Seg('spins')
    for n in (2, 3, 4) if early else (1, 2, 3, 4): gen_spin(sp, 'L_spin%d%s' % (n, sfx), 'L_got%d%s' % (n, sfx), poll, ['v_cmp_gt_u32 vcc, %d, v%d' % (n, PL), 's_cbranch_vccnz @'])
    if sfx: return s, sp
    sp.label('L_cntspin')
    sp('s_lshl_b32 s%d, s%d, 3' % (sA, sG))
    gen_spin(sp, 'L_cntspin2', 'L_cntok', 'buffer_load_dword v%d, off, s[%d:%d], s%d offset:128 sc1' % (CNT, SD, SD + 3, sA),
             ['v_readfirstlane_b32 s3, v%d' % CNT, 's_cmp_lt_u32 s3, 16', 's_cbranch_scc1 @'])
    return s, sp

def desc(name, vgpr, accum, sgpr):
    return '''.amdhsa_kernel %s
  .amdhsa_next_free_vgpr %d
  .amdhsa_next_free_sgpr %d
  .amdhsa_accum_offset %d
  .amdhsa_group_segment_fixed_size 0
  .amdhsa_kernarg_size 104
  .amdhsa_user_sgpr_count 2
  .amdhsa_user_sgpr_kernarg_segment_ptr 1
  .amdhsa_system_sgpr_workgroup_id_x 1
  .amdhsa_float_denorm_mode_32 3
.end_amdhsa_kernel
''' % (name, vgpr, sgpr, accum)

DOC = """;
; One workgroup per CU = one (branch, batch, head pair); waves 0,1 own the first head, waves 2,3 the second, 80 query rows each.
; Everything is computed transposed (queries along the lanes) with v_mfma_f32_16x16x32_bf16; all tiles reach LDS by LDS-DMA.
;   qphase : Q^T = Wq^T x^T, scaled by log2(e)/sqrt(128), packed to bf16; first score tile gives the row maxima m
;   red    : the 16 partials of a (branch, batch) are summed in 8-row x 32-column slices handed out by a counter
"""
def build(o, path):
    o.kvat_l = [int(x) for x in o.kvat.split(',')]
    o.stat_l = [int(x) for x in o.stat.split(',')]
    o.sched = kv_schedule(o)
    Pace.slots = o.slots; Pace.slp = o.slp
    entry, q, s0, attn, epi = gen_entry(o), gen_q(o), gen_s0(o), gen_attn(o), gen_epi(o)
    r0, r1, r2 = gen_redo(o)
    op = gen_op(o)
    if o.dyn:
        pre, body, fin, e, spins = gen_red_dyn(o)
        tail_code = [pre] + body + fin + [e, spins]
        tails = [[pre] + body + body + [fin[0], e], [pre] + body + [body[0], fin[1], e]]
        xtails = [[pre, fin[0], e], [pre, body[0], fin[1], e]]
        if o.eclaim:
            assert o.nb == 2
            h = Seg('h'); h.items = pre.items[:[i for i, it in enumerate(pre.items) if it.kind == 'branch' and 'L_late' in it.text][0] + 1]
            xtails += [[h, o.late, body[0], body[1], fin[0], e], [h, o.late, fin[0], e]]
            tail_code.append(o.late)
        if o.nb == 3:
            h = Seg('h'); h.items = pre.items[:[i for i, it in enumerate(pre.items) if it.kind == 'branch' and 'L_rlast0' in it.text][0] + 1]
            l = Seg('l'); l.items = fin[2].items[[i for i, it in enumerate(fin[2].items) if it.kind == 'label' and it.name == 'L_rlast0'][0]:]
            xtails += [[pre, body[0], body[1], fin[2], e], [pre] + body + [body[0], body[1], fin[2], e], [h, l, e]]
    else:
        red, spins = gen_red(o, False, '')
        redE, spinsE = gen_red(o, True, 'E') if o.early else (Seg('x'), Seg('x'))
        tail_code = [red, redE, spins, spinsE]
        tails = [[red], [redE if o.early else red]]
    traces = []
    for redo in (0, 1):
        tr = [(entry, {}), (q, {})]
        for ps in range(redo + 1):
            if ps: tr += [(r0, {}), (r1, {}), (r1, {}), (r2, {})]
            tr += [(s0, {}), (attn, {}), (epi, dict(redo=ps))]
        tr += [(op, dict(redo=redo))] + [(x, {}) for x in tails[redo]]
        traces.append(('redo%d' % redo, tr))
    if o.dyn:
        base = traces[0][1][:-len(tails[0])]
        for i, xt in enumerate(xtails): traces.append(('x%d' % i, base + [(x, {}) for x in xt]))
    if o.jit:
        import random
        rnd = random.Random(o.jit)
        cnt = [0]
        def delay(reg, mask, val, n):
            cnt[0] += 1
            out = [I('s_and_b32 s43, s%d, %d' % (reg, mask)), I('s_cmp_eq_u32 s43, %d' % val), I('s_cbranch_scc0 L_jit%d' % cnt[0])]
            out += [I('s_sleep %d' % min(127, n))] * (1 + n // 128) + [Label('L_jit%d' % cnt[0])]
            return out
        for sg in (q, s0, attn, epi, op):
            out = []
            for it in sg.items:
                if it.kind == 'barrier':
                    r = rnd.random()
                    if r < 0.5: out += delay(sW, 3, rnd.randrange(4), rnd.randrange(1, 40))
                    out.append(it)
                    if r > 0.3: out += delay(sW, 3, rnd.randrange(4), rnd.randrange(1, 40))
                    if rnd.random() < 0.08: out += delay(2, 15, rnd.randrange(16), rnd.randrange(100, 600))
                else: out.append(it)
            sg.items = out
        q.items = delay(2, 31, 5, 1500) + q.items
    resolve([t for _, t in traces])
    allerr = []
    for name, tr in traces: allerr += check(tr, name)[0]
    for e in allerr[:6]: print('ERR', e)
    if allerr: print(len(allerr), 'errors')
    hdr = open('concat_heads__gqa_block_cached__gqa_block_cached__near_ridge.s.ref').read().split('; Override')[0]
    txt = hdr + '; @launch grid=(256,1,1) block=(256,1,1) lds=163840\n' + DOC
    txt += '.amdgcn_target "amdgcn-amd-amdhsa--gfx950"\n.text\n.globl %s\n.p2align 8\n.type %s,@function\n%s:\n' % (KN, KN, KN)
    for sg in [entry, q, s0, attn, epi, op] + tail_code + [r0, r1, r2]: txt += '; ---- %s\n' % sg.name + sg.text()
    txt += 'L_code_end:\n'
    txt += '.section .rodata,"a"\n.p2align 6\n' + desc(KN, 512, 256, 102)
    open(path, 'w').write(txt)
    return not allerr

if __name__ == '__main__':
    o = Opt()
    path = sys.argv[1]
    for kv in sys.argv[2:]:
        k, v = kv.split('=')
        cur = getattr(o, k)
        setattr(o, k, int(v) if isinstance(cur, int) else v.replace('+', ' '))
    ok = build(o, path)
    if not ok: os.remove(path); sys.exit(1)
    print('written', path, 'ok' if ok else 'WITH ERRORS', {h: len(v) for h, v in o.sched.items() if len(v) != 4 and (len(v) or h < 62)} if '-v' in path else '')
```

```python
import sys, struct, math
from fw import *

KN = "concat_heads__gqa_block_cached__gqa_block_cached__near_ridge_kernel"
WS_BYTES = 287834112
import os
PST = int(os.environ.get('PST', 172032))
INB = 256 * PST
def f2u(x): return struct.unpack('<I', struct.pack('<f', x))[0]

class Opt:
    kv_pol = 'nt'; w_pol = ''; st_pol = 'sc1'; rd_pol = 'sc1'; fl_pol = 'sc1'; out_pol = ''
    stamps = 0; cyc = 0; dbgst = 0; trace = ''
    force_redo = 0
    codepf = 1
    par = 1
    qevery = 3
    qpack = 0
    x1e = 0
    defer = 0
    capalt = 0
    lite = 0
    slots = 1
    kvat = '5,7,9,11'
    cap = 4
    cap2 = 0
    capl = 0
    tl = 99
    rotp = 1
    split = 1
    qpk = 1
    epw = 2
    epk = 1
    stage = 0
    stat = '8,10'
    lsum = 1
    uni = 1
    hold = 0
    wocap = 4
    qcap = 0
    lasth = 59
    ninit = 10
    oevery = 3
    loc = -1
    flagat = 5
    rotc = 1
    exsp = 0
    dyn = 1
    nb = 3
    f2post = 0
    jit = 0
    slp = 4
    rep = 4
    fl = '13,23'
    cfl = ''
    rcap = 0
    sl8 = 1
    eclaim = 0
    nfirst = 5
    fl3 = 1
    early = 0
    epoll = 24
    ldevery = 5
    pfo = 0
    diag = ''

V0 = 98304
KAD = lambda j: 16384 * (j % 5)
VAD = lambda j: (V0, V0 + 16384, V0 + 32768, V0 + 49152, V0 - 16384)[(j + 2) % 5]
XBUF = lambda m: 32768 + 20480 * (m & 1)
WAD = lambda n: (V0 + 16384, V0 - 16384, V0)[n % 3]
EX = 16384
FLG = VAD(31)
OSLOT = [VAD(28), KAD(30), VAD(29), VAD(30), VAD(31), 16384, 32768, 49152]

S, P, NM, L = 0, 40, 80, 100
KA, KA2, VA, VA2, DK, DV, LANE16, CNT, FLA, CA = 105, 109, 113, 121, 129, 133, 135, 136, 137, 138
DWO = VA2
STV = 140
OV, NOV = 144, 28
XAD, DX, DWQ, DUM = 48, 50, 51, 59
Q, KB, VB, OA = 0, 80, 112, 144
XF = 144
OWN, PART = 0, 144
STG = 216
LS, ONES = 192, 212
sW, sP, sREDO, sCNT = 4, 5, 6, 7
SX, SWQ, SK, SV, SWO, SP_ = 8, 12, 16, 20, 24, 28
sOK, sOV, sMK = 32, 33, 34
sBR, sHP, sBT = 37, 38, 39
sWS = 40
sCW, sCP = 44, 48
sC, sTHR = 54, 56
sA, sB = 58, 59
sW1K, sHF = 60, 61
sST = 64
SF, SD, SO = 72, 76, 80
sG = 84
sM0, sM1 = 86, 88
sXO, sWQO = 90, 91
sO5 = 57
sH, sSW = 100, 101
SG = 96
SG2 = 8
sE = 35

def vr(b, n=1): return 'v%d' % b if n == 1 else 'v[%d:%d]' % (b, b + n - 1)
def ar(b, n=1): return 'a%d' % b if n == 1 else 'a[%d:%d]' % (b, b + n - 1)
def sr(b, n=1): return 's%d' % b if n == 1 else 's[%d:%d]' % (b, b + n - 1)
def mfma(d, a, b, c): return I('v_mfma_f32_16x16x32_bf16 %s, %s, %s, %s' % (d, a, b, c))
def otile(j, db):
    n = 8 * j + db
    return ('v', OV + 4 * n) if n < NOV else ('a', OA + 4 * (n - NOV))
def oreg(j, db):
    k, b = otile(j, db)
    return '%s[%d:%d]' % (k, b, b + 3)
def qacc(db, j):
    n = 8 * j + db
    return 4 * n if n < 12 else OV + 4 * (n - 12)

def clk(o): return 's_memtime' if o.cyc else 's_memrealtime'
def tstamp(s, o, ph, idx):
    if o.trace == ph and idx < 16:
        s('%s s[%d:%d]' % (clk(o), sST + 6, sST + 7)); s('s_waitcnt lgkmcnt(0)')
        s('v_writelane_b32 v%d, s%d, %d' % (STV + 2, sST + 6, idx))
def stamp(s, o, idx):
    st = sST
    def wsrd():
        s('s_mov_b32 s%d, s%d' % (st, sWS)); s('s_mov_b32 s%d, s%d' % (st + 1, sWS + 1))
        s('s_mov_b32 s%d, 0x%x' % (st + 2, WS_BYTES)); s('s_mov_b32 s%d, 0x20000' % (st + 3))
    if o.trace:
        if idx == 15:
            wsrd()
            s('s_mul_i32 s%d, s2, %d' % (st + 4, 128)); s('s_add_u32 s%d, s%d, 0x%x' % (st + 4, st + 4, WS_BYTES - 256 * 128))
            s('s_min_u32 s3, s%d, 1' % sW); s('s_lshl_b32 s3, s3, 30'); s('s_add_u32 s%d, s%d, s3' % (st + 4, st + 4))
            s('v_mbcnt_lo_u32_b32 v0, -1, 0'); s('v_lshlrev_b32 v0, 3, v0'); s('v_mov_b32 v2, v%d' % (STV + 2)); s('v_mov_b32 v3, 0')
            s('s_mov_b64 exec, 0xffff')
            s('buffer_store_dwordx2 v[2:3], v0, s[%d:%d], s%d offen' % (st, st + 3, st + 4))
        return
    if not o.stamps: return
    if o.lite and idx not in (0, 15): return
    a, b = STV, STV + 1
    if o.dbgst:
        if idx not in (0, 2, 3, 5, 6, 11, 13, 15): return
        idx = (0, 2, 3, 5, 6, 11, 13, 15).index(idx)
        s('s_memrealtime s[%d:%d]' % (st + 4, st + 5)); s('s_memtime s[%d:%d]' % (st + 6, st + 7)); s('s_waitcnt lgkmcnt(0)')
        s('v_mov_b32 v%d, s%d' % (a, st + 4)); s('v_mov_b32 v%d, s%d' % (b, st + 6))
        s('s_sub_u32 s%d, s2, %d' % (st + 4, o.dbgst - 1)); s('s_mul_i32 s%d, s%d, 0x1000' % (st + 4, st + 4))
        s('s_add_u32 s%d, s%d, 0x%x' % (st + 4, st + 4, idx * 8)); s('s_nop 0')
        s('buffer_store_dwordx2 v[%d:%d], off, s[%d:%d], s%d' % (a, b, SD, SD + 3, st + 4))
        return
    s('%s s[%d:%d]' % (clk(o), st + 4, st + 5)); s('s_waitcnt lgkmcnt(0)')
    if idx == 0: s('s_mov_b64 s[%d:%d], s[%d:%d]' % (st + 4, st + 5, st + 6, st + 7))
    wsrd()
    s('v_mov_b32 v%d, s%d' % (a, st + 4)); s('v_mov_b32 v%d, s%d' % (b, st + 5))
    s('s_mul_i32 s%d, s2, %d' % (st + 4, o.stamps * 8))
    s('s_add_u32 s%d, s%d, 0x%x' % (st + 4, st + 4, WS_BYTES - 256 * o.stamps * 8 + idx * 8)); s('s_nop 0')
    s('buffer_store_dwordx2 v[%d:%d], off, s[%d:%d], s%d' % (a, b, st, st + 3, st + 4))

def dma(voff, srd, soff, imm, pol, tag, lo, n=16384):
    return I('buffer_load_dwordx4 v%d, s[%d:%d], s%d offen offset:%d %s lds' % (voff, srd, srd + 3, soff, imm, pol), tag=tag, lds=(lo, lo + n, tag))
def grp4(pre, mk, post=()):
    out = []
    for t in range(4):
        g = list(pre) if t == 0 else []
        g.append(mk(t))
        if t == 3: g += list(post)
        out.append(g)
    return out
def dma_x(o, m):
    buf = XBUF(m)
    out = [[I('s_add_u32 m0, s%d, 0x%x' % (sW1K, buf + 4096 * j)), I('s_add_u32 s%d, s%d, 0x%x' % (sA, sXO, 32768 * j)),
            dma(DX, SX, sA, 0, o.w_pol, 'x%d' % m, buf, 20480)] for j in range(5)]
    out[4] += [I('s_add_u32 s%d, s%d, 128' % (sXO, sXO)), I('s_and_b32 s%d, s%d, 0x3ff' % (sXO, sXO))]
    return out
def dma_wq(o, n):
    b = WAD(n)
    return grp4([I('s_add_u32 m0, s%d, 0x%x' % (sMK, b)), I('s_nop 0')],
                lambda t: dma(DWQ + t, SWQ, sWQO, 1024 * t, o.w_pol, 'wq%d' % n, b),
                [I('s_add_u32 s%d, s%d, 0x40000' % (sWQO, sWQO)), I('s_and_b32 s%d, s%d, 0x3fffff' % (sWQO, sWQO))])
def stage_ld(o, kind):
    srd_, r = (SK, STG) if kind == 'K' else (SV, STG + 16)
    vo = (lambda t: DK + t) if kind == 'K' else (lambda t: DV + (t & 1))
    return [[I('buffer_load_dwordx4 %s, v%d, s[%d:%d], s%d offen offset:%d %s' % (ar(r + 4 * t, 4), vo(t), srd_, srd_ + 3, sO5, 1024 * t, o.kv_pol))] for t in range(4)]
def stage_wr(o, kind):
    b, r, ad = (KAD(5), STG, 139) if kind == 'K' else (VAD(5), STG + 16, 143)
    out = [[I('ds_write_b128 v%d, %s offset:%d' % (ad, ar(r + 4 * t, 4), 1024 * t), lds=(b, b + 16384, '%s5' % kind))] for t in range(4)]
    out[0].insert(0, Wait(regs=regs('a', r, 16)))
    return out
def dma_kv(o, kind, j):
    b, so, srd_ = (KAD(j), sOK, SK) if kind == 'K' else (VAD(j), sOV, SV)
    vo = (lambda t: DK + t) if kind == 'K' else (lambda t: DV + (t & 1))
    return grp4([I('s_add_u32 s%d, s%d, 0x%x' % (so, so, 0x4000 if (o.stage and j == 6) else 0x2000)), I('s_add_u32 m0, s%d, 0x%x' % (sMK, b)), I('s_and_b32 s%d, s%d, 0x3ffff' % (so, so))],
                lambda t: dma(vo(t), srd_, so, 1024 * t, o.kv_pol, '%s%d' % (kind, j), b))
KVSEQ = [(k, j) for j in range(32) for k in 'KV']
def dma_wo(o, u):
    c, phi, dh = u >> 2, (u >> 1) & 1, u & 1
    b = OSLOT[u % 8]
    return grp4([I('s_lshl_b32 s%d, s%d, 2' % (sB, sMK)), I('s_add_u32 s%d, s%d, s%d' % (sB, sB, sCW + c)),
                 I('s_add_u32 m0, s%d, 0x%x' % (sMK, b)), I('s_add_u32 s%d, s%d, 0x%x' % (sB, sB, 65536 * dh))],
                lambda t: dma(DWO + 4 * phi + t, SWO, sB, 1024 * t, o.w_pol, 'wo%d' % u, b))
def capped(o, groups, j=0):
    if not o.cap: return groups
    out = []
    for g in groups:
        k = [i for i, x in enumerate(g) if x.kind == 'dma'][0]
        if j >= o.tl: out.append(g[:k] + [I('s_waitcnt vmcnt(%d)' % o.capl)] + g[k:])
        elif o.cap2:
            lo = I('s_waitcnt vmcnt(%d)' % o.cap); lo.kind = 'other'
            out.append(g[:k] + [I('s_waitcnt vmcnt(%d)' % o.cap2), I('s_cbranch_vccnz 1'), lo] + g[k:])
        else: out.append(g[:k] + [I('s_waitcnt vmcnt(%d)' % (o.cap - (1 if o.capalt and len(out) % o.capalt == 0 else 0)))] + g[k:])
    return out

def rd_k(j):
    b = KAD(j)
    areg, imm = (KA, b) if b < 65536 else (KA2, b - 65536)
    return [I('ds_read_b128 %s, v%d offset:%d' % (ar(KB + 4 * (4 * kb + s), 4), areg + s, imm + 4096 * kb), lds=(b, b + 16384, 'K%d' % j))
            for s in range(4) for kb in range(2)]
def rd_tr(dst, b, tag):
    areg, imm = (VA, b - V0) if b >= V0 else (VA2, 0)
    return [I('ds_read_b64_tr_b16 %s, v%d offset:%d' % (ar(dst + 4 * d + 2 * e, 2), areg + d, imm + 4096 * e), lds=(b, b + 16384, tag))
            for d in range(8) for e in range(2)]
def rd_v(dst, j): return rd_tr(dst, VAD(j), 'V%d' % j)

def spread(items, gaps):
    d = {g: [] for g in gaps}
    n, m = len(items), len(gaps)
    for i, it in enumerate(items): d[gaps[i * m // n]].append(it)
    return d
def srd(s, r, lo, hi, off, size):
    if off is None: s('s_mov_b32 s%d, s%d' % (r, lo)); s('s_mov_b32 s%d, s%d' % (r + 1, hi))
    else: s('s_add_u32 s%d, s%d, s%d' % (r, lo, off)); s('s_addc_u32 s%d, s%d, 0' % (r + 1, hi))
    if size is not None: s('s_mov_b32 s%d, 0x%x' % (r + 2, size))
    s('s_mov_b32 s%d, 0x20000' % (r + 3))
def kv_start(s, o):
    s('s_mul_i32 s3, s%d, 0x%x' % (sP, 8192 * o.rotp)); s('s_lshl_b32 s36, s%d, 12' % sHF); s('s_add_u32 s3, s3, s36')
    s('s_sub_u32 s%d, s3, 0x2000' % sOK); s('s_mov_b32 s%d, s%d' % (sOV, sOK))
    if o.stage: s('s_add_u32 s%d, s3, 0xa000' % sO5)

def gen_entry(o):
    s = Seg('entry')
    if o.stamps and not o.dbgst: s('%s s[%d:%d]' % (clk(o), sST + 6, sST + 7))
    s('s_cmp_ge_u32 s2, 256')
    s('s_cbranch_scc1 L_done')
    s('v_mov_b32 v64, v0')
    s('s_and_b32 s3, s2, 7')
    s('s_lshr_b32 s36, s2, 3')
    if o.par: s('s_and_b32 s37, s3, 1'); s('s_lshr_b32 s38, s3, 1')
    else: s('s_lshr_b32 s37, s3, 2'); s('s_and_b32 s38, s3, 3')
    s('s_mul_i32 s3, s37, 40'); s('s_add_u32 s42, s0, s3'); s('s_addc_u32 s43, s1, 0')
    s('''s_load_dwordx8 s[44:51], s[42:43], 0
         s_load_dwordx2 s[52:53], s[42:43], 32
         s_load_dwordx2 s[40:41], s[0:1], 96
         s_load_dwordx4 s[92:95], s[0:1], 80''')
    if o.codepf:
        s('s_getpc_b64 s[62:63]')
        s.label('L_pc')
        s('v_lshrrev_b32 v71, 2, v64'); s('v_and_b32 v71, 0x30, v71'); s('v_and_b32 v72, 15, v64'); s('v_or_b32 v71, v71, v72')
        s('s_and_b32 s3, s36, 15'); s('s_lshl_b32 s3, s3, 6')
        s('v_add_lshl_u32 v71, s3, v71, 7')
        s('v_min_u32 v71, L_code_end-L_pc-4, v71')
        s('global_load_dword v%d, v71, s[62:63]' % DUM, dummy=True)
    s('''s_lshl_b32 s38, s38, 2
         s_and_b32 s39, s36, 3
         s_or_b32 s38, s38, s39
         s_lshr_b32 s39, s36, 2''')
    s('v_lshrrev_b32 v71, 6, v64')
    s('v_and_b32 v65, 63, v64')
    s('v_readfirstlane_b32 s%d, v71' % sW)
    s('v_lshrrev_b32 v66, 4, v65')
    s('v_and_b32 v67, 15, v65')
    s('v_and_b32 v69, 7, v65')
    s('s_lshl_b32 s%d, s%d, 10' % (sW1K, sW))
    s('s_lshl_b32 s%d, s%d, 12' % (sMK, sW))
    s('s_lshr_b32 s%d, s%d, 1' % (sP, sW))
    s('s_and_b32 s%d, s%d, 1' % (sHF, sW))
    s('s_lshl_b32 s3, s%d, 2' % sHF)
    s('v_add_u32 v73, s3, v66')
    s('v_xor_b32 v69, v73, v69')
    s('v_lshlrev_b32 v69, 4, v69')
    s('v_lshrrev_b32 v68, 3, v64')
    s('v_lshl_add_u32 v%d, v68, 10, v69' % DX)
    s('v_lshlrev_b32 v70, 1, v66')
    s('v_xor_b32 v70, v70, v67')
    s('v_lshlrev_b32 v70, 4, v70')
    s('v_lshl_add_u32 v68, v73, 13, v70')
    s('s_lshl_b32 s3, s%d, 8' % sP)
    s('v_add_u32 v%d, s3, v68' % DWQ)
    s('v_xor_b32 v68, 0x80, v%d' % DWQ)
    s('v_add_u32 v%d, 0x%x, v68' % (DWQ + 1, 64512))
    s('v_add_u32 v%d, 0x%x, v%d' % (DWQ + 2, 2 * 64512, DWQ))
    s('v_add_u32 v%d, 0x%x, v68' % (DWQ + 3, 3 * 64512))
    s('s_and_b32 s3, s38, 3'); s('s_lshl_b32 s3, s3, 1'); s('s_add_u32 s3, s3, s39'); s('s_and_b32 s3, s3, 7')
    s('s_lshl_b32 s%d, s3, 7' % sXO); s('s_lshl_b32 s%d, s3, 19' % sWQO)
    s('s_mul_i32 s3, s39, 163840'); s('s_lshl_b32 s36, s38, 9')
    s('s_waitcnt lgkmcnt(0)')
    srd(s, SX, 44, 45, 3, 163840)
    srd(s, SWQ, 50, 51, 36, None); s('s_sub_u32 s%d, 0x400000, s36' % (SWQ + 2))
    for g in dma_x(o, 0) + dma_wq(o, 0) + dma_wq(o, 1): s.add(g)
    srd(s, SD, 94, 95, None, 256)
    stamp(s, o, 0)
    s('v_lshlrev_b32 v%d, 4, v65' % LANE16)
    urgent = s
    if o.defer: s = Seg('deferred')
    s('s_mov_b32 s3, 0x%x' % (INB if o.loc < 0 else 0)); srd(s, SF, sWS, sWS + 1, 3, 65536 + 4096)
    s('s_lshl_b32 s%d, s37, 3' % sG); s('s_add_u32 s%d, s%d, s39' % (sG, sG))
    s('s_lshl_b32 s36, s%d, 4' % sG); s('s_add_u32 s36, s36, s38')
    s('s_min_u32 s3, s%d, 1' % sW); s('s_lshl_b32 s3, s3, 30')
    s('s_lshl_b32 s62, s36, 8'); s('s_add_u32 s62, s62, s3')
    s('v_lshlrev_b32 v72, 2, v65'); s('v_add_u32 v73, s62, v72'); s('v_mov_b32 v74, 0')
    s('buffer_store_dword v74, v73, s[%d:%d], 0 offen %s' % (SF, SF + 3, o.fl_pol), tag='clr')
    if o.dyn:
        s('s_lshl_b32 s3, s%d, 8' % sG); s('s_add_u32 s3, s3, 0x10000'); s('s_min_u32 s62, s38, 1'); s('s_lshl_b32 s62, s62, 30'); s('s_add_u32 s3, s3, s62')
        s('v_lshrrev_b32 v73, 1, v64'); s('v_min_u32 v73, 1, v73'); s('v_lshlrev_b32 v73, 29, v73'); s('v_lshl_add_u32 v73, v64, 7, v73'); s('v_add_u32 v73, s3, v73')
        s('buffer_store_dword v74, v73, s[%d:%d], 0 offen %s' % (SF, SF + 3, o.fl_pol))
    if o.loc < 0:
        s('s_mul_i32 s3, s36, %d' % PST); srd(s, SP_, sWS, sWS + 1, 3, 163840)
        s('s_mul_i32 s3, s%d, %d' % (sG, 16 * PST)); srd(s, SG, sWS, sWS + 1, 3, 16 * PST)
    else:
        s('s_lshl_b32 s3, s%d, 23' % sG); s('s_add_u32 s3, s3, 0x41ffff')
        srd(s, SG, sWS, sWS + 1, 3, 1 << 23); s('s_and_b32 s%d, s%d, 0xffc00000' % (SG, SG))
        s('s_lshr_b32 s3, s38, 3'); s('s_lshl_b32 s3, s3, 22'); s('s_and_b32 s62, s38, 7'); s('s_lshl_b32 s62, s62, 18'); s('s_add_u32 s3, s3, s62')
        srd(s, SP_, SG, SG + 1, 3, 1 << 18)
        s('s_mov_b32 s%d, 0' % sSW)
        if o.loc < 2:
            s('s_getreg_b32 s3, hwreg(HW_REG_XCC_ID)'); s('s_bfe_u32 s3, s3, 0x10002'); s('s_xor_b32 s%d, s3, %d' % (sH, o.loc))
        else:
            s('s_lshl_b32 s3, s%d, 8' % sW); s('s_add_u32 s62, s%d, s3' % SP_); s('s_addc_u32 s63, s%d, 0' % (SP_ + 1))
            s('s_load_dword s3, s[62:63], 0x1000'); s('s_waitcnt lgkmcnt(0)')
            s('s_mov_b32 s68, 0x5bd1e995')
            for txt in ('s_load_dword s69, s[62:63], 0x2000', 's_load_dword s68, s[62:63], 0', 's_waitcnt lgkmcnt(1)', 's_mov_b32 s3, s68', 's_waitcnt lgkmcnt(0)'):
                it = I(txt); it.kind = 'other'; s.add(it)
            s('s_cmp_eq_u32 s3, 0x5bd1e995'); s('s_cselect_b32 s%d, 1, 0' % sH)
    s('''s_lshl_b32 s3, s39, 4
         s_add_u32 s3, s3, s38
         s_lshl_b32 s3, s3, 1
         s_add_u32 s3, s3, s%d
         s_lshl_b32 s3, s3, 18''' % sP)
    srd(s, SK, 46, 47, 3, 0x40000); srd(s, SV, 48, 49, 3, 0x40000)
    s('s_lshl_b32 s3, s38, 18'); srd(s, SWO, 52, 53, 3, 0x40000)
    srd(s, SO, 92, 93, None, 8 * 160 * 2048)
    kv_start(s, o)
    for c in range(4):
        if o.rotc: s('s_add_u32 s3, s39, %d' % c); s('s_and_b32 s3, s3, 3')
        else: s('s_mov_b32 s3, %d' % c)
        s('s_lshl_b32 s%d, s3, 7' % (sCW + c)); s('s_mul_i32 s%d, s3, %d' % (sCP + c, 20480 if o.loc < 0 else 32768))
    c = math.log2(math.e) / math.sqrt(128.0)
    s('s_mov_b32 s%d, 0x%x' % (sC, f2u(c))); s('s_mov_b32 s%d, 0x%x' % (sC + 1, f2u(c)))
    s('s_mov_b32 s%d, 0x%x' % (sTHR, f2u(2.0 ** 24 if not o.force_redo else 1.0)))
    s('s_mov_b32 s%d, 0' % sREDO)
    s('s_lshl_b32 s3, s%d, 12' % sG); s('s_lshl_b32 s36, s38, 4'); s('s_add_u32 s3, s3, s36')
    s('s_lshl_b32 s36, s%d, 2' % sW); s('s_add_u32 s3, s3, s36')
    s('v_lshlrev_b32 v68, 8, v67'); s('v_add_u32 v68, s3, v68')
    s('v_and_b32 v69, %d, v65' % (48 | (16 // o.rep - 1))); s('v_min_u32 v69, 1, v69'); s('v_lshl_add_u32 v%d, v69, 30, v68' % FLA)
    s('v_min_u32 v69, 1, v64'); s('v_lshlrev_b32 v69, 30, v69'); s('s_lshl_b32 s3, s%d, 3' % sG); s('s_add_u32 s3, s3, 128'); s('v_add_u32 v%d, s3, v69' % CA)
    s('v_mov_b32 v%d, 1' % CNT)
    s('v_xor_b32 v68, v66, v67'); s('v_lshlrev_b32 v68, 4, v68')
    s('v_lshl_add_u32 v%d, v66, 8, v68' % DK)
    for t in range(1, 4): s('v_xor_b32 v%d, %d, v%d' % (DK + t, 64 * t, DK))
    s('v_lshl_add_u32 v%d, v66, 8, v70' % DV)
    s('v_xor_b32 v%d, 0x80, v%d' % (DV + 1, DV))
    s('v_lshl_add_u32 v68, v67, 8, v68')
    s('s_lshl_b32 s36, s%d, 13' % sP)
    s('v_add_u32 v%d, s36, v68' % KA)
    for k in range(1, 4): s('v_xor_b32 v%d, %d, v%d' % (KA + k, 64 * k, KA))
    for k in range(4): s('v_add_u32 v%d, 0x10000, v%d' % (KA2 + k, KA + k))
    late, s = s, urgent
    s('s_lshl_b32 s36, s%d, 13' % sP)
    s('v_lshrrev_b32 v68, 1, v67'); s('v_xor_b32 v68, v68, v66'); s('v_lshlrev_b32 v68, 4, v68')
    s('v_lshl_add_u32 v68, v67, 7, v68')
    s('s_mul_i32 s3, s%d, 10240' % sHF)
    s('v_add_u32 v%d, s3, v68' % XAD)
    s('v_xor_b32 v%d, 64, v%d' % (XAD + 1, XAD))
    s('v_lshrrev_b32 v68, 2, v65')
    s('v_and_b32 v69, 7, v68')
    s('v_lshlrev_b32 v69, 5, v69')
    s('v_lshl_add_u32 v69, v68, 8, v69')
    s('v_and_b32 v68, 3, v65')
    s('v_lshl_add_u32 v69, v68, 3, v69')
    s('s_add_u32 s36, s36, 0x%x' % V0)
    s('v_add_u32 v%d, s36, v69' % VA)
    for k in range(1, 8): s('v_xor_b32 v%d, %d, v%d' % (VA + k, 32 * k, VA))
    for k in range(8): s('v_subrev_u32 v%d, 0x4000, v%d' % (VA2 + k, VA + k))
    if o.stage:
        s('s_add_u32 s3, s%d, 0x%x' % (sMK, KAD(5))); s('v_add_u32 v139, s3, v%d' % LANE16)
        s('s_add_u32 s3, s%d, 0x%x' % (sMK, VAD(5))); s('v_add_u32 v143, s3, v%d' % LANE16)
    stamp(s, o, 1)
    o.deferred = late.items if o.defer else []
    return s

def is_vm(g): return any(x.kind in ('dma', 'vst', 'vld') for x in g)
class Pace: since = 99; slots = 0
class Atomic(list): pass
barrier_hooks = []
def gemm_kstep(s, mf, need, reads, barrier, extra, every=1, vq=None, pack=False):
    n = len(mf)
    rg = list(range(2, 2 + (len(reads) + 1) // 2)) if (n <= 20 or pack) else list(range(2, 2 + len(reads)))
    rd = spread(reads, rg) if reads else {}
    part = False
    for g in range(n):
        if g == 0: s.wait(regs=need)
        s.add(mf[g])
        if g == 1 and barrier is not None:
            s.wait(**barrier)
            s('s_barrier')
            for f in barrier_hooks: f()
            del barrier_hooks[:]
        s.add(rd.get(g, []))
        Pace.since += 1
        busy = len(rd.get(g, []))
        if Pace.slots:
            free = 2 - busy - (2 if (g == 1 and barrier is not None) else 0)
            m0_fresh = False
            while free > 0:
                q = vq if vq else None
                if q is not None:
                    head = [x for x in q[0] if not (x.kind == 'nop')]
                    vm = head[0].kind in ('dma', 'vst', 'vld')
                    if vm and (Pace.since < every or m0_fresh): q = None
                if q is None:
                    while extra and extra[0] == [] and free == 2 - busy:
                        extra.pop(0); free = 0
                    if free <= 0 or not extra or extra[0] == []: break
                    q = extra
                    if isinstance(q[0], Atomic):
                        s.add(list(q.pop(0))); free -= 2; m0_fresh = False
                        continue
                    head = list(q[0])
                    vm = False
                it = head.pop(0)
                s.add(it)
                if it.kind != 'label': free -= 1
                if vm: Pace.since = 0
                m0_fresh = it.kind == 'salu' and ('m0', 0) in it.wr
                if q is extra: part = bool(head)
                if head: q[0] = head
                else: q.pop(0)
            if g == n - 1 and part: s.add(extra.pop(0))
        elif vq and Pace.since >= every and busy < (1 if pack else 2):
            s.add(vq.pop(0)); Pace.since = 0
        elif extra and busy < 2 and (not is_vm(extra[0]) or Pace.since >= every):
            if is_vm(extra[0]): Pace.since = 0
            s.add(extra.pop(0))

def qconv_stream(o):
    c = sr(sC, 2)
    items = [(j, sidx) for j in range(5) for sidx in range(4)]
    tq = lambda i: 60 + 4 * (i % 4)
    def st1(i):
        j, sidx = items[i]; out = []
        for e in range(2):
            b = qacc(2 * sidx + e, j)
            if (o.qpk == 1 and (i < 3 or (i >= 8 and i % 4 == 0))) or o.qpk == 2: out += [I('v_mul_f32 v%d, s%d, v%d' % (b + k, sC, b + k)) for k in range(4)]
            else: out += [I('v_pk_mul_f32 %s, %s, %s' % (vr(b, 2), vr(b, 2), c)), I('v_pk_mul_f32 %s, %s, %s' % (vr(b + 2, 2), vr(b + 2, 2), c))]
        for e in range(2):
            b = qacc(2 * sidx + e, j)
            out += [I('v_cvt_pk_bf16_f32 v%d, v%d, v%d' % (tq(i) + 2 * e, b, b + 1)), I('v_cvt_pk_bf16_f32 v%d, v%d, v%d' % (tq(i) + 2 * e + 1, b + 2, b + 3))]
        return out
    sw = lambda op, i: [I('%s v%d, v%d' % (op, tq(i), tq(i) + 2)), I('%s v%d, v%d' % (op, tq(i) + 1, tq(i) + 3))]
    def st4(i):
        j, sidx = items[i]
        return [I('v_accvgpr_write_b32 a%d, v%d' % (Q + 16 * j + 4 * sidx + k, tq(i) + k)) for k in range(4)]
    n = len(items)
    rounds = []
    for i in range(n + 3):
        r = st1(i) if i < n else [I('s_nop 1')]
        if 0 <= i - 3 < n: r += st4(i - 3)
        if 0 <= i - 2 < n: r += sw('v_permlane16_swap_b32', i - 2)
        if 0 <= i - 1 < n: r += sw('v_permlane32_swap_b32', i - 1)
        rounds.append(r)
    return rounds

def gen_q(o):
    s = Seg('qphase')
    def reads_for(n):
        buf = n & 1
        w = rd_tr(KB + 32 * buf, WAD(n), 'wq%d' % n)
        xb = XBUF(n >> 1)
        x = [I('ds_read_b128 %s, v%d offset:%d' % (ar(XF + 20 * buf + 4 * j, 4), XAD + (n & 1), xb + 2048 * j), lds=(xb, xb + 20480, 'x%d' % (n >> 1))) for j in range(5)]
        return x + w
    if o.x1e: s.add(dma_x(o, 1))
    if o.x1e > 1: s.add(dma_wq(o, 2))
    s.wait(tags=['x0', 'wq0'])
    s('s_barrier')
    stamp(s, o, 2)
    s.add(reads_for(0))
    vq = (dma_wq(o, 2) if o.x1e < 2 else []) + (dma_x(o, 1) if not o.x1e else [])
    kv = [dma_kv(o, k, j) for k, j in KVSEQ[:o.ninit]]
    rounds = qconv_stream(o)
    for n in range(16):
        buf = n & 1
        tstamp(s, o, 'q', n)
        order = [(db, j) for db in range(8) for j in range(5)] if n < 15 else [(db, j) for j in range(5) for db in range(8)]
        mf = []
        for db, j in order:
            d = vr(qacc(db, j), 4)
            mf.append(mfma(d, ar(KB + 32 * buf + 4 * db, 4), ar(XF + 20 * buf + 4 * j, 4), '0' if n == 0 else d))
        m = n + 1
        tags = []
        if m < 16:
            tags = ['wq%d' % m]
            if m % 2 == 0: tags.append('x%d' % (m >> 1))
        else: tags = ['K0']
        new = []
        if m + 2 < 16: new += dma_wq(o, m + 2)
        if m % 2 == 0 and m // 2 + 1 < 8: new += dma_x(o, m // 2 + 1)
        for _ in range(o.kvat_l.count(m)): new += kv.pop(0)
        if o.stage and m in o.stat_l: new += stage_ld(o, 'KV'[o.stat_l.index(m)])
        if m == 14: new += kv.pop(0) + kv.pop(0)
        if m == 16: new += kv.pop(0)
        barrier_hooks.append(lambda new=new: vq.extend(new))
        extra = []
        if n == 0:
            dfr = []
            for x in o.deferred:
                if x.mn == 's_addc_u32': dfr[-1] = Atomic(dfr[-1] + [x])
                else: dfr.append([x])
        if n < 4: extra = dfr
        if n == 3: tailx = extra
        if n == 4:
            for g in dfr: s.add(list(g))
        if n == 15:
            head = sum(rounds[:3], []); del rounds[:3]
            extra = [[]] * 10 + [head[i:i + 2] for i in range(0, len(head), 2)]
        gemm_kstep(s, mf, regs('a', KB + 32 * buf, 32) + regs('a', XF + 20 * buf, 20), reads_for(m) if m < 16 else rd_k(0), dict(tags=tags), extra, o.qevery, vq, o.qpack)
    assert not vq
    for g in extra: s.add(g)
    stamp(s, o, 3)
    kvq = sum(kv, [])
    if o.qcap:
        for i_, g in enumerate(kvq):
            k = [i for i, x in enumerate(g) if x.kind == 'dma'][0]
            kvq[i_] = g[:k] + [I('s_waitcnt vmcnt(%d)' % o.qcap)] + g[k:]
    qk = qk_list(False)
    mx = []
    for j in range(4):
        t = Seg('t'); max8(t, j, MX + j, False); mx.append(t.items)
    done = 3
    pend = []
    first = True
    for r in rounds:
        if kvq: s.add(kvq.pop(0))
        k = 0
        for it in r:
            s.add(it); k += 1
            if pend and k % 2 == 0:
                if first: s.wait(regs=regs('a', KB, 32)); first = False
                s.add(pend.pop(0))
        done += 1
        if done >= 8 and (done - 8) % 4 == 0:
            j = (done - 8) // 4
            pend += qk[8 * j:8 * j + 8]
            if j >= 1: s.add(mx[j - 1])
    s('s_nop 0')
    for i, it in enumerate(qk[32:40]):
        s.add(it)
        if i in (2, 3, 4, 5): s.add(mx[3][i - 2])
    assert not pend
    s.add(kvq)
    s('s_nop 6')
    max8(s, 4, MX + 4, False)
    set_nm(s)
    for j in range(5):
        for i in range(0, 8, 2): s('v_pk_add_f32 %s, %s, %s' % (vr(S + 8 * j + i, 2), vr(S + 8 * j + i, 2), vr(NM + 4 * j, 2)))
    stamp(s, o, 4)
    return s

def qk_list(cinit):
    out = []
    for j in range(5):
        for r in range(8):
            kb, sidx = r & 1, r >> 1
            d = vr(S + 8 * j + 4 * kb, 4)
            cc = d if sidx else (vr(NM + 4 * j, 4) if cinit else '0')
            out.append(mfma(d, ar(KB + 4 * (4 * kb + sidx), 4), ar(Q + 16 * j + 4 * sidx, 4), cc))
    return out
def pv_list(o, par, vb, zero=False):
    out = []
    for j in range(5):
        pj = vr(P + 20 * par + 4 * j, 4)
        out += [mfma(oreg(j, db), ar(vb + 4 * db, 4), pj, '0' if zero else oreg(j, db)) for db in range(8)]
        if o.lsum: out.append(mfma(ar(LS + 4 * j, 4), ar(ONES, 4), pj, '0' if zero else ar(LS + 4 * j, 4)))
    return out
def rowred(s, regs_, tmps, op):
    for sw in ('v_permlane32_swap_b32', 'v_permlane16_swap_b32'):
        for r, t in zip(regs_, tmps): s('v_mov_b32 v%d, v%d' % (t, r))
        for r, t in zip(regs_, tmps): s('%s v%d, v%d' % (sw, t, r))
        for r, t in zip(regs_, tmps): s('%s v%d, v%d, v%d' % (op, r, r, t))
def max8(s, j, m, acc):
    b = S + 8 * j
    if acc: s('v_max3_f32 v%d, v%d, v%d, v%d' % (m, m, b, b + 1))
    else: s('v_max_f32 v%d, v%d, v%d' % (m, b, b + 1))
    for i in range(1, 4): s('v_max3_f32 v%d, v%d, v%d, v%d' % (m, m, b + 2 * i, b + 2 * i + 1))
MX, MT = L, 48
def set_nm(s):
    rowred(s, [MX + j for j in range(5)], [MT + j for j in range(5)], 'v_max_f32')
    for j in range(5): s('v_sub_f32 v%d, 0, v%d' % (NM + 4 * j, MX + j))
    for j in range(5):
        for i in range(1, 4): s('v_mov_b32 v%d, v%d' % (NM + 4 * j + i, NM + 4 * j))

def sm_exp(i): return I('v_exp_f32 v%d, v%d' % (S + i, S + i))
def sm_post(o, i, par):
    j = i >> 3
    out = [] if o.lsum else [I('v_add_f32 v%d, v%d, v%d' % (L + j, L + j, S + i))]
    if i & 1: out.append(I('v_cvt_pk_bf16_f32 v%d, v%d, v%d' % (P + 20 * par + 4 * j + ((i & 7) >> 1), S + i - 1, S + i)))
    return out
def sm_gap(o, G, par):
    if o.lsum:
        if G >= 40:
            if (G - 40) % 9 == 8: return []
            G -= (G - 40) // 9
    x = G - 12
    if x < 0: x += 80; par ^= 1
    i = x >> 1
    return [sm_exp(i)] if x % 2 == 0 else sm_post(o, i, par)

def kv_schedule(o):
    q = [(k, j, g) for k, j in KVSEQ[o.ninit + 2 * o.stage:] for g in capped(o, dma_kv(o, k, j), j)]
    free = lambda kind, j: 2 * (j - 5) + 1 if kind == 'K' else 2 * (j - 4) + 1
    sched = {h: [] for h in range(1, 64)}
    n = len(q)
    slow = max(0, 4 * o.lasth - n)
    h, i = 1, 0
    while i < n:
        cap = 4
        h0 = 2 * o.stage
        if o.hold:
            if h <= o.hold: i0 = i + 4
            else: cap = min(4, max(0, i0 + ((n - i0) * (h - o.hold) + o.lasth - o.hold - 1) // (o.lasth - o.hold) - i))
        elif o.uni: cap = min(4, max(0, (n * (h - h0) + o.lasth - h0 - 1) // (o.lasth - h0) - i))
        elif slow > 0: cap = 3
        k = 0
        while k < cap and i < n and free(q[i][0], q[i][1]) <= h:
            sched[h].append(q[i][2]); i += 1; k += 1
        slow -= 4 - k
        h += 1
    if o.stage:
        assert o.ninit == 10
        sched[1] = stage_wr(o, 'K') + sched[1]
        sched[3] = stage_wr(o, 'V') + sched[3]
    return sched

def gen_s0(o):
    s = Seg('s0')
    s.label('L_s0')
    if o.lsum:
        s('v_mov_b32 v%d, 0x3f803f80' % L)
        for k in range(4): s('v_accvgpr_write_b32 a%d, v%d' % (ONES + k, L))
    else:
        for j in range(5): s('v_mov_b32 v%d, 0' % (L + j))
    if o.cap2: s('s_and_b32 s3, s39, 1'); s('s_cselect_b64 vcc, -1, 0')
    s.wait(tags=['K1', 'V0'])
    s('s_barrier')
    s.add(rd_k(1))
    dm = spread(o.sched[1] + [[I('buffer_atomic_add v%d, v%d, s[%d:%d], 0 offen' % (CNT, CA, SD, SD + 3))]], [1, 8, 15, 22, 29])
    for i in range(35):
        if i < 34: s.add(sm_exp(i))
        else: s('s_nop 0')
        if i > 0: s.add(sm_post(o, i - 1, 0))
        s.add(dm.get(i, []))
    return s

def step(s, o, t, more1=(), more2=(), wtags=(), valu1=None):
    par = t & 1
    if t % 2 == 1: tstamp(s, o, 'a', t // 2)
    if t >= 26: tstamp(s, o, 'e', 2 * (t - 26))
    mf = qk_list(True) + pv_list(o, par ^ 1, VB, t == 1)
    NG = len(mf)
    fill = {g: [] for g in range(NG)}
    empty = [g for g in range(NG) if not sm_gap(o, g, par)]
    if o.lsum:
        g1 = [g for g in empty if g < 32]; g2 = [g for g in empty if 42 < g < NG - 8]
    else: g1, g2 = [1, 5, 9, 13, 17, 21, 25, 29], [45, 49, 53, 57, 61, 65, 69, 73]
    for g, l in spread(rd_v(VB, t - 1), g1).items(): fill[g] += l
    for g, l in spread(rd_k(t + 1) if t < 31 else rd_v(KB, 31), g2).items(): fill[g] += l
    for base, end, dm in ((4, 40, o.sched[2 * t] + list(more1)), (44, NG, o.sched[2 * t + 1] + list(more2))):
        n = len(dm)
        last = -1
        for i, g in enumerate(dm):
            pos = base + ((end - base) * i) // n
            if o.lsum:
                while len(sm_gap(o, pos, par)) + len(fill[pos]) > 1 or (sm_gap(o, pos, par) and sm_gap(o, pos, par)[0].kind == 'trans'): pos += 1
            else: pos &= ~1
            if o.split:
                k = [n_ for n_, x in enumerate(g) if x.kind in ('wait', 'dma', 'vld', 'ph', 'dsw')][0]
                lo = max(base - 3, last + 1)
                for n_ in range(k): fill[max(lo, pos - (k - n_))].append(g[n_])
                g = g[k:]
                last = pos
            fill[pos] += g
    if valu1:
        for g, l in spread(valu1, list(range(33, 40))).items(): fill[g] += l
    for g in range(NG):
        if g == 0: s.wait(regs=regs('a', KB, 32))
        if g == 40:
            if t >= 26: tstamp(s, o, 'e', 2 * (t - 26) + 1)
            s.wait(regs=regs('a', VB, 32))
        s.add(mf[g])
        if g == 40:
            s.wait(tags=(['K%d' % (t + 1)] if t < 31 else []) + ['V%d' % t] + list(wtags))
            s('s_barrier')
        s.add(sm_gap(o, g, par))
        s.add(fill[g])

def gen_attn(o):
    s = Seg('attn')
    pre = Seg('t')
    t0 = DWO
    pre('v_lshrrev_b32 v%d, 8, v%d' % (t0 + 1, DV))
    pre('v_and_b32 v%d, 0x70, v%d' % (t0, DV))
    pre('v_lshl_add_u32 v%d, v%d, 10, v%d' % (t0, t0 + 1, t0))
    pre('v_bfe_u32 v%d, v%d, 7, 1' % (t0 + 1, DV))
    pre('v_mul_u32_u24 v%d, 0x20200, v%d' % (t0 + 1, t0 + 1))
    pre('v_add_u32 v%d, v%d, v%d' % (t0, t0, t0 + 1))
    pre('v_xor_b32 v%d, 0x20200, v%d' % (t0 + 1, t0))
    pre('v_add_u32 v%d, %d, v%d' % (t0 + 2, 2 * 3072, t0))
    pre('v_add_u32 v%d, %d, v%d' % (t0 + 3, 3 * 3072, t0 + 1))
    pre('v_add_u32 v%d, %d, v%d' % (t0 + 1, 3072, t0 + 1))
    for t in range(4): pre('v_xor_b32 v%d, 0x20000, v%d' % (t0 + 4 + t, t0 + t))
    cnt = [[I('s_lshl_b32 s%d, s%d, 3' % (sA, sG)), I('buffer_load_dword v%d, off, s[%d:%d], s%d offset:128 sc1' % (CNT, SD, SD + 3, sA), tag='cnt')]]
    if o.wocap:
        dwo0 = dma_wo
        def dma_wo_(o_, u):
            out = []
            for g in dwo0(o_, u):
                k = [i for i, x in enumerate(g) if x.kind == 'dma'][0]
                out.append(g[:k] + [I('s_waitcnt vmcnt(%d)' % o.wocap)] + g[k:])
            return out
    else: dma_wo_ = dma_wo
    busy = lambda h: any(o.sched[x] for x in range(h, 64))
    early0 = not busy(59)
    for t in range(1, 32):
        if t == 29: step(s, o, t, valu1=pre.items, more2=dma_wo_(o, 0) if early0 else [])
        elif t == 30: step(s, o, t, more2=cnt + ([] if early0 else dma_wo_(o, 0)) + dma_wo_(o, 1) + (dma_wo_(o, 2) if early0 else []))
        elif t == 31: step(s, o, t, more1=[] if early0 else dma_wo_(o, 2), more2=dma_wo_(o, 3), wtags=['cnt'])
        else: step(s, o, t)
        if t == 26 and o.pfo:
            s('v_lshlrev_b32 v%d, 3, v%d' % (CA, LANE16))
            s('s_lshl_b32 s3, s39, 15'); s('s_lshl_b32 s36, s%d, 13' % sW); s('s_add_u32 s3, s3, s36')
            s('buffer_load_dword v%d, v%d, s[%d:%d], s3 offen' % (CA + 1, CA, SWO, SWO + 3), dummy=True)
    return s

def gen_epi(o):
    s = Seg('epi')
    R = NM
    v = Seg('t')
    def inv(j):
        if o.lsum: v('v_accvgpr_read_b32 v%d, a%d' % (L + j, LS + 4 * j))
        v('v_cmp_nge_f32 %s, s%d, v%d' % (sr(sM0 if j == 0 else sM1, 2), sTHR, L + j))
        v('v_rcp_f32 v%d, v%d' % (R + 2 * j, L + j))
        if j: v('s_or_b64 %s, %s, %s' % (sr(sM0, 2), sr(sM0, 2), sr(sM1, 2)))
        else: v('s_nop 0')
        v('v_mov_b32 v%d, v%d' % (R + 2 * j + 1, R + 2 * j))
    if not o.lsum:
        rowred(v, [L + j for j in range(5)], [90 + j for j in range(5)], 'v_add_f32')
        for j in range(5): inv(j)
    def vote():
        v('s_cmp_lg_u64 %s, 0' % sr(sM0, 2))
        v('s_cselect_b32 s3, 1, 0')
        v('v_mov_b32 v95, s3')
        v('s_lshl_b32 s3, s%d, 2' % sW); v('s_add_u32 s3, s3, 0x%x' % FLG)
        v('v_mov_b32 v96, s3')
        v('ds_write_b32 v96, v95', lds=(lambda c: (FLG, FLG + 16, ev(tg('flg'), c))))
    tg = lambda n: (lambda c: '%s%d' % (n, c.get('redo', 0)))
    v('s_mul_i32 s3, s%d, 20480' % sW); v('s_add_u32 s3, s3, 0x%x' % EX)
    v('v_add_u32 v97, s3, v%d' % LANE16)
    v('s_xor_b32 s3, s%d, 2' % sW); v('s_mul_i32 s3, s3, 20480'); v('s_add_u32 s3, s3, 0x%x' % EX)
    v('v_add_u32 v98, s3, v%d' % LANE16)
    exr = (lambda c: (EX, EX + 81920, ev(tg('ex'), c)))
    for j in range(5):
        if o.lsum: inv(j)
        if j == 4: vote()
        for sidx in range(4):
            f = 16 * j + 4 * sidx
            for e in range(2):
                k, b = otile(j, 2 * sidx + e)
                if k == 'a':
                    for i in range(4): v('v_accvgpr_read_b32 v%d, a%d' % (90 + i, b + i))
                    b = 90
                if j < o.epk:
                    for i in range(4): v('v_mul_f32 v%d, v%d, v%d' % (b + i, b + i, R + 2 * j))
                else:
                    v('v_pk_mul_f32 %s, %s, %s' % (vr(b, 2), vr(b, 2), vr(R + 2 * j, 2)))
                    v('v_pk_mul_f32 %s, %s, %s' % (vr(b + 2, 2), vr(b + 2, 2), vr(R + 2 * j, 2)))
                v('v_cvt_pk_bf16_f32 v%d, v%d, v%d' % (f + 2 * e, b, b + 1))
                v('v_cvt_pk_bf16_f32 v%d, v%d, v%d' % (f + 2 * e + 1, b + 2, b + 3))
            v('ds_write_b128 v97, %s offset:%d' % (vr(f, 4), 1024 * (4 * j + sidx)), lds=exr)
    work = v.items
    mf = pv_list(o, 1, KB)
    tstamp(s, o, 'e', 12)
    s.wait(regs=regs('a', KB, 32))
    for g in range(len(mf)):
        s.add(mf[g])
        if g == 0: s('s_barrier')
        if g < 12: s.add(sm_gap(o, g, 0))
        else: s.add(work[:o.epw]); work = work[o.epw:]
    stamp(s, o, 5); tstamp(s, o, 'e', 13)
    s.add(work)
    tstamp(s, o, 'e', 14)
    s('v_mov_b32 v96, 0x%x' % FLG)
    s.wait(lgkm_all=True, tags=['wo0'])
    s('s_barrier')
    s('ds_read_b128 v[92:95], v96', lds=(lambda c: (FLG, FLG + 16, ev(tg('flg'), c))))
    s('s_mul_i32 s3, s%d, 0x2080' % sP)
    s('v_xor_b32 v84, s3, v%d' % VA)
    for k in range(1, 4): s('v_xor_b32 v%d, %d, v84' % (84 + k, 32 * k))
    for k in range(4): s('v_subrev_u32 v%d, 0x%x, v%d' % (80 + k, V0, 84 + k))
    s('v_readfirstlane_b32 s3, v%d' % CNT)
    s.wait(regs=regs('v', 92, 4))
    s('v_or_b32 v92, v92, v93'); s('v_or3_b32 v92, v92, v94, v95')
    s('s_cmp_lt_u32 s3, 16')
    s('v_readfirstlane_b32 s36, v92')
    s('s_cbranch_scc1 L_cntspin')
    s.label('L_cntok')
    s('s_andn2_b32 s36, s36, s%d' % sREDO)
    if not o.diag: s('s_cbranch_scc1 L_redo')
    stamp(s, o, 6); tstamp(s, o, 'e', 15)
    return s

def gen_spin(s, name, back, load, cond, sCNT=sCNT):
    s.label(name)
    s('s_mov_b32 s%d, 0' % sCNT)
    s.label(name + '_l')
    s('s_sleep %d' % Pace.slp)
    s(load)
    s('s_waitcnt vmcnt(0)')
    s('s_add_u32 s%d, s%d, 1' % (sCNT, sCNT))
    s('s_cmp_gt_u32 s%d, 0x40000' % sCNT)
    s('s_cbranch_scc1 %s' % back)
    for l in cond: s(l.replace('@', name + '_l'))
    s('s_branch %s' % back)

def gen_redo(o):
    s = Seg('redo')
    s.label('L_redo')
    s('s_mov_b32 s%d, 1' % sREDO)
    s('s_waitcnt vmcnt(0) lgkmcnt(0)')
    s('s_barrier')
    t = 56
    s('v_lshrrev_b32 v%d, 4, v%d' % (t, LANE16))
    s('v_and_b32 v%d, 15, v%d' % (t + 1, t))
    s('v_and_b32 v%d, 48, v%d' % (t, t))
    s('v_lshl_add_u32 v%d, v%d, 8, v%d' % (t, t + 1, t))
    s('v_add_u32 v%d, 0x1000, v%d' % (t + 1, t))
    for j in range(5): s('v_mov_b32 v%d, 0xff800000' % (MX + j))
    s('s_mov_b32 s%d, 0' % sA)
    lp = Seg('redo_loop')
    lp.label('L_redo_loop')
    for kb in range(2):
        for k in range(4): lp('buffer_load_dwordx4 %s, v%d, s[%d:%d], s%d offen offset:%d' % (ar(KB + 4 * (4 * kb + k), 4), t + kb, SK, SK + 3, sA, 64 * k))
    lp('s_waitcnt vmcnt(0)')
    lp.add(qk_list(False))
    lp('s_nop 7')
    for j in range(5): max8(lp, j, MX + j, True)
    lp('s_add_u32 s%d, s%d, 0x2000' % (sA, sA))
    lp('s_cmp_lt_u32 s%d, 0x40000' % sA)
    lp('s_cbranch_scc1 L_redo_loop')
    e = Seg('redo_end')
    set_nm(e)
    kv_start(e, o)
    for k in range(8): e('v_subrev_u32 v%d, 0x4000, v%d' % (VA2 + k, VA + k))
    for k, j in KVSEQ[:o.ninit]: e.add(dma_kv(o, k, j))
    if o.stage: e.add(stage_ld(o, 'K') + stage_ld(o, 'V'))
    e('v_mov_b32 v%d, 0x40000000' % CA)
    e.wait(tags=['K0'])
    e('s_barrier')
    e.add(rd_k(0))
    e.wait(regs=regs('a', KB, 32))
    e.add(qk_list(True))
    e('s_nop 7')
    e('s_branch L_s0')
    return s, lp, e

E0V, E1V = 144, 0
PO = 88
AD, OD, IA, PL, C10, C01, AD2, OD2, AC, RT = 224, 225, 226, 227, 228, 229, 230, 231, 232, 248
def etile(c, jn, j): return (E1V if c & 1 else E0V) + 8 * (5 * (jn >> 1) + j) + 4 * (jn & 1)
def poll_txt(): return 'buffer_load_dword v%d, v%d, s[%d:%d], 0 offen sc1' % (PL, IA, SF, SF + 3)
def flag_ops(o, c):
    return [I('v_mov_b32 v89, %d' % (c + 1)), I('buffer_store_dword v89, v%d, s[%d:%d], 0 offen %s' % (FLA, SF, SF + 3, o.fl_pol))]
def load_groups(o, c, dst, sreg, g=SG):
    out = []
    for k in range(10):
        off, ad = (2 * PST * k, AD) if k < 8 else (8 * PST * (k - 8), AD2)
        out.append([I('s_add_u32 s%d, s%d, 0x%x' % (sreg, sCP + c, off)),
                    I('buffer_load_dwordx4 %s, v%d, s[%d:%d], s%d offen %s' % (dst(k), ad, g, g + 3, sreg, o.rd_pol))])
    return out
def red_addr(o):
    s = Seg('t')
    t = RT
    s('s_lshl_b32 s3, s%d, 4' % sG); s('s_and_b32 s62, s38, %d' % (15 & ~(16 // o.rep - 1))); s('s_add_u32 s3, s3, s62'); s('s_lshl_b32 s3, s3, 8')
    s('v_lshrrev_b32 v%d, 2, v%d' % (t, LANE16)); s('v_add_u32 v%d, s3, v%d' % (IA, t))
    s('v_lshrrev_b32 v%d, 4, v%d' % (t, LANE16))
    s('v_and_b32 v%d, 7, v%d' % (t + 2, t))
    s('s_and_b32 s3, s38, 3'); s('s_mul_i32 s63, s3, 5')
    s('s_lshr_b32 s3, s38, 2')
    s('s_lshr_b32 s36, s3, 1'); s('s_lshl_b32 s36, s36, 3'); s('s_and_b32 s3, s3, 1'); s('s_add_u32 s36, s36, s3')
    s('s_mul_i32 s3, s36, 10240'); s('s_lshl_b32 s62, s%d, 8' % sW); s('s_add_u32 s%d, s3, s62' % sM0)
    s('s_mul_i32 s3, s39, %d' % (160 * 2048)); s('s_lshl_b32 s62, s37, 10'); s('s_add_u32 s3, s3, s62')
    s('s_lshl_b32 s62, s36, 6'); s('s_add_u32 s3, s3, s62'); s('s_lshl_b32 s62, s%d, 3' % sW); s('s_add_u32 s%d, s3, s62' % (sM0 + 1))
    s('v_bfe_u32 v%d, v%d, 3, 2' % (t + 1, t))
    s('v_add_u32 v%d, s63, v%d' % (t + 3, t + 1))
    s('v_lshl_add_u32 v%d, v%d, 3, v%d' % (t + 4, t + 3, t + 2))
    s('v_lshrrev_b32 v%d, 1, v%d' % (t + 5, t + 3))
    s('v_and_b32 v%d, 15, v%d' % (t + 6, t + 4))
    s('v_lshlrev_b32 v%d, 4, v%d' % (t + 6, t + 6))
    s('v_lshl_add_u32 v%d, v%d, 10, v%d' % (t + 6, t + 5, t + 6))
    s('v_lshrrev_b32 v%d, 5, v%d' % (t + 1, t))
    s('v_mul_u32_u24 v%d, %d, v%d' % (t + 5, PST, t + 1))
    s('v_add3_u32 v%d, v%d, v%d, s%d' % (AD, t + 6, t + 5, sM0))
    s('v_lshlrev_b32 v%d, 5, v%d' % (t + 1, t + 1))
    s('v_lshl_add_u32 v%d, v%d, 11, v%d' % (t + 4, t + 4, t + 1))
    s('v_add_u32 v%d, s%d, v%d' % (OD, sM0 + 1, t + 4))
    s('s_add_u32 s63, s63, 4')
    s('s_lshr_b32 s3, s63, 1'); s('s_lshl_b32 s3, s3, 10'); s('s_and_b32 s62, s63, 1'); s('s_lshl_b32 s62, s62, 7'); s('s_add_u32 s3, s3, s62')
    s('s_add_u32 s3, s3, s%d' % sM0)
    s('v_lshrrev_b32 v%d, 3, v%d' % (t + 3, t))
    s('v_mul_u32_u24 v%d, %d, v%d' % (t + 5, PST, t + 3))
    s('v_lshl_add_u32 v%d, v%d, 4, v%d' % (t + 5, t + 2, t + 5))
    s('v_add_u32 v%d, s3, v%d' % (AD2, t + 5))
    s('s_lshl_b32 s3, s63, 14'); s('s_add_u32 s3, s3, s%d' % (sM0 + 1))
    s('v_lshl_add_u32 v%d, v%d, 11, v%d' % (t + 4, t + 2, t + 1))
    s('v_and_b32 v%d, 24, v%d' % (t + 1, t))
    s('v_cmp_eq_u32 vcc, 0, v%d' % (t + 1))
    s('v_add_u32 v%d, s3, v%d' % (t + 4, t + 4))
    s('v_mov_b32 v%d, 0x40000000' % (t + 7))
    s('v_cndmask_b32 v%d, v%d, v%d, vcc' % (OD2, t + 7, t + 4))
    s('v_mov_b32 v%d, 0x3f80' % C10); s('v_mov_b32 v%d, 0x3f800000' % C01)
    return s.items

LA, LO, LD, LA2, LD2, QAD, CL = 108, 109, 110, 111, 112, 113, 114
ODS = ((116, 117), (118, 119), (90, 91))
sI0, sI1, sN, sDB, sIT = 13, 14, 15, 12, 7
def red_addr_dyn(o):
    s = Seg('t')
    t = RT
    s('s_lshl_b32 s3, s%d, 4' % sG); s('s_and_b32 s62, s38, %d' % (15 & ~(16 // o.rep - 1))); s('s_add_u32 s3, s3, s62'); s('s_lshl_b32 s3, s3, 8')
    s('v_lshrrev_b32 v%d, 2, v%d' % (t, LANE16)); s('v_add_u32 v%d, s3, v%d' % (IA, t))
    s('v_lshrrev_b32 v%d, 4, v%d' % (t, LANE16))
    s('v_and_b32 v%d, 7, v%d' % (t + 2, t))
    s('v_lshrrev_b32 v%d, 5, v%d' % (t + 1, t))
    s('v_bfe_u32 v%d, v%d, 3, 2' % (LO, t))
    s('v_mul_u32_u24 v%d, %d, v%d' % (t + 5, PST if o.loc < 0 else 1 << 18, t + 1))
    s('v_lshl_add_u32 v%d, v%d, 4, v%d' % (LA, t + 2, t + 5))
    s('v_lshlrev_b32 v%d, 5, v%d' % (t + 1, t + 1))
    s('v_lshl_add_u32 v%d, v%d, 11, v%d' % (t + 4, t + 2, t + 1))
    s('v_lshl_add_u32 v%d, v%d, 14, v%d' % (LD, LO, t + 4))
    s('v_cmp_eq_u32 vcc, 0, v%d' % LO)
    s('v_lshrrev_b32 v%d, 3, v%d' % (t + 3, t))
    s('v_mov_b32 v%d, 0x40000000' % (t + 7))
    s('v_cndmask_b32 v%d, v%d, v%d, vcc' % (LD2, t + 7, t + 4))
    s('v_mul_u32_u24 v%d, %d, v%d' % (t + 5, PST, t + 3))
    s('v_lshl_add_u32 v%d, v%d, 4, v%d' % (LA2, t + 2, t + 5))
    if o.sl8:
        s('v_lshl_add_u32 v%d, v%d, 8, v%d' % (LA2, LO, LA))
        s('v_lshl_add_u32 v%d, v%d, 3, v%d' % (LD2, LO, t + 4))
    s('s_mul_i32 s3, s39, %d' % (160 * 2048)); s('s_lshl_b32 s62, s37, 10'); s('s_add_u32 s%d, s3, s62' % sDB)
    s('s_lshl_b32 s3, s%d, 8' % sG); s('s_add_u32 s3, s3, 0x10000')
    if o.loc >= 0: s('s_lshl_b32 s62, s%d, 7' % sH); s('s_add_u32 s3, s3, s62')
    s('v_min_u32 v%d, 1, v%d' % (t + 3, t)); s('v_lshlrev_b32 v%d, 30, v%d' % (t + 3, t + 3)); s('v_add_u32 v%d, s3, v%d' % (QAD, t + 3))
    s('v_mov_b32 v%d, 0x3f80' % C10); s('v_mov_b32 v%d, 0x3f800000' % C01)
    return s.items

def gen_op(o):
    s = Seg('op')
    exr = (lambda c: (EX, EX + 81920, 'ex%d' % c.get('redo', 0)))
    KSL = [(4 * c + r, [(2 * a + e, kk) for kk in range(2) for e in range(2)]) for c in range(4) for a in range(2) for r in range(4)]
    def reads_for(ks):
        u, fr = KSL[ks]
        base = OSLOT[u % 8]
        areg, imm = (80, base) if base < V0 else (84, base - V0)
        return [I('ds_read_b64_tr_b16 %s, v%d offset:%d' % (ar(KB + 16 * (ks & 1) + 4 * i + 2 * e, 2), areg + jn, imm + 8192 * kk + 4096 * e), lds=(base, base + 16384, 'wo%d' % u))
                for i, (jn, kk) in enumerate(fr) for e in range(2)]
    def conv(c, a):
        out = []
        for j in range(5):
            b = etile(c, 2 * a, j)
            cv = [I('v_cvt_pk_bf16_f32 v%d, v%d, v%d' % (b + i, b + 2 * i, b + 2 * i + 1)) for i in range(4)]
            out.append(cv[:2]); out.append(cv[2:])
            out.append([I('s_add_u32 s%d, s%d, 0x%x' % (sA, sCP + c, ((10 if o.loc < 0 else 16) * a + j) * 1024)),
                        I('buffer_store_dwordx4 %s, v%d, s[%d:%d], s%d offen %s' % (vr(b, 4), PO, SP_, SP_ + 3, sA, o.st_pol), tag='st%d' % c)])
        return out
    s('s_mov_b32 s%d, 0' % sREDO)
    s.add(reads_for(0))
    part = [I('ds_read_b128 %s, v98 offset:%d' % (ar(PART + 4 * f, 4), 1024 * f), lds=exr) for f in range(20)]
    own = [I('ds_read_b128 %s, v97 offset:%d' % (ar(OWN + 4 * f, 4), 1024 * f), lds=exr) for f in range(20)]
    s('s_mul_i32 s3, s%d, %d' % (sP, 80 if o.loc < 0 else 128)); s('s_mul_i32 s36, s%d, %d' % (sHF, 5 if o.loc < 0 else 8)); s('s_add_u32 s3, s3, s36'); s('s_lshl_b32 s3, s3, 10')
    s('v_add_u32 v%d, s3, v%d' % (PO, LANE16))
    if o.exsp: extra = sum(([[x], []] if i % 3 else [[x]] for i, x in enumerate(part)), []) + sum(([[x], [], []] for x in own), [])
    else: extra = [part[i:i + 2] for i in range(0, 20, 2)] + [own[i:i + 2] for i in range(0, 20, 2)]
    vq = []
    ra = red_addr_dyn(o) if o.dyn else red_addr(o)
    seen = set()
    first_use, last_use = {}, {}
    for ks, (u, fr) in enumerate(KSL):
        first_use.setdefault(u, ks); last_use[u] = ks
    pending = list(range(4, 16))
    for ks, (u, fr) in enumerate(KSL):
        c, phi, dh = u >> 2, (u >> 1) & 1, u & 1
        if ks % 2 == 0: tstamp(s, o, 'o', ks // 2)
        buf = ks & 1
        mf = []
        for i, (jn, kk) in enumerate(fr):
            sidx = 2 * dh + kk
            first = (c, jn) not in seen; seen.add((c, jn))
            for j in range(5):
                d = vr(etile(c, jn, j), 4)
                if phi: bf = ar(PART + 16 * j + 4 * sidx, 4)
                elif c == 0: bf = vr(16 * j + 4 * sidx, 4)
                else: bf = ar(OWN + 16 * j + 4 * sidx, 4)
                mf.append(mfma(d, ar(KB + 16 * buf + 4 * i, 4), bf, '0' if first else d))
        need = regs('a', KB + 16 * buf, 16)
        if phi and c == 0: need = need + regs('a', PART, 80)
        bar = None
        nxt = KSL[ks + 1][0] if ks + 1 < 32 else None
        exk = 6 if o.exsp else 2
        if nxt is not None and (first_use[nxt] == ks + 1 or ks == exk):
            if ks == exk: need = need + regs('a', OWN, 80) + regs('a', PART, 80)
            new = []
            for v in list(pending):
                ok = v == 4 or (5 <= v <= 7 and ks >= exk) or (v >= 8 and last_use[v - 8] <= ks)
                if not ok: break
                new += dma_wo(o, v); pending.remove(v)
            bar = dict(tags=['wo%d' % nxt])
            barrier_hooks.append(lambda new=new: vq.extend(new))
        rds = reads_for(ks + 1) if nxt is not None else []
        if ks == (9 if o.exsp else 4): extra += [ra[i:i + 2] for i in range(0, len(ra), 2)]
        if ks % 4 == 0 and ks > 0:
            cv = [[]] * 2 + conv((ks - 4) >> 3, ((ks - 4) >> 2) & 1)
            extra[0:0] = cv
        for cc, at in enumerate(int(x) for x in o.fl.split(',')):
            if ks == at: extra.insert(0, [Wait(tags=['st%d' % cc])] + flag_ops(o, cc))
        for x in (o.cfl.split(',') if o.cfl else []):
            cc, at = (int(y) for y in x.split(':'))
            if ks == at: extra.insert(0, [CondOps(['st%d' % cc], [i.text for i in flag_ops(o, cc)], 43)])
        if o.early:
            if ks == o.epoll: extra.insert(0, [I(poll_txt(), tag='poll')])
            if ks == o.epoll + 2:
                extra += [[I('s_mov_b32 s%d, s%d' % (SG2, SG)), I('s_mov_b32 s%d, s%d' % (SG2 + 1, SG + 1))],
                          [Wait(regs=[('v', PL)]), I('v_cmp_gt_u32 vcc, 1, v%d' % PL), I('s_mov_b32 s%d, 0x20000' % (SG2 + 3)), I('s_cmp_eq_u64 vcc, 0'),
                           I('s_cselect_b32 s%d, 0x%x, 0' % (SG2 + 2, 16 * PST)), I('s_cselect_b32 s%d, 1, 0' % sE)]]
                for g in load_groups(o, 0, lambda k: vr(144 + 4 * k, 4), sB, SG2): extra += [g] + [[]] * (o.ldevery - 1)
        if o.dyn and o.eclaim and ks == o.eclaim:
            extra.insert(0, [I('v_mov_b32 v%d, %d' % (CL, o.nb)), I('buffer_atomic_add v%d, v%d, s[%d:%d], 0 offen sc0' % (CL, QAD, SF, SF + 3), tag='claim'), I(poll_txt(), tag='poll')])
        elif ks == 30 and not (o.dyn and o.eclaim): extra.insert(0 if o.early else len(extra), [I(poll_txt(), tag='poll')])
        gemm_kstep(s, mf, need, rds, bar, extra, o.oevery, vq)
        if ks % 8 == 7: stamp(s, o, 7 + c)
    extra = [g for g in extra if g]
    assert not extra and not vq and not pending, (len(extra), len(vq), pending)
    s('s_nop 3')
    for g in conv(3, 1): s.add(g)
    stamp(s, o, 11)
    if o.early:
        s('s_cmp_lg_u32 s%d, 0' % sE)
        s('s_cbranch_scc1 L_redE')
    return s

def summ_ops(s, buf, o2):
    a = AC
    for i in range(16): s('v_mov_b32 v%d, 0' % (a + i))
    for k in range(10):
        if k in (0, 4, 8): s.wait(regs=regs('v', buf + 4 * k, 16 if k < 8 else 8))
        for d in range(4):
            x = buf + 4 * k + d
            b = a + (8 if k >= 8 else 0)
            s('v_dot2c_f32_bf16 v%d, v%d, v%d' % (b + 2 * d, x, C10)); s('v_dot2c_f32_bf16 v%d, v%d, v%d' % (b + 2 * d + 1, x, C01))
    t = RT
    s('s_nop 2')
    for i in range(8): s('v_add_f32_dpp v%d, v%d, v%d row_ror:8 row_mask:0xf bank_mask:0xf' % (t + i, a + 8 + i, a + 8 + i))
    for i in range(8): s('v_mov_b32 v%d, v%d' % (a + 8 + i, t + i))
    s('s_nop 0')
    for i in range(8): s('v_permlane16_swap_b32 v%d, v%d' % (t + i, a + 8 + i))
    for i in range(8): s('v_add_f32 v%d, v%d, v%d' % (a + 8 + i, a + 8 + i, t + i))
    for b in (a, a + 8):
        for i in range(4): s('v_permlane32_swap_b32 v%d, v%d' % (b + i, b + 4 + i))
    for b in (a, a + 8):
        for i in range(4): s('v_add_f32 v%d, v%d, v%d' % (b + i, b + i, b + 4 + i))
    for n_, b in enumerate((a, a + 8)):
        s('v_cvt_pk_bf16_f32 v%d, v%d, v%d' % (o2 + 2 * n_, b, b + 1)); s('v_cvt_pk_bf16_f32 v%d, v%d, v%d' % (o2 + 2 * n_ + 1, b + 2, b + 3))

def gen_red_dyn(o):
    poll = poll_txt()
    BUF = (144, 184, 0)
    NB = o.nb
    NSL = 160 if o.loc >= 0 else 320 if o.sl8 else 256
    def chunk_of(s, dst, idx):
        if o.loc >= 0: s('s_mul_i32 s%d, s%d, 52429' % (dst, idx)); s('s_lshr_b32 s%d, s%d, 21' % (dst, dst))
        elif o.sl8: s('s_mul_i32 s%d, s%d, 52429' % (dst, idx)); s('s_lshr_b32 s%d, s%d, 22' % (dst, dst))
        else: s('s_lshr_b32 s%d, s%d, 6' % (dst, idx))
    def claim(s, n):
        s('v_mov_b32 v%d, %d' % (CL, n))
        s('buffer_atomic_add v%d, v%d, s[%d:%d], 0 offen sc0' % (CL, QAD, SF, SF + 3), tag='claim')
    def check(s, idx, name):
        chunk_of(s, sN, idx); s('s_add_u32 s%d, s%d, 1' % (sN, sN))
        s.wait(regs=[('v', PL)])
        s('v_cmp_gt_u32 vcc, s%d, v%d' % (sN, PL))
        s('s_cbranch_vccnz L_spin%s' % name)
        s.label('L_got%s' % name)
    def addr(s, idx, x):
        t = RT
        if o.sl8:
            s('s_sub_u32 s3, s%d, 1' % sN); s('s_mul_i32 s36, s3, %d' % (NSL // 4)); s('s_sub_u32 s36, s%d, s36' % idx)
            if o.rotc: s('s_add_u32 s3, s3, s39'); s('s_and_b32 s3, s3, 3')
            s('s_bfe_u32 s62, s36, 0x10001'); s('s_lshl_b32 s62, s62, 2'); s('s_add_u32 s3, s3, s62'); s('s_lshl_b32 s3, s3, 1')
            s('s_and_b32 s62, s36, 1'); s('s_add_u32 s3, s3, s62')
            s('s_lshr_b32 s36, s36, 2')
            s('s_lshl_b32 s62, s3, 6'); s('s_lshl_b32 s63, s36, 14'); s('s_add_u32 s62, s62, s63'); s('s_add_u32 s62, s62, s%d' % sDB)
            if o.loc >= 0: s('s_mul_i32 s63, s%d, %d' % (sH, 10 << 14)); s('s_add_u32 s62, s62, s63')
            s('v_add_u32 v%d, s62, v%d' % (ODS[x][0], LD2))
            if o.loc >= 0: s('s_lshl_b32 s3, s3, 1'); s('s_add_u32 s3, s3, s%d' % sH); s('s_lshl_b32 s3, s3, 3')
            else: s('s_mul_i32 s3, s3, 10')
            s('s_lshr_b32 s62, s36, 1'); s('s_add_u32 s3, s3, s62'); s('s_lshl_b32 s3, s3, 10')
            s('s_and_b32 s36, s36, 1'); s('s_lshl_b32 s36, s36, 7'); s('s_add_u32 s3, s3, s36')
            s('v_add_u32 v%d, s3, v%d' % (AD, LA2))
            return
        s('s_lshr_b32 s3, s%d, 6' % idx)
        if o.rotc: s('s_add_u32 s3, s3, s39'); s('s_and_b32 s3, s3, 3')
        s('s_bfe_u32 s36, s%d, 0x10005' % idx); s('s_lshl_b32 s36, s36, 2'); s('s_add_u32 s3, s3, s36'); s('s_lshl_b32 s3, s3, 1')
        s('s_bfe_u32 s36, s%d, 0x10004' % idx); s('s_add_u32 s3, s3, s36')
        s('s_and_b32 s36, s%d, 3' % idx)
        s('s_mul_i32 s62, s3, 10240'); s('s_lshl_b32 s63, s36, 8'); s('s_add_u32 s%d, s62, s63' % sM0)
        s('s_lshl_b32 s62, s3, 3'); s('s_add_u32 s62, s62, s36'); s('s_lshl_b32 s62, s62, 3'); s('s_add_u32 s62, s62, s%d' % sDB)
        s('s_bfe_u32 s63, s%d, 0x20002' % idx); s('s_mul_i32 s63, s63, 5')
        s('v_add_u32 v%d, s63, v%d' % (t, LO))
        s('s_lshl_b32 s3, s63, 14'); s('s_add_u32 s62, s62, s3')
        s('v_lshrrev_b32 v%d, 1, v%d' % (t + 1, t))
        s('v_and_b32 v%d, 1, v%d' % (t, t))
        s('v_add_u32 v%d, s62, v%d' % (ODS[x][0], LD))
        s('v_lshlrev_b32 v%d, 7, v%d' % (t, t))
        s('s_add_u32 s62, s62, 0x10000')
        s('v_lshl_add_u32 v%d, v%d, 10, v%d' % (t, t + 1, t))
        s('v_add_u32 v%d, s62, v%d' % (ODS[x][1], LD2))
        s('v_add3_u32 v%d, v%d, v%d, s%d' % (AD, t, LA, sM0))
        s('s_lshr_b32 s3, s63, 1'); s('s_add_u32 s3, s3, 2'); s('s_lshl_b32 s3, s3, 10'); s('s_and_b32 s63, s63, 1'); s('s_lshl_b32 s63, s63, 7')
        s('s_add_u32 s3, s3, s63'); s('s_add_u32 s3, s3, s%d' % sM0)
        s('v_add_u32 v%d, s3, v%d' % (AD2, LA2))
    def loads(s, x, ks=range(10)):
        for k in ks:
            if o.sl8 and k >= 8: continue
            off, ad = (2 * PST * k, AD) if k < 8 else (8 * PST * (k - 8), AD2)
            if o.loc >= 0: off = ((k >> 2) << 22) + ((k & 3) << 19)
            s('s_mov_b32 s%d, 0x%x' % (sA, off))
            if o.rcap: s('s_waitcnt vmcnt(%d)' % o.rcap)
            s('buffer_load_dwordx4 %s, v%d, s[%d:%d], s%d offen %s' % (vr(BUF[x] + 4 * k, 4), ad, SG, SG + 3, sA, o.rd_pol))
    def finish(s, x):
        o2 = (100, 104, 92)[x]
        if o.sl8:
            a = AC
            for k in range(8):
                if k in (0, 4): s.wait(regs=regs('v', BUF[x] + 4 * k, 16))
                for d in range(4):
                    r = BUF[x] + 4 * k + d
                    if k == 0: s('v_lshlrev_b32 v%d, 16, v%d' % (a + 2 * d, r)); s('v_and_b32 v%d, 0xffff0000, v%d' % (a + 2 * d + 1, r))
                    else: s('v_dot2c_f32_bf16 v%d, v%d, v%d' % (a + 2 * d, r, C10)); s('v_dot2c_f32_bf16 v%d, v%d, v%d' % (a + 2 * d + 1, r, C01))
            s('s_nop 2')
            for i in range(4): s('v_permlane32_swap_b32 v%d, v%d' % (a + i, a + 4 + i))
            for i in range(4): s('v_add_f32 v%d, v%d, v%d' % (a + i, a + i, a + 4 + i))
            s('v_cvt_pk_bf16_f32 v%d, v%d, v%d' % (o2, a, a + 1)); s('v_cvt_pk_bf16_f32 v%d, v%d, v%d' % (o2 + 1, a + 2, a + 3))
            s('buffer_store_dwordx2 %s, v%d, s[%d:%d], 0 offen %s' % (vr(o2, 2), ODS[x][0], SO, SO + 3, o.out_pol))
            return
        summ_ops(s, BUF[x], o2)
        for h in range(2): s('buffer_store_dwordx2 %s, v%d, s[%d:%d], 0 offen %s' % (vr(o2 + 2 * h, 2), ODS[x][h], SO, SO + 3, o.out_pol))
    pre = Seg('redpre')
    for i in range(15): tstamp(pre, o, 'r', i)
    pre('s_mov_b32 s%d, 0' % sIT)
    if o.eclaim:
        pre.wait(tags=['claim', 'poll'])
        pre('v_readfirstlane_b32 s%d, v%d' % (sI0, CL))
        pre('s_lshr_b32 s%d, s%d, 6' % (sN, sI0)); pre('s_add_u32 s%d, s%d, 1' % (sN, sN))
        pre('v_cmp_gt_u32 vcc, s%d, v%d' % (sN, PL))
        pre('s_add_u32 s%d, s%d, 1' % (sI1, sI0))
        pre('s_cbranch_vccnz L_late')
        addr(pre, sI0, 0)
        loads(pre, 0, range(o.nfirst))
        pre.wait(tags=['st3'])
        pre.add(flag_ops(o, 3))
        loads(pre, 0, range(o.nfirst, 10))
        late = Seg('late')
        late.label('L_late')
        late('s_waitcnt vmcnt(0)')
        late.add(flag_ops(o, 3))
        late('s_cmp_ge_u32 s%d, 256' % sI0)
        late('s_cbranch_scc1 L_end')
        check(late, sI0, 'P')
        addr(late, sI0, 0)
        loads(late, 0)
        late('s_branch L_rb0')
        o.late = late
        tstamp(pre, o, 'r', 2)
        stamp(pre, o, 12)
    else:
        if o.f2post:
            pre.wait(tags=['st2'])
            pre.add(flag_ops(o, 2))
        claim(pre, NB)
        pre.wait(tags=['st3'])
        pre.add(flag_ops(o, 3))
        tstamp(pre, o, 'r', 1)
        pre.wait(tags=['claim'])
        pre('v_readfirstlane_b32 s%d, v%d' % (sI0, CL))
        tstamp(pre, o, 'r', 2)
        stamp(pre, o, 12)
        if o.loc >= 0: pre.label('L_pre2')
        pre('s_add_u32 s%d, s%d, 1' % (sI1, sI0))
        pre('s_cmp_ge_u32 s%d, %d' % (sI0, NSL))
        pre('s_cbranch_scc1 %s' % ('L_end' if o.loc < 0 else 'L_swP'))
        check(pre, sI0, 'P')
        addr(pre, sI0, 0)
        loads(pre, 0)
    if NB == 3:
        pre('s_cmp_ge_u32 s%d, %d' % (sI1, NSL))
        pre('s_cbranch_scc1 L_rlast0')
        check(pre, sI1, 'Q')
        addr(pre, sI1, 1)
        loads(pre, 1)
        pre('s_add_u32 s%d, s%d, 1' % (sI1, sI1))
    body, fin = [], []
    for x in range(NB):
        y = (x + NB - 1) % NB
        b = Seg('redbody%d' % x)
        b.label('L_rb%d' % x)
        if o.trace == 'r':
            b('%s s[%d:%d]' % (clk(o), sST + 6, sST + 7)); b('s_waitcnt lgkmcnt(0)'); b('s_add_u32 m0, s%d, 3' % sIT); b('s_nop 0'); b('v_writelane_b32 v%d, s%d, m0' % (STV + 2, sST + 6))
        b('s_add_u32 s%d, s%d, 1' % (sIT, sIT)); b('s_cmp_gt_u32 s%d, 400' % sIT); b('s_cbranch_scc1 L_rf%d' % x)
        b('s_cmp_ge_u32 s%d, %d' % (sI1, NSL))
        b('s_cbranch_scc1 %s%d' % ('L_rf' if o.loc < 0 else 'L_sw', x))
        check(b, sI1, 'B%d' % x)
        addr(b, sI1, y)
        claim(b, 1)
        b(poll, tag='poll')
        loads(b, y)
        finish(b, x)
        b.wait(regs=[('v', CL)])
        b('v_readfirstlane_b32 s%d, v%d' % (sI1, CL))
        if x == NB - 1: b('s_branch L_rb0')
        body.append(b)
        f = Seg('redfin%d' % x)
        f.label('L_rf%d' % x)
        finish(f, x)
        if NB == 3:
            if x == 2: f.label('L_rlast0')
            finish(f, (x + 1) % 3)
        if x < NB - 1: f('s_branch L_end')
        fin.append(f)
    e = Seg('redend')
    e.label('L_end')
    if o.stamps or o.trace:
        e('s_waitcnt vmcnt(0)')
        tstamp(e, o, 'r', 15)
        stamp(e, o, 13); stamp(e, o, 14); stamp(e, o, 15)
    e.label('L_done')
    e('s_endpgm')
    sp = Seg('spins')
    for n in ('P', 'B0', 'B1') + (('Q', 'B2') if NB == 3 else ()): gen_spin(sp, 'L_spin' + n, 'L_got' + n, poll, ['v_cmp_gt_u32 vcc, s%d, v%d' % (sN, PL), 's_cbranch_vccnz @'], 35)
    if o.loc >= 0:
        for n, done, back, reg, cnt in [('P', 'L_end', 'L_pre2', sI0, NB)] + [(str(x), 'L_rf%d' % x, 'L_rb%d' % x, sI1, 1) for x in range(NB)]:
            sp.label('L_sw' + n)
            sp('s_cmp_lg_u32 s%d, 0' % sSW); sp('s_cbranch_scc1 %s' % done)
            sp('s_mov_b32 s%d, 1' % sSW); sp('s_xor_b32 s%d, s%d, 1' % (sH, sH))
            sp('s_waitcnt vmcnt(0)')
            sp('v_xor_b32 v%d, 0x80, v%d' % (QAD, QAD))
            claim(sp, cnt)
            sp('s_waitcnt vmcnt(0)')
            sp('v_readfirstlane_b32 s%d, v%d' % (reg, CL))
            sp('s_branch %s' % back)
    sp.label('L_cntspin')
    sp('s_lshl_b32 s%d, s%d, 3' % (sA, sG))
    gen_spin(sp, 'L_cntspin2', 'L_cntok', 'buffer_load_dword v%d, off, s[%d:%d], s%d offset:128 sc1' % (CNT, SD, SD + 3, sA),
             ['v_readfirstlane_b32 s3, v%d' % CNT, 's_cmp_lt_u32 s3, 16', 's_cbranch_scc1 @'], 35)
    return pre, body, fin, e, sp

def gen_red(o, early, sfx):
    s = Seg('red' + sfx)
    if sfx: s.label('L_red' + sfx)
    poll = poll_txt()
    BUF = [144, 184, 0, 40]
    def check(n):
        s.wait(regs=[('v', PL)])
        s('v_cmp_gt_u32 vcc, %d, v%d' % (n, PL))
        s('s_cbranch_vccnz L_spin%d%s' % (n, sfx))
        s.label('L_got%d%s' % (n, sfx))
    def loads(c):
        for g in load_groups(o, c, lambda k: vr(BUF[c] + 4 * k, 4), sA): s.add(g)
    def summ(c): summ_ops(s, BUF[c], 100 + 4 * (c & 1))
    def outst(c):
        o2 = 100 + 4 * (c & 1)
        s('buffer_store_dwordx2 %s, v%d, s[%d:%d], s%d offen %s' % (vr(o2, 2), OD, SO, SO + 3, sCW + c, o.out_pol))
        s('buffer_store_dwordx2 %s, v%d, s[%d:%d], s%d offen %s' % (vr(o2 + 2, 2), OD2, SO, SO + 3, sCW + c, o.out_pol))
    T = lambda i: tstamp(s, o, 'r', i)
    T(0)
    if o.fl3:
        s.wait(tags=['st3'])
        s.add(flag_ops(o, 3))
        check(1)
        T(1); stamp(s, o, 12)
        loads(0)
        T(2)
        check(2)
        T(3)
        s(poll, tag='poll')
        loads(1)
        T(4)
        summ(0)
    else:
        s.wait(regs=[('v', PL)], tags=['st2'])
        s.add(flag_ops(o, 2))
    if o.fl3: pass
    elif not early:
        check(1)
        T(1); stamp(s, o, 12)
        s.wait(regs=regs('v', BUF[0], 40))
        loads(0)
        T(2)
        s.wait(tags=['st3'])
        s.add(flag_ops(o, 3))
        check(2)
        T(3)
        s(poll, tag='poll')
        loads(1)
        T(4)
        summ(0)
    else:
        check(2)
        T(1); stamp(s, o, 12)
        loads(1)
        T(2)
        s.wait(tags=['st3'])
        s.add(flag_ops(o, 3))
        T(3)
        s(poll, tag='poll')
        T(4)
        summ(0)
    T(5)
    check(3)
    T(6); stamp(s, o, 13)
    s(poll, tag='poll')
    loads(2)
    outst(0)
    T(7)
    summ(1)
    T(8)
    check(4)
    T(9); stamp(s, o, 14)
    loads(3)
    outst(1)
    T(10)
    summ(2); outst(2)
    T(11)
    summ(3); outst(3)
    T(12)
    if o.stamps or o.trace:
        s('s_waitcnt vmcnt(0)')
        T(13); T(14); T(15)
        stamp(s, o, 15)
    if not sfx: s.label('L_done')
    s('s_endpgm')
    sp = Seg('spins')
    for n in (2, 3, 4) if early else (1, 2, 3, 4): gen_spin(sp, 'L_spin%d%s' % (n, sfx), 'L_got%d%s' % (n, sfx), poll, ['v_cmp_gt_u32 vcc, %d, v%d' % (n, PL), 's_cbranch_vccnz @'])
    if sfx: return s, sp
    sp.label('L_cntspin')
    sp('s_lshl_b32 s%d, s%d, 3' % (sA, sG))
    gen_spin(sp, 'L_cntspin2', 'L_cntok', 'buffer_load_dword v%d, off, s[%d:%d], s%d offset:128 sc1' % (CNT, SD, SD + 3, sA),
             ['v_readfirstlane_b32 s3, v%d' % CNT, 's_cmp_lt_u32 s3, 16', 's_cbranch_scc1 @'])
    return s, sp

def desc(name, vgpr, accum, sgpr):
    return '''.amdhsa_kernel %s
  .amdhsa_next_free_vgpr %d
  .amdhsa_next_free_sgpr %d
  .amdhsa_accum_offset %d
  .amdhsa_group_segment_fixed_size 0
  .amdhsa_kernarg_size 104
  .amdhsa_user_sgpr_count 2
  .amdhsa_user_sgpr_kernarg_segment_ptr 1
  .amdhsa_system_sgpr_workgroup_id_x 1
  .amdhsa_float_denorm_mode_32 3
.end_amdhsa_kernel
''' % (name, vgpr, sgpr, accum)

DOC = """;
; One workgroup per CU = one (branch, batch, head pair); waves 0,1 own the first head, waves 2,3 the second, 80 query rows each.
; Everything is computed transposed (queries along the lanes) with v_mfma_f32_16x16x32_bf16; all tiles reach LDS by LDS-DMA.
;   qphase : Q^T = Wq^T x^T, scaled by log2(e)/sqrt(128), packed to bf16; first score tile gives the row maxima m
;   red    : the 16 partials of a (branch, batch) are summed in 8-row x 32-column slices handed out by a counter
"""
def build(o, path):
    o.kvat_l = [int(x) for x in o.kvat.split(',')]
    o.stat_l = [int(x) for x in o.stat.split(',')]
    o.sched = kv_schedule(o)
    Pace.slots = o.slots; Pace.slp = o.slp
    entry, q, s0, attn, epi = gen_entry(o), gen_q(o), gen_s0(o), gen_attn(o), gen_epi(o)
    r0, r1, r2 = gen_redo(o)
    op = gen_op(o)
    if o.dyn:
        pre, body, fin, e, spins = gen_red_dyn(o)
        tail_code = [pre] + body + fin + [e, spins]
        tails = [[pre] + body + body + [fin[0], e], [pre] + body + [body[0], fin[1], e]]
        xtails = [[pre, fin[0], e], [pre, body[0], fin[1], e]]
        if o.eclaim:
            assert o.nb == 2
            h = Seg('h'); h.items = pre.items[:[i for i, it in enumerate(pre.items) if it.kind == 'branch' and 'L_late' in it.text][0] + 1]
            xtails += [[h, o.late, body[0], body[1], fin[0], e], [h, o.late, fin[0], e]]
            tail_code.append(o.late)
        if o.nb == 3:
            h = Seg('h'); h.items = pre.items[:[i for i, it in enumerate(pre.items) if it.kind == 'branch' and 'L_rlast0' in it.text][0] + 1]
            l = Seg('l'); l.items = fin[2].items[[i for i, it in enumerate(fin[2].items) if it.kind == 'label' and it.name == 'L_rlast0'][0]:]
            xtails += [[pre, body[0], body[1], fin[2], e], [pre] + body + [body[0], body[1], fin[2], e], [h, l, e]]
    else:
        red, spins = gen_red(o, False, '')
        redE, spinsE = gen_red(o, True, 'E') if o.early else (Seg('x'), Seg('x'))
        tail_code = [red, redE, spins, spinsE]
        tails = [[red], [redE if o.early else red]]
    traces = []
    for redo in (0, 1):
        tr = [(entry, {}), (q, {})]
        for ps in range(redo + 1):
            if ps: tr += [(r0, {}), (r1, {}), (r1, {}), (r2, {})]
            tr += [(s0, {}), (attn, {}), (epi, dict(redo=ps))]
        tr += [(op, dict(redo=redo))] + [(x, {}) for x in tails[redo]]
        traces.append(('redo%d' % redo, tr))
    if o.dyn:
        base = traces[0][1][:-len(tails[0])]
        for i, xt in enumerate(xtails): traces.append(('x%d' % i, base + [(x, {}) for x in xt]))
    if o.jit:
        import random
        rnd = random.Random(o.jit)
        cnt = [0]
        def delay(reg, mask, val, n):
            cnt[0] += 1
            out = [I('s_and_b32 s43, s%d, %d' % (reg, mask)), I('s_cmp_eq_u32 s43, %d' % val), I('s_cbranch_scc0 L_jit%d' % cnt[0])]
            out += [I('s_sleep %d' % min(127, n))] * (1 + n // 128) + [Label('L_jit%d' % cnt[0])]
            return out
        for sg in (q, s0, attn, epi, op):
            out = []
            for it in sg.items:
                if it.kind == 'barrier':
                    r = rnd.random()
                    if r < 0.5: out += delay(sW, 3, rnd.randrange(4), rnd.randrange(1, 40))
                    out.append(it)
                    if r > 0.3: out += delay(sW, 3, rnd.randrange(4), rnd.randrange(1, 40))
                    if rnd.random() < 0.08: out += delay(2, 15, rnd.randrange(16), rnd.randrange(100, 600))
                else: out.append(it)
            sg.items = out
        q.items = delay(2, 31, 5, 1500) + q.items
    resolve([t for _, t in traces])
    allerr = []
    for name, tr in traces: allerr += check(tr, name)[0]
    for e in allerr[:6]: print('ERR', e)
    if allerr: print(len(allerr), 'errors')
    hdr = open('concat_heads__gqa_block_cached__gqa_block_cached__near_ridge.s.ref').read().split('; Override')[0]
    txt = hdr + '; @launch grid=(256,1,1) block=(256,1,1) lds=163840\n' + DOC
    txt += '.amdgcn_target "amdgcn-amd-amdhsa--gfx950"\n.text\n.globl %s\n.p2align 8\n.type %s,@function\n%s:\n' % (KN, KN, KN)
    for sg in [entry, q, s0, attn, epi, op] + tail_code + [r0, r1, r2]: txt += '; ---- %s\n' % sg.name + sg.text()
    txt += 'L_code_end:\n'
    txt += '.section .rodata,"a"\n.p2align 6\n' + desc(KN, 512, 256, 102)
    open(path, 'w').write(txt)
    return not allerr

if __name__ == '__main__':
    o = Opt()
    path = sys.argv[1]
    for kv in sys.argv[2:]:
        k, v = kv.split('=')
        cur = getattr(o, k)
        setattr(o, k, int(v) if isinstance(cur, int) else v.replace('+', ' '))
    ok = build(o, path)
    if not ok: os.remove(path); sys.exit(1)
    print('written', path, 'ok' if ok else 'WITH ERRORS', {h: len(v) for h, v in o.sched.items() if len(v) != 4 and (len(v) or h < 62)} if '-v' in path else '')
```

```python
import sys, struct, math
from fw import *

KN = "concat_heads__gqa_block_cached__gqa_block_cached__near_ridge_kernel"
WS_BYTES = 287834112
import os
PST = int(os.environ.get('PST', 172032))
INB = 256 * PST
def f2u(x): return struct.unpack('<I', struct.pack('<f', x))[0]

class Opt:
    kv_pol = 'nt'; w_pol = ''; st_pol = 'sc1'; rd_pol = 'sc1'; fl_pol = 'sc1'; out_pol = ''
    stamps = 0; cyc = 0; dbgst = 0; trace = ''
    force_redo = 0
    codepf = 1
    par = 1
    qevery = 3
    qpack = 0
    x1e = 0
    defer = 0
    capalt = 8
    lite = 0
    slots = 1
    kvat = '5,7,9,11'
    cap = 4
    cap2 = 0
    capl = 0
    tl = 99
    rotp = 1
    split = 1
    qpk = 1
    epw = 2
    epk = 1
    stage = 0
    stat = '8,10'
    lsum = 1
    uni = 1
    hold = 0
    wocap = 4
    qcap = 0
    lasth = 58
    ninit = 10
    oevery = 3
    loc = -1
    flagat = 5
    rotc = 1
    exsp = 0
    dyn = 1
    nb = 3
    f2post = 0
    jit = 0
    slp = 4
    rep = 4
    fl = '13,23'
    cfl = ''
    rcap = 0
    sl8 = 1
    eclaim = 0
    nfirst = 5
    fl3 = 1
    early = 0
    epoll = 24
    ldevery = 5
    pfo = 0
    diag = ''

V0 = 98304
KAD = lambda j: 16384 * (j % 5)
VAD = lambda j: (V0, V0 + 16384, V0 + 32768, V0 + 49152, V0 - 16384)[(j + 2) % 5]
XBUF = lambda m: 32768 + 20480 * (m & 1)
WAD = lambda n: (V0 + 16384, V0 - 16384, V0)[n % 3]
EX = 16384
FLG = VAD(31)
OSLOT = [VAD(28), KAD(30), VAD(29), VAD(30), VAD(31), 16384, 32768, 49152]

S, P, NM, L = 0, 40, 80, 100
KA, KA2, VA, VA2, DK, DV, LANE16, CNT, FLA, CA = 105, 109, 113, 121, 129, 133, 135, 136, 137, 138
DWO = VA2
STV = 140
OV, NOV = 144, 28
XAD, DX, DWQ, DUM = 48, 50, 51, 59
Q, KB, VB, OA = 0, 80, 112, 144
XF = 144
OWN, PART = 0, 144
STG = 216
LS, ONES = 192, 212
sW, sP, sREDO, sCNT = 4, 5, 6, 7
SX, SWQ, SK, SV, SWO, SP_ = 8, 12, 16, 20, 24, 28
sOK, sOV, sMK = 32, 33, 34
sBR, sHP, sBT = 37, 38, 39
sWS = 40
sCW, sCP = 44, 48
sC, sTHR = 54, 56
sA, sB = 58, 59
sW1K, sHF = 60, 61
sST = 64
SF, SD, SO = 72, 76, 80
sG = 84
sM0, sM1 = 86, 88
sXO, sWQO = 90, 91
sO5 = 57
sH, sSW = 100, 101
SG = 96
SG2 = 8
sE = 35

def vr(b, n=1): return 'v%d' % b if n == 1 else 'v[%d:%d]' % (b, b + n - 1)
def ar(b, n=1): return 'a%d' % b if n == 1 else 'a[%d:%d]' % (b, b + n - 1)
def sr(b, n=1): return 's%d' % b if n == 1 else 's[%d:%d]' % (b, b + n - 1)
def mfma(d, a, b, c): return I('v_mfma_f32_16x16x32_bf16 %s, %s, %s, %s' % (d, a, b, c))
def otile(j, db):
    n = 8 * j + db
    return ('v', OV + 4 * n) if n < NOV else ('a', OA + 4 * (n - NOV))
def oreg(j, db):
    k, b = otile(j, db)
    return '%s[%d:%d]' % (k, b, b + 3)
def qacc(db, j):
    n = 8 * j + db
    return 4 * n if n < 12 else OV + 4 * (n - 12)

def clk(o): return 's_memtime' if o.cyc else 's_memrealtime'
def tstamp(s, o, ph, idx):
    if o.trace == ph and idx < 16:
        s('%s s[%d:%d]' % (clk(o), sST + 6, sST + 7)); s('s_waitcnt lgkmcnt(0)')
        s('v_writelane_b32 v%d, s%d, %d' % (STV + 2, sST + 6, idx))
def stamp(s, o, idx):
    st = sST
    def wsrd():
        s('s_mov_b32 s%d, s%d' % (st, sWS)); s('s_mov_b32 s%d, s%d' % (st + 1, sWS + 1))
        s('s_mov_b32 s%d, 0x%x' % (st + 2, WS_BYTES)); s('s_mov_b32 s%d, 0x20000' % (st + 3))
    if o.trace:
        if idx == 15:
            wsrd()
            s('s_mul_i32 s%d, s2, %d' % (st + 4, 128)); s('s_add_u32 s%d, s%d, 0x%x' % (st + 4, st + 4, WS_BYTES - 256 * 128))
            s('s_min_u32 s3, s%d, 1' % sW); s('s_lshl_b32 s3, s3, 30'); s('s_add_u32 s%d, s%d, s3' % (st + 4, st + 4))
            s('v_mbcnt_lo_u32_b32 v0, -1, 0'); s('v_lshlrev_b32 v0, 3, v0'); s('v_mov_b32 v2, v%d' % (STV + 2)); s('v_mov_b32 v3, 0')
            s('s_mov_b64 exec, 0xffff')
            s('buffer_store_dwordx2 v[2:3], v0, s[%d:%d], s%d offen' % (st, st + 3, st + 4))
        return
    if not o.stamps: return
    if o.lite and idx not in (0, 15): return
    a, b = STV, STV + 1
    if o.dbgst:
        if idx not in (0, 2, 3, 5, 6, 11, 13, 15): return
        idx = (0, 2, 3, 5, 6, 11, 13, 15).index(idx)
        s('s_memrealtime s[%d:%d]' % (st + 4, st + 5)); s('s_memtime s[%d:%d]' % (st + 6, st + 7)); s('s_waitcnt lgkmcnt(0)')
        s('v_mov_b32 v%d, s%d' % (a, st + 4)); s('v_mov_b32 v%d, s%d' % (b, st + 6))
        s('s_sub_u32 s%d, s2, %d' % (st + 4, o.dbgst - 1)); s('s_mul_i32 s%d, s%d, 0x1000' % (st + 4, st + 4))
        s('s_add_u32 s%d, s%d, 0x%x' % (st + 4, st + 4, idx * 8)); s('s_nop 0')
        s('buffer_store_dwordx2 v[%d:%d], off, s[%d:%d], s%d' % (a, b, SD, SD + 3, st + 4))
        return
    s('%s s[%d:%d]' % (clk(o), st + 4, st + 5)); s('s_waitcnt lgkmcnt(0)')
    if idx == 0: s('s_mov_b64 s[%d:%d], s[%d:%d]' % (st + 4, st + 5, st + 6, st + 7))
    wsrd()
    s('v_mov_b32 v%d, s%d' % (a, st + 4)); s('v_mov_b32 v%d, s%d' % (b, st + 5))
    s('s_mul_i32 s%d, s2, %d' % (st + 4, o.stamps * 8))
    s('s_add_u32 s%d, s%d, 0x%x' % (st + 4, st + 4, WS_BYTES - 256 * o.stamps * 8 + idx * 8)); s('s_nop 0')
    s('buffer_store_dwordx2 v[%d:%d], off, s[%d:%d], s%d' % (a, b, st, st + 3, st + 4))

def dma(voff, srd, soff, imm, pol, tag, lo, n=16384):
    return I('buffer_load_dwordx4 v%d, s[%d:%d], s%d offen offset:%d %s lds' % (voff, srd, srd + 3, soff, imm, pol), tag=tag, lds=(lo, lo + n, tag))
def grp4(pre, mk, post=()):
    out = []
    for t in range(4):
        g = list(pre) if t == 0 else []
        g.append(mk(t))
        if t == 3: g += list(post)
        out.append(g)
    return out
def dma_x(o, m):
    buf = XBUF(m)
    out = [[I('s_add_u32 m0, s%d, 0x%x' % (sW1K, buf + 4096 * j)), I('s_add_u32 s%d, s%d, 0x%x' % (sA, sXO, 32768 * j)),
            dma(DX, SX, sA, 0, o.w_pol, 'x%d' % m, buf, 20480)] for j in range(5)]
    out[4] += [I('s_add_u32 s%d, s%d, 128' % (sXO, sXO)), I('s_and_b32 s%d, s%d, 0x3ff' % (sXO, sXO))]
    return out
def dma_wq(o, n):
    b = WAD(n)
    return grp4([I('s_add_u32 m0, s%d, 0x%x' % (sMK, b)), I('s_nop 0')],
                lambda t: dma(DWQ + t, SWQ, sWQO, 1024 * t, o.w_pol, 'wq%d' % n, b),
                [I('s_add_u32 s%d, s%d, 0x40000' % (sWQO, sWQO)), I('s_and_b32 s%d, s%d, 0x3fffff' % (sWQO, sWQO))])
def stage_ld(o, kind):
    srd_, r = (SK, STG) if kind == 'K' else (SV, STG + 16)
    vo = (lambda t: DK + t) if kind == 'K' else (lambda t: DV + (t & 1))
    return [[I('buffer_load_dwordx4 %s, v%d, s[%d:%d], s%d offen offset:%d %s' % (ar(r + 4 * t, 4), vo(t), srd_, srd_ + 3, sO5, 1024 * t, o.kv_pol))] for t in range(4)]
def stage_wr(o, kind):
    b, r, ad = (KAD(5), STG, 139) if kind == 'K' else (VAD(5), STG + 16, 143)
    out = [[I('ds_write_b128 v%d, %s offset:%d' % (ad, ar(r + 4 * t, 4), 1024 * t), lds=(b, b + 16384, '%s5' % kind))] for t in range(4)]
    out[0].insert(0, Wait(regs=regs('a', r, 16)))
    return out
def dma_kv(o, kind, j):
    b, so, srd_ = (KAD(j), sOK, SK) if kind == 'K' else (VAD(j), sOV, SV)
    vo = (lambda t: DK + t) if kind == 'K' else (lambda t: DV + (t & 1))
    return grp4([I('s_add_u32 s%d, s%d, 0x%x' % (so, so, 0x4000 if (o.stage and j == 6) else 0x2000)), I('s_add_u32 m0, s%d, 0x%x' % (sMK, b)), I('s_and_b32 s%d, s%d, 0x3ffff' % (so, so))],
                lambda t: dma(vo(t), srd_, so, 1024 * t, o.kv_pol, '%s%d' % (kind, j), b))
KVSEQ = [(k, j) for j in range(32) for k in 'KV']
def dma_wo(o, u):
    c, phi, dh = u >> 2, (u >> 1) & 1, u & 1
    b = OSLOT[u % 8]
    return grp4([I('s_lshl_b32 s%d, s%d, 2' % (sB, sMK)), I('s_add_u32 s%d, s%d, s%d' % (sB, sB, sCW + c)),
                 I('s_add_u32 m0, s%d, 0x%x' % (sMK, b)), I('s_add_u32 s%d, s%d, 0x%x' % (sB, sB, 65536 * dh))],
                lambda t: dma(DWO + 4 * phi + t, SWO, sB, 1024 * t, o.w_pol, 'wo%d' % u, b))
def capped(o, groups, j=0):
    if not o.cap: return groups
    out = []
    for g in groups:
        k = [i for i, x in enumerate(g) if x.kind == 'dma'][0]
        if j >= o.tl: out.append(g[:k] + [I('s_waitcnt vmcnt(%d)' % o.capl)] + g[k:])
        elif o.cap2:
            lo = I('s_waitcnt vmcnt(%d)' % o.cap); lo.kind = 'other'
            out.append(g[:k] + [I('s_waitcnt vmcnt(%d)' % o.cap2), I('s_cbranch_vccnz 1'), lo] + g[k:])
        else: out.append(g[:k] + [I('s_waitcnt vmcnt(%d)' % (o.cap - (1 if o.capalt and (4 * j + len(out)) % o.capalt == 0 else 0)))] + g[k:])
    return out

def rd_k(j):
    b = KAD(j)
    areg, imm = (KA, b) if b < 65536 else (KA2, b - 65536)
    return [I('ds_read_b128 %s, v%d offset:%d' % (ar(KB + 4 * (4 * kb + s), 4), areg + s, imm + 4096 * kb), lds=(b, b + 16384, 'K%d' % j))
            for s in range(4) for kb in range(2)]
def rd_tr(dst, b, tag):
    areg, imm = (VA, b - V0) if b >= V0 else (VA2, 0)
    return [I('ds_read_b64_tr_b16 %s, v%d offset:%d' % (ar(dst + 4 * d + 2 * e, 2), areg + d, imm + 4096 * e), lds=(b, b + 16384, tag))
            for d in range(8) for e in range(2)]
def rd_v(dst, j): return rd_tr(dst, VAD(j), 'V%d' % j)

def spread(items, gaps):
    d = {g: [] for g in gaps}
    n, m = len(items), len(gaps)
    for i, it in enumerate(items): d[gaps[i * m // n]].append(it)
    return d
def srd(s, r, lo, hi, off, size):
    if off is None: s('s_mov_b32 s%d, s%d' % (r, lo)); s('s_mov_b32 s%d, s%d' % (r + 1, hi))
    else: s('s_add_u32 s%d, s%d, s%d' % (r, lo, off)); s('s_addc_u32 s%d, s%d, 0' % (r + 1, hi))
    if size is not None: s('s_mov_b32 s%d, 0x%x' % (r + 2, size))
    s('s_mov_b32 s%d, 0x20000' % (r + 3))
def kv_start(s, o):
    s('s_mul_i32 s3, s%d, 0x%x' % (sP, 8192 * o.rotp)); s('s_lshl_b32 s36, s%d, 12' % sHF); s('s_add_u32 s3, s3, s36')
    s('s_sub_u32 s%d, s3, 0x2000' % sOK); s('s_mov_b32 s%d, s%d' % (sOV, sOK))
    if o.stage: s('s_add_u32 s%d, s3, 0xa000' % sO5)

def gen_entry(o):
    s = Seg('entry')
    if o.stamps and not o.dbgst: s('%s s[%d:%d]' % (clk(o), sST + 6, sST + 7))
    s('s_cmp_ge_u32 s2, 256')
    s('s_cbranch_scc1 L_done')
    s('v_mov_b32 v64, v0')
    s('s_and_b32 s3, s2, 7')
    s('s_lshr_b32 s36, s2, 3')
    if o.par: s('s_and_b32 s37, s3, 1'); s('s_lshr_b32 s38, s3, 1')
    else: s('s_lshr_b32 s37, s3, 2'); s('s_and_b32 s38, s3, 3')
    s('s_mul_i32 s3, s37, 40'); s('s_add_u32 s42, s0, s3'); s('s_addc_u32 s43, s1, 0')
    s('''s_load_dwordx8 s[44:51], s[42:43], 0
         s_load_dwordx2 s[52:53], s[42:43], 32
         s_load_dwordx2 s[40:41], s[0:1], 96
         s_load_dwordx4 s[92:95], s[0:1], 80''')
    if o.codepf:
        s('s_getpc_b64 s[62:63]')
        s.label('L_pc')
        s('v_lshrrev_b32 v71, 2, v64'); s('v_and_b32 v71, 0x30, v71'); s('v_and_b32 v72, 15, v64'); s('v_or_b32 v71, v71, v72')
        s('s_and_b32 s3, s36, 15'); s('s_lshl_b32 s3, s3, 6')
        s('v_add_lshl_u32 v71, s3, v71, 7')
        s('v_min_u32 v71, L_code_end-L_pc-4, v71')
        s('global_load_dword v%d, v71, s[62:63]' % DUM, dummy=True)
    s('''s_lshl_b32 s38, s38, 2
         s_and_b32 s39, s36, 3
         s_or_b32 s38, s38, s39
         s_lshr_b32 s39, s36, 2''')
    s('v_lshrrev_b32 v71, 6, v64')
    s('v_and_b32 v65, 63, v64')
    s('v_readfirstlane_b32 s%d, v71' % sW)
    s('v_lshrrev_b32 v66, 4, v65')
    s('v_and_b32 v67, 15, v65')
    s('v_and_b32 v69, 7, v65')
    s('s_lshl_b32 s%d, s%d, 10' % (sW1K, sW))
    s('s_lshl_b32 s%d, s%d, 12' % (sMK, sW))
    s('s_lshr_b32 s%d, s%d, 1' % (sP, sW))
    s('s_and_b32 s%d, s%d, 1' % (sHF, sW))
    s('s_lshl_b32 s3, s%d, 2' % sHF)
    s('v_add_u32 v73, s3, v66')
    s('v_xor_b32 v69, v73, v69')
    s('v_lshlrev_b32 v69, 4, v69')
    s('v_lshrrev_b32 v68, 3, v64')
    s('v_lshl_add_u32 v%d, v68, 10, v69' % DX)
    s('v_lshlrev_b32 v70, 1, v66')
    s('v_xor_b32 v70, v70, v67')
    s('v_lshlrev_b32 v70, 4, v70')
    s('v_lshl_add_u32 v68, v73, 13, v70')
    s('s_lshl_b32 s3, s%d, 8' % sP)
    s('v_add_u32 v%d, s3, v68' % DWQ)
    s('v_xor_b32 v68, 0x80, v%d' % DWQ)
    s('v_add_u32 v%d, 0x%x, v68' % (DWQ + 1, 64512))
    s('v_add_u32 v%d, 0x%x, v%d' % (DWQ + 2, 2 * 64512, DWQ))
    s('v_add_u32 v%d, 0x%x, v68' % (DWQ + 3, 3 * 64512))
    s('s_and_b32 s3, s38, 3'); s('s_lshl_b32 s3, s3, 1'); s('s_add_u32 s3, s3, s39'); s('s_and_b32 s3, s3, 7')
    s('s_lshl_b32 s%d, s3, 7' % sXO); s('s_lshl_b32 s%d, s3, 19' % sWQO)
    s('s_mul_i32 s3, s39, 163840'); s('s_lshl_b32 s36, s38, 9')
    s('s_waitcnt lgkmcnt(0)')
    srd(s, SX, 44, 45, 3, 163840)
    srd(s, SWQ, 50, 51, 36, None); s('s_sub_u32 s%d, 0x400000, s36' % (SWQ + 2))
    for g in dma_x(o, 0) + dma_wq(o, 0) + dma_wq(o, 1): s.add(g)
    srd(s, SD, 94, 95, None, 256)
    stamp(s, o, 0)
    s('v_lshlrev_b32 v%d, 4, v65' % LANE16)
    urgent = s
    if o.defer: s = Seg('deferred')
    s('s_mov_b32 s3, 0x%x' % (INB if o.loc < 0 else 0)); srd(s, SF, sWS, sWS + 1, 3, 65536 + 4096)
    s('s_lshl_b32 s%d, s37, 3' % sG); s('s_add_u32 s%d, s%d, s39' % (sG, sG))
    s('s_lshl_b32 s36, s%d, 4' % sG); s('s_add_u32 s36, s36, s38')
    s('s_min_u32 s3, s%d, 1' % sW); s('s_lshl_b32 s3, s3, 30')
    s('s_lshl_b32 s62, s36, 8'); s('s_add_u32 s62, s62, s3')
    s('v_lshlrev_b32 v72, 2, v65'); s('v_add_u32 v73, s62, v72'); s('v_mov_b32 v74, 0')
    s('buffer_store_dword v74, v73, s[%d:%d], 0 offen %s' % (SF, SF + 3, o.fl_pol), tag='clr')
    if o.dyn:
        s('s_lshl_b32 s3, s%d, 8' % sG); s('s_add_u32 s3, s3, 0x10000'); s('s_min_u32 s62, s38, 1'); s('s_lshl_b32 s62, s62, 30'); s('s_add_u32 s3, s3, s62')
        s('v_lshrrev_b32 v73, 1, v64'); s('v_min_u32 v73, 1, v73'); s('v_lshlrev_b32 v73, 29, v73'); s('v_lshl_add_u32 v73, v64, 7, v73'); s('v_add_u32 v73, s3, v73')
        s('buffer_store_dword v74, v73, s[%d:%d], 0 offen %s' % (SF, SF + 3, o.fl_pol))
    if o.loc < 0:
        s('s_mul_i32 s3, s36, %d' % PST); srd(s, SP_, sWS, sWS + 1, 3, 163840)
        s('s_mul_i32 s3, s%d, %d' % (sG, 16 * PST)); srd(s, SG, sWS, sWS + 1, 3, 16 * PST)
    else:
        s('s_lshl_b32 s3, s%d, 23' % sG); s('s_add_u32 s3, s3, 0x41ffff')
        srd(s, SG, sWS, sWS + 1, 3, 1 << 23); s('s_and_b32 s%d, s%d, 0xffc00000' % (SG, SG))
        s('s_lshr_b32 s3, s38, 3'); s('s_lshl_b32 s3, s3, 22'); s('s_and_b32 s62, s38, 7'); s('s_lshl_b32 s62, s62, 18'); s('s_add_u32 s3, s3, s62')
        srd(s, SP_, SG, SG + 1, 3, 1 << 18)
        s('s_mov_b32 s%d, 0' % sSW)
        if o.loc < 2:
            s('s_getreg_b32 s3, hwreg(HW_REG_XCC_ID)'); s('s_bfe_u32 s3, s3, 0x10002'); s('s_xor_b32 s%d, s3, %d' % (sH, o.loc))
        else:
            s('s_lshl_b32 s3, s%d, 8' % sW); s('s_add_u32 s62, s%d, s3' % SP_); s('s_addc_u32 s63, s%d, 0' % (SP_ + 1))
            s('s_load_dword s3, s[62:63], 0x1000'); s('s_waitcnt lgkmcnt(0)')
            s('s_mov_b32 s68, 0x5bd1e995')
            for txt in ('s_load_dword s69, s[62:63], 0x2000', 's_load_dword s68, s[62:63], 0', 's_waitcnt lgkmcnt(1)', 's_mov_b32 s3, s68', 's_waitcnt lgkmcnt(0)'):
                it = I(txt); it.kind = 'other'; s.add(it)
            s('s_cmp_eq_u32 s3, 0x5bd1e995'); s('s_cselect_b32 s%d, 1, 0' % sH)
    s('''s_lshl_b32 s3, s39, 4
         s_add_u32 s3, s3, s38
         s_lshl_b32 s3, s3, 1
         s_add_u32 s3, s3, s%d
         s_lshl_b32 s3, s3, 18''' % sP)
    srd(s, SK, 46, 47, 3, 0x40000); srd(s, SV, 48, 49, 3, 0x40000)
    s('s_lshl_b32 s3, s38, 18'); srd(s, SWO, 52, 53, 3, 0x40000)
    srd(s, SO, 92, 93, None, 8 * 160 * 2048)
    kv_start(s, o)
    for c in range(4):
        if o.rotc: s('s_add_u32 s3, s39, %d' % c); s('s_and_b32 s3, s3, 3')
        else: s('s_mov_b32 s3, %d' % c)
        s('s_lshl_b32 s%d, s3, 7' % (sCW + c)); s('s_mul_i32 s%d, s3, %d' % (sCP + c, 20480 if o.loc < 0 else 32768))
    c = math.log2(math.e) / math.sqrt(128.0)
    s('s_mov_b32 s%d, 0x%x' % (sC, f2u(c))); s('s_mov_b32 s%d, 0x%x' % (sC + 1, f2u(c)))
    s('s_mov_b32 s%d, 0x%x' % (sTHR, f2u(2.0 ** 24 if not o.force_redo else 1.0)))
    s('s_mov_b32 s%d, 0' % sREDO)
    s('s_lshl_b32 s3, s%d, 12' % sG); s('s_lshl_b32 s36, s38, 4'); s('s_add_u32 s3, s3, s36')
    s('s_lshl_b32 s36, s%d, 2' % sW); s('s_add_u32 s3, s3, s36')
    s('v_lshlrev_b32 v68, 8, v67'); s('v_add_u32 v68, s3, v68')
    s('v_and_b32 v69, %d, v65' % (48 | (16 // o.rep - 1))); s('v_min_u32 v69, 1, v69'); s('v_lshl_add_u32 v%d, v69, 30, v68' % FLA)
    s('v_min_u32 v69, 1, v64'); s('v_lshlrev_b32 v69, 30, v69'); s('s_lshl_b32 s3, s%d, 3' % sG); s('s_add_u32 s3, s3, 128'); s('v_add_u32 v%d, s3, v69' % CA)
    s('v_mov_b32 v%d, 1' % CNT)
    s('v_xor_b32 v68, v66, v67'); s('v_lshlrev_b32 v68, 4, v68')
    s('v_lshl_add_u32 v%d, v66, 8, v68' % DK)
    for t in range(1, 4): s('v_xor_b32 v%d, %d, v%d' % (DK + t, 64 * t, DK))
    s('v_lshl_add_u32 v%d, v66, 8, v70' % DV)
    s('v_xor_b32 v%d, 0x80, v%d' % (DV + 1, DV))
    s('v_lshl_add_u32 v68, v67, 8, v68')
    s('s_lshl_b32 s36, s%d, 13' % sP)
    s('v_add_u32 v%d, s36, v68' % KA)
    for k in range(1, 4): s('v_xor_b32 v%d, %d, v%d' % (KA + k, 64 * k, KA))
    for k in range(4): s('v_add_u32 v%d, 0x10000, v%d' % (KA2 + k, KA + k))
    late, s = s, urgent
    s('s_lshl_b32 s36, s%d, 13' % sP)
    s('v_lshrrev_b32 v68, 1, v67'); s('v_xor_b32 v68, v68, v66'); s('v_lshlrev_b32 v68, 4, v68')
    s('v_lshl_add_u32 v68, v67, 7, v68')
    s('s_mul_i32 s3, s%d, 10240' % sHF)
    s('v_add_u32 v%d, s3, v68' % XAD)
    s('v_xor_b32 v%d, 64, v%d' % (XAD + 1, XAD))
    s('v_lshrrev_b32 v68, 2, v65')
    s('v_and_b32 v69, 7, v68')
    s('v_lshlrev_b32 v69, 5, v69')
    s('v_lshl_add_u32 v69, v68, 8, v69')
    s('v_and_b32 v68, 3, v65')
    s('v_lshl_add_u32 v69, v68, 3, v69')
    s('s_add_u32 s36, s36, 0x%x' % V0)
    s('v_add_u32 v%d, s36, v69' % VA)
    for k in range(1, 8): s('v_xor_b32 v%d, %d, v%d' % (VA + k, 32 * k, VA))
    for k in range(8): s('v_subrev_u32 v%d, 0x4000, v%d' % (VA2 + k, VA + k))
    if o.stage:
        s('s_add_u32 s3, s%d, 0x%x' % (sMK, KAD(5))); s('v_add_u32 v139, s3, v%d' % LANE16)
        s('s_add_u32 s3, s%d, 0x%x' % (sMK, VAD(5))); s('v_add_u32 v143, s3, v%d' % LANE16)
    stamp(s, o, 1)
    o.deferred = late.items if o.defer else []
    return s

def is_vm(g): return any(x.kind in ('dma', 'vst', 'vld') for x in g)
class Pace: since = 99; slots = 0
class Atomic(list): pass
barrier_hooks = []
def gemm_kstep(s, mf, need, reads, barrier, extra, every=1, vq=None, pack=False):
    n = len(mf)
    rg = list(range(2, 2 + (len(reads) + 1) // 2)) if (n <= 20 or pack) else list(range(2, 2 + len(reads)))
    rd = spread(reads, rg) if reads else {}
    part = False
    for g in range(n):
        if g == 0: s.wait(regs=need)
        s.add(mf[g])
        if g == 1 and barrier is not None:
            s.wait(**barrier)
            s('s_barrier')
            for f in barrier_hooks: f()
            del barrier_hooks[:]
        s.add(rd.get(g, []))
        Pace.since += 1
        busy = len(rd.get(g, []))
        if Pace.slots:
            free = 2 - busy - (2 if (g == 1 and barrier is not None) else 0)
            m0_fresh = False
            while free > 0:
                q = vq if vq else None
                if q is not None:
                    head = [x for x in q[0] if not (x.kind == 'nop')]
                    vm = head[0].kind in ('dma', 'vst', 'vld')
                    if vm and (Pace.since < every or m0_fresh): q = None
                if q is None:
                    while extra and extra[0] == [] and free == 2 - busy:
                        extra.pop(0); free = 0
                    if free <= 0 or not extra or extra[0] == []: break
                    q = extra
                    if isinstance(q[0], Atomic):
                        s.add(list(q.pop(0))); free -= 2; m0_fresh = False
                        continue
                    head = list(q[0])
                    vm = False
                it = head.pop(0)
                s.add(it)
                if it.kind != 'label': free -= 1
                if vm: Pace.since = 0
                m0_fresh = it.kind == 'salu' and ('m0', 0) in it.wr
                if q is extra: part = bool(head)
                if head: q[0] = head
                else: q.pop(0)
            if g == n - 1 and part: s.add(extra.pop(0))
        elif vq and Pace.since >= every and busy < (1 if pack else 2):
            s.add(vq.pop(0)); Pace.since = 0
        elif extra and busy < 2 and (not is_vm(extra[0]) or Pace.since >= every):
            if is_vm(extra[0]): Pace.since = 0
            s.add(extra.pop(0))

def qconv_stream(o):
    c = sr(sC, 2)
    items = [(j, sidx) for j in range(5) for sidx in range(4)]
    tq = lambda i: 60 + 4 * (i % 4)
    def st1(i):
        j, sidx = items[i]; out = []
        for e in range(2):
            b = qacc(2 * sidx + e, j)
            if (o.qpk == 1 and (i < 3 or (i >= 8 and i % 4 == 0))) or o.qpk == 2: out += [I('v_mul_f32 v%d, s%d, v%d' % (b + k, sC, b + k)) for k in range(4)]
            else: out += [I('v_pk_mul_f32 %s, %s, %s' % (vr(b, 2), vr(b, 2), c)), I('v_pk_mul_f32 %s, %s, %s' % (vr(b + 2, 2), vr(b + 2, 2), c))]
        for e in range(2):
            b = qacc(2 * sidx + e, j)
            out += [I('v_cvt_pk_bf16_f32 v%d, v%d, v%d' % (tq(i) + 2 * e, b, b + 1)), I('v_cvt_pk_bf16_f32 v%d, v%d, v%d' % (tq(i) + 2 * e + 1, b + 2, b + 3))]
        return out
    sw = lambda op, i: [I('%s v%d, v%d' % (op, tq(i), tq(i) + 2)), I('%s v%d, v%d' % (op, tq(i) + 1, tq(i) + 3))]
    def st4(i):
        j, sidx = items[i]
        return [I('v_accvgpr_write_b32 a%d, v%d' % (Q + 16 * j + 4 * sidx + k, tq(i) + k)) for k in range(4)]
    n = len(items)
    rounds = []
    for i in range(n + 3):
        r = st1(i) if i < n else [I('s_nop 1')]
        if 0 <= i - 3 < n: r += st4(i - 3)
        if 0 <= i - 2 < n: r += sw('v_permlane16_swap_b32', i - 2)
        if 0 <= i - 1 < n: r += sw('v_permlane32_swap_b32', i - 1)
        rounds.append(r)
    return rounds

def gen_q(o):
    s = Seg('qphase')
    def reads_for(n):
        buf = n & 1
        w = rd_tr(KB + 32 * buf, WAD(n), 'wq%d' % n)
        xb = XBUF(n >> 1)
        x = [I('ds_read_b128 %s, v%d offset:%d' % (ar(XF + 20 * buf + 4 * j, 4), XAD + (n & 1), xb + 2048 * j), lds=(xb, xb + 20480, 'x%d' % (n >> 1))) for j in range(5)]
        return x + w
    if o.x1e: s.add(dma_x(o, 1))
    if o.x1e > 1: s.add(dma_wq(o, 2))
    s.wait(tags=['x0', 'wq0'])
    s('s_barrier')
    stamp(s, o, 2)
    s.add(reads_for(0))
    vq = (dma_wq(o, 2) if o.x1e < 2 else []) + (dma_x(o, 1) if not o.x1e else [])
    kv = [dma_kv(o, k, j) for k, j in KVSEQ[:o.ninit]]
    rounds = qconv_stream(o)
    for n in range(16):
        buf = n & 1
        tstamp(s, o, 'q', n)
        if n == 0: tstamp(s, o, 'w', 0)
        order = [(db, j) for db in range(8) for j in range(5)] if n < 15 else [(db, j) for j in range(5) for db in range(8)]
        mf = []
        for db, j in order:
            d = vr(qacc(db, j), 4)
            mf.append(mfma(d, ar(KB + 32 * buf + 4 * db, 4), ar(XF + 20 * buf + 4 * j, 4), '0' if n == 0 else d))
        m = n + 1
        tags = []
        if m < 16:
            tags = ['wq%d' % m]
            if m % 2 == 0: tags.append('x%d' % (m >> 1))
        else: tags = ['K0']
        new = []
        if m + 2 < 16: new += dma_wq(o, m + 2)
        if m % 2 == 0 and m // 2 + 1 < 8: new += dma_x(o, m // 2 + 1)
        for _ in range(o.kvat_l.count(m)): new += kv.pop(0)
        if o.stage and m in o.stat_l: new += stage_ld(o, 'KV'[o.stat_l.index(m)])
        if m == 14: new += kv.pop(0) + kv.pop(0)
        if m == 16: new += kv.pop(0)
        barrier_hooks.append(lambda new=new: vq.extend(new))
        extra = []
        if n == 0:
            dfr = []
            for x in o.deferred:
                if x.mn == 's_addc_u32': dfr[-1] = Atomic(dfr[-1] + [x])
                else: dfr.append([x])
        if n < 4: extra = dfr
        if n == 3: tailx = extra
        if n == 4:
            for g in dfr: s.add(list(g))
        if n == 15:
            head = sum(rounds[:3], []); del rounds[:3]
            extra = [[]] * 10 + [head[i:i + 2] for i in range(0, len(head), 2)]
        gemm_kstep(s, mf, regs('a', KB + 32 * buf, 32) + regs('a', XF + 20 * buf, 20), reads_for(m) if m < 16 else rd_k(0), dict(tags=tags), extra, o.qevery, vq, o.qpack)
    assert not vq
    for g in extra: s.add(g)
    stamp(s, o, 3)
    kvq = sum(kv, [])
    if o.qcap:
        for i_, g in enumerate(kvq):
            k = [i for i, x in enumerate(g) if x.kind == 'dma'][0]
            kvq[i_] = g[:k] + [I('s_waitcnt vmcnt(%d)' % o.qcap)] + g[k:]
    qk = qk_list(False)
    mx = []
    for j in range(4):
        t = Seg('t'); max8(t, j, MX + j, False); mx.append(t.items)
    done = 3
    pend = []
    first = True
    for r in rounds:
        if kvq: s.add(kvq.pop(0))
        k = 0
        for it in r:
            s.add(it); k += 1
            if pend and k % 2 == 0:
                if first: s.wait(regs=regs('a', KB, 32)); first = False
                s.add(pend.pop(0))
        done += 1
        if done >= 8 and (done - 8) % 4 == 0:
            j = (done - 8) // 4
            pend += qk[8 * j:8 * j + 8]
            if j >= 1: s.add(mx[j - 1])
    s('s_nop 0')
    for i, it in enumerate(qk[32:40]):
        s.add(it)
        if i in (2, 3, 4, 5): s.add(mx[3][i - 2])
    assert not pend
    s.add(kvq)
    s('s_nop 6')
    max8(s, 4, MX + 4, False)
    set_nm(s)
    for j in range(5):
        for i in range(0, 8, 2): s('v_pk_add_f32 %s, %s, %s' % (vr(S + 8 * j + i, 2), vr(S + 8 * j + i, 2), vr(NM + 4 * j, 2)))
    stamp(s, o, 4)
    return s

def qk_list(cinit):
    out = []
    for j in range(5):
        for r in range(8):
            kb, sidx = r & 1, r >> 1
            d = vr(S + 8 * j + 4 * kb, 4)
            cc = d if sidx else (vr(NM + 4 * j, 4) if cinit else '0')
            out.append(mfma(d, ar(KB + 4 * (4 * kb + sidx), 4), ar(Q + 16 * j + 4 * sidx, 4), cc))
    return out
def pv_list(o, par, vb, zero=False):
    out = []
    for j in range(5):
        pj = vr(P + 20 * par + 4 * j, 4)
        out += [mfma(oreg(j, db), ar(vb + 4 * db, 4), pj, '0' if zero else oreg(j, db)) for db in range(8)]
        if o.lsum: out.append(mfma(ar(LS + 4 * j, 4), ar(ONES, 4), pj, '0' if zero else ar(LS + 4 * j, 4)))
    return out
def rowred(s, regs_, tmps, op):
    for sw in ('v_permlane32_swap_b32', 'v_permlane16_swap_b32'):
        for r, t in zip(regs_, tmps): s('v_mov_b32 v%d, v%d' % (t, r))
        for r, t in zip(regs_, tmps): s('%s v%d, v%d' % (sw, t, r))
        for r, t in zip(regs_, tmps): s('%s v%d, v%d, v%d' % (op, r, r, t))
def max8(s, j, m, acc):
    b = S + 8 * j
    if acc: s('v_max3_f32 v%d, v%d, v%d, v%d' % (m, m, b, b + 1))
    else: s('v_max_f32 v%d, v%d, v%d' % (m, b, b + 1))
    for i in range(1, 4): s('v_max3_f32 v%d, v%d, v%d, v%d' % (m, m, b + 2 * i, b + 2 * i + 1))
MX, MT = L, 48
def set_nm(s):
    rowred(s, [MX + j for j in range(5)], [MT + j for j in range(5)], 'v_max_f32')
    for j in range(5): s('v_sub_f32 v%d, 0, v%d' % (NM + 4 * j, MX + j))
    for j in range(5):
        for i in range(1, 4): s('v_mov_b32 v%d, v%d' % (NM + 4 * j + i, NM + 4 * j))

def sm_exp(i): return I('v_exp_f32 v%d, v%d' % (S + i, S + i))
def sm_post(o, i, par):
    j = i >> 3
    out = [] if o.lsum else [I('v_add_f32 v%d, v%d, v%d' % (L + j, L + j, S + i))]
    if i & 1: out.append(I('v_cvt_pk_bf16_f32 v%d, v%d, v%d' % (P + 20 * par + 4 * j + ((i & 7) >> 1), S + i - 1, S + i)))
    return out
def sm_gap(o, G, par):
    if o.lsum:
        if G >= 40:
            if (G - 40) % 9 == 8: return []
            G -= (G - 40) // 9
    x = G - 12
    if x < 0: x += 80; par ^= 1
    i = x >> 1
    return [sm_exp(i)] if x % 2 == 0 else sm_post(o, i, par)

def kv_schedule(o):
    q = [(k, j, g) for k, j in KVSEQ[o.ninit + 2 * o.stage:] for g in capped(o, dma_kv(o, k, j), j)]
    free = lambda kind, j: 2 * (j - 5) + 1 if kind == 'K' else 2 * (j - 4) + 1
    sched = {h: [] for h in range(1, 64)}
    n = len(q)
    slow = max(0, 4 * o.lasth - n)
    h, i = 1, 0
    while i < n:
        cap = 4
        h0 = 2 * o.stage
        if o.hold:
            if h <= o.hold: i0 = i + 4
            else: cap = min(4, max(0, i0 + ((n - i0) * (h - o.hold) + o.lasth - o.hold - 1) // (o.lasth - o.hold) - i))
        elif o.uni: cap = min(4, max(0, (n * (h - h0) + o.lasth - h0 - 1) // (o.lasth - h0) - i))
        elif slow > 0: cap = 3
        k = 0
        while k < cap and i < n and free(q[i][0], q[i][1]) <= h:
            sched[h].append(q[i][2]); i += 1; k += 1
        slow -= 4 - k
        h += 1
    if o.stage:
        assert o.ninit == 10
        sched[1] = stage_wr(o, 'K') + sched[1]
        sched[3] = stage_wr(o, 'V') + sched[3]
    return sched

def gen_s0(o):
    s = Seg('s0')
    s.label('L_s0')
    if o.lsum:
        s('v_mov_b32 v%d, 0x3f803f80' % L)
        for k in range(4): s('v_accvgpr_write_b32 a%d, v%d' % (ONES + k, L))
    else:
        for j in range(5): s('v_mov_b32 v%d, 0' % (L + j))
    if o.cap2: s('s_and_b32 s3, s39, 1'); s('s_cselect_b64 vcc, -1, 0')
    s.wait(tags=['K1', 'V0'])
    s('s_barrier')
    s.add(rd_k(1))
    dm = spread(o.sched[1] + [[I('buffer_atomic_add v%d, v%d, s[%d:%d], 0 offen' % (CNT, CA, SD, SD + 3))]], [1, 8, 15, 22, 29])
    for i in range(35):
        if i < 34: s.add(sm_exp(i))
        else: s('s_nop 0')
        if i > 0: s.add(sm_post(o, i - 1, 0))
        s.add(dm.get(i, []))
    return s

def step(s, o, t, more1=(), more2=(), wtags=(), valu1=None):
    par = t & 1
    if t % 2 == 1: tstamp(s, o, 'a', t // 2)
    if t % 3 == 1: tstamp(s, o, 'w', 1 + t // 3)
    if t >= 26: tstamp(s, o, 'e', 2 * (t - 26))
    mf = qk_list(True) + pv_list(o, par ^ 1, VB, t == 1)
    NG = len(mf)
    fill = {g: [] for g in range(NG)}
    empty = [g for g in range(NG) if not sm_gap(o, g, par)]
    if o.lsum:
        g1 = [g for g in empty if g < 32]; g2 = [g for g in empty if 42 < g < NG - 8]
    else: g1, g2 = [1, 5, 9, 13, 17, 21, 25, 29], [45, 49, 53, 57, 61, 65, 69, 73]
    for g, l in spread(rd_v(VB, t - 1), g1).items(): fill[g] += l
    for g, l in spread(rd_k(t + 1) if t < 31 else rd_v(KB, 31), g2).items(): fill[g] += l
    for base, end, dm in ((4, 40, o.sched[2 * t] + list(more1)), (44, NG, o.sched[2 * t + 1] + list(more2))):
        n = len(dm)
        last = -1
        for i, g in enumerate(dm):
            pos = base + ((end - base) * i) // n
            if o.lsum:
                while len(sm_gap(o, pos, par)) + len(fill[pos]) > 1 or (sm_gap(o, pos, par) and sm_gap(o, pos, par)[0].kind == 'trans'): pos += 1
            else: pos &= ~1
            if o.split:
                k = [n_ for n_, x in enumerate(g) if x.kind in ('wait', 'dma', 'vld', 'ph', 'dsw')][0]
                lo = max(base - 3, last + 1)
                for n_ in range(k): fill[max(lo, pos - (k - n_))].append(g[n_])
                g = g[k:]
                last = pos
            fill[pos] += g
    if valu1:
        for g, l in spread(valu1, list(range(33, 40))).items(): fill[g] += l
    for g in range(NG):
        if g == 0: s.wait(regs=regs('a', KB, 32))
        if g == 40:
            if t >= 26: tstamp(s, o, 'e', 2 * (t - 26) + 1)
            s.wait(regs=regs('a', VB, 32))
        s.add(mf[g])
        if g == 40:
            s.wait(tags=(['K%d' % (t + 1)] if t < 31 else []) + ['V%d' % t] + list(wtags))
            s('s_barrier')
        s.add(sm_gap(o, g, par))
        s.add(fill[g])

def gen_attn(o):
    s = Seg('attn')
    pre = Seg('t')
    t0 = DWO
    pre('v_lshrrev_b32 v%d, 8, v%d' % (t0 + 1, DV))
    pre('v_and_b32 v%d, 0x70, v%d' % (t0, DV))
    pre('v_lshl_add_u32 v%d, v%d, 10, v%d' % (t0, t0 + 1, t0))
    pre('v_bfe_u32 v%d, v%d, 7, 1' % (t0 + 1, DV))
    pre('v_mul_u32_u24 v%d, 0x20200, v%d' % (t0 + 1, t0 + 1))
    pre('v_add_u32 v%d, v%d, v%d' % (t0, t0, t0 + 1))
    pre('v_xor_b32 v%d, 0x20200, v%d' % (t0 + 1, t0))
    pre('v_add_u32 v%d, %d, v%d' % (t0 + 2, 2 * 3072, t0))
    pre('v_add_u32 v%d, %d, v%d' % (t0 + 3, 3 * 3072, t0 + 1))
    pre('v_add_u32 v%d, %d, v%d' % (t0 + 1, 3072, t0 + 1))
    for t in range(4): pre('v_xor_b32 v%d, 0x20000, v%d' % (t0 + 4 + t, t0 + t))
    cnt = [[I('s_lshl_b32 s%d, s%d, 3' % (sA, sG)), I('buffer_load_dword v%d, off, s[%d:%d], s%d offset:128 sc1' % (CNT, SD, SD + 3, sA), tag='cnt')]]
    if o.wocap:
        dwo0 = dma_wo
        def dma_wo_(o_, u):
            out = []
            for g in dwo0(o_, u):
                k = [i for i, x in enumerate(g) if x.kind == 'dma'][0]
                out.append(g[:k] + [I('s_waitcnt vmcnt(%d)' % o.wocap)] + g[k:])
            return out
    else: dma_wo_ = dma_wo
    busy = lambda h: any(o.sched[x] for x in range(h, 64))
    early0 = not busy(59)
    for t in range(1, 32):
        if t == 29: step(s, o, t, valu1=pre.items, more2=dma_wo_(o, 0) if early0 else [])
        elif t == 30: step(s, o, t, more2=cnt + ([] if early0 else dma_wo_(o, 0)) + dma_wo_(o, 1) + (dma_wo_(o, 2) if early0 else []))
        elif t == 31: step(s, o, t, more1=[] if early0 else dma_wo_(o, 2), more2=dma_wo_(o, 3), wtags=['cnt'])
        else: step(s, o, t)
        if t == 26 and o.pfo:
            s('v_lshlrev_b32 v%d, 3, v%d' % (CA, LANE16))
            s('s_lshl_b32 s3, s39, 15'); s('s_lshl_b32 s36, s%d, 13' % sW); s('s_add_u32 s3, s3, s36')
            s('buffer_load_dword v%d, v%d, s[%d:%d], s3 offen' % (CA + 1, CA, SWO, SWO + 3), dummy=True)
    return s

def gen_epi(o):
    s = Seg('epi')
    R = NM
    v = Seg('t')
    def inv(j):
        if o.lsum: v('v_accvgpr_read_b32 v%d, a%d' % (L + j, LS + 4 * j))
        v('v_cmp_nge_f32 %s, s%d, v%d' % (sr(sM0 if j == 0 else sM1, 2), sTHR, L + j))
        v('v_rcp_f32 v%d, v%d' % (R + 2 * j, L + j))
        if j: v('s_or_b64 %s, %s, %s' % (sr(sM0, 2), sr(sM0, 2), sr(sM1, 2)))
        else: v('s_nop 0')
        v('v_mov_b32 v%d, v%d' % (R + 2 * j + 1, R + 2 * j))
    if not o.lsum:
        rowred(v, [L + j for j in range(5)], [90 + j for j in range(5)], 'v_add_f32')
        for j in range(5): inv(j)
    def vote():
        v('s_cmp_lg_u64 %s, 0' % sr(sM0, 2))
        v('s_cselect_b32 s3, 1, 0')
        v('v_mov_b32 v95, s3')
        v('s_lshl_b32 s3, s%d, 2' % sW); v('s_add_u32 s3, s3, 0x%x' % FLG)
        v('v_mov_b32 v96, s3')
        v('ds_write_b32 v96, v95', lds=(lambda c: (FLG, FLG + 16, ev(tg('flg'), c))))
    tg = lambda n: (lambda c: '%s%d' % (n, c.get('redo', 0)))
    v('s_mul_i32 s3, s%d, 20480' % sW); v('s_add_u32 s3, s3, 0x%x' % EX)
    v('v_add_u32 v97, s3, v%d' % LANE16)
    v('s_xor_b32 s3, s%d, 2' % sW); v('s_mul_i32 s3, s3, 20480'); v('s_add_u32 s3, s3, 0x%x' % EX)
    v('v_add_u32 v98, s3, v%d' % LANE16)
    exr = (lambda c: (EX, EX + 81920, ev(tg('ex'), c)))
    for j in range(5):
        if o.lsum: inv(j)
        if j == 4: vote()
        for sidx in range(4):
            f = 16 * j + 4 * sidx
            for e in range(2):
                k, b = otile(j, 2 * sidx + e)
                if k == 'a':
                    for i in range(4): v('v_accvgpr_read_b32 v%d, a%d' % (90 + i, b + i))
                    b = 90
                if j < o.epk:
                    for i in range(4): v('v_mul_f32 v%d, v%d, v%d' % (b + i, b + i, R + 2 * j))
                else:
                    v('v_pk_mul_f32 %s, %s, %s' % (vr(b, 2), vr(b, 2), vr(R + 2 * j, 2)))
                    v('v_pk_mul_f32 %s, %s, %s' % (vr(b + 2, 2), vr(b + 2, 2), vr(R + 2 * j, 2)))
                v('v_cvt_pk_bf16_f32 v%d, v%d, v%d' % (f + 2 * e, b, b + 1))
                v('v_cvt_pk_bf16_f32 v%d, v%d, v%d' % (f + 2 * e + 1, b + 2, b + 3))
            v('ds_write_b128 v97, %s offset:%d' % (vr(f, 4), 1024 * (4 * j + sidx)), lds=exr)
    work = v.items
    mf = pv_list(o, 1, KB)
    tstamp(s, o, 'e', 12)
    s.wait(regs=regs('a', KB, 32))
    for g in range(len(mf)):
        s.add(mf[g])
        if g == 0: s('s_barrier')
        if g < 12: s.add(sm_gap(o, g, 0))
        else: s.add(work[:o.epw]); work = work[o.epw:]
    stamp(s, o, 5); tstamp(s, o, 'e', 13)
    s.add(work)
    tstamp(s, o, 'e', 14)
    s('v_mov_b32 v96, 0x%x' % FLG)
    s.wait(lgkm_all=True, tags=['wo0'])
    s('s_barrier')
    s('ds_read_b128 v[92:95], v96', lds=(lambda c: (FLG, FLG + 16, ev(tg('flg'), c))))
    s('s_mul_i32 s3, s%d, 0x2080' % sP)
    s('v_xor_b32 v84, s3, v%d' % VA)
    for k in range(1, 4): s('v_xor_b32 v%d, %d, v84' % (84 + k, 32 * k))
    for k in range(4): s('v_subrev_u32 v%d, 0x%x, v%d' % (80 + k, V0, 84 + k))
    s('v_readfirstlane_b32 s3, v%d' % CNT)
    s.wait(regs=regs('v', 92, 4))
    s('v_or_b32 v92, v92, v93'); s('v_or3_b32 v92, v92, v94, v95')
    s('s_cmp_lt_u32 s3, 16')
    s('v_readfirstlane_b32 s36, v92')
    s('s_cbranch_scc1 L_cntspin')
    s.label('L_cntok')
    s('s_andn2_b32 s36, s36, s%d' % sREDO)
    if not o.diag: s('s_cbranch_scc1 L_redo')
    stamp(s, o, 6); tstamp(s, o, 'e', 15)
    return s

def gen_spin(s, name, back, load, cond, sCNT=sCNT):
    s.label(name)
    s('s_mov_b32 s%d, 0' % sCNT)
    s.label(name + '_l')
    s('s_sleep %d' % Pace.slp)
    s(load)
    s('s_waitcnt vmcnt(0)')
    s('s_add_u32 s%d, s%d, 1' % (sCNT, sCNT))
    s('s_cmp_gt_u32 s%d, 0x40000' % sCNT)
    s('s_cbranch_scc1 %s' % back)
    for l in cond: s(l.replace('@', name + '_l'))
    s('s_branch %s' % back)

def gen_redo(o):
    s = Seg('redo')
    s.label('L_redo')
    s('s_mov_b32 s%d, 1' % sREDO)
    s('s_waitcnt vmcnt(0) lgkmcnt(0)')
    s('s_barrier')
    t = 56
    s('v_lshrrev_b32 v%d, 4, v%d' % (t, LANE16))
    s('v_and_b32 v%d, 15, v%d' % (t + 1, t))
    s('v_and_b32 v%d, 48, v%d' % (t, t))
    s('v_lshl_add_u32 v%d, v%d, 8, v%d' % (t, t + 1, t))
    s('v_add_u32 v%d, 0x1000, v%d' % (t + 1, t))
    for j in range(5): s('v_mov_b32 v%d, 0xff800000' % (MX + j))
    s('s_mov_b32 s%d, 0' % sA)
    lp = Seg('redo_loop')
    lp.label('L_redo_loop')
    for kb in range(2):
        for k in range(4): lp('buffer_load_dwordx4 %s, v%d, s[%d:%d], s%d offen offset:%d' % (ar(KB + 4 * (4 * kb + k), 4), t + kb, SK, SK + 3, sA, 64 * k))
    lp('s_waitcnt vmcnt(0)')
    lp.add(qk_list(False))
    lp('s_nop 7')
    for j in range(5): max8(lp, j, MX + j, True)
    lp('s_add_u32 s%d, s%d, 0x2000' % (sA, sA))
    lp('s_cmp_lt_u32 s%d, 0x40000' % sA)
    lp('s_cbranch_scc1 L_redo_loop')
    e = Seg('redo_end')
    set_nm(e)
    kv_start(e, o)
    for k in range(8): e('v_subrev_u32 v%d, 0x4000, v%d' % (VA2 + k, VA + k))
    for k, j in KVSEQ[:o.ninit]: e.add(dma_kv(o, k, j))
    if o.stage: e.add(stage_ld(o, 'K') + stage_ld(o, 'V'))
    e('v_mov_b32 v%d, 0x40000000' % CA)
    e.wait(tags=['K0'])
    e('s_barrier')
    e.add(rd_k(0))
    e.wait(regs=regs('a', KB, 32))
    e.add(qk_list(True))
    e('s_nop 7')
    e('s_branch L_s0')
    return s, lp, e

E0V, E1V = 144, 0
PO = 88
AD, OD, IA, PL, C10, C01, AD2, OD2, AC, RT = 224, 225, 226, 227, 228, 229, 230, 231, 232, 248
def etile(c, jn, j): return (E1V if c & 1 else E0V) + 8 * (5 * (jn >> 1) + j) + 4 * (jn & 1)
def poll_txt(): return 'buffer_load_dword v%d, v%d, s[%d:%d], 0 offen sc1' % (PL, IA, SF, SF + 3)
def flag_ops(o, c):
    return [I('v_mov_b32 v89, %d' % (c + 1)), I('buffer_store_dword v89, v%d, s[%d:%d], 0 offen %s' % (FLA, SF, SF + 3, o.fl_pol))]
def load_groups(o, c, dst, sreg, g=SG):
    out = []
    for k in range(10):
        off, ad = (2 * PST * k, AD) if k < 8 else (8 * PST * (k - 8), AD2)
        out.append([I('s_add_u32 s%d, s%d, 0x%x' % (sreg, sCP + c, off)),
                    I('buffer_load_dwordx4 %s, v%d, s[%d:%d], s%d offen %s' % (dst(k), ad, g, g + 3, sreg, o.rd_pol))])
    return out
def red_addr(o):
    s = Seg('t')
    t = RT
    s('s_lshl_b32 s3, s%d, 4' % sG); s('s_and_b32 s62, s38, %d' % (15 & ~(16 // o.rep - 1))); s('s_add_u32 s3, s3, s62'); s('s_lshl_b32 s3, s3, 8')
    s('v_lshrrev_b32 v%d, 2, v%d' % (t, LANE16)); s('v_add_u32 v%d, s3, v%d' % (IA, t))
    s('v_lshrrev_b32 v%d, 4, v%d' % (t, LANE16))
    s('v_and_b32 v%d, 7, v%d' % (t + 2, t))
    s('s_and_b32 s3, s38, 3'); s('s_mul_i32 s63, s3, 5')
    s('s_lshr_b32 s3, s38, 2')
    s('s_lshr_b32 s36, s3, 1'); s('s_lshl_b32 s36, s36, 3'); s('s_and_b32 s3, s3, 1'); s('s_add_u32 s36, s36, s3')
    s('s_mul_i32 s3, s36, 10240'); s('s_lshl_b32 s62, s%d, 8' % sW); s('s_add_u32 s%d, s3, s62' % sM0)
    s('s_mul_i32 s3, s39, %d' % (160 * 2048)); s('s_lshl_b32 s62, s37, 10'); s('s_add_u32 s3, s3, s62')
    s('s_lshl_b32 s62, s36, 6'); s('s_add_u32 s3, s3, s62'); s('s_lshl_b32 s62, s%d, 3' % sW); s('s_add_u32 s%d, s3, s62' % (sM0 + 1))
    s('v_bfe_u32 v%d, v%d, 3, 2' % (t + 1, t))
    s('v_add_u32 v%d, s63, v%d' % (t + 3, t + 1))
    s('v_lshl_add_u32 v%d, v%d, 3, v%d' % (t + 4, t + 3, t + 2))
    s('v_lshrrev_b32 v%d, 1, v%d' % (t + 5, t + 3))
    s('v_and_b32 v%d, 15, v%d' % (t + 6, t + 4))
    s('v_lshlrev_b32 v%d, 4, v%d' % (t + 6, t + 6))
    s('v_lshl_add_u32 v%d, v%d, 10, v%d' % (t + 6, t + 5, t + 6))
    s('v_lshrrev_b32 v%d, 5, v%d' % (t + 1, t))
    s('v_mul_u32_u24 v%d, %d, v%d' % (t + 5, PST, t + 1))
    s('v_add3_u32 v%d, v%d, v%d, s%d' % (AD, t + 6, t + 5, sM0))
    s('v_lshlrev_b32 v%d, 5, v%d' % (t + 1, t + 1))
    s('v_lshl_add_u32 v%d, v%d, 11, v%d' % (t + 4, t + 4, t + 1))
    s('v_add_u32 v%d, s%d, v%d' % (OD, sM0 + 1, t + 4))
    s('s_add_u32 s63, s63, 4')
    s('s_lshr_b32 s3, s63, 1'); s('s_lshl_b32 s3, s3, 10'); s('s_and_b32 s62, s63, 1'); s('s_lshl_b32 s62, s62, 7'); s('s_add_u32 s3, s3, s62')
    s('s_add_u32 s3, s3, s%d' % sM0)
    s('v_lshrrev_b32 v%d, 3, v%d' % (t + 3, t))
    s('v_mul_u32_u24 v%d, %d, v%d' % (t + 5, PST, t + 3))
    s('v_lshl_add_u32 v%d, v%d, 4, v%d' % (t + 5, t + 2, t + 5))
    s('v_add_u32 v%d, s3, v%d' % (AD2, t + 5))
    s('s_lshl_b32 s3, s63, 14'); s('s_add_u32 s3, s3, s%d' % (sM0 + 1))
    s('v_lshl_add_u32 v%d, v%d, 11, v%d' % (t + 4, t + 2, t + 1))
    s('v_and_b32 v%d, 24, v%d' % (t + 1, t))
    s('v_cmp_eq_u32 vcc, 0, v%d' % (t + 1))
    s('v_add_u32 v%d, s3, v%d' % (t + 4, t + 4))
    s('v_mov_b32 v%d, 0x40000000' % (t + 7))
    s('v_cndmask_b32 v%d, v%d, v%d, vcc' % (OD2, t + 7, t + 4))
    s('v_mov_b32 v%d, 0x3f80' % C10); s('v_mov_b32 v%d, 0x3f800000' % C01)
    return s.items

LA, LO, LD, LA2, LD2, QAD, CL = 108, 109, 110, 111, 112, 113, 114
ODS = ((116, 117), (118, 119), (90, 91))
sI0, sI1, sN, sDB, sIT = 13, 14, 15, 12, 7
def red_addr_dyn(o):
    s = Seg('t')
    t = RT
    s('s_lshl_b32 s3, s%d, 4' % sG); s('s_and_b32 s62, s38, %d' % (15 & ~(16 // o.rep - 1))); s('s_add_u32 s3, s3, s62'); s('s_lshl_b32 s3, s3, 8')
    s('v_lshrrev_b32 v%d, 2, v%d' % (t, LANE16)); s('v_add_u32 v%d, s3, v%d' % (IA, t))
    s('v_lshrrev_b32 v%d, 4, v%d' % (t, LANE16))
    s('v_and_b32 v%d, 7, v%d' % (t + 2, t))
    s('v_lshrrev_b32 v%d, 5, v%d' % (t + 1, t))
    s('v_bfe_u32 v%d, v%d, 3, 2' % (LO, t))
    s('v_mul_u32_u24 v%d, %d, v%d' % (t + 5, PST if o.loc < 0 else 1 << 18, t + 1))
    s('v_lshl_add_u32 v%d, v%d, 4, v%d' % (LA, t + 2, t + 5))
    s('v_lshlrev_b32 v%d, 5, v%d' % (t + 1, t + 1))
    s('v_lshl_add_u32 v%d, v%d, 11, v%d' % (t + 4, t + 2, t + 1))
    s('v_lshl_add_u32 v%d, v%d, 14, v%d' % (LD, LO, t + 4))
    s('v_cmp_eq_u32 vcc, 0, v%d' % LO)
    s('v_lshrrev_b32 v%d, 3, v%d' % (t + 3, t))
    s('v_mov_b32 v%d, 0x40000000' % (t + 7))
    s('v_cndmask_b32 v%d, v%d, v%d, vcc' % (LD2, t + 7, t + 4))
    s('v_mul_u32_u24 v%d, %d, v%d' % (t + 5, PST, t + 3))
    s('v_lshl_add_u32 v%d, v%d, 4, v%d' % (LA2, t + 2, t + 5))
    if o.sl8:
        s('v_lshl_add_u32 v%d, v%d, 8, v%d' % (LA2, LO, LA))
        s('v_lshl_add_u32 v%d, v%d, 3, v%d' % (LD2, LO, t + 4))
    s('s_mul_i32 s3, s39, %d' % (160 * 2048)); s('s_lshl_b32 s62, s37, 10'); s('s_add_u32 s%d, s3, s62' % sDB)
    s('s_lshl_b32 s3, s%d, 8' % sG); s('s_add_u32 s3, s3, 0x10000')
    if o.loc >= 0: s('s_lshl_b32 s62, s%d, 7' % sH); s('s_add_u32 s3, s3, s62')
    s('v_min_u32 v%d, 1, v%d' % (t + 3, t)); s('v_lshlrev_b32 v%d, 30, v%d' % (t + 3, t + 3)); s('v_add_u32 v%d, s3, v%d' % (QAD, t + 3))
    s('v_mov_b32 v%d, 0x3f80' % C10); s('v_mov_b32 v%d, 0x3f800000' % C01)
    return s.items

def gen_op(o):
    s = Seg('op')
    exr = (lambda c: (EX, EX + 81920, 'ex%d' % c.get('redo', 0)))
    KSL = [(4 * c + r, [(2 * a + e, kk) for kk in range(2) for e in range(2)]) for c in range(4) for a in range(2) for r in range(4)]
    def reads_for(ks):
        u, fr = KSL[ks]
        base = OSLOT[u % 8]
        areg, imm = (80, base) if base < V0 else (84, base - V0)
        return [I('ds_read_b64_tr_b16 %s, v%d offset:%d' % (ar(KB + 16 * (ks & 1) + 4 * i + 2 * e, 2), areg + jn, imm + 8192 * kk + 4096 * e), lds=(base, base + 16384, 'wo%d' % u))
                for i, (jn, kk) in enumerate(fr) for e in range(2)]
    def conv(c, a):
        out = []
        for j in range(5):
            b = etile(c, 2 * a, j)
            cv = [I('v_cvt_pk_bf16_f32 v%d, v%d, v%d' % (b + i, b + 2 * i, b + 2 * i + 1)) for i in range(4)]
            out.append(cv[:2]); out.append(cv[2:])
            out.append([I('s_add_u32 s%d, s%d, 0x%x' % (sA, sCP + c, ((10 if o.loc < 0 else 16) * a + j) * 1024)),
                        I('buffer_store_dwordx4 %s, v%d, s[%d:%d], s%d offen %s' % (vr(b, 4), PO, SP_, SP_ + 3, sA, o.st_pol), tag='st%d' % c)])
        return out
    s('s_mov_b32 s%d, 0' % sREDO)
    s.add(reads_for(0))
    part = [I('ds_read_b128 %s, v98 offset:%d' % (ar(PART + 4 * f, 4), 1024 * f), lds=exr) for f in range(20)]
    own = [I('ds_read_b128 %s, v97 offset:%d' % (ar(OWN + 4 * f, 4), 1024 * f), lds=exr) for f in range(20)]
    s('s_mul_i32 s3, s%d, %d' % (sP, 80 if o.loc < 0 else 128)); s('s_mul_i32 s36, s%d, %d' % (sHF, 5 if o.loc < 0 else 8)); s('s_add_u32 s3, s3, s36'); s('s_lshl_b32 s3, s3, 10')
    s('v_add_u32 v%d, s3, v%d' % (PO, LANE16))
    if o.exsp: extra = sum(([[x], []] if i % 3 else [[x]] for i, x in enumerate(part)), []) + sum(([[x], [], []] for x in own), [])
    else: extra = [part[i:i + 2] for i in range(0, 20, 2)] + [own[i:i + 2] for i in range(0, 20, 2)]
    vq = []
    ra = red_addr_dyn(o) if o.dyn else red_addr(o)
    seen = set()
    first_use, last_use = {}, {}
    for ks, (u, fr) in enumerate(KSL):
        first_use.setdefault(u, ks); last_use[u] = ks
    pending = list(range(4, 16))
    for ks, (u, fr) in enumerate(KSL):
        c, phi, dh = u >> 2, (u >> 1) & 1, u & 1
        if ks % 2 == 0: tstamp(s, o, 'o', ks // 2)
        if ks % 16 == 0: tstamp(s, o, 'w', 12 + ks // 16)
        buf = ks & 1
        mf = []
        for i, (jn, kk) in enumerate(fr):
            sidx = 2 * dh + kk
            first = (c, jn) not in seen; seen.add((c, jn))
            for j in range(5):
                d = vr(etile(c, jn, j), 4)
                if phi: bf = ar(PART + 16 * j + 4 * sidx, 4)
                elif c == 0: bf = vr(16 * j + 4 * sidx, 4)
                else: bf = ar(OWN + 16 * j + 4 * sidx, 4)
                mf.append(mfma(d, ar(KB + 16 * buf + 4 * i, 4), bf, '0' if first else d))
        need = regs('a', KB + 16 * buf, 16)
        if phi and c == 0: need = need + regs('a', PART, 80)
        bar = None
        nxt = KSL[ks + 1][0] if ks + 1 < 32 else None
        exk = 6 if o.exsp else 2
        if nxt is not None and (first_use[nxt] == ks + 1 or ks == exk):
            if ks == exk: need = need + regs('a', OWN, 80) + regs('a', PART, 80)
            new = []
            for v in list(pending):
                ok = v == 4 or (5 <= v <= 7 and ks >= exk) or (v >= 8 and last_use[v - 8] <= ks)
                if not ok: break
                new += dma_wo(o, v); pending.remove(v)
            bar = dict(tags=['wo%d' % nxt])
            barrier_hooks.append(lambda new=new: vq.extend(new))
        rds = reads_for(ks + 1) if nxt is not None else []
        if ks == (9 if o.exsp else 4): extra += [ra[i:i + 2] for i in range(0, len(ra), 2)]
        if ks % 4 == 0 and ks > 0:
            cv = [[]] * 2 + conv((ks - 4) >> 3, ((ks - 4) >> 2) & 1)
            extra[0:0] = cv
        for cc, at in enumerate(int(x) for x in o.fl.split(',')):
            if ks == at: extra.insert(0, [Wait(tags=['st%d' % cc])] + flag_ops(o, cc))
        for x in (o.cfl.split(',') if o.cfl else []):
            cc, at = (int(y) for y in x.split(':'))
            if ks == at: extra.insert(0, [CondOps(['st%d' % cc], [i.text for i in flag_ops(o, cc)], 43)])
        if o.early:
            if ks == o.epoll: extra.insert(0, [I(poll_txt(), tag='poll')])
            if ks == o.epoll + 2:
                extra += [[I('s_mov_b32 s%d, s%d' % (SG2, SG)), I('s_mov_b32 s%d, s%d' % (SG2 + 1, SG + 1))],
                          [Wait(regs=[('v', PL)]), I('v_cmp_gt_u32 vcc, 1, v%d' % PL), I('s_mov_b32 s%d, 0x20000' % (SG2 + 3)), I('s_cmp_eq_u64 vcc, 0'),
                           I('s_cselect_b32 s%d, 0x%x, 0' % (SG2 + 2, 16 * PST)), I('s_cselect_b32 s%d, 1, 0' % sE)]]
                for g in load_groups(o, 0, lambda k: vr(144 + 4 * k, 4), sB, SG2): extra += [g] + [[]] * (o.ldevery - 1)
        if o.dyn and o.eclaim and ks == o.eclaim:
            extra.insert(0, [I('v_mov_b32 v%d, %d' % (CL, o.nb)), I('buffer_atomic_add v%d, v%d, s[%d:%d], 0 offen sc0' % (CL, QAD, SF, SF + 3), tag='claim'), I(poll_txt(), tag='poll')])
        elif ks == 30 and not (o.dyn and o.eclaim): extra.insert(0 if o.early else len(extra), [I(poll_txt(), tag='poll')])
        gemm_kstep(s, mf, need, rds, bar, extra, o.oevery, vq)
        if ks % 8 == 7: stamp(s, o, 7 + c)
    extra = [g for g in extra if g]
    assert not extra and not vq and not pending, (len(extra), len(vq), pending)
    s('s_nop 3')
    for g in conv(3, 1): s.add(g)
    stamp(s, o, 11)
    if o.early:
        s('s_cmp_lg_u32 s%d, 0' % sE)
        s('s_cbranch_scc1 L_redE')
    return s

def summ_ops(s, buf, o2):
    a = AC
    for i in range(16): s('v_mov_b32 v%d, 0' % (a + i))
    for k in range(10):
        if k in (0, 4, 8): s.wait(regs=regs('v', buf + 4 * k, 16 if k < 8 else 8))
        for d in range(4):
            x = buf + 4 * k + d
            b = a + (8 if k >= 8 else 0)
            s('v_dot2c_f32_bf16 v%d, v%d, v%d' % (b + 2 * d, x, C10)); s('v_dot2c_f32_bf16 v%d, v%d, v%d' % (b + 2 * d + 1, x, C01))
    t = RT
    s('s_nop 2')
    for i in range(8): s('v_add_f32_dpp v%d, v%d, v%d row_ror:8 row_mask:0xf bank_mask:0xf' % (t + i, a + 8 + i, a + 8 + i))
    for i in range(8): s('v_mov_b32 v%d, v%d' % (a + 8 + i, t + i))
    s('s_nop 0')
    for i in range(8): s('v_permlane16_swap_b32 v%d, v%d' % (t + i, a + 8 + i))
    for i in range(8): s('v_add_f32 v%d, v%d, v%d' % (a + 8 + i, a + 8 + i, t + i))
    for b in (a, a + 8):
        for i in range(4): s('v_permlane32_swap_b32 v%d, v%d' % (b + i, b + 4 + i))
    for b in (a, a + 8):
        for i in range(4): s('v_add_f32 v%d, v%d, v%d' % (b + i, b + i, b + 4 + i))
    for n_, b in enumerate((a, a + 8)):
        s('v_cvt_pk_bf16_f32 v%d, v%d, v%d' % (o2 + 2 * n_, b, b + 1)); s('v_cvt_pk_bf16_f32 v%d, v%d, v%d' % (o2 + 2 * n_ + 1, b + 2, b + 3))

def gen_red_dyn(o):
    poll = poll_txt()
    BUF = (144, 184, 0)
    NB = o.nb
    NSL = 160 if o.loc >= 0 else 320 if o.sl8 else 256
    def chunk_of(s, dst, idx):
        if o.loc >= 0: s('s_mul_i32 s%d, s%d, 52429' % (dst, idx)); s('s_lshr_b32 s%d, s%d, 21' % (dst, dst))
        elif o.sl8: s('s_mul_i32 s%d, s%d, 52429' % (dst, idx)); s('s_lshr_b32 s%d, s%d, 22' % (dst, dst))
        else: s('s_lshr_b32 s%d, s%d, 6' % (dst, idx))
    def claim(s, n):
        s('v_mov_b32 v%d, %d' % (CL, n))
        s('buffer_atomic_add v%d, v%d, s[%d:%d], 0 offen sc0' % (CL, QAD, SF, SF + 3), tag='claim')
    def check(s, idx, name):
        chunk_of(s, sN, idx); s('s_add_u32 s%d, s%d, 1' % (sN, sN))
        s.wait(regs=[('v', PL)])
        s('v_cmp_gt_u32 vcc, s%d, v%d' % (sN, PL))
        s('s_cbranch_vccnz L_spin%s' % name)
        s.label('L_got%s' % name)
    def addr(s, idx, x):
        t = RT
        if o.sl8:
            s('s_sub_u32 s3, s%d, 1' % sN); s('s_mul_i32 s36, s3, %d' % (NSL // 4)); s('s_sub_u32 s36, s%d, s36' % idx)
            if o.rotc: s('s_add_u32 s3, s3, s39'); s('s_and_b32 s3, s3, 3')
            s('s_bfe_u32 s62, s36, 0x10001'); s('s_lshl_b32 s62, s62, 2'); s('s_add_u32 s3, s3, s62'); s('s_lshl_b32 s3, s3, 1')
            s('s_and_b32 s62, s36, 1'); s('s_add_u32 s3, s3, s62')
            s('s_lshr_b32 s36, s36, 2')
            s('s_lshl_b32 s62, s3, 6'); s('s_lshl_b32 s63, s36, 14'); s('s_add_u32 s62, s62, s63'); s('s_add_u32 s62, s62, s%d' % sDB)
            if o.loc >= 0: s('s_mul_i32 s63, s%d, %d' % (sH, 10 << 14)); s('s_add_u32 s62, s62, s63')
            s('v_add_u32 v%d, s62, v%d' % (ODS[x][0], LD2))
            if o.loc >= 0: s('s_lshl_b32 s3, s3, 1'); s('s_add_u32 s3, s3, s%d' % sH); s('s_lshl_b32 s3, s3, 3')
            else: s('s_mul_i32 s3, s3, 10')
            s('s_lshr_b32 s62, s36, 1'); s('s_add_u32 s3, s3, s62'); s('s_lshl_b32 s3, s3, 10')
            s('s_and_b32 s36, s36, 1'); s('s_lshl_b32 s36, s36, 7'); s('s_add_u32 s3, s3, s36')
            s('v_add_u32 v%d, s3, v%d' % (AD, LA2))
            return
        s('s_lshr_b32 s3, s%d, 6' % idx)
        if o.rotc: s('s_add_u32 s3, s3, s39'); s('s_and_b32 s3, s3, 3')
        s('s_bfe_u32 s36, s%d, 0x10005' % idx); s('s_lshl_b32 s36, s36, 2'); s('s_add_u32 s3, s3, s36'); s('s_lshl_b32 s3, s3, 1')
        s('s_bfe_u32 s36, s%d, 0x10004' % idx); s('s_add_u32 s3, s3, s36')
        s('s_and_b32 s36, s%d, 3' % idx)
        s('s_mul_i32 s62, s3, 10240'); s('s_lshl_b32 s63, s36, 8'); s('s_add_u32 s%d, s62, s63' % sM0)
        s('s_lshl_b32 s62, s3, 3'); s('s_add_u32 s62, s62, s36'); s('s_lshl_b32 s62, s62, 3'); s('s_add_u32 s62, s62, s%d' % sDB)
        s('s_bfe_u32 s63, s%d, 0x20002' % idx); s('s_mul_i32 s63, s63, 5')
        s('v_add_u32 v%d, s63, v%d' % (t, LO))
        s('s_lshl_b32 s3, s63, 14'); s('s_add_u32 s62, s62, s3')
        s('v_lshrrev_b32 v%d, 1, v%d' % (t + 1, t))
        s('v_and_b32 v%d, 1, v%d' % (t, t))
        s('v_add_u32 v%d, s62, v%d' % (ODS[x][0], LD))
        s('v_lshlrev_b32 v%d, 7, v%d' % (t, t))
        s('s_add_u32 s62, s62, 0x10000')
        s('v_lshl_add_u32 v%d, v%d, 10, v%d' % (t, t + 1, t))
        s('v_add_u32 v%d, s62, v%d' % (ODS[x][1], LD2))
        s('v_add3_u32 v%d, v%d, v%d, s%d' % (AD, t, LA, sM0))
        s('s_lshr_b32 s3, s63, 1'); s('s_add_u32 s3, s3, 2'); s('s_lshl_b32 s3, s3, 10'); s('s_and_b32 s63, s63, 1'); s('s_lshl_b32 s63, s63, 7')
        s('s_add_u32 s3, s3, s63'); s('s_add_u32 s3, s3, s%d' % sM0)
        s('v_add_u32 v%d, s3, v%d' % (AD2, LA2))
    def loads(s, x, ks=range(10)):
        for k in ks:
            if o.sl8 and k >= 8: continue
            off, ad = (2 * PST * k, AD) if k < 8 else (8 * PST * (k - 8), AD2)
            if o.loc >= 0: off = ((k >> 2) << 22) + ((k & 3) << 19)
            s('s_mov_b32 s%d, 0x%x' % (sA, off))
            if o.rcap: s('s_waitcnt vmcnt(%d)' % o.rcap)
            s('buffer_load_dwordx4 %s, v%d, s[%d:%d], s%d offen %s' % (vr(BUF[x] + 4 * k, 4), ad, SG, SG + 3, sA, o.rd_pol))
    def finish(s, x):
        o2 = (100, 104, 92)[x]
        if o.sl8:
            a = AC
            for k in range(8):
                if k in (0, 4): s.wait(regs=regs('v', BUF[x] + 4 * k, 16))
                for d in range(4):
                    r = BUF[x] + 4 * k + d
                    if k == 0: s('v_lshlrev_b32 v%d, 16, v%d' % (a + 2 * d, r)); s('v_and_b32 v%d, 0xffff0000, v%d' % (a + 2 * d + 1, r))
                    else: s('v_dot2c_f32_bf16 v%d, v%d, v%d' % (a + 2 * d, r, C10)); s('v_dot2c_f32_bf16 v%d, v%d, v%d' % (a + 2 * d + 1, r, C01))
            s('s_nop 2')
            for i in range(4): s('v_permlane32_swap_b32 v%d, v%d' % (a + i, a + 4 + i))
            for i in range(4): s('v_add_f32 v%d, v%d, v%d' % (a + i, a + i, a + 4 + i))
            s('v_cvt_pk_bf16_f32 v%d, v%d, v%d' % (o2, a, a + 1)); s('v_cvt_pk_bf16_f32 v%d, v%d, v%d' % (o2 + 1, a + 2, a + 3))
            s('buffer_store_dwordx2 %s, v%d, s[%d:%d], 0 offen %s' % (vr(o2, 2), ODS[x][0], SO, SO + 3, o.out_pol))
            return
        summ_ops(s, BUF[x], o2)
        for h in range(2): s('buffer_store_dwordx2 %s, v%d, s[%d:%d], 0 offen %s' % (vr(o2 + 2 * h, 2), ODS[x][h], SO, SO + 3, o.out_pol))
    pre = Seg('redpre')
    for i in range(15): tstamp(pre, o, 'r', i)
    tstamp(pre, o, 'w', 14)
    pre('s_mov_b32 s%d, 0' % sIT)
    if o.eclaim:
        pre.wait(tags=['claim', 'poll'])
        pre('v_readfirstlane_b32 s%d, v%d' % (sI0, CL))
        pre('s_lshr_b32 s%d, s%d, 6' % (sN, sI0)); pre('s_add_u32 s%d, s%d, 1' % (sN, sN))
        pre('v_cmp_gt_u32 vcc, s%d, v%d' % (sN, PL))
        pre('s_add_u32 s%d, s%d, 1' % (sI1, sI0))
        pre('s_cbranch_vccnz L_late')
        addr(pre, sI0, 0)
        loads(pre, 0, range(o.nfirst))
        pre.wait(tags=['st3'])
        pre.add(flag_ops(o, 3))
        loads(pre, 0, range(o.nfirst, 10))
        late = Seg('late')
        late.label('L_late')
        late('s_waitcnt vmcnt(0)')
        late.add(flag_ops(o, 3))
        late('s_cmp_ge_u32 s%d, 256' % sI0)
        late('s_cbranch_scc1 L_end')
        check(late, sI0, 'P')
        addr(late, sI0, 0)
        loads(late, 0)
        late('s_branch L_rb0')
        o.late = late
        tstamp(pre, o, 'r', 2)
        stamp(pre, o, 12)
    else:
        if o.f2post:
            pre.wait(tags=['st2'])
            pre.add(flag_ops(o, 2))
        claim(pre, NB)
        pre.wait(tags=['st3'])
        pre.add(flag_ops(o, 3))
        tstamp(pre, o, 'r', 1)
        pre.wait(tags=['claim'])
        pre('v_readfirstlane_b32 s%d, v%d' % (sI0, CL))
        tstamp(pre, o, 'r', 2)
        stamp(pre, o, 12)
        if o.loc >= 0: pre.label('L_pre2')
        pre('s_add_u32 s%d, s%d, 1' % (sI1, sI0))
        pre('s_cmp_ge_u32 s%d, %d' % (sI0, NSL))
        pre('s_cbranch_scc1 %s' % ('L_end' if o.loc < 0 else 'L_swP'))
        check(pre, sI0, 'P')
        addr(pre, sI0, 0)
        loads(pre, 0)
    if NB == 3:
        pre('s_cmp_ge_u32 s%d, %d' % (sI1, NSL))
        pre('s_cbranch_scc1 L_rlast0')
        check(pre, sI1, 'Q')
        addr(pre, sI1, 1)
        loads(pre, 1)
        pre('s_add_u32 s%d, s%d, 1' % (sI1, sI1))
    body, fin = [], []
    for x in range(NB):
        y = (x + NB - 1) % NB
        b = Seg('redbody%d' % x)
        b.label('L_rb%d' % x)
        if o.trace == 'r':
            b('%s s[%d:%d]' % (clk(o), sST + 6, sST + 7)); b('s_waitcnt lgkmcnt(0)'); b('s_add_u32 m0, s%d, 3' % sIT); b('s_nop 0'); b('v_writelane_b32 v%d, s%d, m0' % (STV + 2, sST + 6))
        b('s_add_u32 s%d, s%d, 1' % (sIT, sIT)); b('s_cmp_gt_u32 s%d, 400' % sIT); b('s_cbranch_scc1 L_rf%d' % x)
        b('s_cmp_ge_u32 s%d, %d' % (sI1, NSL))
        b('s_cbranch_scc1 %s%d' % ('L_rf' if o.loc < 0 else 'L_sw', x))
        check(b, sI1, 'B%d' % x)
        addr(b, sI1, y)
        claim(b, 1)
        b(poll, tag='poll')
        loads(b, y)
        finish(b, x)
        b.wait(regs=[('v', CL)])
        b('v_readfirstlane_b32 s%d, v%d' % (sI1, CL))
        if x == NB - 1: b('s_branch L_rb0')
        body.append(b)
        f = Seg('redfin%d' % x)
        f.label('L_rf%d' % x)
        finish(f, x)
        if NB == 3:
            if x == 2: f.label('L_rlast0')
            finish(f, (x + 1) % 3)
        if x < NB - 1: f('s_branch L_end')
        fin.append(f)
    e = Seg('redend')
    e.label('L_end')
    if o.stamps or o.trace:
        e('s_waitcnt vmcnt(0)')
        tstamp(e, o, 'r', 15); tstamp(e, o, 'w', 15)
        stamp(e, o, 13); stamp(e, o, 14); stamp(e, o, 15)
    e.label('L_done')
    e('s_endpgm')
    sp = Seg('spins')
    for n in ('P', 'B0', 'B1') + (('Q', 'B2') if NB == 3 else ()): gen_spin(sp, 'L_spin' + n, 'L_got' + n, poll, ['v_cmp_gt_u32 vcc, s%d, v%d' % (sN, PL), 's_cbranch_vccnz @'], 35)
    if o.loc >= 0:
        for n, done, back, reg, cnt in [('P', 'L_end', 'L_pre2', sI0, NB)] + [(str(x), 'L_rf%d' % x, 'L_rb%d' % x, sI1, 1) for x in range(NB)]:
            sp.label('L_sw' + n)
            sp('s_cmp_lg_u32 s%d, 0' % sSW); sp('s_cbranch_scc1 %s' % done)
            sp('s_mov_b32 s%d, 1' % sSW); sp('s_xor_b32 s%d, s%d, 1' % (sH, sH))
            sp('s_waitcnt vmcnt(0)')
            sp('v_xor_b32 v%d, 0x80, v%d' % (QAD, QAD))
            claim(sp, cnt)
            sp('s_waitcnt vmcnt(0)')
            sp('v_readfirstlane_b32 s%d, v%d' % (reg, CL))
            sp('s_branch %s' % back)
    sp.label('L_cntspin')
    sp('s_lshl_b32 s%d, s%d, 3' % (sA, sG))
    gen_spin(sp, 'L_cntspin2', 'L_cntok', 'buffer_load_dword v%d, off, s[%d:%d], s%d offset:128 sc1' % (CNT, SD, SD + 3, sA),
             ['v_readfirstlane_b32 s3, v%d' % CNT, 's_cmp_lt_u32 s3, 16', 's_cbranch_scc1 @'], 35)
    return pre, body, fin, e, sp

def gen_red(o, early, sfx):
    s = Seg('red' + sfx)
    if sfx: s.label('L_red' + sfx)
    poll = poll_txt()
    BUF = [144, 184, 0, 40]
    def check(n):
        s.wait(regs=[('v', PL)])
        s('v_cmp_gt_u32 vcc, %d, v%d' % (n, PL))
        s('s_cbranch_vccnz L_spin%d%s' % (n, sfx))
        s.label('L_got%d%s' % (n, sfx))
    def loads(c):
        for g in load_groups(o, c, lambda k: vr(BUF[c] + 4 * k, 4), sA): s.add(g)
    def summ(c): summ_ops(s, BUF[c], 100 + 4 * (c & 1))
    def outst(c):
        o2 = 100 + 4 * (c & 1)
        s('buffer_store_dwordx2 %s, v%d, s[%d:%d], s%d offen %s' % (vr(o2, 2), OD, SO, SO + 3, sCW + c, o.out_pol))
        s('buffer_store_dwordx2 %s, v%d, s[%d:%d], s%d offen %s' % (vr(o2 + 2, 2), OD2, SO, SO + 3, sCW + c, o.out_pol))
    T = lambda i: tstamp(s, o, 'r', i)
    T(0)
    if o.fl3:
        s.wait(tags=['st3'])
        s.add(flag_ops(o, 3))
        check(1)
        T(1); stamp(s, o, 12)
        loads(0)
        T(2)
        check(2)
        T(3)
        s(poll, tag='poll')
        loads(1)
        T(4)
        summ(0)
    else:
        s.wait(regs=[('v', PL)], tags=['st2'])
        s.add(flag_ops(o, 2))
    if o.fl3: pass
    elif not early:
        check(1)
        T(1); stamp(s, o, 12)
        s.wait(regs=regs('v', BUF[0], 40))
        loads(0)
        T(2)
        s.wait(tags=['st3'])
        s.add(flag_ops(o, 3))
        check(2)
        T(3)
        s(poll, tag='poll')
        loads(1)
        T(4)
        summ(0)
    else:
        check(2)
        T(1); stamp(s, o, 12)
        loads(1)
        T(2)
        s.wait(tags=['st3'])
        s.add(flag_ops(o, 3))
        T(3)
        s(poll, tag='poll')
        T(4)
        summ(0)
    T(5)
    check(3)
    T(6); stamp(s, o, 13)
    s(poll, tag='poll')
    loads(2)
    outst(0)
    T(7)
    summ(1)
    T(8)
    check(4)
    T(9); stamp(s, o, 14)
    loads(3)
    outst(1)
    T(10)
    summ(2); outst(2)
    T(11)
    summ(3); outst(3)
    T(12)
    if o.stamps or o.trace:
        s('s_waitcnt vmcnt(0)')
        T(13); T(14); T(15)
        stamp(s, o, 15)
    if not sfx: s.label('L_done')
    s('s_endpgm')
    sp = Seg('spins')
    for n in (2, 3, 4) if early else (1, 2, 3, 4): gen_spin(sp, 'L_spin%d%s' % (n, sfx), 'L_got%d%s' % (n, sfx), poll, ['v_cmp_gt_u32 vcc, %d, v%d' % (n, PL), 's_cbranch_vccnz @'])
    if sfx: return s, sp
    sp.label('L_cntspin')
    sp('s_lshl_b32 s%d, s%d, 3' % (sA, sG))
    gen_spin(sp, 'L_cntspin2', 'L_cntok', 'buffer_load_dword v%d, off, s[%d:%d], s%d offset:128 sc1' % (CNT, SD, SD + 3, sA),
             ['v_readfirstlane_b32 s3, v%d' % CNT, 's_cmp_lt_u32 s3, 16', 's_cbranch_scc1 @'])
    return s, sp

def desc(name, vgpr, accum, sgpr):
    return '''.amdhsa_kernel %s
  .amdhsa_next_free_vgpr %d
  .amdhsa_next_free_sgpr %d
  .amdhsa_accum_offset %d
  .amdhsa_group_segment_fixed_size 0
  .amdhsa_kernarg_size 104
  .amdhsa_user_sgpr_count 2
  .amdhsa_user_sgpr_kernarg_segment_ptr 1
  .amdhsa_system_sgpr_workgroup_id_x 1
  .amdhsa_float_denorm_mode_32 3
.end_amdhsa_kernel
''' % (name, vgpr, sgpr, accum)

DOC = """;
; One workgroup per CU = one (branch, batch, head pair); waves 0,1 own the first head, waves 2,3 the second, 80 query rows each.
; Everything is computed transposed (queries along the lanes) with v_mfma_f32_16x16x32_bf16; all tiles reach LDS by LDS-DMA.
;   qphase : Q^T = Wq^T x^T, scaled by log2(e)/sqrt(128), packed to bf16; first score tile gives the row maxima m
;   red    : the 16 partials of a (branch, batch) are summed in 8-row x 32-column slices handed out by a counter
"""
def build(o, path):
    o.kvat_l = [int(x) for x in o.kvat.split(',')]
    o.stat_l = [int(x) for x in o.stat.split(',')]
    o.sched = kv_schedule(o)
    Pace.slots = o.slots; Pace.slp = o.slp
    entry, q, s0, attn, epi = gen_entry(o), gen_q(o), gen_s0(o), gen_attn(o), gen_epi(o)
    r0, r1, r2 = gen_redo(o)
    op = gen_op(o)
    if o.dyn:
        pre, body, fin, e, spins = gen_red_dyn(o)
        tail_code = [pre] + body + fin + [e, spins]
        tails = [[pre] + body + body + [fin[0], e], [pre] + body + [body[0], fin[1], e]]
        xtails = [[pre, fin[0], e], [pre, body[0], fin[1], e]]
        if o.eclaim:
            assert o.nb == 2
            h = Seg('h'); h.items = pre.items[:[i for i, it in enumerate(pre.items) if it.kind == 'branch' and 'L_late' in it.text][0] + 1]
            xtails += [[h, o.late, body[0], body[1], fin[0], e], [h, o.late, fin[0], e]]
            tail_code.append(o.late)
        if o.nb == 3:
            h = Seg('h'); h.items = pre.items[:[i for i, it in enumerate(pre.items) if it.kind == 'branch' and 'L_rlast0' in it.text][0] + 1]
            l = Seg('l'); l.items = fin[2].items[[i for i, it in enumerate(fin[2].items) if it.kind == 'label' and it.name == 'L_rlast0'][0]:]
            xtails += [[pre, body[0], body[1], fin[2], e], [pre] + body + [body[0], body[1], fin[2], e], [h, l, e]]
    else:
        red, spins = gen_red(o, False, '')
        redE, spinsE = gen_red(o, True, 'E') if o.early else (Seg('x'), Seg('x'))
        tail_code = [red, redE, spins, spinsE]
        tails = [[red], [redE if o.early else red]]
    traces = []
    for redo in (0, 1):
        tr = [(entry, {}), (q, {})]
        for ps in range(redo + 1):
            if ps: tr += [(r0, {}), (r1, {}), (r1, {}), (r2, {})]
            tr += [(s0, {}), (attn, {}), (epi, dict(redo=ps))]
        tr += [(op, dict(redo=redo))] + [(x, {}) for x in tails[redo]]
        traces.append(('redo%d' % redo, tr))
    if o.dyn:
        base = traces[0][1][:-len(tails[0])]
        for i, xt in enumerate(xtails): traces.append(('x%d' % i, base + [(x, {}) for x in xt]))
    if o.jit:
        import random
        rnd = random.Random(o.jit)
        cnt = [0]
        def delay(reg, mask, val, n):
            cnt[0] += 1
            out = [I('s_and_b32 s43, s%d, %d' % (reg, mask)), I('s_cmp_eq_u32 s43, %d' % val), I('s_cbranch_scc0 L_jit%d' % cnt[0])]
            out += [I('s_sleep %d' % min(127, n))] * (1 + n // 128) + [Label('L_jit%d' % cnt[0])]
            return out
        for sg in (q, s0, attn, epi, op):
            out = []
            for it in sg.items:
                if it.kind == 'barrier':
                    r = rnd.random()
                    if r < 0.5: out += delay(sW, 3, rnd.randrange(4), rnd.randrange(1, 40))
                    out.append(it)
                    if r > 0.3: out += delay(sW, 3, rnd.randrange(4), rnd.randrange(1, 40))
                    if rnd.random() < 0.08: out += delay(2, 15, rnd.randrange(16), rnd.randrange(100, 600))
                else: out.append(it)
            sg.items = out
        q.items = delay(2, 31, 5, 1500) + q.items
    resolve([t for _, t in traces])
    allerr = []
    for name, tr in traces: allerr += check(tr, name)[0]
    for e in allerr[:6]: print('ERR', e)
    if allerr: print(len(allerr), 'errors')
    hdr = open('concat_heads__gqa_block_cached__gqa_block_cached__near_ridge.s.ref').read().split('; Override')[0]
    txt = hdr + '; @launch grid=(256,1,1) block=(256,1,1) lds=163840\n' + DOC
    txt += '.amdgcn_target "amdgcn-amd-amdhsa--gfx950"\n.text\n.globl %s\n.p2align 8\n.type %s,@function\n%s:\n' % (KN, KN, KN)
    for sg in [entry, q, s0, attn, epi, op] + tail_code + [r0, r1, r2]: txt += '; ---- %s\n' % sg.name + sg.text()
    txt += 'L_code_end:\n'
    txt += '.section .rodata,"a"\n.p2align 6\n' + desc(KN, 512, 256, 102)
    open(path, 'w').write(txt)
    return not allerr

if __name__ == '__main__':
    o = Opt()
    path = sys.argv[1]
    for kv in sys.argv[2:]:
        k, v = kv.split('=')
        cur = getattr(o, k)
        setattr(o, k, int(v) if isinstance(cur, int) else v.replace('+', ' '))
    ok = build(o, path)
    if not ok: os.remove(path); sys.exit(1)
    print('written', path, 'ok' if ok else 'WITH ERRORS', {h: len(v) for h, v in o.sched.items() if len(v) != 4 and (len(v) or h < 62)} if '-v' in path else '')
```

```python
import sys, struct, math
from fw import *

KN = "concat_heads__gqa_block_cached__gqa_block_cached__near_ridge_kernel"
WS_BYTES = 287834112
import os
PST = int(os.environ.get('PST', 172032))
INB = 256 * PST
def f2u(x): return struct.unpack('<I', struct.pack('<f', x))[0]

class Opt:
    kv_pol = 'nt'; w_pol = ''; st_pol = 'sc1'; rd_pol = 'sc1'; fl_pol = 'sc1'; out_pol = ''
    stamps = 0; cyc = 0; dbgst = 0; trace = ''
    force_redo = 0
    codepf = 3
    xfirst = 1
    par = 1
    qevery = 3
    qpack = 0
    x1e = 0
    defer = 0
    capalt = 12
    lite = 0
    slots = 1
    kvat = '5,7,9,11'
    cap = 4
    cap2 = 0
    capl = 0
    tl = 99
    rotp = 1
    split = 1
    qpk = 1
    epw = 2
    epk = 1
    stage = 0
    stat = '8,10'
    lsum = 1
    uni = 1
    hold = 0
    wocap = 4
    qcap = 0
    lasth = 59
    ninit = 10
    oevery = 3
    loc = -1
    flagat = 5
    rotc = 1
    exsp = 0
    dyn = 1
    nb = 3
    f2post = 0
    jit = 0
    slp = 8
    ahead = 0
    rep = 4
    fl = '13,23'
    cfl = ''
    rcap = 0
    sl8 = 1
    eclaim = 0
    nfirst = 5
    fl3 = 1
    early = 0
    epoll = 24
    ldevery = 5
    pfo = 0
    diag = ''

V0 = 98304
KAD = lambda j: 16384 * (j % 5)
VAD = lambda j: (V0, V0 + 16384, V0 + 32768, V0 + 49152, V0 - 16384)[(j + 2) % 5]
XBUF = lambda m: 32768 + 20480 * (m & 1)
WAD = lambda n: (V0 + 16384, V0 - 16384, V0)[n % 3]
EX = 16384
FLG = VAD(31)
OSLOT = [VAD(28), KAD(30), VAD(29), VAD(30), VAD(31), 16384, 32768, 49152]

S, P, NM, L = 0, 40, 80, 100
KA, KA2, VA, VA2, DK, DV, LANE16, CNT, FLA, CA = 105, 109, 113, 121, 129, 133, 135, 136, 137, 138
DWO = VA2
STV = 140
OV, NOV = 144, 28
XAD, DX, DWQ, DUM = 48, 50, 51, 59
Q, KB, VB, OA = 0, 80, 112, 144
XF = 144
OWN, PART = 0, 144
STG = 216
LS, ONES = 192, 212
sW, sP, sREDO, sCNT = 4, 5, 6, 7
SX, SWQ, SK, SV, SWO, SP_ = 8, 12, 16, 20, 24, 28
sOK, sOV, sMK = 32, 33, 34
sBR, sHP, sBT = 37, 38, 39
sWS = 40
sCW, sCP = 44, 48
sC, sTHR = 54, 56
sA, sB = 58, 59
sW1K, sHF = 60, 61
sST = 64
SF, SD, SO = 72, 76, 80
sG = 84
sM0, sM1 = 86, 88
sXO, sWQO = 90, 91
sO5 = 57
sH, sSW = 100, 101
SG = 96
SG2 = 8
sE = 35

def vr(b, n=1): return 'v%d' % b if n == 1 else 'v[%d:%d]' % (b, b + n - 1)
def ar(b, n=1): return 'a%d' % b if n == 1 else 'a[%d:%d]' % (b, b + n - 1)
def sr(b, n=1): return 's%d' % b if n == 1 else 's[%d:%d]' % (b, b + n - 1)
def mfma(d, a, b, c): return I('v_mfma_f32_16x16x32_bf16 %s, %s, %s, %s' % (d, a, b, c))
def otile(j, db):
    n = 8 * j + db
    return ('v', OV + 4 * n) if n < NOV else ('a', OA + 4 * (n - NOV))
def oreg(j, db):
    k, b = otile(j, db)
    return '%s[%d:%d]' % (k, b, b + 3)
def qacc(db, j):
    n = 8 * j + db
    return 4 * n if n < 12 else OV + 4 * (n - 12)

def clk(o): return 's_memtime' if o.cyc else 's_memrealtime'
def tstamp(s, o, ph, idx):
    if o.trace == ph and idx < 16:
        s('%s s[%d:%d]' % (clk(o), sST + 6, sST + 7)); s('s_waitcnt lgkmcnt(0)')
        s('v_writelane_b32 v%d, s%d, %d' % (STV + 2, sST + 6, idx))
def stamp(s, o, idx):
    st = sST
    def wsrd():
        s('s_mov_b32 s%d, s%d' % (st, sWS)); s('s_mov_b32 s%d, s%d' % (st + 1, sWS + 1))
        s('s_mov_b32 s%d, 0x%x' % (st + 2, WS_BYTES)); s('s_mov_b32 s%d, 0x20000' % (st + 3))
    if o.trace:
        if idx == 15:
            wsrd()
            s('s_mul_i32 s%d, s2, %d' % (st + 4, 128)); s('s_add_u32 s%d, s%d, 0x%x' % (st + 4, st + 4, WS_BYTES - 256 * 128))
            s('s_min_u32 s3, s%d, 1' % sW); s('s_lshl_b32 s3, s3, 30'); s('s_add_u32 s%d, s%d, s3' % (st + 4, st + 4))
            s('v_mbcnt_lo_u32_b32 v0, -1, 0'); s('v_lshlrev_b32 v0, 3, v0'); s('v_mov_b32 v2, v%d' % (STV + 2)); s('v_mov_b32 v3, 0')
            s('s_mov_b64 exec, 0xffff')
            s('buffer_store_dwordx2 v[2:3], v0, s[%d:%d], s%d offen' % (st, st + 3, st + 4))
        return
    if not o.stamps: return
    if o.lite and idx not in (0, 15): return
    a, b = STV, STV + 1
    if o.dbgst:
        if idx not in (0, 2, 3, 5, 6, 11, 13, 15): return
        idx = (0, 2, 3, 5, 6, 11, 13, 15).index(idx)
        s('s_memrealtime s[%d:%d]' % (st + 4, st + 5)); s('s_memtime s[%d:%d]' % (st + 6, st + 7)); s('s_waitcnt lgkmcnt(0)')
        s('v_mov_b32 v%d, s%d' % (a, st + 4)); s('v_mov_b32 v%d, s%d' % (b, st + 6))
        s('s_sub_u32 s%d, s2, %d' % (st + 4, o.dbgst - 1)); s('s_mul_i32 s%d, s%d, 0x1000' % (st + 4, st + 4))
        s('s_add_u32 s%d, s%d, 0x%x' % (st + 4, st + 4, idx * 8)); s('s_nop 0')
        s('buffer_store_dwordx2 v[%d:%d], off, s[%d:%d], s%d' % (a, b, SD, SD + 3, st + 4))
        return
    s('%s s[%d:%d]' % (clk(o), st + 4, st + 5)); s('s_waitcnt lgkmcnt(0)')
    if idx == 0: s('s_mov_b64 s[%d:%d], s[%d:%d]' % (st + 4, st + 5, st + 6, st + 7))
    wsrd()
    s('v_mov_b32 v%d, s%d' % (a, st + 4)); s('v_mov_b32 v%d, s%d' % (b, st + 5))
    s('s_mul_i32 s%d, s2, %d' % (st + 4, o.stamps * 8))
    s('s_add_u32 s%d, s%d, 0x%x' % (st + 4, st + 4, WS_BYTES - 256 * o.stamps * 8 + idx * 8)); s('s_nop 0')
    s('buffer_store_dwordx2 v[%d:%d], off, s[%d:%d], s%d' % (a, b, st, st + 3, st + 4))

def dma(voff, srd, soff, imm, pol, tag, lo, n=16384):
    return I('buffer_load_dwordx4 v%d, s[%d:%d], s%d offen offset:%d %s lds' % (voff, srd, srd + 3, soff, imm, pol), tag=tag, lds=(lo, lo + n, tag))
def grp4(pre, mk, post=()):
    out = []
    for t in range(4):
        g = list(pre) if t == 0 else []
        g.append(mk(t))
        if t == 3: g += list(post)
        out.append(g)
    return out
def dma_x(o, m):
    buf = XBUF(m)
    out = [[I('s_add_u32 m0, s%d, 0x%x' % (sW1K, buf + 4096 * j)), I('s_add_u32 s%d, s%d, 0x%x' % (sA, sXO, 32768 * j)),
            dma(DX, SX, sA, 0, o.w_pol, 'x%d' % m, buf, 20480)] for j in range(5)]
    out[4] += [I('s_add_u32 s%d, s%d, 128' % (sXO, sXO)), I('s_and_b32 s%d, s%d, 0x3ff' % (sXO, sXO))]
    return out
def dma_wq(o, n):
    b = WAD(n)
    return grp4([I('s_add_u32 m0, s%d, 0x%x' % (sMK, b)), I('s_nop 0')],
                lambda t: dma(DWQ + t, SWQ, sWQO, 1024 * t, o.w_pol, 'wq%d' % n, b),
                [I('s_add_u32 s%d, s%d, 0x40000' % (sWQO, sWQO)), I('s_and_b32 s%d, s%d, 0x3fffff' % (sWQO, sWQO))])
def stage_ld(o, kind):
    srd_, r = (SK, STG) if kind == 'K' else (SV, STG + 16)
    vo = (lambda t: DK + t) if kind == 'K' else (lambda t: DV + (t & 1))
    return [[I('buffer_load_dwordx4 %s, v%d, s[%d:%d], s%d offen offset:%d %s' % (ar(r + 4 * t, 4), vo(t), srd_, srd_ + 3, sO5, 1024 * t, o.kv_pol))] for t in range(4)]
def stage_wr(o, kind):
    b, r, ad = (KAD(5), STG, 139) if kind == 'K' else (VAD(5), STG + 16, 143)
    out = [[I('ds_write_b128 v%d, %s offset:%d' % (ad, ar(r + 4 * t, 4), 1024 * t), lds=(b, b + 16384, '%s5' % kind))] for t in range(4)]
    out[0].insert(0, Wait(regs=regs('a', r, 16)))
    return out
def dma_kv(o, kind, j):
    b, so, srd_ = (KAD(j), sOK, SK) if kind == 'K' else (VAD(j), sOV, SV)
    vo = (lambda t: DK + t) if kind == 'K' else (lambda t: DV + (t & 1))
    return grp4([I('s_add_u32 s%d, s%d, 0x%x' % (so, so, 0x4000 if (o.stage and j == 6) else 0x2000)), I('s_add_u32 m0, s%d, 0x%x' % (sMK, b)), I('s_and_b32 s%d, s%d, 0x3ffff' % (so, so))],
                lambda t: dma(vo(t), srd_, so, 1024 * t, o.kv_pol, '%s%d' % (kind, j), b))
KVSEQ = [(k, j) for j in range(32) for k in 'KV']
def dma_wo(o, u):
    c, phi, dh = u >> 2, (u >> 1) & 1, u & 1
    b = OSLOT[u % 8]
    return grp4([I('s_lshl_b32 s%d, s%d, 2' % (sB, sMK)), I('s_add_u32 s%d, s%d, s%d' % (sB, sB, sCW + c)),
                 I('s_add_u32 m0, s%d, 0x%x' % (sMK, b)), I('s_add_u32 s%d, s%d, 0x%x' % (sB, sB, 65536 * dh))],
                lambda t: dma(DWO + 4 * phi + t, SWO, sB, 1024 * t, o.w_pol, 'wo%d' % u, b))
def capped(o, groups, j=0):
    if not o.cap: return groups
    out = []
    for g in groups:
        k = [i for i, x in enumerate(g) if x.kind == 'dma'][0]
        if j >= o.tl: out.append(g[:k] + [I('s_waitcnt vmcnt(%d)' % o.capl)] + g[k:])
        elif o.cap2:
            lo = I('s_waitcnt vmcnt(%d)' % o.cap); lo.kind = 'other'
            out.append(g[:k] + [I('s_waitcnt vmcnt(%d)' % o.cap2), I('s_cbranch_vccnz 1'), lo] + g[k:])
        else: out.append(g[:k] + [I('s_waitcnt vmcnt(%d)' % (o.cap - (1 if o.capalt and (4 * j + len(out)) % o.capalt == 0 else 0)))] + g[k:])
    return out

def rd_k(j):
    b = KAD(j)
    areg, imm = (KA, b) if b < 65536 else (KA2, b - 65536)
    return [I('ds_read_b128 %s, v%d offset:%d' % (ar(KB + 4 * (4 * kb + s), 4), areg + s, imm + 4096 * kb), lds=(b, b + 16384, 'K%d' % j))
            for s in range(4) for kb in range(2)]
def rd_tr(dst, b, tag):
    areg, imm = (VA, b - V0) if b >= V0 else (VA2, 0)
    return [I('ds_read_b64_tr_b16 %s, v%d offset:%d' % (ar(dst + 4 * d + 2 * e, 2), areg + d, imm + 4096 * e), lds=(b, b + 16384, tag))
            for d in range(8) for e in range(2)]
def rd_v(dst, j): return rd_tr(dst, VAD(j), 'V%d' % j)

def spread(items, gaps):
    d = {g: [] for g in gaps}
    n, m = len(items), len(gaps)
    for i, it in enumerate(items): d[gaps[i * m // n]].append(it)
    return d
def srd(s, r, lo, hi, off, size):
    if off is None: s('s_mov_b32 s%d, s%d' % (r, lo)); s('s_mov_b32 s%d, s%d' % (r + 1, hi))
    else: s('s_add_u32 s%d, s%d, s%d' % (r, lo, off)); s('s_addc_u32 s%d, s%d, 0' % (r + 1, hi))
    if size is not None: s('s_mov_b32 s%d, 0x%x' % (r + 2, size))
    s('s_mov_b32 s%d, 0x20000' % (r + 3))
def kv_start(s, o):
    s('s_mul_i32 s3, s%d, 0x%x' % (sP, 8192 * o.rotp)); s('s_lshl_b32 s36, s%d, 12' % sHF); s('s_add_u32 s3, s3, s36')
    s('s_sub_u32 s%d, s3, 0x2000' % sOK); s('s_mov_b32 s%d, s%d' % (sOV, sOK))
    if o.stage: s('s_add_u32 s%d, s3, 0xa000' % sO5)

def gen_entry(o):
    s = Seg('entry')
    if o.stamps and not o.dbgst: s('%s s[%d:%d]' % (clk(o), sST + 6, sST + 7))
    s('s_cmp_ge_u32 s2, 256')
    s('s_cbranch_scc1 L_done')
    s('v_mov_b32 v64, v0')
    s('s_and_b32 s3, s2, 7')
    s('s_lshr_b32 s36, s2, 3')
    if o.par: s('s_and_b32 s37, s3, 1'); s('s_lshr_b32 s38, s3, 1')
    else: s('s_lshr_b32 s37, s3, 2'); s('s_and_b32 s38, s3, 3')
    s('s_mul_i32 s3, s37, 40'); s('s_add_u32 s42, s0, s3'); s('s_addc_u32 s43, s1, 0')
    s('''s_load_dwordx8 s[44:51], s[42:43], 0
         s_load_dwordx2 s[52:53], s[42:43], 32
         s_load_dwordx2 s[40:41], s[0:1], 96
         s_load_dwordx4 s[92:95], s[0:1], 80''')
    def codepf():
        if True:
            s('s_getpc_b64 s[62:63]')
            s.label('L_pc')
            s('v_lshrrev_b32 v71, 2, v64'); s('v_and_b32 v71, 0x30, v71'); s('v_and_b32 v72, 15, v64'); s('v_or_b32 v71, v71, v72')
            s('s_and_b32 s3, s2, 0x78'); s('s_lshl_b32 s3, s3, 3')
            s('v_add_lshl_u32 v71, s3, v71, 7')
            s('v_min_u32 v71, L_code_end-L_pc-4, v71')
            s('global_load_dword v%d, v71, s[62:63]' % DUM, dummy=True)
    if o.codepf == 1: codepf()
    s('''s_lshl_b32 s38, s38, 2
         s_and_b32 s39, s36, 3
         s_or_b32 s38, s38, s39
         s_lshr_b32 s39, s36, 2''')
    s('v_lshrrev_b32 v71, 6, v64')
    s('v_and_b32 v65, 63, v64')
    s('v_readfirstlane_b32 s%d, v71' % sW)
    s('v_lshrrev_b32 v66, 4, v65')
    s('v_and_b32 v67, 15, v65')
    s('v_and_b32 v69, 7, v65')
    s('s_lshl_b32 s%d, s%d, 10' % (sW1K, sW))
    s('s_lshl_b32 s%d, s%d, 12' % (sMK, sW))
    s('s_lshr_b32 s%d, s%d, 1' % (sP, sW))
    s('s_and_b32 s%d, s%d, 1' % (sHF, sW))
    s('s_lshl_b32 s3, s%d, 2' % sHF)
    s('v_add_u32 v73, s3, v66')
    s('v_xor_b32 v69, v73, v69')
    s('v_lshlrev_b32 v69, 4, v69')
    s('v_lshrrev_b32 v68, 3, v64')
    s('v_lshl_add_u32 v%d, v68, 10, v69' % DX)
    s('v_lshlrev_b32 v70, 1, v66')
    s('v_xor_b32 v70, v70, v67')
    s('v_lshlrev_b32 v70, 4, v70')
    s('v_lshl_add_u32 v68, v73, 13, v70')
    s('s_lshl_b32 s3, s%d, 8' % sP)
    s('v_add_u32 v%d, s3, v68' % DWQ)
    s('v_xor_b32 v68, 0x80, v%d' % DWQ)
    s('v_add_u32 v%d, 0x%x, v68' % (DWQ + 1, 64512))
    s('v_add_u32 v%d, 0x%x, v%d' % (DWQ + 2, 2 * 64512, DWQ))
    s('v_add_u32 v%d, 0x%x, v68' % (DWQ + 3, 3 * 64512))
    s('s_and_b32 s3, s38, 3'); s('s_lshl_b32 s3, s3, 1'); s('s_add_u32 s3, s3, s39'); s('s_and_b32 s3, s3, 7')
    s('s_lshl_b32 s%d, s3, 7' % sXO); s('s_lshl_b32 s%d, s3, 19' % sWQO)
    s('s_mul_i32 s3, s39, 163840'); s('s_lshl_b32 s36, s38, 9')
    s('s_waitcnt lgkmcnt(0)')
    srd(s, SX, 44, 45, 3, 163840)
    srd(s, SWQ, 50, 51, 36, None); s('s_sub_u32 s%d, 0x400000, s36' % (SWQ + 2))
    for g in (dma_x(o, 0) + dma_wq(o, 0) if o.xfirst else dma_wq(o, 0) + dma_x(o, 0)): s.add(g)
    if o.codepf == 2: codepf()
    for g in dma_wq(o, 1): s.add(g)
    if o.codepf == 3: codepf()
    srd(s, SD, 94, 95, None, 256)
    stamp(s, o, 0)
    s('v_lshlrev_b32 v%d, 4, v65' % LANE16)
    urgent = s
    if o.defer: s = Seg('deferred')
    s('s_mov_b32 s3, 0x%x' % (INB if o.loc < 0 else 0)); srd(s, SF, sWS, sWS + 1, 3, 65536 + 4096)
    s('s_lshl_b32 s%d, s37, 3' % sG); s('s_add_u32 s%d, s%d, s39' % (sG, sG))
    s('s_lshl_b32 s36, s%d, 4' % sG); s('s_add_u32 s36, s36, s38')
    s('s_min_u32 s3, s%d, 1' % sW); s('s_lshl_b32 s3, s3, 30')
    s('s_lshl_b32 s62, s36, 8'); s('s_add_u32 s62, s62, s3')
    s('v_lshlrev_b32 v72, 2, v65'); s('v_add_u32 v73, s62, v72'); s('v_mov_b32 v74, 0')
    s('buffer_store_dword v74, v73, s[%d:%d], 0 offen %s' % (SF, SF + 3, o.fl_pol), tag='clr')
    if o.dyn:
        s('s_lshl_b32 s3, s%d, 8' % sG); s('s_add_u32 s3, s3, 0x10000'); s('s_min_u32 s62, s38, 1'); s('s_lshl_b32 s62, s62, 30'); s('s_add_u32 s3, s3, s62')
        s('v_lshrrev_b32 v73, 1, v64'); s('v_min_u32 v73, 1, v73'); s('v_lshlrev_b32 v73, 29, v73'); s('v_lshl_add_u32 v73, v64, 7, v73'); s('v_add_u32 v73, s3, v73')
        s('buffer_store_dword v74, v73, s[%d:%d], 0 offen %s' % (SF, SF + 3, o.fl_pol))
    if o.loc < 0:
        s('s_mul_i32 s3, s36, %d' % PST); srd(s, SP_, sWS, sWS + 1, 3, 163840)
        s('s_mul_i32 s3, s%d, %d' % (sG, 16 * PST)); srd(s, SG, sWS, sWS + 1, 3, 16 * PST)
    else:
        s('s_lshl_b32 s3, s%d, 23' % sG); s('s_add_u32 s3, s3, 0x41ffff')
        srd(s, SG, sWS, sWS + 1, 3, 1 << 23); s('s_and_b32 s%d, s%d, 0xffc00000' % (SG, SG))
        s('s_lshr_b32 s3, s38, 3'); s('s_lshl_b32 s3, s3, 22'); s('s_and_b32 s62, s38, 7'); s('s_lshl_b32 s62, s62, 18'); s('s_add_u32 s3, s3, s62')
        srd(s, SP_, SG, SG + 1, 3, 1 << 18)
        s('s_mov_b32 s%d, 0' % sSW)
        if o.loc < 2:
            s('s_getreg_b32 s3, hwreg(HW_REG_XCC_ID)'); s('s_bfe_u32 s3, s3, 0x10002'); s('s_xor_b32 s%d, s3, %d' % (sH, o.loc))
        else:
            s('s_lshl_b32 s3, s%d, 8' % sW); s('s_add_u32 s62, s%d, s3' % SP_); s('s_addc_u32 s63, s%d, 0' % (SP_ + 1))
            s('s_load_dword s3, s[62:63], 0x1000'); s('s_waitcnt lgkmcnt(0)')
            s('s_mov_b32 s68, 0x5bd1e995')
            for txt in ('s_load_dword s69, s[62:63], 0x2000', 's_load_dword s68, s[62:63], 0', 's_waitcnt lgkmcnt(1)', 's_mov_b32 s3, s68', 's_waitcnt lgkmcnt(0)'):
                it = I(txt); it.kind = 'other'; s.add(it)
            s('s_cmp_eq_u32 s3, 0x5bd1e995'); s('s_cselect_b32 s%d, 1, 0' % sH)
    s('''s_lshl_b32 s3, s39, 4
         s_add_u32 s3, s3, s38
         s_lshl_b32 s3, s3, 1
         s_add_u32 s3, s3, s%d
         s_lshl_b32 s3, s3, 18''' % sP)
    srd(s, SK, 46, 47, 3, 0x40000); srd(s, SV, 48, 49, 3, 0x40000)
    s('s_lshl_b32 s3, s38, 18'); srd(s, SWO, 52, 53, 3, 0x40000)
    srd(s, SO, 92, 93, None, 8 * 160 * 2048)
    kv_start(s, o)
    for c in range(4):
        if o.rotc: s('s_add_u32 s3, s39, %d' % c); s('s_and_b32 s3, s3, 3')
        else: s('s_mov_b32 s3, %d' % c)
        s('s_lshl_b32 s%d, s3, 7' % (sCW + c)); s('s_mul_i32 s%d, s3, %d' % (sCP + c, 20480 if o.loc < 0 else 32768))
    c = math.log2(math.e) / math.sqrt(128.0)
    s('s_mov_b32 s%d, 0x%x' % (sC, f2u(c))); s('s_mov_b32 s%d, 0x%x' % (sC + 1, f2u(c)))
    s('s_mov_b32 s%d, 0x%x' % (sTHR, f2u(2.0 ** 24 if not o.force_redo else 1.0)))
    s('s_mov_b32 s%d, 0' % sREDO)
    s('s_lshl_b32 s3, s%d, 12' % sG); s('s_lshl_b32 s36, s38, 4'); s('s_add_u32 s3, s3, s36')
    s('s_lshl_b32 s36, s%d, 2' % sW); s('s_add_u32 s3, s3, s36')
    s('v_lshlrev_b32 v68, 8, v67'); s('v_add_u32 v68, s3, v68')
    s('v_and_b32 v69, %d, v65' % (48 | (16 // o.rep - 1))); s('v_min_u32 v69, 1, v69'); s('v_lshl_add_u32 v%d, v69, 30, v68' % FLA)
    s('v_min_u32 v69, 1, v64'); s('v_lshlrev_b32 v69, 30, v69'); s('s_lshl_b32 s3, s%d, 3' % sG); s('s_add_u32 s3, s3, 128'); s('v_add_u32 v%d, s3, v69' % CA)
    s('v_mov_b32 v%d, 1' % CNT)
    s('v_xor_b32 v68, v66, v67'); s('v_lshlrev_b32 v68, 4, v68')
    s('v_lshl_add_u32 v%d, v66, 8, v68' % DK)
    for t in range(1, 4): s('v_xor_b32 v%d, %d, v%d' % (DK + t, 64 * t, DK))
    s('v_lshl_add_u32 v%d, v66, 8, v70' % DV)
    s('v_xor_b32 v%d, 0x80, v%d' % (DV + 1, DV))
    s('v_lshl_add_u32 v68, v67, 8, v68')
    s('s_lshl_b32 s36, s%d, 13' % sP)
    s('v_add_u32 v%d, s36, v68' % KA)
    for k in range(1, 4): s('v_xor_b32 v%d, %d, v%d' % (KA + k, 64 * k, KA))
    for k in range(4): s('v_add_u32 v%d, 0x10000, v%d' % (KA2 + k, KA + k))
    late, s = s, urgent
    s('s_lshl_b32 s36, s%d, 13' % sP)
    s('v_lshrrev_b32 v68, 1, v67'); s('v_xor_b32 v68, v68, v66'); s('v_lshlrev_b32 v68, 4, v68')
    s('v_lshl_add_u32 v68, v67, 7, v68')
    s('s_mul_i32 s3, s%d, 10240' % sHF)
    s('v_add_u32 v%d, s3, v68' % XAD)
    s('v_xor_b32 v%d, 64, v%d' % (XAD + 1, XAD))
    s('v_lshrrev_b32 v68, 2, v65')
    s('v_and_b32 v69, 7, v68')
    s('v_lshlrev_b32 v69, 5, v69')
    s('v_lshl_add_u32 v69, v68, 8, v69')
    s('v_and_b32 v68, 3, v65')
    s('v_lshl_add_u32 v69, v68, 3, v69')
    s('s_add_u32 s36, s36, 0x%x' % V0)
    s('v_add_u32 v%d, s36, v69' % VA)
    for k in range(1, 8): s('v_xor_b32 v%d, %d, v%d' % (VA + k, 32 * k, VA))
    for k in range(8): s('v_subrev_u32 v%d, 0x4000, v%d' % (VA2 + k, VA + k))
    if o.stage:
        s('s_add_u32 s3, s%d, 0x%x' % (sMK, KAD(5))); s('v_add_u32 v139, s3, v%d' % LANE16)
        s('s_add_u32 s3, s%d, 0x%x' % (sMK, VAD(5))); s('v_add_u32 v143, s3, v%d' % LANE16)
    stamp(s, o, 1)
    o.deferred = late.items if o.defer else []
    return s

def is_vm(g): return any(x.kind in ('dma', 'vst', 'vld') for x in g)
class Pace: since = 99; slots = 0
class Atomic(list): pass
barrier_hooks = []
def gemm_kstep(s, mf, need, reads, barrier, extra, every=1, vq=None, pack=False):
    n = len(mf)
    rg = list(range(2, 2 + (len(reads) + 1) // 2)) if (n <= 20 or pack) else list(range(2, 2 + len(reads)))
    rd = spread(reads, rg) if reads else {}
    part = False
    for g in range(n):
        if g == 0: s.wait(regs=need)
        s.add(mf[g])
        if g == 1 and barrier is not None:
            s.wait(**barrier)
            s('s_barrier')
            for f in barrier_hooks: f()
            del barrier_hooks[:]
        s.add(rd.get(g, []))
        Pace.since += 1
        busy = len(rd.get(g, []))
        if Pace.slots:
            free = 2 - busy - (2 if (g == 1 and barrier is not None) else 0)
            m0_fresh = False
            while free > 0:
                q = vq if vq else None
                if q is not None:
                    head = [x for x in q[0] if not (x.kind == 'nop')]
                    vm = head[0].kind in ('dma', 'vst', 'vld')
                    if vm and (Pace.since < every or m0_fresh): q = None
                if q is None:
                    while extra and extra[0] == [] and free == 2 - busy:
                        extra.pop(0); free = 0
                    if free <= 0 or not extra or extra[0] == []: break
                    q = extra
                    if isinstance(q[0], Atomic):
                        s.add(list(q.pop(0))); free -= 2; m0_fresh = False
                        continue
                    head = list(q[0])
                    vm = False
                it = head.pop(0)
                s.add(it)
                if it.kind != 'label': free -= 1
                if vm: Pace.since = 0
                m0_fresh = it.kind == 'salu' and ('m0', 0) in it.wr
                if q is extra: part = bool(head)
                if head: q[0] = head
                else: q.pop(0)
            if g == n - 1 and part: s.add(extra.pop(0))
        elif vq and Pace.since >= every and busy < (1 if pack else 2):
            s.add(vq.pop(0)); Pace.since = 0
        elif extra and busy < 2 and (not is_vm(extra[0]) or Pace.since >= every):
            if is_vm(extra[0]): Pace.since = 0
            s.add(extra.pop(0))

def qconv_stream(o):
    c = sr(sC, 2)
    items = [(j, sidx) for j in range(5) for sidx in range(4)]
    tq = lambda i: 60 + 4 * (i % 4)
    def st1(i):
        j, sidx = items[i]; out = []
        for e in range(2):
            b = qacc(2 * sidx + e, j)
            if (o.qpk == 1 and (i < 3 or (i >= 8 and i % 4 == 0))) or o.qpk == 2: out += [I('v_mul_f32 v%d, s%d, v%d' % (b + k, sC, b + k)) for k in range(4)]
            else: out += [I('v_pk_mul_f32 %s, %s, %s' % (vr(b, 2), vr(b, 2), c)), I('v_pk_mul_f32 %s, %s, %s' % (vr(b + 2, 2), vr(b + 2, 2), c))]
        for e in range(2):
            b = qacc(2 * sidx + e, j)
            out += [I('v_cvt_pk_bf16_f32 v%d, v%d, v%d' % (tq(i) + 2 * e, b, b + 1)), I('v_cvt_pk_bf16_f32 v%d, v%d, v%d' % (tq(i) + 2 * e + 1, b + 2, b + 3))]
        return out
    sw = lambda op, i: [I('%s v%d, v%d' % (op, tq(i), tq(i) + 2)), I('%s v%d, v%d' % (op, tq(i) + 1, tq(i) + 3))]
    def st4(i):
        j, sidx = items[i]
        return [I('v_accvgpr_write_b32 a%d, v%d' % (Q + 16 * j + 4 * sidx + k, tq(i) + k)) for k in range(4)]
    n = len(items)
    rounds = []
    for i in range(n + 3):
        r = st1(i) if i < n else [I('s_nop 1')]
        if 0 <= i - 3 < n: r += st4(i - 3)
        if 0 <= i - 2 < n: r += sw('v_permlane16_swap_b32', i - 2)
        if 0 <= i - 1 < n: r += sw('v_permlane32_swap_b32', i - 1)
        rounds.append(r)
    return rounds

def gen_q(o):
    s = Seg('qphase')
    def reads_for(n):
        buf = n & 1
        w = rd_tr(KB + 32 * buf, WAD(n), 'wq%d' % n)
        xb = XBUF(n >> 1)
        x = [I('ds_read_b128 %s, v%d offset:%d' % (ar(XF + 20 * buf + 4 * j, 4), XAD + (n & 1), xb + 2048 * j), lds=(xb, xb + 20480, 'x%d' % (n >> 1))) for j in range(5)]
        return x + w
    if o.x1e: s.add(dma_x(o, 1))
    if o.x1e > 1: s.add(dma_wq(o, 2))
    s.wait(tags=['x0', 'wq0'])
    s('s_barrier')
    stamp(s, o, 2)
    s.add(reads_for(0))
    vq = (dma_wq(o, 2) if o.x1e < 2 else []) + (dma_x(o, 1) if not o.x1e else [])
    kv = [dma_kv(o, k, j) for k, j in KVSEQ[:o.ninit]]
    rounds = qconv_stream(o)
    for n in range(16):
        buf = n & 1
        tstamp(s, o, 'q', n)
        if n == 0: tstamp(s, o, 'w', 0)
        order = [(db, j) for db in range(8) for j in range(5)] if n < 15 else [(db, j) for j in range(5) for db in range(8)]
        mf = []
        for db, j in order:
            d = vr(qacc(db, j), 4)
            mf.append(mfma(d, ar(KB + 32 * buf + 4 * db, 4), ar(XF + 20 * buf + 4 * j, 4), '0' if n == 0 else d))
        m = n + 1
        tags = []
        if m < 16:
            tags = ['wq%d' % m]
            if m % 2 == 0: tags.append('x%d' % (m >> 1))
        else: tags = ['K0']
        new = []
        if m + 2 < 16: new += dma_wq(o, m + 2)
        if m % 2 == 0 and m // 2 + 1 < 8: new += dma_x(o, m // 2 + 1)
        for _ in range(o.kvat_l.count(m)): new += kv.pop(0)
        if o.stage and m in o.stat_l: new += stage_ld(o, 'KV'[o.stat_l.index(m)])
        if m == 14: new += kv.pop(0) + kv.pop(0)
        if m == 16: new += kv.pop(0)
        barrier_hooks.append(lambda new=new: vq.extend(new))
        extra = []
        if n == 0:
            dfr = []
            for x in o.deferred:
                if x.mn == 's_addc_u32': dfr[-1] = Atomic(dfr[-1] + [x])
                else: dfr.append([x])
        if n < 4: extra = dfr
        if n == 3: tailx = extra
        if n == 4:
            for g in dfr: s.add(list(g))
        if n == 15:
            head = sum(rounds[:3], []); del rounds[:3]
            extra = [[]] * 10 + [head[i:i + 2] for i in range(0, len(head), 2)]
        gemm_kstep(s, mf, regs('a', KB + 32 * buf, 32) + regs('a', XF + 20 * buf, 20), reads_for(m) if m < 16 else rd_k(0), dict(tags=tags), extra, o.qevery, vq, o.qpack)
    assert not vq
    for g in extra: s.add(g)
    stamp(s, o, 3)
    kvq = sum(kv, [])
    if o.qcap:
        for i_, g in enumerate(kvq):
            k = [i for i, x in enumerate(g) if x.kind == 'dma'][0]
            kvq[i_] = g[:k] + [I('s_waitcnt vmcnt(%d)' % o.qcap)] + g[k:]
    qk = qk_list(False)
    mx = []
    for j in range(4):
        t = Seg('t'); max8(t, j, MX + j, False); mx.append(t.items)
    done = 3
    pend = []
    first = True
    for r in rounds:
        if kvq: s.add(kvq.pop(0))
        k = 0
        for it in r:
            s.add(it); k += 1
            if pend and k % 2 == 0:
                if first: s.wait(regs=regs('a', KB, 32)); first = False
                s.add(pend.pop(0))
        done += 1
        if done >= 8 and (done - 8) % 4 == 0:
            j = (done - 8) // 4
            pend += qk[8 * j:8 * j + 8]
            if j >= 1: s.add(mx[j - 1])
    s('s_nop 0')
    for i, it in enumerate(qk[32:40]):
        s.add(it)
        if i in (2, 3, 4, 5): s.add(mx[3][i - 2])
    assert not pend
    s.add(kvq)
    s('s_nop 6')
    max8(s, 4, MX + 4, False)
    set_nm(s)
    for j in range(5):
        for i in range(0, 8, 2): s('v_pk_add_f32 %s, %s, %s' % (vr(S + 8 * j + i, 2), vr(S + 8 * j + i, 2), vr(NM + 4 * j, 2)))
    stamp(s, o, 4)
    return s

def qk_list(cinit):
    out = []
    for j in range(5):
        for r in range(8):
            kb, sidx = r & 1, r >> 1
            d = vr(S + 8 * j + 4 * kb, 4)
            cc = d if sidx else (vr(NM + 4 * j, 4) if cinit else '0')
            out.append(mfma(d, ar(KB + 4 * (4 * kb + sidx), 4), ar(Q + 16 * j + 4 * sidx, 4), cc))
    return out
def pv_list(o, par, vb, zero=False):
    out = []
    for j in range(5):
        pj = vr(P + 20 * par + 4 * j, 4)
        out += [mfma(oreg(j, db), ar(vb + 4 * db, 4), pj, '0' if zero else oreg(j, db)) for db in range(8)]
        if o.lsum: out.append(mfma(ar(LS + 4 * j, 4), ar(ONES, 4), pj, '0' if zero else ar(LS + 4 * j, 4)))
    return out
def rowred(s, regs_, tmps, op):
    for sw in ('v_permlane32_swap_b32', 'v_permlane16_swap_b32'):
        for r, t in zip(regs_, tmps): s('v_mov_b32 v%d, v%d' % (t, r))
        for r, t in zip(regs_, tmps): s('%s v%d, v%d' % (sw, t, r))
        for r, t in zip(regs_, tmps): s('%s v%d, v%d, v%d' % (op, r, r, t))
def max8(s, j, m, acc):
    b = S + 8 * j
    if acc: s('v_max3_f32 v%d, v%d, v%d, v%d' % (m, m, b, b + 1))
    else: s('v_max_f32 v%d, v%d, v%d' % (m, b, b + 1))
    for i in range(1, 4): s('v_max3_f32 v%d, v%d, v%d, v%d' % (m, m, b + 2 * i, b + 2 * i + 1))
MX, MT = L, 48
def set_nm(s):
    rowred(s, [MX + j for j in range(5)], [MT + j for j in range(5)], 'v_max_f32')
    for j in range(5): s('v_sub_f32 v%d, 0, v%d' % (NM + 4 * j, MX + j))
    for j in range(5):
        for i in range(1, 4): s('v_mov_b32 v%d, v%d' % (NM + 4 * j + i, NM + 4 * j))

def sm_exp(i): return I('v_exp_f32 v%d, v%d' % (S + i, S + i))
def sm_post(o, i, par):
    j = i >> 3
    out = [] if o.lsum else [I('v_add_f32 v%d, v%d, v%d' % (L + j, L + j, S + i))]
    if i & 1: out.append(I('v_cvt_pk_bf16_f32 v%d, v%d, v%d' % (P + 20 * par + 4 * j + ((i & 7) >> 1), S + i - 1, S + i)))
    return out
def sm_gap(o, G, par):
    if o.lsum:
        if G >= 40:
            if (G - 40) % 9 == 8: return []
            G -= (G - 40) // 9
    x = G - 12
    if x < 0: x += 80; par ^= 1
    i = x >> 1
    return [sm_exp(i)] if x % 2 == 0 else sm_post(o, i, par)

def kv_schedule(o):
    q = [(k, j, g) for k, j in KVSEQ[o.ninit + 2 * o.stage:] for g in capped(o, dma_kv(o, k, j), j)]
    free = lambda kind, j: 2 * (j - 5) + 1 if kind == 'K' else 2 * (j - 4) + 1
    sched = {h: [] for h in range(1, 64)}
    n = len(q)
    slow = max(0, 4 * o.lasth - n)
    h, i = 1, 0
    while i < n:
        cap = 4
        h0 = 2 * o.stage
        if o.hold:
            if h <= o.hold: i0 = i + 4
            else: cap = min(4, max(0, i0 + ((n - i0) * (h - o.hold) + o.lasth - o.hold - 1) // (o.lasth - o.hold) - i))
        elif o.uni: cap = min(4, max(0, (n * (h - h0) + o.lasth - h0 - 1) // (o.lasth - h0) - i))
        elif slow > 0: cap = 3
        k = 0
        while k < cap and i < n and free(q[i][0], q[i][1]) <= h:
            sched[h].append(q[i][2]); i += 1; k += 1
        slow -= 4 - k
        h += 1
    if o.stage:
        assert o.ninit == 10
        sched[1] = stage_wr(o, 'K') + sched[1]
        sched[3] = stage_wr(o, 'V') + sched[3]
    return sched

def gen_s0(o):
    s = Seg('s0')
    s.label('L_s0')
    if o.lsum:
        s('v_mov_b32 v%d, 0x3f803f80' % L)
        for k in range(4): s('v_accvgpr_write_b32 a%d, v%d' % (ONES + k, L))
    else:
        for j in range(5): s('v_mov_b32 v%d, 0' % (L + j))
    if o.cap2: s('s_and_b32 s3, s39, 1'); s('s_cselect_b64 vcc, -1, 0')
    s.wait(tags=['K1', 'V0'])
    s('s_barrier')
    s.add(rd_k(1))
    dm = spread(o.sched[1] + [[I('buffer_atomic_add v%d, v%d, s[%d:%d], 0 offen' % (CNT, CA, SD, SD + 3))]], [1, 8, 15, 22, 29])
    for i in range(35):
        if i < 34: s.add(sm_exp(i))
        else: s('s_nop 0')
        if i > 0: s.add(sm_post(o, i - 1, 0))
        s.add(dm.get(i, []))
    return s

def step(s, o, t, more1=(), more2=(), wtags=(), valu1=None):
    par = t & 1
    if t % 2 == 1: tstamp(s, o, 'a', t // 2)
    if t % 3 == 1: tstamp(s, o, 'w', 1 + t // 3)
    if t >= 26: tstamp(s, o, 'e', 2 * (t - 26))
    mf = qk_list(True) + pv_list(o, par ^ 1, VB, t == 1)
    NG = len(mf)
    fill = {g: [] for g in range(NG)}
    empty = [g for g in range(NG) if not sm_gap(o, g, par)]
    if o.lsum:
        g1 = [g for g in empty if g < 32]; g2 = [g for g in empty if 42 < g < NG - 8]
    else: g1, g2 = [1, 5, 9, 13, 17, 21, 25, 29], [45, 49, 53, 57, 61, 65, 69, 73]
    for g, l in spread(rd_v(VB, t - 1), g1).items(): fill[g] += l
    for g, l in spread(rd_k(t + 1) if t < 31 else rd_v(KB, 31), g2).items(): fill[g] += l
    for base, end, dm in ((4, 40, o.sched[2 * t] + list(more1)), (44, NG, o.sched[2 * t + 1] + list(more2))):
        n = len(dm)
        last = -1
        for i, g in enumerate(dm):
            pos = base + ((end - base) * i) // n
            if o.lsum:
                while len(sm_gap(o, pos, par)) + len(fill[pos]) > 1 or (sm_gap(o, pos, par) and sm_gap(o, pos, par)[0].kind == 'trans'): pos += 1
            else: pos &= ~1
            if o.split:
                k = [n_ for n_, x in enumerate(g) if x.kind in ('wait', 'dma', 'vld', 'ph', 'dsw')][0]
                lo = max(base - 3, last + 1)
                for n_ in range(k): fill[max(lo, pos - (k - n_))].append(g[n_])
                g = g[k:]
                last = pos
            fill[pos] += g
    if valu1:
        for g, l in spread(valu1, list(range(33, 40))).items(): fill[g] += l
    for g in range(NG):
        if g == 0: s.wait(regs=regs('a', KB, 32))
        if g == 40:
            if t >= 26: tstamp(s, o, 'e', 2 * (t - 26) + 1)
            s.wait(regs=regs('a', VB, 32))
        s.add(mf[g])
        if g == 40:
            s.wait(tags=(['K%d' % (t + 1)] if t < 31 else []) + ['V%d' % t] + list(wtags))
            s('s_barrier')
        s.add(sm_gap(o, g, par))
        s.add(fill[g])

def gen_attn(o):
    s = Seg('attn')
    pre = Seg('t')
    t0 = DWO
    pre('v_lshrrev_b32 v%d, 8, v%d' % (t0 + 1, DV))
    pre('v_and_b32 v%d, 0x70, v%d' % (t0, DV))
    pre('v_lshl_add_u32 v%d, v%d, 10, v%d' % (t0, t0 + 1, t0))
    pre('v_bfe_u32 v%d, v%d, 7, 1' % (t0 + 1, DV))
    pre('v_mul_u32_u24 v%d, 0x20200, v%d' % (t0 + 1, t0 + 1))
    pre('v_add_u32 v%d, v%d, v%d' % (t0, t0, t0 + 1))
    pre('v_xor_b32 v%d, 0x20200, v%d' % (t0 + 1, t0))
    pre('v_add_u32 v%d, %d, v%d' % (t0 + 2, 2 * 3072, t0))
    pre('v_add_u32 v%d, %d, v%d' % (t0 + 3, 3 * 3072, t0 + 1))
    pre('v_add_u32 v%d, %d, v%d' % (t0 + 1, 3072, t0 + 1))
    for t in range(4): pre('v_xor_b32 v%d, 0x20000, v%d' % (t0 + 4 + t, t0 + t))
    cnt = [[I('s_lshl_b32 s%d, s%d, 3' % (sA, sG)), I('buffer_load_dword v%d, off, s[%d:%d], s%d offset:128 sc1' % (CNT, SD, SD + 3, sA), tag='cnt')]]
    if o.wocap:
        dwo0 = dma_wo
        def dma_wo_(o_, u):
            out = []
            for g in dwo0(o_, u):
                k = [i for i, x in enumerate(g) if x.kind == 'dma'][0]
                out.append(g[:k] + [I('s_waitcnt vmcnt(%d)' % o.wocap)] + g[k:])
            return out
    else: dma_wo_ = dma_wo
    busy = lambda h: any(o.sched[x] for x in range(h, 64))
    early0 = not busy(59)
    for t in range(1, 32):
        if t == 29: step(s, o, t, valu1=pre.items, more2=dma_wo_(o, 0) if early0 else [])
        elif t == 30: step(s, o, t, more2=cnt + ([] if early0 else dma_wo_(o, 0)) + dma_wo_(o, 1) + (dma_wo_(o, 2) if early0 else []))
        elif t == 31: step(s, o, t, more1=[] if early0 else dma_wo_(o, 2), more2=dma_wo_(o, 3), wtags=['cnt'])
        else: step(s, o, t)
        if t == 26 and o.pfo:
            s('v_lshlrev_b32 v%d, 3, v%d' % (CA, LANE16))
            s('s_lshl_b32 s3, s39, 15'); s('s_lshl_b32 s36, s%d, 13' % sW); s('s_add_u32 s3, s3, s36')
            s('buffer_load_dword v%d, v%d, s[%d:%d], s3 offen' % (CA + 1, CA, SWO, SWO + 3), dummy=True)
    return s

def gen_epi(o):
    s = Seg('epi')
    R = NM
    v = Seg('t')
    def inv(j):
        if o.lsum: v('v_accvgpr_read_b32 v%d, a%d' % (L + j, LS + 4 * j))
        v('v_cmp_nge_f32 %s, s%d, v%d' % (sr(sM0 if j == 0 else sM1, 2), sTHR, L + j))
        v('v_rcp_f32 v%d, v%d' % (R + 2 * j, L + j))
        if j: v('s_or_b64 %s, %s, %s' % (sr(sM0, 2), sr(sM0, 2), sr(sM1, 2)))
        else: v('s_nop 0')
        v('v_mov_b32 v%d, v%d' % (R + 2 * j + 1, R + 2 * j))
    if not o.lsum:
        rowred(v, [L + j for j in range(5)], [90 + j for j in range(5)], 'v_add_f32')
        for j in range(5): inv(j)
    def vote():
        v('s_cmp_lg_u64 %s, 0' % sr(sM0, 2))
        v('s_cselect_b32 s3, 1, 0')
        v('v_mov_b32 v95, s3')
        v('s_lshl_b32 s3, s%d, 2' % sW); v('s_add_u32 s3, s3, 0x%x' % FLG)
        v('v_mov_b32 v96, s3')
        v('ds_write_b32 v96, v95', lds=(lambda c: (FLG, FLG + 16, ev(tg('flg'), c))))
    tg = lambda n: (lambda c: '%s%d' % (n, c.get('redo', 0)))
    v('s_mul_i32 s3, s%d, 20480' % sW); v('s_add_u32 s3, s3, 0x%x' % EX)
    v('v_add_u32 v97, s3, v%d' % LANE16)
    v('s_xor_b32 s3, s%d, 2' % sW); v('s_mul_i32 s3, s3, 20480'); v('s_add_u32 s3, s3, 0x%x' % EX)
    v('v_add_u32 v98, s3, v%d' % LANE16)
    exr = (lambda c: (EX, EX + 81920, ev(tg('ex'), c)))
    for j in range(5):
        if o.lsum: inv(j)
        if j == 4: vote()
        for sidx in range(4):
            f = 16 * j + 4 * sidx
            for e in range(2):
                k, b = otile(j, 2 * sidx + e)
                if k == 'a':
                    for i in range(4): v('v_accvgpr_read_b32 v%d, a%d' % (90 + i, b + i))
                    b = 90
                if j < o.epk:
                    for i in range(4): v('v_mul_f32 v%d, v%d, v%d' % (b + i, b + i, R + 2 * j))
                else:
                    v('v_pk_mul_f32 %s, %s, %s' % (vr(b, 2), vr(b, 2), vr(R + 2 * j, 2)))
                    v('v_pk_mul_f32 %s, %s, %s' % (vr(b + 2, 2), vr(b + 2, 2), vr(R + 2 * j, 2)))
                v('v_cvt_pk_bf16_f32 v%d, v%d, v%d' % (f + 2 * e, b, b + 1))
                v('v_cvt_pk_bf16_f32 v%d, v%d, v%d' % (f + 2 * e + 1, b + 2, b + 3))
            v('ds_write_b128 v97, %s offset:%d' % (vr(f, 4), 1024 * (4 * j + sidx)), lds=exr)
    work = v.items
    mf = pv_list(o, 1, KB)
    tstamp(s, o, 'e', 12)
    s.wait(regs=regs('a', KB, 32))
    for g in range(len(mf)):
        s.add(mf[g])
        if g == 0: s('s_barrier')
        if g < 12: s.add(sm_gap(o, g, 0))
        else: s.add(work[:o.epw]); work = work[o.epw:]
    stamp(s, o, 5); tstamp(s, o, 'e', 13)
    s.add(work)
    tstamp(s, o, 'e', 14)
    s('v_mov_b32 v96, 0x%x' % FLG)
    s.wait(lgkm_all=True, tags=['wo0'])
    s('s_barrier')
    s('ds_read_b128 v[92:95], v96', lds=(lambda c: (FLG, FLG + 16, ev(tg('flg'), c))))
    s('s_mul_i32 s3, s%d, 0x2080' % sP)
    s('v_xor_b32 v84, s3, v%d' % VA)
    for k in range(1, 4): s('v_xor_b32 v%d, %d, v84' % (84 + k, 32 * k))
    for k in range(4): s('v_subrev_u32 v%d, 0x%x, v%d' % (80 + k, V0, 84 + k))
    s('v_readfirstlane_b32 s3, v%d' % CNT)
    s.wait(regs=regs('v', 92, 4))
    s('v_or_b32 v92, v92, v93'); s('v_or3_b32 v92, v92, v94, v95')
    s('s_cmp_lt_u32 s3, 16')
    s('v_readfirstlane_b32 s36, v92')
    s('s_cbranch_scc1 L_cntspin')
    s.label('L_cntok')
    s('s_andn2_b32 s36, s36, s%d' % sREDO)
    if not o.diag: s('s_cbranch_scc1 L_redo')
    stamp(s, o, 6); tstamp(s, o, 'e', 15)
    return s

def gen_spin(s, name, back, load, cond, sCNT=sCNT):
    s.label(name)
    s('s_mov_b32 s%d, 0' % sCNT)
    s.label(name + '_l')
    s('s_sleep %d' % Pace.slp)
    s(load)
    s('s_waitcnt vmcnt(0)')
    s('s_add_u32 s%d, s%d, 1' % (sCNT, sCNT))
    s('s_cmp_gt_u32 s%d, 0x40000' % sCNT)
    s('s_cbranch_scc1 %s' % back)
    for l in cond: s(l.replace('@', name + '_l'))
    s('s_branch %s' % back)

def gen_redo(o):
    s = Seg('redo')
    s.label('L_redo')
    s('s_mov_b32 s%d, 1' % sREDO)
    s('s_waitcnt vmcnt(0) lgkmcnt(0)')
    s('s_barrier')
    t = 56
    s('v_lshrrev_b32 v%d, 4, v%d' % (t, LANE16))
    s('v_and_b32 v%d, 15, v%d' % (t + 1, t))
    s('v_and_b32 v%d, 48, v%d' % (t, t))
    s('v_lshl_add_u32 v%d, v%d, 8, v%d' % (t, t + 1, t))
    s('v_add_u32 v%d, 0x1000, v%d' % (t + 1, t))
    for j in range(5): s('v_mov_b32 v%d, 0xff800000' % (MX + j))
    s('s_mov_b32 s%d, 0' % sA)
    lp = Seg('redo_loop')
    lp.label('L_redo_loop')
    for kb in range(2):
        for k in range(4): lp('buffer_load_dwordx4 %s, v%d, s[%d:%d], s%d offen offset:%d' % (ar(KB + 4 * (4 * kb + k), 4), t + kb, SK, SK + 3, sA, 64 * k))
    lp('s_waitcnt vmcnt(0)')
    lp.add(qk_list(False))
    lp('s_nop 7')
    for j in range(5): max8(lp, j, MX + j, True)
    lp('s_add_u32 s%d, s%d, 0x2000' % (sA, sA))
    lp('s_cmp_lt_u32 s%d, 0x40000' % sA)
    lp('s_cbranch_scc1 L_redo_loop')
    e = Seg('redo_end')
    set_nm(e)
    kv_start(e, o)
    for k in range(8): e('v_subrev_u32 v%d, 0x4000, v%d' % (VA2 + k, VA + k))
    for k, j in KVSEQ[:o.ninit]: e.add(dma_kv(o, k, j))
    if o.stage: e.add(stage_ld(o, 'K') + stage_ld(o, 'V'))
    e('v_mov_b32 v%d, 0x40000000' % CA)
    e.wait(tags=['K0'])
    e('s_barrier')
    e.add(rd_k(0))
    e.wait(regs=regs('a', KB, 32))
    e.add(qk_list(True))
    e('s_nop 7')
    e('s_branch L_s0')
    return s, lp, e

E0V, E1V = 144, 0
PO = 88
AD, OD, IA, PL, C10, C01, AD2, OD2, AC, RT = 224, 225, 226, 227, 228, 229, 230, 231, 232, 248
def etile(c, jn, j): return (E1V if c & 1 else E0V) + 8 * (5 * (jn >> 1) + j) + 4 * (jn & 1)
def poll_txt(): return 'buffer_load_dword v%d, v%d, s[%d:%d], 0 offen sc1' % (PL, IA, SF, SF + 3)
def flag_ops(o, c):
    return [I('v_mov_b32 v89, %d' % (c + 1)), I('buffer_store_dword v89, v%d, s[%d:%d], 0 offen %s' % (FLA, SF, SF + 3, o.fl_pol))]
def load_groups(o, c, dst, sreg, g=SG):
    out = []
    for k in range(10):
        off, ad = (2 * PST * k, AD) if k < 8 else (8 * PST * (k - 8), AD2)
        out.append([I('s_add_u32 s%d, s%d, 0x%x' % (sreg, sCP + c, off)),
                    I('buffer_load_dwordx4 %s, v%d, s[%d:%d], s%d offen %s' % (dst(k), ad, g, g + 3, sreg, o.rd_pol))])
    return out
def red_addr(o):
    s = Seg('t')
    t = RT
    s('s_lshl_b32 s3, s%d, 4' % sG); s('s_and_b32 s62, s38, %d' % (15 & ~(16 // o.rep - 1))); s('s_add_u32 s3, s3, s62'); s('s_lshl_b32 s3, s3, 8')
    s('v_lshrrev_b32 v%d, 2, v%d' % (t, LANE16)); s('v_add_u32 v%d, s3, v%d' % (IA, t))
    s('v_lshrrev_b32 v%d, 4, v%d' % (t, LANE16))
    s('v_and_b32 v%d, 7, v%d' % (t + 2, t))
    s('s_and_b32 s3, s38, 3'); s('s_mul_i32 s63, s3, 5')
    s('s_lshr_b32 s3, s38, 2')
    s('s_lshr_b32 s36, s3, 1'); s('s_lshl_b32 s36, s36, 3'); s('s_and_b32 s3, s3, 1'); s('s_add_u32 s36, s36, s3')
    s('s_mul_i32 s3, s36, 10240'); s('s_lshl_b32 s62, s%d, 8' % sW); s('s_add_u32 s%d, s3, s62' % sM0)
    s('s_mul_i32 s3, s39, %d' % (160 * 2048)); s('s_lshl_b32 s62, s37, 10'); s('s_add_u32 s3, s3, s62')
    s('s_lshl_b32 s62, s36, 6'); s('s_add_u32 s3, s3, s62'); s('s_lshl_b32 s62, s%d, 3' % sW); s('s_add_u32 s%d, s3, s62' % (sM0 + 1))
    s('v_bfe_u32 v%d, v%d, 3, 2' % (t + 1, t))
    s('v_add_u32 v%d, s63, v%d' % (t + 3, t + 1))
    s('v_lshl_add_u32 v%d, v%d, 3, v%d' % (t + 4, t + 3, t + 2))
    s('v_lshrrev_b32 v%d, 1, v%d' % (t + 5, t + 3))
    s('v_and_b32 v%d, 15, v%d' % (t + 6, t + 4))
    s('v_lshlrev_b32 v%d, 4, v%d' % (t + 6, t + 6))
    s('v_lshl_add_u32 v%d, v%d, 10, v%d' % (t + 6, t + 5, t + 6))
    s('v_lshrrev_b32 v%d, 5, v%d' % (t + 1, t))
    s('v_mul_u32_u24 v%d, %d, v%d' % (t + 5, PST, t + 1))
    s('v_add3_u32 v%d, v%d, v%d, s%d' % (AD, t + 6, t + 5, sM0))
    s('v_lshlrev_b32 v%d, 5, v%d' % (t + 1, t + 1))
    s('v_lshl_add_u32 v%d, v%d, 11, v%d' % (t + 4, t + 4, t + 1))
    s('v_add_u32 v%d, s%d, v%d' % (OD, sM0 + 1, t + 4))
    s('s_add_u32 s63, s63, 4')
    s('s_lshr_b32 s3, s63, 1'); s('s_lshl_b32 s3, s3, 10'); s('s_and_b32 s62, s63, 1'); s('s_lshl_b32 s62, s62, 7'); s('s_add_u32 s3, s3, s62')
    s('s_add_u32 s3, s3, s%d' % sM0)
    s('v_lshrrev_b32 v%d, 3, v%d' % (t + 3, t))
    s('v_mul_u32_u24 v%d, %d, v%d' % (t + 5, PST, t + 3))
    s('v_lshl_add_u32 v%d, v%d, 4, v%d' % (t + 5, t + 2, t + 5))
    s('v_add_u32 v%d, s3, v%d' % (AD2, t + 5))
    s('s_lshl_b32 s3, s63, 14'); s('s_add_u32 s3, s3, s%d' % (sM0 + 1))
    s('v_lshl_add_u32 v%d, v%d, 11, v%d' % (t + 4, t + 2, t + 1))
    s('v_and_b32 v%d, 24, v%d' % (t + 1, t))
    s('v_cmp_eq_u32 vcc, 0, v%d' % (t + 1))
    s('v_add_u32 v%d, s3, v%d' % (t + 4, t + 4))
    s('v_mov_b32 v%d, 0x40000000' % (t + 7))
    s('v_cndmask_b32 v%d, v%d, v%d, vcc' % (OD2, t + 7, t + 4))
    s('v_mov_b32 v%d, 0x3f80' % C10); s('v_mov_b32 v%d, 0x3f800000' % C01)
    return s.items

LA, LO, LD, LA2, LD2, QAD, CL = 108, 109, 110, 111, 112, 113, 114
ODS = ((116, 117), (118, 119), (90, 91))
sI0, sI1, sN, sDB, sIT = 13, 14, 15, 12, 7
sQ = 8
def red_addr_dyn(o):
    s = Seg('t')
    t = RT
    s('s_lshl_b32 s3, s%d, 4' % sG); s('s_and_b32 s62, s38, %d' % (15 & ~(16 // o.rep - 1))); s('s_add_u32 s3, s3, s62'); s('s_lshl_b32 s3, s3, 8')
    s('v_lshrrev_b32 v%d, 2, v%d' % (t, LANE16)); s('v_add_u32 v%d, s3, v%d' % (IA, t))
    s('v_lshrrev_b32 v%d, 4, v%d' % (t, LANE16))
    s('v_and_b32 v%d, 7, v%d' % (t + 2, t))
    s('v_lshrrev_b32 v%d, 5, v%d' % (t + 1, t))
    s('v_bfe_u32 v%d, v%d, 3, 2' % (LO, t))
    s('v_mul_u32_u24 v%d, %d, v%d' % (t + 5, PST if o.loc < 0 else 1 << 18, t + 1))
    s('v_lshl_add_u32 v%d, v%d, 4, v%d' % (LA, t + 2, t + 5))
    s('v_lshlrev_b32 v%d, 5, v%d' % (t + 1, t + 1))
    s('v_lshl_add_u32 v%d, v%d, 11, v%d' % (t + 4, t + 2, t + 1))
    s('v_lshl_add_u32 v%d, v%d, 14, v%d' % (LD, LO, t + 4))
    s('v_cmp_eq_u32 vcc, 0, v%d' % LO)
    s('v_lshrrev_b32 v%d, 3, v%d' % (t + 3, t))
    s('v_mov_b32 v%d, 0x40000000' % (t + 7))
    s('v_cndmask_b32 v%d, v%d, v%d, vcc' % (LD2, t + 7, t + 4))
    s('v_mul_u32_u24 v%d, %d, v%d' % (t + 5, PST, t + 3))
    s('v_lshl_add_u32 v%d, v%d, 4, v%d' % (LA2, t + 2, t + 5))
    if o.sl8:
        s('v_lshl_add_u32 v%d, v%d, 8, v%d' % (LA2, LO, LA))
        s('v_lshl_add_u32 v%d, v%d, 3, v%d' % (LD2, LO, t + 4))
    s('s_mul_i32 s3, s39, %d' % (160 * 2048)); s('s_lshl_b32 s62, s37, 10'); s('s_add_u32 s%d, s3, s62' % sDB)
    s('s_lshl_b32 s3, s%d, 8' % sG); s('s_add_u32 s3, s3, 0x10000')
    if o.loc >= 0: s('s_lshl_b32 s62, s%d, 7' % sH); s('s_add_u32 s3, s3, s62')
    s('v_min_u32 v%d, 1, v%d' % (t + 3, t)); s('v_lshlrev_b32 v%d, 30, v%d' % (t + 3, t + 3)); s('v_add_u32 v%d, s3, v%d' % (QAD, t + 3))
    s('v_mov_b32 v%d, 0x3f80' % C10); s('v_mov_b32 v%d, 0x3f800000' % C01)
    return s.items

def gen_op(o):
    s = Seg('op')
    exr = (lambda c: (EX, EX + 81920, 'ex%d' % c.get('redo', 0)))
    KSL = [(4 * c + r, [(2 * a + e, kk) for kk in range(2) for e in range(2)]) for c in range(4) for a in range(2) for r in range(4)]
    def reads_for(ks):
        u, fr = KSL[ks]
        base = OSLOT[u % 8]
        areg, imm = (80, base) if base < V0 else (84, base - V0)
        return [I('ds_read_b64_tr_b16 %s, v%d offset:%d' % (ar(KB + 16 * (ks & 1) + 4 * i + 2 * e, 2), areg + jn, imm + 8192 * kk + 4096 * e), lds=(base, base + 16384, 'wo%d' % u))
                for i, (jn, kk) in enumerate(fr) for e in range(2)]
    def conv(c, a):
        out = []
        for j in range(5):
            b = etile(c, 2 * a, j)
            cv = [I('v_cvt_pk_bf16_f32 v%d, v%d, v%d' % (b + i, b + 2 * i, b + 2 * i + 1)) for i in range(4)]
            out.append(cv[:2]); out.append(cv[2:])
            out.append([I('s_add_u32 s%d, s%d, 0x%x' % (sA, sCP + c, ((10 if o.loc < 0 else 16) * a + j) * 1024)),
                        I('buffer_store_dwordx4 %s, v%d, s[%d:%d], s%d offen %s' % (vr(b, 4), PO, SP_, SP_ + 3, sA, o.st_pol), tag='st%d' % c)])
        return out
    s('s_mov_b32 s%d, 0' % sREDO)
    s.add(reads_for(0))
    part = [I('ds_read_b128 %s, v98 offset:%d' % (ar(PART + 4 * f, 4), 1024 * f), lds=exr) for f in range(20)]
    own = [I('ds_read_b128 %s, v97 offset:%d' % (ar(OWN + 4 * f, 4), 1024 * f), lds=exr) for f in range(20)]
    s('s_mul_i32 s3, s%d, %d' % (sP, 80 if o.loc < 0 else 128)); s('s_mul_i32 s36, s%d, %d' % (sHF, 5 if o.loc < 0 else 8)); s('s_add_u32 s3, s3, s36'); s('s_lshl_b32 s3, s3, 10')
    s('v_add_u32 v%d, s3, v%d' % (PO, LANE16))
    if o.exsp: extra = sum(([[x], []] if i % 3 else [[x]] for i, x in enumerate(part)), []) + sum(([[x], [], []] for x in own), [])
    else: extra = [part[i:i + 2] for i in range(0, 20, 2)] + [own[i:i + 2] for i in range(0, 20, 2)]
    vq = []
    ra = red_addr_dyn(o) if o.dyn else red_addr(o)
    seen = set()
    first_use, last_use = {}, {}
    for ks, (u, fr) in enumerate(KSL):
        first_use.setdefault(u, ks); last_use[u] = ks
    pending = list(range(4, 16))
    for ks, (u, fr) in enumerate(KSL):
        c, phi, dh = u >> 2, (u >> 1) & 1, u & 1
        if ks % 2 == 0: tstamp(s, o, 'o', ks // 2)
        if ks % 16 == 0: tstamp(s, o, 'w', 12 + ks // 16)
        buf = ks & 1
        mf = []
        for i, (jn, kk) in enumerate(fr):
            sidx = 2 * dh + kk
            first = (c, jn) not in seen; seen.add((c, jn))
            for j in range(5):
                d = vr(etile(c, jn, j), 4)
                if phi: bf = ar(PART + 16 * j + 4 * sidx, 4)
                elif c == 0: bf = vr(16 * j + 4 * sidx, 4)
                else: bf = ar(OWN + 16 * j + 4 * sidx, 4)
                mf.append(mfma(d, ar(KB + 16 * buf + 4 * i, 4), bf, '0' if first else d))
        need = regs('a', KB + 16 * buf, 16)
        if phi and c == 0: need = need + regs('a', PART, 80)
        bar = None
        nxt = KSL[ks + 1][0] if ks + 1 < 32 else None
        exk = 6 if o.exsp else 2
        if nxt is not None and (first_use[nxt] == ks + 1 or ks == exk):
            if ks == exk: need = need + regs('a', OWN, 80) + regs('a', PART, 80)
            new = []
            for v in list(pending):
                ok = v == 4 or (5 <= v <= 7 and ks >= exk) or (v >= 8 and last_use[v - 8] <= ks)
                if not ok: break
                new += dma_wo(o, v); pending.remove(v)
            bar = dict(tags=['wo%d' % nxt])
            barrier_hooks.append(lambda new=new: vq.extend(new))
        rds = reads_for(ks + 1) if nxt is not None else []
        if ks == (9 if o.exsp else 4): extra += [ra[i:i + 2] for i in range(0, len(ra), 2)]
        if ks % 4 == 0 and ks > 0:
            cv = [[]] * 2 + conv((ks - 4) >> 3, ((ks - 4) >> 2) & 1)
            extra[0:0] = cv
        for cc, at in enumerate(int(x) for x in o.fl.split(',')):
            if ks == at: extra.insert(0, [Wait(tags=['st%d' % cc])] + flag_ops(o, cc))
        for x in (o.cfl.split(',') if o.cfl else []):
            cc, at = (int(y) for y in x.split(':'))
            if ks == at: extra.insert(0, [CondOps(['st%d' % cc], [i.text for i in flag_ops(o, cc)], 43)])
        if o.early:
            if ks == o.epoll: extra.insert(0, [I(poll_txt(), tag='poll')])
            if ks == o.epoll + 2:
                extra += [[I('s_mov_b32 s%d, s%d' % (SG2, SG)), I('s_mov_b32 s%d, s%d' % (SG2 + 1, SG + 1))],
                          [Wait(regs=[('v', PL)]), I('v_cmp_gt_u32 vcc, 1, v%d' % PL), I('s_mov_b32 s%d, 0x20000' % (SG2 + 3)), I('s_cmp_eq_u64 vcc, 0'),
                           I('s_cselect_b32 s%d, 0x%x, 0' % (SG2 + 2, 16 * PST)), I('s_cselect_b32 s%d, 1, 0' % sE)]]
                for g in load_groups(o, 0, lambda k: vr(144 + 4 * k, 4), sB, SG2): extra += [g] + [[]] * (o.ldevery - 1)
        if o.dyn and o.eclaim and ks == o.eclaim:
            extra.insert(0, [I('v_mov_b32 v%d, %d' % (CL, o.nb)), I('buffer_atomic_add v%d, v%d, s[%d:%d], 0 offen sc0' % (CL, QAD, SF, SF + 3), tag='claim'), I(poll_txt(), tag='poll')])
        elif ks == 30 and not (o.dyn and o.eclaim): extra.insert(0 if o.early else len(extra), [I(poll_txt(), tag='poll')])
        gemm_kstep(s, mf, need, rds, bar, extra, o.oevery, vq)
        if ks % 8 == 7: stamp(s, o, 7 + c)
    extra = [g for g in extra if g]
    assert not extra and not vq and not pending, (len(extra), len(vq), pending)
    s('s_nop 3')
    for g in conv(3, 1): s.add(g)
    stamp(s, o, 11)
    if o.early:
        s('s_cmp_lg_u32 s%d, 0' % sE)
        s('s_cbranch_scc1 L_redE')
    return s

def summ_ops(s, buf, o2):
    a = AC
    for i in range(16): s('v_mov_b32 v%d, 0' % (a + i))
    for k in range(10):
        if k in (0, 4, 8): s.wait(regs=regs('v', buf + 4 * k, 16 if k < 8 else 8))
        for d in range(4):
            x = buf + 4 * k + d
            b = a + (8 if k >= 8 else 0)
            s('v_dot2c_f32_bf16 v%d, v%d, v%d' % (b + 2 * d, x, C10)); s('v_dot2c_f32_bf16 v%d, v%d, v%d' % (b + 2 * d + 1, x, C01))
    t = RT
    s('s_nop 2')
    for i in range(8): s('v_add_f32_dpp v%d, v%d, v%d row_ror:8 row_mask:0xf bank_mask:0xf' % (t + i, a + 8 + i, a + 8 + i))
    for i in range(8): s('v_mov_b32 v%d, v%d' % (a + 8 + i, t + i))
    s('s_nop 0')
    for i in range(8): s('v_permlane16_swap_b32 v%d, v%d' % (t + i, a + 8 + i))
    for i in range(8): s('v_add_f32 v%d, v%d, v%d' % (a + 8 + i, a + 8 + i, t + i))
    for b in (a, a + 8):
        for i in range(4): s('v_permlane32_swap_b32 v%d, v%d' % (b + i, b + 4 + i))
    for b in (a, a + 8):
        for i in range(4): s('v_add_f32 v%d, v%d, v%d' % (b + i, b + i, b + 4 + i))
    for n_, b in enumerate((a, a + 8)):
        s('v_cvt_pk_bf16_f32 v%d, v%d, v%d' % (o2 + 2 * n_, b, b + 1)); s('v_cvt_pk_bf16_f32 v%d, v%d, v%d' % (o2 + 2 * n_ + 1, b + 2, b + 3))

def gen_red_dyn(o):
    poll = poll_txt()
    BUF = (144, 184, 0)
    NB = o.nb
    NSL = 160 if o.loc >= 0 else 320 if o.sl8 else 256
    def chunk_of(s, dst, idx):
        if o.loc >= 0: s('s_mul_i32 s%d, s%d, 52429' % (dst, idx)); s('s_lshr_b32 s%d, s%d, 21' % (dst, dst))
        elif o.sl8: s('s_mul_i32 s%d, s%d, 52429' % (dst, idx)); s('s_lshr_b32 s%d, s%d, 22' % (dst, dst))
        else: s('s_lshr_b32 s%d, s%d, 6' % (dst, idx))
    def claim(s, n):
        s('v_mov_b32 v%d, %d' % (CL, n))
        s('buffer_atomic_add v%d, v%d, s[%d:%d], 0 offen sc0' % (CL, QAD, SF, SF + 3), tag='claim')
    def check(s, idx, name):
        chunk_of(s, sN, idx); s('s_add_u32 s%d, s%d, 1' % (sN, sN))
        s.wait(regs=[('v', PL)])
        s('v_cmp_gt_u32 vcc, s%d, v%d' % (sN, PL))
        s('s_cbranch_vccnz L_spin%s' % name)
        s.label('L_got%s' % name)
    def addr(s, idx, x):
        t = RT
        if o.sl8:
            s('s_sub_u32 s3, s%d, 1' % sN); s('s_mul_i32 s36, s3, %d' % (NSL // 4)); s('s_sub_u32 s36, s%d, s36' % idx)
            if o.rotc: s('s_add_u32 s3, s3, s39'); s('s_and_b32 s3, s3, 3')
            s('s_bfe_u32 s62, s36, 0x10001'); s('s_lshl_b32 s62, s62, 2'); s('s_add_u32 s3, s3, s62'); s('s_lshl_b32 s3, s3, 1')
            s('s_and_b32 s62, s36, 1'); s('s_add_u32 s3, s3, s62')
            s('s_lshr_b32 s36, s36, 2')
            s('s_lshl_b32 s62, s3, 6'); s('s_lshl_b32 s63, s36, 14'); s('s_add_u32 s62, s62, s63'); s('s_add_u32 s62, s62, s%d' % sDB)
            if o.loc >= 0: s('s_mul_i32 s63, s%d, %d' % (sH, 10 << 14)); s('s_add_u32 s62, s62, s63')
            s('v_add_u32 v%d, s62, v%d' % (ODS[x][0], LD2))
            if o.loc >= 0: s('s_lshl_b32 s3, s3, 1'); s('s_add_u32 s3, s3, s%d' % sH); s('s_lshl_b32 s3, s3, 3')
            else: s('s_mul_i32 s3, s3, 10')
            s('s_lshr_b32 s62, s36, 1'); s('s_add_u32 s3, s3, s62'); s('s_lshl_b32 s3, s3, 10')
            s('s_and_b32 s36, s36, 1'); s('s_lshl_b32 s36, s36, 7'); s('s_add_u32 s3, s3, s36')
            s('v_add_u32 v%d, s3, v%d' % (AD, LA2))
            return
        s('s_lshr_b32 s3, s%d, 6' % idx)
        if o.rotc: s('s_add_u32 s3, s3, s39'); s('s_and_b32 s3, s3, 3')
        s('s_bfe_u32 s36, s%d, 0x10005' % idx); s('s_lshl_b32 s36, s36, 2'); s('s_add_u32 s3, s3, s36'); s('s_lshl_b32 s3, s3, 1')
        s('s_bfe_u32 s36, s%d, 0x10004' % idx); s('s_add_u32 s3, s3, s36')
        s('s_and_b32 s36, s%d, 3' % idx)
        s('s_mul_i32 s62, s3, 10240'); s('s_lshl_b32 s63, s36, 8'); s('s_add_u32 s%d, s62, s63' % sM0)
        s('s_lshl_b32 s62, s3, 3'); s('s_add_u32 s62, s62, s36'); s('s_lshl_b32 s62, s62, 3'); s('s_add_u32 s62, s62, s%d' % sDB)
        s('s_bfe_u32 s63, s%d, 0x20002' % idx); s('s_mul_i32 s63, s63, 5')
        s('v_add_u32 v%d, s63, v%d' % (t, LO))
        s('s_lshl_b32 s3, s63, 14'); s('s_add_u32 s62, s62, s3')
        s('v_lshrrev_b32 v%d, 1, v%d' % (t + 1, t))
        s('v_and_b32 v%d, 1, v%d' % (t, t))
        s('v_add_u32 v%d, s62, v%d' % (ODS[x][0], LD))
        s('v_lshlrev_b32 v%d, 7, v%d' % (t, t))
        s('s_add_u32 s62, s62, 0x10000')
        s('v_lshl_add_u32 v%d, v%d, 10, v%d' % (t, t + 1, t))
        s('v_add_u32 v%d, s62, v%d' % (ODS[x][1], LD2))
        s('v_add3_u32 v%d, v%d, v%d, s%d' % (AD, t, LA, sM0))
        s('s_lshr_b32 s3, s63, 1'); s('s_add_u32 s3, s3, 2'); s('s_lshl_b32 s3, s3, 10'); s('s_and_b32 s63, s63, 1'); s('s_lshl_b32 s63, s63, 7')
        s('s_add_u32 s3, s3, s63'); s('s_add_u32 s3, s3, s%d' % sM0)
        s('v_add_u32 v%d, s3, v%d' % (AD2, LA2))
    def loads(s, x, ks=range(10)):
        for k in ks:
            if o.sl8 and k >= 8: continue
            off, ad = (2 * PST * k, AD) if k < 8 else (8 * PST * (k - 8), AD2)
            if o.loc >= 0: off = ((k >> 2) << 22) + ((k & 3) << 19)
            s('s_mov_b32 s%d, 0x%x' % (sA, off))
            if o.rcap: s('s_waitcnt vmcnt(%d)' % o.rcap)
            s('buffer_load_dwordx4 %s, v%d, s[%d:%d], s%d offen %s' % (vr(BUF[x] + 4 * k, 4), ad, SG, SG + 3, sA, o.rd_pol))
    def finish(s, x):
        o2 = (100, 104, 92)[x]
        if o.sl8:
            a = AC
            for k in range(8):
                if k in (0, 4): s.wait(regs=regs('v', BUF[x] + 4 * k, 16))
                for d in range(4):
                    r = BUF[x] + 4 * k + d
                    if k == 0: s('v_lshlrev_b32 v%d, 16, v%d' % (a + 2 * d, r)); s('v_and_b32 v%d, 0xffff0000, v%d' % (a + 2 * d + 1, r))
                    else: s('v_dot2c_f32_bf16 v%d, v%d, v%d' % (a + 2 * d, r, C10)); s('v_dot2c_f32_bf16 v%d, v%d, v%d' % (a + 2 * d + 1, r, C01))
            s('s_nop 2')
            for i in range(4): s('v_permlane32_swap_b32 v%d, v%d' % (a + i, a + 4 + i))
            for i in range(4): s('v_add_f32 v%d, v%d, v%d' % (a + i, a + i, a + 4 + i))
            s('v_cvt_pk_bf16_f32 v%d, v%d, v%d' % (o2, a, a + 1)); s('v_cvt_pk_bf16_f32 v%d, v%d, v%d' % (o2 + 1, a + 2, a + 3))
            s('buffer_store_dwordx2 %s, v%d, s[%d:%d], 0 offen %s' % (vr(o2, 2), ODS[x][0], SO, SO + 3, o.out_pol))
            return
        summ_ops(s, BUF[x], o2)
        for h in range(2): s('buffer_store_dwordx2 %s, v%d, s[%d:%d], 0 offen %s' % (vr(o2 + 2 * h, 2), ODS[x][h], SO, SO + 3, o.out_pol))
    pre = Seg('redpre')
    for i in range(15): tstamp(pre, o, 'r', i)
    tstamp(pre, o, 'w', 14)
    pre('s_mov_b32 s%d, 0' % sIT)
    if o.eclaim:
        pre.wait(tags=['claim', 'poll'])
        pre('v_readfirstlane_b32 s%d, v%d' % (sI0, CL))
        pre('s_lshr_b32 s%d, s%d, 6' % (sN, sI0)); pre('s_add_u32 s%d, s%d, 1' % (sN, sN))
        pre('v_cmp_gt_u32 vcc, s%d, v%d' % (sN, PL))
        pre('s_add_u32 s%d, s%d, 1' % (sI1, sI0))
        pre('s_cbranch_vccnz L_late')
        addr(pre, sI0, 0)
        loads(pre, 0, range(o.nfirst))
        pre.wait(tags=['st3'])
        pre.add(flag_ops(o, 3))
        loads(pre, 0, range(o.nfirst, 10))
        late = Seg('late')
        late.label('L_late')
        late('s_waitcnt vmcnt(0)')
        late.add(flag_ops(o, 3))
        late('s_cmp_ge_u32 s%d, 256' % sI0)
        late('s_cbranch_scc1 L_end')
        check(late, sI0, 'P')
        addr(late, sI0, 0)
        loads(late, 0)
        late('s_branch L_rb0')
        o.late = late
        tstamp(pre, o, 'r', 2)
        stamp(pre, o, 12)
    else:
        claim(pre, NB + o.ahead)
        if o.f2post:
            pre.wait(tags=['st2'])
            pre.add(flag_ops(o, 2))
        pre.wait(tags=['st3'])
        pre.add(flag_ops(o, 3))
        tstamp(pre, o, 'r', 1)
        pre.wait(tags=['claim'])
        pre('v_readfirstlane_b32 s%d, v%d' % (sI0, CL))
        tstamp(pre, o, 'r', 2)
        stamp(pre, o, 12)
        if o.loc >= 0: pre.label('L_pre2')
        pre('s_add_u32 s%d, s%d, 1' % (sI1, sI0))
        for k in range(o.ahead): pre('s_add_u32 s%d, s%d, %d' % (sQ + k, sI0, NB + k))
        pre('s_cmp_ge_u32 s%d, %d' % (sI0, NSL))
        pre('s_cbranch_scc1 %s' % ('L_end' if o.loc < 0 else 'L_swP'))
        check(pre, sI0, 'P')
        addr(pre, sI0, 0)
        loads(pre, 0)
    if NB == 3:
        pre('s_cmp_ge_u32 s%d, %d' % (sI1, NSL))
        pre('s_cbranch_scc1 L_rlast0')
        check(pre, sI1, 'Q')
        addr(pre, sI1, 1)
        loads(pre, 1)
        pre('s_add_u32 s%d, s%d, 1' % (sI1, sI1))
    body, fin = [], []
    for x in range(NB):
        y = (x + NB - 1) % NB
        b = Seg('redbody%d' % x)
        b.label('L_rb%d' % x)
        if o.trace == 'r':
            b('%s s[%d:%d]' % (clk(o), sST + 6, sST + 7)); b('s_waitcnt lgkmcnt(0)'); b('s_add_u32 m0, s%d, 3' % sIT); b('s_nop 0'); b('v_writelane_b32 v%d, s%d, m0' % (STV + 2, sST + 6))
        b('s_add_u32 s%d, s%d, 1' % (sIT, sIT)); b('s_cmp_gt_u32 s%d, 400' % sIT); b('s_cbranch_scc1 L_rf%d' % x)
        b('s_cmp_ge_u32 s%d, %d' % (sI1, NSL))
        b('s_cbranch_scc1 %s%d' % ('L_rf' if o.loc < 0 else 'L_sw', x))
        check(b, sI1, 'B%d' % x)
        addr(b, sI1, y)
        claim(b, 1)
        b(poll, tag='poll')
        loads(b, y)
        finish(b, x)
        if o.ahead:
            assert o.loc < 0
            b('s_mov_b32 s%d, s%d' % (sI1, sQ))
            for k in range(o.ahead - 1): b('s_mov_b32 s%d, s%d' % (sQ + k, sQ + k + 1))
        b.wait(regs=[('v', CL)])
        b('v_readfirstlane_b32 s%d, v%d' % (sI1 if not o.ahead else sQ + o.ahead - 1, CL))
        if x == NB - 1: b('s_branch L_rb0')
        body.append(b)
        f = Seg('redfin%d' % x)
        f.label('L_rf%d' % x)
        finish(f, x)
        if NB == 3:
            if x == 2: f.label('L_rlast0')
            finish(f, (x + 1) % 3)
        if x < NB - 1: f('s_branch L_end')
        fin.append(f)
    e = Seg('redend')
    e.label('L_end')
    if o.stamps or o.trace:
        e('s_waitcnt vmcnt(0)')
        tstamp(e, o, 'r', 15); tstamp(e, o, 'w', 15)
        stamp(e, o, 13); stamp(e, o, 14); stamp(e, o, 15)
    e.label('L_done')
    e('s_endpgm')
    sp = Seg('spins')
    for n in ('P', 'B0', 'B1') + (('Q', 'B2') if NB == 3 else ()): gen_spin(sp, 'L_spin' + n, 'L_got' + n, poll, ['v_cmp_gt_u32 vcc, s%d, v%d' % (sN, PL), 's_cbranch_vccnz @'], 35)
    if o.loc >= 0:
        for n, done, back, reg, cnt in [('P', 'L_end', 'L_pre2', sI0, NB)] + [(str(x), 'L_rf%d' % x, 'L_rb%d' % x, sI1, 1) for x in range(NB)]:
            sp.label('L_sw' + n)
            sp('s_cmp_lg_u32 s%d, 0' % sSW); sp('s_cbranch_scc1 %s' % done)
            sp('s_mov_b32 s%d, 1' % sSW); sp('s_xor_b32 s%d, s%d, 1' % (sH, sH))
            sp('s_waitcnt vmcnt(0)')
            sp('v_xor_b32 v%d, 0x80, v%d' % (QAD, QAD))
            claim(sp, cnt)
            sp('s_waitcnt vmcnt(0)')
            sp('v_readfirstlane_b32 s%d, v%d' % (reg, CL))
            sp('s_branch %s' % back)
    sp.label('L_cntspin')
    sp('s_lshl_b32 s%d, s%d, 3' % (sA, sG))
    gen_spin(sp, 'L_cntspin2', 'L_cntok', 'buffer_load_dword v%d, off, s[%d:%d], s%d offset:128 sc1' % (CNT, SD, SD + 3, sA),
             ['v_readfirstlane_b32 s3, v%d' % CNT, 's_cmp_lt_u32 s3, 16', 's_cbranch_scc1 @'], 35)
    return pre, body, fin, e, sp

def gen_red(o, early, sfx):
    s = Seg('red' + sfx)
    if sfx: s.label('L_red' + sfx)
    poll = poll_txt()
    BUF = [144, 184, 0, 40]
    def check(n):
        s.wait(regs=[('v', PL)])
        s('v_cmp_gt_u32 vcc, %d, v%d' % (n, PL))
        s('s_cbranch_vccnz L_spin%d%s' % (n, sfx))
        s.label('L_got%d%s' % (n, sfx))
    def loads(c):
        for g in load_groups(o, c, lambda k: vr(BUF[c] + 4 * k, 4), sA): s.add(g)
    def summ(c): summ_ops(s, BUF[c], 100 + 4 * (c & 1))
    def outst(c):
        o2 = 100 + 4 * (c & 1)
        s('buffer_store_dwordx2 %s, v%d, s[%d:%d], s%d offen %s' % (vr(o2, 2), OD, SO, SO + 3, sCW + c, o.out_pol))
        s('buffer_store_dwordx2 %s, v%d, s[%d:%d], s%d offen %s' % (vr(o2 + 2, 2), OD2, SO, SO + 3, sCW + c, o.out_pol))
    T = lambda i: tstamp(s, o, 'r', i)
    T(0)
    if o.fl3:
        s.wait(tags=['st3'])
        s.add(flag_ops(o, 3))
        check(1)
        T(1); stamp(s, o, 12)
        loads(0)
        T(2)
        check(2)
        T(3)
        s(poll, tag='poll')
        loads(1)
        T(4)
        summ(0)
    else:
        s.wait(regs=[('v', PL)], tags=['st2'])
        s.add(flag_ops(o, 2))
    if o.fl3: pass
    elif not early:
        check(1)
        T(1); stamp(s, o, 12)
        s.wait(regs=regs('v', BUF[0], 40))
        loads(0)
        T(2)
        s.wait(tags=['st3'])
        s.add(flag_ops(o, 3))
        check(2)
        T(3)
        s(poll, tag='poll')
        loads(1)
        T(4)
        summ(0)
    else:
        check(2)
        T(1); stamp(s, o, 12)
        loads(1)
        T(2)
        s.wait(tags=['st3'])
        s.add(flag_ops(o, 3))
        T(3)
        s(poll, tag='poll')
        T(4)
        summ(0)
    T(5)
    check(3)
    T(6); stamp(s, o, 13)
    s(poll, tag='poll')
    loads(2)
    outst(0)
    T(7)
    summ(1)
    T(8)
    check(4)
    T(9); stamp(s, o, 14)
    loads(3)
    outst(1)
    T(10)
    summ(2); outst(2)
    T(11)
    summ(3); outst(3)
    T(12)
    if o.stamps or o.trace:
        s('s_waitcnt vmcnt(0)')
        T(13); T(14); T(15)
        stamp(s, o, 15)
    if not sfx: s.label('L_done')
    s('s_endpgm')
    sp = Seg('spins')
    for n in (2, 3, 4) if early else (1, 2, 3, 4): gen_spin(sp, 'L_spin%d%s' % (n, sfx), 'L_got%d%s' % (n, sfx), poll, ['v_cmp_gt_u32 vcc, %d, v%d' % (n, PL), 's_cbranch_vccnz @'])
    if sfx: return s, sp
    sp.label('L_cntspin')
    sp('s_lshl_b32 s%d, s%d, 3' % (sA, sG))
    gen_spin(sp, 'L_cntspin2', 'L_cntok', 'buffer_load_dword v%d, off, s[%d:%d], s%d offset:128 sc1' % (CNT, SD, SD + 3, sA),
             ['v_readfirstlane_b32 s3, v%d' % CNT, 's_cmp_lt_u32 s3, 16', 's_cbranch_scc1 @'])
    return s, sp

def desc(name, vgpr, accum, sgpr):
    return '''.amdhsa_kernel %s
  .amdhsa_next_free_vgpr %d
  .amdhsa_next_free_sgpr %d
  .amdhsa_accum_offset %d
  .amdhsa_group_segment_fixed_size 0
  .amdhsa_kernarg_size 104
  .amdhsa_user_sgpr_count 2
  .amdhsa_user_sgpr_kernarg_segment_ptr 1
  .amdhsa_system_sgpr_workgroup_id_x 1
  .amdhsa_float_denorm_mode_32 3
.end_amdhsa_kernel
''' % (name, vgpr, sgpr, accum)

DOC = """;
; One workgroup per CU = one (branch, batch, head pair); waves 0,1 own the first head, waves 2,3 the second, 80 query rows each.
; Everything is computed transposed (queries along the lanes) with v_mfma_f32_16x16x32_bf16; all tiles reach LDS by LDS-DMA.
;   qphase : Q^T = Wq^T x^T, scaled by log2(e)/sqrt(128), packed to bf16; first score tile gives the row maxima m
;   red    : the 16 partials of a (branch, batch) are summed in 8-row x 32-column slices handed out by a counter
"""
def build(o, path):
    o.kvat_l = [int(x) for x in o.kvat.split(',')]
    o.stat_l = [int(x) for x in o.stat.split(',')]
    o.sched = kv_schedule(o)
    Pace.slots = o.slots; Pace.slp = o.slp
    entry, q, s0, attn, epi = gen_entry(o), gen_q(o), gen_s0(o), gen_attn(o), gen_epi(o)
    r0, r1, r2 = gen_redo(o)
    op = gen_op(o)
    if o.dyn:
        pre, body, fin, e, spins = gen_red_dyn(o)
        tail_code = [pre] + body + fin + [e, spins]
        tails = [[pre] + body + body + [fin[0], e], [pre] + body + [body[0], fin[1], e]]
        xtails = [[pre, fin[0], e], [pre, body[0], fin[1], e]]
        if o.eclaim:
            assert o.nb == 2
            h = Seg('h'); h.items = pre.items[:[i for i, it in enumerate(pre.items) if it.kind == 'branch' and 'L_late' in it.text][0] + 1]
            xtails += [[h, o.late, body[0], body[1], fin[0], e], [h, o.late, fin[0], e]]
            tail_code.append(o.late)
        if o.nb == 3:
            h = Seg('h'); h.items = pre.items[:[i for i, it in enumerate(pre.items) if it.kind == 'branch' and 'L_rlast0' in it.text][0] + 1]
            l = Seg('l'); l.items = fin[2].items[[i for i, it in enumerate(fin[2].items) if it.kind == 'label' and it.name == 'L_rlast0'][0]:]
            xtails += [[pre, body[0], body[1], fin[2], e], [pre] + body + [body[0], body[1], fin[2], e], [h, l, e]]
    else:
        red, spins = gen_red(o, False, '')
        redE, spinsE = gen_red(o, True, 'E') if o.early else (Seg('x'), Seg('x'))
        tail_code = [red, redE, spins, spinsE]
        tails = [[red], [redE if o.early else red]]
    traces = []
    for redo in (0, 1):
        tr = [(entry, {}), (q, {})]
        for ps in range(redo + 1):
            if ps: tr += [(r0, {}), (r1, {}), (r1, {}), (r2, {})]
            tr += [(s0, {}), (attn, {}), (epi, dict(redo=ps))]
        tr += [(op, dict(redo=redo))] + [(x, {}) for x in tails[redo]]
        traces.append(('redo%d' % redo, tr))
    if o.dyn:
        base = traces[0][1][:-len(tails[0])]
        for i, xt in enumerate(xtails): traces.append(('x%d' % i, base + [(x, {}) for x in xt]))
    if o.jit:
        import random
        rnd = random.Random(o.jit)
        cnt = [0]
        def delay(reg, mask, val, n):
            cnt[0] += 1
            out = [I('s_and_b32 s43, s%d, %d' % (reg, mask)), I('s_cmp_eq_u32 s43, %d' % val), I('s_cbranch_scc0 L_jit%d' % cnt[0])]
            out += [I('s_sleep %d' % min(127, n))] * (1 + n // 128) + [Label('L_jit%d' % cnt[0])]
            return out
        for sg in (q, s0, attn, epi, op):
            out = []
            for it in sg.items:
                if it.kind == 'barrier':
                    r = rnd.random()
                    if r < 0.5: out += delay(sW, 3, rnd.randrange(4), rnd.randrange(1, 40))
                    out.append(it)
                    if r > 0.3: out += delay(sW, 3, rnd.randrange(4), rnd.randrange(1, 40))
                    if rnd.random() < 0.08: out += delay(2, 15, rnd.randrange(16), rnd.randrange(100, 600))
                else: out.append(it)
            sg.items = out
        q.items = delay(2, 31, 5, 1500) + q.items
    resolve([t for _, t in traces])
    allerr = []
    for name, tr in traces: allerr += check(tr, name)[0]
    for e in allerr[:6]: print('ERR', e)
    if allerr: print(len(allerr), 'errors')
    hdr = open('concat_heads__gqa_block_cached__gqa_block_cached__near_ridge.s.ref').read().split('; Override')[0]
    txt = hdr + '; @launch grid=(256,1,1) block=(256,1,1) lds=163840\n' + DOC
    txt += '.amdgcn_target "amdgcn-amd-amdhsa--gfx950"\n.text\n.globl %s\n.p2align 8\n.type %s,@function\n%s:\n' % (KN, KN, KN)
    for sg in [entry, q, s0, attn, epi, op] + tail_code + [r0, r1, r2]: txt += '; ---- %s\n' % sg.name + sg.text()
    txt += 'L_code_end:\n'
    txt += '.section .rodata,"a"\n.p2align 6\n' + desc(KN, 512, 256, 102)
    open(path, 'w').write(txt)
    return not allerr

if __name__ == '__main__':
    o = Opt()
    path = sys.argv[1]
    for kv in sys.argv[2:]:
        k, v = kv.split('=')
        cur = getattr(o, k)
        setattr(o, k, int(v) if isinstance(cur, int) else v.replace('+', ' '))
    ok = build(o, path)
    if not ok: os.remove(path); sys.exit(1)
    print('written', path, 'ok' if ok else 'WITH ERRORS', {h: len(v) for h, v in o.sched.items() if len(v) != 4 and (len(v) or h < 62)} if '-v' in path else '')
```

```python
import sys, struct, math
from fw import *

KN = "concat_heads__gqa_block_cached__gqa_block_cached__near_ridge_kernel"
WS_BYTES = 287834112
import os
PST = int(os.environ.get('PST', 172032))
INB = 256 * PST
def f2u(x): return struct.unpack('<I', struct.pack('<f', x))[0]

class Opt:
    kv_pol = 'nt'; w_pol = ''; st_pol = 'sc1'; rd_pol = 'sc1'; fl_pol = 'sc1'; out_pol = ''
    stamps = 0; cyc = 0; dbgst = 0; trace = ''
    force_redo = 0
    codepf = 3
    xfirst = 1
    par = 1
    qevery = 3
    qpack = 0
    x1e = 0
    defer = 0
    capalt = 12
    cw0 = 0
    cw1 = 99
    lite = 0
    slots = 1
    kvat = '5,7,9,11'
    cap = 4
    cap2 = 0
    capl = 0
    tl = 99
    rotp = 1
    tord = 0
    vx = 0
    split = 1
    qpk = 1
    epw = 2
    epk = 1
    stage = 0
    stat = '8,10'
    lsum = 1
    uni = 1
    hold = 0
    wocap = 4
    qcap = 0
    lasth = 59
    ninit = 10
    oevery = 3
    loc = -1
    flagat = 5
    rotc = 1
    exsp = 0
    dyn = 1
    nb = 3
    f2post = 0
    jit = 0
    slp = 8
    ahead = 0
    rep = 4
    fl = '13,23'
    cfl = ''
    rcap = 0
    sl8 = 1
    eclaim = 0
    nfirst = 5
    fl3 = 1
    early = 0
    epoll = 24
    ldevery = 5
    pfo = 0
    diag = ''

V0 = 98304
KAD = lambda j: 16384 * (j % 5)
VAD = lambda j: (V0, V0 + 16384, V0 + 32768, V0 + 49152, V0 - 16384)[(j + 2) % 5]
XBUF = lambda m: 32768 + 20480 * (m & 1)
WAD = lambda n: (V0 + 16384, V0 - 16384, V0)[n % 3]
EX = 16384
FLG = VAD(31)
OSLOT = [VAD(28), KAD(30), VAD(29), VAD(30), VAD(31), 16384, 32768, 49152]

S, P, NM, L = 0, 40, 80, 100
KA, KA2, VA, VA2, DK, DV, LANE16, CNT, FLA, CA = 105, 109, 113, 121, 129, 133, 135, 136, 137, 138
DWO = VA2
STV = 140
OV, NOV = 144, 28
XAD, DX, DWQ, DUM = 48, 50, 51, 59
Q, KB, VB, OA = 0, 80, 112, 144
XF = 144
OWN, PART = 0, 144
STG = 216
LS, ONES = 192, 212
sW, sP, sREDO, sCNT = 4, 5, 6, 7
SX, SWQ, SK, SV, SWO, SP_ = 8, 12, 16, 20, 24, 28
sOK, sOV, sMK = 32, 33, 34
sBR, sHP, sBT = 37, 38, 39
sWS = 40
sCW, sCP = 44, 48
sC, sTHR = 54, 56
sA, sB = 58, 59
sW1K, sHF = 60, 61
sST = 64
SF, SD, SO = 72, 76, 80
sG = 84
sM0, sM1 = 86, 88
sXO, sWQO = 90, 91
sO5 = 57
sKVB = 57
sH, sSW = 100, 101
SG = 96
SG2 = 8
sE = 35

def vr(b, n=1): return 'v%d' % b if n == 1 else 'v[%d:%d]' % (b, b + n - 1)
def ar(b, n=1): return 'a%d' % b if n == 1 else 'a[%d:%d]' % (b, b + n - 1)
def sr(b, n=1): return 's%d' % b if n == 1 else 's[%d:%d]' % (b, b + n - 1)
def mfma(d, a, b, c): return I('v_mfma_f32_16x16x32_bf16 %s, %s, %s, %s' % (d, a, b, c))
def otile(j, db):
    n = 8 * j + db
    return ('v', OV + 4 * n) if n < NOV else ('a', OA + 4 * (n - NOV))
def oreg(j, db):
    k, b = otile(j, db)
    return '%s[%d:%d]' % (k, b, b + 3)
def qacc(db, j):
    n = 8 * j + db
    return 4 * n if n < 12 else OV + 4 * (n - 12)

def clk(o): return 's_memtime' if o.cyc else 's_memrealtime'
def tstamp(s, o, ph, idx):
    if o.trace == ph and idx < 16:
        s('%s s[%d:%d]' % (clk(o), sST + 6, sST + 7)); s('s_waitcnt lgkmcnt(0)')
        s('v_writelane_b32 v%d, s%d, %d' % (STV + 2, sST + 6, idx))
def stamp(s, o, idx):
    st = sST
    def wsrd():
        s('s_mov_b32 s%d, s%d' % (st, sWS)); s('s_mov_b32 s%d, s%d' % (st + 1, sWS + 1))
        s('s_mov_b32 s%d, 0x%x' % (st + 2, WS_BYTES)); s('s_mov_b32 s%d, 0x20000' % (st + 3))
    if o.trace:
        if idx == 15:
            wsrd()
            s('s_mul_i32 s%d, s2, %d' % (st + 4, 128)); s('s_add_u32 s%d, s%d, 0x%x' % (st + 4, st + 4, WS_BYTES - 256 * 128))
            s('s_min_u32 s3, s%d, 1' % sW); s('s_lshl_b32 s3, s3, 30'); s('s_add_u32 s%d, s%d, s3' % (st + 4, st + 4))
            s('v_mbcnt_lo_u32_b32 v0, -1, 0'); s('v_lshlrev_b32 v0, 3, v0'); s('v_mov_b32 v2, v%d' % (STV + 2)); s('v_mov_b32 v3, 0')
            s('s_mov_b64 exec, 0xffff')
            s('buffer_store_dwordx2 v[2:3], v0, s[%d:%d], s%d offen' % (st, st + 3, st + 4))
        return
    if not o.stamps: return
    if o.lite and idx not in (0, 15): return
    a, b = STV, STV + 1
    if o.dbgst:
        if idx not in (0, 2, 3, 5, 6, 11, 13, 15): return
        idx = (0, 2, 3, 5, 6, 11, 13, 15).index(idx)
        s('s_memrealtime s[%d:%d]' % (st + 4, st + 5)); s('s_memtime s[%d:%d]' % (st + 6, st + 7)); s('s_waitcnt lgkmcnt(0)')
        s('v_mov_b32 v%d, s%d' % (a, st + 4)); s('v_mov_b32 v%d, s%d' % (b, st + 6))
        s('s_sub_u32 s%d, s2, %d' % (st + 4, o.dbgst - 1)); s('s_mul_i32 s%d, s%d, 0x1000' % (st + 4, st + 4))
        s('s_add_u32 s%d, s%d, 0x%x' % (st + 4, st + 4, idx * 8)); s('s_nop 0')
        s('buffer_store_dwordx2 v[%d:%d], off, s[%d:%d], s%d' % (a, b, SD, SD + 3, st + 4))
        return
    s('%s s[%d:%d]' % (clk(o), st + 4, st + 5)); s('s_waitcnt lgkmcnt(0)')
    if idx == 0: s('s_mov_b64 s[%d:%d], s[%d:%d]' % (st + 4, st + 5, st + 6, st + 7))
    wsrd()
    s('v_mov_b32 v%d, s%d' % (a, st + 4)); s('v_mov_b32 v%d, s%d' % (b, st + 5))
    s('s_mul_i32 s%d, s2, %d' % (st + 4, o.stamps * 8))
    s('s_add_u32 s%d, s%d, 0x%x' % (st + 4, st + 4, WS_BYTES - 256 * o.stamps * 8 + idx * 8)); s('s_nop 0')
    s('buffer_store_dwordx2 v[%d:%d], off, s[%d:%d], s%d' % (a, b, st, st + 3, st + 4))

def dma(voff, srd, soff, imm, pol, tag, lo, n=16384):
    return I('buffer_load_dwordx4 v%d, s[%d:%d], s%d offen offset:%d %s lds' % (voff, srd, srd + 3, soff, imm, pol), tag=tag, lds=(lo, lo + n, tag))
def grp4(pre, mk, post=()):
    out = []
    for t in range(4):
        g = list(pre) if t == 0 else []
        g.append(mk(t))
        if t == 3: g += list(post)
        out.append(g)
    return out
def dma_x(o, m):
    buf = XBUF(m)
    out = [[I('s_add_u32 m0, s%d, 0x%x' % (sW1K, buf + 4096 * j)), I('s_add_u32 s%d, s%d, 0x%x' % (sA, sXO, 32768 * j)),
            dma(DX, SX, sA, 0, o.w_pol, 'x%d' % m, buf, 20480)] for j in range(5)]
    out[4] += [I('s_add_u32 s%d, s%d, 128' % (sXO, sXO)), I('s_and_b32 s%d, s%d, 0x3ff' % (sXO, sXO))]
    return out
def dma_wq(o, n):
    b = WAD(n)
    return grp4([I('s_add_u32 m0, s%d, 0x%x' % (sMK, b)), I('s_nop 0')],
                lambda t: dma(DWQ + t, SWQ, sWQO, 1024 * t, o.w_pol, 'wq%d' % n, b),
                [I('s_add_u32 s%d, s%d, 0x40000' % (sWQO, sWQO)), I('s_and_b32 s%d, s%d, 0x3fffff' % (sWQO, sWQO))])
def stage_ld(o, kind):
    srd_, r = (SK, STG) if kind == 'K' else (SV, STG + 16)
    vo = (lambda t: DK + t) if kind == 'K' else (lambda t: DV + (t & 1))
    return [[I('buffer_load_dwordx4 %s, v%d, s[%d:%d], s%d offen offset:%d %s' % (ar(r + 4 * t, 4), vo(t), srd_, srd_ + 3, sO5, 1024 * t, o.kv_pol))] for t in range(4)]
def stage_wr(o, kind):
    b, r, ad = (KAD(5), STG, 139) if kind == 'K' else (VAD(5), STG + 16, 143)
    out = [[I('ds_write_b128 v%d, %s offset:%d' % (ad, ar(r + 4 * t, 4), 1024 * t), lds=(b, b + 16384, '%s5' % kind))] for t in range(4)]
    out[0].insert(0, Wait(regs=regs('a', r, 16)))
    return out
def dma_kv(o, kind, j):
    b, so, srd_ = (KAD(j), sOK, SK) if kind == 'K' else (VAD(j), sOV, SV)
    vo = (lambda t: DK + t) if kind == 'K' else (lambda t: DV + (t & 1))
    assert not o.stage
    tile = ((j << o.tord) | (j >> (5 - o.tord))) & 31
    return grp4([I('s_add_u32 m0, s%d, 0x%x' % (sMK, b)), I('s_xor_b32 s%d, s%d, 0x%x' % (so, sKVB, 8192 * tile))],
                lambda t: dma(vo(t), srd_, so, 1024 * t, o.kv_pol, '%s%d' % (kind, j), b))
KVSEQ = [(k, j) for j in range(32) for k in 'KV']
def dma_wo(o, u):
    c, phi, dh = u >> 2, (u >> 1) & 1, u & 1
    b = OSLOT[u % 8]
    return grp4([I('s_lshl_b32 s%d, s%d, 2' % (sB, sMK)), I('s_add_u32 s%d, s%d, s%d' % (sB, sB, sCW + c)),
                 I('s_add_u32 m0, s%d, 0x%x' % (sMK, b)), I('s_add_u32 s%d, s%d, 0x%x' % (sB, sB, 65536 * dh))],
                lambda t: dma(DWO + 4 * phi + t, SWO, sB, 1024 * t, o.w_pol, 'wo%d' % u, b))
def capped(o, groups, j=0):
    if not o.cap: return groups
    out = []
    for g in groups:
        k = [i for i, x in enumerate(g) if x.kind == 'dma'][0]
        if j >= o.tl: out.append(g[:k] + [I('s_waitcnt vmcnt(%d)' % o.capl)] + g[k:])
        elif o.cap2:
            lo = I('s_waitcnt vmcnt(%d)' % o.cap); lo.kind = 'other'
            out.append(g[:k] + [I('s_waitcnt vmcnt(%d)' % o.cap2), I('s_cbranch_vccnz 1'), lo] + g[k:])
        else: out.append(g[:k] + [I('s_waitcnt vmcnt(%d)' % (o.cap - (1 if o.capalt and o.cw0 <= j < o.cw1 and (4 * j + len(out)) % o.capalt == 0 else 0)))] + g[k:])
    return out

def rd_k(j):
    b = KAD(j)
    areg, imm = (KA, b) if b < 65536 else (KA2, b - 65536)
    return [I('ds_read_b128 %s, v%d offset:%d' % (ar(KB + 4 * (4 * kb + s), 4), areg + s, imm + 4096 * kb), lds=(b, b + 16384, 'K%d' % j))
            for s in range(4) for kb in range(2)]
def rd_tr(dst, b, tag):
    areg, imm = (VA, b - V0) if b >= V0 else (VA2, 0)
    return [I('ds_read_b64_tr_b16 %s, v%d offset:%d' % (ar(dst + 4 * d + 2 * e, 2), areg + d, imm + 4096 * e), lds=(b, b + 16384, tag))
            for d in range(8) for e in range(2)]
def rd_v(dst, j): return rd_tr(dst, VAD(j), 'V%d' % j)

def spread(items, gaps):
    d = {g: [] for g in gaps}
    n, m = len(items), len(gaps)
    for i, it in enumerate(items): d[gaps[i * m // n]].append(it)
    return d
def srd(s, r, lo, hi, off, size):
    if off is None: s('s_mov_b32 s%d, s%d' % (r, lo)); s('s_mov_b32 s%d, s%d' % (r + 1, hi))
    else: s('s_add_u32 s%d, s%d, s%d' % (r, lo, off)); s('s_addc_u32 s%d, s%d, 0' % (r + 1, hi))
    if size is not None: s('s_mov_b32 s%d, 0x%x' % (r + 2, size))
    s('s_mov_b32 s%d, 0x20000' % (r + 3))
def kv_start(s, o):
    s('s_mul_i32 s3, s%d, 0x%x' % (sP, 8192 * o.rotp)); s('s_lshl_b32 s36, s%d, 12' % sHF); s('s_add_u32 s%d, s3, s36' % sKVB)

def gen_entry(o):
    s = Seg('entry')
    if o.stamps and not o.dbgst: s('%s s[%d:%d]' % (clk(o), sST + 6, sST + 7))
    s('s_cmp_ge_u32 s2, 256')
    s('s_cbranch_scc1 L_done')
    s('v_mov_b32 v64, v0')
    s('s_and_b32 s3, s2, 7')
    s('s_lshr_b32 s36, s2, 3')
    if o.par: s('s_and_b32 s37, s3, 1'); s('s_lshr_b32 s38, s3, 1')
    else: s('s_lshr_b32 s37, s3, 2'); s('s_and_b32 s38, s3, 3')
    s('s_mul_i32 s3, s37, 40'); s('s_add_u32 s42, s0, s3'); s('s_addc_u32 s43, s1, 0')
    s('''s_load_dwordx8 s[44:51], s[42:43], 0
         s_load_dwordx2 s[52:53], s[42:43], 32
         s_load_dwordx2 s[40:41], s[0:1], 96
         s_load_dwordx4 s[92:95], s[0:1], 80''')
    def codepf():
        if True:
            s('s_getpc_b64 s[62:63]')
            s.label('L_pc')
            s('v_lshrrev_b32 v71, 2, v64'); s('v_and_b32 v71, 0x30, v71'); s('v_and_b32 v72, 15, v64'); s('v_or_b32 v71, v71, v72')
            s('s_and_b32 s3, s2, 0x78'); s('s_lshl_b32 s3, s3, 3')
            s('v_add_lshl_u32 v71, s3, v71, 7')
            s('v_min_u32 v71, L_code_end-L_pc-4, v71')
            s('global_load_dword v%d, v71, s[62:63]' % DUM, dummy=True)
    if o.codepf == 1: codepf()
    s('''s_lshl_b32 s38, s38, 2
         s_and_b32 s39, s36, 3
         s_or_b32 s38, s38, s39
         s_lshr_b32 s39, s36, 2''')
    s('v_lshrrev_b32 v71, 6, v64')
    s('v_and_b32 v65, 63, v64')
    s('v_readfirstlane_b32 s%d, v71' % sW)
    s('v_lshrrev_b32 v66, 4, v65')
    s('v_and_b32 v67, 15, v65')
    s('v_and_b32 v69, 7, v65')
    s('s_lshl_b32 s%d, s%d, 10' % (sW1K, sW))
    s('s_lshl_b32 s%d, s%d, 12' % (sMK, sW))
    s('s_lshr_b32 s%d, s%d, 1' % (sP, sW))
    s('s_and_b32 s%d, s%d, 1' % (sHF, sW))
    s('s_lshl_b32 s3, s%d, 2' % sHF)
    s('v_add_u32 v73, s3, v66')
    s('v_xor_b32 v69, v73, v69')
    s('v_lshlrev_b32 v69, 4, v69')
    s('v_lshrrev_b32 v68, 3, v64')
    s('v_lshl_add_u32 v%d, v68, 10, v69' % DX)
    s('v_lshlrev_b32 v70, 1, v66')
    s('v_xor_b32 v70, v70, v67')
    s('v_lshlrev_b32 v70, 4, v70')
    s('v_lshl_add_u32 v68, v73, 13, v70')
    s('s_lshl_b32 s3, s%d, 8' % sP)
    s('v_add_u32 v%d, s3, v68' % DWQ)
    s('v_xor_b32 v68, 0x80, v%d' % DWQ)
    s('v_add_u32 v%d, 0x%x, v68' % (DWQ + 1, 64512))
    s('v_add_u32 v%d, 0x%x, v%d' % (DWQ + 2, 2 * 64512, DWQ))
    s('v_add_u32 v%d, 0x%x, v68' % (DWQ + 3, 3 * 64512))
    s('s_and_b32 s3, s38, 3'); s('s_lshl_b32 s3, s3, 1'); s('s_add_u32 s3, s3, s39'); s('s_and_b32 s3, s3, 7')
    s('s_lshl_b32 s%d, s3, 7' % sXO); s('s_lshl_b32 s%d, s3, 19' % sWQO)
    s('s_mul_i32 s3, s39, 163840'); s('s_lshl_b32 s36, s38, 9')
    s('s_waitcnt lgkmcnt(0)')
    srd(s, SX, 44, 45, 3, 163840)
    srd(s, SWQ, 50, 51, 36, None); s('s_sub_u32 s%d, 0x400000, s36' % (SWQ + 2))
    for g in (dma_x(o, 0) + dma_wq(o, 0) if o.xfirst else dma_wq(o, 0) + dma_x(o, 0)): s.add(g)
    if o.codepf == 2: codepf()
    for g in dma_wq(o, 1): s.add(g)
    if o.codepf == 3: codepf()
    srd(s, SD, 94, 95, None, 256)
    stamp(s, o, 0)
    s('v_lshlrev_b32 v%d, 4, v65' % LANE16)
    urgent = s
    if o.defer: s = Seg('deferred')
    s('s_mov_b32 s3, 0x%x' % (INB if o.loc < 0 else 0)); srd(s, SF, sWS, sWS + 1, 3, 65536 + 4096)
    s('s_lshl_b32 s%d, s37, 3' % sG); s('s_add_u32 s%d, s%d, s39' % (sG, sG))
    s('s_lshl_b32 s36, s%d, 4' % sG); s('s_add_u32 s36, s36, s38')
    s('s_min_u32 s3, s%d, 1' % sW); s('s_lshl_b32 s3, s3, 30')
    s('s_lshl_b32 s62, s36, 8'); s('s_add_u32 s62, s62, s3')
    s('v_lshlrev_b32 v72, 2, v65'); s('v_add_u32 v73, s62, v72'); s('v_mov_b32 v74, 0')
    s('buffer_store_dword v74, v73, s[%d:%d], 0 offen %s' % (SF, SF + 3, o.fl_pol), tag='clr')
    if o.dyn:
        s('s_lshl_b32 s3, s%d, 8' % sG); s('s_add_u32 s3, s3, 0x10000'); s('s_min_u32 s62, s38, 1'); s('s_lshl_b32 s62, s62, 30'); s('s_add_u32 s3, s3, s62')
        s('v_lshrrev_b32 v73, 1, v64'); s('v_min_u32 v73, 1, v73'); s('v_lshlrev_b32 v73, 29, v73'); s('v_lshl_add_u32 v73, v64, 7, v73'); s('v_add_u32 v73, s3, v73')
        s('buffer_store_dword v74, v73, s[%d:%d], 0 offen %s' % (SF, SF + 3, o.fl_pol))
    if o.loc < 0:
        s('s_mul_i32 s3, s36, %d' % PST); srd(s, SP_, sWS, sWS + 1, 3, 163840)
        s('s_mul_i32 s3, s%d, %d' % (sG, 16 * PST)); srd(s, SG, sWS, sWS + 1, 3, 16 * PST)
    else:
        s('s_lshl_b32 s3, s%d, 23' % sG); s('s_add_u32 s3, s3, 0x41ffff')
        srd(s, SG, sWS, sWS + 1, 3, 1 << 23); s('s_and_b32 s%d, s%d, 0xffc00000' % (SG, SG))
        s('s_lshr_b32 s3, s38, 3'); s('s_lshl_b32 s3, s3, 22'); s('s_and_b32 s62, s38, 7'); s('s_lshl_b32 s62, s62, 18'); s('s_add_u32 s3, s3, s62')
        srd(s, SP_, SG, SG + 1, 3, 1 << 18)
        s('s_mov_b32 s%d, 0' % sSW)
        if o.loc < 2:
            s('s_getreg_b32 s3, hwreg(HW_REG_XCC_ID)'); s('s_bfe_u32 s3, s3, 0x10002'); s('s_xor_b32 s%d, s3, %d' % (sH, o.loc))
        else:
            s('s_lshl_b32 s3, s%d, 8' % sW); s('s_add_u32 s62, s%d, s3' % SP_); s('s_addc_u32 s63, s%d, 0' % (SP_ + 1))
            s('s_load_dword s3, s[62:63], 0x1000'); s('s_waitcnt lgkmcnt(0)')
            s('s_mov_b32 s68, 0x5bd1e995')
            for txt in ('s_load_dword s69, s[62:63], 0x2000', 's_load_dword s68, s[62:63], 0', 's_waitcnt lgkmcnt(1)', 's_mov_b32 s3, s68', 's_waitcnt lgkmcnt(0)'):
                it = I(txt); it.kind = 'other'; s.add(it)
            s('s_cmp_eq_u32 s3, 0x5bd1e995'); s('s_cselect_b32 s%d, 1, 0' % sH)
    s('''s_lshl_b32 s3, s39, 4
         s_add_u32 s3, s3, s38
         s_lshl_b32 s3, s3, 1
         s_add_u32 s3, s3, s%d
         s_lshl_b32 s3, s3, 18''' % sP)
    srd(s, SK, 46, 47, 3, 0x40000); srd(s, SV, 48, 49, 3, 0x40000)
    s('s_lshl_b32 s3, s38, 18'); srd(s, SWO, 52, 53, 3, 0x40000)
    srd(s, SO, 92, 93, None, 8 * 160 * 2048)
    kv_start(s, o)
    for c in range(4):
        if o.rotc: s('s_add_u32 s3, s39, %d' % c); s('s_and_b32 s3, s3, 3')
        else: s('s_mov_b32 s3, %d' % c)
        s('s_lshl_b32 s%d, s3, 7' % (sCW + c)); s('s_mul_i32 s%d, s3, %d' % (sCP + c, 20480 if o.loc < 0 else 32768))
    c = math.log2(math.e) / math.sqrt(128.0)
    s('s_mov_b32 s%d, 0x%x' % (sC, f2u(c))); s('s_mov_b32 s%d, 0x%x' % (sC + 1, f2u(c)))
    s('s_mov_b32 s%d, 0x%x' % (sTHR, f2u(2.0 ** 24 if not o.force_redo else 1.0)))
    s('s_mov_b32 s%d, 0' % sREDO)
    s('s_lshl_b32 s3, s%d, 12' % sG); s('s_lshl_b32 s36, s38, 4'); s('s_add_u32 s3, s3, s36')
    s('s_lshl_b32 s36, s%d, 2' % sW); s('s_add_u32 s3, s3, s36')
    s('v_lshlrev_b32 v68, 8, v67'); s('v_add_u32 v68, s3, v68')
    s('v_and_b32 v69, %d, v65' % (48 | (16 // o.rep - 1))); s('v_min_u32 v69, 1, v69'); s('v_lshl_add_u32 v%d, v69, 30, v68' % FLA)
    s('v_min_u32 v69, 1, v64'); s('v_lshlrev_b32 v69, 30, v69'); s('s_lshl_b32 s3, s%d, 3' % sG); s('s_add_u32 s3, s3, 128'); s('v_add_u32 v%d, s3, v69' % CA)
    s('v_mov_b32 v%d, 1' % CNT)
    s('v_xor_b32 v68, v66, v67'); s('v_lshlrev_b32 v68, 4, v68')
    s('v_lshl_add_u32 v%d, v66, 8, v68' % DK)
    for t in range(1, 4): s('v_xor_b32 v%d, %d, v%d' % (DK + t, 64 * t, DK))
    s('v_lshl_add_u32 v%d, v66, 8, v70' % DV)
    s('v_xor_b32 v%d, 0x80, v%d' % (DV + 1, DV))
    s('v_lshl_add_u32 v68, v67, 8, v68')
    s('s_lshl_b32 s36, s%d, 13' % sP)
    s('v_add_u32 v%d, s36, v68' % KA)
    for k in range(1, 4): s('v_xor_b32 v%d, %d, v%d' % (KA + k, 64 * k, KA))
    for k in range(4): s('v_add_u32 v%d, 0x10000, v%d' % (KA2 + k, KA + k))
    late, s = s, urgent
    s('s_lshl_b32 s36, s%d, 13' % sP)
    s('v_lshrrev_b32 v68, 1, v67'); s('v_xor_b32 v68, v68, v66'); s('v_lshlrev_b32 v68, 4, v68')
    s('v_lshl_add_u32 v68, v67, 7, v68')
    s('s_mul_i32 s3, s%d, 10240' % sHF)
    s('v_add_u32 v%d, s3, v68' % XAD)
    s('v_xor_b32 v%d, 64, v%d' % (XAD + 1, XAD))
    s('v_lshrrev_b32 v68, 2, v65')
    s('v_and_b32 v69, 7, v68')
    s('v_lshlrev_b32 v69, 5, v69')
    s('v_lshl_add_u32 v69, v68, 8, v69')
    s('v_and_b32 v68, 3, v65')
    s('v_lshl_add_u32 v69, v68, 3, v69')
    s('s_add_u32 s36, s36, 0x%x' % V0)
    s('v_add_u32 v%d, s36, v69' % VA)
    for k in range(1, 8): s('v_xor_b32 v%d, %d, v%d' % (VA + k, 32 * k, VA))
    for k in range(8): s('v_subrev_u32 v%d, 0x4000, v%d' % (VA2 + k, VA + k))
    if o.stage:
        s('s_add_u32 s3, s%d, 0x%x' % (sMK, KAD(5))); s('v_add_u32 v139, s3, v%d' % LANE16)
        s('s_add_u32 s3, s%d, 0x%x' % (sMK, VAD(5))); s('v_add_u32 v143, s3, v%d' % LANE16)
    stamp(s, o, 1)
    o.deferred = late.items if o.defer else []
    return s

def is_vm(g): return any(x.kind in ('dma', 'vst', 'vld') for x in g)
class Pace: since = 99; slots = 0
class Atomic(list): pass
barrier_hooks = []
def gemm_kstep(s, mf, need, reads, barrier, extra, every=1, vq=None, pack=False):
    n = len(mf)
    rg = list(range(2, 2 + (len(reads) + 1) // 2)) if (n <= 20 or pack) else list(range(2, 2 + len(reads)))
    rd = spread(reads, rg) if reads else {}
    part = False
    for g in range(n):
        if g == 0: s.wait(regs=need)
        s.add(mf[g])
        if g == 1 and barrier is not None:
            s.wait(**barrier)
            s('s_barrier')
            for f in barrier_hooks: f()
            del barrier_hooks[:]
        s.add(rd.get(g, []))
        Pace.since += 1
        busy = len(rd.get(g, []))
        if Pace.slots:
            free = 2 - busy - (2 if (g == 1 and barrier is not None) else 0)
            m0_fresh = False
            while free > 0:
                q = vq if vq else None
                if q is not None:
                    head = [x for x in q[0] if not (x.kind == 'nop')]
                    vm = head[0].kind in ('dma', 'vst', 'vld')
                    if vm and (Pace.since < every or m0_fresh): q = None
                if q is None:
                    while extra and extra[0] == [] and free == 2 - busy:
                        extra.pop(0); free = 0
                    if free <= 0 or not extra or extra[0] == []: break
                    q = extra
                    if isinstance(q[0], Atomic):
                        s.add(list(q.pop(0))); free -= 2; m0_fresh = False
                        continue
                    head = list(q[0])
                    vm = False
                it = head.pop(0)
                s.add(it)
                if it.kind != 'label': free -= 1
                if vm: Pace.since = 0
                m0_fresh = it.kind == 'salu' and ('m0', 0) in it.wr
                if q is extra: part = bool(head)
                if head: q[0] = head
                else: q.pop(0)
            if g == n - 1 and part: s.add(extra.pop(0))
        elif vq and Pace.since >= every and busy < (1 if pack else 2):
            s.add(vq.pop(0)); Pace.since = 0
        elif extra and busy < 2 and (not is_vm(extra[0]) or Pace.since >= every):
            if is_vm(extra[0]): Pace.since = 0
            s.add(extra.pop(0))

def qconv_stream(o):
    c = sr(sC, 2)
    items = [(j, sidx) for j in range(5) for sidx in range(4)]
    tq = lambda i: 60 + 4 * (i % 4)
    def st1(i):
        j, sidx = items[i]; out = []
        for e in range(2):
            b = qacc(2 * sidx + e, j)
            if (o.qpk == 1 and (i < 3 or (i >= 8 and i % 4 == 0))) or o.qpk == 2: out += [I('v_mul_f32 v%d, s%d, v%d' % (b + k, sC, b + k)) for k in range(4)]
            else: out += [I('v_pk_mul_f32 %s, %s, %s' % (vr(b, 2), vr(b, 2), c)), I('v_pk_mul_f32 %s, %s, %s' % (vr(b + 2, 2), vr(b + 2, 2), c))]
        for e in range(2):
            b = qacc(2 * sidx + e, j)
            out += [I('v_cvt_pk_bf16_f32 v%d, v%d, v%d' % (tq(i) + 2 * e, b, b + 1)), I('v_cvt_pk_bf16_f32 v%d, v%d, v%d' % (tq(i) + 2 * e + 1, b + 2, b + 3))]
        return out
    sw = lambda op, i: [I('%s v%d, v%d' % (op, tq(i), tq(i) + 2)), I('%s v%d, v%d' % (op, tq(i) + 1, tq(i) + 3))]
    def st4(i):
        j, sidx = items[i]
        return [I('v_accvgpr_write_b32 a%d, v%d' % (Q + 16 * j + 4 * sidx + k, tq(i) + k)) for k in range(4)]
    n = len(items)
    rounds = []
    for i in range(n + 3):
        r = st1(i) if i < n else [I('s_nop 1')]
        if 0 <= i - 3 < n: r += st4(i - 3)
        if 0 <= i - 2 < n: r += sw('v_permlane16_swap_b32', i - 2)
        if 0 <= i - 1 < n: r += sw('v_permlane32_swap_b32', i - 1)
        rounds.append(r)
    return rounds

def gen_q(o):
    s = Seg('qphase')
    def reads_for(n):
        buf = n & 1
        w = rd_tr(KB + 32 * buf, WAD(n), 'wq%d' % n)
        xb = XBUF(n >> 1)
        x = [I('ds_read_b128 %s, v%d offset:%d' % (ar(XF + 20 * buf + 4 * j, 4), XAD + (n & 1), xb + 2048 * j), lds=(xb, xb + 20480, 'x%d' % (n >> 1))) for j in range(5)]
        return x + w
    if o.x1e: s.add(dma_x(o, 1))
    if o.x1e > 1: s.add(dma_wq(o, 2))
    s.wait(tags=['x0', 'wq0'])
    s('s_barrier')
    stamp(s, o, 2)
    s.add(reads_for(0))
    vq = (dma_wq(o, 2) if o.x1e < 2 else []) + (dma_x(o, 1) if not o.x1e else [])
    kv = [dma_kv(o, k, j) for k, j in KVSEQ[:o.ninit]]
    rounds = qconv_stream(o)
    for n in range(16):
        buf = n & 1
        tstamp(s, o, 'q', n)
        if n == 0: tstamp(s, o, 'w', 0)
        order = [(db, j) for db in range(8) for j in range(5)] if n < 15 else [(db, j) for j in range(5) for db in range(8)]
        mf = []
        for db, j in order:
            d = vr(qacc(db, j), 4)
            mf.append(mfma(d, ar(KB + 32 * buf + 4 * db, 4), ar(XF + 20 * buf + 4 * j, 4), '0' if n == 0 else d))
        m = n + 1
        tags = []
        if m < 16:
            tags = ['wq%d' % m]
            if m % 2 == 0: tags.append('x%d' % (m >> 1))
        else: tags = ['K0']
        new = []
        if m + 2 < 16: new += dma_wq(o, m + 2)
        if m % 2 == 0 and m // 2 + 1 < 8: new += dma_x(o, m // 2 + 1)
        for _ in range(o.kvat_l.count(m)): new += kv.pop(0)
        if o.stage and m in o.stat_l: new += stage_ld(o, 'KV'[o.stat_l.index(m)])
        if m == 14: new += kv.pop(0) + kv.pop(0)
        if m == 16: new += kv.pop(0)
        barrier_hooks.append(lambda new=new: vq.extend(new))
        extra = []
        if n == 0:
            dfr = []
            for x in o.deferred:
                if x.mn == 's_addc_u32': dfr[-1] = Atomic(dfr[-1] + [x])
                else: dfr.append([x])
        if n < 4: extra = dfr
        if n == 3: tailx = extra
        if n == 4:
            for g in dfr: s.add(list(g))
        if n == 15:
            head = sum(rounds[:3], []); del rounds[:3]
            extra = [[]] * 10 + [head[i:i + 2] for i in range(0, len(head), 2)]
        gemm_kstep(s, mf, regs('a', KB + 32 * buf, 32) + regs('a', XF + 20 * buf, 20), reads_for(m) if m < 16 else rd_k(0), dict(tags=tags), extra, o.qevery, vq, o.qpack)
    assert not vq
    for g in extra: s.add(g)
    stamp(s, o, 3)
    kvq = sum(kv, [])
    if o.qcap:
        for i_, g in enumerate(kvq):
            k = [i for i, x in enumerate(g) if x.kind == 'dma'][0]
            kvq[i_] = g[:k] + [I('s_waitcnt vmcnt(%d)' % o.qcap)] + g[k:]
    qk = qk_list(False)
    mx = []
    for j in range(4):
        t = Seg('t'); max8(t, j, MX + j, False); mx.append(t.items)
    done = 3
    pend = []
    first = True
    for r in rounds:
        if kvq: s.add(kvq.pop(0))
        k = 0
        for it in r:
            s.add(it); k += 1
            if pend and k % 2 == 0:
                if first: s.wait(regs=regs('a', KB, 32)); first = False
                s.add(pend.pop(0))
        done += 1
        if done >= 8 and (done - 8) % 4 == 0:
            j = (done - 8) // 4
            pend += qk[8 * j:8 * j + 8]
            if j >= 1: s.add(mx[j - 1])
    s('s_nop 0')
    for i, it in enumerate(qk[32:40]):
        s.add(it)
        if i in (2, 3, 4, 5): s.add(mx[3][i - 2])
    assert not pend
    s.add(kvq)
    s('s_nop 6')
    max8(s, 4, MX + 4, False)
    set_nm(s)
    for j in range(5):
        for i in range(0, 8, 2): s('v_pk_add_f32 %s, %s, %s' % (vr(S + 8 * j + i, 2), vr(S + 8 * j + i, 2), vr(NM + 4 * j, 2)))
    stamp(s, o, 4)
    return s

def qk_list(cinit):
    out = []
    for j in range(5):
        for r in range(8):
            kb, sidx = r & 1, r >> 1
            d = vr(S + 8 * j + 4 * kb, 4)
            cc = d if sidx else (vr(NM + 4 * j, 4) if cinit else '0')
            out.append(mfma(d, ar(KB + 4 * (4 * kb + sidx), 4), ar(Q + 16 * j + 4 * sidx, 4), cc))
    return out
def pv_list(o, par, vb, zero=False):
    out = []
    for j in range(5):
        pj = vr(P + 20 * par + 4 * j, 4)
        out += [mfma(oreg(j, db), ar(vb + 4 * db, 4), pj, '0' if zero else oreg(j, db)) for db in range(8)]
        if o.lsum: out.append(mfma(ar(LS + 4 * j, 4), ar(ONES, 4), pj, '0' if zero else ar(LS + 4 * j, 4)))
    return out
def rowred(s, regs_, tmps, op):
    for sw in ('v_permlane32_swap_b32', 'v_permlane16_swap_b32'):
        for r, t in zip(regs_, tmps): s('v_mov_b32 v%d, v%d' % (t, r))
        for r, t in zip(regs_, tmps): s('%s v%d, v%d' % (sw, t, r))
        for r, t in zip(regs_, tmps): s('%s v%d, v%d, v%d' % (op, r, r, t))
def max8(s, j, m, acc):
    b = S + 8 * j
    if acc: s('v_max3_f32 v%d, v%d, v%d, v%d' % (m, m, b, b + 1))
    else: s('v_max_f32 v%d, v%d, v%d' % (m, b, b + 1))
    for i in range(1, 4): s('v_max3_f32 v%d, v%d, v%d, v%d' % (m, m, b + 2 * i, b + 2 * i + 1))
MX, MT = L, 48
def set_nm(s):
    rowred(s, [MX + j for j in range(5)], [MT + j for j in range(5)], 'v_max_f32')
    for j in range(5): s('v_sub_f32 v%d, 0, v%d' % (NM + 4 * j, MX + j))
    for j in range(5):
        for i in range(1, 4): s('v_mov_b32 v%d, v%d' % (NM + 4 * j + i, NM + 4 * j))

def sm_exp(i): return I('v_exp_f32 v%d, v%d' % (S + i, S + i))
def sm_post(o, i, par):
    j = i >> 3
    out = [] if o.lsum else [I('v_add_f32 v%d, v%d, v%d' % (L + j, L + j, S + i))]
    if i & 1: out.append(I('v_cvt_pk_bf16_f32 v%d, v%d, v%d' % (P + 20 * par + 4 * j + ((i & 7) >> 1), S + i - 1, S + i)))
    return out
def sm_gap(o, G, par):
    if o.lsum:
        if G >= 40:
            if (G - 40) % 9 == 8: return []
            G -= (G - 40) // 9
    x = G - 12
    if x < 0: x += 80; par ^= 1
    i = x >> 1
    return [sm_exp(i)] if x % 2 == 0 else sm_post(o, i, par)

def kv_schedule(o):
    q = [(k, j, g) for k, j in KVSEQ[o.ninit + 2 * o.stage:] for g in capped(o, dma_kv(o, k, j), j)]
    free = lambda kind, j: 2 * (j - 5) + 1 if kind == 'K' else 2 * (j - 4) + 1
    sched = {h: [] for h in range(1, 64)}
    n = len(q)
    slow = max(0, 4 * o.lasth - n)
    h, i = 1, 0
    while i < n:
        cap = 4
        h0 = 2 * o.stage
        if o.hold:
            if h <= o.hold: i0 = i + 4
            else: cap = min(4, max(0, i0 + ((n - i0) * (h - o.hold) + o.lasth - o.hold - 1) // (o.lasth - o.hold) - i))
        elif o.uni: cap = min(4, max(0, (n * (h - h0) + o.lasth - h0 - 1) // (o.lasth - h0) - i))
        elif slow > 0: cap = 3
        k = 0
        while k < cap and i < n and free(q[i][0], q[i][1]) <= h:
            sched[h].append(q[i][2]); i += 1; k += 1
        slow -= 4 - k
        h += 1
    if o.stage:
        assert o.ninit == 10
        sched[1] = stage_wr(o, 'K') + sched[1]
        sched[3] = stage_wr(o, 'V') + sched[3]
    return sched

def gen_s0(o):
    s = Seg('s0')
    s.label('L_s0')
    if o.lsum:
        s('v_mov_b32 v%d, 0x3f803f80' % L)
        for k in range(4): s('v_accvgpr_write_b32 a%d, v%d' % (ONES + k, L))
    else:
        for j in range(5): s('v_mov_b32 v%d, 0' % (L + j))
    if o.cap2: s('s_and_b32 s3, s39, 1'); s('s_cselect_b64 vcc, -1, 0')
    s.wait(tags=['K1', 'V0'])
    s('s_barrier')
    s.add(rd_k(1))
    dm = spread(o.sched[1] + [[I('buffer_atomic_add v%d, v%d, s[%d:%d], 0 offen' % (CNT, CA, SD, SD + 3))]], [1, 8, 15, 22, 29])
    for i in range(35):
        if i < 34: s.add(sm_exp(i))
        else: s('s_nop 0')
        if i > 0: s.add(sm_post(o, i - 1, 0))
        s.add(dm.get(i, []))
    return s

def step(s, o, t, more1=(), more2=(), wtags=(), valu1=None):
    par = t & 1
    if t % 2 == 1: tstamp(s, o, 'a', t // 2)
    if t % 3 == 1: tstamp(s, o, 'w', 1 + t // 3)
    if t >= 26: tstamp(s, o, 'e', 2 * (t - 26))
    mf = qk_list(True) + pv_list(o, par ^ 1, VB, t == 1)
    NG = len(mf)
    fill = {g: [] for g in range(NG)}
    empty = [g for g in range(NG) if not sm_gap(o, g, par)]
    if o.lsum:
        g1 = [g for g in empty if g < 32]; g2 = [g for g in empty if 42 < g < NG - 8]
    else: g1, g2 = [1, 5, 9, 13, 17, 21, 25, 29], [45, 49, 53, 57, 61, 65, 69, 73]
    for g, l in spread(rd_v(VB, t - 1), g1).items(): fill[g] += l
    for g, l in spread(rd_k(t + 1) if t < 31 else rd_v(KB, 31), g2).items(): fill[g] += l
    for base, end, dm in ((4, 40, o.sched[2 * t] + list(more1)), (44, NG, o.sched[2 * t + 1] + list(more2))):
        n = len(dm)
        last = -1
        for i, g in enumerate(dm):
            pos = base + ((end - base) * i) // n
            if o.lsum:
                while len(sm_gap(o, pos, par)) + len(fill[pos]) > 1 or (sm_gap(o, pos, par) and sm_gap(o, pos, par)[0].kind == 'trans'): pos += 1
            else: pos &= ~1
            if o.split:
                k = [n_ for n_, x in enumerate(g) if x.kind in ('wait', 'dma', 'vld', 'ph', 'dsw')][0]
                lo = max(base - 3, last + 1)
                for n_ in range(k): fill[max(lo, pos - (k - n_))].append(g[n_])
                g = g[k:]
                last = pos
            fill[pos] += g
    if valu1:
        for g, l in spread(valu1, list(range(33, 40))).items(): fill[g] += l
    for g in range(NG):
        if g == 0: s.wait(regs=regs('a', KB, 32))
        if g == 40:
            if t >= 26: tstamp(s, o, 'e', 2 * (t - 26) + 1)
            s.wait(regs=regs('a', VB, 32))
        s.add(mf[g])
        if g == 40:
            s.wait(tags=(['K%d' % (t + 1)] if t < 31 else []) + ['V%d' % t] + list(wtags))
            s('s_barrier')
        s.add(sm_gap(o, g, par))
        s.add(fill[g])

def gen_attn(o):
    s = Seg('attn')
    pre = Seg('t')
    t0 = DWO
    pre('v_lshrrev_b32 v%d, 8, v%d' % (t0 + 1, DV))
    pre('v_and_b32 v%d, 0x70, v%d' % (t0, DV))
    pre('v_lshl_add_u32 v%d, v%d, 10, v%d' % (t0, t0 + 1, t0))
    pre('v_bfe_u32 v%d, v%d, 7, 1' % (t0 + 1, DV))
    pre('v_mul_u32_u24 v%d, 0x20200, v%d' % (t0 + 1, t0 + 1))
    pre('v_add_u32 v%d, v%d, v%d' % (t0, t0, t0 + 1))
    pre('v_xor_b32 v%d, 0x20200, v%d' % (t0 + 1, t0))
    pre('v_add_u32 v%d, %d, v%d' % (t0 + 2, 2 * 3072, t0))
    pre('v_add_u32 v%d, %d, v%d' % (t0 + 3, 3 * 3072, t0 + 1))
    pre('v_add_u32 v%d, %d, v%d' % (t0 + 1, 3072, t0 + 1))
    for t in range(4): pre('v_xor_b32 v%d, 0x20000, v%d' % (t0 + 4 + t, t0 + t))
    cnt = [[I('s_lshl_b32 s%d, s%d, 3' % (sA, sG)), I('buffer_load_dword v%d, off, s[%d:%d], s%d offset:128 sc1' % (CNT, SD, SD + 3, sA), tag='cnt')]]
    if o.wocap:
        dwo0 = dma_wo
        def dma_wo_(o_, u):
            out = []
            for g in dwo0(o_, u):
                k = [i for i, x in enumerate(g) if x.kind == 'dma'][0]
                out.append(g[:k] + [I('s_waitcnt vmcnt(%d)' % o.wocap)] + g[k:])
            return out
    else: dma_wo_ = dma_wo
    busy = lambda h: any(o.sched[x] for x in range(h, 64))
    early0 = not busy(59)
    for t in range(1, 32):
        if t == 29: step(s, o, t, valu1=pre.items, more2=dma_wo_(o, 0) if early0 else [])
        elif t == 30: step(s, o, t, more2=cnt + ([] if early0 else dma_wo_(o, 0)) + dma_wo_(o, 1) + (dma_wo_(o, 2) if early0 else []))
        elif t == 31: step(s, o, t, more1=[] if early0 else dma_wo_(o, 2), more2=dma_wo_(o, 3), wtags=['cnt'])
        else: step(s, o, t)
        if t == 26 and o.pfo:
            s('v_lshlrev_b32 v%d, 3, v%d' % (CA, LANE16))
            s('s_lshl_b32 s3, s39, 15'); s('s_lshl_b32 s36, s%d, 13' % sW); s('s_add_u32 s3, s3, s36')
            s('buffer_load_dword v%d, v%d, s[%d:%d], s3 offen' % (CA + 1, CA, SWO, SWO + 3), dummy=True)
    return s

def gen_epi(o):
    s = Seg('epi')
    R = NM
    v = Seg('t')
    def inv(j):
        if o.lsum: v('v_accvgpr_read_b32 v%d, a%d' % (L + j, LS + 4 * j))
        v('v_cmp_nge_f32 %s, s%d, v%d' % (sr(sM0 if j == 0 else sM1, 2), sTHR, L + j))
        v('v_rcp_f32 v%d, v%d' % (R + 2 * j, L + j))
        if j: v('s_or_b64 %s, %s, %s' % (sr(sM0, 2), sr(sM0, 2), sr(sM1, 2)))
        else: v('s_nop 0')
        v('v_mov_b32 v%d, v%d' % (R + 2 * j + 1, R + 2 * j))
    if not o.lsum:
        rowred(v, [L + j for j in range(5)], [90 + j for j in range(5)], 'v_add_f32')
        for j in range(5): inv(j)
    def vote():
        v('s_cmp_lg_u64 %s, 0' % sr(sM0, 2))
        v('s_cselect_b32 s3, 1, 0')
        v('v_mov_b32 v95, s3')
        v('s_lshl_b32 s3, s%d, 2' % sW); v('s_add_u32 s3, s3, 0x%x' % FLG)
        v('v_mov_b32 v96, s3')
        v('ds_write_b32 v96, v95', lds=(lambda c: (FLG, FLG + 16, ev(tg('flg'), c))))
    tg = lambda n: (lambda c: '%s%d' % (n, c.get('redo', 0)))
    v('s_mul_i32 s3, s%d, 20480' % sW); v('s_add_u32 s3, s3, 0x%x' % EX)
    v('v_add_u32 v97, s3, v%d' % LANE16)
    v('s_xor_b32 s3, s%d, 2' % sW); v('s_mul_i32 s3, s3, 20480'); v('s_add_u32 s3, s3, 0x%x' % EX)
    v('v_add_u32 v98, s3, v%d' % LANE16)
    exr = (lambda c: (EX, EX + 81920, ev(tg('ex'), c)))
    for j in range(5):
        if o.lsum: inv(j)
        if j == 4: vote()
        for sidx in range(4):
            f = 16 * j + 4 * sidx
            for e in range(2):
                k, b = otile(j, 2 * sidx + e)
                if k == 'a':
                    for i in range(4): v('v_accvgpr_read_b32 v%d, a%d' % (90 + i, b + i))
                    b = 90
                if j < o.epk:
                    for i in range(4): v('v_mul_f32 v%d, v%d, v%d' % (b + i, b + i, R + 2 * j))
                else:
                    v('v_pk_mul_f32 %s, %s, %s' % (vr(b, 2), vr(b, 2), vr(R + 2 * j, 2)))
                    v('v_pk_mul_f32 %s, %s, %s' % (vr(b + 2, 2), vr(b + 2, 2), vr(R + 2 * j, 2)))
                v('v_cvt_pk_bf16_f32 v%d, v%d, v%d' % (f + 2 * e, b, b + 1))
                v('v_cvt_pk_bf16_f32 v%d, v%d, v%d' % (f + 2 * e + 1, b + 2, b + 3))
            v('ds_write_b128 v97, %s offset:%d' % (vr(f, 4), 1024 * (4 * j + sidx)), lds=exr)
    work = v.items
    mf = pv_list(o, 1, KB)
    tstamp(s, o, 'e', 12)
    s.wait(regs=regs('a', KB, 32))
    for g in range(len(mf)):
        s.add(mf[g])
        if g == 0: s('s_barrier')
        if g < 12: s.add(sm_gap(o, g, 0))
        else: s.add(work[:o.epw]); work = work[o.epw:]
    stamp(s, o, 5); tstamp(s, o, 'e', 13)
    s.add(work)
    tstamp(s, o, 'e', 14)
    s('v_mov_b32 v96, 0x%x' % FLG)
    s.wait(lgkm_all=True, tags=['wo0'])
    s('s_barrier')
    s('ds_read_b128 v[92:95], v96', lds=(lambda c: (FLG, FLG + 16, ev(tg('flg'), c))))
    s('s_mul_i32 s3, s%d, 0x2080' % sP)
    s('v_xor_b32 v84, s3, v%d' % VA)
    for k in range(1, 4): s('v_xor_b32 v%d, %d, v84' % (84 + k, 32 * k))
    for k in range(4): s('v_subrev_u32 v%d, 0x%x, v%d' % (80 + k, V0, 84 + k))
    s('v_readfirstlane_b32 s3, v%d' % CNT)
    s.wait(regs=regs('v', 92, 4))
    s('v_or_b32 v92, v92, v93'); s('v_or3_b32 v92, v92, v94, v95')
    s('s_cmp_lt_u32 s3, 16')
    s('v_readfirstlane_b32 s36, v92')
    s('s_cbranch_scc1 L_cntspin')
    s.label('L_cntok')
    s('s_andn2_b32 s36, s36, s%d' % sREDO)
    if not o.diag: s('s_cbranch_scc1 L_redo')
    stamp(s, o, 6); tstamp(s, o, 'e', 15)
    return s

def gen_spin(s, name, back, load, cond, sCNT=sCNT):
    s.label(name)
    s('s_mov_b32 s%d, 0' % sCNT)
    s.label(name + '_l')
    s('s_sleep %d' % Pace.slp)
    s(load)
    s('s_waitcnt vmcnt(0)')
    s('s_add_u32 s%d, s%d, 1' % (sCNT, sCNT))
    s('s_cmp_gt_u32 s%d, 0x40000' % sCNT)
    s('s_cbranch_scc1 %s' % back)
    for l in cond: s(l.replace('@', name + '_l'))
    s('s_branch %s' % back)

def gen_redo(o):
    s = Seg('redo')
    s.label('L_redo')
    s('s_mov_b32 s%d, 1' % sREDO)
    s('s_waitcnt vmcnt(0) lgkmcnt(0)')
    s('s_barrier')
    t = 56
    s('v_lshrrev_b32 v%d, 4, v%d' % (t, LANE16))
    s('v_and_b32 v%d, 15, v%d' % (t + 1, t))
    s('v_and_b32 v%d, 48, v%d' % (t, t))
    s('v_lshl_add_u32 v%d, v%d, 8, v%d' % (t, t + 1, t))
    s('v_add_u32 v%d, 0x1000, v%d' % (t + 1, t))
    for j in range(5): s('v_mov_b32 v%d, 0xff800000' % (MX + j))
    s('s_mov_b32 s%d, 0' % sA)
    lp = Seg('redo_loop')
    lp.label('L_redo_loop')
    for kb in range(2):
        for k in range(4): lp('buffer_load_dwordx4 %s, v%d, s[%d:%d], s%d offen offset:%d' % (ar(KB + 4 * (4 * kb + k), 4), t + kb, SK, SK + 3, sA, 64 * k))
    lp('s_waitcnt vmcnt(0)')
    lp.add(qk_list(False))
    lp('s_nop 7')
    for j in range(5): max8(lp, j, MX + j, True)
    lp('s_add_u32 s%d, s%d, 0x2000' % (sA, sA))
    lp('s_cmp_lt_u32 s%d, 0x40000' % sA)
    lp('s_cbranch_scc1 L_redo_loop')
    e = Seg('redo_end')
    set_nm(e)
    kv_start(e, o)
    for k in range(8): e('v_subrev_u32 v%d, 0x4000, v%d' % (VA2 + k, VA + k))
    for k, j in KVSEQ[:o.ninit]: e.add(dma_kv(o, k, j))
    if o.stage: e.add(stage_ld(o, 'K') + stage_ld(o, 'V'))
    e('v_mov_b32 v%d, 0x40000000' % CA)
    e.wait(tags=['K0'])
    e('s_barrier')
    e.add(rd_k(0))
    e.wait(regs=regs('a', KB, 32))
    e.add(qk_list(True))
    e('s_nop 7')
    e('s_branch L_s0')
    return s, lp, e

E0V, E1V = 144, 0
PO = 88
AD, OD, IA, PL, C10, C01, AD2, OD2, AC, RT = 224, 225, 226, 227, 228, 229, 230, 231, 232, 248
def etile(c, jn, j): return (E1V if c & 1 else E0V) + 8 * (5 * (jn >> 1) + j) + 4 * (jn & 1)
def poll_txt(): return 'buffer_load_dword v%d, v%d, s[%d:%d], 0 offen sc1' % (PL, IA, SF, SF + 3)
def flag_ops(o, c):
    return [I('v_mov_b32 v89, %d' % (c + 1)), I('buffer_store_dword v89, v%d, s[%d:%d], 0 offen %s' % (FLA, SF, SF + 3, o.fl_pol))]
def load_groups(o, c, dst, sreg, g=SG):
    out = []
    for k in range(10):
        off, ad = (2 * PST * k, AD) if k < 8 else (8 * PST * (k - 8), AD2)
        out.append([I('s_add_u32 s%d, s%d, 0x%x' % (sreg, sCP + c, off)),
                    I('buffer_load_dwordx4 %s, v%d, s[%d:%d], s%d offen %s' % (dst(k), ad, g, g + 3, sreg, o.rd_pol))])
    return out
def red_addr(o):
    s = Seg('t')
    t = RT
    s('s_lshl_b32 s3, s%d, 4' % sG); s('s_and_b32 s62, s38, %d' % (15 & ~(16 // o.rep - 1))); s('s_add_u32 s3, s3, s62'); s('s_lshl_b32 s3, s3, 8')
    s('v_lshrrev_b32 v%d, 2, v%d' % (t, LANE16)); s('v_add_u32 v%d, s3, v%d' % (IA, t))
    s('v_lshrrev_b32 v%d, 4, v%d' % (t, LANE16))
    s('v_and_b32 v%d, 7, v%d' % (t + 2, t))
    s('s_and_b32 s3, s38, 3'); s('s_mul_i32 s63, s3, 5')
    s('s_lshr_b32 s3, s38, 2')
    s('s_lshr_b32 s36, s3, 1'); s('s_lshl_b32 s36, s36, 3'); s('s_and_b32 s3, s3, 1'); s('s_add_u32 s36, s36, s3')
    s('s_mul_i32 s3, s36, 10240'); s('s_lshl_b32 s62, s%d, 8' % sW); s('s_add_u32 s%d, s3, s62' % sM0)
    s('s_mul_i32 s3, s39, %d' % (160 * 2048)); s('s_lshl_b32 s62, s37, 10'); s('s_add_u32 s3, s3, s62')
    s('s_lshl_b32 s62, s36, 6'); s('s_add_u32 s3, s3, s62'); s('s_lshl_b32 s62, s%d, 3' % sW); s('s_add_u32 s%d, s3, s62' % (sM0 + 1))
    s('v_bfe_u32 v%d, v%d, 3, 2' % (t + 1, t))
    s('v_add_u32 v%d, s63, v%d' % (t + 3, t + 1))
    s('v_lshl_add_u32 v%d, v%d, 3, v%d' % (t + 4, t + 3, t + 2))
    s('v_lshrrev_b32 v%d, 1, v%d' % (t + 5, t + 3))
    s('v_and_b32 v%d, 15, v%d' % (t + 6, t + 4))
    s('v_lshlrev_b32 v%d, 4, v%d' % (t + 6, t + 6))
    s('v_lshl_add_u32 v%d, v%d, 10, v%d' % (t + 6, t + 5, t + 6))
    s('v_lshrrev_b32 v%d, 5, v%d' % (t + 1, t))
    s('v_mul_u32_u24 v%d, %d, v%d' % (t + 5, PST, t + 1))
    s('v_add3_u32 v%d, v%d, v%d, s%d' % (AD, t + 6, t + 5, sM0))
    s('v_lshlrev_b32 v%d, 5, v%d' % (t + 1, t + 1))
    s('v_lshl_add_u32 v%d, v%d, 11, v%d' % (t + 4, t + 4, t + 1))
    s('v_add_u32 v%d, s%d, v%d' % (OD, sM0 + 1, t + 4))
    s('s_add_u32 s63, s63, 4')
    s('s_lshr_b32 s3, s63, 1'); s('s_lshl_b32 s3, s3, 10'); s('s_and_b32 s62, s63, 1'); s('s_lshl_b32 s62, s62, 7'); s('s_add_u32 s3, s3, s62')
    s('s_add_u32 s3, s3, s%d' % sM0)
    s('v_lshrrev_b32 v%d, 3, v%d' % (t + 3, t))
    s('v_mul_u32_u24 v%d, %d, v%d' % (t + 5, PST, t + 3))
    s('v_lshl_add_u32 v%d, v%d, 4, v%d' % (t + 5, t + 2, t + 5))
    s('v_add_u32 v%d, s3, v%d' % (AD2, t + 5))
    s('s_lshl_b32 s3, s63, 14'); s('s_add_u32 s3, s3, s%d' % (sM0 + 1))
    s('v_lshl_add_u32 v%d, v%d, 11, v%d' % (t + 4, t + 2, t + 1))
    s('v_and_b32 v%d, 24, v%d' % (t + 1, t))
    s('v_cmp_eq_u32 vcc, 0, v%d' % (t + 1))
    s('v_add_u32 v%d, s3, v%d' % (t + 4, t + 4))
    s('v_mov_b32 v%d, 0x40000000' % (t + 7))
    s('v_cndmask_b32 v%d, v%d, v%d, vcc' % (OD2, t + 7, t + 4))
    s('v_mov_b32 v%d, 0x3f80' % C10); s('v_mov_b32 v%d, 0x3f800000' % C01)
    return s.items

LA, LO, LD, LA2, LD2, QAD, CL = 108, 109, 110, 111, 112, 113, 114
ODS = ((116, 117), (118, 119), (90, 91))
sI0, sI1, sN, sDB, sIT = 13, 14, 15, 12, 7
sQ = 8
def red_addr_dyn(o):
    s = Seg('t')
    t = RT
    s('s_lshl_b32 s3, s%d, 4' % sG); s('s_and_b32 s62, s38, %d' % (15 & ~(16 // o.rep - 1))); s('s_add_u32 s3, s3, s62'); s('s_lshl_b32 s3, s3, 8')
    s('v_lshrrev_b32 v%d, 2, v%d' % (t, LANE16)); s('v_add_u32 v%d, s3, v%d' % (IA, t))
    s('v_lshrrev_b32 v%d, 4, v%d' % (t, LANE16))
    s('v_and_b32 v%d, 7, v%d' % (t + 2, t))
    s('v_lshrrev_b32 v%d, 5, v%d' % (t + 1, t))
    s('v_bfe_u32 v%d, v%d, 3, 2' % (LO, t))
    s('v_mul_u32_u24 v%d, %d, v%d' % (t + 5, PST if o.loc < 0 else 1 << 18, t + 1))
    s('v_lshl_add_u32 v%d, v%d, 4, v%d' % (LA, t + 2, t + 5))
    s('v_lshlrev_b32 v%d, 5, v%d' % (t + 1, t + 1))
    s('v_lshl_add_u32 v%d, v%d, 11, v%d' % (t + 4, t + 2, t + 1))
    s('v_lshl_add_u32 v%d, v%d, 14, v%d' % (LD, LO, t + 4))
    s('v_cmp_eq_u32 vcc, 0, v%d' % LO)
    s('v_lshrrev_b32 v%d, 3, v%d' % (t + 3, t))
    s('v_mov_b32 v%d, 0x40000000' % (t + 7))
    s('v_cndmask_b32 v%d, v%d, v%d, vcc' % (LD2, t + 7, t + 4))
    s('v_mul_u32_u24 v%d, %d, v%d' % (t + 5, PST, t + 3))
    s('v_lshl_add_u32 v%d, v%d, 4, v%d' % (LA2, t + 2, t + 5))
    if o.sl8:
        s('v_lshl_add_u32 v%d, v%d, 8, v%d' % (LA2, LO, LA))
        s('v_lshl_add_u32 v%d, v%d, 3, v%d' % (LD2, LO, t + 4))
    s('s_mul_i32 s3, s39, %d' % (160 * 2048)); s('s_lshl_b32 s62, s37, 10'); s('s_add_u32 s%d, s3, s62' % sDB)
    s('s_lshl_b32 s3, s%d, 8' % sG); s('s_add_u32 s3, s3, 0x10000')
    if o.loc >= 0: s('s_lshl_b32 s62, s%d, 7' % sH); s('s_add_u32 s3, s3, s62')
    s('v_min_u32 v%d, 1, v%d' % (t + 3, t)); s('v_lshlrev_b32 v%d, 30, v%d' % (t + 3, t + 3)); s('v_add_u32 v%d, s3, v%d' % (QAD, t + 3))
    s('v_mov_b32 v%d, 0x3f80' % C10); s('v_mov_b32 v%d, 0x3f800000' % C01)
    return s.items

def gen_op(o):
    s = Seg('op')
    exr = (lambda c: (EX, EX + 81920, 'ex%d' % c.get('redo', 0)))
    KSL = [(4 * c + r, [(2 * a + e, kk) for kk in range(2) for e in range(2)]) for c in range(4) for a in range(2) for r in range(4)]
    def reads_for(ks):
        u, fr = KSL[ks]
        base = OSLOT[u % 8]
        areg, imm = (80, base) if base < V0 else (84, base - V0)
        return [I('ds_read_b64_tr_b16 %s, v%d offset:%d' % (ar(KB + 16 * (ks & 1) + 4 * i + 2 * e, 2), areg + jn, imm + 8192 * kk + 4096 * e), lds=(base, base + 16384, 'wo%d' % u))
                for i, (jn, kk) in enumerate(fr) for e in range(2)]
    def conv(c, a):
        out = []
        for j in range(5):
            b = etile(c, 2 * a, j)
            cv = [I('v_cvt_pk_bf16_f32 v%d, v%d, v%d' % (b + i, b + 2 * i, b + 2 * i + 1)) for i in range(4)]
            out.append(cv[:2]); out.append(cv[2:])
            out.append([I('s_add_u32 s%d, s%d, 0x%x' % (sA, sCP + c, ((10 if o.loc < 0 else 16) * a + j) * 1024)),
                        I('buffer_store_dwordx4 %s, v%d, s[%d:%d], s%d offen %s' % (vr(b, 4), PO, SP_, SP_ + 3, sA, o.st_pol), tag='st%d' % c)])
        return out
    s('s_mov_b32 s%d, 0' % sREDO)
    s.add(reads_for(0))
    part = [I('ds_read_b128 %s, v98 offset:%d' % (ar(PART + 4 * f, 4), 1024 * f), lds=exr) for f in range(20)]
    own = [I('ds_read_b128 %s, v97 offset:%d' % (ar(OWN + 4 * f, 4), 1024 * f), lds=exr) for f in range(20)]
    s('s_mul_i32 s3, s%d, %d' % (sP, 80 if o.loc < 0 else 128)); s('s_mul_i32 s36, s%d, %d' % (sHF, 5 if o.loc < 0 else 8)); s('s_add_u32 s3, s3, s36'); s('s_lshl_b32 s3, s3, 10')
    s('v_add_u32 v%d, s3, v%d' % (PO, LANE16))
    if o.exsp: extra = sum(([[x], []] if i % 3 else [[x]] for i, x in enumerate(part)), []) + sum(([[x], [], []] for x in own), [])
    else: extra = [part[i:i + 2] for i in range(0, 20, 2)] + [own[i:i + 2] for i in range(0, 20, 2)]
    vq = []
    ra = red_addr_dyn(o) if o.dyn else red_addr(o)
    seen = set()
    first_use, last_use = {}, {}
    for ks, (u, fr) in enumerate(KSL):
        first_use.setdefault(u, ks); last_use[u] = ks
    pending = list(range(4, 16))
    for ks, (u, fr) in enumerate(KSL):
        c, phi, dh = u >> 2, (u >> 1) & 1, u & 1
        if ks % 2 == 0: tstamp(s, o, 'o', ks // 2)
        if ks % 16 == 0: tstamp(s, o, 'w', 12 + ks // 16)
        buf = ks & 1
        mf = []
        for i, (jn, kk) in enumerate(fr):
            sidx = 2 * dh + kk
            first = (c, jn) not in seen; seen.add((c, jn))
            for j in range(5):
                d = vr(etile(c, jn, j), 4)
                if phi: bf = ar(PART + 16 * j + 4 * sidx, 4)
                elif c == 0: bf = vr(16 * j + 4 * sidx, 4)
                else: bf = ar(OWN + 16 * j + 4 * sidx, 4)
                mf.append(mfma(d, ar(KB + 16 * buf + 4 * i, 4), bf, '0' if first else d))
        need = regs('a', KB + 16 * buf, 16)
        if phi and c == 0: need = need + regs('a', PART, 80)
        bar = None
        nxt = KSL[ks + 1][0] if ks + 1 < 32 else None
        exk = 6 if o.exsp else 2
        if nxt is not None and (first_use[nxt] == ks + 1 or ks == exk):
            if ks == exk: need = need + regs('a', OWN, 80) + regs('a', PART, 80)
            new = []
            for v in list(pending):
                ok = v == 4 or (5 <= v <= 7 and ks >= exk) or (v >= 8 and last_use[v - 8] <= ks)
                if not ok: break
                new += dma_wo(o, v); pending.remove(v)
            bar = dict(tags=['wo%d' % nxt])
            barrier_hooks.append(lambda new=new: vq.extend(new))
        rds = reads_for(ks + 1) if nxt is not None else []
        if ks == (9 if o.exsp else 4): extra += [ra[i:i + 2] for i in range(0, len(ra), 2)]
        if ks % 4 == 0 and ks > 0:
            cv = [[]] * 2 + conv((ks - 4) >> 3, ((ks - 4) >> 2) & 1)
            extra[0:0] = cv
        for cc, at in enumerate(int(x) for x in o.fl.split(',')):
            if ks == at: extra.insert(0, [Wait(tags=['st%d' % cc])] + flag_ops(o, cc))
        for x in (o.cfl.split(',') if o.cfl else []):
            cc, at = (int(y) for y in x.split(':'))
            if ks == at: extra.insert(0, [CondOps(['st%d' % cc], [i.text for i in flag_ops(o, cc)], 43)])
        if o.early:
            if ks == o.epoll: extra.insert(0, [I(poll_txt(), tag='poll')])
            if ks == o.epoll + 2:
                extra += [[I('s_mov_b32 s%d, s%d' % (SG2, SG)), I('s_mov_b32 s%d, s%d' % (SG2 + 1, SG + 1))],
                          [Wait(regs=[('v', PL)]), I('v_cmp_gt_u32 vcc, 1, v%d' % PL), I('s_mov_b32 s%d, 0x20000' % (SG2 + 3)), I('s_cmp_eq_u64 vcc, 0'),
                           I('s_cselect_b32 s%d, 0x%x, 0' % (SG2 + 2, 16 * PST)), I('s_cselect_b32 s%d, 1, 0' % sE)]]
                for g in load_groups(o, 0, lambda k: vr(144 + 4 * k, 4), sB, SG2): extra += [g] + [[]] * (o.ldevery - 1)
        if o.dyn and o.eclaim and ks == o.eclaim:
            extra.insert(0, [I('v_mov_b32 v%d, %d' % (CL, o.nb)), I('buffer_atomic_add v%d, v%d, s[%d:%d], 0 offen sc0' % (CL, QAD, SF, SF + 3), tag='claim'), I(poll_txt(), tag='poll')])
        elif ks == 30 and not (o.dyn and o.eclaim): extra.insert(0 if o.early else len(extra), [I(poll_txt(), tag='poll')])
        gemm_kstep(s, mf, need, rds, bar, extra, o.oevery, vq)
        if ks % 8 == 7: stamp(s, o, 7 + c)
    extra = [g for g in extra if g]
    assert not extra and not vq and not pending, (len(extra), len(vq), pending)
    s('s_nop 3')
    for g in conv(3, 1): s.add(g)
    stamp(s, o, 11)
    if o.early:
        s('s_cmp_lg_u32 s%d, 0' % sE)
        s('s_cbranch_scc1 L_redE')
    return s

def summ_ops(s, buf, o2):
    a = AC
    for i in range(16): s('v_mov_b32 v%d, 0' % (a + i))
    for k in range(10):
        if k in (0, 4, 8): s.wait(regs=regs('v', buf + 4 * k, 16 if k < 8 else 8))
        for d in range(4):
            x = buf + 4 * k + d
            b = a + (8 if k >= 8 else 0)
            s('v_dot2c_f32_bf16 v%d, v%d, v%d' % (b + 2 * d, x, C10)); s('v_dot2c_f32_bf16 v%d, v%d, v%d' % (b + 2 * d + 1, x, C01))
    t = RT
    s('s_nop 2')
    for i in range(8): s('v_add_f32_dpp v%d, v%d, v%d row_ror:8 row_mask:0xf bank_mask:0xf' % (t + i, a + 8 + i, a + 8 + i))
    for i in range(8): s('v_mov_b32 v%d, v%d' % (a + 8 + i, t + i))
    s('s_nop 0')
    for i in range(8): s('v_permlane16_swap_b32 v%d, v%d' % (t + i, a + 8 + i))
    for i in range(8): s('v_add_f32 v%d, v%d, v%d' % (a + 8 + i, a + 8 + i, t + i))
    for b in (a, a + 8):
        for i in range(4): s('v_permlane32_swap_b32 v%d, v%d' % (b + i, b + 4 + i))
    for b in (a, a + 8):
        for i in range(4): s('v_add_f32 v%d, v%d, v%d' % (b + i, b + i, b + 4 + i))
    for n_, b in enumerate((a, a + 8)):
        s('v_cvt_pk_bf16_f32 v%d, v%d, v%d' % (o2 + 2 * n_, b, b + 1)); s('v_cvt_pk_bf16_f32 v%d, v%d, v%d' % (o2 + 2 * n_ + 1, b + 2, b + 3))

def gen_red_dyn(o):
    poll = poll_txt()
    BUF = (144, 184, 0)
    NB = o.nb
    NSL = 160 if o.loc >= 0 else 320 if o.sl8 else 256
    def chunk_of(s, dst, idx):
        if o.loc >= 0: s('s_mul_i32 s%d, s%d, 52429' % (dst, idx)); s('s_lshr_b32 s%d, s%d, 21' % (dst, dst))
        elif o.sl8: s('s_mul_i32 s%d, s%d, 52429' % (dst, idx)); s('s_lshr_b32 s%d, s%d, 22' % (dst, dst))
        else: s('s_lshr_b32 s%d, s%d, 6' % (dst, idx))
    def claim(s, n):
        s('v_mov_b32 v%d, %d' % (CL, n))
        s('buffer_atomic_add v%d, v%d, s[%d:%d], 0 offen sc0' % (CL, QAD, SF, SF + 3), tag='claim')
    def check(s, idx, name):
        chunk_of(s, sN, idx); s('s_add_u32 s%d, s%d, 1' % (sN, sN))
        s.wait(regs=[('v', PL)])
        s('v_cmp_gt_u32 vcc, s%d, v%d' % (sN, PL))
        s('s_cbranch_vccnz L_spin%s' % name)
        s.label('L_got%s' % name)
    def addr(s, idx, x):
        t = RT
        if o.sl8:
            s('s_sub_u32 s3, s%d, 1' % sN); s('s_mul_i32 s36, s3, %d' % (NSL // 4)); s('s_sub_u32 s36, s%d, s36' % idx)
            if o.rotc: s('s_add_u32 s3, s3, s39'); s('s_and_b32 s3, s3, 3')
            s('s_bfe_u32 s62, s36, 0x10001'); s('s_lshl_b32 s62, s62, 2'); s('s_add_u32 s3, s3, s62'); s('s_lshl_b32 s3, s3, 1')
            s('s_and_b32 s62, s36, 1'); s('s_add_u32 s3, s3, s62')
            s('s_lshr_b32 s36, s36, 2')
            s('s_lshl_b32 s62, s3, 6'); s('s_lshl_b32 s63, s36, 14'); s('s_add_u32 s62, s62, s63'); s('s_add_u32 s62, s62, s%d' % sDB)
            if o.loc >= 0: s('s_mul_i32 s63, s%d, %d' % (sH, 10 << 14)); s('s_add_u32 s62, s62, s63')
            s('v_add_u32 v%d, s62, v%d' % (ODS[x][0], LD2))
            if o.loc >= 0: s('s_lshl_b32 s3, s3, 1'); s('s_add_u32 s3, s3, s%d' % sH); s('s_lshl_b32 s3, s3, 3')
            else: s('s_mul_i32 s3, s3, 10')
            s('s_lshr_b32 s62, s36, 1'); s('s_add_u32 s3, s3, s62'); s('s_lshl_b32 s3, s3, 10')
            s('s_and_b32 s36, s36, 1'); s('s_lshl_b32 s36, s36, 7'); s('s_add_u32 s3, s3, s36')
            s('v_add_u32 v%d, s3, v%d' % (AD, LA2))
            return
        s('s_lshr_b32 s3, s%d, 6' % idx)
        if o.rotc: s('s_add_u32 s3, s3, s39'); s('s_and_b32 s3, s3, 3')
        s('s_bfe_u32 s36, s%d, 0x10005' % idx); s('s_lshl_b32 s36, s36, 2'); s('s_add_u32 s3, s3, s36'); s('s_lshl_b32 s3, s3, 1')
        s('s_bfe_u32 s36, s%d, 0x10004' % idx); s('s_add_u32 s3, s3, s36')
        s('s_and_b32 s36, s%d, 3' % idx)
        s('s_mul_i32 s62, s3, 10240'); s('s_lshl_b32 s63, s36, 8'); s('s_add_u32 s%d, s62, s63' % sM0)
        s('s_lshl_b32 s62, s3, 3'); s('s_add_u32 s62, s62, s36'); s('s_lshl_b32 s62, s62, 3'); s('s_add_u32 s62, s62, s%d' % sDB)
        s('s_bfe_u32 s63, s%d, 0x20002' % idx); s('s_mul_i32 s63, s63, 5')
        s('v_add_u32 v%d, s63, v%d' % (t, LO))
        s('s_lshl_b32 s3, s63, 14'); s('s_add_u32 s62, s62, s3')
        s('v_lshrrev_b32 v%d, 1, v%d' % (t + 1, t))
        s('v_and_b32 v%d, 1, v%d' % (t, t))
        s('v_add_u32 v%d, s62, v%d' % (ODS[x][0], LD))
        s('v_lshlrev_b32 v%d, 7, v%d' % (t, t))
        s('s_add_u32 s62, s62, 0x10000')
        s('v_lshl_add_u32 v%d, v%d, 10, v%d' % (t, t + 1, t))
        s('v_add_u32 v%d, s62, v%d' % (ODS[x][1], LD2))
        s('v_add3_u32 v%d, v%d, v%d, s%d' % (AD, t, LA, sM0))
        s('s_lshr_b32 s3, s63, 1'); s('s_add_u32 s3, s3, 2'); s('s_lshl_b32 s3, s3, 10'); s('s_and_b32 s63, s63, 1'); s('s_lshl_b32 s63, s63, 7')
        s('s_add_u32 s3, s3, s63'); s('s_add_u32 s3, s3, s%d' % sM0)
        s('v_add_u32 v%d, s3, v%d' % (AD2, LA2))
    def loads(s, x, ks=range(10)):
        for k in ks:
            if o.sl8 and k >= 8: continue
            off, ad = (2 * PST * k, AD) if k < 8 else (8 * PST * (k - 8), AD2)
            if o.loc >= 0: off = ((k >> 2) << 22) + ((k & 3) << 19)
            s('s_mov_b32 s%d, 0x%x' % (sA, off))
            if o.rcap: s('s_waitcnt vmcnt(%d)' % o.rcap)
            s('buffer_load_dwordx4 %s, v%d, s[%d:%d], s%d offen %s' % (vr(BUF[x] + 4 * k, 4), ad, SG, SG + 3, sA, o.rd_pol))
    def finish(s, x):
        o2 = (100, 104, 92)[x]
        if o.sl8:
            a = AC
            for k in range(8):
                if k in (0, 4): s.wait(regs=regs('v', BUF[x] + 4 * k, 16))
                for d in range(4):
                    r = BUF[x] + 4 * k + d
                    if k == 0: s('v_lshlrev_b32 v%d, 16, v%d' % (a + 2 * d, r)); s('v_and_b32 v%d, 0xffff0000, v%d' % (a + 2 * d + 1, r))
                    else: s('v_dot2c_f32_bf16 v%d, v%d, v%d' % (a + 2 * d, r, C10)); s('v_dot2c_f32_bf16 v%d, v%d, v%d' % (a + 2 * d + 1, r, C01))
            s('s_nop 2')
            for i in range(4): s('v_permlane32_swap_b32 v%d, v%d' % (a + i, a + 4 + i))
            for i in range(4): s('v_add_f32 v%d, v%d, v%d' % (a + i, a + i, a + 4 + i))
            s('v_cvt_pk_bf16_f32 v%d, v%d, v%d' % (o2, a, a + 1)); s('v_cvt_pk_bf16_f32 v%d, v%d, v%d' % (o2 + 1, a + 2, a + 3))
            s('buffer_store_dwordx2 %s, v%d, s[%d:%d], 0 offen %s' % (vr(o2, 2), ODS[x][0], SO, SO + 3, o.out_pol))
            return
        summ_ops(s, BUF[x], o2)
        for h in range(2): s('buffer_store_dwordx2 %s, v%d, s[%d:%d], 0 offen %s' % (vr(o2 + 2 * h, 2), ODS[x][h], SO, SO + 3, o.out_pol))
    pre = Seg('redpre')
    for i in range(15): tstamp(pre, o, 'r', i)
    tstamp(pre, o, 'w', 14)
    pre('s_mov_b32 s%d, 0' % sIT)
    if o.eclaim:
        pre.wait(tags=['claim', 'poll'])
        pre('v_readfirstlane_b32 s%d, v%d' % (sI0, CL))
        pre('s_lshr_b32 s%d, s%d, 6' % (sN, sI0)); pre('s_add_u32 s%d, s%d, 1' % (sN, sN))
        pre('v_cmp_gt_u32 vcc, s%d, v%d' % (sN, PL))
        pre('s_add_u32 s%d, s%d, 1' % (sI1, sI0))
        pre('s_cbranch_vccnz L_late')
        addr(pre, sI0, 0)
        loads(pre, 0, range(o.nfirst))
        pre.wait(tags=['st3'])
        pre.add(flag_ops(o, 3))
        loads(pre, 0, range(o.nfirst, 10))
        late = Seg('late')
        late.label('L_late')
        late('s_waitcnt vmcnt(0)')
        late.add(flag_ops(o, 3))
        late('s_cmp_ge_u32 s%d, 256' % sI0)
        late('s_cbranch_scc1 L_end')
        check(late, sI0, 'P')
        addr(late, sI0, 0)
        loads(late, 0)
        late('s_branch L_rb0')
        o.late = late
        tstamp(pre, o, 'r', 2)
        stamp(pre, o, 12)
    else:
        claim(pre, NB + o.ahead)
        if o.f2post:
            pre.wait(tags=['st2'])
            pre.add(flag_ops(o, 2))
        pre.wait(tags=['st3'])
        pre.add(flag_ops(o, 3))
        tstamp(pre, o, 'r', 1)
        pre.wait(tags=['claim'])
        pre('v_readfirstlane_b32 s%d, v%d' % (sI0, CL))
        tstamp(pre, o, 'r', 2)
        stamp(pre, o, 12)
        if o.loc >= 0: pre.label('L_pre2')
        pre('s_add_u32 s%d, s%d, 1' % (sI1, sI0))
        for k in range(o.ahead): pre('s_add_u32 s%d, s%d, %d' % (sQ + k, sI0, NB + k))
        pre('s_cmp_ge_u32 s%d, %d' % (sI0, NSL))
        pre('s_cbranch_scc1 %s' % ('L_end' if o.loc < 0 else 'L_swP'))
        check(pre, sI0, 'P')
        addr(pre, sI0, 0)
        loads(pre, 0)
    if NB == 3:
        pre('s_cmp_ge_u32 s%d, %d' % (sI1, NSL))
        pre('s_cbranch_scc1 L_rlast0')
        check(pre, sI1, 'Q')
        addr(pre, sI1, 1)
        loads(pre, 1)
        pre('s_add_u32 s%d, s%d, 1' % (sI1, sI1))
    body, fin = [], []
    for x in range(NB):
        y = (x + NB - 1) % NB
        b = Seg('redbody%d' % x)
        b.label('L_rb%d' % x)
        if o.trace == 'r':
            b('%s s[%d:%d]' % (clk(o), sST + 6, sST + 7)); b('s_waitcnt lgkmcnt(0)'); b('s_add_u32 m0, s%d, 3' % sIT); b('s_nop 0'); b('v_writelane_b32 v%d, s%d, m0' % (STV + 2, sST + 6))
        b('s_add_u32 s%d, s%d, 1' % (sIT, sIT)); b('s_cmp_gt_u32 s%d, 400' % sIT); b('s_cbranch_scc1 L_rf%d' % x)
        b('s_cmp_ge_u32 s%d, %d' % (sI1, NSL))
        b('s_cbranch_scc1 %s%d' % ('L_rf' if o.loc < 0 else 'L_sw', x))
        check(b, sI1, 'B%d' % x)
        addr(b, sI1, y)
        claim(b, 1)
        b(poll, tag='poll')
        loads(b, y)
        finish(b, x)
        if o.ahead:
            assert o.loc < 0
            b('s_mov_b32 s%d, s%d' % (sI1, sQ))
            for k in range(o.ahead - 1): b('s_mov_b32 s%d, s%d' % (sQ + k, sQ + k + 1))
        b.wait(regs=[('v', CL)])
        b('v_readfirstlane_b32 s%d, v%d' % (sI1 if not o.ahead else sQ + o.ahead - 1, CL))
        if x == NB - 1: b('s_branch L_rb0')
        body.append(b)
        f = Seg('redfin%d' % x)
        f.label('L_rf%d' % x)
        finish(f, x)
        if NB == 3:
            if x == 2: f.label('L_rlast0')
            finish(f, (x + 1) % 3)
        if x < NB - 1: f('s_branch L_end')
        fin.append(f)
    e = Seg('redend')
    e.label('L_end')
    if o.stamps or o.trace:
        e('s_waitcnt vmcnt(0)')
        tstamp(e, o, 'r', 15); tstamp(e, o, 'w', 15)
        stamp(e, o, 13); stamp(e, o, 14); stamp(e, o, 15)
    e.label('L_done')
    e('s_endpgm')
    sp = Seg('spins')
    for n in ('P', 'B0', 'B1') + (('Q', 'B2') if NB == 3 else ()): gen_spin(sp, 'L_spin' + n, 'L_got' + n, poll, ['v_cmp_gt_u32 vcc, s%d, v%d' % (sN, PL), 's_cbranch_vccnz @'], 35)
    if o.loc >= 0:
        for n, done, back, reg, cnt in [('P', 'L_end', 'L_pre2', sI0, NB)] + [(str(x), 'L_rf%d' % x, 'L_rb%d' % x, sI1, 1) for x in range(NB)]:
            sp.label('L_sw' + n)
            sp('s_cmp_lg_u32 s%d, 0' % sSW); sp('s_cbranch_scc1 %s' % done)
            sp('s_mov_b32 s%d, 1' % sSW); sp('s_xor_b32 s%d, s%d, 1' % (sH, sH))
            sp('s_waitcnt vmcnt(0)')
            sp('v_xor_b32 v%d, 0x80, v%d' % (QAD, QAD))
            claim(sp, cnt)
            sp('s_waitcnt vmcnt(0)')
            sp('v_readfirstlane_b32 s%d, v%d' % (reg, CL))
            sp('s_branch %s' % back)
    sp.label('L_cntspin')
    sp('s_lshl_b32 s%d, s%d, 3' % (sA, sG))
    gen_spin(sp, 'L_cntspin2', 'L_cntok', 'buffer_load_dword v%d, off, s[%d:%d], s%d offset:128 sc1' % (CNT, SD, SD + 3, sA),
             ['v_readfirstlane_b32 s3, v%d' % CNT, 's_cmp_lt_u32 s3, 16', 's_cbranch_scc1 @'], 35)
    return pre, body, fin, e, sp

def gen_red(o, early, sfx):
    s = Seg('red' + sfx)
    if sfx: s.label('L_red' + sfx)
    poll = poll_txt()
    BUF = [144, 184, 0, 40]
    def check(n):
        s.wait(regs=[('v', PL)])
        s('v_cmp_gt_u32 vcc, %d, v%d' % (n, PL))
        s('s_cbranch_vccnz L_spin%d%s' % (n, sfx))
        s.label('L_got%d%s' % (n, sfx))
    def loads(c):
        for g in load_groups(o, c, lambda k: vr(BUF[c] + 4 * k, 4), sA): s.add(g)
    def summ(c): summ_ops(s, BUF[c], 100 + 4 * (c & 1))
    def outst(c):
        o2 = 100 + 4 * (c & 1)
        s('buffer_store_dwordx2 %s, v%d, s[%d:%d], s%d offen %s' % (vr(o2, 2), OD, SO, SO + 3, sCW + c, o.out_pol))
        s('buffer_store_dwordx2 %s, v%d, s[%d:%d], s%d offen %s' % (vr(o2 + 2, 2), OD2, SO, SO + 3, sCW + c, o.out_pol))
    T = lambda i: tstamp(s, o, 'r', i)
    T(0)
    if o.fl3:
        s.wait(tags=['st3'])
        s.add(flag_ops(o, 3))
        check(1)
        T(1); stamp(s, o, 12)
        loads(0)
        T(2)
        check(2)
        T(3)
        s(poll, tag='poll')
        loads(1)
        T(4)
        summ(0)
    else:
        s.wait(regs=[('v', PL)], tags=['st2'])
        s.add(flag_ops(o, 2))
    if o.fl3: pass
    elif not early:
        check(1)
        T(1); stamp(s, o, 12)
        s.wait(regs=regs('v', BUF[0], 40))
        loads(0)
        T(2)
        s.wait(tags=['st3'])
        s.add(flag_ops(o, 3))
        check(2)
        T(3)
        s(poll, tag='poll')
        loads(1)
        T(4)
        summ(0)
    else:
        check(2)
        T(1); stamp(s, o, 12)
        loads(1)
        T(2)
        s.wait(tags=['st3'])
        s.add(flag_ops(o, 3))
        T(3)
        s(poll, tag='poll')
        T(4)
        summ(0)
    T(5)
    check(3)
    T(6); stamp(s, o, 13)
    s(poll, tag='poll')
    loads(2)
    outst(0)
    T(7)
    summ(1)
    T(8)
    check(4)
    T(9); stamp(s, o, 14)
    loads(3)
    outst(1)
    T(10)
    summ(2); outst(2)
    T(11)
    summ(3); outst(3)
    T(12)
    if o.stamps or o.trace:
        s('s_waitcnt vmcnt(0)')
        T(13); T(14); T(15)
        stamp(s, o, 15)
    if not sfx: s.label('L_done')
    s('s_endpgm')
    sp = Seg('spins')
    for n in (2, 3, 4) if early else (1, 2, 3, 4): gen_spin(sp, 'L_spin%d%s' % (n, sfx), 'L_got%d%s' % (n, sfx), poll, ['v_cmp_gt_u32 vcc, %d, v%d' % (n, PL), 's_cbranch_vccnz @'])
    if sfx: return s, sp
    sp.label('L_cntspin')
    sp('s_lshl_b32 s%d, s%d, 3' % (sA, sG))
    gen_spin(sp, 'L_cntspin2', 'L_cntok', 'buffer_load_dword v%d, off, s[%d:%d], s%d offset:128 sc1' % (CNT, SD, SD + 3, sA),
             ['v_readfirstlane_b32 s3, v%d' % CNT, 's_cmp_lt_u32 s3, 16', 's_cbranch_scc1 @'])
    return s, sp

def desc(name, vgpr, accum, sgpr):
    return '''.amdhsa_kernel %s
  .amdhsa_next_free_vgpr %d
  .amdhsa_next_free_sgpr %d
  .amdhsa_accum_offset %d
  .amdhsa_group_segment_fixed_size 0
  .amdhsa_kernarg_size 104
  .amdhsa_user_sgpr_count 2
  .amdhsa_user_sgpr_kernarg_segment_ptr 1
  .amdhsa_system_sgpr_workgroup_id_x 1
  .amdhsa_float_denorm_mode_32 3
.end_amdhsa_kernel
''' % (name, vgpr, sgpr, accum)

DOC = """;
; One workgroup per CU = one (branch, batch, head pair); waves 0,1 own the first head, waves 2,3 the second, 80 query rows each.
; Everything is computed transposed (queries along the lanes) with v_mfma_f32_16x16x32_bf16; all tiles reach LDS by LDS-DMA.
;   qphase : Q^T = Wq^T x^T, scaled by log2(e)/sqrt(128), packed to bf16; first score tile gives the row maxima m
;   red    : the 16 partials of a (branch, batch) are summed in 8-row x 32-column slices handed out by a counter
"""
def build(o, path):
    o.kvat_l = [int(x) for x in o.kvat.split(',')]
    o.stat_l = [int(x) for x in o.stat.split(',')]
    o.sched = kv_schedule(o)
    Pace.slots = o.slots; Pace.slp = o.slp
    entry, q, s0, attn, epi = gen_entry(o), gen_q(o), gen_s0(o), gen_attn(o), gen_epi(o)
    r0, r1, r2 = gen_redo(o)
    op = gen_op(o)
    if o.dyn:
        pre, body, fin, e, spins = gen_red_dyn(o)
        tail_code = [pre] + body + fin + [e, spins]
        tails = [[pre] + body + body + [fin[0], e], [pre] + body + [body[0], fin[1], e]]
        xtails = [[pre, fin[0], e], [pre, body[0], fin[1], e]]
        if o.eclaim:
            assert o.nb == 2
            h = Seg('h'); h.items = pre.items[:[i for i, it in enumerate(pre.items) if it.kind == 'branch' and 'L_late' in it.text][0] + 1]
            xtails += [[h, o.late, body[0], body[1], fin[0], e], [h, o.late, fin[0], e]]
            tail_code.append(o.late)
        if o.nb == 3:
            h = Seg('h'); h.items = pre.items[:[i for i, it in enumerate(pre.items) if it.kind == 'branch' and 'L_rlast0' in it.text][0] + 1]
            l = Seg('l'); l.items = fin[2].items[[i for i, it in enumerate(fin[2].items) if it.kind == 'label' and it.name == 'L_rlast0'][0]:]
            xtails += [[pre, body[0], body[1], fin[2], e], [pre] + body + [body[0], body[1], fin[2], e], [h, l, e]]
    else:
        red, spins = gen_red(o, False, '')
        redE, spinsE = gen_red(o, True, 'E') if o.early else (Seg('x'), Seg('x'))
        tail_code = [red, redE, spins, spinsE]
        tails = [[red], [redE if o.early else red]]
    traces = []
    for redo in (0, 1):
        tr = [(entry, {}), (q, {})]
        for ps in range(redo + 1):
            if ps: tr += [(r0, {}), (r1, {}), (r1, {}), (r2, {})]
            tr += [(s0, {}), (attn, {}), (epi, dict(redo=ps))]
        tr += [(op, dict(redo=redo))] + [(x, {}) for x in tails[redo]]
        traces.append(('redo%d' % redo, tr))
    if o.dyn:
        base = traces[0][1][:-len(tails[0])]
        for i, xt in enumerate(xtails): traces.append(('x%d' % i, base + [(x, {}) for x in xt]))
    if o.jit:
        import random
        rnd = random.Random(o.jit)
        cnt = [0]
        def delay(reg, mask, val, n):
            cnt[0] += 1
            out = [I('s_and_b32 s43, s%d, %d' % (reg, mask)), I('s_cmp_eq_u32 s43, %d' % val), I('s_cbranch_scc0 L_jit%d' % cnt[0])]
            out += [I('s_sleep %d' % min(127, n))] * (1 + n // 128) + [Label('L_jit%d' % cnt[0])]
            return out
        for sg in (q, s0, attn, epi, op):
            out = []
            for it in sg.items:
                if it.kind == 'barrier':
                    r = rnd.random()
                    if r < 0.5: out += delay(sW, 3, rnd.randrange(4), rnd.randrange(1, 40))
                    out.append(it)
                    if r > 0.3: out += delay(sW, 3, rnd.randrange(4), rnd.randrange(1, 40))
                    if rnd.random() < 0.08: out += delay(2, 15, rnd.randrange(16), rnd.randrange(100, 600))
                else: out.append(it)
            sg.items = out
        q.items = delay(2, 31, 5, 1500) + q.items
    resolve([t for _, t in traces])
    allerr = []
    for name, tr in traces: allerr += check(tr, name)[0]
    for e in allerr[:6]: print('ERR', e)
    if allerr: print(len(allerr), 'errors')
    hdr = open('concat_heads__gqa_block_cached__gqa_block_cached__near_ridge.s.ref').read().split('; Override')[0]
    txt = hdr + '; @launch grid=(256,1,1) block=(256,1,1) lds=163840\n' + DOC
    txt += '.amdgcn_target "amdgcn-amd-amdhsa--gfx950"\n.text\n.globl %s\n.p2align 8\n.type %s,@function\n%s:\n' % (KN, KN, KN)
    for sg in [entry, q, s0, attn, epi, op] + tail_code + [r0, r1, r2]: txt += '; ---- %s\n' % sg.name + sg.text()
    txt += 'L_code_end:\n'
    txt += '.section .rodata,"a"\n.p2align 6\n' + desc(KN, 512, 256, 102)
    open(path, 'w').write(txt)
    return not allerr

if __name__ == '__main__':
    o = Opt()
    path = sys.argv[1]
    for kv in sys.argv[2:]:
        k, v = kv.split('=')
        cur = getattr(o, k)
        setattr(o, k, int(v) if isinstance(cur, int) else v.replace('+', ' '))
    ok = build(o, path)
    if not ok: os.remove(path); sys.exit(1)
    print('written', path, 'ok' if ok else 'WITH ERRORS', {h: len(v) for h, v in o.sched.items() if len(v) != 4 and (len(v) or h < 62)} if '-v' in path else '')
```
